```python
import torch

def _softmax(x, axis=-1):
    return torch.softmax(x, dim=axis)
def _gelu(x):
    return torch.nn.functional.gelu(x, approximate="tanh")
def _silu(x):
    return torch.nn.functional.silu(x)
def _sigmoid(x):
    return torch.sigmoid(x)
def _layernorm(x, axis=-1, eps=1e-5):
    m = x.mean(dim=axis, keepdim=True)
    v = x.var(dim=axis, keepdim=True, unbiased=False)
    return (x - m) / torch.sqrt(v + eps)
def _scatter_add(tgt, idx, src, axis=0):
    return tgt.clone().index_add_(axis, idx, src)
def _segment_sum(src, seg, n):
    out = torch.zeros((n,) + src.shape[1:], dtype=src.dtype)
    return out.index_add_(0, seg, src)
def _pad(x, pw):
    flat = tuple(v for pair in reversed(pw) for v in pair)
    return torch.nn.functional.pad(x, flat)

kernel_name = 'standalone__mha_block_cached__near_ridge'

def setup_inputs():

    _w = (lambda a: (lambda t: t.to(torch.bfloat16) if t.is_floating_point() else t)(torch.as_tensor(a)))
    B, Sq, D = 8, 256, 576
    H, Sk, Dh = 32, 1024, 128
    return {
        "x": _w((lambda *s: torch.randn(*s, dtype=torch.bfloat16) * 0.8)(B, Sq, D)),
        "k_cache": _w((lambda *s: torch.randn(*s, dtype=torch.bfloat16) * 0.8)(B, H, Sk, Dh)),
        "v_cache": _w((lambda *s: torch.randn(*s, dtype=torch.bfloat16) * 0.05)(B, H, Sk, Dh)),
        "wq": _w((lambda *s: torch.randn(*s, dtype=torch.bfloat16) * 0.8)(D, H * Dh) * (D ** -0.5)),
        "wo": _w((lambda *s: torch.randn(*s, dtype=torch.bfloat16) * 0.05)(H * Dh, D) * ((H * Dh) ** -0.5)),
    }

def reference(x, k_cache, v_cache, wq, wo):
    B, Sq, D = x.shape
    H, Dh = 32, 128
    q = (lambda x, *d: x.permute(*d))((x @ wq).reshape(B, Sq, H, Dh), 0, 2, 1, 3)
    scores = torch.einsum("bhqd,bhkd->bhqk", q, k_cache) * (Dh ** -0.5)
    p = _softmax(scores, axis=-1)
    o = torch.einsum("bhqk,bhkd->bhqd", p, v_cache)
    return (lambda x, *d: x.permute(*d))(o, 0, 2, 1, 3).reshape(B, Sq, H * Dh) @ wo
```

```python
import re

class Prog:
    def __init__(self):
        self.lines = []
    def __call__(self, s):
        if isinstance(s, (list, tuple)):
            for x in s: self(x)
        else:
            for x in s.split('\n'):
                x = x.strip()
                if x: self.lines.append(x)
    def text(self):
        out = []
        for l in self.lines:
            if l.endswith(':') or l.startswith('.') or l.startswith(';'):
                out.append(l)
            else:
                out.append('    ' + l)
        return '\n'.join(out) + '\n'

def vr(base, n=1, f='v'):
    return f'{f}{base}' if n == 1 else f'{f}[{base}:{base+n-1}]'
def ar(base, n=1): return vr(base, n, 'a')
def sr(base, n=1): return vr(base, n, 's')

_reg = re.compile(r'\b([vas])(\d+)\b|\b([vas])\[(\d+):(\d+)\]')
def regs_of(op):
    out = set()
    for m in _reg.finditer(op):
        if m.group(1): out.add((m.group(1), int(m.group(2))))
        else:
            for i in range(int(m.group(4)), int(m.group(5)) + 1): out.add((m.group(3), i))
    return out

def split_ops(line):
    line = line.split(';')[0].strip()
    parts = line.split(None, 1)
    mn = parts[0]
    ops = []
    if len(parts) > 1:
        depth = 0; cur = ''
        for ch in parts[1]:
            if ch == '[': depth += 1
            if ch == ']': depth -= 1
            if ch == ',' and depth == 0: ops.append(cur.strip()); cur = ''
            else: cur += ch
        ops.append(cur.strip())
    return mn, ops

TRANS = ('v_exp_f32', 'v_rcp_f32', 'v_log_f32', 'v_rsq_f32', 'v_sqrt_f32')
def classify(line):
    mn, ops = split_ops(line)
    k = dict(mn=mn, kind='other', w=set(), r=set(), passes=0, ws=1)
    if mn.startswith('v_mfma'):
        k['kind'] = 'mfma'
        k['passes'] = 8 if '32x32x16' in mn else (4 if '16x16x32' in mn else (2 if '4x4x4' in mn else 8))
        k['w'] = regs_of(ops[0]); k['a'] = regs_of(ops[1]); k['b'] = regs_of(ops[2]); k['c'] = regs_of(ops[3].split()[0])
        k['r'] = k['a'] | k['b'] | k['c']
    elif mn.startswith('v_'):
        k['kind'] = 'valu'
        base = mn.replace('_e32', '').replace('_e64', '')
        k['trans'] = base in TRANS
        if mn.startswith('v_cmp') or mn.startswith('v_readfirstlane') or mn.startswith('v_readlane'):
            k['w'] = regs_of(ops[0]); k['r'] = set().union(*[regs_of(o) for o in ops[1:]])
        elif mn.startswith('v_permlane') :
            k['w'] = regs_of(ops[0]) | regs_of(ops[1]); k['r'] = set(k['w']); k['perm'] = True
        else:
            k['w'] = regs_of(ops[0]); k['r'] = set().union(*[regs_of(o) for o in ops[1:]]) if len(ops) > 1 else set()
            if base in ('v_fmac_f32', 'v_dot2c_f32_bf16'): k['r'] |= k['w']
            if mn.startswith('v_add_co') or mn.startswith('v_addc_co'): pass
    elif mn.startswith('ds_read') :
        k['kind'] = 'ds'; k['w'] = regs_of(ops[0]); k['r'] = regs_of(ops[1].split()[0])
    elif mn.startswith('ds_write'):
        k['kind'] = 'ds'; k['r'] = set().union(*[regs_of(o.split()[0]) for o in ops])
    elif mn.startswith('buffer_') or mn.startswith('global_'):
        k['kind'] = 'vmem'
        allr = set().union(*[regs_of(o) for o in ops]) if ops else set()
        if 'load' in mn and ' lds' not in line:
            k['w'] = regs_of(ops[0]); k['r'] = set().union(*[regs_of(o) for o in ops[1:]])
        else:
            k['r'] = allr
        k['wide_store'] = ('store' in mn and ('x4' in mn or 'x3' in mn))
        if k['wide_store']:
            k['data'] = regs_of(ops[0]) if mn.startswith('buffer') else regs_of(ops[1])
    elif mn == 's_nop':
        k['kind'] = 'nop'; k['ws'] = int(ops[0]) + 1
    elif mn.startswith('s_'):
        k['kind'] = 'salu'
        if mn.startswith('s_mov') or mn.startswith('s_add') or mn.startswith('s_sub') or mn.startswith('s_lshl') or mn.startswith('s_lshr') or mn.startswith('s_and') or mn.startswith('s_or') or mn.startswith('s_xor') or mn.startswith('s_mul') or mn.startswith('s_csel'):
            k['w'] = regs_of(ops[0]); k['r'] = set().union(*[regs_of(o) for o in ops[1:]])
            if ops[0] == 'm0': k['wm0'] = True
    return k

def check_hazards(lines, label='', wrap=False, verbose=True):
    ins = [l for l in lines if not (l.endswith(':') or l.startswith('.') or l.startswith(';'))]
    if wrap: ins = ins + ins
    cl = [classify(l) for l in ins]
    errs = []
    n = len(cl)
    for i, p in enumerate(cl):
        dist = 0
        for j in range(i + 1, min(n, i + 40)):
            c = cl[j]
            need = 0; why = ''
            if p['kind'] == 'mfma':
                P = p['passes']
                rel = {2: (5, 4, 3, 1), 4: (8, 6, 6, 3), 8: (12, 10, 10, 7)}[P]
                if c['kind'] == 'mfma':
                    if p['w'] & (c['a'] | c['b']): need, why = rel[0], 'mfma D->A/B'
                    elif p['w'] & c['c']:
                        if not (p['w'] == c['c'] and p['passes'] == c['passes']): need, why = {2:4,4:6,8:10}[P], 'mfma D->C partial'
                        elif P == 2: need, why = 2, 'mfma2 chain'
                    elif p['w'] & c['w'] and not (p['w'] == c['w']):
                        need, why = rel[0], 'mfma WAW partial'
                elif c['kind'] in ('valu', 'ds', 'vmem'):
                    if p['w'] & (c['r'] | c['w']): need, why = rel[0], 'mfma D->valu/mem'
                    elif c['kind'] == 'valu' and (p['c'] & c['w']): need, why = rel[3], 'mfma C WAR'
            elif p['kind'] == 'valu':
                if c['kind'] == 'mfma' and (p['w'] & c['r']): need, why = 2, 'valu->mfma'
                elif c['kind'] == 'valu':
                    if p.get('trans') and not c.get('trans') and (p['w'] & c['r']): need, why = 1, 'trans->valu'
                    if c.get('perm') and (p['w'] & c['r']): need, why = 2, 'valu->permlane'
                    if c['mn'].startswith('v_readfirstlane') or c['mn'].startswith('v_readlane'):
                        if p['w'] & c['r']: need, why = max(need, 1), 'valu->readlane'
                    sw = {r for r in p['w'] if r[0] == 's'}
                    if sw & c['r']: need, why = max(need, 2), 'valu sgpr->valu'
                elif c['kind'] == 'vmem':
                    sw = {r for r in p['w'] if r[0] == 's'}
                    if sw & c['r']: need, why = 5, 'valu sgpr->vmem'
            elif p['kind'] == 'vmem' and p.get('wide_store'):
                if c['kind'] == 'valu' and (p['data'] & c['w']): need, why = 2, 'store data WAR'
            elif p['kind'] == 'salu' and p.get('wm0'):
                if c['kind'] == 'vmem' and ' lds' in ins[j]: need, why = 1, 'm0->dma'
            if need > dist:
                errs.append(f'{label}: [{i}] {ins[i]}  ->  [{j}] {ins[j]} : {why} needs {need}, has {dist}')
            dist += c['ws']
            if dist > 20: break
    if verbose:
        for e in errs: print('HAZARD', e)
    return errs

def simulate(trace, label=''):
    errs = []
    vmq = []
    lgq = []
    pend = {}
    epoch = 0
    tile_dma_out = {}
    tile_done_epoch = {}
    tile_priv = {}
    slot_tag = {}
    tile_rd_out = {}
    tile_rd_epoch = {}
    def retire_vm(n):
        while len(vmq) > n:
            o = vmq.pop(0)
            for r in o['regs']:
                if pend.get(r) is o: del pend[r]
            if o['tag']:
                tile_dma_out[o['tag']] -= 1
                tile_done_epoch[o['tag']] = epoch
    def retire_lg(n):
        while len(lgq) > n:
            o = lgq.pop(0)
            for r in o['regs']:
                if pend.get(r) is o: del pend[r]
            if o['tag']:
                tile_rd_out[o['tag']] -= 1
                tile_rd_epoch[o['tag']] = epoch
    for idx, line in enumerate(trace):
        if line.endswith(':') or line.startswith('.') or line.startswith(';'): continue
        code, _, com = line.partition(';')
        code = code.strip()
        mn = code.split()[0]
        ann = com.split()
        if mn == 's_waitcnt':
            m = re.search(r'vmcnt\((\d+)\)', code)
            if m: retire_vm(int(m.group(1)))
            m = re.search(r'lgkmcnt\((\d+)\)', code)
            if m: retire_lg(int(m.group(1)))
            continue
        if mn == 's_barrier':
            epoch += 1; continue
        c = classify(code)
        for r in (c['r'] | c['w']):
            if r in pend:
                errs.append(f'{label}[{idx}] {code}: touches {r} with pending load ({pend[r]["line"]})')
        if c['kind'] == 'vmem' or mn.startswith('s_load') and False:
            tag = None
            if '@dma' in ann:
                i = ann.index('@dma'); tag = ann[i+1]; slots = ann[i+2].split(','); priv = 'priv' in ann; privwar = 'privwar' in ann
                tile_priv[tag] = priv
                for slot in slots:
                    old = slot_tag.get(slot)
                    if old is not None and old != tag:
                        if tile_rd_out.get(old, 0) > 0:
                            errs.append(f'{label}[{idx}] {code}: DMA {tag} into slot {slot} while reads of {old} outstanding')
                        elif old in tile_rd_epoch and not privwar and tile_rd_epoch[old] >= epoch:
                            errs.append(f'{label}[{idx}] {code}: DMA {tag} into slot {slot}: no barrier after last read of {old}')
                        if tile_dma_out.get(old, 0) > 0:
                            errs.append(f'{label}[{idx}] {code}: DMA {tag} into slot {slot} while DMA of {old} outstanding')
                    slot_tag[slot] = tag
                tile_dma_out[tag] = tile_dma_out.get(tag, 0) + 1
            o = dict(tag=tag, regs=set(c['w']), line=code)
            vmq.append(o)
            if len(vmq) > 63: errs.append(f'{label}[{idx}] more than 63 vmem outstanding')
            for r in o['regs']: pend[r] = o
        elif c['kind'] == 'ds':
            tag = None
            if '@rd' in ann:
                for i, a in enumerate(ann):
                    if a == '@rd':
                        tag = ann[i+1]
                        if tile_dma_out.get(tag, None) is None:
                            errs.append(f'{label}[{idx}] {code}: read of {tag} never loaded')
                        elif tile_dma_out[tag] > 0:
                            errs.append(f'{label}[{idx}] {code}: read of {tag} with DMA outstanding')
                        elif not tile_priv.get(tag) and tile_done_epoch[tag] >= epoch:
                            errs.append(f'{label}[{idx}] {code}: read of {tag} without barrier after DMA wait')
                        if tag not in slot_tag.values():
                            errs.append(f'{label}[{idx}] {code}: read of {tag} which was overwritten')
                tile_rd_out[tag] = tile_rd_out.get(tag, 0) + 1
            o = dict(tag=tag, regs=set(c['w']), line=code)
            lgq.append(o)
            if len(lgq) > 15: pass
            for r in o['regs']: pend[r] = o
    for e in errs[:40]: print('SIM', e)
    return errs
```

```python
from asmlib import *
import gen as G

vOW = 8
vOO = 17
vRA = 21
vT = 2
vOf = 32
vD = 128
aA = 0
NRING_O = 6
CH = 9216
WREG = 40960
sWoff = 60; sOoff = 61; sM = 62; sCnt = 63

def D(nt, qt): return vD + (nt * 4 + qt) * 4
def Of(ks, qt): return vOf + (ks % NRING_O) * 16 + qt * 4
def Af(buf, nt): return aA + buf * 20 + nt * 4

def wo_dma(m, k):
    L = []
    slot = m % 4
    for p in range(9):
        if p % 4 == 0:
            L.append([f's_add_u32 s{G.sT0}, s{sM}, {slot*CH + p*1024}', f's_mov_b32 m0, s{G.sT0}', 's_nop 0'])
        sl = f'w3_{slot}_{p}'
        L.append([f'buffer_load_dwordx4 v{vOW+p}, s[{G.sWo}:{G.sWo+3}], s{sWoff} offen offset:{(p%4)*1024} lds ; @dma WO{m} {sl} priv privwar'])
    L.append([f's_add_u32 s{sWoff}, s{sWoff}, {64*1152}'])
    return L

def o_loads(ks):
    L = []
    for qt in range(4):
        L.append(f'buffer_load_dwordx4 v[{Of(ks,qt)}:{Of(ks,qt)+3}], v{vOO+qt}, s[{G.sO}:{G.sO+3}], s{sOoff} offen offset:{(ks%4)*1024} sc1 ; @tag O{ks}')
    if ks % 4 == 3: L.append(f's_add_u32 s{sOoff}, s{sOoff}, 4096')
    return L

def a_reads(ks):
    m = ks // 2; slot = m % 4; rowoff = (ks & 1) * 32
    buf = ks & 1
    L = []
    for nt in range(5):
        for u in range(2):
            off = slot * CH + (rowoff + 8 * u) * 144 + nt * 32
            L.append(f'ds_read_b64_tr_b16 a[{Af(buf,nt)+2*u}:{Af(buf,nt)+2*u+1}], v{vRA} offset:{off}')
    return L

def phase3(k):
    e = k.e
    L = G.vLane; T = vT
    k.stamp(5)
    e(f's_mul_i32 s{G.sT1}, s{G.sW}, {1024*1152}')
    for p in range(9):
        e(f'''v_add_u32 v{T}, {64*p}, v{L}
v_mul_u32_u24 v{T+1}, 7282, v{T}
v_lshrrev_b32 v{T+1}, 16, v{T+1}
v_mul_u32_u24 v{T+2}, 9, v{T+1}
v_sub_u32 v{T+2}, v{T}, v{T+2}
v_mul_u32_u24 v{T+1}, 1152, v{T+1}
v_lshl_add_u32 v{T+1}, v{T+2}, 4, v{T+1}
v_add_u32 v{T+1}, s{G.sT1}, v{T+1}''')
        if p % 4: e(f'v_subrev_u32 v{vOW+p}, {(p%4)*1024}, v{T+1}')
        else: e(f'v_mov_b32 v{vOW+p}, v{T+1}')
    e('s_barrier')
    e(f's_mul_i32 s{sM}, s{G.sW}, {WREG}\ns_mov_b32 s{sWoff}, 0')
    for m in range(4):
        for g in wo_dma(m, k): e(g)
    e('s_waitcnt vmcnt(36)\ns_barrier')
    e(f's_cmp_eq_u32 s{G.sW}, 0\ns_cbranch_scc0 L_nosig')
    e(f'''s_lshl_b32 s{G.sT0}, s{G.sB}, 5
v_mov_b32 v{T}, s{G.sT0}
v_mov_b32 v{T+1}, 1
s_mov_b64 s[{G.sT2}:{G.sT2+1}], exec
s_mov_b64 exec, 1
global_atomic_add v{T}, v{T+1}, s[16:17] sc1
s_mov_b64 exec, s[{G.sT2}:{G.sT2+1}]''', trace=False)
    k.p('L_nosig:')
    e(f'''v_lshrrev_b32 v{T}, 5, v{L}
v_bfe_u32 v{T+1}, v{L}, 4, 1
v_bfe_u32 v{T+2}, v{L}, 2, 2
v_lshlrev_b32 v{T}, 4, v{T}
v_lshl_add_u32 v{T}, v{T+1}, 2, v{T}
v_add_u32 v{T}, v{T}, v{T+2}
v_mul_u32_u24 v{T}, 144, v{T}
v_and_b32 v{T+1}, 3, v{L}
v_lshl_add_u32 v{T}, v{T+1}, 3, v{T}
v_add_u32 v{vRA}, s{sM}, v{T}''')
    e(f'v_lshlrev_b32 v{T}, 4, v{L}')
    for qt in range(4): e(f'v_add_u32 v{vOO+qt}, {qt*131072}, v{T}')
    e(f'''s_lshl_b32 s{sOoff}, s{G.sB3}, 2
s_add_u32 s{sOoff}, s{sOoff}, s{G.sQb3}
s_lshl_b32 s{sOoff}, s{sOoff}, 19
s_lshl_b32 s{G.sT1}, s{G.sW}, 15
s_add_u32 s{sOoff}, s{sOoff}, s{G.sT1}''')
    for r in range(80): e(f'v_mov_b32 v{vD+r}, 0')
    e(f's_cmp_eq_u32 s{G.sW}, 0\ns_cbranch_scc0 L_nopoll', trace=False)
    e(f'''s_lshl_b32 s{G.sT0}, s{G.sB3}, 5
v_mov_b32 v{T}, s{G.sT0}
s_mov_b32 s{sCnt}, 0''', trace=False)
    k.p('L_poll:')
    e(f'''global_load_dword v{T+1}, v{T}, s[16:17] sc1
s_waitcnt vmcnt(0)
v_readfirstlane_b32 s{G.sT1}, v{T+1}
s_add_u32 s{sCnt}, s{sCnt}, 1
s_cmp_ge_u32 s{G.sT1}, 32
s_cbranch_scc1 L_nopoll
s_sleep 2
s_cmp_lt_u32 s{sCnt}, 0x8000
s_cbranch_scc1 L_poll''', trace=False)
    k.p('L_nopoll:')
    e('s_barrier')
    k.stamp(6)
    for ks in range(NRING_O): e(o_loads(ks))
    e(f's_waitcnt vmcnt({4*NRING_O + 27})')
    e(a_reads(0))
    q = []
    q += ['W0'] * 9 + ['W1'] * 9 + ['W2'] * 9 + ['W3'] * 9
    for ks in range(NRING_O): q += [f'O{ks}'] * 4
    def need(tags):
        last = max((i for i, t in enumerate(q) if t in tags), default=-1)
        return len(q) - 1 - last
    for ks in range(32):
        m = ks // 2
        S = G.Slots(20)
        buf = ks & 1
        for i in range(20):
            nt, qt = i // 4, i % 4
            S.mf[i] = f'v_mfma_f32_16x16x32_bf16 v[{D(nt,qt)}:{D(nt,qt)+3}], a[{Af(buf,nt)}:{Af(buf,nt)+3}], v[{Of(ks,qt)}:{Of(ks,qt)+3}], v[{D(nt,qt)}:{D(nt,qt)+3}]'
        tags = {f'O{ks}'}
        if ks + 1 < 32: tags.add(f'W{(ks+1)//2}')
        n = min(need(tags), 63)
        S.pre[0].append(f's_waitcnt vmcnt({n}) lgkmcnt(0)')
        if ks + 1 < 32:
            for i, r in enumerate(a_reads(ks + 1)): S.post[i].append(r)
        nxt = ks + NRING_O - 1
        if ks >= 1 and nxt < 32:
            ol = o_loads(nxt)
            for i, r in enumerate(ol): S.post[10 + 2 * min(i, 4)].append(r)
        if ks & 1 and m + 4 < 16:
            g = wo_dma(m + 4, k)
            for i, x in enumerate(g): S.post[min(19, 1 + (i * 18) // len(g))] += x
        out = S.out()
        for x in out:
            if '@tag' in x: q.append(x.split('@tag')[1].split()[0])
            elif '@dma' in x: q.append('W' + x.split('@dma')[1].split()[0][2:])
        e(out)
    e('s_nop 7\ns_barrier')
    e(f'''v_lshlrev_b32 v{T}, 4, v{L}
s_mul_i32 s{G.sT0}, s{G.sW}, 20480
v_add_u32 v{T+1}, s{G.sT0}, v{T}''')
    for i in range(20):
        e(f'ds_write_b128 v{T+1}, v[{vD+4*i}:{vD+4*i+3}] offset:{i*1024}')
    e('s_waitcnt lgkmcnt(0)\ns_barrier')
    e(f's_lshl_b32 s{G.sT0}, s{G.sW}, 10\nv_add_u32 v{T+1}, s{G.sT0}, v{T}')
    R = 32
    e(f'v_add_u32 v{T+5}, 40960, v{T+1}')
    for nt in range(5):
        for src in range(4):
            off = (src & 1) * 20480 + nt * 4096
            e(f'ds_read_b128 v[{R+(nt*4+src)*4}:{R+(nt*4+src)*4+3}], v{T+1 if src < 2 else T+5} offset:{off}')
    e(f'''v_and_b32 v{T+2}, 15, v{L}
v_mul_u32_u24 v{T+2}, 1152, v{T+2}
v_lshrrev_b32 v{T+3}, 4, v{L}
v_lshl_add_u32 v{T+2}, v{T+3}, 3, v{T+2}
s_lshl_b32 s{G.sT0}, s{G.sB3}, 2
s_add_u32 s{G.sT0}, s{G.sT0}, s{G.sQb3}
s_lshl_b32 s{G.sT0}, s{G.sT0}, 2
s_add_u32 s{G.sT0}, s{G.sT0}, s{G.sW}
s_mul_i32 s{G.sT0}, s{G.sT0}, {16*1152}
s_mul_i32 s{G.sT1}, s{G.sNb3}, 144
s_add_u32 s{G.sT0}, s{G.sT0}, s{G.sT1}
v_cmp_gt_u32 vcc, 2, v{T+3}
v_mov_b32 v{T+4}, 0x7fffffff
s_nop 0
v_cndmask_b32 v{T+3}, v{T+4}, v{T+2}, vcc''')
    e('s_waitcnt lgkmcnt(0)')
    for nt in range(5):
        b = R + nt * 16
        for j in range(0, 4, 2):
            e(f'v_pk_add_f32 v[{b+j}:{b+j+1}], v[{b+j}:{b+j+1}], v[{b+4+j}:{b+4+j+1}]')
            e(f'v_pk_add_f32 v[{b+8+j}:{b+8+j+1}], v[{b+8+j}:{b+8+j+1}], v[{b+12+j}:{b+12+j+1}]')
        for j in range(0, 4, 2):
            e(f'v_pk_add_f32 v[{b+j}:{b+j+1}], v[{b+j}:{b+j+1}], v[{b+8+j}:{b+8+j+1}]')
        e(f'v_cvt_pk_bf16_f32 v{b+4}, v{b}, v{b+1}\nv_cvt_pk_bf16_f32 v{b+5}, v{b+2}, v{b+3}')
        va = T + 2 if nt < 4 else T + 3
        e(f'buffer_store_dwordx2 v[{b+4}:{b+5}], v{va}, s[{G.sOut}:{G.sOut+3}], s{G.sT0} offen offset:{nt*32}')
```

```python
import sys, math
from asmlib import *

NAME = 'standalone__mha_block_cached__near_ridge'

class Cfg:
    stamps = False
    nt_kv = True
    phase3 = True
    dump_o = False
cfg = Cfg()

sW = 3
sX, sWq, sK, sV, sO, sWo, sOut = 20, 24, 28, 32, 36, 40, 44
sW4K = 48; sKsoff = 49; sVsoff = 50; sDma = 51; sXor = 52; sIter = 53
sT0, sT1, sT2, sT3 = 54, 55, 56, 57
sC = 58
sXsoff = 60; sWsoff = 61; sStage = 62; sDelta = 63
sB = 64; sH = 65; sM0 = 66; sFlag = 67
sB3 = 68; sQb3 = 69; sNb3 = 70
sStamp = 72

vLane = 1
vT = 2
vKA = 8
vVA = 16
vDK = 20
vDV = 24
vLA, vLB = 25, 26
vMGA, vMGB = 27, 28
vT2 = 29
vS = 32
vC = 64
vP = 96
vXA = 112; vWA = 116
vOX = 32; vOW = 40
vAcc = 128
aQ = 0; aKf = 64; aVf = 96
aPA = 64; aPB = 96

def acc(t, qb): return vAcc + (2 * t + qb) * 16
def SA(qb): return vS + 16 * qb
def CI(qb): return vC + 16 * qb
def PP(qb, s): return vP + 8 * qb + 4 * s
def Qf(qb, ds): return aQ + (qb * 8 + ds) * 4
def Kf(j): return aKf + 4 * j
def Vf(i): return aVf + 4 * i

LDS_V = 65536
STAGE = [65536, 16384, 114688]
NT = lambda: ' nt' if cfg.nt_kv else ''

def kb(addr_fn, n=1):
    return ','.join(str(addr_fn(w) // 1024) for w in range(4))

class Gen:
    def __init__(self):
        self.p = Prog()
        self.tr = []
        self.nstamp = 0
    def e(self, s, text=True, trace=True):
        if isinstance(s, str): s = [x.strip() for x in s.split('\n') if x.strip()]
        if text: self.p(s)
        if trace: self.tr.extend(s)
    def stamp(self, i):
        if cfg.stamps:
            self.e(f's_memrealtime s[{sStamp+4*i}:{sStamp+4*i+1}]\ns_memtime s[{sStamp+4*i+2}:{sStamp+4*i+3}]')
            self.nstamp = max(self.nstamp, i + 1)

def mfma32(d, a, b, c):
    return f'v_mfma_f32_32x32x16_bf16 {d}, {a}, {b}, {c}'

def interleave(mf, fill):
    out = []
    for i, m in enumerate(mf):
        pre, post = fill.get(i, ([], []))
        out += pre
        if m: out.append(m)
        out += post
    return out

class Slots:
    def __init__(self, n):
        self.pre = [[] for _ in range(n)]
        self.post = [[] for _ in range(n)]
        self.mf = [None] * n
    def out(self):
        o = []
        for i in range(len(self.mf)):
            o += self.pre[i]
            if self.mf[i]: o.append(self.mf[i])
            o += self.post[i]
        return o

def dma_K(tile, slot, soff, m0set=True):
    L = []
    for p in range(4):
        a = lambda w, p=p: slot * 16384 + w * 4096 + p * 1024
        L.append(f'buffer_load_dwordx4 v{vDK+p}, s[{sK}:{sK+3}], {soff} offen offset:{p*1024}{NT()} lds')
    return L
def dma_V(tile, slot, soff):
    L = []
    for p in range(4):
        a = lambda w, p=p: LDS_V + slot * 16384 + w * 4096 + p * 1024
        L.append(f'buffer_load_dwordx4 v{vDV}, s[{sV}:{sV+3}], {soff} offen offset:{p*1024}{NT()} lds')
    return L

def p1_dma(c):
    st = STAGE[c % 3]
    G = []
    g = [f's_lshl_b32 s{sT0}, s{sW}, 13', f's_add_u32 s{sT0}, s{sT0}, s{sStage}', f's_mov_b32 m0, s{sT0}', f's_add_u32 s{sT0}, s{sT0}, 4096']
    G.append(g)
    for p in range(4):
        a = lambda w, p=p: st + w * 8192 + p * 1024
        G.append([f'buffer_load_dwordx4 v{vOX+p}, s[{sX}:{sX+3}], s{sXsoff} offen offset:{p*1024} lds'])
    G.append([f's_mov_b32 m0, s{sT0}', f's_add_u32 s{sT0}, s{sW4K}, s{sStage}', f's_add_u32 s{sT0}, s{sT0}, 32768'])
    for p in range(4, 8):
        a = lambda w, p=p: st + w * 8192 + p * 1024
        G.append([f'buffer_load_dwordx4 v{vOX+p}, s[{sX}:{sX+3}], s{sXsoff} offen offset:{(p-4)*1024} lds'])
    G.append([f's_mov_b32 m0, s{sT0}', f's_add_u32 s{sXsoff}, s{sXsoff}, 128'])
    for p in range(4):
        a = lambda w, p=p: st + 32768 + w * 4096 + p * 1024
        G.append([f'buffer_load_dwordx4 v{vOW+p}, s[{sWq}:{sWq+3}], s{sWsoff} offen offset:{p*1024} lds'])
    G.append([f's_add_u32 s{sWsoff}, s{sWsoff}, 524288'])
    return G

def p1_reads(c, n, buf):
    A = aPA + buf * 16; B = aPB + buf * 8
    R = []
    def W(t, u): return f'ds_read_b64_tr_b16 a[{A+4*t+2*u}:{A+4*t+2*u+1}], v{vWA+t} offset:{(16*n+4*u)*256} ; @rd W{c}'
    def X(qb): return f'ds_read_b128 a[{B+4*qb}:{B+4*qb+3}], v{vXA+n} offset:{qb*4096} ; @rd X{c}'
    R = [X(0), W(0, 0), W(0, 1), X(1), W(1, 0), W(1, 1), W(2, 0), W(2, 1), W(3, 0), W(3, 1)]
    return R

def p1_chunk(c, dma_groups, vm_wait, last=False):
    out = []
    for n in range(4):
        S = Slots(8)
        buf = n & 1
        for m in range(8):
            t, qb = m >> 1, m & 1
            S.mf[m] = mfma32(vr(acc(t, qb), 16), ar(aPA + buf * 16 + 4 * t, 4), ar(aPB + buf * 8 + 4 * qb, 4), vr(acc(t, qb), 16))
        if n < 3:
            R = p1_reads(c, n + 1, buf ^ 1)
        else:
            R = [] if last else p1_reads(c + 1, 0, buf ^ 1)
        if n == 3:
            S.pre[0] += [f's_waitcnt vmcnt({vm_wait}) lgkmcnt(0)', 's_barrier']
        else:
            S.pre[0] += ['s_waitcnt lgkmcnt(0)']
        for i, r in enumerate(R): S.post[i // 2].append(r)
        if n == 2 and not last:
            upd = [f'v_add_u32 v{vXA+i}, s{sDelta}, v{vXA+i}' for i in range(4)] + [f'v_add_u32 v{vWA+i}, s{sDelta}, v{vWA+i}' for i in range(4)]
            for i, u in enumerate(upd): S.post[5 + i // 3].append(u)
        grp = dma_groups.get(n, [])
        if grp:
            k = len(grp)
            for i, g in enumerate(grp):
                S.post[min(7, 1 + (i * 7) // k)] += g
        out += S.out()
    return out

class Kernel(Gen):
    def header(self):
        self.p(f'; @launch grid=(256,1,1) block=(256,1,1) lds=163840')
        self.p('.amdgcn_target "amdgcn-amd-amdhsa--gfx950"\n.text')
        self.p(f'.globl {NAME}_kernel\n.p2align 8\n.type {NAME}_kernel,@function\n{NAME}_kernel:')
    def footer(self):
        self.p('L_end:\ns_endpgm')
        self.p('.p2align 6\nL_codeend:')
        self.p('.section .rodata,"a"\n.p2align 6')
        self.p(f'.amdhsa_kernel {NAME}_kernel')
        self.p('''.amdhsa_next_free_vgpr 512
.amdhsa_next_free_sgpr 102
.amdhsa_accum_offset 256
.amdhsa_group_segment_fixed_size 0
.amdhsa_kernarg_size 64
.amdhsa_user_sgpr_count 2
.amdhsa_user_sgpr_kernarg_segment_ptr 1
.amdhsa_system_sgpr_workgroup_id_x 1
.end_amdhsa_kernel''')

    def setup(self):
        e = self.e
        e('s_cmp_ge_u32 s2, 256\ns_cbranch_scc1 L_end')
        self.stamp(0)
        e(f's_load_dwordx16 s[4:19], s[0:1], 0')
        e(f'''v_and_b32 v{vLane}, 63, v0
v_lshrrev_b32 v{vT}, 6, v0
s_and_b32 s{sT0}, s2, 7
s_lshr_b32 s{sT1}, s2, 3
v_readfirstlane_b32 s{sW}, v{vT}
s_and_b32 s{sB}, s{sT0}, 1
s_lshl_b32 s{sB}, s{sB}, 2
s_and_b32 s{sT2}, s{sT1}, 3
s_add_u32 s{sB}, s{sB}, s{sT2}
s_lshr_b32 s{sH}, s{sT0}, 1
s_lshl_b32 s{sH}, s{sH}, 3
s_lshr_b32 s{sT2}, s{sT1}, 2
s_add_u32 s{sH}, s{sH}, s{sT2}
s_mov_b32 s{sB3}, s{sT0}
s_and_b32 s{sQb3}, s{sT1}, 3
s_lshr_b32 s{sNb3}, s{sT1}, 2
s_lshl_b32 s{sW4K}, s{sW}, 12''')
        L = vLane; T = vT
        e(f'''v_lshrrev_b32 v{T}, 3, v{L}
s_lshl_b32 s{sT0}, s{sW}, 6
v_add_u32 v{T}, s{sT0}, v{T}
v_mul_u32_u24 v{T}, 1152, v{T}
v_lshrrev_b32 v{T+1}, 4, v{L}
v_and_b32 v{T+2}, 7, v{L}
v_xor_b32 v{T+3}, v{T+2}, v{T+1}
v_xor_b32 v{T+4}, 4, v{T+3}
v_lshl_add_u32 v{T+3}, v{T+3}, 4, v{T}
v_lshl_add_u32 v{T+4}, v{T+4}, 4, v{T}''')
        for p in range(8):
            e(f'v_add_u32 v{vOX+p}, {p*9216 - (p&3)*1024}, v{T+3+(p&1)}')
        e(f'''v_lshlrev_b32 v{T+2}, 2, v{T+1}
v_and_b32 v{T+3}, 15, v{L}
v_xor_b32 v{T+2}, v{T+2}, v{T+3}
v_lshlrev_b32 v{T+2}, 4, v{T+2}
s_lshl_b32 s{sT0}, s{sW}, 4
v_add_u32 v{T+4}, s{sT0}, v{T+1}
v_lshl_add_u32 v{T+5}, v{T+4}, 13, v{T+2}''')
        for p in range(4):
            e(f'v_add_u32 v{vOW+p}, {p*(32768-1024)}, v{T+5}')
        e(f'v_lshl_add_u32 v{vDV}, v{T+4}, 8, v{T+2}')
        for p in range(4):
            e(f'''v_add_u32 v{T+2}, {4*p}, v{T+1}
v_xor_b32 v{T+2}, v{T+2}, v{T+3}
v_lshlrev_b32 v{T+2}, 4, v{T+2}
v_lshl_add_u32 v{vDK+p}, v{T+4}, 8, v{T+2}''')
        e('s_waitcnt lgkmcnt(0)')
        e(f'''s_mul_i32 s{sT0}, s{sB}, 294912
s_add_u32 s{sX}, s4, s{sT0}
s_addc_u32 s{sX+1}, s5, 0
s_mov_b32 s{sX+2}, 294912
s_mov_b32 s{sX+3}, 0x20000
s_lshl_b32 s{sT0}, s{sH}, 8
s_add_u32 s{sWq}, s10, s{sT0}
s_addc_u32 s{sWq+1}, s11, 0
s_sub_u32 s{sWq+2}, 4718592, s{sT0}
s_mov_b32 s{sWq+3}, 0x20000
s_lshl_b32 s{sT0}, s{sB}, 5
s_add_u32 s{sT0}, s{sT0}, s{sH}
s_lshl_b32 s{sT0}, s{sT0}, 18
s_add_u32 s{sK}, s6, s{sT0}
s_addc_u32 s{sK+1}, s7, 0
s_mov_b32 s{sK+2}, 262144
s_mov_b32 s{sK+3}, 0x20000
s_add_u32 s{sV}, s8, s{sT0}
s_addc_u32 s{sV+1}, s9, 0
s_mov_b32 s{sV+2}, 262144
s_mov_b32 s{sV+3}, 0x20000''')
        e(f's_mov_b32 s{sXsoff}, 0\ns_mov_b32 s{sWsoff}, 0')
        for c in (0, 1, 2):
            e(f's_mov_b32 s{sStage}, {STAGE[c]}')
            G = p1_dma(c)
            for g in G:
                e(g)
                if g[-1].startswith('s_mov_b32 m0') or (len(g) > 1 and g[0].startswith('s_mov_b32 m0') and False): e('s_nop 0')
            if c == 1:
                e(f's_mov_b32 m0, s{sW4K}\ns_nop 0')
                e(dma_K(0, 0, '0'))
        e(f'''s_mov_b32 s{sO}, s18
s_mov_b32 s{sO+1}, s19
s_mov_b32 s{sO+2}, 0x1000000
s_mov_b32 s{sO+3}, 0x20000
s_mul_i32 s{sT0}, s{sNb3}, 144
s_add_u32 s{sWo}, s12, s{sT0}
s_addc_u32 s{sWo+1}, s13, 0
s_sub_u32 s{sWo+2}, 4718592, s{sT0}
s_mov_b32 s{sWo+3}, 0x20000
s_mov_b32 s{sOut}, s14
s_mov_b32 s{sOut+1}, s15
s_mov_b32 s{sOut+2}, 2359296
s_mov_b32 s{sOut+3}, 0x20000''')
        e(f'''v_lshrrev_b32 v{T}, 5, v{L}
v_bfe_u32 v{T+1}, v{L}, 4, 1
v_bfe_u32 v{T+2}, v{L}, 2, 2
v_and_b32 v{T+3}, 3, v{L}''')
        e(f'''v_lshl_add_u32 v{T+4}, v{T}, 3, v{T+2}
v_lshlrev_b32 v{T+4}, 8, v{T+4}
v_and_b32 v{T+5}, 1, v{T+3}
v_lshl_add_u32 v{T+5}, v{T+1}, 1, v{T+5}
v_lshl_add_u32 v{T+4}, v{T+5}, 4, v{T+4}
v_lshrrev_b32 v{T+5}, 1, v{T+3}
v_lshl_add_u32 v{T+4}, v{T+5}, 3, v{T+4}
v_add_u32 v{T+4}, {STAGE[0]+32768}, v{T+4}''')
        for t in range(4):
            e(f'''v_xor_b32 v{T+5}, {t}, v{T+2}
v_lshl_add_u32 v{vWA+t}, v{T+5}, 6, v{T+4}''')
        e(f'''v_lshl_add_u32 v{T+4}, v{T}, 2, v{T+2}
v_lshlrev_b32 v{T+4}, 8, v{T+4}
v_lshrrev_b32 v{T+5}, 1, v{T+3}
v_lshl_add_u32 v{T+5}, v{T+1}, 1, v{T+5}
v_lshl_add_u32 v{T+4}, v{T+5}, 4, v{T+4}
v_and_b32 v{T+5}, 1, v{T+3}
v_lshl_add_u32 v{T+4}, v{T+5}, 3, v{T+4}
v_add_u32 v{T+4}, {LDS_V}, v{T+4}''')
        for t in range(4):
            e(f'''v_xor_b32 v{T+5}, {t}, v{T+2}
v_lshl_add_u32 v{vVA+t}, v{T+5}, 6, v{T+4}''')
        e(f'''v_and_b32 v{T+1}, 31, v{L}
v_bfe_u32 v{T+2}, v{L}, 1, 3
s_lshl_b32 s{sT0}, s{sW}, 13
s_add_u32 s{sT0}, s{sT0}, {STAGE[0]}
v_lshlrev_b32 v{T+3}, 7, v{T+1}
v_add_u32 v{T+3}, s{sT0}, v{T+3}''')
        for n in range(4):
            e(f'''v_add_u32 v{T+4}, {2*n}, v{T}
v_xor_b32 v{T+4}, v{T+4}, v{T+2}
v_lshl_add_u32 v{vXA+n}, v{T+4}, 4, v{T+3}''')
        e(f'''v_and_b32 v{T+2}, 15, v{L}
v_lshlrev_b32 v{T+3}, 8, v{T+1}''')
        for ds in range(8):
            e(f'''v_add_u32 v{T+4}, {2*ds}, v{T}
v_xor_b32 v{T+4}, v{T+4}, v{T+2}
v_lshl_add_u32 v{vKA+ds}, v{T+4}, 4, v{T+3}''')
        cbits = '0x%08x' % int.from_bytes(__import__('struct').pack('<f', math.log2(math.e) / math.sqrt(128.0)), 'little')
        e(f's_mov_b32 s{sC}, {cbits}\ns_mov_b32 s{sC+1}, {cbits}')
        for r in range(128): e(f'v_mov_b32 v{vAcc+r}, 0')
        e(f'v_mov_b32 v{vMGA}, 0xff800000\nv_mov_b32 v{vMGB}, 0xff800000')
        e(f's_mov_b32 s{sFlag}, 0')

    def stage_adv(self):
        return [f's_sub_u32 s{sT1}, s{sStage}, 49152', f's_cmp_eq_u32 s{sStage}, 16384', f's_cselect_b32 s{sT1}, 114688, s{sT1}',
                f's_sub_u32 s{sDelta}, s{sT1}, s{sStage}']
    def phase1(self):
        e = self.e
        self.stamp(1)
        e(f's_mov_b32 s{sStage}, {STAGE[0]}')
        e('s_waitcnt vmcnt(28)\ns_barrier')
        e(p1_reads(0, 0, 0))
        def body(c):
            G3 = p1_dma(c + 3)
            Gprev = p1_dma(c + 2) if c > 0 else None
            first, rest = G3[:8], G3[8:]
            d = {3: first}
            return d, rest
        e(f's_mov_b32 s{sIter}, 0')
        self.p('L_p1:')
        texts = []
        for c in range(6):
            G3 = p1_dma(c + 3)
            pre = self.stage_adv()
            d = {3: G3}
            L = pre + p1_chunk(c, d, 12) + [f's_add_u32 s{sStage}, s{sStage}, s{sDelta}']
            L += [f's_add_u32 s{sIter}, s{sIter}, 1', f's_cmp_lt_u32 s{sIter}, 6', 's_cbranch_scc1 L_p1']
            texts.append([x.split(';')[0].strip() for x in L])
            if c == 0: self.p(L)
            self.tr.extend(L)
        assert all(t == texts[0] for t in texts), 'phase-1 loop body differs between iterations'
        def m0(v): return [f's_add_u32 s{sT0}, s{sW4K}, {v}', f's_mov_b32 m0, s{sT0}']
        v0 = [[f's_lshl_b32 s{sT2}, s{sW}, 11', f'v_subrev_u32 v{vT}, s{sT2}, v{vDV}', f's_add_u32 s{sT0}, s{sT2}, {LDS_V + 8192}', f's_mov_b32 m0, s{sT0}', 's_nop 0']]
        for p in range(2):
            a = lambda w, p=p: LDS_V + 8192 + w * 2048 + p * 1024
            v0.append([f'buffer_load_dwordx4 v{vT}, s[{sV}:{sV+3}], 0 offen offset:{p*1024}{NT()} lds'])
        v0.append(m0(LDS_V + 1 * 16384) + [f's_mov_b32 s{sVsoff}, 8192'])
        v0 += [[x] for x in dma_V(0, 1, f's{sVsoff}')]
        e(self.stage_adv()); e(p1_chunk(6, {3: v0}, 12)); e(f's_add_u32 s{sStage}, s{sStage}, s{sDelta}')
        g7 = [m0(1 * 16384) + [f's_mov_b32 s{sKsoff}, 16384']] + [[x] for x in dma_K(1, 1, f's{sKsoff}')]
        g7 += [m0(LDS_V + 2 * 16384) + [f's_mov_b32 s{sVsoff}, {8192+16384}']] + [[x] for x in dma_V(1, 2, f's{sVsoff}')]
        g7b = [m0(2 * 16384) + [f's_mov_b32 s{sKsoff}, {2*16384}']] + [[x] for x in dma_K(2, 2, f's{sKsoff}')]
        g7b += [m0(3 * 16384) + [f's_mov_b32 s{sKsoff}, {3*16384}']] + [[x] for x in dma_K(3, 3, f's{sKsoff}')]
        e(self.stage_adv()); e(p1_chunk(7, {3: g7}, 6)); e(f's_add_u32 s{sStage}, s{sStage}, s{sDelta}')
        g8 = [m0(LDS_V + 3 * 16384) + [f's_mov_b32 s{sVsoff}, {8192+2*16384}']] + [[x] for x in dma_V(2, 3, f's{sVsoff}')]
        e(p1_chunk(8, {0: g7b, 3: g8}, 63, last=True))
        self.stamp(2)
        e('s_nop 7')
        for t in range(4):
            for qb in range(2):
                b = acc(t, qb)
                for i in range(8): e(f'v_pk_mul_f32 v[{b+2*i}:{b+2*i+1}], v[{b+2*i}:{b+2*i+1}], s[{sC}:{sC+1}]')
                for i in range(8): e(f'v_cvt_pk_bf16_f32 v{vS+i}, v{b+2*i}, v{b+2*i+1}')
                for i in range(8):
                    x, ii = i >> 2, i & 3
                    e(f'v_accvgpr_write_b32 a{Qf(qb, 2*t+x)+ii}, v{vS+i}')

    def step(self, k, e_par, kind='full'):
        S = Slots(32)
        it = k // 2
        ktile = it + 1
        vtile = it
        last = kind == 'last'
        for j in range(8):
            if not last:
                S.mf[j] = mfma32(vr(SA(0), 16), ar(Kf(j), 4), ar(Qf(0, j), 4), vr(CI(0) if j == 0 else SA(0), 16))
                S.mf[16 + j] = mfma32(vr(SA(1), 16), ar(Kf(j), 4), ar(Qf(1, j), 4), vr(CI(1) if j == 0 else SA(1), 16))
                S.mf[24 + j] = mfma32(vr(acc(j & 3, 0), 16), ar(Vf(j), 4), vr(PP(0, j >> 2), 4), vr(acc(j & 3, 0), 16))
            S.mf[8 + j] = mfma32(vr(acc(j & 3, 1), 16), ar(Vf(j), 4), vr(PP(1, j >> 2), 4), vr(acc(j & 3, 1), 16))
        def put(slot, ins): S.post[slot].append(ins)
        if last: S.pre[12].append('s_nop 1')
        for r in range(6, 16): put(r - 6, f'v_exp_f32 v{SA(1)+r}, v{SA(1)+r}')
        for r in range(5, 16): put(r - 5, f'v_add_f32 v{vLB}, v{vLB}, v{SA(1)+r}')
        for n in range(2, 8): put(2 * n - 4, f'v_cvt_pk_bf16_f32 v{vP+8+n}, v{SA(1)+2*n}, v{SA(1)+2*n+1}')
        if not last:
            for r in range(16): put(10 + r, f'v_exp_f32 v{SA(0)+r}, v{SA(0)+r}')
            for r in range(16): put(11 + r, f'v_add_f32 v{vLA}, v{vLA}, v{SA(0)+r}')
            for n in range(8): put(12 + 2 * n, f'v_cvt_pk_bf16_f32 v{vP+n}, v{SA(0)+2*n}, v{SA(0)+2*n+1}')
            for r in range(6): put(26 + r, f'v_exp_f32 v{SA(1)+r}, v{SA(1)+r}')
            for r in range(5): put(27 + r, f'v_add_f32 v{vLB}, v{vLB}, v{SA(1)+r}')
            for n in range(2): put(28 + 2 * n, f'v_cvt_pk_bf16_f32 v{vP+8+n}, v{SA(1)+2*n}, v{SA(1)+2*n+1}')
            for n in range(16):
                i, u = n >> 1, n & 1
                s, t = i >> 2, i & 3
                put(8 + n, f'ds_read_b64_tr_b16 a[{Vf(i)+2*u}:{Vf(i)+2*u+1}], v{vVA+t} offset:{e_par*8192+(16*s+8*u)*256}')
            if kind == 'full':
                for j in range(8):
                    put(24 + j, f'ds_read_b128 a[{Kf(j)}:{Kf(j)+3}], v{vKA+j} offset:{e_par*8192}')
            S.pre[0].append('s_waitcnt lgkmcnt(4)')
            if e_par == 0:
                S.pre[4] += ['s_waitcnt vmcnt(16) lgkmcnt(0)', 's_barrier']
            else:
                S.pre[4].append('s_waitcnt lgkmcnt(0)')
            S.pre[24].append('s_waitcnt lgkmcnt(8)')
            S.pre[28].append('s_waitcnt lgkmcnt(%d)' % (4 if kind == 'full' else 0))
            if e_par == 0:
                for t in range(4): put(1 + 2 * (t & 1) + 4 * (t >> 1) if False else [1, 3, 5, 7][t], f'v_xor_b32 v{vVA+t}, s{sXor}, v{vVA+t}')
                for j in range(8): put(9 + 2 * j, f'v_xor_b32 v{vKA+j}, s{sXor}, v{vKA+j}')
            if kind == 'full':
                slot = it & 3
                if e_par == 0:
                    put(4, f's_mov_b32 m0, s{sDma}')
                    D = dma_K(it + 4, slot, f's{sKsoff}')
                    for p in range(4): put([5, 6, 7, 7][p], D[p])
                    put(9, f's_add_u32 s{sKsoff}, s{sKsoff}, 16384')
                else:
                    put(0, f's_add_u32 s{sT0}, s{sDma}, {LDS_V}')
                    put(1, f's_mov_b32 m0, s{sT0}')
                    D = dma_V(it + 3, slot, f's{sVsoff}')
                    for p in range(4): put([3, 5, 6, 7][p], D[p])
                    put(9, f's_add_u32 s{sVsoff}, s{sVsoff}, 16384')
                    put(11, f's_xor_b32 s{sDma}, s{sDma}, s{sXor}')
                    put(13, f's_xor_b32 s{sXor}, s{sXor}, 0x8000')
        return S.out()

    def phase2(self):
        e = self.e
        self.p('L_p2start:')
        for j in range(8): e(f'ds_read_b128 a[{Kf(j)}:{Kf(j)+3}], v{vKA+j} offset:0 ; @rd K0')
        e(f'v_mov_b32 v{vLA}, 0\nv_mov_b32 v{vLB}, 0')
        e('s_waitcnt lgkmcnt(0)')
        z = [f'v_mov_b32 v{acc(t, 1)+r}, 0' for t in range(4) for r in range(16)]
        for j in range(8):
            e(mfma32(vr(SA(0), 16), ar(Kf(j), 4), ar(Qf(0, j), 4), '0' if j == 0 else vr(SA(0), 16)))
            e(z[4*j:4*j+4])
        for j in range(8):
            e(mfma32(vr(SA(1), 16), ar(Kf(j), 4), ar(Qf(1, j), 4), '0' if j == 0 else vr(SA(1), 16)))
            e(z[32+4*j:32+4*j+4])
            e(f'ds_read_b128 a[{Kf(j)}:{Kf(j)+3}], v{vKA+j} offset:8192 ; @rd K0')
        e('s_waitcnt vmcnt(24)\ns_barrier')
        for n in range(16):
            i, u = n >> 1, n & 1
            s, t = i >> 2, i & 3
            e(f'ds_read_b64_tr_b16 a[{Vf(i)+2*u}:{Vf(i)+2*u+1}], v{vVA+t} offset:{8192+(16*s+8*u)*256}')
        for qb, mg in ((0, vMGA), (1, vMGB)):
            s = SA(qb); m = vT + qb * 2
            e(f'v_max3_f32 v{m}, v{s}, v{s+1}, v{mg}')
            for r in range(2, 16, 2): e(f'v_max3_f32 v{m}, v{m}, v{s+r}, v{s+r+1}')
            e(f'v_mov_b32 v{m+1}, v{m}\ns_nop 1\nv_permlane32_swap_b32 v{m}, v{m+1}\nv_max_f32 v{m}, v{m}, v{m+1}')
            e(f'v_sub_f32 v{CI(qb)}, 0, v{m}')
            for r in range(1, 16): e(f'v_mov_b32 v{CI(qb)+r}, v{CI(qb)}')
            for r in range(16): e(f'v_add_f32 v{s+r}, v{s+r}, v{CI(qb)}')
        for r in range(16): e(f'v_exp_f32 v{SA(0)+r}, v{SA(0)+r}')
        for r in range(6): e(f'v_exp_f32 v{SA(1)+r}, v{SA(1)+r}')
        for r in range(16): e(f'v_add_f32 v{vLA}, v{vLA}, v{SA(0)+r}')
        for n in range(8): e(f'v_cvt_pk_bf16_f32 v{vP+n}, v{SA(0)+2*n}, v{SA(0)+2*n+1}')
        for r in range(5): e(f'v_add_f32 v{vLB}, v{vLB}, v{SA(1)+r}')
        for n in range(2): e(f'v_cvt_pk_bf16_f32 v{vP+8+n}, v{SA(1)+2*n}, v{SA(1)+2*n+1}')
        e('s_waitcnt lgkmcnt(0)')
        for j in range(8):
            e(mfma32(vr(acc(j & 3, 0), 16), ar(Vf(j), 4), vr(PP(0, j >> 2), 4), '0' if j < 4 else vr(acc(j & 3, 0), 16)))
        e(f'''s_mov_b32 s{sXor}, 0x4000
s_mov_b32 s{sDma}, s{sW4K}
s_mov_b32 s{sKsoff}, {4*16384}
s_mov_b32 s{sVsoff}, {8192+3*16384}
s_mov_b32 s{sIter}, 0''')
        self.stamp(3)
        self.p('.p2align 3\nL_p2:')
        texts = []
        for it in range(15):
            L = self.step(2 * it, 0) + self.step(2 * it + 1, 1)
            L += [f's_add_u32 s{sIter}, s{sIter}, 1', f's_cmp_lt_u32 s{sIter}, 15', 's_cbranch_scc1 L_p2']
            texts.append([x.split(';')[0].strip() for x in L])
            if it == 0:
                self.p(L); self.loop_body = L
            self.tr.extend(L)
        assert all(t == texts[0] for t in texts)
        e(self.step(30, 0, 'nok'))
        e(self.step(31, 1, 'last'))
        self.stamp(4)

    def o_epilogue(self):
        e = self.e
        T = vT; L = vLane
        e('s_waitcnt vmcnt(0)')
        for qb, l in ((0, vLA), (1, vLB)):
            e(f'v_mov_b32 v{T+qb}, v{l}')
        e('s_nop 1')
        for qb, l in ((0, vLA), (1, vLB)):
            e(f'v_permlane32_swap_b32 v{T+qb}, v{l}')
        for qb, l in ((0, vLA), (1, vLB)):
            e(f'v_add_f32 v{l}, v{l}, v{T+qb}')
        for qb, l in ((0, vLA), (1, vLB)):
            e(f'v_rcp_f32 v{T+2+2*qb}, v{l}')
        e('s_nop 0')
        for qb in range(2): e(f'v_mov_b32 v{T+3+2*qb}, v{T+2+2*qb}')
        e(f'''v_bfe_u32 v{T2(0)}, v{L}, 4, 1
v_lshlrev_b32 v{T2(0)}, 17, v{T2(0)}
v_lshrrev_b32 v{T2(1)}, 5, v{L}
v_lshl_add_u32 v{T2(0)}, v{T2(1)}, 8, v{T2(0)}
v_and_b32 v{T2(1)}, 15, v{L}
v_lshl_add_u32 v{T2(0)}, v{T2(1)}, 4, v{T2(0)}
s_lshl_b32 s{sT0}, s{sB}, 2
s_add_u32 s{sT0}, s{sT0}, s{sW}
s_lshl_b32 s{sT0}, s{sT0}, 19
s_lshl_b32 s{sT1}, s{sH}, 12
s_add_u32 s{sT0}, s{sT0}, s{sT1}
s_add_u32 s{sT1}, s{sT0}, 262144''')
        for qb in range(2):
            for t in range(4):
                b = acc(t, qb)
                r = T + 2 + 2 * qb
                for i in range(8): e(f'v_pk_mul_f32 v[{b+2*i}:{b+2*i+1}], v[{b+2*i}:{b+2*i+1}], v[{r}:{r+1}]')
                d = vS + ((qb * 4 + t) & 3) * 8
                for i in range(8): e(f'v_cvt_pk_bf16_f32 v{d+i}, v{b+2*i}, v{b+2*i+1}')
                for gg in range(2):
                    e(f'buffer_store_dwordx4 v[{d+4*gg}:{d+4*gg+3}], v{T2(0)}, s[{sO}:{sO+3}], s{sT0+qb} offen offset:{t*1024+gg*512} sc1')

    def finish_stamps(self):
        if not cfg.stamps: return
        e = self.e
        n = self.nstamp
        e(f'''s_waitcnt lgkmcnt(0)
s_lshl_b32 s{sT0}, s2, 2
s_add_u32 s{sT0}, s{sT0}, s{sW}
s_lshl_b32 s{sT0}, s{sT0}, 8
s_add_u32 s{sT0}, s{sT0}, 0x2000000
s_add_u32 s18, s18, s{sT0}
s_addc_u32 s19, s19, 0
v_mov_b32 v{vT}, 0''')
        for i in range(n):
            for j in range(4): e(f'v_mov_b32 v{vT+2+j}, s{sStamp+4*i+j}')
            e(f'global_store_dwordx4 v{vT}, v[{vT+2}:{vT+5}], s[18:19] offset:{16*i}\ns_nop 1')

def T2(i): return vT2 + i

def build():
    k = Kernel()
    k.header()
    k.setup()
    k.phase1()
    k.phase2()
    k.o_epilogue()
    if cfg.phase3:
        from gen3 import phase3
        phase3(k)
    k.stamp(7)
    k.finish_stamps()
    k.footer()
    return k

if __name__ == '__main__':
    import argparse
    ap = argparse.ArgumentParser()
    ap.add_argument('-o', default=f'cdna_kernels/{NAME}.s')
    ap.add_argument('--stamps', action='store_true')
    ap.add_argument('--nop3', action='store_true')
    a = ap.parse_args()
    cfg.stamps = a.stamps; cfg.phase3 = not a.nop3
    k = build()
    errs = simulate(k.tr, 'trace')
    errs += check_hazards(k.tr, 'haz')
    open(a.o, 'w').write(k.p.text())
    print('written', a.o, 'errors:', len(errs), 'trace len', len(k.tr))
```

```python
import sys, math, struct
from asmlib import *

NAME = 'standalone__mha_block_cached__near_ridge'

class Cfg:
    stamps = False
    kv_flag = ' nt'
    x_flag = ''
    w_flag = ''
    wo_flag = ''
    force_safe = False
    ablate = ''
    l1inv = False
    kv_same = False
cfg = Cfg()

sW = 3
sX, sWq, sK, sV, sWS, sWo, sOut = 20, 24, 28, 32, 36, 40, 44
sW4K = 48; sKsoff = 49; sVsoff = 50; sDma = 51; sXor = 52; sIter = 53
sT0, sT1, sT2, sT3 = 54, 55, 56, 57
sC = 58
sXsoff = 60; sWsoff = 61; sStage = 62; sDelta = 63
sB = 64; sH = 65; sXcc = 66; sMode = 67
sKg = 68; sNb = 69; sHq = 70; sPass = 71
sStamp = 72

vLane = 1
vT = 2
vKA = 8
vVA = 12
vDK = 20
vDV = 24
vMG = 26
vT2 = 30
vS = 32
vC = 64
vP = 80
vL = 96
vXA = 112; vWA = 114
vOX = 32; vOW = 40
vWoD = 112
vWoR = 121
vAcc = 128
aQ = 0; aKf = 64; aVf = 96; aOnes = 252
aPA = 96; aPB = 64

def O(dt, qt): return vAcc + (dt * 4 + qt) * 4
def S(qt, kt): return vS + qt * 8 + kt * 4
def CI(qt): return vC + 4 * qt
def P(qt): return vP + 4 * qt
def LA(qt): return vL + 4 * qt
def Qf(qt, ds): return aQ + (qt * 4 + ds) * 4
def Kf(m): return aKf + 4 * m
def Vf(dt): return aVf + 4 * dt

LDS_V = 65536
STAGE = [65536, 16384, 114688]
OBASE = 0
PBASE = 16 << 20
FBASE = 60 << 20
STAMPBASE = 64 << 20

def kb(fn): return ','.join(str(fn(w) // 1024) for w in range(4))
def stamp_reg(i): return [72, 76, 80, 4, 8, 12, 88, 92][i]
def mfma(d, a, b, c): return f'v_mfma_f32_16x16x32_bf16 {d}, {a}, {b}, {c}'

class Slots:
    def __init__(self, n):
        self.pre = [[] for _ in range(n)]
        self.post = [[] for _ in range(n)]
        self.mf = [None] * n
    def out(self):
        o = []
        for i in range(len(self.mf)):
            o += self.pre[i]
            if self.mf[i]: o.append(self.mf[i])
            o += self.post[i]
        return o
    def load(self):
        def cost(x):
            mn = x.split()[0]
            if mn.startswith('v_exp') or mn.startswith('v_rcp'): return 8
            return 4
        n = len(self.mf); res = []
        for i in range(n):
            g = self.post[i] + (self.pre[i + 1] if i + 1 < n else [])
            res.append(sum(cost(x) for x in g))
        return res

def dma_K(tile, slot, soff):
    L = []
    for p in range(4):
        a = lambda w, p=p: slot * 16384 + w * 4096 + p * 1024
        L.append(f'buffer_load_dwordx4 v{vDK+p}, s[{sK}:{sK+3}], {soff} offen offset:{p*1024}{cfg.kv_flag} lds ; @dma K{tile} {kb(a)}')
    return L
def dma_V(tile, slot, soff):
    L = []
    for p in range(4):
        a = lambda w, p=p: LDS_V + slot * 16384 + w * 4096 + p * 1024
        L.append(f'buffer_load_dwordx4 v{vDV+(p&1)}, s[{sV}:{sV+3}], {soff} offen offset:{p*1024}{cfg.kv_flag} lds ; @dma V{tile} {kb(a)}')
    return L

def p1_dma(c):
    st = STAGE[c % 3]
    G = []
    G.append([f's_add_u32 s{sT0}, s{sW4K}, s{sStage}', f's_add_u32 s{sT0}, s{sT0}, 32768', f's_mov_b32 m0, s{sT0}', f's_lshl_b32 s{sT0}, s{sW}, 13'])
    for p in range(4):
        a = lambda w, p=p: st + 32768 + w * 4096 + p * 1024
        G.append([f'buffer_load_dwordx4 v{vOW+p}, s[{sWq}:{sWq+3}], s{sWsoff} offen offset:{p*1024}{cfg.w_flag} lds ; @dma W{c} {kb(a)}'])
    G[-1] += [f's_add_u32 s{sT0}, s{sT0}, s{sStage}', f's_mov_b32 m0, s{sT0}', f's_add_u32 s{sWsoff}, s{sWsoff}, 524288']
    for p in range(4):
        a = lambda w, p=p: st + w * 8192 + p * 1024
        G.append([f'buffer_load_dwordx4 v{vOX+p}, s[{sX}:{sX+3}], s{sXsoff} offen offset:{p*1024}{cfg.x_flag} lds ; @dma X{c} {kb(a)} priv'])
    G[-1] += [f's_add_u32 s{sT0}, s{sT0}, 4096', f's_mov_b32 m0, s{sT0}', 's_nop 0']
    for p in range(4, 8):
        a = lambda w, p=p: st + w * 8192 + p * 1024
        G.append([f'buffer_load_dwordx4 v{vOX+p}, s[{sX}:{sX+3}], s{sXsoff} offen offset:{(p-4)*1024}{cfg.x_flag} lds ; @dma X{c} {kb(a)} priv'])
    G[-1] += [f's_add_u32 s{sXsoff}, s{sXsoff}, 128']
    return G
def p1_halves(c):
    G = p1_dma(c)
    return G[:7], G[7:]

def p1_reads(c, n, buf):
    A = aPA + buf * 32; B = aPB + buf * 16
    def W(dt, u):
        ds, x = dt >> 1, dt & 1
        return f'ds_read_b64_tr_b16 a[{A+4*dt+2*u}:{A+4*dt+2*u+1}], v{vWA+ds} offset:{(32*n+4*u)*256+8*x} ; @rd W{c}'
    def X(qt): return f'ds_read_b128 a[{B+4*qt}:{B+4*qt+3}], v{vXA+n} offset:{qt*2048} ; @rd X{c}'
    R = [X(0), W(0, 0), W(0, 1), X(1), X(2), X(3)]
    for dt in range(1, 8): R += [W(dt, 0), W(dt, 1)]
    return R

def p1_chunk(c, dma_groups, vm_wait, last=False):
    out = []
    for n in range(2):
        Sl = Slots(32)
        buf = n & 1
        for m in range(32):
            dt, qt = m >> 2, m & 3
            Sl.mf[m] = mfma(vr(O(dt, qt), 4), ar(aPA + buf * 32 + 4 * dt, 4), ar(aPB + buf * 16 + 4 * qt, 4), vr(O(dt, qt), 4))
        if n == 0: R = p1_reads(c, 1, 1)
        else: R = [] if last else p1_reads(c + 1, 0, 0)
        if n == 1: Sl.pre[0] += [f's_waitcnt vmcnt({vm_wait}) lgkmcnt(0)', 's_barrier']
        else: Sl.pre[0] += ['s_waitcnt lgkmcnt(0)']
        for i, r in enumerate(R): Sl.post[2 * (i // 2)].append(r)
        if n == 0 and not last:
            upd = [f'v_add_u32 v{vXA+i}, s{sDelta}, v{vXA+i}' for i in range(2)] + [f'v_add_u32 v{vWA+i}, s{sDelta}, v{vWA+i}' for i in range(4)]
            for i, u in enumerate(upd): Sl.post[21 + 2 * i].append(u) if 21 + 2 * i < 32 else Sl.post[31].append(u)
        grp = dma_groups.get(n, [])
        if grp:
            k = len(grp)
            lo = 1 if n == 0 else 3
            for i, g in enumerate(grp):
                pos = lo + 2 * ((i * ((31 - lo) // 2 + 1)) // k)
                Sl.post[min(31, pos)] += g
        out += Sl.out()
    return out

class Kernel:
    def __init__(self):
        self.p = Prog(); self.tr = []; self.nstamp = 0; self.q = []
    def e(self, s, text=True, trace=True):
        if isinstance(s, str): s = [x.strip() for x in s.split('\n') if x.strip()]
        if text: self.p(s)
        if trace: self.tr.extend(s)
    def stamp(self, name):
        if cfg.stamps and name in cfg.stamps:
            i = cfg.stamps.index(name); b = stamp_reg(i)
            self.e(f's_memrealtime s[{b}:{b+1}]\ns_memtime s[{b+2}:{b+3}]')
            self.nstamp = max(self.nstamp, i + 1)
    def vm_need(self, tags):
        q = []
        for line in self.tr:
            code, _, com = line.partition(';')
            mn = code.split()[0] if code.split() else ''
            if mn.startswith('buffer_') and mn not in ('buffer_inv', 'buffer_wbl2') or mn.startswith('global_'):
                t = None
                a = com.split()
                if '@dma' in a: t = a[a.index('@dma') + 1]
                elif '@tag' in a: t = a[a.index('@tag') + 1]
                q.append(t)
        for t in tags: assert t in q, f'tag {t} was never issued'
        last = max((i for i, t in enumerate(q) if t in tags), default=-1)
        return min(63, len(q) - 1 - last)

    def header(self):
        self.p(f'; @launch grid=(256,1,1) block=(256,1,1) lds=163840')
        if cfg.stamps: self.p('; stamps: ' + ','.join(cfg.stamps))
        self.p('.amdgcn_target "amdgcn-amd-amdhsa--gfx950"\n.text')
        self.p(f'.globl {NAME}_kernel\n.p2align 8\n.type {NAME}_kernel,@function\n{NAME}_kernel:')
    def footer(self):
        self.p('L_end:\ns_endpgm')
        self.p('.p2align 6\nL_codeend:')
        self.p('.section .rodata,"a"\n.p2align 6')
        self.p(f'.amdhsa_kernel {NAME}_kernel')
        self.p('''.amdhsa_next_free_vgpr 512
.amdhsa_next_free_sgpr 102
.amdhsa_accum_offset 256
.amdhsa_group_segment_fixed_size 0
.amdhsa_kernarg_size 64
.amdhsa_user_sgpr_count 2
.amdhsa_user_sgpr_kernarg_segment_ptr 1
.amdhsa_system_sgpr_workgroup_id_x 1
.end_amdhsa_kernel''')

    def setup(self):
        e = self.e
        e('s_cmp_ge_u32 s2, 256\ns_cbranch_scc1 L_end')
        self.stamp('entry')
        e(f's_load_dwordx16 s[4:19], s[0:1], 0')
        e(f'''v_and_b32 v{vLane}, 63, v0
v_lshrrev_b32 v{vT}, 6, v0
s_and_b32 s{sB}, s2, 7
s_lshr_b32 s{sH}, s2, 3
v_readfirstlane_b32 s{sW}, v{vT}
s_lshr_b32 s{sKg}, s{sH}, 2
s_and_b32 s{sNb}, s{sH}, 3
s_lshl_b32 s{sW4K}, s{sW}, 12''')
        L = vLane; T = vT
        e(f'''v_lshrrev_b32 v{T}, 3, v{L}
s_lshl_b32 s{sT0}, s{sW}, 6
v_add_u32 v{T}, s{sT0}, v{T}
v_mul_u32_u24 v{T}, 1152, v{T}
v_lshrrev_b32 v{T+1}, 4, v{L}
v_and_b32 v{T+2}, 7, v{L}
v_xor_b32 v{T+3}, v{T+2}, v{T+1}
v_xor_b32 v{T+4}, 4, v{T+3}
v_lshl_add_u32 v{T+3}, v{T+3}, 4, v{T}
v_lshl_add_u32 v{T+4}, v{T+4}, 4, v{T}''')
        for p in range(8):
            e(f'v_add_u32 v{vOX+p}, {p*9216 - (p&3)*1024}, v{T+3+(p&1)}')
        e(f'''v_lshlrev_b32 v{T+2}, 2, v{T+1}
v_and_b32 v{T+3}, 15, v{L}
v_xor_b32 v{T+2}, v{T+2}, v{T+3}
v_lshlrev_b32 v{T+2}, 4, v{T+2}
s_lshl_b32 s{sT0}, s{sW}, 4
v_add_u32 v{T+4}, s{sT0}, v{T+1}
v_lshl_add_u32 v{T+5}, v{T+4}, 13, v{T+2}''')
        for p in range(4):
            e(f'v_add_u32 v{vOW+p}, {p*(32768-1024)}, v{T+5}')
        e(f'''v_lshrrev_b32 v{T+5}, 3, v{L}
s_lshl_b32 s{sT0}, s{sH}, 3
v_add_u32 v{T+5}, s{sT0}, v{T+5}
v_mul_u32_u24 v{T+5}, 1152, v{T+5}
v_and_b32 v{T+2}, 7, v{L}
v_lshl_add_u32 v{vT2}, v{T+2}, 4, v{T+5}''')
        e('s_waitcnt lgkmcnt(0)')
        self.stamp('karg')
        if cfg.l1inv:
            e(f's_cmp_eq_u32 s{sW}, 0\ns_cbranch_scc0 L_noinv\nbuffer_inv sc1', trace=False)
            self.p('L_noinv:')
        e(f'''s_mul_i32 s{sT0}, s{sB}, 294912
s_add_u32 s{sX}, s4, s{sT0}
s_addc_u32 s{sX+1}, s5, 0
s_mov_b32 s{sX+2}, 294912
s_mov_b32 s{sX+3}, 0x20000
s_lshl_b32 s{sT0}, s{sH}, 8
s_add_u32 s{sWq}, s10, s{sT0}
s_addc_u32 s{sWq+1}, s11, 0
s_sub_u32 s{sWq+2}, 4718592, s{sT0}
s_mov_b32 s{sWq+3}, 0x20000
s_mov_b32 s{sWS}, s18
s_mov_b32 s{sWS+1}, s19
s_mov_b32 s{sWS+2}, 0x8000000
s_mov_b32 s{sWS+3}, 0x20000''')
        e(f's_lshl_b32 s{sT0}, s{sW}, 8\ns_add_u32 s{sT0}, s{sT0}, 128')
        e(f'buffer_load_dwordx4 v[{vS+16}:{vS+19}], v{vT2}, s[{sX}:{sX+3}], s{sT0} offen')
        e(f'buffer_load_dwordx4 v[{vS+20}:{vS+23}], v{vT2}, s[{sX}:{sX+3}], s{sT0} offen offset:128')
        e(f's_mov_b32 s{sXsoff}, 0\ns_mov_b32 s{sWsoff}, 0\ns_mov_b32 s{sStage}, {STAGE[0]}')
        for g in p1_dma(0): e(g)
        e(f'''s_lshl_b32 s{sT0}, s{sB}, 5
s_add_u32 s{sT0}, s{sT0}, s{sH}
s_lshl_b32 s{sT0}, s{sT0}, 7
s_add_u32 s{sT0}, s{sT0}, {FBASE}
v_mov_b32 v{T+2}, 0
v_lshlrev_b32 v{T+5}, 2, v{L}
v_cmp_gt_u32 vcc, 12, v{L}
v_mov_b32 v{T+4}, 0x7fffffff
s_cmp_eq_u32 s{sW}, 0
s_cselect_b64 vcc, vcc, 0
s_nop 1
v_cndmask_b32 v{T+5}, v{T+4}, v{T+5}, vcc
buffer_store_dword v{T+2}, v{T+5}, s[{sWS}:{sWS+3}], s{sT0} offen sc1 ; @tag CLR''')
        self.stamp('dma0')
        e(f'''s_lshl_b32 s{sT0}, s{sB}, 5
s_add_u32 s{sT0}, s{sT0}, s{sH}
s_lshl_b32 s{sT0}, s{sT0}, 18''')
        if cfg.kv_same: e(f's_mov_b32 s{sT0}, 0')
        e(f'''s_add_u32 s{sK}, s6, s{sT0}
s_addc_u32 s{sK+1}, s7, 0
s_mov_b32 s{sK+2}, 262144
s_mov_b32 s{sK+3}, 0x20000
s_add_u32 s{sV}, s8, s{sT0}
s_addc_u32 s{sV+1}, s9, 0
s_mov_b32 s{sV+2}, 262144
s_mov_b32 s{sV+3}, 0x20000''')
        e(f's_mov_b32 s{sStage}, {STAGE[1]}')
        for g in p1_dma(1): e(g)
        e(f'''s_mul_i32 s{sT0}, s{sKg}, {512*1152}
s_mul_i32 s{sT1}, s{sNb}, 288
s_add_u32 s{sT0}, s{sT0}, s{sT1}
s_add_u32 s{sWo}, s12, s{sT0}
s_addc_u32 s{sWo+1}, s13, 0
s_sub_u32 s{sWo+2}, 4718592, s{sT0}
s_mov_b32 s{sWo+3}, 0x20000
s_mov_b32 s{sOut}, s14
s_mov_b32 s{sOut+1}, s15
s_mov_b32 s{sOut+2}, 2359296
s_mov_b32 s{sOut+3}, 0x20000''')
        e(f'''v_lshrrev_b32 v{T+1}, 4, v{L}
v_and_b32 v{T+3}, 15, v{L}
s_lshl_b32 s{sT0}, s{sW}, 4
v_add_u32 v{T+4}, s{sT0}, v{T+1}''')
        for p in range(4):
            e(f'''v_add_u32 v{T+2}, {4*p}, v{T+1}
v_xor_b32 v{T+2}, v{T+2}, v{T+3}
v_lshlrev_b32 v{T+2}, 4, v{T+2}
v_lshl_add_u32 v{vDK+p}, v{T+4}, 8, v{T+2}''')
        for par in range(2):
            e(f'''v_add_u32 v{T+2}, {4*par}, v{T+1}
v_lshlrev_b32 v{T+2}, 1, v{T+2}
v_xor_b32 v{T+2}, v{T+2}, v{T+3}
v_lshlrev_b32 v{T+2}, 4, v{T+2}
v_lshl_add_u32 v{vDV+par}, v{T+4}, 8, v{T+2}''')
        e(f'''v_lshrrev_b32 v{T}, 4, v{L}
v_bfe_u32 v{T+1}, v{L}, 2, 2
v_and_b32 v{T+2}, 3, v{L}
v_and_b32 v{T+3}, 15, v{L}''')
        e(f'''v_lshl_add_u32 v{T+4}, v{T}, 3, v{T+1}
v_lshlrev_b32 v{T+4}, 8, v{T+4}
v_lshl_add_u32 v{T+4}, v{T+2}, 4, v{T+4}
v_add_u32 v{T+4}, {STAGE[0]+32768}, v{T+4}''')
        for ds in range(4):
            e(f'v_xor_b32 v{T+5}, {ds}, v{T+1}\nv_lshl_add_u32 v{vWA+ds}, v{T+5}, 6, v{T+4}')
        e(f'''s_lshl_b32 s{sT0}, s{sW}, 13
s_add_u32 s{sT0}, s{sT0}, {STAGE[0]}
v_lshlrev_b32 v{T+4}, 7, v{T+3}
v_add_u32 v{T+4}, s{sT0}, v{T+4}
v_lshrrev_b32 v{vT2}, 1, v{T+3}''')
        for n in range(2):
            e(f'''v_add_u32 v{T+5}, {4*n}, v{T}
v_xor_b32 v{T+5}, v{T+5}, v{vT2}
v_lshl_add_u32 v{vXA+n}, v{T+5}, 4, v{T+4}''')
        e(f'v_lshlrev_b32 v{T+4}, 8, v{T+3}')
        for ds in range(4):
            e(f'''v_add_u32 v{T+5}, {4*ds}, v{T}
v_xor_b32 v{T+5}, v{T+5}, v{T+3}
v_lshl_add_u32 v{vKA+ds}, v{T+5}, 4, v{T+4}''')
        e(f'''v_lshl_add_u32 v{T+4}, v{T}, 2, v{T+1}
v_and_b32 v{vT2}, 7, v{T+4}
v_lshlrev_b32 v{vT2}, 1, v{vT2}
v_lshlrev_b32 v{T+4}, 8, v{T+4}
v_and_b32 v{T+5}, 1, v{T+2}
v_lshl_add_u32 v{T+4}, v{T+5}, 3, v{T+4}
v_add_u32 v{T+4}, {LDS_V}, v{T+4}
v_lshrrev_b32 v{vT2+1}, 1, v{T+2}''')
        for dt in range(8):
            e(f'''v_add_u32 v{T+5}, {2*dt}, v{vT2+1}
v_xor_b32 v{T+5}, v{T+5}, v{vT2}
v_lshl_add_u32 v{vVA+dt}, v{T+5}, 4, v{T+4}''')
        cbits = '0x%08x' % int.from_bytes(struct.pack('<f', math.log2(math.e) / math.sqrt(128.0)), 'little')
        e(f's_mov_b32 s{sC}, {cbits}\ns_mov_b32 s{sC+1}, {cbits}')
        e(f'v_mov_b32 v{T+5}, 0x3f803f80')
        for i in range(4): e(f'v_accvgpr_write_b32 a{aOnes+i}, v{T+5}')
        for r in range(128): e(f'v_mov_b32 v{vAcc+r}, 0')
        for i in range(4): e(f'v_mov_b32 v{vMG+i}, 0xff800000')
        e(f's_mov_b32 s{sPass}, 0')

    def stage_adv(self):
        return [f's_sub_u32 s{sT1}, s{sStage}, 49152', f's_cmp_eq_u32 s{sStage}, 16384', f's_cselect_b32 s{sT1}, 114688, s{sT1}',
                f's_sub_u32 s{sDelta}, s{sT1}, s{sStage}']
    def phase1(self):
        e = self.e
        self.stamp('p1wait')
        e(f's_mov_b32 s{sStage}, {STAGE[0]}')
        n0 = self.vm_need({'X0', 'W0', 'CLR'})
        e(f's_waitcnt vmcnt({n0})\ns_barrier')
        self.stamp('p1go')
        e(f'''s_lshl_b32 s{sT0}, s{sB}, 5
v_mov_b32 v{vT}, s{sT0}
v_mov_b32 v{vT+2}, 1
s_cmp_eq_u32 s{sW}, 0
s_cbranch_scc0 L_noreg
s_mov_b64 exec, 1
global_atomic_add v{vT}, v{vT+2}, s[16:17] sc1
s_mov_b64 exec, -1''', trace=False)
        self.p('L_noreg:')
        e(p1_reads(0, 0, 0))
        e(f's_mov_b32 s{sStage}, {STAGE[2]}')
        G2 = p1_dma(2)
        h1, h2 = p1_halves(3)
        pre = [f's_mov_b32 s{sDelta}, {STAGE[1]-STAGE[0] & 0xffffffff}']
        L0 = p1_chunk(0, {0: G2, 1: [[f's_mov_b32 s{sStage}, {STAGE[0]}']] + h1}, 12)
        e(pre); e(L0)
        e(f's_mov_b32 s{sStage}, {STAGE[1]}\ns_mov_b32 s{sIter}, 1')
        self.p('.p2align 3\nL_p1:')
        texts = []
        for c in range(1, 6):
            _, prev2 = p1_halves(c + 2)
            h1, _ = p1_halves(c + 3)
            L = self.stage_adv() + p1_chunk(c, {0: prev2, 1: h1}, 12) + [f's_add_u32 s{sStage}, s{sStage}, s{sDelta}']
            L += [f's_add_u32 s{sIter}, s{sIter}, 1', f's_cmp_lt_u32 s{sIter}, 6', 's_cbranch_scc1 L_p1']
            texts.append([x.split(';')[0].strip() for x in L])
            if c == 1: self.p(L)
            self.tr.extend(L)
        assert all(t == texts[0] for t in texts)
        self.stamp('p1c6')
        def m0(v): return [f's_add_u32 s{sT0}, s{sW4K}, {v}', f's_mov_b32 m0, s{sT0}']
        _, prev2 = p1_halves(8)
        k0 = [[f's_mov_b32 m0, s{sW4K}', 's_nop 0', x] if i == 0 else [x] for i, x in enumerate(dma_K(0, 0, '0'))]
        v0 = [[f's_lshl_b32 s{sT2}, s{sW}, 11', f'v_subrev_u32 v{vT}, s{sT2}, v{vDV}', f'v_subrev_u32 v{vT+1}, s{sT2}, v{vDV+1}', f's_add_u32 s{sT0}, s{sT2}, {LDS_V + 8192}', f's_mov_b32 m0, s{sT0}', 's_nop 0']]
        for p in range(2):
            a = lambda w, p=p: LDS_V + 8192 + w * 2048 + p * 1024
            v0.append([f'buffer_load_dwordx4 v{vT+p}, s[{sV}:{sV+3}], 0 offen offset:{p*1024}{cfg.kv_flag} lds ; @dma Vm1 {kb(a)}'])
        v0.append(m0(LDS_V + 1 * 16384) + [f's_mov_b32 s{sVsoff}, 8192'])
        v0 += [[x] for x in dma_V(0, 1, f's{sVsoff}')]
        e(self.stage_adv()); e(p1_chunk(6, {0: prev2, 1: k0 + v0}, 12)); e(f's_add_u32 s{sStage}, s{sStage}, s{sDelta}')
        g7 = [m0(1 * 16384) + [f's_mov_b32 s{sKsoff}, 16384']] + [[x] for x in dma_K(1, 1, f's{sKsoff}')]
        g7 += [m0(LDS_V + 2 * 16384) + [f's_mov_b32 s{sVsoff}, {8192+16384}']] + [[x] for x in dma_V(1, 2, f's{sVsoff}')]
        g7b = [m0(2 * 16384) + [f's_mov_b32 s{sKsoff}, {2*16384}']] + [[x] for x in dma_K(2, 2, f's{sKsoff}')]
        g7b += [m0(3 * 16384) + [f's_mov_b32 s{sKsoff}, {3*16384}']] + [[x] for x in dma_K(3, 3, f's{sKsoff}')]
        e(self.stage_adv()); e(p1_chunk(7, {1: g7}, 10)); e(f's_add_u32 s{sStage}, s{sStage}, s{sDelta}')
        g8 = [m0(LDS_V + 3 * 16384) + [f's_mov_b32 s{sVsoff}, {8192+2*16384}']] + [[x] for x in dma_V(2, 3, f's{sVsoff}')]
        e(p1_chunk(8, {0: g7b, 1: g8}, 63, last=True))
        self.stamp('p1end')
        e('s_nop 3')
        for ds in range(4):
            for qt in range(4):
                for x in range(2):
                    b = O(2 * ds + x, qt)
                    e(f'v_pk_mul_f32 v[{b}:{b+1}], v[{b}:{b+1}], s[{sC}:{sC+1}]\nv_pk_mul_f32 v[{b+2}:{b+3}], v[{b+2}:{b+3}], s[{sC}:{sC+1}]')
                t = vS + ((ds * 4 + qt) & 1) * 4
                for x in range(2):
                    b = O(2 * ds + x, qt)
                    e(f'v_cvt_pk_bf16_f32 v{t+2*x}, v{b}, v{b+1}\nv_cvt_pk_bf16_f32 v{t+2*x+1}, v{b+2}, v{b+3}')
                for i in range(4): e(f'v_accvgpr_write_b32 a{Qf(qt, ds)+i}, v{t+i}')

    QK = [0, 17, 34, 42]
    PV = [50, 59, 8, 25]
    LS = [58, 67, 16, 33]
    EX = [11, 29, 45, 63]
    VG = [26, 27, 27, 28, 28, 30, 30, 32, 34, 34, 36, 38, 38, 40, 42, 42]
    KG = [44, 46, 46, 50, 50, 52, 54, 54]
    def step(self, k, par, kind='full', extra=None):
        NS = 68
        Sl = Slots(NS)
        it = k // 2; ktile = it + 1; vtile = it
        last = kind == 'last'
        for qt in range(4):
            if not last:
                for m in range(8):
                    ds, kt = m >> 1, m & 1
                    Sl.mf[self.QK[qt] + m] = mfma(vr(S(qt, kt), 4), ar(Kf(m), 4), ar(Qf(qt, ds), 4), vr(CI(qt) if ds == 0 else S(qt, kt), 4))
            if not last or qt >= 2:
                for dt in range(8):
                    Sl.mf[self.PV[qt] + dt] = mfma(vr(O(dt, qt), 4), ar(Vf(dt), 4), vr(P(qt), 4), vr(O(dt, qt), 4))
                Sl.mf[self.LS[qt]] = mfma(vr(LA(qt), 4), ar(aOnes, 4), vr(P(qt), 4), vr(LA(qt), 4))
        mem = [[] for _ in range(NS)]; alu = [[] for _ in range(NS)]
        def put(g, ins):
            g %= NS
            mn = ins.split()[0]
            (mem if mn.startswith('ds_') or mn.startswith('buffer_') or mn.startswith('global_') else alu)[g].append(ins)
        for qt in range(4):
            for i in range(8):
                g = self.EX[qt] + 2 * i
                if last and g < NS: continue
                r = S(qt, i >> 2) + (i & 3)
                put(g, f'v_exp_f32 v{r}, v{r}')
            for n in range(4):
                g = self.EX[qt] + 4 * n + 3
                if last and g < NS: continue
                r = S(qt, n >> 1) + 2 * (n & 1)
                if last and Sl.mf[g % NS] is None: put(g, 's_nop 0')
                put(g, f'v_cvt_pk_bf16_f32 v{P(qt)+n}, v{r}, v{r+1}')
        if last: Sl.pre[8].append('s_nop 1')
        if not last:
            for n in range(16):
                dt, u = n >> 1, n & 1
                put(self.VG[n], f'ds_read_b64_tr_b16 a[{Vf(dt)+2*u}:{Vf(dt)+2*u+1}], v{vVA+dt} offset:{par*8192+u*4096}')
            if kind == 'full':
                for m in range(8):
                    ds, kt = m >> 1, m & 1
                    put(self.KG[m], f'ds_read_b128 a[{Kf(m)}:{Kf(m)+3}], v{vKA+ds} offset:{par*8192+kt*4096}')
            nk = sum(1 for g in self.KG if g <= 48) if kind == 'full' else 0
            Sl.pre[49].append(f's_waitcnt lgkmcnt({nk})')
            if kind == 'full': Sl.pre[67].append('s_waitcnt lgkmcnt(0)')
            if par == 0:
                Sl.pre[1] += ['s_waitcnt vmcnt(VMW)', 's_barrier']
                for dt in range(8): put([2, 4, 4, 6, 8, 8, 10, 14][dt], f'v_xor_b32 v{vVA+dt}, s{sXor}, v{vVA+dt}')
                for ds in range(4): put([18, 20, 20, 22][ds], f'v_xor_b32 v{vKA+ds}, s{sXor}, v{vKA+ds}')
        if extra:
            for g, L in extra.items():
                mem[g % NS] += L
        ab = cfg.ablate
        if ab and kind == 'full':
            if 'exp' in ab: alu = [[x for x in a if not x.startswith('v_exp')] for a in alu]
            if 'cvt' in ab: alu = [[x for x in a if not x.startswith('v_cvt')] for a in alu]
            if 'vrd' in ab: mem = [[x for x in a if not x.startswith('ds_read_b64')] for a in mem]
            if 'krd' in ab: mem = [[x for x in a if not x.startswith('ds_read_b128')] for a in mem]
            if 'dma' in ab: mem = [[x for x in a if not x.startswith('buffer_load')] for a in mem]
            if 'lsum' in ab:
                for qt in range(4): Sl.mf[self.LS[qt]] = None
        for g in range(NS): Sl.post[g] = mem[g] + alu[g]
        self.last_load = Sl.load()
        return Sl.out()

    def kv_extra(self, it, par, doK=True, doV=True):
        slot = it & 3
        X = {}
        if par == 0:
            if doK:
                D = dma_K(it + 4, slot, f's{sKsoff}')
                X[12] = [f's_mov_b32 m0, s{sDma}']
                for g, d in zip((16, 24, 58, 64), D): X.setdefault(g, []).append(d)
                X.setdefault(64, []).append(f's_add_u32 s{sKsoff}, s{sKsoff}, 16384')
        else:
            if doV:
                D = dma_V(it + 3, slot, f's{sVsoff}')
                X[0] = [f's_add_u32 s{sT0}, s{sDma}, {LDS_V}']
                X[4] = [f's_mov_b32 m0, s{sT0}']
                for g, d in zip((8, 20, 58, 64), D): X.setdefault(g, []).append(d)
                X.setdefault(64, []).append(f's_add_u32 s{sVsoff}, s{sVsoff}, 16384')
            X.setdefault(61, []).append(f's_xor_b32 s{sDma}, s{sDma}, s{sXor}')
            X.setdefault(62, []).append(f's_xor_b32 s{sXor}, s{sXor}, 0x8000')
        return X

    def phase2(self):
        e = self.e
        self.p('L_p2start:')
        e(f's_waitcnt vmcnt({self.vm_need({"K0", "Vm1"})})\ns_barrier')
        for m in range(8):
            ds, kt = m >> 1, m & 1
            e(f'ds_read_b128 a[{Kf(m)}:{Kf(m)+3}], v{vKA+ds} offset:{kt*4096} ; @rd K0')
        z = [f'v_mov_b32 v{O(dt, qt)+r}, 0' for qt in (2, 3) for dt in range(8) for r in range(4)] + [f'v_mov_b32 v{vL+i}, 0' for i in range(16)]
        e('s_waitcnt lgkmcnt(0)')
        zi = 0
        for qt in range(4):
            for m in range(8):
                ds, kt = m >> 1, m & 1
                e(mfma(vr(S(qt, kt), 4), ar(Kf(m), 4), ar(Qf(qt, ds), 4), '0' if ds == 0 else vr(S(qt, kt), 4)))
                e(z[zi:zi+2]); zi += 2
                if qt == 3: e(f'ds_read_b128 a[{Kf(m)}:{Kf(m)+3}], v{vKA+ds} offset:{8192+kt*4096} ; @rd K0')
        e(z[zi:])
        for n in range(16):
            dt, u = n >> 1, n & 1
            e(f'ds_read_b64_tr_b16 a[{Vf(dt)+2*u}:{Vf(dt)+2*u+1}], v{vVA+dt} offset:{8192+u*4096}')
        for qt in range(4):
            a, b = S(qt, 0), S(qt, 1); m = vT + qt
            e(f'v_max3_f32 v{m}, v{a}, v{a+1}, v{vMG+qt}\nv_max3_f32 v{m}, v{m}, v{a+2}, v{a+3}\nv_max3_f32 v{m}, v{m}, v{b}, v{b+1}\nv_max3_f32 v{m}, v{m}, v{b+2}, v{b+3}')
        for sw in ('v_permlane32_swap_b32', 'v_permlane16_swap_b32'):
            for qt in range(4): e(f'v_mov_b32 v{vC+qt}, v{vT+qt}')
            e('s_nop 0')
            for qt in range(4): e(f'{sw} v{vT+qt}, v{vC+qt}')
            for qt in range(4): e(f'v_max_f32 v{vT+qt}, v{vT+qt}, v{vC+qt}')
        for qt in range(4):
            for r in range(4): e(f'v_sub_f32 v{CI(qt)+r}, 0, v{vT+qt}')
        for qt in range(4):
            for i in range(8): e(f'v_add_f32 v{S(qt,0)+i}, v{S(qt,0)+i}, v{CI(qt)}')
        for qt in range(3):
            for i in range(8): e(f'v_exp_f32 v{S(qt,0)+i}, v{S(qt,0)+i}')
        for i in range(3): e(f'v_exp_f32 v{S(3,0)+i}, v{S(3,0)+i}')
        for qt in range(3):
            for n in range(4):
                r = S(qt, n >> 1) + 2 * (n & 1)
                e(f'v_cvt_pk_bf16_f32 v{P(qt)+n}, v{r}, v{r+1}')
        e(f'v_cvt_pk_bf16_f32 v{P(3)}, v{S(3,0)}, v{S(3,0)+1}')
        e('s_waitcnt lgkmcnt(0)')
        for qt in range(2):
            for dt in range(8):
                e(mfma(vr(O(dt, qt), 4), ar(Vf(dt), 4), vr(P(qt), 4), '0'))
            e(mfma(vr(LA(qt), 4), ar(aOnes, 4), vr(P(qt), 4), vr(LA(qt), 4)))
        e(f'''s_mov_b32 s{sXor}, 0x4000
s_mov_b32 s{sDma}, s{sW4K}
s_mov_b32 s{sKsoff}, {4*16384}
s_mov_b32 s{sVsoff}, {8192+3*16384}
s_mov_b32 s{sIter}, 0''')
        self.stamp('p2loop')
        self.p('.p2align 3\nL_p2:')
        texts = []
        NL = 12
        for it in range(NL):
            L = self.step(2 * it, 0, 'full', self.kv_extra(it, 0)); l0 = self.last_load
            L += self.step(2 * it + 1, 1, 'full', self.kv_extra(it, 1)); l1 = self.last_load
            L = [x.replace('VMW', '16') for x in L]
            L += [f's_add_u32 s{sIter}, s{sIter}, 1', f's_cmp_lt_u32 s{sIter}, {NL}', 's_cbranch_scc1 L_p2']
            texts.append([x.split(';')[0].strip() for x in L])
            if it == 0:
                self.p(L); self.loop_body = L
                print('gap load step0:', l0); print('gap load step1:', l1)
            self.tr.extend(L)
        assert all(t == texts[0] for t in texts)
        self.stamp('p2peel')
        from g2p3 import peeled_tail
        peeled_tail(self)

    def finish_stamps(self):
        if not cfg.stamps: return
        e = self.e
        e(f'''s_waitcnt lgkmcnt(0)
s_lshl_b32 s{sT0}, s2, 2
s_add_u32 s{sT0}, s{sT0}, s{sW}
s_lshl_b32 s{sT0}, s{sT0}, 8
s_add_u32 s{sT0}, s{sT0}, {STAMPBASE}
s_add_u32 s18, s18, s{sT0}
s_addc_u32 s19, s19, 0
v_mov_b32 v{vT}, 0''')
        for i in range(self.nstamp):
            for j in range(4): e(f'v_mov_b32 v{vT+2+j}, s{stamp_reg(i)+j}')
            e(f'global_store_dwordx4 v{vT}, v[{vT+2}:{vT+5}], s[18:19] offset:{16*i}\ns_nop 1')

def build():
    k = Kernel()
    k.header(); k.setup(); k.phase1(); k.phase2()
    from g2p3 import phase3
    phase3(k)
    k.stamp('end')
    k.finish_stamps()
    k.footer()
    return k

def main():
    import argparse
    ap = argparse.ArgumentParser()
    ap.add_argument('-o', default=f'cdna_kernels/{NAME}.s')
    ap.add_argument('--stamps', default='')
    ap.add_argument('--set', action='append', default=[])
    a = ap.parse_args()
    cfg.stamps = a.stamps.split(',') if a.stamps else False
    for kv in a.set:
        kk, vv = kv.split('=', 1)
        try: vv = eval(vv)
        except Exception: pass
        setattr(cfg, kk, vv)
    k = build()
    errs = simulate(k.tr, 'trace')
    errs += check_hazards(k.tr, 'haz')
    open(a.o, 'w').write(k.p.text())
    print('written', a.o, 'errors:', len(errs), 'trace len', len(k.tr))
```

```python
from asmlib import *
import g2 as G
from g2 import cfg, mfma, kb, Slots

REG = [13, 14, 0, 1, 2, 7, 3, 4, 8, 9, 5, 6, 10, 11, 12, 15]
def rbase(j):
    if j < 7: return j * 9216
    if j < 15: return 81920 + (j - 7) * 9216
    return 65536
sWoB = 60
sWoS = 84
sPh = 96
sOst = 99; sPst = 100; sFl = 101; sCnt = 59
vWoD = G.vWoD
vR = 8
vAd = 12
vOwn = 32
vD = 112
aPart = 0
aA = 192
def D(nt, qt): return vD + (nt * 4 + qt) * 4
def Own(qt, ks): return vOwn + (qt * 4 + ks) * 4
def Part(hp, qt, ks): return aPart + hp * 64 + (qt * 4 + ks) * 4

def wo_setup(k):
    e = k.e; T = G.vT; L = G.vLane
    out = []
    for p in range(9):
        out += [f'v_add_u32 v{T}, {64*p}, v{L}', f'v_mul_u32_u24 v{T+1}, 3641, v{T}', f'v_lshrrev_b32 v{T+1}, 16, v{T+1}',
                f'v_mul_u32_u24 v{T+2}, 18, v{T+1}', f'v_sub_u32 v{T+2}, v{T}, v{T+2}', f'v_mul_u32_u24 v{T+1}, 1152, v{T+1}',
                f'v_lshl_add_u32 v{vWoD+p}, v{T+2}, 4, v{T+1}']
        if p % 4: out.append(f'v_subrev_u32 v{vWoD+p}, {(p%4)*1024}, v{vWoD+p}')
    for grp in range(4):
        t = [rbase(REG[4 * grp + w]) for w in range(4)]
        out += [f's_mov_b32 s{sWoB+grp}, {t[0]}']
        for w in range(1, 4):
            out += [f's_cmp_eq_u32 s{G.sW}, {w}', f's_cselect_b32 s{sWoB+grp}, {t[w]}, s{sWoB+grp}']
        out += [f's_add_u32 s{G.sT0}, s{G.sNb}, {grp}', f's_and_b32 s{G.sT0}, s{G.sT0}, 3', f's_lshl_b32 s{G.sT0}, s{G.sT0}, 2',
                f's_add_u32 s{G.sT0}, s{G.sT0}, s{G.sW}', f's_mul_i32 s{sWoS+grp}, s{G.sT0}, {32*1152}']
    return out

def wo_dma(grp):
    L = []
    for p in range(9):
        g = []
        if p % 4 == 0:
            g += [f's_add_u32 s{G.sT0}, s{sWoB+grp}, {p*1024}', f's_mov_b32 m0, s{G.sT0}', 's_nop 0']
        a = lambda w, p=p: rbase(REG[4 * grp + w]) + p * 1024
        g.append(f'buffer_load_dwordx4 v{vWoD+p}, s[{G.sWo}:{G.sWo+3}], s{sWoS+grp} offen offset:{(p%4)*1024}{cfg.wo_flag} lds')
        L.append(g)
    return L

def spread(groups, gaps):
    X = {}
    for g, pos in zip(groups, gaps): X.setdefault(pos, []).extend(g)
    return X
def merge(a, b):
    for g, L in b.items(): a.setdefault(g, []).extend(L)
    return a

def peeled_tail(k):
    e = k.e
    gapsA = [12, 20, 24, 46, 62]; gapsB = [4, 20, 46, 62]
    def emit(step_lines, tags):
        n = k.vm_need(tags)
        e([x.replace('VMW', str(n)) for x in step_lines])
    su = wo_setup(k)
    reg = [f's_lshl_b32 s{G.sT0}, s{G.sB}, 5', f'v_mov_b32 v{G.vT2}, s{G.sT0}', f'global_load_dword v{G.vT2}, v{G.vT2}, s[16:17] sc1']
    X0 = {}
    h = len(su) // 2
    def sprinkle(L, gaps):
        X = {}; n = len(L); per = -(-n // len(gaps))
        for i, x in enumerate(L): X.setdefault(gaps[i // per], []).append(x)
        return X
    free = [12, 16, 24, 56, 58, 60, 61, 62, 64]
    emit(k.step(24, 0, 'full', sprinkle(su[:h], free)), {'V12', 'K13'})
    X = k.kv_extra(12, 1, doV=True)
    emit(k.step(25, 1, 'full', merge(X, sprinkle(su[h:] + reg, [12, 16, 24, 56, 60]))), set())
    for it, grp in ((13, 0), (14, 1)):
        W = wo_dma(grp)
        emit(k.step(2 * it, 0, 'full', spread(W[:4], [12, 24, 58, 64])), {f'V{it}', f'K{it+1}'})
        X = spread(W[4:], [4, 12, 20, 58, 64])
        X.setdefault(61, []).append(f's_xor_b32 s{G.sXor}, s{G.sXor}, 0x8000')
        emit(k.step(2 * it + 1, 1, 'full', X), set())
    W = wo_dma(2)
    emit(k.step(30, 0, 'nok', spread(W, [12, 16, 24, 44, 48, 52, 56, 60, 64])), {'V15'})
    e(k.step(31, 1, 'last'))
    k.stamp('p2end')

def poll(k, name, vaddr, soff_reg):
    e = k.e
    e(f's_mov_b32 s{sCnt}, 0', trace=False)
    k.p(f'L_poll_{name}:')
    e(f'''buffer_load_dword v{G.vT+1}, v{vaddr}, s[{G.sWS}:{G.sWS+3}], s{soff_reg} offen sc1
s_add_u32 s{sCnt}, s{sCnt}, 1
s_waitcnt vmcnt(0)
v_cmp_ne_u32 vcc, 1, v{G.vT+1}
s_cmp_ge_u32 s{sCnt}, 0x4000
s_cbranch_scc1 L_pollx_{name}
s_cbranch_vccz L_pollx_{name}
s_sleep 1
s_branch L_poll_{name}''', trace=False)
    k.p(f'L_pollx_{name}:')
    k.tr.append('s_waitcnt vmcnt(0)')

def set_flag(k, off_vreg):
    T = G.vT
    return ['s_mov_b64 exec, 1', f'buffer_store_dword v{vOne}, v{off_vreg}, s[{G.sWS}:{G.sWS+3}], s{sFl} offen sc1', 's_mov_b64 exec, -1']

vOne = 20; vF1 = 21; vF2a = 24; vF2b = 25
vPk = [32, 68]

def phase3(k):
    e = k.e; T = G.vT; L = G.vLane
    e('s_nop 4')
    rp = [T, T + 2, T + 4, 22]
    for qt in range(4): e(f'v_rcp_f32 v{rp[qt]}, v{G.LA(qt)}')
    e(f'''v_lshlrev_b32 v{vAd}, 4, v{L}
s_lshl_b32 s{sFl}, s{G.sB}, 5
s_add_u32 s{sFl}, s{sFl}, s{G.sH}
s_lshl_b32 s{sOst}, s{sFl}, 2
s_add_u32 s{sOst}, s{sOst}, s{G.sW}
s_lshl_b32 s{sOst}, s{sOst}, 14
s_lshl_b32 s{sFl}, s{sFl}, 7
s_add_u32 s{sFl}, s{sFl}, {G.FBASE}''')
    for qt in range(4): e(f'v_mov_b32 v{rp[qt]+1}, v{rp[qt]}')
    for i in range(1, 4): e(f'v_add_u32 v{vAd+i}, {4096*i}, v{vAd}')
    for qt in range(4):
        for ks in range(4):
            for x in range(2):
                b = G.O(2 * ks + x, qt); r = rp[qt]
                e(f'v_pk_mul_f32 v[{b}:{b+1}], v[{b}:{b+1}], v[{r}:{r+1}]\nv_pk_mul_f32 v[{b+2}:{b+3}], v[{b+2}:{b+3}], v[{r}:{r+1}]')
            for x in range(2):
                b = G.O(2 * ks + x, qt); d = Own(qt, ks) + 2 * x
                e(f'v_cvt_pk_bf16_f32 v{d}, v{b}, v{b+1}\nv_cvt_pk_bf16_f32 v{d+1}, v{b+2}, v{b+3}')
            e(f'buffer_store_dwordx4 v[{Own(qt,ks)}:{Own(qt,ks)+3}], v{vAd+qt}, s[{G.sWS}:{G.sWS+3}], s{sOst} offen offset:{ks*1024} sc1')
    k.stamp('p3pk')
    n = k.vm_need({'REG', 'WO0', 'WO1', 'WO2'})
    e(f's_waitcnt vmcnt({n})\ns_barrier')
    for g in wo_dma(3): e(g)
    e(f'''v_lshrrev_b32 v30, 4, v{L}
v_bfe_u32 v31, v{L}, 2, 2
v_lshl_add_u32 v30, v30, 2, v31
v_mul_u32_u24 v30, 288, v30
v_and_b32 v31, 3, v{L}
v_lshl_add_u32 v{vR}, v31, 3, v30
v_add_u32 v{vR+1}, 61440, v{vR}
v_add_u32 v{vR+2}, 122880, v{vR}
v_mov_b32 v{vOne}, 1
s_lshl_b32 s{G.sT0}, s{G.sW}, 2
v_mov_b32 v{vF1}, s{G.sT0}
s_lshl_b32 s{G.sT0}, s{G.sW}, 3
s_add_u32 s{G.sT0}, s{G.sT0}, 16
v_mov_b32 v{vF2a}, s{G.sT0}
s_add_u32 s{G.sT0}, s{G.sT0}, 4
v_mov_b32 v{vF2b}, s{G.sT0}''')
    def a_read(c, nt, slot):
        base = rbase(REG[c]); idx = base // 61440
        return [f'ds_read_b64_tr_b16 a[{aA+4*slot+2*u}:{aA+4*slot+2*u+1}], v{vR+idx} offset:{base-61440*idx+u*4608+nt*32}' for u in range(2)]
    seq = [(c, nt, (0, 1, 2, 3)) for c in range(4) for nt in range(9)]
    seq += [(c, nt, (0, 1)) for c in range(4, 16) for nt in range(9)]
    seq += [(c, nt, (2, 3)) for c in range(4, 16) for nt in range(9)]
    AH_OWN, AH = 6, 8
    for i in range(AH_OWN): e(a_read(seq[i][0], seq[i][1], i % 16))
    for hp in range(3):
        e(f'''s_add_u32 s{G.sT0}, s{G.sNb}, {hp+1}
s_and_b32 s{G.sT0}, s{G.sT0}, 3
s_lshl_b32 s{G.sT1}, s{G.sKg}, 2
s_add_u32 s{G.sT0}, s{G.sT0}, s{G.sT1}
s_lshl_b32 s{G.sT1}, s{G.sB}, 5
s_add_u32 s{G.sT0}, s{G.sT0}, s{G.sT1}
s_lshl_b32 s{G.sT0}, s{G.sT0}, 2
s_add_u32 s{G.sT0}, s{G.sT0}, s{G.sW}
s_lshl_b32 s{sPh+hp}, s{G.sT0}, 14''')
    k.stamp('p3go')
    def part_load(hp, qt, ks):
        return f'buffer_load_dwordx4 a[{Part(hp,qt,ks)}:{Part(hp,qt,ks)+3}], v{vAd+qt}, s[{G.sWS}:{G.sWS+3}], s{sPh+hp} offen offset:{ks*1024}'
    loads = [part_load(hp, qt, ks) for half in range(2) for hp in range(3) for ks in range(4) for qt in (2 * half, 2 * half + 1)]
    paddr = f'''s_lshl_b32 s{G.sT0}, s{G.sB}, 2
s_add_u32 s{G.sT0}, s{G.sT0}, s{G.sNb}
s_lshl_b32 s{G.sT0}, s{G.sT0}, 3
s_lshl_b32 s{G.sT1}, s{G.sW}, 1
s_add_u32 s{G.sT1}, s{G.sT0}, s{G.sT1}
s_lshl_b32 s{G.sT1}, s{G.sT1}, 3
s_add_u32 s{G.sT1}, s{G.sT1}, s{G.sKg}
s_mul_i32 s{sPst}, s{G.sT1}, 9216
s_add_u32 s{sPst}, s{sPst}, {G.PBASE}
s_add_u32 s{sOst}, s{sPst}, {8*9216}
s_add_u32 s{G.sT0}, s{G.sT0}, s{G.sKg}
s_mul_i32 s{G.sT3}, s{G.sT0}, {8*9216}
s_add_u32 s{G.sT3}, s{G.sT3}, {G.PBASE}'''
    def pack_store(half, nt):
        d = vPk[half] + 4 * nt
        Lx = []
        for x in range(2):
            b = D(nt, 2 * half + x)
            Lx += [f'v_cvt_pk_bf16_f32 v{d+2*x}, v{b}, v{b+1}', f'v_cvt_pk_bf16_f32 v{d+2*x+1}, v{b+2}, v{b+3}']
        st = f'buffer_store_dwordx4 v[{d}:{d+3}], v{vAd+nt//4}, s[{G.sWS}:{G.sWS+3}], s{sPst if half == 0 else sOst} offen offset:{(nt%4)*1024} sc1'
        return Lx, st
    issued = AH_OWN
    first_c = {}
    pend_ld = []; pend_x = []
    i = 0
    seg_bounds = [(0, 36), (36, 144), (144, 252)]
    for seg, (lo, hi) in enumerate(seg_bounds):
        if seg == 1:
            nn = k.vm_need({'OST'})
            e(f's_waitcnt vmcnt({nn})'); e(set_flag(k, vF1))
            k.stamp('p3d1')
            e(paddr)
            e(f'v_readfirstlane_b32 s{G.sT2}, v{G.vT2}')
            k.p('L_regchk:')
            e(f's_cmp_ge_u32 s{G.sT2}, 32\ns_cbranch_scc1 L_regok')
            e(f'''s_add_u32 s{G.sPass}, s{G.sPass}, 1
s_cmp_ge_u32 s{G.sPass}, 0x4000
s_cbranch_scc1 L_regok
s_lshl_b32 s{G.sT0}, s{G.sB}, 5
v_mov_b32 v{G.vT2}, s{G.sT0}
s_sleep 1
global_load_dword v{G.vT2}, v{G.vT2}, s[16:17] sc1
s_waitcnt vmcnt(0)
v_readfirstlane_b32 s{G.sT2}, v{G.vT2}
s_branch L_regchk''', trace=False)
            k.p('L_regok:')
            e(f'''v_and_b32 v{T}, 3, v{L}
s_lshl_b32 s{G.sT0}, s{G.sKg}, 2
v_add_u32 v{T}, s{G.sT0}, v{T}
v_lshlrev_b32 v{T}, 7, v{T}
v_add_u32 v{T}, v{T}, v{vF1}
s_lshl_b32 s{G.sT0}, s{G.sB}, 12
s_add_u32 s{G.sT0}, s{G.sT0}, {G.FBASE}''')
            poll(k, 'f1', T, G.sT0)
            k.stamp('p3f1')
            for x in loads[:8]: e(x)
            pend_ld = loads[8:]
        S_ = []
        for i in range(lo, hi):
            c, nt, qts = seq[i]
            slot = i % 16
            ah = AH_OWN if seg == 0 else AH
            pre = [];
            rd = []
            while issued < min(len(seq), i + ah + 1):
                rd += a_read(seq[issued][0], seq[issued][1], issued % 16); issued += 1
            younger = 2 * (issued - len(rd) // 2 - 1 - i)
            pre.append(f's_waitcnt lgkmcnt({min(15, younger)})')
            if seg > 0 and nt == 0:
                tag = f'PH{(c>>2)-1}_{seg-1}_{c&3}'
                pre.append(('VM', tag))
                if seg == 1 and c == 8: pre.append('s_barrier')
            mf = []
            for qt in qts:
                Bop = vr(Own(qt, c), 4) if c < 4 else ar(Part((c >> 2) - 1, qt, c & 3), 4)
                Cop = '0' if c == 0 else vr(D(nt, qt), 4)
                mf.append(mfma(vr(D(nt, qt), 4), ar(aA + 4 * slot, 4), Bop, Cop))
            for x in pre:
                if isinstance(x, tuple): e(f's_waitcnt vmcnt({k.vm_need({x[1]})})')
                else: e(x)
            e(mf[0]); e(rd)
            e(mf[1])
            if pend_ld and (nt % 2 == 0 or seg == 1 and c < 6): e(pend_ld.pop(0))
            elif pend_x: e(pend_x.pop(0))
            for m in mf[2:]: e(m)
            if seg == 2 and c == 5 and nt == 0:
                pass
        k.stamp(f'p3seg{seg}')
        if seg == 1:
            e('s_nop 4')
            px = []
            for nt in range(9):
                Lx, st = pack_store(0, nt); e(Lx); px.append(st)
            for st in px[:2]: e(st)
            pend_x = px[2:]
        if seg == 2:
            assert not pend_x and not pend_ld
            e('s_nop 4')
            nn = k.vm_need({'PS0'})
            e(f's_waitcnt vmcnt({nn})'); e(set_flag(k, vF2a))
            for nt in range(9):
                Lx, st = pack_store(1, nt); e(Lx); e(st)
    k.stamp('p3mm')
    nn = k.vm_need({'PS1'})
    e(f's_waitcnt vmcnt({nn})'); e(set_flag(k, vF2b))
    k.stamp('p3st')
    e(f'''v_and_b32 v{T}, 7, v{L}
v_lshlrev_b32 v{T}, 2, v{T}
v_add_u32 v{T}, s{G.sNb}, v{T}
v_lshlrev_b32 v{T}, 7, v{T}
s_lshl_b32 s{G.sT0}, s{G.sKg}, 2
s_add_u32 s{G.sT0}, s{G.sT0}, 16
v_add_u32 v{T}, s{G.sT0}, v{T}
s_lshl_b32 s{G.sT0}, s{G.sB}, 12
s_add_u32 s{G.sT0}, s{G.sT0}, {G.FBASE}
v_lshlrev_b32 v{vAd}, 4, v{L}
s_lshl_b32 s{G.sT1}, s{G.sW}, 10
v_add_u32 v{vAd}, s{G.sT1}, v{vAd}
v_add_u32 v{vAd+1}, 4096, v{vAd}
v_add_u32 v{vAd+2}, 8192, v{vAd}
s_cmp_ge_u32 s{G.sW}, 1
s_cselect_b32 s{G.sT1}, 0x40000000, 0
v_add_u32 v{vAd+2}, s{G.sT1}, v{vAd+2}''')
    poll(k, 'f2', T, G.sT0)
    k.stamp('p3f2')
    R = 112; SUM = 208
    for i in range(3):
        for src in range(8):
            b = R + (i * 8 + src) * 4
            e(f's_add_u32 s{G.sT1}, s{G.sT3}, {src*9216}')
            e(f'buffer_load_dwordx4 v[{b}:{b+3}], v{vAd+i}, s[{G.sWS}:{G.sWS+3}], s{G.sT1} offen')
    e(f'''v_and_b32 v{T}, 15, v{L}
v_mul_u32_u24 v{T}, 1152, v{T}
v_lshrrev_b32 v{T+1}, 4, v{L}
v_lshl_add_u32 v{T}, v{T+1}, 3, v{T}
v_add_u32 v{T+1}, {16*1152}, v{T}
s_lshl_b32 s{G.sT0}, s{G.sB}, 3
s_add_u32 s{G.sT0}, s{G.sT0}, s{G.sKg}
s_mul_i32 s{G.sT0}, s{G.sT0}, {32*1152}
s_mul_i32 s{G.sT1}, s{G.sNb}, 288
s_add_u32 s{G.sT0}, s{G.sT0}, s{G.sT1}
s_lshl_b32 s{G.sT1}, s{G.sW}, 5
s_add_u32 s{G.sT0}, s{G.sT0}, s{G.sT1}
s_mov_b32 s{G.sT1}, 0x00003f80
s_mov_b32 s{G.sT2}, 0x3f800000''')
    k.stamp('p3fi')
    for i in range(3):
        nn = k.vm_need({f'FIN{i}'})
        e(f's_waitcnt vmcnt({nn})')
        s_ = SUM + 8 * i
        for src in range(8):
            b = R + (i * 8 + src) * 4
            for j in range(4):
                for hi_ in range(2):
                    acc = s_ + 2 * j + hi_
                    e(f'v_dot2_f32_bf16 v{acc}, v{b+j}, s{G.sT1+hi_}, {"0" if src == 0 else f"v{acc}"}')
        e('s_nop 2')
        for j in range(4): e(f'v_cvt_pk_bf16_f32 v{b+j}, v{s_+2*j}, v{s_+2*j+1}')
        if i == 2:
            e(f's_cmp_ge_u32 s{G.sW}, 1\ns_cselect_b32 s{G.sT3}, 0x7ffff000, s{G.sT0}')
        so = G.sT0 if i < 2 else G.sT3
        e(f'buffer_store_dwordx2 v[{b}:{b+1}], v{T}, s[{G.sOut}:{G.sOut+3}], s{so} offen offset:{128*i}')
        e(f'buffer_store_dwordx2 v[{b+2}:{b+3}], v{T+1}, s[{G.sOut}:{G.sOut+3}], s{so} offen offset:{128*i}')
```

```python
import sys, math, struct
from asmlib import *

NAME = 'standalone__mha_block_cached__near_ridge'

class Cfg:
    stamps = False
    kv_flag = ' nt'
    x_flag = ''
    w_flag = ''
    wo_flag = ''
    force_safe = False
    ablate = ''
    l1inv = False
    codepf = True
    early_ost = False
    kv_same = False
cfg = Cfg()

sW = 3
sX, sWq, sK, sV, sWS, sWo, sOut = 20, 24, 28, 32, 36, 40, 44
sW4K = 48; sKsoff = 49; sVsoff = 50; sDma = 51; sXor = 52; sIter = 53
sT0, sT1, sT2, sT3 = 54, 55, 56, 57
sC = 58
sXsoff = 60; sWsoff = 61; sW8K = 62; sDelta = 63
sB = 64; sH = 65; sXcc = 66; sMode = 67
sKg = 68; sNb = 69; sHq = 70; sPass = 71
sStamp = 72

vLane = 1
vT = 2
vKA = 8
vVA = 12
vDK = 20
vDV = 24
vMG = 26
vT2 = 30
vS = 32
vC = 64
vP = 80
vL = 96
vXA = 112; vWA = 114
vOX = 32; vOW = 40
vWoD = 112
vWoR = 121
vAcc = 128
aQ = 0; aKf = 64; aVf = 96; aOnes = 252
aPA = 96; aPB = 64

def O(dt, qt): return vAcc + (dt * 4 + qt) * 4
def S(qt, kt): return vS + qt * 8 + kt * 4
def CI(qt): return vC + 4 * qt
def P(qt): return vP + 4 * qt
def LA(qt): return vL + 4 * qt
def Qf(qt, ds): return aQ + (qt * 4 + ds) * 4
def Kf(m): return aKf + 4 * m
def Vf(dt): return aVf + 4 * dt

LDS_V = 65536
XS = [32768, 81920]
WS = [114688, 131072, 147456]
OBASE = 0
PBASE = 16 << 20
FBASE = 60 << 20
STAMPBASE = 64 << 20

def kb(fn): return ','.join(str(fn(w) // 1024) for w in range(4))
def stamp_reg(i): return [72, 76, 80, 4, 8, 12, 88, 92][i]
def mfma(d, a, b, c): return f'v_mfma_f32_16x16x32_bf16 {d}, {a}, {b}, {c}'

class Slots:
    def __init__(self, n):
        self.pre = [[] for _ in range(n)]
        self.post = [[] for _ in range(n)]
        self.mf = [None] * n
    def out(self):
        o = []
        for i in range(len(self.mf)):
            o += self.pre[i]
            if self.mf[i]: o.append(self.mf[i])
            o += self.post[i]
        return o
    def load(self):
        def cost(x):
            mn = x.split()[0]
            if mn.startswith('v_exp') or mn.startswith('v_rcp'): return 8
            return 4
        n = len(self.mf); res = []
        for i in range(n):
            g = self.post[i] + (self.pre[i + 1] if i + 1 < n else [])
            res.append(sum(cost(x) for x in g))
        return res

def dma_K(tile, slot, soff):
    L = []
    for p in range(4):
        a = lambda w, p=p: slot * 16384 + w * 4096 + p * 1024
        L.append(f'buffer_load_dwordx4 v{vDK+p}, s[{sK}:{sK+3}], {soff} offen offset:{p*1024}{cfg.kv_flag} lds ; @dma K{tile} {kb(a)}')
    return L
def dma_V(tile, slot, soff):
    L = []
    for p in range(4):
        a = lambda w, p=p: LDS_V + slot * 16384 + w * 4096 + p * 1024
        L.append(f'buffer_load_dwordx4 v{vDV+(p&1)}, s[{sV}:{sV+3}], {soff} offen offset:{p*1024}{cfg.kv_flag} lds ; @dma V{tile} {kb(a)}')
    return L

def dma_W(c):
    G = []
    for p in range(4):
        a = lambda w, p=p: WS[c % 3] + w * 4096 + p * 1024
        ins = f'buffer_load_dwordx4 v{vOW+p}, s[{sWq}:{sWq+3}], s{sWsoff} offen offset:{p*1024}{cfg.w_flag} lds ; @dma W{c} {kb(a)}'
        g = [ins]
        if p == 0: g = [f's_add_u32 m0, s{sW4K}, {WS[c%3]}', f's_mov_b32 s{sWsoff}, {c*524288}', ins]
        G.append(g)
    return G
def dma_X(c):
    G = []
    for p in range(8):
        a = lambda w, p=p: XS[c % 2] + w * 8192 + p * 1024
        ins = f'buffer_load_dwordx4 v{vOX+p}, s[{sX}:{sX+3}], s{sXsoff} offen offset:{(p&3)*1024}{cfg.x_flag} lds ; @dma X{c} {kb(a)} priv'
        g = [ins]
        if p == 0: g = [f's_add_u32 m0, s{sW8K}, {XS[c%2]}', f's_mov_b32 s{sXsoff}, {c*128}', ins]
        if p == 4: g = [f's_add_u32 m0, s{sW8K}, {XS[c%2]+4096}', 's_nop 0', ins]
        G.append(g)
    return G

def p1_reads(c, n, buf):
    A = aPA + buf * 32; B = aPB + buf * 16
    def W(dt, u):
        ds, x = dt >> 1, dt & 1
        return f'ds_read_b64_tr_b16 a[{A+4*dt+2*u}:{A+4*dt+2*u+1}], v{vWA+ds} offset:{(c%3)*16384+(32*n+4*u)*256+8*x} ; @rd W{c}'
    def X(qt): return f'ds_read_b128 a[{B+4*qt}:{B+4*qt+3}], v{vXA+n} offset:{(c%2)*49152+qt*2048} ; @rd X{c}'
    R = [X(0), W(0, 0), W(0, 1), X(1), X(2), X(3)]
    for dt in range(1, 8): R += [W(dt, 0), W(dt, 1)]
    return R

def p1_kstep(k, c, n, groups, last=False):
    Sl = Slots(32)
    buf = n & 1
    for m in range(32):
        dt, qt = m >> 2, m & 3
        Sl.mf[m] = mfma(vr(O(dt, qt), 4), ar(aPA + buf * 32 + 4 * dt, 4), ar(aPB + buf * 16 + 4 * qt, 4), '0' if (c == 0 and n == 0) else vr(O(dt, qt), 4))
    if n == 0: R = p1_reads(c, 1, 1)
    else: R = [] if last else p1_reads(c + 1, 0, 0)
    if n == 1:
        vm = k.vm_need({f'X{c+1}', f'W{c+1}'}) if not last else 63
        Sl.pre[0] += [f's_waitcnt vmcnt({vm}) lgkmcnt(0)', 's_barrier']
    else: Sl.pre[0] += ['s_waitcnt lgkmcnt(0)']
    for i, r in enumerate(R): Sl.post[2 * (i // 2)].append(r)
    if groups:
        nn = len(groups)
        for i, g in enumerate(groups):
            Sl.post[min(31, 1 + 2 * ((i * 16) // nn))] += g
    return Sl.out()

class Kernel:
    def __init__(self):
        self.p = Prog(); self.tr = []; self.nstamp = 0; self.q = []
    def e(self, s, text=True, trace=True):
        if isinstance(s, str): s = [x.strip() for x in s.split('\n') if x.strip()]
        if text: self.p(s)
        if trace: self.tr.extend(s)
    def stamp(self, name):
        if cfg.stamps and name in cfg.stamps:
            i = cfg.stamps.index(name); b = stamp_reg(i)
            self.e(f's_memrealtime s[{b}:{b+1}]\ns_memtime s[{b+2}:{b+3}]')
            self.nstamp = max(self.nstamp, i + 1)
    def vm_need(self, tags):
        q = []
        for line in self.tr:
            code, _, com = line.partition(';')
            mn = code.split()[0] if code.split() else ''
            if mn.startswith('buffer_') and mn not in ('buffer_inv', 'buffer_wbl2') or mn.startswith('global_'):
                t = None
                a = com.split()
                if '@dma' in a: t = a[a.index('@dma') + 1]
                elif '@tag' in a: t = a[a.index('@tag') + 1]
                q.append(t)
        for t in tags: assert t in q, f'tag {t} was never issued'
        last = max((i for i, t in enumerate(q) if t in tags), default=-1)
        return min(63, len(q) - 1 - last)

    def header(self):
        self.p(f'; @launch grid=(256,1,1) block=(256,1,1) lds=163840')
        if cfg.stamps: self.p('; stamps: ' + ','.join(cfg.stamps))
        self.p('.amdgcn_target "amdgcn-amd-amdhsa--gfx950"\n.text')
        self.p(f'.globl {NAME}_kernel\n.p2align 8\n.type {NAME}_kernel,@function\n{NAME}_kernel:')
    def footer(self):
        self.p('L_end:\ns_endpgm')
        self.p('.p2align 6\nL_codeend:')
        self.p('.section .rodata,"a"\n.p2align 6')
        self.p(f'.amdhsa_kernel {NAME}_kernel')
        self.p('''.amdhsa_next_free_vgpr 512
.amdhsa_next_free_sgpr 102
.amdhsa_accum_offset 256
.amdhsa_group_segment_fixed_size 0
.amdhsa_kernarg_size 64
.amdhsa_user_sgpr_count 2
.amdhsa_user_sgpr_kernarg_segment_ptr 1
.amdhsa_system_sgpr_workgroup_id_x 1
.end_amdhsa_kernel''')

    def setup(self):
        e = self.e
        e('s_cmp_ge_u32 s2, 256\ns_cbranch_scc1 L_end')
        self.stamp('entry')
        e(f's_load_dwordx16 s[4:19], s[0:1], 0')
        e(f'''v_and_b32 v{vLane}, 63, v0
v_lshrrev_b32 v{vT}, 6, v0
s_and_b32 s{sB}, s2, 7
s_lshr_b32 s{sH}, s2, 3
v_readfirstlane_b32 s{sW}, v{vT}
s_lshr_b32 s{sKg}, s{sH}, 2
s_and_b32 s{sNb}, s{sH}, 3
s_lshl_b32 s{sW4K}, s{sW}, 12''')
        L = vLane; T = vT
        e(f'''v_lshrrev_b32 v{T}, 3, v{L}
s_lshl_b32 s{sT0}, s{sW}, 6
v_add_u32 v{T}, s{sT0}, v{T}
v_mul_u32_u24 v{T}, 1152, v{T}
v_lshrrev_b32 v{T+1}, 4, v{L}
v_and_b32 v{T+2}, 7, v{L}
v_xor_b32 v{T+3}, v{T+2}, v{T+1}
v_xor_b32 v{T+4}, 4, v{T+3}
v_lshl_add_u32 v{T+3}, v{T+3}, 4, v{T}
v_lshl_add_u32 v{T+4}, v{T+4}, 4, v{T}''')
        for p in range(8):
            e(f'v_add_u32 v{vOX+p}, {p*9216 - (p&3)*1024}, v{T+3+(p&1)}')
        e(f'''v_lshlrev_b32 v{T+2}, 2, v{T+1}
v_and_b32 v{T+3}, 15, v{L}
v_xor_b32 v{T+2}, v{T+2}, v{T+3}
v_lshlrev_b32 v{T+2}, 4, v{T+2}
s_lshl_b32 s{sT0}, s{sW}, 4
v_add_u32 v{T+4}, s{sT0}, v{T+1}
v_lshl_add_u32 v{T+5}, v{T+4}, 13, v{T+2}''')
        for p in range(4):
            e(f'v_add_u32 v{vOW+p}, {p*(32768-1024)}, v{T+5}')
        e(f'''v_lshrrev_b32 v{T+5}, 3, v{L}
s_lshl_b32 s{sT0}, s{sH}, 3
v_add_u32 v{T+5}, s{sT0}, v{T+5}
v_mul_u32_u24 v{T+5}, 1152, v{T+5}
v_and_b32 v{T+2}, 7, v{L}
v_lshl_add_u32 v{vT2}, v{T+2}, 4, v{T+5}''')
        e('s_waitcnt lgkmcnt(0)')
        self.stamp('karg')
        if cfg.l1inv:
            e(f's_cmp_eq_u32 s{sW}, 0\ns_cbranch_scc0 L_noinv\nbuffer_inv sc1', trace=False)
            self.p('L_noinv:')
        e(f'''s_mul_i32 s{sT0}, s{sB}, 294912
s_add_u32 s{sX}, s4, s{sT0}
s_addc_u32 s{sX+1}, s5, 0
s_mov_b32 s{sX+2}, 294912
s_mov_b32 s{sX+3}, 0x20000
s_lshl_b32 s{sT0}, s{sH}, 8
s_add_u32 s{sWq}, s10, s{sT0}
s_addc_u32 s{sWq+1}, s11, 0
s_sub_u32 s{sWq+2}, 4718592, s{sT0}
s_mov_b32 s{sWq+3}, 0x20000
s_mov_b32 s{sWS}, s18
s_mov_b32 s{sWS+1}, s19
s_mov_b32 s{sWS+2}, 0x8000000
s_mov_b32 s{sWS+3}, 0x20000''')
        e(f's_lshl_b32 s{sW8K}, s{sW}, 13')
        for g in dma_W(0) + dma_X(0): e(g)
        e(f's_lshl_b32 s{sT0}, s{sW}, 8\ns_add_u32 s{sT0}, s{sT0}, 128')
        e(f'buffer_load_dwordx4 v[{vS+16}:{vS+19}], v{vT2}, s[{sX}:{sX+3}], s{sT0} offen')
        e(f'buffer_load_dwordx4 v[{vS+20}:{vS+23}], v{vT2}, s[{sX}:{sX+3}], s{sT0} offen offset:128')
        if cfg.codepf:
            e(f'''s_getpc_b64 s[{sT2}:{sT2+1}]
L_pc:
s_and_b32 s{sT2}, s{sT2}, 0xffffff00
s_sub_u32 s{sT2}, s{sT2}, CODEOFF
s_subb_u32 s{sT3}, s{sT3}, 0
v_and_b32 v{T+5}, 15, v{L}
s_lshl_b32 s{sT0}, s{sH}, 4
v_add_u32 v{T+5}, s{sT0}, v{T+5}
v_lshlrev_b32 v{T+5}, 7, v{T+5}
v_min_u32 v{T+5}, CODELEN, v{T+5}
global_load_dword v{vS+24}, v{T+5}, s[{sT2}:{sT2+1}]''')
        self.stamp('dma0')
        e(f'''s_lshl_b32 s{sT0}, s{sB}, 5
s_add_u32 s{sT0}, s{sT0}, s{sH}
s_lshl_b32 s{sT0}, s{sT0}, 18''')
        if cfg.kv_same: e(f's_mov_b32 s{sT0}, 0')
        e(f'''s_add_u32 s{sK}, s6, s{sT0}
s_addc_u32 s{sK+1}, s7, 0
s_mov_b32 s{sK+2}, 262144
s_mov_b32 s{sK+3}, 0x20000
s_add_u32 s{sV}, s8, s{sT0}
s_addc_u32 s{sV+1}, s9, 0
s_mov_b32 s{sV+2}, 262144
s_mov_b32 s{sV+3}, 0x20000''')
        e(f'''s_mul_i32 s{sT0}, s{sKg}, {512*1152}
s_mul_i32 s{sT1}, s{sNb}, 288
s_add_u32 s{sT0}, s{sT0}, s{sT1}
s_add_u32 s{sWo}, s12, s{sT0}
s_addc_u32 s{sWo+1}, s13, 0
s_sub_u32 s{sWo+2}, 4718592, s{sT0}
s_mov_b32 s{sWo+3}, 0x20000
s_mov_b32 s{sOut}, s14
s_mov_b32 s{sOut+1}, s15
s_mov_b32 s{sOut+2}, 2359296
s_mov_b32 s{sOut+3}, 0x20000''')
        e(f'''v_lshrrev_b32 v{T+1}, 4, v{L}
v_and_b32 v{T+3}, 15, v{L}
s_lshl_b32 s{sT0}, s{sW}, 4
v_add_u32 v{T+4}, s{sT0}, v{T+1}''')
        for p in range(4):
            e(f'''v_add_u32 v{T+2}, {4*p}, v{T+1}
v_xor_b32 v{T+2}, v{T+2}, v{T+3}
v_lshlrev_b32 v{T+2}, 4, v{T+2}
v_lshl_add_u32 v{vDK+p}, v{T+4}, 8, v{T+2}''')
        for par in range(2):
            e(f'''v_add_u32 v{T+2}, {4*par}, v{T+1}
v_lshlrev_b32 v{T+2}, 1, v{T+2}
v_xor_b32 v{T+2}, v{T+2}, v{T+3}
v_lshlrev_b32 v{T+2}, 4, v{T+2}
v_lshl_add_u32 v{vDV+par}, v{T+4}, 8, v{T+2}''')
        for g in dma_W(1) + dma_X(1): e(g)
        e(f'''v_lshrrev_b32 v{T}, 4, v{L}
v_bfe_u32 v{T+1}, v{L}, 2, 2
v_and_b32 v{T+2}, 3, v{L}
v_and_b32 v{T+3}, 15, v{L}''')
        e(f'''v_lshl_add_u32 v{T+4}, v{T}, 3, v{T+1}
v_lshlrev_b32 v{T+4}, 8, v{T+4}
v_lshl_add_u32 v{T+4}, v{T+2}, 4, v{T+4}
v_add_u32 v{T+4}, {WS[0]}, v{T+4}''')
        for ds in range(4):
            e(f'v_xor_b32 v{T+5}, {ds}, v{T+1}\nv_lshl_add_u32 v{vWA+ds}, v{T+5}, 6, v{T+4}')
        e(f'''s_lshl_b32 s{sT0}, s{sW}, 13
s_add_u32 s{sT0}, s{sT0}, {XS[0]}
v_lshlrev_b32 v{T+4}, 7, v{T+3}
v_add_u32 v{T+4}, s{sT0}, v{T+4}
v_lshrrev_b32 v{vT2}, 1, v{T+3}''')
        for n in range(2):
            e(f'''v_add_u32 v{T+5}, {4*n}, v{T}
v_xor_b32 v{T+5}, v{T+5}, v{vT2}
v_lshl_add_u32 v{vXA+n}, v{T+5}, 4, v{T+4}''')
        e(f'v_lshlrev_b32 v{T+4}, 8, v{T+3}')
        for ds in range(4):
            e(f'''v_add_u32 v{T+5}, {4*ds}, v{T}
v_xor_b32 v{T+5}, v{T+5}, v{T+3}
v_lshl_add_u32 v{vKA+ds}, v{T+5}, 4, v{T+4}''')
        e(f'''v_lshl_add_u32 v{T+4}, v{T}, 2, v{T+1}
v_and_b32 v{vT2}, 7, v{T+4}
v_lshlrev_b32 v{vT2}, 1, v{vT2}
v_lshlrev_b32 v{T+4}, 8, v{T+4}
v_and_b32 v{T+5}, 1, v{T+2}
v_lshl_add_u32 v{T+4}, v{T+5}, 3, v{T+4}
v_add_u32 v{T+4}, {LDS_V}, v{T+4}
v_lshrrev_b32 v{vT2+1}, 1, v{T+2}''')
        for dt in range(8):
            e(f'''v_add_u32 v{T+5}, {2*dt}, v{vT2+1}
v_xor_b32 v{T+5}, v{T+5}, v{vT2}
v_lshl_add_u32 v{vVA+dt}, v{T+5}, 4, v{T+4}''')
        cbits = '0x%08x' % int.from_bytes(struct.pack('<f', math.log2(math.e) / math.sqrt(128.0)), 'little')
        e(f's_mov_b32 s{sC}, {cbits}\ns_mov_b32 s{sC+1}, {cbits}')
        e(f'v_mov_b32 v{T+5}, 0x3f803f80')
        for i in range(4): e(f'v_accvgpr_write_b32 a{aOnes+i}, v{T+5}')
        for i in range(4): e(f'v_mov_b32 v{vMG+i}, 0xff800000')
        e(f's_mov_b32 s{sPass}, 0')
        e(f'''s_lshl_b32 s{sT0}, s{sB}, 5
s_add_u32 s{sT0}, s{sT0}, s{sH}
s_lshl_b32 s{sT0}, s{sT0}, 7
s_add_u32 s{sT0}, s{sT0}, {FBASE}
v_mov_b32 v{T+2}, 0
v_lshlrev_b32 v{T+5}, 2, v{L}
v_cmp_gt_u32 vcc, 12, v{L}
v_mov_b32 v{T+4}, 0x7fffffff
s_cmp_eq_u32 s{sW}, 0
s_cselect_b64 vcc, vcc, 0
s_nop 1
v_cndmask_b32 v{T+5}, v{T+4}, v{T+5}, vcc
buffer_store_dword v{T+2}, v{T+5}, s[{sWS}:{sWS+3}], s{sT0} offen sc1 ; @tag CLR''')

    def phase1(self):
        e = self.e
        self.stamp('p1wait')
        n0 = self.vm_need({'X0', 'W0'})
        e(f's_waitcnt vmcnt({n0})\ns_barrier')
        self.stamp('p1go')
        e(p1_reads(0, 0, 0))
        def one(G, m0, extra=()):
            G = [[x] for x in G]
            G[0] = [m0] + list(extra) + (['s_nop 0'] if not extra else []) + G[0]
            return G
        K0 = one(dma_K(0, 0, '0'), f's_mov_b32 m0, s{sW4K}')
        K1 = one(dma_K(1, 1, f's{sKsoff}'), f's_add_u32 m0, s{sW4K}, 16384', [f's_mov_b32 s{sKsoff}, 16384'])
        K2 = one(dma_K(2, 2, f's{sKsoff}'), f's_add_u32 m0, s{sW4K}, {2*16384}', [f's_mov_b32 s{sKsoff}, {2*16384}'])
        V0 = one(dma_V(0, 1, f's{sVsoff}'), f's_add_u32 m0, s{sW4K}, {LDS_V+16384}', [f's_mov_b32 s{sVsoff}, 8192'])
        V1 = one(dma_V(1, 2, f's{sVsoff}'), f's_add_u32 m0, s{sW4K}, {LDS_V+2*16384}', [f's_mov_b32 s{sVsoff}, {8192+16384}'])
        Vm = [[f's_lshl_b32 s{sT2}, s{sW}, 11', f'v_subrev_u32 v{vT}, s{sT2}, v{vDV}', f'v_subrev_u32 v{vT+1}, s{sT2}, v{vDV+1}', f's_add_u32 m0, s{sT2}, {LDS_V + 8192}', 's_nop 0']]
        for p in range(2):
            a = lambda w, p=p: LDS_V + 8192 + w * 2048 + p * 1024
            ins = f'buffer_load_dwordx4 v{vT+p}, s[{sV}:{sV+3}], 0 offen offset:{p*1024}{cfg.kv_flag} lds ; @dma Vm1 {kb(a)}'
            if p == 0: Vm[0].append(ins)
            else: Vm.append([ins])
        plan = {}
        plan[(0, 0)] = dma_W(2)
        for c in range(9):
            g1 = []
            if c + 2 <= 8: g1 += dma_X(c + 2)
            plan[(c, 1)] = g1
            if c + 3 <= 8: plan[(c + 1, 0)] = dma_W(c + 3)
        for key, G in (((1, 0), K0), ((2, 0), Vm), ((3, 0), K1)): plan[key] = plan[key] + G
        plan[(7, 1)] = V0
        plan[(8, 0)] = V1
        plan[(8, 1)] = K2
        for c in range(9):
            for n in range(2):
                e(p1_kstep(self, c, n, plan.get((c, n), []), last=(c == 8)))
            if c == 3:
                e(f'''s_lshl_b32 s{sT0}, s{sB}, 5
v_mov_b32 v{vT+4}, s{sT0}
v_mov_b32 v{vT+5}, 1
s_cmp_eq_u32 s{sW}, 0
s_cbranch_scc0 L_noreg
s_mov_b64 exec, 1
global_atomic_add v{vT+4}, v{vT+5}, s[16:17] sc1
s_mov_b64 exec, -1''', trace=False)
                self.p('L_noreg:')
            if c == 5: self.stamp('p1c6')
        self.stamp('p1end')
        e('s_nop 3')
        for ds in range(4):
            for qt in range(4):
                for x in range(2):
                    b = O(2 * ds + x, qt)
                    e(f'v_pk_mul_f32 v[{b}:{b+1}], v[{b}:{b+1}], s[{sC}:{sC+1}]\nv_pk_mul_f32 v[{b+2}:{b+3}], v[{b+2}:{b+3}], s[{sC}:{sC+1}]')
                t = vS + ((ds * 4 + qt) & 1) * 4
                for x in range(2):
                    b = O(2 * ds + x, qt)
                    e(f'v_cvt_pk_bf16_f32 v{t+2*x}, v{b}, v{b+1}\nv_cvt_pk_bf16_f32 v{t+2*x+1}, v{b+2}, v{b+3}')
                for i in range(4): e(f'v_accvgpr_write_b32 a{Qf(qt, ds)+i}, v{t+i}')

    QK = [0, 17, 34, 42]
    PV = [50, 59, 8, 25]
    LS = [58, 67, 16, 33]
    EX = [11, 29, 45, 63]
    VG = [26, 27, 27, 28, 28, 30, 30, 32, 34, 34, 36, 38, 38, 40, 42, 42]
    KG = [44, 46, 46, 50, 50, 52, 54, 54]
    def step(self, k, par, kind='full', extra=None):
        NS = 68
        Sl = Slots(NS)
        it = k // 2; ktile = it + 1; vtile = it
        last = kind == 'last'
        for qt in range(4):
            if not last:
                for m in range(8):
                    ds, kt = m >> 1, m & 1
                    Sl.mf[self.QK[qt] + m] = mfma(vr(S(qt, kt), 4), ar(Kf(m), 4), ar(Qf(qt, ds), 4), vr(CI(qt) if ds == 0 else S(qt, kt), 4))
            if not last or qt >= 2:
                for dt in range(8):
                    Sl.mf[self.PV[qt] + dt] = mfma(vr(O(dt, qt), 4), ar(Vf(dt), 4), vr(P(qt), 4), vr(O(dt, qt), 4))
                Sl.mf[self.LS[qt]] = mfma(vr(LA(qt), 4), ar(aOnes, 4), vr(P(qt), 4), vr(LA(qt), 4))
        mem = [[] for _ in range(NS)]; alu = [[] for _ in range(NS)]
        def put(g, ins):
            g %= NS
            mn = ins.split()[0]
            (mem if mn.startswith('ds_') or mn.startswith('buffer_') or mn.startswith('global_') else alu)[g].append(ins)
        for qt in range(4):
            for i in range(8):
                g = self.EX[qt] + 2 * i
                if last and g < NS: continue
                r = S(qt, i >> 2) + (i & 3)
                put(g, f'v_exp_f32 v{r}, v{r}')
            for n in range(4):
                g = self.EX[qt] + 4 * n + 3
                if last and g < NS: continue
                r = S(qt, n >> 1) + 2 * (n & 1)
                if last and Sl.mf[g % NS] is None: put(g, 's_nop 0')
                put(g, f'v_cvt_pk_bf16_f32 v{P(qt)+n}, v{r}, v{r+1}')
        if last: Sl.pre[8].append('s_nop 1')
        if not last:
            for n in range(16):
                dt, u = n >> 1, n & 1
                put(self.VG[n], f'ds_read_b64_tr_b16 a[{Vf(dt)+2*u}:{Vf(dt)+2*u+1}], v{vVA+dt} offset:{par*8192+u*4096}')
            if kind == 'full':
                for m in range(8):
                    ds, kt = m >> 1, m & 1
                    put(self.KG[m], f'ds_read_b128 a[{Kf(m)}:{Kf(m)+3}], v{vKA+ds} offset:{par*8192+kt*4096}')
            nk = sum(1 for g in self.KG if g <= 48) if kind == 'full' else 0
            Sl.pre[49].append(f's_waitcnt lgkmcnt({nk})')
            if kind == 'full': Sl.pre[67].append('s_waitcnt lgkmcnt(0)')
            if par == 0:
                Sl.pre[1] += ['s_waitcnt vmcnt(VMW)', 's_barrier']
                for dt in range(8): put([2, 4, 4, 6, 8, 8, 10, 14][dt], f'v_xor_b32 v{vVA+dt}, s{sXor}, v{vVA+dt}')
                for ds in range(4): put([18, 20, 20, 22][ds], f'v_xor_b32 v{vKA+ds}, s{sXor}, v{vKA+ds}')
        if extra:
            for g, L in extra.items():
                mem[g % NS] += L
        ab = cfg.ablate
        if ab and kind == 'full':
            if 'exp' in ab: alu = [[x for x in a if not x.startswith('v_exp')] for a in alu]
            if 'cvt' in ab: alu = [[x for x in a if not x.startswith('v_cvt')] for a in alu]
            if 'vrd' in ab: mem = [[x for x in a if not x.startswith('ds_read_b64')] for a in mem]
            if 'krd' in ab: mem = [[x for x in a if not x.startswith('ds_read_b128')] for a in mem]
            if 'dma' in ab: mem = [[x for x in a if not x.startswith('buffer_load')] for a in mem]
            if 'lsum' in ab:
                for qt in range(4): Sl.mf[self.LS[qt]] = None
        for g in range(NS): Sl.post[g] = mem[g] + alu[g]
        self.last_load = Sl.load()
        return Sl.out()

    def kv_extra(self, it, par, doK=True, doV=True):
        slot = (it + 3) & 3
        X = {}
        if par == 0:
            if doK:
                D = dma_K(it + 3, slot, f's{sKsoff}')
                X[12] = [f's_mov_b32 m0, s{sDma}']
                for g, d in zip((16, 24, 58, 64), D): X.setdefault(g, []).append(d)
                X.setdefault(64, []).append(f's_add_u32 s{sKsoff}, s{sKsoff}, 16384')
        else:
            if doV:
                D = dma_V(it + 2, slot, f's{sVsoff}')
                X[0] = [f's_add_u32 s{sT0}, s{sDma}, {LDS_V}']
                X[4] = [f's_mov_b32 m0, s{sT0}']
                for g, d in zip((8, 20, 58, 64), D): X.setdefault(g, []).append(d)
                X.setdefault(64, []).append(f's_add_u32 s{sVsoff}, s{sVsoff}, 16384')
            X.setdefault(61, []).append(f's_xor_b32 s{sXor}, s{sXor}, 0x8000')
            X.setdefault(62, []).append(f's_xor_b32 s{sDma}, s{sDma}, s{sXor}')
        return X

    def phase2(self):
        e = self.e
        self.p('L_p2start:')
        e(f's_waitcnt vmcnt({self.vm_need({"K0", "Vm1"})})\ns_barrier')
        for m in range(8):
            ds, kt = m >> 1, m & 1
            e(f'ds_read_b128 a[{Kf(m)}:{Kf(m)+3}], v{vKA+ds} offset:{kt*4096} ; @rd K0')
        z = [f'v_mov_b32 v{O(dt, qt)+r}, 0' for qt in (2, 3) for dt in range(8) for r in range(4)] + [f'v_mov_b32 v{vL+i}, 0' for i in range(16)]
        e('s_waitcnt lgkmcnt(0)')
        zi = 0
        for qt in range(4):
            for m in range(8):
                ds, kt = m >> 1, m & 1
                e(mfma(vr(S(qt, kt), 4), ar(Kf(m), 4), ar(Qf(qt, ds), 4), '0' if ds == 0 else vr(S(qt, kt), 4)))
                e(z[zi:zi+2]); zi += 2
                if qt == 3: e(f'ds_read_b128 a[{Kf(m)}:{Kf(m)+3}], v{vKA+ds} offset:{8192+kt*4096} ; @rd K0')
        e(z[zi:])
        for n in range(16):
            dt, u = n >> 1, n & 1
            e(f'ds_read_b64_tr_b16 a[{Vf(dt)+2*u}:{Vf(dt)+2*u+1}], v{vVA+dt} offset:{8192+u*4096}')
        for qt in range(4):
            a, b = S(qt, 0), S(qt, 1); m = vT + qt
            e(f'v_max3_f32 v{m}, v{a}, v{a+1}, v{vMG+qt}\nv_max3_f32 v{m}, v{m}, v{a+2}, v{a+3}\nv_max3_f32 v{m}, v{m}, v{b}, v{b+1}\nv_max3_f32 v{m}, v{m}, v{b+2}, v{b+3}')
        for sw in ('v_permlane32_swap_b32', 'v_permlane16_swap_b32'):
            for qt in range(4): e(f'v_mov_b32 v{vC+qt}, v{vT+qt}')
            e('s_nop 0')
            for qt in range(4): e(f'{sw} v{vT+qt}, v{vC+qt}')
            for qt in range(4): e(f'v_max_f32 v{vT+qt}, v{vT+qt}, v{vC+qt}')
        for qt in range(4):
            for r in range(4): e(f'v_sub_f32 v{CI(qt)+r}, 0, v{vT+qt}')
        for qt in range(4):
            for i in range(8): e(f'v_add_f32 v{S(qt,0)+i}, v{S(qt,0)+i}, v{CI(qt)}')
        for qt in range(3):
            for i in range(8): e(f'v_exp_f32 v{S(qt,0)+i}, v{S(qt,0)+i}')
        for i in range(3): e(f'v_exp_f32 v{S(3,0)+i}, v{S(3,0)+i}')
        for qt in range(3):
            for n in range(4):
                r = S(qt, n >> 1) + 2 * (n & 1)
                e(f'v_cvt_pk_bf16_f32 v{P(qt)+n}, v{r}, v{r+1}')
        e(f'v_cvt_pk_bf16_f32 v{P(3)}, v{S(3,0)}, v{S(3,0)+1}')
        e('s_waitcnt lgkmcnt(0)')
        for qt in range(2):
            for dt in range(8):
                e(mfma(vr(O(dt, qt), 4), ar(Vf(dt), 4), vr(P(qt), 4), '0'))
            e(mfma(vr(LA(qt), 4), ar(aOnes, 4), vr(P(qt), 4), vr(LA(qt), 4)))
        e(f'''s_mov_b32 s{sXor}, 0x4000
s_add_u32 s{sDma}, s{sW4K}, {3*16384}
s_mov_b32 s{sKsoff}, {3*16384}
s_mov_b32 s{sVsoff}, {8192+2*16384}
s_mov_b32 s{sIter}, 0''')
        self.stamp('p2loop')
        self.p('.p2align 3\nL_p2:')
        texts = []
        NL = 12
        for it in range(NL):
            L = self.step(2 * it, 0, 'full', self.kv_extra(it, 0)); l0 = self.last_load
            L += self.step(2 * it + 1, 1, 'full', self.kv_extra(it, 1)); l1 = self.last_load
            L = [x.replace('VMW', '8') for x in L]
            L += [f's_add_u32 s{sIter}, s{sIter}, 1', f's_cmp_lt_u32 s{sIter}, {NL}', 's_cbranch_scc1 L_p2']
            texts.append([x.split(';')[0].strip() for x in L])
            if it == 0:
                self.p(L); self.loop_body = L
                print('gap load step0:', l0); print('gap load step1:', l1)
            self.tr.extend(L)
        assert all(t == texts[0] for t in texts)
        self.stamp('p2peel')
        from g2p3 import peeled_tail
        peeled_tail(self)

    def finish_stamps(self):
        if not cfg.stamps: return
        e = self.e
        e(f'''s_waitcnt lgkmcnt(0)
s_lshl_b32 s{sT0}, s2, 2
s_add_u32 s{sT0}, s{sT0}, s{sW}
s_lshl_b32 s{sT0}, s{sT0}, 8
s_add_u32 s{sT0}, s{sT0}, {STAMPBASE}
s_add_u32 s18, s18, s{sT0}
s_addc_u32 s19, s19, 0
v_mov_b32 v{vT}, 0''')
        for i in range(self.nstamp):
            for j in range(4): e(f'v_mov_b32 v{vT+2+j}, s{stamp_reg(i)+j}')
            e(f'global_store_dwordx4 v{vT}, v[{vT+2}:{vT+5}], s[18:19] offset:{16*i}\ns_nop 1')

def build():
    k = Kernel()
    k.header(); k.setup(); k.phase1(); k.phase2()
    from g2p3 import phase3
    phase3(k)
    k.stamp('end')
    k.finish_stamps()
    k.footer()
    return k

def main():
    import argparse
    ap = argparse.ArgumentParser()
    ap.add_argument('-o', default=f'cdna_kernels/{NAME}.s')
    ap.add_argument('--stamps', default='')
    ap.add_argument('--set', action='append', default=[])
    a = ap.parse_args()
    cfg.stamps = a.stamps.split(',') if a.stamps else False
    for kv in a.set:
        kk, vv = kv.split('=', 1)
        try: vv = eval(vv)
        except Exception: pass
        setattr(cfg, kk, vv)
    k = build()
    errs = simulate(k.tr, 'trace')
    errs += check_hazards(k.tr, 'haz')
    txt = k.p.text()
    txt = txt.replace('CODEOFF', f'((L_pc - {NAME}_kernel) & 0xffffff00)').replace('CODELEN', f'(L_codeend - {NAME}_kernel - 128)')
    open(a.o, 'w').write(txt)
    print('written', a.o, 'errors:', len(errs), 'trace len', len(k.tr))
```

```python
from asmlib import *
import g2 as G
from g2 import cfg, mfma, kb, Slots

REG = [13, 14, 0, 1, 2, 7, 3, 4, 8, 9, 5, 6, 10, 11, 12, 15]
def rbase(j):
    if j < 7: return j * 9216
    if j < 15: return 81920 + (j - 7) * 9216
    return 65536
sWoB = 60
sWoS = 84
sPh = 96
sOst = 99; sPst = 100; sFl = 101; sCnt = 59
vWoD = G.vWoD
vR = 8
vAd = 12
vOwn = 32
vD = 112
aPart = 0
aA = 192
def D(nt, qt): return vD + (nt * 4 + qt) * 4
def Own(qt, ks): return vOwn + (qt * 4 + ks) * 4
def Part(hp, qt, ks): return aPart + hp * 64 + (qt * 4 + ks) * 4

def wo_setup(k):
    e = k.e; T = G.vT; L = G.vLane
    out = []
    for p in range(9):
        out += [f'v_add_u32 v{T}, {64*p}, v{L}', f'v_mul_u32_u24 v{T+1}, 3641, v{T}', f'v_lshrrev_b32 v{T+1}, 16, v{T+1}',
                f'v_mul_u32_u24 v{T+2}, 18, v{T+1}', f'v_sub_u32 v{T+2}, v{T}, v{T+2}', f'v_mul_u32_u24 v{T+1}, 1152, v{T+1}',
                f'v_lshl_add_u32 v{vWoD+p}, v{T+2}, 4, v{T+1}']
        if p % 4: out.append(f'v_subrev_u32 v{vWoD+p}, {(p%4)*1024}, v{vWoD+p}')
    for grp in range(4):
        t = [rbase(REG[4 * grp + w]) for w in range(4)]
        out += [f's_mov_b32 s{sWoB+grp}, {t[0]}']
        for w in range(1, 4):
            out += [[f's_cmp_eq_u32 s{G.sW}, {w}', f's_cselect_b32 s{sWoB+grp}, {t[w]}, s{sWoB+grp}']]
        out += [f's_add_u32 s{G.sT0}, s{G.sNb}, {grp}', f's_and_b32 s{G.sT0}, s{G.sT0}, 3', f's_lshl_b32 s{G.sT0}, s{G.sT0}, 2',
                f's_add_u32 s{G.sT0}, s{G.sT0}, s{G.sW}', f's_mul_i32 s{sWoS+grp}, s{G.sT0}, {32*1152}']
    return out

def wo_dma(grp, vbase=None):
    L = []
    for p in range(9):
        g = []
        if p % 4 == 0:
            g += [f's_add_u32 s{G.sT0}, s{sWoB+grp}, {p*1024}', f's_mov_b32 m0, s{G.sT0}', 's_nop 0']
        a = lambda w, p=p: rbase(REG[4 * grp + w]) + p * 1024
        g.append(f'buffer_load_dwordx4 v{(vbase or vWoD)+p}, s[{G.sWo}:{G.sWo+3}], s{sWoS+grp} offen offset:{(p%4)*1024}{cfg.wo_flag} lds')
        L.append(g)
    return L

def spread(groups, gaps):
    X = {}
    for g, pos in zip(groups, gaps): X.setdefault(pos, []).extend(g)
    return X
def merge(a, b):
    for g, L in b.items(): a.setdefault(g, []).extend(L)
    return a

def peeled_tail(k):
    e = k.e
    gapsA = [12, 20, 24, 46, 62]; gapsB = [4, 20, 46, 62]
    def emit(step_lines, tags):
        n = k.vm_need(tags)
        e([x.replace('VMW', str(n)) for x in step_lines])
    su = wo_setup(k)
    reg = [f's_lshl_b32 s{G.sT0}, s{G.sB}, 5', f'v_mov_b32 v{G.vT2}, s{G.sT0}', f'global_load_dword v{G.vT2}, v{G.vT2}, s[16:17] sc1']
    X0 = {}
    h = len(su) // 2
    def sprinkle(L, gaps):
        X = {}; n = len(L); per = -(-n // len(gaps))
        for i, x in enumerate(L):
            if isinstance(x, list): X.setdefault(gaps[i // per], []).extend(x)
            else: X.setdefault(gaps[i // per], []).append(x)
        return X
    free = [12, 16, 24, 56, 58, 60, 61, 62, 64]
    emit(k.step(24, 0, 'full', merge(k.kv_extra(12, 0), sprinkle(su[:h], free))), {'V12', 'K13'})
    X = k.kv_extra(12, 1, doV=True)
    emit(k.step(25, 1, 'full', merge(X, sprinkle(su[h:] + reg, [12, 16, 24, 56, 60]))), set())
    for it, grp in ((13, 0), (14, 1)):
        W = wo_dma(grp)
        emit(k.step(2 * it, 0, 'full', spread(W[:4], [12, 24, 58, 64])), {f'V{it}', f'K{it+1}'})
        if it == 13:
            X = k.kv_extra(13, 1)
            X = {g: L for g, L in X.items()}
            D = G.dma_V(15, (13 + 3) & 3, f's{G.sVsoff}')
            X = {0: [f's_add_u32 m0, s{G.sDma}, {G.LDS_V}'], 2: [D[0]], 4: [D[1]], 6: [D[2]], 8: [D[3]], 61: [f's_xor_b32 s{G.sXor}, s{G.sXor}, 0x8000']}
            X = merge(X, spread(W[4:], [12, 16, 20, 58, 64]))
        else:
            X = spread(W[4:], [4, 12, 20, 58, 64])
            X.setdefault(61, []).append(f's_xor_b32 s{G.sXor}, s{G.sXor}, 0x8000')
        emit(k.step(2 * it + 1, 1, 'full', X), set())
    W = wo_dma(2)
    emit(k.step(30, 0, 'nok', spread(W, [12, 16, 24, 44, 48, 52, 56, 60, 64])), {'V15', 'WO0', 'WO1'})
    e(k.step(31, 1, 'last'))
    k.stamp('p2end')

def poll(k, name, vaddr, soff_reg):
    e = k.e
    e(f's_mov_b32 s{sCnt}, 0', trace=False)
    k.p(f'L_poll_{name}:')
    e(f'''buffer_load_dword v{G.vT+1}, v{vaddr}, s[{G.sWS}:{G.sWS+3}], s{soff_reg} offen sc1
s_add_u32 s{sCnt}, s{sCnt}, 1
s_waitcnt vmcnt(0)
v_cmp_ne_u32 vcc, 1, v{G.vT+1}
s_cmp_ge_u32 s{sCnt}, 0x4000
s_cbranch_scc1 L_pollx_{name}
s_cbranch_vccz L_pollx_{name}
s_sleep 1
s_branch L_poll_{name}''', trace=False)
    k.p(f'L_pollx_{name}:')
    k.tr.append('s_waitcnt vmcnt(0)')

def set_flag(k, off_vreg):
    T = G.vT
    return ['s_mov_b64 exec, 1', f'buffer_store_dword v{vOne}, v{off_vreg}, s[{G.sWS}:{G.sWS+3}], s{sFl} offen sc1', 's_mov_b64 exec, -1']

vOne = 20; vF1 = 21; vF2a = 24; vF2b = 25
vPk = [32, 68]

def phase3(k):
    e = k.e; T = G.vT; L = G.vLane
    e('s_nop 4')
    rp = [T, T + 2, T + 4, 22]
    for qt in range(4): e(f'v_rcp_f32 v{rp[qt]}, v{G.LA(qt)}')
    e(f'''v_lshlrev_b32 v{vAd}, 4, v{L}
s_lshl_b32 s{sFl}, s{G.sB}, 5
s_add_u32 s{sFl}, s{sFl}, s{G.sH}
s_lshl_b32 s{sOst}, s{sFl}, 2
s_add_u32 s{sOst}, s{sOst}, s{G.sW}
s_lshl_b32 s{sOst}, s{sOst}, 14
s_lshl_b32 s{sFl}, s{sFl}, 7
s_add_u32 s{sFl}, s{sFl}, {G.FBASE}''')
    for qt in range(4): e(f'v_mov_b32 v{rp[qt]+1}, v{rp[qt]}')
    for p in range(9): e(f'v_mov_b32 v{96+p}, v{vWoD+p}')
    for i in range(1, 4): e(f'v_add_u32 v{vAd+i}, {4096*i}, v{vAd}')
    for ks in range(4):
        for qt in range(4):
            for x in range(2):
                b = G.O(2 * ks + x, qt); r = rp[qt]
                e(f'v_pk_mul_f32 v[{b}:{b+1}], v[{b}:{b+1}], v[{r}:{r+1}]\nv_pk_mul_f32 v[{b+2}:{b+3}], v[{b+2}:{b+3}], v[{r}:{r+1}]')
            for x in range(2):
                b = G.O(2 * ks + x, qt); d = Own(qt, ks) + 2 * x
                e(f'v_cvt_pk_bf16_f32 v{d}, v{b}, v{b+1}\nv_cvt_pk_bf16_f32 v{d+1}, v{b+2}, v{b+3}')
            if ks == 0 or cfg.early_ost:
                e(f'buffer_store_dwordx4 v[{Own(qt,ks)}:{Own(qt,ks)+3}], v{vAd+qt}, s[{G.sWS}:{G.sWS+3}], s{sOst} offen offset:{ks*1024} sc1')
    ost = [f'buffer_store_dwordx4 v[{Own(qt,ks)}:{Own(qt,ks)+3}], v{vAd+qt}, s[{G.sWS}:{G.sWS+3}], s{sOst} offen offset:{ks*1024} sc1' for ks in range(1, 4) for qt in range(4)]
    if cfg.early_ost: ost = []
    k.stamp('p3pk')
    e(f'''v_lshrrev_b32 v30, 4, v{L}
v_bfe_u32 v31, v{L}, 2, 2
v_lshl_add_u32 v30, v30, 2, v31
v_mul_u32_u24 v30, 288, v30
v_and_b32 v31, 3, v{L}
v_lshl_add_u32 v{vR}, v31, 3, v30
v_add_u32 v{vR+1}, 61440, v{vR}
v_add_u32 v{vR+2}, 122880, v{vR}
v_mov_b32 v{vOne}, 1
s_lshl_b32 s{G.sT0}, s{G.sW}, 2
v_mov_b32 v{vF1}, s{G.sT0}
s_lshl_b32 s{G.sT0}, s{G.sW}, 3
s_add_u32 s{G.sT0}, s{G.sT0}, 16
v_mov_b32 v{vF2a}, s{G.sT0}
s_add_u32 s{G.sT0}, s{G.sT0}, 4
v_mov_b32 v{vF2b}, s{G.sT0}''')
    def a_read(c, nt, slot):
        base = rbase(REG[c]); idx = base // 61440
        return [f'ds_read_b64_tr_b16 a[{aA+4*slot+2*u}:{aA+4*slot+2*u+1}], v{vR+idx} offset:{base-61440*idx+u*4608+nt*32}' for u in range(2)]
    seq = [(c, nt, (0, 1, 2, 3)) for c in range(4) for nt in range(9)]
    seq += [(c, nt, (0, 1)) for c in range(4, 16) for nt in range(9)]
    seq += [(c, nt, (2, 3)) for c in range(4, 16) for nt in range(9)]
    AH_OWN, AH = 6, 8
    for i in range(AH_OWN): e(a_read(seq[i][0], seq[i][1], i % 16))
    for hp in range(3):
        e(f'''s_add_u32 s{G.sT0}, s{G.sNb}, {hp+1}
s_and_b32 s{G.sT0}, s{G.sT0}, 3
s_lshl_b32 s{G.sT1}, s{G.sKg}, 2
s_add_u32 s{G.sT0}, s{G.sT0}, s{G.sT1}
s_lshl_b32 s{G.sT1}, s{G.sB}, 5
s_add_u32 s{G.sT0}, s{G.sT0}, s{G.sT1}
s_lshl_b32 s{G.sT0}, s{G.sT0}, 2
s_add_u32 s{G.sT0}, s{G.sT0}, s{G.sW}
s_lshl_b32 s{sPh+hp}, s{G.sT0}, 14''')
    k.stamp('p3go')
    def part_load(hp, qt, ks):
        return f'buffer_load_dwordx4 a[{Part(hp,qt,ks)}:{Part(hp,qt,ks)+3}], v{vAd+qt}, s[{G.sWS}:{G.sWS+3}], s{sPh+hp} offen offset:{ks*1024}'
    loads = [[part_load(hp, qt, ks) for ks in range(4) for qt in (2 * half, 2 * half + 1)] for half in range(2) for hp in range(3)]
    paddr = f'''s_lshl_b32 s{G.sT0}, s{G.sB}, 2
s_add_u32 s{G.sT0}, s{G.sT0}, s{G.sNb}
s_lshl_b32 s{G.sT0}, s{G.sT0}, 3
s_lshl_b32 s{G.sT1}, s{G.sW}, 1
s_add_u32 s{G.sT1}, s{G.sT0}, s{G.sT1}
s_lshl_b32 s{G.sT1}, s{G.sT1}, 3
s_add_u32 s{G.sT1}, s{G.sT1}, s{G.sKg}
s_mul_i32 s{sPst}, s{G.sT1}, 9216
s_add_u32 s{sPst}, s{sPst}, {G.PBASE}
s_add_u32 s{sOst}, s{sPst}, {8*9216}
s_add_u32 s{G.sT0}, s{G.sT0}, s{G.sKg}
s_mul_i32 s{G.sT3}, s{G.sT0}, {8*9216}
s_add_u32 s{G.sT3}, s{G.sT3}, {G.PBASE}'''
    def pack_store(half, nt):
        d = vPk[half] + 4 * nt
        Lx = []
        for x in range(2):
            b = D(nt, 2 * half + x)
            Lx += [f'v_cvt_pk_bf16_f32 v{d+2*x}, v{b}, v{b+1}', f'v_cvt_pk_bf16_f32 v{d+2*x+1}, v{b+2}, v{b+3}']
        st = f'buffer_store_dwordx4 v[{d}:{d+3}], v{vAd+nt//4}, s[{G.sWS}:{G.sWS+3}], s{sPst if half == 0 else sOst} offen offset:{(nt%4)*1024} sc1'
        return Lx, st
    issued = AH_OWN
    seg_bounds = [(0, 36), (36, 144), (144, 252)]
    extra = {}
    def place(seg, c0, items, every, start=0):
        pos = start
        for it_ in items:
            c, nt = c0 + pos // 9, pos % 9
            extra.setdefault((seg, c, nt), []).append(it_ if isinstance(it_, list) else [it_])
            pos += every
    place(0, 0, ost, 3 if len(ost) > 9 else 3, start=1)
    place(1, 4, loads[1], 4, start=1)
    place(1, 8, loads[2], 4, start=1)
    place(1, 12, loads[3], 4, start=1)
    place(2, 4, loads[4], 4, start=1)
    place(2, 8, loads[5], 4, start=1)
    place(1, 5, wo_dma(3, 96), 2, start=2)
    for seg, (lo, hi) in enumerate(seg_bounds):
        if seg == 1:
            nn = k.vm_need({'OST'})
            e(f's_waitcnt vmcnt({nn})'); e(set_flag(k, vF1))
            k.stamp('p3d1')
            e(paddr)
            e(f'v_readfirstlane_b32 s{G.sT2}, v{G.vT2}')
            k.p('L_regchk:')
            e(f's_cmp_ge_u32 s{G.sT2}, 32\ns_cbranch_scc1 L_regok')
            e(f'''s_add_u32 s{G.sPass}, s{G.sPass}, 1
s_cmp_ge_u32 s{G.sPass}, 0x4000
s_cbranch_scc1 L_regok
s_lshl_b32 s{G.sT0}, s{G.sB}, 5
v_mov_b32 v{G.vT2}, s{G.sT0}
s_sleep 1
global_load_dword v{G.vT2}, v{G.vT2}, s[16:17] sc1
s_waitcnt vmcnt(0)
v_readfirstlane_b32 s{G.sT2}, v{G.vT2}
s_branch L_regchk''', trace=False)
            k.p('L_regok:')
            e(f'''v_and_b32 v{T}, 3, v{L}
s_lshl_b32 s{G.sT0}, s{G.sKg}, 2
v_add_u32 v{T}, s{G.sT0}, v{T}
v_lshlrev_b32 v{T}, 7, v{T}
v_add_u32 v{T}, v{T}, v{vF1}
s_lshl_b32 s{G.sT0}, s{G.sB}, 12
s_add_u32 s{G.sT0}, s{G.sT0}, {G.FBASE}''')
            poll(k, 'f1', T, G.sT0)
            k.stamp('p3f1')
            for x in loads[0]: e(x)
        for i in range(lo, hi):
            c, nt, qts = seq[i]
            slot = i % 16
            ah = AH_OWN if seg == 0 else AH
            rd = []
            while issued < min(len(seq), i + ah + 1):
                rd += a_read(seq[issued][0], seq[issued][1], issued % 16); issued += 1
            younger = 2 * (issued - len(rd) // 2 - 1 - i)
            pre = [f's_waitcnt lgkmcnt({min(15, younger)})']
            if seg > 0 and nt == 0:
                pre.append(f's_waitcnt vmcnt({k.vm_need({f"PH{(c>>2)-1}_{seg-1}_{c&3}"})})')
                if seg == 1 and c == 5: pre.append('s_barrier')
                if seg == 1 and c == 10: pre += [f's_waitcnt vmcnt({k.vm_need({"WO3"})})', 's_barrier']
            mf = []
            for qt in qts:
                Bop = vr(Own(qt, c), 4) if c < 4 else ar(Part((c >> 2) - 1, qt, c & 3), 4)
                Cop = '0' if c == 0 else vr(D(nt, qt), 4)
                mf.append(mfma(vr(D(nt, qt), 4), ar(aA + 4 * slot, 4), Bop, Cop))
            e(pre)
            e(mf[0]); e(rd)
            e(mf[1])
            for x in extra.pop((seg, c, nt), []): e(x)
            for m in mf[2:]: e(m)
        k.stamp(f'p3seg{seg}')
        if seg == 1:
            e('s_nop 4')
            px = []
            for nt in range(9):
                Lx, st = pack_store(0, nt); e(Lx); px.append(st)
            e(px[0])
            place(2, 4, px[1:], 4, start=3)
        if seg == 2:
            e('s_nop 4')
            nn = k.vm_need({'PS0'})
            e(f's_waitcnt vmcnt({nn})'); e(set_flag(k, vF2a))
            for nt in range(9):
                Lx, st = pack_store(1, nt); e(Lx); e(st)
    assert not extra, extra.keys()
    k.stamp('p3mm')
    nn = k.vm_need({'PS1'})
    e(f's_waitcnt vmcnt({nn})'); e(set_flag(k, vF2b))
    k.stamp('p3st')
    e(f'''v_and_b32 v{T}, 7, v{L}
v_lshlrev_b32 v{T}, 2, v{T}
v_add_u32 v{T}, s{G.sNb}, v{T}
v_lshlrev_b32 v{T}, 7, v{T}
s_lshl_b32 s{G.sT0}, s{G.sKg}, 2
s_add_u32 s{G.sT0}, s{G.sT0}, 16
v_add_u32 v{T}, s{G.sT0}, v{T}
s_lshl_b32 s{G.sT0}, s{G.sB}, 12
s_add_u32 s{G.sT0}, s{G.sT0}, {G.FBASE}
v_lshlrev_b32 v{vAd}, 4, v{L}
s_lshl_b32 s{G.sT1}, s{G.sW}, 10
v_add_u32 v{vAd}, s{G.sT1}, v{vAd}
v_add_u32 v{vAd+1}, 4096, v{vAd}
v_add_u32 v{vAd+2}, 8192, v{vAd}
s_cmp_ge_u32 s{G.sW}, 1
s_cselect_b32 s{G.sT1}, 0x40000000, 0
v_add_u32 v{vAd+2}, s{G.sT1}, v{vAd+2}''')
    poll(k, 'f2', T, G.sT0)
    k.stamp('p3f2')
    R = 112; SUM = 208
    for i in range(3):
        for src in range(8):
            b = R + (i * 8 + src) * 4
            e(f's_add_u32 s{G.sT1}, s{G.sT3}, {src*9216}')
            e(f'buffer_load_dwordx4 v[{b}:{b+3}], v{vAd+i}, s[{G.sWS}:{G.sWS+3}], s{G.sT1} offen')
    e(f'''v_and_b32 v{T}, 15, v{L}
v_mul_u32_u24 v{T}, 1152, v{T}
v_lshrrev_b32 v{T+1}, 4, v{L}
v_lshl_add_u32 v{T}, v{T+1}, 3, v{T}
v_add_u32 v{T+1}, {16*1152}, v{T}
s_lshl_b32 s{G.sT0}, s{G.sB}, 3
s_add_u32 s{G.sT0}, s{G.sT0}, s{G.sKg}
s_mul_i32 s{G.sT0}, s{G.sT0}, {32*1152}
s_mul_i32 s{G.sT1}, s{G.sNb}, 288
s_add_u32 s{G.sT0}, s{G.sT0}, s{G.sT1}
s_lshl_b32 s{G.sT1}, s{G.sW}, 5
s_add_u32 s{G.sT0}, s{G.sT0}, s{G.sT1}
s_mov_b32 s{G.sT1}, 0x00003f80
s_mov_b32 s{G.sT2}, 0x3f800000''')
    k.stamp('p3fi')
    for i in range(3):
        nn = k.vm_need({f'FIN{i}'})
        e(f's_waitcnt vmcnt({nn})')
        s_ = SUM + 8 * i
        for src in range(8):
            b = R + (i * 8 + src) * 4
            for j in range(4):
                for hi_ in range(2):
                    acc = s_ + 2 * j + hi_
                    e(f'v_dot2_f32_bf16 v{acc}, v{b+j}, s{G.sT1+hi_}, {"0" if src == 0 else f"v{acc}"}')
        e('s_nop 2')
        for j in range(4): e(f'v_cvt_pk_bf16_f32 v{b+j}, v{s_+2*j}, v{s_+2*j+1}')
        if i == 2:
            e(f's_cmp_ge_u32 s{G.sW}, 1\ns_cselect_b32 s{G.sT3}, 0x7ffff000, s{G.sT0}')
        so = G.sT0 if i < 2 else G.sT3
        e(f'buffer_store_dwordx2 v[{b}:{b+1}], v{T}, s[{G.sOut}:{G.sOut+3}], s{so} offen offset:{128*i}')
        e(f'buffer_store_dwordx2 v[{b+2}:{b+3}], v{T+1}, s[{G.sOut}:{G.sOut+3}], s{so} offen offset:{128*i}')
```

```python
import sys, math, struct
from asmlib import *

NAME = 'standalone__mha_block_cached__near_ridge'

class Cfg:
    stamps = False
    kv_flag = ' nt'
    x_flag = ''
    w_flag = ''
    wo_flag = ''
    force_safe = False
    ablate = ''
    l1inv = False
    codepf = True
    pad = 0
    dbgstamps = 0
    mapx = False
    dualflag = False
    out_flag = ''
    bswap = 0
    coop_pre = (0, 1, 2, 3)
    coop_mid = ()
    coop_skip = ()
    coop_wait = 0
    early_ost = True
    own_split = (2, 3)
    ps0_every = 4
    kv_same = False
cfg = Cfg()

sW = 3
sX, sWq, sK, sV, sWS, sWo, sOut = 20, 24, 28, 32, 36, 40, 44
sW4K = 48; sKsoff = 49; sVsoff = 50; sDma = 51; sXor = 52; sIter = 53
sT0, sT1, sT2, sT3 = 54, 55, 56, 57
sC = 58
sXsoff = 60; sWsoff = 61; sW8K = 62; sDelta = 63
sB = 64; sH = 65; sJ = 66; sMode = 67
sKg = 68; sNb = 69; sHq = 70; sPass = 71
sStamp = 72

vLane = 1
vT = 2
vKA = 8
vVA = 12
vDK = 20
vDV = 24
vMG = 26
vT2 = 30
vS = 32
vC = 64
vP = 80
vL = 96
vXA = 112; vWA = 114
vCo = 118
vOX = 32; vOW = 40
vWoD = 112
vWoR = 121
vAcc = 128
aQ = 0; aKf = 64; aVf = 96; aOnes = 252; aZero = 188
aPA = 96; aPB = 64

def O(dt, qt): return vAcc + (dt * 4 + qt) * 4
def S(qt, kt): return vS + qt * 8 + kt * 4
def CI(qt): return vC + 4 * qt
def P(qt): return vP + 4 * qt
def LA(qt): return vL + 4 * qt
def Qf(qt, ds): return aQ + (qt * 4 + ds) * 4
def Kf(m): return aKf + 4 * m
def Vf(dt): return aVf + 4 * dt

LDS_V = 65536
XS = [32768, 81920]
WS = [114688, 131072, 147456]
OBASE = 0
PBASE = 16 << 20
FBASE = 60 << 20
FTWIN = 1 << 16
STAMPBASE = 64 << 20

def kb(fn): return ','.join(str(fn(w) // 1024) for w in range(4))
def stamp_reg(i): return [72, 76, 80, 4, 8, 12, 92][i]
def mfma(d, a, b, c): return f'v_mfma_f32_16x16x32_bf16 {d}, {a}, {b}, {c}'

class Slots:
    def __init__(self, n):
        self.pre = [[] for _ in range(n)]
        self.post = [[] for _ in range(n)]
        self.mf = [None] * n
    def out(self):
        o = []
        for i in range(len(self.mf)):
            o += self.pre[i]
            if self.mf[i]: o.append(self.mf[i])
            o += self.post[i]
        return o
    def load(self):
        def cost(x):
            mn = x.split()[0]
            if mn.startswith('v_exp') or mn.startswith('v_rcp'): return 8
            return 4
        n = len(self.mf); res = []
        for i in range(n):
            g = self.post[i] + (self.pre[i + 1] if i + 1 < n else [])
            res.append(sum(cost(x) for x in g))
        return res

def dma_K(tile, slot, soff):
    L = []
    for p in range(4):
        a = lambda w, p=p: slot * 16384 + w * 4096 + p * 1024
        L.append(f'buffer_load_dwordx4 v{vDK+p}, s[{sK}:{sK+3}], {soff} offen offset:{p*1024}{cfg.kv_flag} lds ; @dma K{tile} {kb(a)}')
    return L
def dma_V(tile, slot, soff):
    L = []
    for p in range(4):
        a = lambda w, p=p: LDS_V + slot * 16384 + w * 4096 + p * 1024
        L.append(f'buffer_load_dwordx4 v{vDV+(p&1)}, s[{sV}:{sV+3}], {soff} offen offset:{p*1024}{cfg.kv_flag} lds ; @dma V{tile} {kb(a)}')
    return L

def dma_W(c):
    G = []
    for p in range(4):
        a = lambda w, p=p: WS[c % 3] + w * 4096 + p * 1024
        ins = f'buffer_load_dwordx4 v{vOW+p}, s[{sWq}:{sWq+3}], s{sWsoff} offen offset:{p*1024}{cfg.w_flag} lds ; @dma W{c} {kb(a)}'
        g = [ins]
        if p == 0: g = [f's_add_u32 m0, s{sW4K}, {WS[c%3]}', f's_mov_b32 s{sWsoff}, {c*524288}', ins]
        G.append(g)
    return G
def dma_X(c):
    G = []
    for p in range(8):
        a = lambda w, p=p: XS[c % 2] + w * 8192 + p * 1024
        ins = f'buffer_load_dwordx4 v{vOX+p}, s[{sX}:{sX+3}], s{sXsoff} offen offset:{(p&3)*1024}{cfg.x_flag} lds ; @dma X{c} {kb(a)} priv'
        g = [ins]
        if p == 0: g = [f's_add_u32 m0, s{sW8K}, {XS[c%2]}', f's_mov_b32 s{sXsoff}, {c*128}', ins]
        if p == 4: g = [f's_add_u32 m0, s{sW8K}, {XS[c%2]+4096}', 's_nop 0', ins]
        G.append(g)
    return G

def kv_dma_addr():
    T = vT; L = vLane
    o = f'''v_lshrrev_b32 v{T+1}, 4, v{L}
v_and_b32 v{T+3}, 15, v{L}
s_lshl_b32 s{sT0}, s{sW}, 4
v_add_u32 v{T+4}, s{sT0}, v{T+1}'''.split('\n')
    for p in range(4):
        o += [f'v_add_u32 v{T+2}, {4*p}, v{T+1}', f'v_xor_b32 v{T+2}, v{T+2}, v{T+3}', f'v_lshlrev_b32 v{T+2}, 4, v{T+2}', f'v_lshl_add_u32 v{vDK+p}, v{T+4}, 8, v{T+2}']
    for par in range(2):
        o += [f'v_add_u32 v{T+2}, {4*par}, v{T+1}', f'v_lshlrev_b32 v{T+2}, 1, v{T+2}', f'v_xor_b32 v{T+2}, v{T+2}, v{T+3}', f'v_lshlrev_b32 v{T+2}, 4, v{T+2}', f'v_lshl_add_u32 v{vDV+par}, v{T+4}, 8, v{T+2}']
    return o
def kv_read_addr():
    T = vT; L = vLane
    o = [f'v_lshrrev_b32 v{T}, 4, v{L}', f'v_bfe_u32 v{T+1}, v{L}, 2, 2', f'v_and_b32 v{T+2}, 3, v{L}', f'v_and_b32 v{T+3}, 15, v{L}',
         f'v_lshlrev_b32 v{T+4}, 8, v{T+3}']
    for ds in range(4):
        o += [f'v_add_u32 v{T+5}, {4*ds}, v{T}', f'v_xor_b32 v{T+5}, v{T+5}, v{T+3}', f'v_lshl_add_u32 v{vKA+ds}, v{T+5}, 4, v{T+4}']
    o += f'''v_lshl_add_u32 v{T+4}, v{T}, 2, v{T+1}
v_and_b32 v{vT2}, 7, v{T+4}
v_lshlrev_b32 v{vT2}, 1, v{vT2}
v_lshlrev_b32 v{T+4}, 8, v{T+4}
v_and_b32 v{T+5}, 1, v{T+2}
v_lshl_add_u32 v{T+4}, v{T+5}, 3, v{T+4}
v_add_u32 v{T+4}, {LDS_V}, v{T+4}
v_lshrrev_b32 v{vT2+1}, 1, v{T+2}'''.split('\n')
    for dt in range(8):
        o += [f'v_add_u32 v{T+5}, {2*dt}, v{vT2+1}', f'v_xor_b32 v{T+5}, v{T+5}, v{vT2}', f'v_lshl_add_u32 v{vVA+dt}, v{T+5}, 4, v{T+4}']
    return o

def p1_reads(c, n, buf):
    A = aPA + buf * 32; B = aPB + buf * 16
    def W(dt, u):
        ds, x = dt >> 1, dt & 1
        return f'ds_read_b64_tr_b16 a[{A+4*dt+2*u}:{A+4*dt+2*u+1}], v{vWA+ds} offset:{(c%3)*16384+(32*n+4*u)*256+8*x} ; @rd W{c}'
    def X(qt): return f'ds_read_b128 a[{B+4*qt}:{B+4*qt+3}], v{vXA+n} offset:{(c%2)*49152+qt*2048} ; @rd X{c}'
    R = [X(0), W(0, 0), W(0, 1), X(1), X(2), X(3)]
    for dt in range(1, 8): R += [W(dt, 0), W(dt, 1)]
    return R

def p1_kstep(k, c, n, groups, last=False):
    Sl = Slots(32)
    buf = n & 1
    for m in range(32):
        dt, qt = m >> 2, m & 3
        Sl.mf[m] = mfma(vr(O(dt, qt), 4), ar(aPA + buf * 32 + 4 * dt, 4), ar(aPB + buf * 16 + 4 * qt, 4), '0' if (c == 0 and n == 0) else vr(O(dt, qt), 4))
    if n == 0: R = p1_reads(c, 1, 1)
    else: R = [] if last else p1_reads(c + 1, 0, 0)
    if n == 1:
        vm = (k.vm_need({f'X{c+1}', f'W{c+1}'}) if not cfg.ablate else 20) if not last else 63
        Sl.pre[0] += [f's_waitcnt vmcnt({vm}) lgkmcnt(0)', 's_barrier']
    else: Sl.pre[0] += ['s_waitcnt lgkmcnt(0)']
    ab = cfg.ablate
    if 'p1rd' in ab: R = []
    if 'p1x' in ab: groups = [[x for x in g if '@dma X' not in x] for g in groups]
    if 'p1w' in ab: groups = [[x for x in g if '@dma W' not in x] for g in groups]
    if 'p1kv' in ab: groups = [[x for x in g if '@dma K' not in x and '@dma V' not in x] for g in groups]
    for i, r in enumerate(R): Sl.post[2 * (i // 2)].append(r)
    if groups:
        nn = len(groups)
        for i, g in enumerate(groups):
            Sl.post[min(31, 1 + 2 * ((i * 16) // nn))] += g
    return Sl.out()

class Kernel:
    def __init__(self):
        self.p = Prog(); self.tr = []; self.nstamp = 0; self.q = []
    def e(self, s, text=True, trace=True):
        if isinstance(s, str): s = [x.strip() for x in s.split('\n') if x.strip()]
        if text: self.p(s)
        if trace: self.tr.extend(s)
    def stamp(self, name):
        if cfg.stamps and name in cfg.stamps:
            i = cfg.stamps.index(name); b = stamp_reg(i)
            self.e(f's_memrealtime s[{b}:{b+1}]\ns_memtime s[{b+2}:{b+3}]')
            self.nstamp = max(self.nstamp, i + 1)
    def vm_need(self, tags):
        q = []
        for line in self.tr:
            code, _, com = line.partition(';')
            mn = code.split()[0] if code.split() else ''
            if mn.startswith('buffer_') and mn not in ('buffer_inv', 'buffer_wbl2') or mn.startswith('global_'):
                t = None
                a = com.split()
                if '@dma' in a: t = a[a.index('@dma') + 1]
                elif '@tag' in a: t = a[a.index('@tag') + 1]
                q.append(t)
        for t in tags: assert t in q, f'tag {t} was never issued'
        last = max((i for i, t in enumerate(q) if t in tags), default=-1)
        return min(63, len(q) - 1 - last)

    def header(self):
        self.p(f'; @launch grid=(256,1,1) block=(256,1,1) lds=163840')
        if cfg.stamps: self.p('; stamps: ' + ','.join(cfg.stamps))
        self.p('.amdgcn_target "amdgcn-amd-amdhsa--gfx950"\n.text')
        self.p(f'.globl {NAME}_kernel\n.p2align 8\n.type {NAME}_kernel,@function\n{NAME}_kernel:')
    def footer(self):
        self.p('L_end:\ns_endpgm')
        self.p('.p2align 6\nL_codeend:')
        self.p('.section .rodata,"a"\n.p2align 6')
        self.p(f'.amdhsa_kernel {NAME}_kernel')
        self.p('''.amdhsa_next_free_vgpr 512
.amdhsa_next_free_sgpr 102
.amdhsa_accum_offset 256
.amdhsa_group_segment_fixed_size 0
.amdhsa_kernarg_size 64
.amdhsa_user_sgpr_count 2
.amdhsa_user_sgpr_kernarg_segment_ptr 1
.amdhsa_system_sgpr_workgroup_id_x 1
.end_amdhsa_kernel''')

    def setup(self):
        e = self.e
        e('s_cmp_ge_u32 s2, 256\ns_cbranch_scc1 L_end')
        self.stamp('entry')
        e(f's_load_dwordx16 s[4:19], s[0:1], 0')
        e(f'''v_and_b32 v{vLane}, 63, v0
v_lshrrev_b32 v{vT}, 6, v0
s_and_b32 s{sT0}, s2, 7
s_lshr_b32 s{sJ}, s2, 3
v_readfirstlane_b32 s{sW}, v{vT}
s_and_b32 s{sB}, s{sT0}, 1
s_xor_b32 s{sB}, s{sB}, {cfg.bswap}
s_lshl_b32 s{sB}, s{sB}, 2
s_and_b32 s{sT1}, s{sJ}, 3
s_add_u32 s{sB}, s{sB}, s{sT1}
s_lshr_b32 s{sH}, s{sT0}, 1
s_lshl_b32 s{sH}, s{sH}, 3
s_lshr_b32 s{sT1}, s{sJ}, 2
s_add_u32 s{sH}, s{sH}, s{sT1}
MAPX
s_lshr_b32 s{sKg}, s{sH}, 2
s_and_b32 s{sNb}, s{sH}, 3
s_lshl_b32 s{sW4K}, s{sW}, 12'''.replace('MAPX', f's_mov_b32 s{sB}, s{sT0}\ns_mov_b32 s{sH}, s{sJ}' if cfg.mapx else 's_nop 0'))
        L = vLane; T = vT
        e(f'''v_lshrrev_b32 v{T}, 3, v{L}
s_lshl_b32 s{sT0}, s{sW}, 6
v_add_u32 v{T}, s{sT0}, v{T}
v_mul_u32_u24 v{T}, 1152, v{T}
v_lshrrev_b32 v{T+1}, 4, v{L}
v_and_b32 v{T+2}, 7, v{L}
v_xor_b32 v{T+3}, v{T+2}, v{T+1}
v_xor_b32 v{T+4}, 4, v{T+3}
v_lshl_add_u32 v{T+3}, v{T+3}, 4, v{T}
v_lshl_add_u32 v{T+4}, v{T+4}, 4, v{T}''')
        for p in range(8):
            e(f'v_add_u32 v{vOX+p}, {p*9216 - (p&3)*1024}, v{T+3+(p&1)}')
        e(f'''v_lshlrev_b32 v{T+2}, 2, v{T+1}
v_and_b32 v{T+3}, 15, v{L}
v_xor_b32 v{T+2}, v{T+2}, v{T+3}
v_lshlrev_b32 v{T+2}, 4, v{T+2}
s_lshl_b32 s{sT0}, s{sW}, 4
v_add_u32 v{T+4}, s{sT0}, v{T+1}
v_lshl_add_u32 v{T+5}, v{T+4}, 13, v{T+2}''')
        for p in range(4):
            e(f'v_add_u32 v{vOW+p}, {p*(32768-1024)}, v{T+5}')
        e(f'''v_lshrrev_b32 v{T+5}, 3, v{L}
s_lshr_b32 s{sT0}, s{sJ}, 2
s_lshl_b32 s{sT0}, s{sT0}, 5
s_lshl_b32 s{sT1}, s{sW}, 3
s_add_u32 s{sT0}, s{sT0}, s{sT1}
v_add_u32 v{T+5}, s{sT0}, v{T+5}
v_mul_u32_u24 v{T+5}, 1152, v{T+5}
v_and_b32 v{T+2}, 7, v{L}
v_lshl_add_u32 v{vCo}, v{T+2}, 4, v{T+5}
s_and_b32 s{sT0}, s{sJ}, 3
s_lshl_b32 s{sT0}, s{sT0}, 4
s_lshl_b32 s{sT1}, s{sW}, 2
s_add_u32 s{sT0}, s{sT0}, s{sT1}
v_add_u32 v{T+5}, s{sT0}, v{T+1}
v_lshlrev_b32 v{T+5}, 13, v{T+5}
v_and_b32 v{T+2}, 15, v{L}
v_lshl_add_u32 v{vCo+1}, v{T+2}, 4, v{T+5}''')
        if cfg.mapx:
            e(f'''v_lshrrev_b32 v{T+5}, 3, v{L}
s_lshl_b32 s{sT0}, s{sJ}, 3
v_add_u32 v{T+5}, s{sT0}, v{T+5}
v_mul_u32_u24 v{T+5}, 1152, v{T+5}
v_and_b32 v{T+2}, 7, v{L}
v_lshl_add_u32 v{vCo}, v{T+2}, 4, v{T+5}''')
        e('s_waitcnt lgkmcnt(0)')
        self.stamp('karg')
        if cfg.l1inv:
            e(f's_cmp_eq_u32 s{sW}, 0\ns_cbranch_scc0 L_noinv\nbuffer_inv sc1', trace=False)
            self.p('L_noinv:')
        e(f'''s_mul_i32 s{sT0}, s{sB}, 294912
s_add_u32 s{sX}, s4, s{sT0}
s_addc_u32 s{sX+1}, s5, 0
s_mov_b32 s{sX+2}, 294912
s_mov_b32 s{sX+3}, 0x20000
s_lshl_b32 s{sT0}, s{sH}, 8
s_add_u32 s{sWq}, s10, s{sT0}
s_addc_u32 s{sWq+1}, s11, 0
s_sub_u32 s{sWq+2}, 4718592, s{sT0}
s_mov_b32 s{sWq+3}, 0x20000
s_mov_b32 s{sWS}, s18
s_mov_b32 s{sWS+1}, s19
s_mov_b32 s{sWS+2}, 0x8000000
s_mov_b32 s{sWS+3}, 0x20000''')
        e(f's_lshl_b32 s{sW8K}, s{sW}, 13')
        def coop(c):
            if cfg.mapx:
                d = 44 + 4 * c
                return [f's_cmp_eq_u32 s{sW}, {c % 4}', f's_cselect_b32 s{sT1}, 0, 0x7fff0000', f'buffer_load_dwordx4 v[{d}:{d+3}], v{vCo}, s[{sX}:{sX+3}], s{sT1} offen offset:{c*128} ; @tag CO{c}']
            d = 44 + 8 * c if c < 6 else 96 + 8 * (c - 6) if c < 8 else 120
            return [f's_mov_b32 s{sT1}, {c*524288}', f'buffer_load_dwordx4 v[{d}:{d+3}], v{vCo+1}, s[{sWq}:{sWq+3}], s{sT1} offen ; @tag CO{c}',
                    f'buffer_load_dwordx4 v[{d+4}:{d+7}], v{vCo}, s[{sX}:{sX+3}], 0 offen offset:{c*128} ; @tag CO{c}']
        for c in cfg.coop_pre: e(coop(c))
        self.coop = coop
        if cfg.codepf:
            e(f'''s_getpc_b64 s[{sT2}:{sT2+1}]
L_pc:
s_and_b32 s{sT2}, s{sT2}, 0xffffff00
s_sub_u32 s{sT2}, s{sT2}, CODEOFF
s_subb_u32 s{sT3}, s{sT3}, 0
v_and_b32 v{T+5}, 15, v{L}
s_lshl_b32 s{sT0}, s{sJ}, 4
v_add_u32 v{T+5}, s{sT0}, v{T+5}
v_lshlrev_b32 v{T+5}, 7, v{T+5}
v_min_u32 v{T+5}, CODELEN, v{T+5}
global_load_dword v92, v{T+5}, s[{sT2}:{sT2+1}]''')
        self.stamp('dma0')
        e(f'''s_lshl_b32 s{sT0}, s{sB}, 5
s_add_u32 s{sT0}, s{sT0}, s{sH}
s_lshl_b32 s{sT0}, s{sT0}, 18''')
        if cfg.kv_same: e(f's_mov_b32 s{sT0}, 0')
        e(f'''s_add_u32 s{sK}, s6, s{sT0}
s_addc_u32 s{sK+1}, s7, 0
s_mov_b32 s{sK+2}, 262144
s_mov_b32 s{sK+3}, 0x20000
s_add_u32 s{sV}, s8, s{sT0}
s_addc_u32 s{sV+1}, s9, 0
s_mov_b32 s{sV+2}, 262144
s_mov_b32 s{sV+3}, 0x20000''')
        e(f'''s_mul_i32 s{sT0}, s{sKg}, {512*1152}
s_mul_i32 s{sT1}, s{sNb}, 288
s_add_u32 s{sT0}, s{sT0}, s{sT1}
s_add_u32 s{sWo}, s12, s{sT0}
s_addc_u32 s{sWo+1}, s13, 0
s_sub_u32 s{sWo+2}, 4718592, s{sT0}
s_mov_b32 s{sWo+3}, 0x20000
s_mov_b32 s{sOut}, s14
s_mov_b32 s{sOut+1}, s15
s_mov_b32 s{sOut+2}, 2359296
s_mov_b32 s{sOut+3}, 0x20000''')
        e(kv_dma_addr())
        self.stamp('cw0')
        if cfg.coop_wait is not None: e(f's_waitcnt vmcnt({self.vm_need({f"CO{cfg.coop_wait}"})})')
        self.stamp('cw1')
        for g in dma_W(0) + dma_X(0): e(g)
        for c in cfg.coop_mid: e(self.coop(c))
        self.stamp('d0')
        e(f'''v_lshrrev_b32 v{T}, 4, v{L}
v_bfe_u32 v{T+1}, v{L}, 2, 2
v_and_b32 v{T+2}, 3, v{L}
v_and_b32 v{T+3}, 15, v{L}''')
        e(f'''v_lshl_add_u32 v{T+4}, v{T}, 3, v{T+1}
v_lshlrev_b32 v{T+4}, 8, v{T+4}
v_lshl_add_u32 v{T+4}, v{T+2}, 4, v{T+4}
v_add_u32 v{T+4}, {WS[0]}, v{T+4}''')
        for ds in range(4):
            e(f'v_xor_b32 v{T+5}, {ds}, v{T+1}\nv_lshl_add_u32 v{vWA+ds}, v{T+5}, 6, v{T+4}')
        e(f'''s_lshl_b32 s{sT0}, s{sW}, 13
s_add_u32 s{sT0}, s{sT0}, {XS[0]}
v_lshlrev_b32 v{T+4}, 7, v{T+3}
v_add_u32 v{T+4}, s{sT0}, v{T+4}
v_lshrrev_b32 v{vT2}, 1, v{T+3}''')
        for n in range(2):
            e(f'''v_add_u32 v{T+5}, {4*n}, v{T}
v_xor_b32 v{T+5}, v{T+5}, v{vT2}
v_lshl_add_u32 v{vXA+n}, v{T+5}, 4, v{T+4}''')
        e(kv_read_addr())
        cbits = '0x%08x' % int.from_bytes(struct.pack('<f', math.log2(math.e) / math.sqrt(128.0)), 'little')
        e(f's_mov_b32 s{sC}, {cbits}\ns_mov_b32 s{sC+1}, {cbits}')
        e(f'v_mov_b32 v{T+5}, 0x3f803f80')
        for i in range(4): e(f'v_accvgpr_write_b32 a{aOnes+i}, v{T+5}')
        for i in range(4): e(f'v_accvgpr_write_b32 a{aZero+i}, 0')
        for i in range(4): e(f'v_mov_b32 v{vMG+i}, 0xff800000')
        e(f's_mov_b32 s{sPass}, 0\ns_mov_b32 s{sMode}, 0')
        for g in dma_W(1) + dma_X(1): e(g)
        self.stamp('d1')
        e(f'''s_lshl_b32 s{sT0}, s{sB}, 5
s_add_u32 s{sT0}, s{sT0}, s{sH}
s_lshl_b32 s{sT0}, s{sT0}, 7
s_add_u32 s{sT0}, s{sT0}, {FBASE}
v_mov_b32 v{T+2}, 0
v_and_b32 v{T+3}, 15, v{L}
v_lshlrev_b32 v{T+5}, 2, v{T+3}
v_bfe_u32 v{T+1}, v{L}, 4, 1
v_mul_u32_u24 v{T+1}, {FTWIN}, v{T+1}
v_add_u32 v{T+5}, v{T+5}, v{T+1}
v_cmp_gt_u32 vcc, 32, v{L}
v_mov_b32 v{T+4}, 0x7fffffff
s_cmp_eq_u32 s{sW}, 0
s_cselect_b64 vcc, vcc, 0
s_nop 1
v_cndmask_b32 v{T+5}, v{T+4}, v{T+5}, vcc
buffer_store_dword v{T+2}, v{T+5}, s[{sWS}:{sWS+3}], s{sT0} offen sc1 ; @tag CLR''')

    def phase1(self):
        e = self.e
        self.stamp('p1wait')
        n0 = self.vm_need({'X0', 'W0'})
        e(f's_waitcnt vmcnt({n0})\ns_barrier')
        self.stamp('p1go')
        e(p1_reads(0, 0, 0))
        def one(G, m0, extra=()):
            G = [[x] for x in G]
            G[0] = [m0] + list(extra) + (['s_nop 0'] if not extra else []) + G[0]
            return G
        K0 = one(dma_K(0, 0, '0'), f's_mov_b32 m0, s{sW4K}')
        K1 = one(dma_K(1, 1, f's{sKsoff}'), f's_add_u32 m0, s{sW4K}, 16384', [f's_mov_b32 s{sKsoff}, 16384'])
        K2 = one(dma_K(2, 2, f's{sKsoff}'), f's_add_u32 m0, s{sW4K}, {2*16384}', [f's_mov_b32 s{sKsoff}, {2*16384}'])
        V0 = one(dma_V(0, 1, f's{sVsoff}'), f's_add_u32 m0, s{sW4K}, {LDS_V+16384}', [f's_mov_b32 s{sVsoff}, 8192'])
        V1 = one(dma_V(1, 2, f's{sVsoff}'), f's_add_u32 m0, s{sW4K}, {LDS_V+2*16384}', [f's_mov_b32 s{sVsoff}, {8192+16384}'])
        Vm = [[f's_lshl_b32 s{sT2}, s{sW}, 11', f'v_subrev_u32 v{vT}, s{sT2}, v{vDV}', f'v_subrev_u32 v{vT+1}, s{sT2}, v{vDV+1}', f's_add_u32 m0, s{sT2}, {LDS_V + 8192}', 's_nop 0']]
        for p in range(2):
            a = lambda w, p=p: LDS_V + 8192 + w * 2048 + p * 1024
            ins = f'buffer_load_dwordx4 v{vT+p}, s[{sV}:{sV+3}], 0 offen offset:{p*1024}{cfg.kv_flag} lds ; @dma Vm1 {kb(a)}'
            if p == 0: Vm[0].append(ins)
            else: Vm.append([ins])
        plan = {}
        rest = [c for c in range(9) if c not in cfg.coop_pre and c not in cfg.coop_mid and c not in cfg.coop_skip]
        plan[(0, 0)] = [self.coop(c) for c in rest] + dma_W(2)
        for c in range(9):
            g1 = []
            if c + 2 <= 8: g1 += dma_X(c + 2)
            plan[(c, 1)] = g1
            if c + 3 <= 8: plan[(c + 1, 0)] = dma_W(c + 3)
        self.prefill = K0 + Vm + K1 + V0 + V1 + K2
        plan[(6, 1)] = plan[(6, 1)] + K0 + Vm
        plan[(7, 1)] = K1
        plan[(8, 0)] = V0
        plan[(8, 1)] = V1
        self.late_kv = K2
        for c in range(9):
            for n in range(2):
                e(p1_kstep(self, c, n, plan.get((c, n), []), last=(c == 8)))
            if c == 3:
                e(f'''s_lshl_b32 s{sT0}, s{sB}, 5
v_mov_b32 v{vT+4}, s{sT0}
v_mov_b32 v{vT+5}, 1
s_cmp_eq_u32 s{sW}, 0
s_cbranch_scc0 L_noreg
s_mov_b64 exec, 1
global_atomic_add v{vT+4}, v{vT+5}, s[16:17] sc1
s_mov_b64 exec, -1''', trace=False)
                self.p('L_noreg:')
            if c == 5: self.stamp('p1c6')
            self.stamp(f'c{c}')
        self.stamp('p1end')
        e('s_nop 3')
        for ds in range(4):
            for qt in range(4):
                for x in range(2):
                    b = O(2 * ds + x, qt)
                    e(f'v_pk_mul_f32 v[{b}:{b+1}], v[{b}:{b+1}], s[{sC}:{sC+1}]\nv_pk_mul_f32 v[{b+2}:{b+3}], v[{b+2}:{b+3}], s[{sC}:{sC+1}]')
                t = vS + ((ds * 4 + qt) & 1) * 4
                for x in range(2):
                    b = O(2 * ds + x, qt)
                    e(f'v_cvt_pk_bf16_f32 v{t+2*x}, v{b}, v{b+1}\nv_cvt_pk_bf16_f32 v{t+2*x+1}, v{b+2}, v{b+3}')
                for i in range(4): e(f'v_accvgpr_write_b32 a{Qf(qt, ds)+i}, v{t+i}')
                if ds * 4 + qt >= 8 and self.late_kv: e(self.late_kv.pop(0))

        assert not self.late_kv
    QK = [0, 17, 34, 42]
    PV = [50, 59, 8, 25]
    LS = [58, 67, 16, 33]
    EX = [11, 29, 45, 63]
    VG = [26, 27, 27, 28, 28, 30, 30, 32, 34, 34, 36, 38, 38, 40, 42, 42]
    KG = [44, 46, 46, 50, 50, 52, 54, 54]
    def step(self, k, par, kind='full', extra=None):
        NS = 68
        Sl = Slots(NS)
        it = k // 2; ktile = it + 1; vtile = it
        last = kind == 'last'
        for qt in range(4):
            if not last:
                for m in range(8):
                    ds, kt = m >> 1, m & 1
                    Sl.mf[self.QK[qt] + m] = mfma(vr(S(qt, kt), 4), ar(Kf(m), 4), ar(Qf(qt, ds), 4), vr(CI(qt) if ds == 0 else S(qt, kt), 4))
            if not last or qt >= 2:
                for dt in range(8):
                    Sl.mf[self.PV[qt] + dt] = mfma(vr(O(dt, qt), 4), ar(Vf(dt), 4), vr(P(qt), 4), vr(O(dt, qt), 4))
                Sl.mf[self.LS[qt]] = mfma(vr(LA(qt), 4), ar(aOnes, 4), vr(P(qt), 4), vr(LA(qt), 4))
        mem = [[] for _ in range(NS)]; alu = [[] for _ in range(NS)]
        def put(g, ins):
            g %= NS
            mn = ins.split()[0]
            (mem if mn.startswith('ds_') or mn.startswith('buffer_') or mn.startswith('global_') else alu)[g].append(ins)
        for qt in range(4):
            for i in range(8):
                g = self.EX[qt] + 2 * i
                if last and g < NS: continue
                r = S(qt, i >> 2) + (i & 3)
                put(g, f'v_exp_f32 v{r}, v{r}')
            for n in range(4):
                g = self.EX[qt] + 4 * n + 3
                if last and g < NS: continue
                r = S(qt, n >> 1) + 2 * (n & 1)
                if last and Sl.mf[g % NS] is None: put(g, 's_nop 0')
                put(g, f'v_cvt_pk_bf16_f32 v{P(qt)+n}, v{r}, v{r+1}')
        if last: Sl.pre[8].append('s_nop 1')
        if not last:
            for n in range(16):
                dt, u = n >> 1, n & 1
                put(self.VG[n], f'ds_read_b64_tr_b16 a[{Vf(dt)+2*u}:{Vf(dt)+2*u+1}], v{vVA+dt} offset:{par*8192+u*4096}')
            if kind == 'full':
                for m in range(8):
                    ds, kt = m >> 1, m & 1
                    put(self.KG[m], f'ds_read_b128 a[{Kf(m)}:{Kf(m)+3}], v{vKA+ds} offset:{par*8192+kt*4096}')
            nk = sum(1 for g in self.KG if g <= 48) if kind == 'full' else 0
            Sl.pre[49].append(f's_waitcnt lgkmcnt({nk})')
            if kind == 'full': Sl.pre[67].append('s_waitcnt lgkmcnt(0)')
            if par == 0:
                Sl.pre[1] += ['s_waitcnt vmcnt(VMW)', 's_barrier']
                for dt in range(8): put([2, 4, 4, 6, 8, 8, 10, 14][dt], f'v_xor_b32 v{vVA+dt}, s{sXor}, v{vVA+dt}')
                for ds in range(4): put([18, 20, 20, 22][ds], f'v_xor_b32 v{vKA+ds}, s{sXor}, v{vKA+ds}')
        if extra:
            for g, L in extra.items():
                mem[g % NS] += L
        ab = cfg.ablate
        if ab and kind == 'full':
            if 'exp' in ab: alu = [[x for x in a if not x.startswith('v_exp')] for a in alu]
            if 'cvt' in ab: alu = [[x for x in a if not x.startswith('v_cvt')] for a in alu]
            if 'vrd' in ab: mem = [[x for x in a if not x.startswith('ds_read_b64')] for a in mem]
            if 'krd' in ab: mem = [[x for x in a if not x.startswith('ds_read_b128')] for a in mem]
            if 'dma' in ab: mem = [[x for x in a if not x.startswith('buffer_load')] for a in mem]
            if 'lsum' in ab:
                for qt in range(4): Sl.mf[self.LS[qt]] = None
        for g in range(NS): Sl.post[g] = mem[g] + alu[g]
        if cfg.pad and not last:
            for g in range(3, NS, max(1, NS // cfg.pad)): Sl.post[g].append('s_nop 3')
        self.last_load = Sl.load()
        return Sl.out()

    def kv_extra(self, it, par, doK=True, doV=True):
        slot = (it + 3) & 3
        X = {}
        if par == 0:
            if doK:
                D = dma_K(it + 3, slot, f's{sKsoff}')
                X[12] = [f's_mov_b32 m0, s{sDma}']
                for g, d in zip((16, 24, 58, 64), D): X.setdefault(g, []).append(d)
                X.setdefault(64, []).append(f's_add_u32 s{sKsoff}, s{sKsoff}, 16384')
        else:
            if doV:
                D = dma_V(it + 2, slot, f's{sVsoff}')
                X[0] = [f's_add_u32 s{sT0}, s{sDma}, {LDS_V}']
                X[4] = [f's_mov_b32 m0, s{sT0}']
                for g, d in zip((8, 20, 58, 64), D): X.setdefault(g, []).append(d)
                X.setdefault(64, []).append(f's_add_u32 s{sVsoff}, s{sVsoff}, 16384')
            X.setdefault(61, []).append(f's_xor_b32 s{sXor}, s{sXor}, 0x8000')
            X.setdefault(62, []).append(f's_xor_b32 s{sDma}, s{sDma}, s{sXor}')
        return X

    def phase2(self):
        e = self.e
        self.p('L_p2start:')
        e(f's_waitcnt vmcnt({self.vm_need({"K0", "Vm1"}) if not cfg.ablate else 0})\ns_barrier')
        for m in range(8):
            ds, kt = m >> 1, m & 1
            e(f'ds_read_b128 a[{Kf(m)}:{Kf(m)+3}], v{vKA+ds} offset:{kt*4096} ; @rd K0')
        z = [f'v_mov_b32 v{O(dt, qt)+r}, 0' for qt in (2, 3) for dt in range(8) for r in range(4)] + [f'v_mov_b32 v{vL+i}, 0' for i in range(16)]
        e('s_waitcnt lgkmcnt(0)')
        zi = 0
        for qt in range(4):
            for m in range(8):
                ds, kt = m >> 1, m & 1
                e(mfma(vr(S(qt, kt), 4), ar(Kf(m), 4), ar(Qf(qt, ds), 4), '0' if ds == 0 else vr(S(qt, kt), 4)))
                e(z[zi:zi+2]); zi += 2
                if qt == 3: e(f'ds_read_b128 a[{Kf(m)}:{Kf(m)+3}], v{vKA+ds} offset:{8192+kt*4096} ; @rd K0')
        e(z[zi:])
        for n in range(16):
            dt, u = n >> 1, n & 1
            e(f'ds_read_b64_tr_b16 a[{Vf(dt)+2*u}:{Vf(dt)+2*u+1}], v{vVA+dt} offset:{8192+u*4096}')
        for qt in range(4):
            a, b = S(qt, 0), S(qt, 1); m = vT + qt
            e(f'v_max3_f32 v{m}, v{a}, v{a+1}, v{vMG+qt}\nv_max3_f32 v{m}, v{m}, v{a+2}, v{a+3}\nv_max3_f32 v{m}, v{m}, v{b}, v{b+1}\nv_max3_f32 v{m}, v{m}, v{b+2}, v{b+3}')
        for sw in ('v_permlane32_swap_b32', 'v_permlane16_swap_b32'):
            for qt in range(4): e(f'v_mov_b32 v{vC+qt}, v{vT+qt}')
            e('s_nop 0')
            for qt in range(4): e(f'{sw} v{vT+qt}, v{vC+qt}')
            for qt in range(4): e(f'v_max_f32 v{vT+qt}, v{vT+qt}, v{vC+qt}')
        for qt in range(4):
            for r in range(4): e(f'v_sub_f32 v{CI(qt)+r}, 0, v{vT+qt}')
        for qt in range(4):
            for i in range(8): e(f'v_add_f32 v{S(qt,0)+i}, v{S(qt,0)+i}, v{CI(qt)}')
        for qt in range(3):
            for i in range(8): e(f'v_exp_f32 v{S(qt,0)+i}, v{S(qt,0)+i}')
        for i in range(3): e(f'v_exp_f32 v{S(3,0)+i}, v{S(3,0)+i}')
        for qt in range(3):
            for n in range(4):
                r = S(qt, n >> 1) + 2 * (n & 1)
                e(f'v_cvt_pk_bf16_f32 v{P(qt)+n}, v{r}, v{r+1}')
        e(f'v_cvt_pk_bf16_f32 v{P(3)}, v{S(3,0)}, v{S(3,0)+1}')
        e('s_waitcnt lgkmcnt(0)')
        for qt in range(2):
            for dt in range(8):
                e(mfma(vr(O(dt, qt), 4), ar(Vf(dt), 4), vr(P(qt), 4), '0'))
            e(mfma(vr(LA(qt), 4), ar(aOnes, 4), vr(P(qt), 4), vr(LA(qt), 4)))
        e(f'''s_mov_b32 s{sXor}, 0x4000
s_add_u32 s{sDma}, s{sW4K}, {3*16384}
s_mov_b32 s{sKsoff}, {3*16384}
s_mov_b32 s{sVsoff}, {8192+2*16384}
s_mov_b32 s{sIter}, 0''')
        self.stamp('p2loop')
        self.p('.p2align 3\nL_p2:')
        texts = []
        NL = 12
        for it in range(NL):
            L = self.step(2 * it, 0, 'full', self.kv_extra(it, 0)); l0 = self.last_load
            L += self.step(2 * it + 1, 1, 'full', self.kv_extra(it, 1)); l1 = self.last_load
            L = [x.replace('VMW', '8') for x in L]
            L += [f's_add_u32 s{sIter}, s{sIter}, 1', f's_cmp_lt_u32 s{sIter}, {NL}', 's_cbranch_scc1 L_p2']
            texts.append([x.split(';')[0].strip() for x in L])
            if it == 0:
                self.p(L); self.loop_body = L
                print('gap load step0:', l0); print('gap load step1:', l1)
            self.tr.extend(L)
        assert all(t == texts[0] for t in texts)
        self.stamp('p2peel')
        from g2p3 import peeled_tail
        peeled_tail(self)

    def fallback(self):
        e = lambda x: self.e(x, trace=False)
        self.p('L_fallback:')
        e('s_waitcnt vmcnt(0) lgkmcnt(0)\ns_barrier')
        e(kv_dma_addr()); e(kv_read_addr())
        for i in range(4): e(f'v_mov_b32 v{vMG+i}, 0xff800000')
        e(f's_mov_b32 s{sKsoff}, 0')
        self.p('L_fb_loop:')
        e(f's_mov_b32 m0, s{sW4K}\ns_nop 0')
        e([x.split(';')[0] for x in dma_K(0, 0, f's{sKsoff}')])
        e('s_waitcnt vmcnt(0)\ns_barrier')
        for half in range(2):
            for m in range(8):
                ds, kt = m >> 1, m & 1
                e(f'ds_read_b128 a[{Kf(m)}:{Kf(m)+3}], v{vKA+ds} offset:{half*8192+kt*4096}')
            e('s_waitcnt lgkmcnt(0)')
            for qt in range(4):
                for m in range(8):
                    ds, kt = m >> 1, m & 1
                    e(mfma(vr(S(qt, kt), 4), ar(Kf(m), 4), ar(Qf(qt, ds), 4), '0' if ds == 0 else vr(S(qt, kt), 4)))
            e('s_nop 7')
            for qt in range(4):
                a, b = S(qt, 0), S(qt, 1); m = vMG + qt
                e(f'v_max3_f32 v{m}, v{m}, v{a}, v{a+1}\nv_max3_f32 v{m}, v{m}, v{a+2}, v{a+3}\nv_max3_f32 v{m}, v{m}, v{b}, v{b+1}\nv_max3_f32 v{m}, v{m}, v{b+2}, v{b+3}')
        e(f's_barrier\ns_add_u32 s{sKsoff}, s{sKsoff}, 16384\ns_cmp_lt_u32 s{sKsoff}, 262144\ns_cbranch_scc1 L_fb_loop')
        for g in self.prefill: e([x.split(';')[0] for x in g])
        e(f's_mov_b32 s{sMode}, 1\ns_branch L_p2start')

    def finish_stamps(self):
        if not cfg.stamps: return
        e = self.e
        if cfg.dbgstamps:
            e(f's_waitcnt lgkmcnt(0)\ns_cmp_eq_u32 s2, {cfg.dbgstamps-1}\ns_cbranch_scc0 L_nodbg\ns_cmp_eq_u32 s{sW}, 0\ns_cbranch_scc0 L_nodbg', trace=False)
            for i in range(1, self.nstamp):
                e(f's_sub_u32 s{sT0}, s{stamp_reg(i)}, s{stamp_reg(0)}\nv_mov_b32 v{vT+2}, s{sT0}\nv_mov_b32 v{vT}, {4*i}\nglobal_store_dword v{vT}, v{vT+2}, s[16:17]', trace=False)
            self.p('L_nodbg:')
            return
        e(f'''s_waitcnt lgkmcnt(0)
s_lshl_b32 s{sT0}, s2, 2
s_add_u32 s{sT0}, s{sT0}, s{sW}
s_lshl_b32 s{sT0}, s{sT0}, 8
s_add_u32 s{sT0}, s{sT0}, {STAMPBASE}
s_add_u32 s18, s18, s{sT0}
s_addc_u32 s19, s19, 0
v_mov_b32 v{vT}, 0''')
        for i in range(self.nstamp):
            for j in range(4): e(f'v_mov_b32 v{vT+2+j}, s{stamp_reg(i)+j}')
            e(f'global_store_dwordx4 v{vT}, v[{vT+2}:{vT+5}], s[18:19] offset:{16*i}\ns_nop 1')

def build():
    k = Kernel()
    k.header(); k.setup(); k.phase1(); k.phase2()
    from g2p3 import phase3
    phase3(k)
    k.stamp('end')
    k.finish_stamps()
    k.e('s_endpgm', trace=False)
    k.fallback()
    k.footer()
    return k

def main():
    import argparse
    ap = argparse.ArgumentParser()
    ap.add_argument('-o', default=f'cdna_kernels/{NAME}.s')
    ap.add_argument('--stamps', default='')
    ap.add_argument('--set', action='append', default=[])
    a = ap.parse_args()
    cfg.stamps = a.stamps.split(',') if a.stamps else False
    for kv in a.set:
        kk, vv = kv.split('=', 1)
        try: vv = eval(vv)
        except Exception: pass
        setattr(cfg, kk, vv)
    k = build()
    errs = simulate(k.tr, 'trace')
    errs += check_hazards(k.tr, 'haz')
    txt = k.p.text()
    txt = txt.replace('CODEOFF', f'((L_pc - {NAME}_kernel) & 0xffffff00)').replace('CODELEN', f'(L_codeend - {NAME}_kernel - 128)')
    open(a.o, 'w').write(txt)
    print('written', a.o, 'errors:', len(errs), 'trace len', len(k.tr))
```

```python
from asmlib import *
import g2 as G
from g2 import cfg, mfma, kb, Slots

REG = [13, 14, 0, 1, 2, 7, 3, 4, 8, 9, 5, 6, 10, 11, 12, 15]
def rbase(j):
    if j < 7: return j * 9216
    if j < 15: return 81920 + (j - 7) * 9216
    return 65536
sWoB = 60
sWoS = 84
sPh = 96
sOst = 99; sPst = 100; sFl = 101; sCnt = 59
vWoD = G.vWoD
vR = 8
vAd = 12
vOwn = 32
vD = 112
aPart = 0
aA = 192
def D(nt, qt): return vD + (nt * 4 + qt) * 4
def Own(qt, ks): return vOwn + (qt * 4 + ks) * 4
def Part(hp, qt, ks): return aPart + hp * 64 + (qt * 4 + ks) * 4

def wo_setup(k):
    e = k.e; T = G.vT; L = G.vLane
    out = []
    for p in range(9):
        out += [f'v_add_u32 v{T}, {64*p}, v{L}', f'v_mul_u32_u24 v{T+1}, 3641, v{T}', f'v_lshrrev_b32 v{T+1}, 16, v{T+1}',
                f'v_mul_u32_u24 v{T+2}, 18, v{T+1}', f'v_sub_u32 v{T+2}, v{T}, v{T+2}', f'v_mul_u32_u24 v{T+1}, 1152, v{T+1}',
                f'v_lshl_add_u32 v{vWoD+p}, v{T+2}, 4, v{T+1}']
        if p % 4: out.append(f'v_subrev_u32 v{vWoD+p}, {(p%4)*1024}, v{vWoD+p}')
    for grp in range(4):
        t = [rbase(REG[4 * grp + w]) for w in range(4)]
        out += [f's_mov_b32 s{sWoB+grp}, {t[0]}']
        for w in range(1, 4):
            out += [[f's_cmp_eq_u32 s{G.sW}, {w}', f's_cselect_b32 s{sWoB+grp}, {t[w]}, s{sWoB+grp}']]
        out += [f's_add_u32 s{G.sT0}, s{G.sNb}, {grp}', f's_and_b32 s{G.sT0}, s{G.sT0}, 3', f's_lshl_b32 s{G.sT0}, s{G.sT0}, 2',
                f's_add_u32 s{G.sT0}, s{G.sT0}, s{G.sW}', f's_mul_i32 s{sWoS+grp}, s{G.sT0}, {32*1152}']
    return out

def wo_dma(grp, vbase=None):
    L = []
    for p in range(9):
        g = []
        if p % 4 == 0:
            g += [f's_add_u32 s{G.sT0}, s{sWoB+grp}, {p*1024}', f's_mov_b32 m0, s{G.sT0}', 's_nop 0']
        a = lambda w, p=p: rbase(REG[4 * grp + w]) + p * 1024
        g.append(f'buffer_load_dwordx4 v{(vbase or vWoD)+p}, s[{G.sWo}:{G.sWo+3}], s{sWoS+grp} offen offset:{(p%4)*1024}{cfg.wo_flag} lds')
        L.append(g)
    return L

def spread(groups, gaps):
    X = {}
    for g, pos in zip(groups, gaps): X.setdefault(pos, []).extend(g)
    return X
def merge(a, b):
    for g, L in b.items(): a.setdefault(g, []).extend(L)
    return a

def peeled_tail(k):
    e = k.e
    gapsA = [12, 20, 24, 46, 62]; gapsB = [4, 20, 46, 62]
    def emit(step_lines, tags):
        n = k.vm_need(tags)
        e([x.replace('VMW', str(n)) for x in step_lines])
    su = wo_setup(k)
    reg = [f's_lshl_b32 s{G.sT0}, s{G.sB}, 5', f'v_mov_b32 v{G.vT2}, s{G.sT0}', f'global_load_dword v{G.vT2}, v{G.vT2}, s[16:17] sc1']
    X0 = {}
    h = len(su) // 2
    def sprinkle(L, gaps):
        X = {}; n = len(L); per = -(-n // len(gaps))
        for i, x in enumerate(L):
            if isinstance(x, list): X.setdefault(gaps[i // per], []).extend(x)
            else: X.setdefault(gaps[i // per], []).append(x)
        return X
    free = [12, 16, 24, 56, 58, 60, 61, 62, 64]
    emit(k.step(24, 0, 'full', merge(k.kv_extra(12, 0), sprinkle(su[:h], free))), {'V12', 'K13'})
    X = k.kv_extra(12, 1, doV=True)
    emit(k.step(25, 1, 'full', merge(X, sprinkle(su[h:] + reg, [12, 16, 24, 56, 60]))), set())
    for it, grp in ((13, 0), (14, 1)):
        W = wo_dma(grp)
        emit(k.step(2 * it, 0, 'full', spread(W[:4], [12, 24, 58, 64])), {f'V{it}', f'K{it+1}'})
        if it == 13:
            X = k.kv_extra(13, 1)
            X = {g: L for g, L in X.items()}
            D = G.dma_V(15, (13 + 3) & 3, f's{G.sVsoff}')
            X = {0: [f's_add_u32 m0, s{G.sDma}, {G.LDS_V}'], 2: [D[0]], 4: [D[1]], 6: [D[2]], 8: [D[3]], 61: [f's_xor_b32 s{G.sXor}, s{G.sXor}, 0x8000']}
            X = merge(X, spread(W[4:], [12, 16, 20, 58, 64]))
        else:
            X = spread(W[4:], [4, 12, 20, 58, 64])
            X.setdefault(61, []).append(f's_xor_b32 s{G.sXor}, s{G.sXor}, 0x8000')
        emit(k.step(2 * it + 1, 1, 'full', X), set())
    W = wo_dma(2)
    emit(k.step(30, 0, 'nok', spread(W, [12, 16, 24, 44, 48, 52, 56, 60, 64])), {'V15', 'WO0', 'WO1'})
    L31 = k.step(31, 1, 'last')
    W3 = wo_dma(3)
    pos = [i for i, x in enumerate(L31) if x.startswith('v_mfma')]
    cut = pos[0]
    e(L31[:cut])
    e(f's_cmp_eq_u32 s{G.sW}, 3\ns_cbranch_scc1 L_now3', trace=False)
    for g in W3: e([x.split(';')[0] for x in g], trace=False)
    k.p('L_now3:')
    e(L31[cut:])
    k.stamp('p2end')

def poll_dual(k, name, vaddr, soff_reg, nbits):
    e = k.e; T = G.vT
    full = (1 << (1 << nbits)) - 1
    e(f's_mov_b32 s{sCnt}, 0\ns_mov_b32 s{G.sT2}, 0\ns_add_u32 s{G.sT3 if False else 88}, s{soff_reg}, {G.FTWIN}', trace=False)
    k.p(f'L_poll_{name}:')
    e(f'''s_and_b32 s{G.sT1}, s{sCnt}, 7
s_cmp_eq_u32 s{G.sT1}, 7
s_cselect_b32 s89, s{soff_reg}, s88
s_add_u32 s{sCnt}, s{sCnt}, 1
buffer_load_dword v{T+1}, v{vaddr}, s[{G.sWS}:{G.sWS+3}], s89 offen sc1
s_waitcnt vmcnt(0)
v_cmp_eq_u32 vcc, 1, v{T+1}
s_nop 1
s_or_b32 s{G.sT2}, s{G.sT2}, vcc_lo
s_and_b32 s{G.sT1}, s{G.sT2}, {full}
s_cmp_eq_u32 s{G.sT1}, {full}
s_cbranch_scc1 L_pollx_{name}
s_cmp_ge_u32 s{sCnt}, 0x8000
s_cbranch_scc0 L_poll_{name}''', trace=False)
    k.p(f'L_pollx_{name}:')
    k.tr.append('s_waitcnt vmcnt(0)')

def poll(k, name, vaddr, soff_reg):
    e = k.e
    e(f's_mov_b32 s{sCnt}, 0', trace=False)
    k.p(f'L_poll_{name}:')
    e(f'''buffer_load_dword v{G.vT+1}, v{vaddr}, s[{G.sWS}:{G.sWS+3}], s{soff_reg} offen sc1
s_add_u32 s{sCnt}, s{sCnt}, 1
s_waitcnt vmcnt(0)
v_cmp_ne_u32 vcc, 1, v{G.vT+1}
s_cmp_ge_u32 s{sCnt}, 0x4000
s_cbranch_scc1 L_pollx_{name}
s_cbranch_vccz L_pollx_{name}
s_sleep 1
s_branch L_poll_{name}''', trace=False)
    k.p(f'L_pollx_{name}:')
    k.tr.append('s_waitcnt vmcnt(0)')

def set_flag(k, off_vreg, dual=False):
    o = ['s_mov_b64 exec, 1']
    if dual: o.append(f'buffer_store_dword v{vOne}, v{off_vreg}, s[{G.sWS}:{G.sWS+3}], s91 offen')
    o += [f'buffer_store_dword v{vOne}, v{off_vreg}, s[{G.sWS}:{G.sWS+3}], s{sFl} offen sc1', 's_mov_b64 exec, -1']
    return o

vOne = 20; vF1 = 21; vF2a = 24; vF2b = 25
vPk = [32, 68]

def phase3(k):
    e = k.e; T = G.vT; L = G.vLane
    e('s_nop 4')
    rp = [T, T + 2, T + 4, 122]
    sBad = 88
    for qt in range(4): e(f'v_rcp_f32 v{rp[qt]}, v{G.LA(qt)}')
    e(f's_mov_b32 s{G.sT0}, 0x6f800000')
    for qt in range(4):
        e(f'v_cmp_nlt_f32 vcc, v{G.LA(qt)}, v{G.LA(qt)}') if False else None
    e(f'v_mov_b32 v{G.vT2+1}, s{G.sT0}')
    e(f's_mov_b64 s[{sBad}:{sBad+1}], 0')
    for qt in range(4):
        e(f'v_cmp_nlt_f32 vcc, v{G.LA(qt)}, v{G.vT2+1}\ns_nop 0\ns_or_b64 s[{sBad}:{sBad+1}], s[{sBad}:{sBad+1}], vcc')
    e(f'''v_lshlrev_b32 v{vAd}, 4, v{L}
s_lshl_b32 s{sFl}, s{G.sB}, 5
s_add_u32 s{sFl}, s{sFl}, s{G.sH}
s_lshl_b32 s{sOst}, s{sFl}, 2
s_add_u32 s{sOst}, s{sOst}, s{G.sW}
s_lshl_b32 s{sOst}, s{sOst}, 14
s_lshl_b32 s{sFl}, s{sFl}, 7
s_add_u32 s{sFl}, s{sFl}, {G.FBASE}
s_add_u32 s91, s{sFl}, {G.FTWIN}''')
    for qt in range(4): e(f'v_mov_b32 v{rp[qt]+1}, v{rp[qt]}')
    for p in range(9): e(f'v_mov_b32 v{96+p}, v{vWoD+p}')
    for i in range(1, 4): e(f'v_add_u32 v{vAd+i}, {4096*i}, v{vAd}')
    vPr = 108
    prev = None; nprobe = 0
    for ks in range(4):
        for qt in range(4):
            for x in range(2):
                b = G.O(2 * ks + x, qt); r = rp[qt]
                e(f'v_pk_mul_f32 v[{b}:{b+1}], v[{b}:{b+1}], v[{r}:{r+1}]\nv_pk_mul_f32 v[{b+2}:{b+3}], v[{b+2}:{b+3}], v[{r}:{r+1}]')
            if prev is not None:
                e(mfma(vr(vPr, 4), ar(G.aZero, 4), vr(prev, 4), '0' if nprobe == 0 else vr(vPr, 4))); nprobe += 1
            for x in range(2):
                b = G.O(2 * ks + x, qt); d = Own(qt, ks) + 2 * x
                e(f'v_cvt_pk_bf16_f32 v{d}, v{b}, v{b+1}\nv_cvt_pk_bf16_f32 v{d+1}, v{b+2}, v{b+3}')
            if ks == 0 or cfg.early_ost:
                e(f'buffer_store_dwordx4 v[{Own(qt,ks)}:{Own(qt,ks)+3}], v{vAd+qt}, s[{G.sWS}:{G.sWS+3}], s{sOst} offen offset:{ks*1024} sc1')
            prev = Own(qt, ks)
    e('s_nop 1')
    e(mfma(vr(vPr, 4), ar(G.aZero, 4), vr(prev, 4), vr(vPr, 4)))
    ost = [f'buffer_store_dwordx4 v[{Own(qt,ks)}:{Own(qt,ks)+3}], v{vAd+qt}, s[{G.sWS}:{G.sWS+3}], s{sOst} offen offset:{ks*1024} sc1' for ks in range(1, 4) for qt in range(4)]
    if cfg.early_ost: ost = []
    e(f'''s_lshl_b32 s{G.sT0}, s{G.sW}, 2
s_add_u32 s{G.sT0}, s{G.sT0}, 64512
v_mov_b32 v{T}, s{G.sT0}
v_mov_b32 v{vOne}, 1
s_nop 3
v_cmp_u_f32 vcc, v{vPr}, v{vPr}
s_nop 0
s_or_b64 s[{sBad}:{sBad+1}], s[{sBad}:{sBad+1}], vcc
s_cmp_lg_u64 s[{sBad}:{sBad+1}], 0
s_cselect_b32 s{G.sT0}, 1, 0
v_mov_b32 v{T+1}, s{G.sT0}
ds_write_b32 v{T}, v{T+1}
v_mov_b32 v{T+2}, 64512''')
    n = k.vm_need({'WO2', 'REG'})
    e(f's_cmp_eq_u32 s{G.sW}, 3\ns_cbranch_scc1 L_vw3\ns_waitcnt vmcnt({n+9}) lgkmcnt(0)\ns_branch L_vw4', trace=False)
    k.p('L_vw3:')
    e(f's_waitcnt vmcnt({n}) lgkmcnt(0)')
    k.p('L_vw4:')
    e('s_barrier')
    e(f'ds_read_b128 v[124:127], v{T+2}')
    e(f'v_readfirstlane_b32 s90, v{G.vT2}')
    k.stamp('p3pk')
    e(f'''v_lshrrev_b32 v30, 4, v{L}
v_bfe_u32 v31, v{L}, 2, 2
v_lshl_add_u32 v30, v30, 2, v31
v_mul_u32_u24 v30, 288, v30
v_and_b32 v31, 3, v{L}
v_lshl_add_u32 v{vR}, v31, 3, v30
v_add_u32 v{vR+1}, 61440, v{vR}
v_add_u32 v{vR+2}, 122880, v{vR}
v_mov_b32 v{vOne}, 1
s_lshl_b32 s{G.sT0}, s{G.sW}, 2
v_mov_b32 v{vF1}, s{G.sT0}
s_lshl_b32 s{G.sT0}, s{G.sW}, 3
s_add_u32 s{G.sT0}, s{G.sT0}, 16
v_mov_b32 v{vF2a}, s{G.sT0}
s_add_u32 s{G.sT0}, s{G.sT0}, 4
v_mov_b32 v{vF2b}, s{G.sT0}''')
    e(f'''s_waitcnt lgkmcnt(0)
v_or_b32 v124, v124, v125
v_or3_b32 v124, v124, v126, v127
s_nop 0
v_readfirstlane_b32 s{G.sT0}, v124
s_andn2_b32 s{G.sT0}, s{G.sT0}, s{G.sMode}
s_cmp_lg_u32 s{G.sT0}, 0
s_cbranch_scc1 L_fallback''')
    def a_read(c, nt, slot):
        base = rbase(REG[c]); idx = base // 61440
        return [f'ds_read_b64_tr_b16 a[{aA+4*slot+2*u}:{aA+4*slot+2*u+1}], v{vR+idx} offset:{base-61440*idx+u*4608+nt*32}' for u in range(2)]
    seq = [(c, nt, (0, 1, 2, 3)) for c in range(4) for nt in range(9)]
    seq += [(c, nt, (0, 1)) for c in range(4, 16) for nt in range(9)]
    seq += [(c, nt, (2, 3)) for c in range(4, 16) for nt in range(9)]
    AH_OWN, AH = 6, 8
    for i in range(AH_OWN): e(a_read(seq[i][0], seq[i][1], i % 16))
    for hp in range(3):
        e(f'''s_add_u32 s{G.sT0}, s{G.sNb}, {hp+1}
s_and_b32 s{G.sT0}, s{G.sT0}, 3
s_lshl_b32 s{G.sT1}, s{G.sKg}, 2
s_add_u32 s{G.sT0}, s{G.sT0}, s{G.sT1}
s_lshl_b32 s{G.sT1}, s{G.sB}, 5
s_add_u32 s{G.sT0}, s{G.sT0}, s{G.sT1}
s_lshl_b32 s{G.sT0}, s{G.sT0}, 2
s_add_u32 s{G.sT0}, s{G.sT0}, s{G.sW}
s_lshl_b32 s{sPh+hp}, s{G.sT0}, 14''')
    k.stamp('p3go')
    def part_load(hp, qt, ks):
        return f'buffer_load_dwordx4 a[{Part(hp,qt,ks)}:{Part(hp,qt,ks)+3}], v{vAd+qt}, s[{G.sWS}:{G.sWS+3}], s{sPh+hp} offen offset:{ks*1024}'
    loads = [[part_load(hp, qt, ks) for ks in range(4) for qt in (2 * half, 2 * half + 1)] for half in range(2) for hp in range(3)]
    paddr = f'''s_lshl_b32 s{G.sT0}, s{G.sB}, 2
s_add_u32 s{G.sT0}, s{G.sT0}, s{G.sNb}
s_lshl_b32 s{G.sT0}, s{G.sT0}, 3
s_lshl_b32 s{G.sT1}, s{G.sW}, 1
s_add_u32 s{G.sT1}, s{G.sT0}, s{G.sT1}
s_lshl_b32 s{G.sT1}, s{G.sT1}, 3
s_add_u32 s{G.sT1}, s{G.sT1}, s{G.sKg}
s_mul_i32 s{sPst}, s{G.sT1}, 9216
s_add_u32 s{sPst}, s{sPst}, {G.PBASE}
s_add_u32 s{sOst}, s{sPst}, {8*9216}
s_add_u32 s{G.sT0}, s{G.sT0}, s{G.sKg}
s_mul_i32 s{G.sT3}, s{G.sT0}, {8*9216}
s_add_u32 s{G.sT3}, s{G.sT3}, {G.PBASE}'''
    def pack_store(half, nt):
        d = vPk[half] + 4 * nt
        Lx = []
        for x in range(2):
            b = D(nt, 2 * half + x)
            Lx += [f'v_cvt_pk_bf16_f32 v{d+2*x}, v{b}, v{b+1}', f'v_cvt_pk_bf16_f32 v{d+2*x+1}, v{b+2}, v{b+3}']
        st = f'buffer_store_dwordx4 v[{d}:{d+3}], v{vAd+nt//4}, s[{G.sWS}:{G.sWS+3}], s{sPst if half == 0 else sOst} offen offset:{(nt%4)*1024} sc1'
        return Lx, st
    issued = AH_OWN
    SPL, POL = cfg.own_split
    seg_bounds = [(0, 9 * SPL), (9 * SPL, 9 * POL), (9 * POL, 36), (36, 144), (144, 252)]
    extra = {}
    def place(i0, items, every):
        for n_, it_ in enumerate(items):
            extra.setdefault(i0 + n_ * every, []).append(it_ if isinstance(it_, list) else [it_])
    if ost: place(1, ost, max(1, (9 * SPL - 2) // len(ost)))
    place(36 + 1, loads[1], 2)
    place(36 + 18, loads[2], 3)
    place(36 + 45, loads[4], 3)
    place(36 + 72, loads[5], 3)
    for seg, (lo, hi) in enumerate(seg_bounds):
        if seg == 1:
            nn = k.vm_need({'OST'})
            e(f's_waitcnt vmcnt({nn})'); e(set_flag(k, vF1, dual=cfg.dualflag))
            k.stamp('p3d1')
            e(paddr)
        if seg == 2:
            e(f's_mov_b32 s{G.sT2}, s90')
            k.p('L_regchk:')
            e(f's_cmp_ge_u32 s{G.sT2}, 32\ns_cbranch_scc1 L_regok')
            e(f'''s_add_u32 s{G.sPass}, s{G.sPass}, 1
s_cmp_ge_u32 s{G.sPass}, 0x4000
s_cbranch_scc1 L_regok
s_lshl_b32 s{G.sT0}, s{G.sB}, 5
v_mov_b32 v{G.vT2}, s{G.sT0}
s_sleep 1
global_load_dword v{G.vT2}, v{G.vT2}, s[16:17] sc1
s_waitcnt vmcnt(0)
v_readfirstlane_b32 s{G.sT2}, v{G.vT2}
s_branch L_regchk''', trace=False)
            k.p('L_regok:')
            e(f'''v_and_b32 v{T}, 3, v{L}
s_lshl_b32 s{G.sT0}, s{G.sKg}, 2
v_add_u32 v{T}, s{G.sT0}, v{T}
v_lshlrev_b32 v{T}, 7, v{T}
v_add_u32 v{T}, v{T}, v{vF1}
s_lshl_b32 s{G.sT0}, s{G.sB}, 12
s_add_u32 s{G.sT0}, s{G.sT0}, {G.FBASE}''')
            if cfg.dualflag:
                poll_dual(k, 'f1', T, G.sT0, 2)
            else: poll(k, 'f1', T, G.sT0)
            k.stamp('p3f1')
            for x in loads[0] + loads[3]: e(x)
            e(f's_cmp_eq_u32 s{G.sW}, 3\ns_cbranch_scc0 L_no315', trace=False)
            for g in wo_dma(3, 96): e([x.split(';')[0] for x in g], trace=False)
            k.p('L_no315:')
        for i in range(lo, hi):
            c, nt, qts = seq[i]
            half = 0 if seg == 3 else 1
            slot = i % 16
            ah = AH_OWN if seg < 3 else AH
            rd = []
            while issued < min(len(seq), i + ah + 1):
                rd += a_read(seq[issued][0], seq[issued][1], issued % 16); issued += 1
            younger = 2 * (issued - len(rd) // 2 - 1 - i)
            pre = [f's_waitcnt lgkmcnt({min(15, younger)})']
            if seg >= 3 and nt == 0:
                pre.append(f's_waitcnt vmcnt({k.vm_need({f"PH{(c>>2)-1}_{half}_{c&3}"})})')
                if seg == 3 and c == 9: pre.append('s_barrier')
            mf = []
            for qt in qts:
                Bop = vr(Own(qt, c), 4) if c < 4 else ar(Part((c >> 2) - 1, qt, c & 3), 4)
                Cop = '0' if c == 0 else vr(D(nt, qt), 4)
                mf.append(mfma(vr(D(nt, qt), 4), ar(aA + 4 * slot, 4), Bop, Cop))
            e(pre)
            e(mf[0]); e(rd)
            e(mf[1])
            for x in extra.pop(i, []): e(x)
            for m in mf[2:]: e(m)
        k.stamp(f'p3seg{seg}')
        if seg == 3:
            e('s_nop 4')
            px = []
            for nt in range(9):
                Lx, st = pack_store(0, nt); e(Lx); px.append(st)
            place(144 + 1, px, cfg.ps0_every)
        if seg == 4:
            e('s_nop 4')
            for nt in range(9):
                Lx, st = pack_store(1, nt); e(Lx); e(st)
            nn = k.vm_need({'PS0'})
            e(f's_waitcnt vmcnt({nn})'); e(set_flag(k, vF2a, dual=cfg.dualflag))
    assert not extra, extra.keys()
    k.stamp('p3mm')
    nn = k.vm_need({'PS1'})
    e(f's_waitcnt vmcnt({nn})'); e(set_flag(k, vF2b, dual=cfg.dualflag))
    k.stamp('p3st')
    e(f'''v_and_b32 v{T}, 7, v{L}
v_lshlrev_b32 v{T}, 2, v{T}
v_add_u32 v{T}, s{G.sNb}, v{T}
v_lshlrev_b32 v{T}, 7, v{T}
s_lshl_b32 s{G.sT0}, s{G.sKg}, 2
s_add_u32 s{G.sT0}, s{G.sT0}, 16
v_add_u32 v{T}, s{G.sT0}, v{T}
s_lshl_b32 s{G.sT0}, s{G.sB}, 12
s_add_u32 s{G.sT0}, s{G.sT0}, {G.FBASE}
v_lshlrev_b32 v{vAd}, 4, v{L}
s_lshl_b32 s{G.sT1}, s{G.sW}, 10
v_add_u32 v{vAd}, s{G.sT1}, v{vAd}
v_add_u32 v{vAd+1}, 4096, v{vAd}
v_add_u32 v{vAd+2}, 8192, v{vAd}
s_cmp_ge_u32 s{G.sW}, 1
s_cselect_b32 s{G.sT1}, 0x40000000, 0
v_add_u32 v{vAd+2}, s{G.sT1}, v{vAd+2}''')
    if cfg.dualflag: poll_dual(k, 'f2', T, G.sT0, 3)
    else: poll(k, 'f2', T, G.sT0)
    k.stamp('p3f2')
    R = 112; SUM = 208
    for i in range(3):
        for src in range(8):
            b = R + (i * 8 + src) * 4
            e(f's_add_u32 s{G.sT1}, s{G.sT3}, {src*9216}')
            e(f'buffer_load_dwordx4 v[{b}:{b+3}], v{vAd+i}, s[{G.sWS}:{G.sWS+3}], s{G.sT1} offen')
    e(f'''v_and_b32 v{T}, 15, v{L}
v_mul_u32_u24 v{T}, 1152, v{T}
v_lshrrev_b32 v{T+1}, 4, v{L}
v_lshl_add_u32 v{T}, v{T+1}, 3, v{T}
v_add_u32 v{T+1}, {16*1152}, v{T}
s_lshl_b32 s{G.sT0}, s{G.sB}, 3
s_add_u32 s{G.sT0}, s{G.sT0}, s{G.sKg}
s_mul_i32 s{G.sT0}, s{G.sT0}, {32*1152}
s_mul_i32 s{G.sT1}, s{G.sNb}, 288
s_add_u32 s{G.sT0}, s{G.sT0}, s{G.sT1}
s_lshl_b32 s{G.sT1}, s{G.sW}, 5
s_add_u32 s{G.sT0}, s{G.sT0}, s{G.sT1}
s_mov_b32 s{G.sT1}, 0x00003f80
s_mov_b32 s{G.sT2}, 0x3f800000''')
    k.stamp('p3fi')
    for i in range(3):
        nn = k.vm_need({f'FIN{i}'})
        e(f's_waitcnt vmcnt({nn})')
        s_ = SUM + 8 * i
        for src in range(8):
            b = R + (i * 8 + src) * 4
            for j in range(4):
                for hi_ in range(2):
                    acc = s_ + 2 * j + hi_
                    e(f'v_dot2_f32_bf16 v{acc}, v{b+j}, s{G.sT1+hi_}, {"0" if src == 0 else f"v{acc}"}')
        e('s_nop 2')
        for j in range(4): e(f'v_cvt_pk_bf16_f32 v{b+j}, v{s_+2*j}, v{s_+2*j+1}')
        if i == 2:
            e(f's_cmp_ge_u32 s{G.sW}, 1\ns_cselect_b32 s{G.sT3}, 0x7ffff000, s{G.sT0}')
        so = G.sT0 if i < 2 else G.sT3
        e(f'buffer_store_dwordx2 v[{b}:{b+1}], v{T}, s[{G.sOut}:{G.sOut+3}], s{so} offen offset:{128*i}{cfg.out_flag}')
        e(f'buffer_store_dwordx2 v[{b+2}:{b+3}], v{T+1}, s[{G.sOut}:{G.sOut+3}], s{so} offen offset:{128*i}{cfg.out_flag}')
```

```python
import sys, math, struct
from asmlib import *

NAME = 'standalone__mha_block_cached__near_ridge'

class Cfg:
    stamps = False
    kv_flag = ' nt'
    x_flag = ''
    w_flag = ''
    wo_flag = ''
    force_safe = False
    ablate = ''
    l1inv = False
    codepf = True
    rot = True
    pad = 0
    dbgstamps = 0
    mapx = True
    dualflag = True
    out_flag = ''
    bswap = 0
    coop_pre = (0, 1, 2, 3, 4, 5, 6, 7, 8)
    coop_mid = ()
    coop_skip = ()
    coop_wait = None
    early_ost = True
    own_split = (2, 3)
    ps0_every = 8
    l3_every = 6
    kv_same = False
cfg = Cfg()

sW = 3
sX, sWq, sK, sV, sWS, sWo, sOut = 20, 24, 28, 32, 36, 40, 44
sW4K = 48; sKsoff = 49; sVsoff = 50; sDma = 51; sXor = 52; sIter = 53
sT0, sT1, sT2, sT3 = 54, 55, 56, 57
sC = 58
sXsoff = 60; sWsoff = 61; sW8K = 62; sDelta = 63
sB = 64; sH = 65; sJ = 66; sMode = 67
sKg = 68; sNb = 69; sRot = 70; sPass = 71
sStamp = 72

vLane = 1
vT = 2
vKA = 8
vVA = 12
vDK = 20
vDV = 24
vMG = 26
vT2 = 30
vS = 32
vC = 64
vP = 80
vL = 96
vXA = 112; vWA = 114
vCo = 118
vOX = 32; vOW = 40
vWoD = 112
vWoR = 121
vAcc = 128
aQ = 0; aKf = 64; aVf = 96; aOnes = 252; aZero = 188
aPA = 96; aPB = 64

def O(dt, qt): return vAcc + (dt * 4 + qt) * 4
def S(qt, kt): return vS + qt * 8 + kt * 4
def CI(qt): return vC + 4 * qt
def P(qt): return vP + 4 * qt
def LA(qt): return vL + 4 * qt
def Qf(qt, ds): return aQ + (qt * 4 + ds) * 4
def Kf(m): return aKf + 4 * m
def Vf(dt): return aVf + 4 * dt

LDS_V = 65536
XS = [32768, 81920]
WS = [114688, 131072, 147456]
OBASE = 0
PBASE = 16 << 20
FBASE = 60 << 20
FTWIN = 1 << 16
STAMPBASE = 64 << 20

def kb(fn): return ','.join(str(fn(w) // 1024) for w in range(4))
def stamp_reg(i): return [72, 76, 80, 4, 8, 12, 92][i]
def mfma(d, a, b, c): return f'v_mfma_f32_16x16x32_bf16 {d}, {a}, {b}, {c}'

class Slots:
    def __init__(self, n):
        self.pre = [[] for _ in range(n)]
        self.post = [[] for _ in range(n)]
        self.mf = [None] * n
    def out(self):
        o = []
        for i in range(len(self.mf)):
            o += self.pre[i]
            if self.mf[i]: o.append(self.mf[i])
            o += self.post[i]
        return o
    def load(self):
        def cost(x):
            mn = x.split()[0]
            if mn.startswith('v_exp') or mn.startswith('v_rcp'): return 8
            return 4
        n = len(self.mf); res = []
        for i in range(n):
            g = self.post[i] + (self.pre[i + 1] if i + 1 < n else [])
            res.append(sum(cost(x) for x in g))
        return res

def dma_K(tile, slot, soff):
    L = []
    for p in range(4):
        a = lambda w, p=p: slot * 16384 + w * 4096 + p * 1024
        L.append(f'buffer_load_dwordx4 v{vDK+p}, s[{sK}:{sK+3}], {soff} offen offset:{p*1024}{cfg.kv_flag} lds ; @dma K{tile} {kb(a)}')
    return L
def dma_V(tile, slot, soff):
    L = []
    for p in range(4):
        a = lambda w, p=p: LDS_V + slot * 16384 + w * 4096 + p * 1024
        L.append(f'buffer_load_dwordx4 v{vDV+(p&1)}, s[{sV}:{sV+3}], {soff} offen offset:{p*1024}{cfg.kv_flag} lds ; @dma V{tile} {kb(a)}')
    return L

def dma_W(c):
    G = []
    for p in range(4):
        a = lambda w, p=p: WS[c % 3] + w * 4096 + p * 1024
        ins = f'buffer_load_dwordx4 v{vOW+p}, s[{sWq}:{sWq+3}], s{sWsoff} offen offset:{p*1024}{cfg.w_flag} lds ; @dma W{c} {kb(a)}'
        g = [ins]
        if p == 0: g = [f's_add_u32 m0, s{sW4K}, {WS[c%3]}', f's_mov_b32 s{sWsoff}, {c*524288}', ins]
        G.append(g)
    return G
def dma_X(c):
    G = []
    for p in range(8):
        a = lambda w, p=p: XS[c % 2] + w * 8192 + p * 1024
        ins = f'buffer_load_dwordx4 v{vOX+p}, s[{sX}:{sX+3}], s{sXsoff} offen offset:{(p&3)*1024}{cfg.x_flag} lds ; @dma X{c} {kb(a)} priv'
        g = [ins]
        if p == 0: g = [f's_add_u32 m0, s{sW8K}, {XS[c%2]}', f's_mov_b32 s{sXsoff}, {c*128}', ins]
        if p == 4: g = [f's_add_u32 m0, s{sW8K}, {XS[c%2]+4096}', 's_nop 0', ins]
        G.append(g)
    return G

def kv_dma_addr():
    T = vT; L = vLane
    o = f'''v_lshrrev_b32 v{T+1}, 4, v{L}
v_and_b32 v{T+3}, 15, v{L}
v_mov_b32 v{T+4}, v{T+1}'''.split('\n')
    for p in range(4):
        o += [f'v_add_u32 v{T+2}, {4*p}, v{T+1}', f'v_xor_b32 v{T+2}, v{T+2}, v{T+3}', f'v_lshlrev_b32 v{T+2}, 4, v{T+2}', f'v_lshl_add_u32 v{vDK+p}, v{T+4}, 8, v{T+2}']
    for par in range(2):
        o += [f'v_add_u32 v{T+2}, {4*par}, v{T+1}', f'v_lshlrev_b32 v{T+2}, 1, v{T+2}', f'v_xor_b32 v{T+2}, v{T+2}, v{T+3}', f'v_lshlrev_b32 v{T+2}, 4, v{T+2}', f'v_lshl_add_u32 v{vDV+par}, v{T+4}, 8, v{T+2}']
    return o
def kv_read_addr():
    T = vT; L = vLane
    o = [f'v_lshrrev_b32 v{T}, 4, v{L}', f'v_bfe_u32 v{T+1}, v{L}, 2, 2', f'v_and_b32 v{T+2}, 3, v{L}', f'v_and_b32 v{T+3}, 15, v{L}',
         f'v_lshlrev_b32 v{T+4}, 8, v{T+3}']
    for ds in range(4):
        o += [f'v_add_u32 v{T+5}, {4*ds}, v{T}', f'v_xor_b32 v{T+5}, v{T+5}, v{T+3}', f'v_lshl_add_u32 v{vKA+ds}, v{T+5}, 4, v{T+4}']
    o += f'''v_lshl_add_u32 v{T+4}, v{T}, 2, v{T+1}
v_and_b32 v{vT2}, 7, v{T+4}
v_lshlrev_b32 v{vT2}, 1, v{vT2}
v_lshlrev_b32 v{T+4}, 8, v{T+4}
v_and_b32 v{T+5}, 1, v{T+2}
v_lshl_add_u32 v{T+4}, v{T+5}, 3, v{T+4}
v_add_u32 v{T+4}, {LDS_V}, v{T+4}
v_lshrrev_b32 v{vT2+1}, 1, v{T+2}'''.split('\n')
    for dt in range(8):
        o += [f'v_add_u32 v{T+5}, {2*dt}, v{vT2+1}', f'v_xor_b32 v{T+5}, v{T+5}, v{vT2}', f'v_lshl_add_u32 v{vVA+dt}, v{T+5}, 4, v{T+4}']
    return o

def p1_reads(c, n, buf):
    A = aPA + buf * 32; B = aPB + buf * 16
    def W(dt, u):
        ds, x = dt >> 1, dt & 1
        return f'ds_read_b64_tr_b16 a[{A+4*dt+2*u}:{A+4*dt+2*u+1}], v{vWA+ds} offset:{(c%3)*16384+(32*n+4*u)*256+8*x} ; @rd W{c}'
    def X(qt): return f'ds_read_b128 a[{B+4*qt}:{B+4*qt+3}], v{vXA+n} offset:{(c%2)*49152+qt*2048} ; @rd X{c}'
    R = [X(0), W(0, 0), W(0, 1), X(1), X(2), X(3)]
    for dt in range(1, 8): R += [W(dt, 0), W(dt, 1)]
    return R

def p1_kstep(k, c, n, groups, last=False):
    Sl = Slots(32)
    buf = n & 1
    for m in range(32):
        dt, qt = m >> 2, m & 3
        Sl.mf[m] = mfma(vr(O(dt, qt), 4), ar(aPA + buf * 32 + 4 * dt, 4), ar(aPB + buf * 16 + 4 * qt, 4), '0' if (c == 0 and n == 0) else vr(O(dt, qt), 4))
    if n == 0: R = p1_reads(c, 1, 1)
    else: R = [] if last else p1_reads(c + 1, 0, 0)
    if n == 1:
        vm = (k.vm_need({f'X{c+1}', f'W{c+1}'}) if not cfg.ablate else 20) if not last else 63
        Sl.pre[0] += [f's_waitcnt vmcnt({vm}) lgkmcnt(0)', 's_barrier']
    else: Sl.pre[0] += ['s_waitcnt lgkmcnt(0)']
    ab = cfg.ablate
    if 'p1rd' in ab: R = []
    if 'p1x' in ab: groups = [[x for x in g if '@dma X' not in x] for g in groups]
    if 'p1w' in ab: groups = [[x for x in g if '@dma W' not in x] for g in groups]
    if 'p1kv' in ab: groups = [[x for x in g if '@dma K' not in x and '@dma V' not in x] for g in groups]
    for i, r in enumerate(R): Sl.post[2 * (i // 2)].append(r)
    if groups:
        nn = len(groups)
        for i, g in enumerate(groups):
            Sl.post[min(31, 1 + 2 * ((i * 16) // nn))] += g
    return Sl.out()

class Kernel:
    def __init__(self):
        self.p = Prog(); self.tr = []; self.nstamp = 0; self.q = []
    def e(self, s, text=True, trace=True):
        if isinstance(s, str): s = [x.strip() for x in s.split('\n') if x.strip()]
        if text: self.p(s)
        if trace: self.tr.extend(s)
    def stamp(self, name):
        if cfg.stamps and name in cfg.stamps:
            i = cfg.stamps.index(name); b = stamp_reg(i)
            self.e(f's_memrealtime s[{b}:{b+1}]\ns_memtime s[{b+2}:{b+3}]')
            self.nstamp = max(self.nstamp, i + 1)
    def vm_need(self, tags):
        q = []
        for line in self.tr:
            code, _, com = line.partition(';')
            mn = code.split()[0] if code.split() else ''
            if mn.startswith('buffer_') and mn not in ('buffer_inv', 'buffer_wbl2') or mn.startswith('global_'):
                t = None
                a = com.split()
                if '@dma' in a: t = a[a.index('@dma') + 1]
                elif '@tag' in a: t = a[a.index('@tag') + 1]
                q.append(t)
        for t in tags: assert t in q, f'tag {t} was never issued'
        last = max((i for i, t in enumerate(q) if t in tags), default=-1)
        return min(63, len(q) - 1 - last)

    def header(self):
        self.p(f'; @launch grid=(256,1,1) block=(256,1,1) lds=163840')
        if cfg.stamps: self.p('; stamps: ' + ','.join(cfg.stamps))
        self.p('.amdgcn_target "amdgcn-amd-amdhsa--gfx950"\n.text')
        self.p(f'.globl {NAME}_kernel\n.p2align 8\n.type {NAME}_kernel,@function\n{NAME}_kernel:')
    def footer(self):
        self.p('L_end:\ns_endpgm')
        self.p('.p2align 6\nL_codeend:')
        self.p('.section .rodata,"a"\n.p2align 6')
        self.p(f'.amdhsa_kernel {NAME}_kernel')
        self.p('''.amdhsa_next_free_vgpr 512
.amdhsa_next_free_sgpr 102
.amdhsa_accum_offset 256
.amdhsa_group_segment_fixed_size 0
.amdhsa_kernarg_size 64
.amdhsa_user_sgpr_count 2
.amdhsa_user_sgpr_kernarg_segment_ptr 1
.amdhsa_system_sgpr_workgroup_id_x 1
.end_amdhsa_kernel''')

    def setup(self):
        e = self.e
        e('s_cmp_ge_u32 s2, 256\ns_cbranch_scc1 L_end')
        self.stamp('entry')
        e(f's_load_dwordx16 s[4:19], s[0:1], 0')
        e(f'''v_and_b32 v{vLane}, 63, v0
v_lshrrev_b32 v{vT}, 6, v0
s_and_b32 s{sT0}, s2, 7
s_lshr_b32 s{sJ}, s2, 3
v_readfirstlane_b32 s{sW}, v{vT}
s_and_b32 s{sB}, s{sT0}, 1
s_xor_b32 s{sB}, s{sB}, {cfg.bswap}
s_lshl_b32 s{sB}, s{sB}, 2
s_and_b32 s{sT1}, s{sJ}, 3
s_add_u32 s{sB}, s{sB}, s{sT1}
s_lshr_b32 s{sH}, s{sT0}, 1
s_lshl_b32 s{sH}, s{sH}, 3
s_lshr_b32 s{sT1}, s{sJ}, 2
s_add_u32 s{sH}, s{sH}, s{sT1}
MAPX
s_lshr_b32 s{sKg}, s{sH}, 2
s_and_b32 s{sNb}, s{sH}, 3
s_lshl_b32 s{sW4K}, s{sW}, 12
ROT
'''.replace('ROT', f's_add_u32 s{sRot}, s{sH}, s{sB}\ns_and_b32 s{sRot}, s{sRot}, 15\ns_lshl_b32 s{sRot}, s{sRot}, 14\ns_add_u32 s{sRot}, s{sRot}, s{sW4K}' if cfg.rot else f's_mov_b32 s{sRot}, s{sW4K}').replace('MAPX', f's_mov_b32 s{sB}, s{sT0}\ns_mov_b32 s{sH}, s{sJ}' if cfg.mapx else 's_nop 0'))
        L = vLane; T = vT
        e(f'''v_lshrrev_b32 v{T}, 3, v{L}
s_lshl_b32 s{sT0}, s{sW}, 6
v_add_u32 v{T}, s{sT0}, v{T}
v_mul_u32_u24 v{T}, 1152, v{T}
v_lshrrev_b32 v{T+1}, 4, v{L}
v_and_b32 v{T+2}, 7, v{L}
v_xor_b32 v{T+3}, v{T+2}, v{T+1}
v_xor_b32 v{T+4}, 4, v{T+3}
v_lshl_add_u32 v{T+3}, v{T+3}, 4, v{T}
v_lshl_add_u32 v{T+4}, v{T+4}, 4, v{T}''')
        for p in range(8):
            e(f'v_add_u32 v{vOX+p}, {p*9216 - (p&3)*1024}, v{T+3+(p&1)}')
        e(f'''v_lshlrev_b32 v{T+2}, 2, v{T+1}
v_and_b32 v{T+3}, 15, v{L}
v_xor_b32 v{T+2}, v{T+2}, v{T+3}
v_lshlrev_b32 v{T+2}, 4, v{T+2}
s_lshl_b32 s{sT0}, s{sW}, 4
v_add_u32 v{T+4}, s{sT0}, v{T+1}
v_lshl_add_u32 v{T+5}, v{T+4}, 13, v{T+2}''')
        for p in range(4):
            e(f'v_add_u32 v{vOW+p}, {p*(32768-1024)}, v{T+5}')
        e(f'''v_lshrrev_b32 v{T+5}, 3, v{L}
s_lshr_b32 s{sT0}, s{sJ}, 2
s_lshl_b32 s{sT0}, s{sT0}, 5
s_lshl_b32 s{sT1}, s{sW}, 3
s_add_u32 s{sT0}, s{sT0}, s{sT1}
v_add_u32 v{T+5}, s{sT0}, v{T+5}
v_mul_u32_u24 v{T+5}, 1152, v{T+5}
v_and_b32 v{T+2}, 7, v{L}
v_lshl_add_u32 v{vCo}, v{T+2}, 4, v{T+5}
s_and_b32 s{sT0}, s{sJ}, 3
s_lshl_b32 s{sT0}, s{sT0}, 4
s_lshl_b32 s{sT1}, s{sW}, 2
s_add_u32 s{sT0}, s{sT0}, s{sT1}
v_add_u32 v{T+5}, s{sT0}, v{T+1}
v_lshlrev_b32 v{T+5}, 13, v{T+5}
v_and_b32 v{T+2}, 15, v{L}
v_lshl_add_u32 v{vCo+1}, v{T+2}, 4, v{T+5}''')
        if cfg.mapx:
            e(f'''v_lshrrev_b32 v{T+5}, 3, v{L}
s_lshl_b32 s{sT0}, s{sJ}, 3
v_add_u32 v{T+5}, s{sT0}, v{T+5}
v_mul_u32_u24 v{T+5}, 1152, v{T+5}
v_and_b32 v{T+2}, 7, v{L}
v_lshl_add_u32 v{vCo}, v{T+2}, 4, v{T+5}''')
        e('s_waitcnt lgkmcnt(0)')
        self.stamp('karg')
        if cfg.l1inv:
            e(f's_cmp_eq_u32 s{sW}, 0\ns_cbranch_scc0 L_noinv\nbuffer_inv sc1', trace=False)
            self.p('L_noinv:')
        e(f'''s_mul_i32 s{sT0}, s{sB}, 294912
s_add_u32 s{sX}, s4, s{sT0}
s_addc_u32 s{sX+1}, s5, 0
s_mov_b32 s{sX+2}, 294912
s_mov_b32 s{sX+3}, 0x20000
s_lshl_b32 s{sT0}, s{sH}, 8
s_add_u32 s{sWq}, s10, s{sT0}
s_addc_u32 s{sWq+1}, s11, 0
s_sub_u32 s{sWq+2}, 4718592, s{sT0}
s_mov_b32 s{sWq+3}, 0x20000
s_mov_b32 s{sWS}, s18
s_mov_b32 s{sWS+1}, s19
s_mov_b32 s{sWS+2}, 0x8000000
s_mov_b32 s{sWS+3}, 0x20000''')
        e(f's_lshl_b32 s{sW8K}, s{sW}, 13')
        def coop(c):
            if cfg.mapx:
                d = 44 + 4 * c
                return [f's_cmp_eq_u32 s{sW}, {c % 4}', f's_cselect_b32 s{sT1}, 0, 0x7fff0000', f'buffer_load_dwordx4 v[{d}:{d+3}], v{vCo}, s[{sX}:{sX+3}], s{sT1} offen offset:{c*128} ; @tag CO{c}']
            d = 44 + 8 * c if c < 6 else 96 + 8 * (c - 6) if c < 8 else 120
            return [f's_mov_b32 s{sT1}, {c*524288}', f'buffer_load_dwordx4 v[{d}:{d+3}], v{vCo+1}, s[{sWq}:{sWq+3}], s{sT1} offen ; @tag CO{c}',
                    f'buffer_load_dwordx4 v[{d+4}:{d+7}], v{vCo}, s[{sX}:{sX+3}], 0 offen offset:{c*128} ; @tag CO{c}']
        for c in cfg.coop_pre: e(coop(c))
        self.coop = coop
        if cfg.codepf:
            e(f'''s_getpc_b64 s[{sT2}:{sT2+1}]
L_pc:
s_and_b32 s{sT2}, s{sT2}, 0xffffff00
s_sub_u32 s{sT2}, s{sT2}, CODEOFF
s_subb_u32 s{sT3}, s{sT3}, 0
v_and_b32 v{T+5}, 15, v{L}
s_lshl_b32 s{sT0}, s{sJ}, 4
v_add_u32 v{T+5}, s{sT0}, v{T+5}
v_lshlrev_b32 v{T+5}, 7, v{T+5}
v_min_u32 v{T+5}, CODELEN, v{T+5}
global_load_dword v92, v{T+5}, s[{sT2}:{sT2+1}]''')
        self.stamp('dma0')
        e(f'''s_lshl_b32 s{sT0}, s{sB}, 5
s_add_u32 s{sT0}, s{sT0}, s{sH}
s_lshl_b32 s{sT0}, s{sT0}, 18''')
        if cfg.kv_same: e(f's_mov_b32 s{sT0}, 0')
        e(f'''s_add_u32 s{sK}, s6, s{sT0}
s_addc_u32 s{sK+1}, s7, 0
s_mov_b32 s{sK+2}, 262144
s_mov_b32 s{sK+3}, 0x20000
s_add_u32 s{sV}, s8, s{sT0}
s_addc_u32 s{sV+1}, s9, 0
s_mov_b32 s{sV+2}, 262144
s_mov_b32 s{sV+3}, 0x20000''')
        e(f'''s_mul_i32 s{sT0}, s{sKg}, {512*1152}
s_mul_i32 s{sT1}, s{sNb}, 288
s_add_u32 s{sT0}, s{sT0}, s{sT1}
s_add_u32 s{sWo}, s12, s{sT0}
s_addc_u32 s{sWo+1}, s13, 0
s_sub_u32 s{sWo+2}, 4718592, s{sT0}
s_mov_b32 s{sWo+3}, 0x20000
s_mov_b32 s{sOut}, s14
s_mov_b32 s{sOut+1}, s15
s_mov_b32 s{sOut+2}, 2359296
s_mov_b32 s{sOut+3}, 0x20000''')
        e(kv_dma_addr())
        self.stamp('cw0')
        if cfg.coop_wait is not None: e(f's_waitcnt vmcnt({self.vm_need({f"CO{cfg.coop_wait}"})})')
        self.stamp('cw1')
        for g in dma_W(0) + dma_X(0): e(g)
        for c in cfg.coop_mid: e(self.coop(c))
        self.stamp('d0')
        e(f'''v_lshrrev_b32 v{T}, 4, v{L}
v_bfe_u32 v{T+1}, v{L}, 2, 2
v_and_b32 v{T+2}, 3, v{L}
v_and_b32 v{T+3}, 15, v{L}''')
        e(f'''v_lshl_add_u32 v{T+4}, v{T}, 3, v{T+1}
v_lshlrev_b32 v{T+4}, 8, v{T+4}
v_lshl_add_u32 v{T+4}, v{T+2}, 4, v{T+4}
v_add_u32 v{T+4}, {WS[0]}, v{T+4}''')
        for ds in range(4):
            e(f'v_xor_b32 v{T+5}, {ds}, v{T+1}\nv_lshl_add_u32 v{vWA+ds}, v{T+5}, 6, v{T+4}')
        e(f'''s_lshl_b32 s{sT0}, s{sW}, 13
s_add_u32 s{sT0}, s{sT0}, {XS[0]}
v_lshlrev_b32 v{T+4}, 7, v{T+3}
v_add_u32 v{T+4}, s{sT0}, v{T+4}
v_lshrrev_b32 v{vT2}, 1, v{T+3}''')
        for n in range(2):
            e(f'''v_add_u32 v{T+5}, {4*n}, v{T}
v_xor_b32 v{T+5}, v{T+5}, v{vT2}
v_lshl_add_u32 v{vXA+n}, v{T+5}, 4, v{T+4}''')
        e(kv_read_addr())
        cbits = '0x%08x' % int.from_bytes(struct.pack('<f', math.log2(math.e) / math.sqrt(128.0)), 'little')
        e(f's_mov_b32 s{sC}, {cbits}\ns_mov_b32 s{sC+1}, {cbits}')
        e(f'v_mov_b32 v{T+5}, 0x3f803f80')
        for i in range(4): e(f'v_accvgpr_write_b32 a{aOnes+i}, v{T+5}')
        for i in range(4): e(f'v_accvgpr_write_b32 a{aZero+i}, 0')
        for i in range(4): e(f'v_mov_b32 v{vMG+i}, 0xff800000')
        e(f's_mov_b32 s{sPass}, 0\ns_mov_b32 s{sMode}, 0')
        for g in dma_W(1) + dma_X(1): e(g)
        self.stamp('d1')
        e(f'''s_lshl_b32 s{sT0}, s{sB}, 5
s_add_u32 s{sT0}, s{sT0}, s{sH}
s_lshl_b32 s{sT0}, s{sT0}, 7
s_add_u32 s{sT0}, s{sT0}, {FBASE}
v_mov_b32 v{T+2}, 0
v_and_b32 v{T+3}, 15, v{L}
v_lshlrev_b32 v{T+5}, 2, v{T+3}
v_bfe_u32 v{T+1}, v{L}, 4, 1
v_mul_u32_u24 v{T+1}, {FTWIN}, v{T+1}
v_add_u32 v{T+5}, v{T+5}, v{T+1}
v_cmp_gt_u32 vcc, 32, v{L}
v_mov_b32 v{T+4}, 0x7fffffff
s_cmp_eq_u32 s{sW}, 0
s_cselect_b64 vcc, vcc, 0
s_nop 1
v_cndmask_b32 v{T+5}, v{T+4}, v{T+5}, vcc
buffer_store_dword v{T+2}, v{T+5}, s[{sWS}:{sWS+3}], s{sT0} offen sc1 ; @tag CLR''')

    def phase1(self):
        e = self.e
        self.stamp('p1wait')
        n0 = self.vm_need({'X0', 'W0'})
        e(f's_waitcnt vmcnt({n0})\ns_barrier')
        self.stamp('p1go')
        e(p1_reads(0, 0, 0))
        def one(G, m0, extra=()):
            G = [[x] for x in G]
            G[0] = [m0] + list(extra) + (['s_nop 0'] if not extra else []) + G[0]
            return G
        K0 = one(dma_K(0, 0, f's{sKsoff}'), f's_mov_b32 m0, s{sW4K}', [f's_mov_b32 s{sKsoff}, s{sRot}'])
        K1 = one(dma_K(1, 1, f's{sKsoff}'), f's_add_u32 m0, s{sW4K}, 16384', [f's_add_u32 s{sKsoff}, s{sRot}, 16384', f's_and_b32 s{sKsoff}, s{sKsoff}, 0x3ffff'])
        K2 = one(dma_K(2, 2, f's{sKsoff}'), f's_add_u32 m0, s{sW4K}, {2*16384}', [f's_add_u32 s{sKsoff}, s{sRot}, {2*16384}', f's_and_b32 s{sKsoff}, s{sKsoff}, 0x3ffff'])
        V0 = one(dma_V(0, 1, f's{sVsoff}'), f's_add_u32 m0, s{sW4K}, {LDS_V+16384}', [f's_add_u32 s{sVsoff}, s{sRot}, 8192', f's_and_b32 s{sVsoff}, s{sVsoff}, 0x3ffff'])
        V1 = one(dma_V(1, 2, f's{sVsoff}'), f's_add_u32 m0, s{sW4K}, {LDS_V+2*16384}', [f's_add_u32 s{sVsoff}, s{sRot}, {8192+16384}', f's_and_b32 s{sVsoff}, s{sVsoff}, 0x3ffff'])
        Vm = [[f's_lshl_b32 s{sT2}, s{sW}, 11', f's_add_u32 m0, s{sT2}, {LDS_V + 8192}', f's_sub_u32 s{sT2}, s{sRot}, s{sT2}']]
        for p in range(2):
            a = lambda w, p=p: LDS_V + 8192 + w * 2048 + p * 1024
            ins = f'buffer_load_dwordx4 v{vDV+p}, s[{sV}:{sV+3}], s{sT2} offen offset:{p*1024}{cfg.kv_flag} lds ; @dma Vm1 {kb(a)}'
            if p == 0: Vm[0].append(ins)
            else: Vm.append([ins])
        plan = {}
        rest = [c for c in range(9) if c not in cfg.coop_pre and c not in cfg.coop_mid and c not in cfg.coop_skip]
        plan[(0, 0)] = [self.coop(c) for c in rest] + dma_W(2)
        for c in range(9):
            g1 = []
            if c + 2 <= 8: g1 += dma_X(c + 2)
            plan[(c, 1)] = g1
            if c + 3 <= 8: plan[(c + 1, 0)] = dma_W(c + 3)
        self.prefill = K0 + Vm + K1 + V0 + V1 + K2
        plan[(6, 1)] = plan[(6, 1)] + K0 + Vm
        plan[(7, 1)] = K1
        plan[(8, 0)] = V0
        plan[(8, 1)] = V1
        self.late_kv = K2
        for c in range(9):
            for n in range(2):
                e(p1_kstep(self, c, n, plan.get((c, n), []), last=(c == 8)))
            if c == 3:
                e(f'''s_lshl_b32 s{sT0}, s{sB}, 5
v_mov_b32 v{vT+4}, s{sT0}
v_mov_b32 v{vT+5}, 1
s_cmp_eq_u32 s{sW}, 0
s_cbranch_scc0 L_noreg
s_mov_b64 exec, 1
global_atomic_add v{vT+4}, v{vT+5}, s[16:17] sc1
s_mov_b64 exec, -1''', trace=False)
                self.p('L_noreg:')
            if c == 5: self.stamp('p1c6')
            self.stamp(f'c{c}')
        self.stamp('p1end')
        e('s_nop 3')
        for ds in range(4):
            for qt in range(4):
                for x in range(2):
                    b = O(2 * ds + x, qt)
                    e(f'v_pk_mul_f32 v[{b}:{b+1}], v[{b}:{b+1}], s[{sC}:{sC+1}]\nv_pk_mul_f32 v[{b+2}:{b+3}], v[{b+2}:{b+3}], s[{sC}:{sC+1}]')
                t = vS + ((ds * 4 + qt) & 1) * 4
                for x in range(2):
                    b = O(2 * ds + x, qt)
                    e(f'v_cvt_pk_bf16_f32 v{t+2*x}, v{b}, v{b+1}\nv_cvt_pk_bf16_f32 v{t+2*x+1}, v{b+2}, v{b+3}')
                for i in range(4): e(f'v_accvgpr_write_b32 a{Qf(qt, ds)+i}, v{t+i}')
                if ds * 4 + qt >= 8 and self.late_kv: e(self.late_kv.pop(0))

        assert not self.late_kv
    QK = [0, 17, 34, 42]
    PV = [50, 59, 8, 25]
    LS = [58, 67, 16, 33]
    EX = [11, 29, 45, 63]
    VG = [26, 27, 27, 28, 28, 30, 30, 32, 34, 34, 36, 38, 38, 40, 42, 42]
    KG = [44, 46, 46, 50, 50, 52, 54, 54]
    def step(self, k, par, kind='full', extra=None):
        NS = 68
        Sl = Slots(NS)
        it = k // 2; ktile = it + 1; vtile = it
        last = kind == 'last'
        for qt in range(4):
            if not last:
                for m in range(8):
                    ds, kt = m >> 1, m & 1
                    Sl.mf[self.QK[qt] + m] = mfma(vr(S(qt, kt), 4), ar(Kf(m), 4), ar(Qf(qt, ds), 4), vr(CI(qt) if ds == 0 else S(qt, kt), 4))
            if not last or qt >= 2:
                for dt in range(8):
                    Sl.mf[self.PV[qt] + dt] = mfma(vr(O(dt, qt), 4), ar(Vf(dt), 4), vr(P(qt), 4), vr(O(dt, qt), 4))
                Sl.mf[self.LS[qt]] = mfma(vr(LA(qt), 4), ar(aOnes, 4), vr(P(qt), 4), vr(LA(qt), 4))
        mem = [[] for _ in range(NS)]; alu = [[] for _ in range(NS)]
        def put(g, ins):
            g %= NS
            mn = ins.split()[0]
            (mem if mn.startswith('ds_') or mn.startswith('buffer_') or mn.startswith('global_') else alu)[g].append(ins)
        for qt in range(4):
            for i in range(8):
                g = self.EX[qt] + 2 * i
                if last and g < NS: continue
                r = S(qt, i >> 2) + (i & 3)
                put(g, f'v_exp_f32 v{r}, v{r}')
            for n in range(4):
                g = self.EX[qt] + 4 * n + 3
                if last and g < NS: continue
                r = S(qt, n >> 1) + 2 * (n & 1)
                if last and Sl.mf[g % NS] is None: put(g, 's_nop 0')
                put(g, f'v_cvt_pk_bf16_f32 v{P(qt)+n}, v{r}, v{r+1}')
        if last: Sl.pre[8].append('s_nop 1')
        if not last:
            for n in range(16):
                dt, u = n >> 1, n & 1
                put(self.VG[n], f'ds_read_b64_tr_b16 a[{Vf(dt)+2*u}:{Vf(dt)+2*u+1}], v{vVA+dt} offset:{par*8192+u*4096}')
            if kind == 'full':
                for m in range(8):
                    ds, kt = m >> 1, m & 1
                    put(self.KG[m], f'ds_read_b128 a[{Kf(m)}:{Kf(m)+3}], v{vKA+ds} offset:{par*8192+kt*4096}')
            nk = sum(1 for g in self.KG if g <= 48) if kind == 'full' else 0
            Sl.pre[49].append(f's_waitcnt lgkmcnt({nk})')
            if kind == 'full': Sl.pre[67].append('s_waitcnt lgkmcnt(0)')
            if par == 0:
                Sl.pre[1] += ['s_waitcnt vmcnt(VMW)', 's_barrier']
                for dt in range(8): put([2, 4, 4, 6, 8, 8, 10, 14][dt], f'v_xor_b32 v{vVA+dt}, s{sXor}, v{vVA+dt}')
                for ds in range(4): put([18, 20, 20, 22][ds], f'v_xor_b32 v{vKA+ds}, s{sXor}, v{vKA+ds}')
        if extra:
            for g, L in extra.items():
                mem[g % NS] += L
        ab = cfg.ablate
        if ab and kind == 'full':
            if 'exp' in ab: alu = [[x for x in a if not x.startswith('v_exp')] for a in alu]
            if 'cvt' in ab: alu = [[x for x in a if not x.startswith('v_cvt')] for a in alu]
            if 'vrd' in ab: mem = [[x for x in a if not x.startswith('ds_read_b64')] for a in mem]
            if 'krd' in ab: mem = [[x for x in a if not x.startswith('ds_read_b128')] for a in mem]
            if 'dma' in ab: mem = [[x for x in a if not x.startswith('buffer_load')] for a in mem]
            if 'lsum' in ab:
                for qt in range(4): Sl.mf[self.LS[qt]] = None
        for g in range(NS): Sl.post[g] = mem[g] + alu[g]
        if cfg.pad and not last:
            for g in range(3, NS, max(1, NS // cfg.pad)): Sl.post[g].append('s_nop 3')
        self.last_load = Sl.load()
        return Sl.out()

    def kv_extra(self, it, par, doK=True, doV=True):
        slot = (it + 3) & 3
        X = {}
        if par == 0:
            X.setdefault(61, []).append(f's_and_b32 s{sVsoff}, s{sVsoff}, 0x3ffff')
            if doK:
                D = dma_K(it + 3, slot, f's{sKsoff}')
                X[12] = [f's_mov_b32 m0, s{sDma}']
                for g, d in zip((16, 24, 58, 64), D): X.setdefault(g, []).append(d)
                X.setdefault(64, []).append(f's_add_u32 s{sKsoff}, s{sKsoff}, 16384')
        else:
            X.setdefault(12, []).append(f's_and_b32 s{sKsoff}, s{sKsoff}, 0x3ffff')
            if doV:
                D = dma_V(it + 2, slot, f's{sVsoff}')
                X[0] = [f's_add_u32 s{sT0}, s{sDma}, {LDS_V}']
                X[4] = [f's_mov_b32 m0, s{sT0}']
                for g, d in zip((8, 20, 58, 64), D): X.setdefault(g, []).append(d)
                X.setdefault(64, []).append(f's_add_u32 s{sVsoff}, s{sVsoff}, 16384')
            X.setdefault(61, []).append(f's_xor_b32 s{sXor}, s{sXor}, 0x8000')
            X.setdefault(62, []).append(f's_xor_b32 s{sDma}, s{sDma}, s{sXor}')
        return X

    def phase2(self):
        e = self.e
        self.p('L_p2start:')
        e(f's_waitcnt vmcnt({self.vm_need({"K0", "Vm1"}) if not cfg.ablate else 0})\ns_barrier')
        for m in range(8):
            ds, kt = m >> 1, m & 1
            e(f'ds_read_b128 a[{Kf(m)}:{Kf(m)+3}], v{vKA+ds} offset:{kt*4096} ; @rd K0')
        z = [f'v_mov_b32 v{O(dt, qt)+r}, 0' for qt in (2, 3) for dt in range(8) for r in range(4)] + [f'v_mov_b32 v{vL+i}, 0' for i in range(16)]
        e('s_waitcnt lgkmcnt(0)')
        zi = 0
        for qt in range(4):
            for m in range(8):
                ds, kt = m >> 1, m & 1
                e(mfma(vr(S(qt, kt), 4), ar(Kf(m), 4), ar(Qf(qt, ds), 4), '0' if ds == 0 else vr(S(qt, kt), 4)))
                e(z[zi:zi+2]); zi += 2
                if qt == 3: e(f'ds_read_b128 a[{Kf(m)}:{Kf(m)+3}], v{vKA+ds} offset:{8192+kt*4096} ; @rd K0')
        e(z[zi:])
        for n in range(16):
            dt, u = n >> 1, n & 1
            e(f'ds_read_b64_tr_b16 a[{Vf(dt)+2*u}:{Vf(dt)+2*u+1}], v{vVA+dt} offset:{8192+u*4096}')
        for qt in range(4):
            a, b = S(qt, 0), S(qt, 1); m = vT + qt
            e(f'v_max3_f32 v{m}, v{a}, v{a+1}, v{vMG+qt}\nv_max3_f32 v{m}, v{m}, v{a+2}, v{a+3}\nv_max3_f32 v{m}, v{m}, v{b}, v{b+1}\nv_max3_f32 v{m}, v{m}, v{b+2}, v{b+3}')
        for sw in ('v_permlane32_swap_b32', 'v_permlane16_swap_b32'):
            for qt in range(4): e(f'v_mov_b32 v{vC+qt}, v{vT+qt}')
            e('s_nop 0')
            for qt in range(4): e(f'{sw} v{vT+qt}, v{vC+qt}')
            for qt in range(4): e(f'v_max_f32 v{vT+qt}, v{vT+qt}, v{vC+qt}')
        for qt in range(4):
            for r in range(4): e(f'v_sub_f32 v{CI(qt)+r}, 0, v{vT+qt}')
        for qt in range(4):
            for i in range(8): e(f'v_add_f32 v{S(qt,0)+i}, v{S(qt,0)+i}, v{CI(qt)}')
        for qt in range(3):
            for i in range(8): e(f'v_exp_f32 v{S(qt,0)+i}, v{S(qt,0)+i}')
        for i in range(3): e(f'v_exp_f32 v{S(3,0)+i}, v{S(3,0)+i}')
        for qt in range(3):
            for n in range(4):
                r = S(qt, n >> 1) + 2 * (n & 1)
                e(f'v_cvt_pk_bf16_f32 v{P(qt)+n}, v{r}, v{r+1}')
        e(f'v_cvt_pk_bf16_f32 v{P(3)}, v{S(3,0)}, v{S(3,0)+1}')
        e('s_waitcnt lgkmcnt(0)')
        for qt in range(2):
            for dt in range(8):
                e(mfma(vr(O(dt, qt), 4), ar(Vf(dt), 4), vr(P(qt), 4), '0'))
            e(mfma(vr(LA(qt), 4), ar(aOnes, 4), vr(P(qt), 4), vr(LA(qt), 4)))
        e(f'''s_mov_b32 s{sXor}, 0x4000
s_add_u32 s{sDma}, s{sW4K}, {3*16384}
s_add_u32 s{sKsoff}, s{sRot}, {3*16384}
s_and_b32 s{sKsoff}, s{sKsoff}, 0x3ffff
s_add_u32 s{sVsoff}, s{sRot}, {8192+2*16384}
s_and_b32 s{sVsoff}, s{sVsoff}, 0x3ffff
s_mov_b32 s{sIter}, 0''')
        self.stamp('p2loop')
        self.p('.p2align 3\nL_p2:')
        texts = []
        NL = 12
        for it in range(NL):
            L = self.step(2 * it, 0, 'full', self.kv_extra(it, 0)); l0 = self.last_load
            L += self.step(2 * it + 1, 1, 'full', self.kv_extra(it, 1)); l1 = self.last_load
            L = [x.replace('VMW', '8') for x in L]
            L += [f's_add_u32 s{sIter}, s{sIter}, 1', f's_cmp_lt_u32 s{sIter}, {NL}', 's_cbranch_scc1 L_p2']
            texts.append([x.split(';')[0].strip() for x in L])
            if it == 0:
                self.p(L); self.loop_body = L
                print('gap load step0:', l0); print('gap load step1:', l1)
            self.tr.extend(L)
        assert all(t == texts[0] for t in texts)
        self.stamp('p2peel')
        from g2p3 import peeled_tail
        peeled_tail(self)

    def fallback(self):
        e = lambda x: self.e(x, trace=False)
        self.p('L_fallback:')
        e('s_waitcnt vmcnt(0) lgkmcnt(0)\ns_barrier')
        e(kv_dma_addr()); e(kv_read_addr())
        for i in range(4): e(f'v_mov_b32 v{vMG+i}, 0xff800000')
        e(f's_mov_b32 s{sKsoff}, s{sW4K}')
        self.p('L_fb_loop:')
        e(f's_mov_b32 m0, s{sW4K}\ns_nop 0')
        e([x.split(';')[0] for x in dma_K(0, 0, f's{sKsoff}')])
        e('s_waitcnt vmcnt(0)\ns_barrier')
        for half in range(2):
            for m in range(8):
                ds, kt = m >> 1, m & 1
                e(f'ds_read_b128 a[{Kf(m)}:{Kf(m)+3}], v{vKA+ds} offset:{half*8192+kt*4096}')
            e('s_waitcnt lgkmcnt(0)')
            for qt in range(4):
                for m in range(8):
                    ds, kt = m >> 1, m & 1
                    e(mfma(vr(S(qt, kt), 4), ar(Kf(m), 4), ar(Qf(qt, ds), 4), '0' if ds == 0 else vr(S(qt, kt), 4)))
            e('s_nop 7')
            for qt in range(4):
                a, b = S(qt, 0), S(qt, 1); m = vMG + qt
                e(f'v_max3_f32 v{m}, v{m}, v{a}, v{a+1}\nv_max3_f32 v{m}, v{m}, v{a+2}, v{a+3}\nv_max3_f32 v{m}, v{m}, v{b}, v{b+1}\nv_max3_f32 v{m}, v{m}, v{b+2}, v{b+3}')
        e(f's_barrier\ns_add_u32 s{sKsoff}, s{sKsoff}, 16384\ns_cmp_lt_u32 s{sKsoff}, 262144\ns_cbranch_scc1 L_fb_loop')
        for g in self.prefill: e([x.split(';')[0] for x in g])
        e(f's_mov_b32 s{sMode}, 1\ns_branch L_p2start')

    def finish_stamps(self):
        if not cfg.stamps: return
        e = self.e
        if cfg.dbgstamps:
            e(f's_waitcnt lgkmcnt(0)\ns_cmp_eq_u32 s2, {cfg.dbgstamps-1}\ns_cbranch_scc0 L_nodbg\ns_cmp_eq_u32 s{sW}, 0\ns_cbranch_scc0 L_nodbg', trace=False)
            for i in range(1, self.nstamp):
                e(f's_sub_u32 s{sT0}, s{stamp_reg(i)}, s{stamp_reg(0)}\nv_mov_b32 v{vT+2}, s{sT0}\nv_mov_b32 v{vT}, {4*i}\nglobal_store_dword v{vT}, v{vT+2}, s[16:17]', trace=False)
            self.p('L_nodbg:')
            return
        e(f'''s_waitcnt lgkmcnt(0)
s_lshl_b32 s{sT0}, s2, 2
s_add_u32 s{sT0}, s{sT0}, s{sW}
s_lshl_b32 s{sT0}, s{sT0}, 8
s_add_u32 s{sT0}, s{sT0}, {STAMPBASE}
s_add_u32 s18, s18, s{sT0}
s_addc_u32 s19, s19, 0
v_mov_b32 v{vT}, 0''')
        for i in range(self.nstamp):
            for j in range(4): e(f'v_mov_b32 v{vT+2+j}, s{stamp_reg(i)+j}')
            e(f'global_store_dwordx4 v{vT}, v[{vT+2}:{vT+5}], s[18:19] offset:{16*i}\ns_nop 1')

def build():
    k = Kernel()
    k.header(); k.setup(); k.phase1(); k.phase2()
    from g2p3 import phase3
    phase3(k)
    k.stamp('end')
    k.finish_stamps()
    k.e('s_endpgm', trace=False)
    k.fallback()
    k.footer()
    return k

def main():
    import argparse
    ap = argparse.ArgumentParser()
    ap.add_argument('-o', default=f'cdna_kernels/{NAME}.s')
    ap.add_argument('--stamps', default='')
    ap.add_argument('--set', action='append', default=[])
    a = ap.parse_args()
    cfg.stamps = a.stamps.split(',') if a.stamps else False
    for kv in a.set:
        kk, vv = kv.split('=', 1)
        try: vv = eval(vv)
        except Exception: pass
        setattr(cfg, kk, vv)
    k = build()
    errs = simulate(k.tr, 'trace')
    errs += check_hazards(k.tr, 'haz')
    txt = k.p.text()
    txt = txt.replace('CODEOFF', f'((L_pc - {NAME}_kernel) & 0xffffff00)').replace('CODELEN', f'(L_codeend - {NAME}_kernel - 128)')
    open(a.o, 'w').write(txt)
    print('written', a.o, 'errors:', len(errs), 'trace len', len(k.tr))
```

```python
from asmlib import *
import g2 as G
from g2 import cfg, mfma, kb, Slots

REG = [13, 14, 0, 1, 2, 7, 3, 4, 8, 9, 5, 6, 10, 11, 12, 15]
def rbase(j):
    if j < 7: return j * 9216
    if j < 15: return 81920 + (j - 7) * 9216
    return 65536
sWoB = 60
sWoS = 84
sPh = 96
sOst = 99; sPst = 100; sFl = 101; sCnt = 59
vWoD = G.vWoD
vR = 8
vAd = 12
vOwn = 32
vD = 112
aPart = 0
aA = 192
def D(nt, qt): return vD + (nt * 4 + qt) * 4
def Own(qt, ks): return vOwn + (qt * 4 + ks) * 4
def Part(hp, qt, ks): return aPart + hp * 64 + (qt * 4 + ks) * 4

def wo_setup(k):
    e = k.e; T = G.vT; L = G.vLane
    out = []
    for p in range(9):
        out += [f'v_add_u32 v{T}, {64*p}, v{L}', f'v_mul_u32_u24 v{T+1}, 3641, v{T}', f'v_lshrrev_b32 v{T+1}, 16, v{T+1}',
                f'v_mul_u32_u24 v{T+2}, 18, v{T+1}', f'v_sub_u32 v{T+2}, v{T}, v{T+2}', f'v_mul_u32_u24 v{T+1}, 1152, v{T+1}',
                f'v_lshl_add_u32 v{vWoD+p}, v{T+2}, 4, v{T+1}']
        if p % 4: out.append(f'v_subrev_u32 v{vWoD+p}, {(p%4)*1024}, v{vWoD+p}')
    for grp in range(4):
        t = [rbase(REG[4 * grp + w]) for w in range(4)]
        out += [f's_mov_b32 s{sWoB+grp}, {t[0]}']
        for w in range(1, 4):
            out += [[f's_cmp_eq_u32 s{G.sW}, {w}', f's_cselect_b32 s{sWoB+grp}, {t[w]}, s{sWoB+grp}']]
        out += [f's_add_u32 s{G.sT0}, s{G.sNb}, {grp}', f's_and_b32 s{G.sT0}, s{G.sT0}, 3', f's_lshl_b32 s{G.sT0}, s{G.sT0}, 2',
                f's_add_u32 s{G.sT0}, s{G.sT0}, s{G.sW}', f's_mul_i32 s{sWoS+grp}, s{G.sT0}, {32*1152}']
    return out

def wo_dma(grp, vbase=None):
    L = []
    for p in range(9):
        g = []
        if p % 4 == 0:
            g += [f's_add_u32 s{G.sT0}, s{sWoB+grp}, {p*1024}', f's_mov_b32 m0, s{G.sT0}', 's_nop 0']
        a = lambda w, p=p: rbase(REG[4 * grp + w]) + p * 1024
        g.append(f'buffer_load_dwordx4 v{(vbase or vWoD)+p}, s[{G.sWo}:{G.sWo+3}], s{sWoS+grp} offen offset:{(p%4)*1024}{cfg.wo_flag} lds')
        L.append(g)
    return L

def spread(groups, gaps):
    X = {}
    for g, pos in zip(groups, gaps): X.setdefault(pos, []).extend(g)
    return X
def merge(a, b):
    for g, L in b.items(): a.setdefault(g, []).extend(L)
    return a

def peeled_tail(k):
    e = k.e
    gapsA = [12, 20, 24, 46, 62]; gapsB = [4, 20, 46, 62]
    def emit(step_lines, tags):
        n = k.vm_need(tags)
        e([x.replace('VMW', str(n)) for x in step_lines])
    su = wo_setup(k)
    reg = [f's_lshl_b32 s{G.sT0}, s{G.sB}, 5', f'v_mov_b32 v{G.vT2}, s{G.sT0}', f'global_load_dword v{G.vT2}, v{G.vT2}, s[16:17] sc1']
    X0 = {}
    h = len(su) // 2
    def sprinkle(L, gaps):
        X = {}; n = len(L); per = -(-n // len(gaps))
        for i, x in enumerate(L):
            if isinstance(x, list): X.setdefault(gaps[i // per], []).extend(x)
            else: X.setdefault(gaps[i // per], []).append(x)
        return X
    free = [12, 16, 24, 56, 58, 60, 61, 62, 64]
    emit(k.step(24, 0, 'full', merge(k.kv_extra(12, 0), sprinkle(su[:h], free))), {'V12', 'K13'})
    X = k.kv_extra(12, 1, doV=True)
    emit(k.step(25, 1, 'full', merge(X, sprinkle(su[h:] + reg, [12, 16, 24, 56, 60]))), set())
    for it, grp in ((13, 0), (14, 1)):
        W = wo_dma(grp)
        emit(k.step(2 * it, 0, 'full', spread(W[:4], [12, 24, 58, 64])), {f'V{it}', f'K{it+1}'})
        if it == 13:
            X = k.kv_extra(13, 1)
            X = {g: L for g, L in X.items()}
            D = G.dma_V(15, (13 + 3) & 3, f's{G.sVsoff}')
            X = {0: [f's_add_u32 m0, s{G.sDma}, {G.LDS_V}', f's_and_b32 s{G.sVsoff}, s{G.sVsoff}, 0x3ffff'], 2: [D[0]], 4: [D[1]], 6: [D[2]], 8: [D[3]], 61: [f's_xor_b32 s{G.sXor}, s{G.sXor}, 0x8000']}
            X = merge(X, spread(W[4:], [12, 16, 20, 58, 64]))
        else:
            X = spread(W[4:], [4, 12, 20, 58, 64])
            X.setdefault(61, []).append(f's_xor_b32 s{G.sXor}, s{G.sXor}, 0x8000')
        emit(k.step(2 * it + 1, 1, 'full', X), set())
    W = wo_dma(2)
    emit(k.step(30, 0, 'nok', spread(W, [12, 16, 24, 44, 48, 52, 56, 60, 64])), {'V15', 'WO0', 'WO1'})
    L31 = k.step(31, 1, 'last')
    W3 = wo_dma(3)
    pos = [i for i, x in enumerate(L31) if x.startswith('v_mfma')]
    cut = pos[0]
    e(L31[:cut])
    e(f's_cmp_eq_u32 s{G.sW}, 3\ns_cbranch_scc1 L_now3', trace=False)
    for g in W3: e([x.split(';')[0] for x in g], trace=False)
    k.p('L_now3:')
    e(L31[cut:])
    k.stamp('p2end')

def poll_dual(k, name, vaddr, soff_reg, nbits):
    e = k.e; T = G.vT
    full = (1 << (1 << nbits)) - 1
    e(f's_mov_b32 s{sCnt}, 0\ns_mov_b32 s{G.sT2}, 0\ns_add_u32 s{G.sT3 if False else 88}, s{soff_reg}, {G.FTWIN}', trace=False)
    k.p(f'L_poll_{name}:')
    e(f'''s_and_b32 s{G.sT1}, s{sCnt}, 7
s_cmp_eq_u32 s{G.sT1}, 7
s_cselect_b32 s89, s{soff_reg}, s88
s_add_u32 s{sCnt}, s{sCnt}, 1
buffer_load_dword v{T+1}, v{vaddr}, s[{G.sWS}:{G.sWS+3}], s89 offen sc1
s_waitcnt vmcnt(0)
v_cmp_eq_u32 vcc, 1, v{T+1}
s_nop 1
s_or_b32 s{G.sT2}, s{G.sT2}, vcc_lo
s_and_b32 s{G.sT1}, s{G.sT2}, {full}
s_cmp_eq_u32 s{G.sT1}, {full}
s_cbranch_scc1 L_pollx_{name}
s_cmp_ge_u32 s{sCnt}, 0x8000
s_cbranch_scc0 L_poll_{name}''', trace=False)
    k.p(f'L_pollx_{name}:')
    k.tr.append('s_waitcnt vmcnt(0)')

def poll(k, name, vaddr, soff_reg):
    e = k.e
    e(f's_mov_b32 s{sCnt}, 0', trace=False)
    k.p(f'L_poll_{name}:')
    e(f'''buffer_load_dword v{G.vT+1}, v{vaddr}, s[{G.sWS}:{G.sWS+3}], s{soff_reg} offen sc1
s_add_u32 s{sCnt}, s{sCnt}, 1
s_waitcnt vmcnt(0)
v_cmp_ne_u32 vcc, 1, v{G.vT+1}
s_cmp_ge_u32 s{sCnt}, 0x4000
s_cbranch_scc1 L_pollx_{name}
s_cbranch_vccz L_pollx_{name}
s_sleep 1
s_branch L_poll_{name}''', trace=False)
    k.p(f'L_pollx_{name}:')
    k.tr.append('s_waitcnt vmcnt(0)')

def set_flag(k, off_vreg, dual=False):
    o = ['s_mov_b64 exec, 1']
    if dual: o.append(f'buffer_store_dword v{vOne}, v{off_vreg}, s[{G.sWS}:{G.sWS+3}], s91 offen')
    o += [f'buffer_store_dword v{vOne}, v{off_vreg}, s[{G.sWS}:{G.sWS+3}], s{sFl} offen sc1', 's_mov_b64 exec, -1']
    return o

vOne = 20; vF1 = 21; vF2a = 24; vF2b = 25
vPk = [32, 68]

def phase3(k):
    e = k.e; T = G.vT; L = G.vLane
    e('s_nop 4')
    rp = [T, T + 2, T + 4, 122]
    sBad = 88
    for qt in range(4): e(f'v_rcp_f32 v{rp[qt]}, v{G.LA(qt)}')
    e(f's_mov_b32 s{G.sT0}, 0x6f800000')
    for qt in range(4):
        e(f'v_cmp_nlt_f32 vcc, v{G.LA(qt)}, v{G.LA(qt)}') if False else None
    e(f'v_mov_b32 v{G.vT2+1}, s{G.sT0}')
    e(f's_mov_b64 s[{sBad}:{sBad+1}], 0')
    for qt in range(4):
        e(f'v_cmp_nlt_f32 vcc, v{G.LA(qt)}, v{G.vT2+1}\ns_nop 0\ns_or_b64 s[{sBad}:{sBad+1}], s[{sBad}:{sBad+1}], vcc')
    e(f'''v_lshlrev_b32 v{vAd}, 4, v{L}
s_lshl_b32 s{sFl}, s{G.sB}, 5
s_add_u32 s{sFl}, s{sFl}, s{G.sH}
s_lshl_b32 s{sOst}, s{sFl}, 2
s_add_u32 s{sOst}, s{sOst}, s{G.sW}
s_lshl_b32 s{sOst}, s{sOst}, 14
s_lshl_b32 s{sFl}, s{sFl}, 7
s_add_u32 s{sFl}, s{sFl}, {G.FBASE}
s_add_u32 s91, s{sFl}, {G.FTWIN}''')
    for qt in range(4): e(f'v_mov_b32 v{rp[qt]+1}, v{rp[qt]}')
    for p in range(9): e(f'v_mov_b32 v{96+p}, v{vWoD+p}')
    for i in range(1, 4): e(f'v_add_u32 v{vAd+i}, {4096*i}, v{vAd}')
    vPr = 108
    prev = None; nprobe = 0
    for ks in range(4):
        for qt in range(4):
            for x in range(2):
                b = G.O(2 * ks + x, qt); r = rp[qt]
                e(f'v_pk_mul_f32 v[{b}:{b+1}], v[{b}:{b+1}], v[{r}:{r+1}]\nv_pk_mul_f32 v[{b+2}:{b+3}], v[{b+2}:{b+3}], v[{r}:{r+1}]')
            if prev is not None:
                e(mfma(vr(vPr, 4), ar(G.aZero, 4), vr(prev, 4), '0' if nprobe == 0 else vr(vPr, 4))); nprobe += 1
            for x in range(2):
                b = G.O(2 * ks + x, qt); d = Own(qt, ks) + 2 * x
                e(f'v_cvt_pk_bf16_f32 v{d}, v{b}, v{b+1}\nv_cvt_pk_bf16_f32 v{d+1}, v{b+2}, v{b+3}')
            if ks == 0 or cfg.early_ost:
                e(f'buffer_store_dwordx4 v[{Own(qt,ks)}:{Own(qt,ks)+3}], v{vAd+qt}, s[{G.sWS}:{G.sWS+3}], s{sOst} offen offset:{ks*1024} sc1')
            prev = Own(qt, ks)
    e('s_nop 1')
    e(mfma(vr(vPr, 4), ar(G.aZero, 4), vr(prev, 4), vr(vPr, 4)))
    ost = [f'buffer_store_dwordx4 v[{Own(qt,ks)}:{Own(qt,ks)+3}], v{vAd+qt}, s[{G.sWS}:{G.sWS+3}], s{sOst} offen offset:{ks*1024} sc1' for ks in range(1, 4) for qt in range(4)]
    if cfg.early_ost: ost = []
    e(f'''s_lshl_b32 s{G.sT0}, s{G.sW}, 2
s_add_u32 s{G.sT0}, s{G.sT0}, 64512
v_mov_b32 v{T}, s{G.sT0}
v_mov_b32 v{vOne}, 1
s_nop 3
v_cmp_u_f32 vcc, v{vPr}, v{vPr}
s_nop 0
s_or_b64 s[{sBad}:{sBad+1}], s[{sBad}:{sBad+1}], vcc
s_cmp_lg_u64 s[{sBad}:{sBad+1}], 0
s_cselect_b32 s{G.sT0}, 1, 0
v_mov_b32 v{T+1}, s{G.sT0}
ds_write_b32 v{T}, v{T+1}
v_mov_b32 v{T+2}, 64512''')
    n = k.vm_need({'WO2', 'REG'})
    e(f's_cmp_eq_u32 s{G.sW}, 3\ns_cbranch_scc1 L_vw3\ns_waitcnt vmcnt({n+9}) lgkmcnt(0)\ns_branch L_vw4', trace=False)
    k.p('L_vw3:')
    e(f's_waitcnt vmcnt({n}) lgkmcnt(0)')
    k.p('L_vw4:')
    e('s_barrier')
    e(f'ds_read_b128 v[124:127], v{T+2}')
    e(f'v_readfirstlane_b32 s90, v{G.vT2}')
    k.stamp('p3pk')
    e(f'''v_lshrrev_b32 v30, 4, v{L}
v_bfe_u32 v31, v{L}, 2, 2
v_lshl_add_u32 v30, v30, 2, v31
v_mul_u32_u24 v30, 288, v30
v_and_b32 v31, 3, v{L}
v_lshl_add_u32 v{vR}, v31, 3, v30
v_add_u32 v{vR+1}, 61440, v{vR}
v_add_u32 v{vR+2}, 122880, v{vR}
v_mov_b32 v{vOne}, 1
s_lshl_b32 s{G.sT0}, s{G.sW}, 2
v_mov_b32 v{vF1}, s{G.sT0}
s_lshl_b32 s{G.sT0}, s{G.sW}, 3
s_add_u32 s{G.sT0}, s{G.sT0}, 16
v_mov_b32 v{vF2a}, s{G.sT0}
s_add_u32 s{G.sT0}, s{G.sT0}, 4
v_mov_b32 v{vF2b}, s{G.sT0}''')
    e(f'''s_waitcnt lgkmcnt(0)
v_or_b32 v124, v124, v125
v_or3_b32 v124, v124, v126, v127
s_nop 0
v_readfirstlane_b32 s{G.sT0}, v124
s_andn2_b32 s{G.sT0}, s{G.sT0}, s{G.sMode}
s_cmp_lg_u32 s{G.sT0}, 0
s_cbranch_scc1 L_fallback''')
    assert cfg.early_ost
    e(f's_cmp_eq_u32 s{G.sW}, 3\ns_cbranch_scc0 L_no315', trace=False)
    for g in wo_dma(3, 96): e([x.split(';')[0] for x in g], trace=False)
    k.p('L_no315:')
    def a_read(c, nt, slot):
        base = rbase(REG[c]); idx = base // 61440
        return [f'ds_read_b64_tr_b16 a[{aA+4*slot+2*u}:{aA+4*slot+2*u+1}], v{vR+idx} offset:{base-61440*idx+u*4608+nt*32}' for u in range(2)]
    seq = [(c, nt, (0, 1, 2, 3)) for c in range(4) for nt in range(9)]
    seq += [(c, nt, (0, 1)) for c in range(4, 16) for nt in range(9)]
    seq += [(c, nt, (2, 3)) for c in range(4, 16) for nt in range(9)]
    AH_OWN, AH = 6, 8
    for i in range(AH_OWN): e(a_read(seq[i][0], seq[i][1], i % 16))
    for hp in range(3):
        e(f'''s_add_u32 s{G.sT0}, s{G.sNb}, {hp+1}
s_and_b32 s{G.sT0}, s{G.sT0}, 3
s_lshl_b32 s{G.sT1}, s{G.sKg}, 2
s_add_u32 s{G.sT0}, s{G.sT0}, s{G.sT1}
s_lshl_b32 s{G.sT1}, s{G.sB}, 5
s_add_u32 s{G.sT0}, s{G.sT0}, s{G.sT1}
s_lshl_b32 s{G.sT0}, s{G.sT0}, 2
s_add_u32 s{G.sT0}, s{G.sT0}, s{G.sW}
s_lshl_b32 s{sPh+hp}, s{G.sT0}, 14''')
    k.stamp('p3go')
    def part_load(hp, qt, ks):
        return f'buffer_load_dwordx4 a[{Part(hp,qt,ks)}:{Part(hp,qt,ks)+3}], v{vAd+qt}, s[{G.sWS}:{G.sWS+3}], s{sPh+hp} offen offset:{ks*1024}'
    loads = [[part_load(hp, qt, ks) for ks in range(4) for qt in (2 * half, 2 * half + 1)] for half in range(2) for hp in range(3)]
    paddr = f'''s_lshl_b32 s{G.sT0}, s{G.sB}, 2
s_add_u32 s{G.sT0}, s{G.sT0}, s{G.sNb}
s_lshl_b32 s{G.sT0}, s{G.sT0}, 3
s_lshl_b32 s{G.sT1}, s{G.sW}, 1
s_add_u32 s{G.sT1}, s{G.sT0}, s{G.sT1}
s_lshl_b32 s{G.sT1}, s{G.sT1}, 3
s_add_u32 s{G.sT1}, s{G.sT1}, s{G.sKg}
s_mul_i32 s{sPst}, s{G.sT1}, 9216
s_add_u32 s{sPst}, s{sPst}, {G.PBASE}
s_add_u32 s{sOst}, s{sPst}, {8*9216}
s_add_u32 s{G.sT0}, s{G.sT0}, s{G.sKg}
s_mul_i32 s{G.sT3}, s{G.sT0}, {8*9216}
s_add_u32 s{G.sT3}, s{G.sT3}, {G.PBASE}'''
    def pack_store(half, nt):
        d = vPk[half] + 4 * nt
        Lx = []
        for x in range(2):
            b = D(nt, 2 * half + x)
            Lx += [f'v_cvt_pk_bf16_f32 v{d+2*x}, v{b}, v{b+1}', f'v_cvt_pk_bf16_f32 v{d+2*x+1}, v{b+2}, v{b+3}']
        st = f'buffer_store_dwordx4 v[{d}:{d+3}], v{vAd+nt//4}, s[{G.sWS}:{G.sWS+3}], s{sPst if half == 0 else sOst} offen offset:{(nt%4)*1024} sc1'
        return Lx, st
    issued = AH_OWN
    SPL, POL = cfg.own_split
    seg_bounds = [(0, 9 * SPL), (9 * SPL, 9 * POL), (9 * POL, 36), (36, 144), (144, 252)]
    extra = {}
    def place(i0, items, every):
        for n_, it_ in enumerate(items):
            extra.setdefault(i0 + n_ * every, []).append(it_ if isinstance(it_, list) else [it_])
    if ost: place(1, ost, max(1, (9 * SPL - 2) // len(ost)))
    place(36 + 1, loads[2], 1)
    place(36 + 18, loads[3], cfg.l3_every)
    place(36 + 70, loads[4], 2)
    place(36 + 88, loads[5], 2)
    for seg, (lo, hi) in enumerate(seg_bounds):
        if seg == 1:
            nn = k.vm_need({'OST'})
            e(f's_cmp_eq_u32 s{G.sW}, 3\ns_cbranch_scc1 L_ow3\ns_waitcnt vmcnt({nn})\ns_branch L_ow4', trace=False)
            k.p('L_ow3:')
            e(f's_waitcnt vmcnt({nn+9})', trace=False)
            k.p('L_ow4:')
            k.tr.append(f's_waitcnt vmcnt({nn})')
            e(set_flag(k, vF1, dual=cfg.dualflag))
            k.stamp('p3d1')
            e(paddr)
        if seg == 2:
            e(f's_mov_b32 s{G.sT2}, s90')
            k.p('L_regchk:')
            e(f's_cmp_ge_u32 s{G.sT2}, 32\ns_cbranch_scc1 L_regok')
            e(f'''s_add_u32 s{G.sPass}, s{G.sPass}, 1
s_cmp_ge_u32 s{G.sPass}, 0x4000
s_cbranch_scc1 L_regok
s_lshl_b32 s{G.sT0}, s{G.sB}, 5
v_mov_b32 v{G.vT2}, s{G.sT0}
s_sleep 1
global_load_dword v{G.vT2}, v{G.vT2}, s[16:17] sc1
s_waitcnt vmcnt(0)
v_readfirstlane_b32 s{G.sT2}, v{G.vT2}
s_branch L_regchk''', trace=False)
            k.p('L_regok:')
            e(f'''v_and_b32 v{T}, 3, v{L}
s_lshl_b32 s{G.sT0}, s{G.sKg}, 2
v_add_u32 v{T}, s{G.sT0}, v{T}
v_lshlrev_b32 v{T}, 7, v{T}
v_add_u32 v{T}, v{T}, v{vF1}
s_lshl_b32 s{G.sT0}, s{G.sB}, 12
s_add_u32 s{G.sT0}, s{G.sT0}, {G.FBASE}''')
            if cfg.dualflag:
                poll_dual(k, 'f1', T, G.sT0, 2)
            else: poll(k, 'f1', T, G.sT0)
            k.stamp('p3f1')
            for x in loads[0] + loads[1]: e(x)
        for i in range(lo, hi):
            c, nt, qts = seq[i]
            half = 0 if seg == 3 else 1
            slot = i % 16
            ah = AH_OWN if seg < 3 else AH
            rd = []
            while issued < min(len(seq), i + ah + 1):
                rd += a_read(seq[issued][0], seq[issued][1], issued % 16); issued += 1
            younger = 2 * (issued - len(rd) // 2 - 1 - i)
            pre = [f's_waitcnt lgkmcnt({min(15, younger)})']
            if seg >= 3 and nt == 0:
                pre.append(f's_waitcnt vmcnt({k.vm_need({f"PH{(c>>2)-1}_{half}_{c&3}"})})')
                if seg == 3 and c == 9: pre.append('s_barrier')
            mf = []
            for qt in qts:
                Bop = vr(Own(qt, c), 4) if c < 4 else ar(Part((c >> 2) - 1, qt, c & 3), 4)
                Cop = '0' if c == 0 else vr(D(nt, qt), 4)
                mf.append(mfma(vr(D(nt, qt), 4), ar(aA + 4 * slot, 4), Bop, Cop))
            e(pre)
            e(mf[0]); e(rd)
            e(mf[1])
            for x in extra.pop(i, []): e(x)
            for m in mf[2:]: e(m)
        k.stamp(f'p3seg{seg}')
        if seg == 3:
            e('s_nop 4')
            px = []
            for nt in range(9):
                Lx, st = pack_store(0, nt); e(Lx); px.append(st)
            place(144 + 1, px, cfg.ps0_every)
        if seg == 4:
            e('s_nop 4')
            for nt in range(9):
                Lx, st = pack_store(1, nt); e(Lx); e(st)
            nn = k.vm_need({'PS0'})
            e(f's_waitcnt vmcnt({nn})'); e(set_flag(k, vF2a, dual=cfg.dualflag))
    assert not extra, extra.keys()
    k.stamp('p3mm')
    nn = k.vm_need({'PS1'})
    e(f's_waitcnt vmcnt({nn})'); e(set_flag(k, vF2b, dual=cfg.dualflag))
    k.stamp('p3st')
    e(f'''v_and_b32 v{T}, 7, v{L}
v_lshlrev_b32 v{T}, 2, v{T}
v_add_u32 v{T}, s{G.sNb}, v{T}
v_lshlrev_b32 v{T}, 7, v{T}
s_lshl_b32 s{G.sT0}, s{G.sKg}, 2
s_add_u32 s{G.sT0}, s{G.sT0}, 16
v_add_u32 v{T}, s{G.sT0}, v{T}
s_lshl_b32 s{G.sT0}, s{G.sB}, 12
s_add_u32 s{G.sT0}, s{G.sT0}, {G.FBASE}
v_lshlrev_b32 v{vAd}, 4, v{L}
s_lshl_b32 s{G.sT1}, s{G.sW}, 10
v_add_u32 v{vAd}, s{G.sT1}, v{vAd}
v_add_u32 v{vAd+1}, 4096, v{vAd}
v_add_u32 v{vAd+2}, 8192, v{vAd}
s_cmp_ge_u32 s{G.sW}, 1
s_cselect_b32 s{G.sT1}, 0x40000000, 0
v_add_u32 v{vAd+2}, s{G.sT1}, v{vAd+2}''')
    if cfg.dualflag: poll_dual(k, 'f2', T, G.sT0, 3)
    else: poll(k, 'f2', T, G.sT0)
    k.stamp('p3f2')
    R = 112; SUM = 208
    for i in range(3):
        for src in range(8):
            b = R + (i * 8 + src) * 4
            e(f's_add_u32 s{G.sT1}, s{G.sT3}, {src*9216}')
            e(f'buffer_load_dwordx4 v[{b}:{b+3}], v{vAd+i}, s[{G.sWS}:{G.sWS+3}], s{G.sT1} offen')
    e(f'''v_and_b32 v{T}, 15, v{L}
v_mul_u32_u24 v{T}, 1152, v{T}
v_lshrrev_b32 v{T+1}, 4, v{L}
v_lshl_add_u32 v{T}, v{T+1}, 3, v{T}
v_add_u32 v{T+1}, {16*1152}, v{T}
s_lshl_b32 s{G.sT0}, s{G.sB}, 3
s_add_u32 s{G.sT0}, s{G.sT0}, s{G.sKg}
s_mul_i32 s{G.sT0}, s{G.sT0}, {32*1152}
s_mul_i32 s{G.sT1}, s{G.sNb}, 288
s_add_u32 s{G.sT0}, s{G.sT0}, s{G.sT1}
s_lshl_b32 s{G.sT1}, s{G.sW}, 5
s_add_u32 s{G.sT0}, s{G.sT0}, s{G.sT1}
s_mov_b32 s{G.sT1}, 0x00003f80
s_mov_b32 s{G.sT2}, 0x3f800000''')
    k.stamp('p3fi')
    for i in range(3):
        nn = k.vm_need({f'FIN{i}'})
        e(f's_waitcnt vmcnt({nn})')
        s_ = SUM + 8 * i
        for src in range(8):
            b = R + (i * 8 + src) * 4
            for j in range(4):
                for hi_ in range(2):
                    acc = s_ + 2 * j + hi_
                    e(f'v_dot2_f32_bf16 v{acc}, v{b+j}, s{G.sT1+hi_}, {"0" if src == 0 else f"v{acc}"}')
        e('s_nop 2')
        for j in range(4): e(f'v_cvt_pk_bf16_f32 v{b+j}, v{s_+2*j}, v{s_+2*j+1}')
        if i == 2:
            e(f's_cmp_ge_u32 s{G.sW}, 1\ns_cselect_b32 s{G.sT3}, 0x7ffff000, s{G.sT0}')
        so = G.sT0 if i < 2 else G.sT3
        e(f'buffer_store_dwordx2 v[{b}:{b+1}], v{T}, s[{G.sOut}:{G.sOut+3}], s{so} offen offset:{128*i}{cfg.out_flag}')
        e(f'buffer_store_dwordx2 v[{b+2}:{b+3}], v{T+1}, s[{G.sOut}:{G.sOut+3}], s{so} offen offset:{128*i}{cfg.out_flag}')
```

```python
import sys, math, struct
from asmlib import *

NAME = 'standalone__mha_block_cached__near_ridge'

class Cfg:
    stamps = False
    kv_flag = ' nt'
    x_flag = ''
    w_flag = ''
    wo_flag = ''
    force_safe = False
    ablate = ''
    l1inv = False
    codepf = True
    w4 = False
    wmall = False
    rot = True
    pad = 0
    dbgstamps = 0
    mapx = True
    dualflag = True
    out_flag = ''
    bswap = 0
    coop_pre = (0, 1, 2, 3, 4, 5, 6, 7, 8)
    coop_mid = ()
    coop_skip = ()
    coop_wait = None
    early_ost = True
    own_split = (2, 3)
    ps0_every = 8
    l3_every = 6
    kv_same = False
cfg = Cfg()

sW = 3
sX, sWq, sK, sV, sWS, sWo, sOut = 20, 24, 28, 32, 36, 40, 44
sW4K = 48; sKsoff = 49; sVsoff = 50; sDma = 51; sXor = 52; sIter = 53
sT0, sT1, sT2, sT3 = 54, 55, 56, 57
sC = 58
sXsoff = 60; sWsoff = 61; sW8K = 62; sDelta = 63
sB = 64; sH = 65; sJ = 66; sMode = 67
sKg = 68; sNb = 69; sRot = 70; sPass = 71
sStamp = 72

vLane = 1
vT = 2
vKA = 8
vVA = 12
vDK = 20
vDV = 24
vMG = 26
vT2 = 30
vS = 32
vC = 64
vP = 80
vL = 96
vXA = 112; vWA = 114
vWB = 120
vCo = 118
vOX = 32; vOW = 40
vWoD = 112
vWoR = 121
vAcc = 128
aQ = 0; aKf = 64; aVf = 96; aOnes = 252; aZero = 188
aPA = 96; aPB = 64

def O(dt, qt): return vAcc + (dt * 4 + qt) * 4
def S(qt, kt): return vS + qt * 8 + kt * 4
def CI(qt): return vC + 4 * qt
def P(qt): return vP + 4 * qt
def LA(qt): return vL + 4 * qt
def Qf(qt, ds): return aQ + (qt * 4 + ds) * 4
def Kf(m): return aKf + 4 * m
def Vf(dt): return aVf + 4 * dt

LDS_V = 65536
XS = [32768, 81920]
WS = [114688, 131072, 147456, 16384]
def NWS(): return 4 if cfg.mapx and cfg.w4 else 3
OBASE = 0
PBASE = 16 << 20
FBASE = 60 << 20
FTWIN = 1 << 16
STAMPBASE = 64 << 20

def kb(fn): return ','.join(str(fn(w) // 1024) for w in range(4))
def stamp_reg(i): return [72, 76, 80, 4, 8, 12, 92][i]
def mfma(d, a, b, c): return f'v_mfma_f32_16x16x32_bf16 {d}, {a}, {b}, {c}'

class Slots:
    def __init__(self, n):
        self.pre = [[] for _ in range(n)]
        self.post = [[] for _ in range(n)]
        self.mf = [None] * n
    def out(self):
        o = []
        for i in range(len(self.mf)):
            o += self.pre[i]
            if self.mf[i]: o.append(self.mf[i])
            o += self.post[i]
        return o
    def load(self):
        def cost(x):
            mn = x.split()[0]
            if mn.startswith('v_exp') or mn.startswith('v_rcp'): return 8
            return 4
        n = len(self.mf); res = []
        for i in range(n):
            g = self.post[i] + (self.pre[i + 1] if i + 1 < n else [])
            res.append(sum(cost(x) for x in g))
        return res

def dma_K(tile, slot, soff):
    L = []
    for p in range(4):
        a = lambda w, p=p: slot * 16384 + w * 4096 + p * 1024
        L.append(f'buffer_load_dwordx4 v{vDK+p}, s[{sK}:{sK+3}], {soff} offen offset:{p*1024}{cfg.kv_flag} lds ; @dma K{tile} {kb(a)}')
    return L
def dma_V(tile, slot, soff):
    L = []
    for p in range(4):
        a = lambda w, p=p: LDS_V + slot * 16384 + w * 4096 + p * 1024
        L.append(f'buffer_load_dwordx4 v{vDV+(p&1)}, s[{sV}:{sV+3}], {soff} offen offset:{p*1024}{cfg.kv_flag} lds ; @dma V{tile} {kb(a)}')
    return L

def dma_W(c):
    G = []
    for p in range(4):
        a = lambda w, p=p: WS[c % NWS()] + w * 4096 + p * 1024
        ins = f'buffer_load_dwordx4 v{vOW+p}, s[{sWq}:{sWq+3}], s{sWsoff} offen offset:{p*1024}{cfg.w_flag} lds ; @dma W{c} {kb(a)}'
        g = [ins]
        if p == 0: g = [f's_add_u32 m0, s{sW4K}, {WS[c%NWS()]}', f's_mov_b32 s{sWsoff}, {c*524288}', ins]
        G.append(g)
    return G
def dma_X(c):
    G = []
    for p in range(8):
        a = lambda w, p=p: XS[c % 2] + w * 8192 + p * 1024
        ins = f'buffer_load_dwordx4 v{vOX+p}, s[{sX}:{sX+3}], s{sXsoff} offen offset:{(p&3)*1024}{cfg.x_flag} lds ; @dma X{c} {kb(a)} priv'
        g = [ins]
        if p == 0: g = [f's_add_u32 m0, s{sW8K}, {XS[c%2]}', f's_mov_b32 s{sXsoff}, {c*128}', ins]
        if p == 4: g = [f's_add_u32 m0, s{sW8K}, {XS[c%2]+4096}', 's_nop 0', ins]
        G.append(g)
    return G

def kv_dma_addr():
    T = vT; L = vLane
    o = f'''v_lshrrev_b32 v{T+1}, 4, v{L}
v_and_b32 v{T+3}, 15, v{L}
v_mov_b32 v{T+4}, v{T+1}'''.split('\n')
    for p in range(4):
        o += [f'v_add_u32 v{T+2}, {4*p}, v{T+1}', f'v_xor_b32 v{T+2}, v{T+2}, v{T+3}', f'v_lshlrev_b32 v{T+2}, 4, v{T+2}', f'v_lshl_add_u32 v{vDK+p}, v{T+4}, 8, v{T+2}']
    for par in range(2):
        o += [f'v_add_u32 v{T+2}, {4*par}, v{T+1}', f'v_lshlrev_b32 v{T+2}, 1, v{T+2}', f'v_xor_b32 v{T+2}, v{T+2}, v{T+3}', f'v_lshlrev_b32 v{T+2}, 4, v{T+2}', f'v_lshl_add_u32 v{vDV+par}, v{T+4}, 8, v{T+2}']
    return o
def kv_read_addr():
    T = vT; L = vLane
    o = [f'v_lshrrev_b32 v{T}, 4, v{L}', f'v_bfe_u32 v{T+1}, v{L}, 2, 2', f'v_and_b32 v{T+2}, 3, v{L}', f'v_and_b32 v{T+3}, 15, v{L}',
         f'v_lshlrev_b32 v{T+4}, 8, v{T+3}']
    for ds in range(4):
        o += [f'v_add_u32 v{T+5}, {4*ds}, v{T}', f'v_xor_b32 v{T+5}, v{T+5}, v{T+3}', f'v_lshl_add_u32 v{vKA+ds}, v{T+5}, 4, v{T+4}']
    o += f'''v_lshl_add_u32 v{T+4}, v{T}, 2, v{T+1}
v_and_b32 v{vT2}, 7, v{T+4}
v_lshlrev_b32 v{vT2}, 1, v{vT2}
v_lshlrev_b32 v{T+4}, 8, v{T+4}
v_and_b32 v{T+5}, 1, v{T+2}
v_lshl_add_u32 v{T+4}, v{T+5}, 3, v{T+4}
v_add_u32 v{T+4}, {LDS_V}, v{T+4}
v_lshrrev_b32 v{vT2+1}, 1, v{T+2}'''.split('\n')
    for dt in range(8):
        o += [f'v_add_u32 v{T+5}, {2*dt}, v{vT2+1}', f'v_xor_b32 v{T+5}, v{T+5}, v{vT2}', f'v_lshl_add_u32 v{vVA+dt}, v{T+5}, 4, v{T+4}']
    return o

def p1_reads(c, n, buf):
    A = aPA + buf * 32; B = aPB + buf * 16
    def W(dt, u):
        ds, x = dt >> 1, dt & 1
        st = c % NWS()
        reg, so = (vWA + ds, st * 16384) if st < 3 else (vWB + ds, 0)
        return f'ds_read_b64_tr_b16 a[{A+4*dt+2*u}:{A+4*dt+2*u+1}], v{reg} offset:{so+(32*n+4*u)*256+8*x} ; @rd W{c}'
    def X(qt): return f'ds_read_b128 a[{B+4*qt}:{B+4*qt+3}], v{vXA+n} offset:{(c%2)*49152+qt*2048} ; @rd X{c}'
    R = [X(0), W(0, 0), W(0, 1), X(1), X(2), X(3)]
    for dt in range(1, 8): R += [W(dt, 0), W(dt, 1)]
    return R

def p1_kstep(k, c, n, groups, last=False):
    Sl = Slots(32)
    buf = n & 1
    for m in range(32):
        dt, qt = m >> 2, m & 3
        Sl.mf[m] = mfma(vr(O(dt, qt), 4), ar(aPA + buf * 32 + 4 * dt, 4), ar(aPB + buf * 16 + 4 * qt, 4), '0' if (c == 0 and n == 0) else vr(O(dt, qt), 4))
    if n == 0: R = p1_reads(c, 1, 1)
    else: R = [] if last else p1_reads(c + 1, 0, 0)
    if n == 1:
        vm = (k.vm_need({f'X{c+1}', f'W{c+1}'}) if not cfg.ablate else 20) if not last else 63
        Sl.pre[0] += [f's_waitcnt vmcnt({vm}) lgkmcnt(0)', 's_barrier']
    else: Sl.pre[0] += ['s_waitcnt lgkmcnt(0)']
    ab = cfg.ablate
    if 'p1rd' in ab: R = []
    if 'p1x' in ab: groups = [[x for x in g if '@dma X' not in x] for g in groups]
    if 'p1w' in ab: groups = [[x for x in g if '@dma W' not in x] for g in groups]
    if 'p1kv' in ab: groups = [[x for x in g if '@dma K' not in x and '@dma V' not in x] for g in groups]
    for i, r in enumerate(R): Sl.post[2 * (i // 2)].append(r)
    if groups:
        nn = len(groups)
        for i, g in enumerate(groups):
            Sl.post[min(31, 1 + 2 * ((i * 16) // nn))] += g
    return Sl.out()

class Kernel:
    def __init__(self):
        self.p = Prog(); self.tr = []; self.nstamp = 0; self.q = []
    def e(self, s, text=True, trace=True):
        if isinstance(s, str): s = [x.strip() for x in s.split('\n') if x.strip()]
        if text: self.p(s)
        if trace: self.tr.extend(s)
    def stamp(self, name):
        if cfg.stamps and name in cfg.stamps:
            i = cfg.stamps.index(name); b = stamp_reg(i)
            self.e(f's_memrealtime s[{b}:{b+1}]\ns_memtime s[{b+2}:{b+3}]')
            self.nstamp = max(self.nstamp, i + 1)
    def vm_need(self, tags):
        q = []
        for line in self.tr:
            code, _, com = line.partition(';')
            mn = code.split()[0] if code.split() else ''
            if mn.startswith('buffer_') and mn not in ('buffer_inv', 'buffer_wbl2') or mn.startswith('global_'):
                t = None
                a = com.split()
                if '@dma' in a: t = a[a.index('@dma') + 1]
                elif '@tag' in a: t = a[a.index('@tag') + 1]
                q.append(t)
        for t in tags: assert t in q, f'tag {t} was never issued'
        last = max((i for i, t in enumerate(q) if t in tags), default=-1)
        return min(63, len(q) - 1 - last)

    def header(self):
        self.p(f'; @launch grid=(256,1,1) block=(256,1,1) lds=163840')
        if cfg.stamps: self.p('; stamps: ' + ','.join(cfg.stamps))
        self.p('.amdgcn_target "amdgcn-amd-amdhsa--gfx950"\n.text')
        self.p(f'.globl {NAME}_kernel\n.p2align 8\n.type {NAME}_kernel,@function\n{NAME}_kernel:')
    def footer(self):
        self.p('L_end:\ns_endpgm')
        self.p('.p2align 6\nL_codeend:')
        self.p('.section .rodata,"a"\n.p2align 6')
        self.p(f'.amdhsa_kernel {NAME}_kernel')
        self.p('''.amdhsa_next_free_vgpr 512
.amdhsa_next_free_sgpr 102
.amdhsa_accum_offset 256
.amdhsa_group_segment_fixed_size 0
.amdhsa_kernarg_size 64
.amdhsa_user_sgpr_count 2
.amdhsa_user_sgpr_kernarg_segment_ptr 1
.amdhsa_system_sgpr_workgroup_id_x 1
.end_amdhsa_kernel''')

    def setup(self):
        e = self.e
        e('s_cmp_ge_u32 s2, 256\ns_cbranch_scc1 L_end')
        self.stamp('entry')
        e(f's_load_dwordx16 s[4:19], s[0:1], 0')
        e(f'''v_and_b32 v{vLane}, 63, v0
v_lshrrev_b32 v{vT}, 6, v0
s_and_b32 s{sT0}, s2, 7
s_lshr_b32 s{sJ}, s2, 3
v_readfirstlane_b32 s{sW}, v{vT}
s_and_b32 s{sB}, s{sT0}, 1
s_xor_b32 s{sB}, s{sB}, {cfg.bswap}
s_lshl_b32 s{sB}, s{sB}, 2
s_and_b32 s{sT1}, s{sJ}, 3
s_add_u32 s{sB}, s{sB}, s{sT1}
s_lshr_b32 s{sH}, s{sT0}, 1
s_lshl_b32 s{sH}, s{sH}, 3
s_lshr_b32 s{sT1}, s{sJ}, 2
s_add_u32 s{sH}, s{sH}, s{sT1}
MAPX
s_lshr_b32 s{sKg}, s{sH}, 2
s_and_b32 s{sNb}, s{sH}, 3
s_lshl_b32 s{sW4K}, s{sW}, 12
ROT
'''.replace('ROT', f's_add_u32 s{sRot}, s{sH}, s{sB}\ns_and_b32 s{sRot}, s{sRot}, 15\ns_lshl_b32 s{sRot}, s{sRot}, 14\ns_add_u32 s{sRot}, s{sRot}, s{sW4K}' if cfg.rot else f's_mov_b32 s{sRot}, s{sW4K}').replace('MAPX', f's_mov_b32 s{sB}, s{sT0}\ns_mov_b32 s{sH}, s{sJ}' if cfg.mapx else 's_nop 0'))
        L = vLane; T = vT
        e(f'''v_lshrrev_b32 v{T}, 3, v{L}
s_lshl_b32 s{sT0}, s{sW}, 6
v_add_u32 v{T}, s{sT0}, v{T}
v_mul_u32_u24 v{T}, 1152, v{T}
v_lshrrev_b32 v{T+1}, 4, v{L}
v_and_b32 v{T+2}, 7, v{L}
v_xor_b32 v{T+3}, v{T+2}, v{T+1}
v_xor_b32 v{T+4}, 4, v{T+3}
v_lshl_add_u32 v{T+3}, v{T+3}, 4, v{T}
v_lshl_add_u32 v{T+4}, v{T+4}, 4, v{T}''')
        for p in range(8):
            e(f'v_add_u32 v{vOX+p}, {p*9216 - (p&3)*1024}, v{T+3+(p&1)}')
        e(f'''v_lshlrev_b32 v{T+2}, 2, v{T+1}
v_and_b32 v{T+3}, 15, v{L}
v_xor_b32 v{T+2}, v{T+2}, v{T+3}
v_lshlrev_b32 v{T+2}, 4, v{T+2}
s_lshl_b32 s{sT0}, s{sW}, 4
v_add_u32 v{T+4}, s{sT0}, v{T+1}
v_lshl_add_u32 v{T+5}, v{T+4}, 13, v{T+2}''')
        for p in range(4):
            e(f'v_add_u32 v{vOW+p}, {p*(32768-1024)}, v{T+5}')
        e(f'''v_lshrrev_b32 v{T+5}, 3, v{L}
s_lshr_b32 s{sT0}, s{sJ}, 2
s_lshl_b32 s{sT0}, s{sT0}, 5
s_lshl_b32 s{sT1}, s{sW}, 3
s_add_u32 s{sT0}, s{sT0}, s{sT1}
v_add_u32 v{T+5}, s{sT0}, v{T+5}
v_mul_u32_u24 v{T+5}, 1152, v{T+5}
v_and_b32 v{T+2}, 7, v{L}
v_lshl_add_u32 v{vCo}, v{T+2}, 4, v{T+5}
s_and_b32 s{sT0}, s{sJ}, 3
s_lshl_b32 s{sT0}, s{sT0}, 4
s_lshl_b32 s{sT1}, s{sW}, 2
s_add_u32 s{sT0}, s{sT0}, s{sT1}
v_add_u32 v{T+5}, s{sT0}, v{T+1}
v_lshlrev_b32 v{T+5}, 13, v{T+5}
v_and_b32 v{T+2}, 15, v{L}
v_lshl_add_u32 v{vCo+1}, v{T+2}, 4, v{T+5}''')
        if cfg.mapx:
            e(f'''v_lshrrev_b32 v{T+5}, 3, v{L}
s_lshl_b32 s{sT0}, s{sJ}, 3
v_add_u32 v{T+5}, s{sT0}, v{T+5}
v_mul_u32_u24 v{T+5}, 1152, v{T+5}
v_and_b32 v{T+2}, 7, v{L}
v_lshl_add_u32 v{vCo}, v{T+2}, 4, v{T+5}''')
        e('s_waitcnt lgkmcnt(0)')
        self.stamp('karg')
        if cfg.l1inv:
            e(f's_cmp_eq_u32 s{sW}, 0\ns_cbranch_scc0 L_noinv\nbuffer_inv sc1', trace=False)
            self.p('L_noinv:')
        e(f'''s_mul_i32 s{sT0}, s{sB}, 294912
s_add_u32 s{sX}, s4, s{sT0}
s_addc_u32 s{sX+1}, s5, 0
s_mov_b32 s{sX+2}, 294912
s_mov_b32 s{sX+3}, 0x20000
s_lshl_b32 s{sT0}, s{sH}, 8
s_add_u32 s{sWq}, s10, s{sT0}
s_addc_u32 s{sWq+1}, s11, 0
s_sub_u32 s{sWq+2}, 4718592, s{sT0}
s_mov_b32 s{sWq+3}, 0x20000
s_mov_b32 s{sWS}, s18
s_mov_b32 s{sWS+1}, s19
s_mov_b32 s{sWS+2}, 0x8000000
s_mov_b32 s{sWS+3}, 0x20000''')
        e(f's_lshl_b32 s{sW8K}, s{sW}, 13')
        def coop(c):
            if cfg.mapx:
                if c >= 3: return []
                d = 44 + 4 * c
                return [f's_lshl_b32 s{sT1}, s{sW}, 7', f'buffer_load_dwordx4 v[{d}:{d+3}], v{vCo}, s[{sX}:{sX+3}], s{sT1} offen offset:{c*512} ; @tag CO{c}']
            d = 44 + 8 * c if c < 6 else 96 + 8 * (c - 6) if c < 8 else 120
            return [f's_mov_b32 s{sT1}, {c*524288}', f'buffer_load_dwordx4 v[{d}:{d+3}], v{vCo+1}, s[{sWq}:{sWq+3}], s{sT1} offen ; @tag CO{c}',
                    f'buffer_load_dwordx4 v[{d+4}:{d+7}], v{vCo}, s[{sX}:{sX+3}], 0 offen offset:{c*128} ; @tag CO{c}']
        for c in cfg.coop_pre: e(coop(c))
        self.coop = coop
        if cfg.codepf:
            e(f'''s_getpc_b64 s[{sT2}:{sT2+1}]
L_pc:
s_and_b32 s{sT2}, s{sT2}, 0xffffff00
s_sub_u32 s{sT2}, s{sT2}, CODEOFF
s_subb_u32 s{sT3}, s{sT3}, 0
v_and_b32 v{T+5}, 15, v{L}
s_lshl_b32 s{sT0}, s{sJ}, 4
v_add_u32 v{T+5}, s{sT0}, v{T+5}
v_lshlrev_b32 v{T+5}, 7, v{T+5}
v_min_u32 v{T+5}, CODELEN, v{T+5}
global_load_dword v92, v{T+5}, s[{sT2}:{sT2+1}]''')
        self.stamp('dma0')
        e(f'''s_lshl_b32 s{sT0}, s{sB}, 5
s_add_u32 s{sT0}, s{sT0}, s{sH}
s_lshl_b32 s{sT0}, s{sT0}, 18''')
        if cfg.kv_same: e(f's_mov_b32 s{sT0}, 0')
        e(f'''s_add_u32 s{sK}, s6, s{sT0}
s_addc_u32 s{sK+1}, s7, 0
s_mov_b32 s{sK+2}, 262144
s_mov_b32 s{sK+3}, 0x20000
s_add_u32 s{sV}, s8, s{sT0}
s_addc_u32 s{sV+1}, s9, 0
s_mov_b32 s{sV+2}, 262144
s_mov_b32 s{sV+3}, 0x20000''')
        e(f'''s_mul_i32 s{sT0}, s{sKg}, {512*1152}
s_mul_i32 s{sT1}, s{sNb}, 288
s_add_u32 s{sT0}, s{sT0}, s{sT1}
s_add_u32 s{sWo}, s12, s{sT0}
s_addc_u32 s{sWo+1}, s13, 0
s_sub_u32 s{sWo+2}, 4718592, s{sT0}
s_mov_b32 s{sWo+3}, 0x20000
s_mov_b32 s{sOut}, s14
s_mov_b32 s{sOut+1}, s15
s_mov_b32 s{sOut+2}, 2359296
s_mov_b32 s{sOut+3}, 0x20000''')
        e(kv_dma_addr())
        self.stamp('cw0')
        if cfg.coop_wait is not None: e(f's_waitcnt vmcnt({self.vm_need({f"CO{cfg.coop_wait}"})})')
        self.stamp('cw1')
        for g in dma_W(0) + dma_X(0): e(g)
        for c in cfg.coop_mid: e(self.coop(c))
        self.stamp('d0')
        e(f'''v_lshrrev_b32 v{T}, 4, v{L}
v_bfe_u32 v{T+1}, v{L}, 2, 2
v_and_b32 v{T+2}, 3, v{L}
v_and_b32 v{T+3}, 15, v{L}''')
        e(f'''v_lshl_add_u32 v{T+4}, v{T}, 3, v{T+1}
v_lshlrev_b32 v{T+4}, 8, v{T+4}
v_lshl_add_u32 v{T+4}, v{T+2}, 4, v{T+4}
v_add_u32 v{T+4}, {WS[0]}, v{T+4}''')
        for ds in range(4):
            e(f'v_xor_b32 v{T+5}, {ds}, v{T+1}\nv_lshl_add_u32 v{vWA+ds}, v{T+5}, 6, v{T+4}')
        if NWS() == 4:
            for ds in range(4): e(f'v_subrev_u32 v{vWB+ds}, {WS[0]-WS[3]}, v{vWA+ds}')
        e(f'''s_lshl_b32 s{sT0}, s{sW}, 13
s_add_u32 s{sT0}, s{sT0}, {XS[0]}
v_lshlrev_b32 v{T+4}, 7, v{T+3}
v_add_u32 v{T+4}, s{sT0}, v{T+4}
v_lshrrev_b32 v{vT2}, 1, v{T+3}''')
        for n in range(2):
            e(f'''v_add_u32 v{T+5}, {4*n}, v{T}
v_xor_b32 v{T+5}, v{T+5}, v{vT2}
v_lshl_add_u32 v{vXA+n}, v{T+5}, 4, v{T+4}''')
        e(kv_read_addr())
        cbits = '0x%08x' % int.from_bytes(struct.pack('<f', math.log2(math.e) / math.sqrt(128.0)), 'little')
        e(f's_mov_b32 s{sC}, {cbits}\ns_mov_b32 s{sC+1}, {cbits}')
        e(f'v_mov_b32 v{T+5}, 0x3f803f80')
        for i in range(4): e(f'v_accvgpr_write_b32 a{aOnes+i}, v{T+5}')
        for i in range(4): e(f'v_accvgpr_write_b32 a{aZero+i}, 0')
        for i in range(4): e(f'v_mov_b32 v{vMG+i}, 0xff800000')
        e(f's_mov_b32 s{sPass}, 0\ns_mov_b32 s{sMode}, 0')
        for g in dma_W(1) + dma_X(1): e(g)
        if cfg.wmall:
            e(f'''s_mul_i32 s{sT0}, s2, 18432
s_mul_i32 s{sT1}, s{sW}, 4608
s_add_u32 s{sT0}, s{sT0}, s{sT1}
s_lshl_b32 s{sT1}, s{sH}, 8
s_sub_u32 s{sT0}, s{sT0}, s{sT1}
v_lshlrev_b32 v{T+5}, 4, v{L}''')
            for i in range(5):
                e(f'buffer_load_dwordx4 v[{56+4*i}:{59+4*i}], v{T+5}, s[{sWq}:{sWq+3}], s{sT0} offen offset:{min(i*1024, 3584)} ; @tag WM')
        self.stamp('d1')
        e(f'''s_lshl_b32 s{sT0}, s{sB}, 5
s_add_u32 s{sT0}, s{sT0}, s{sH}
s_lshl_b32 s{sT0}, s{sT0}, 7
s_add_u32 s{sT0}, s{sT0}, {FBASE}
v_mov_b32 v{T+2}, 0
v_and_b32 v{T+3}, 15, v{L}
v_lshlrev_b32 v{T+5}, 2, v{T+3}
v_bfe_u32 v{T+1}, v{L}, 4, 1
v_mul_u32_u24 v{T+1}, {FTWIN}, v{T+1}
v_add_u32 v{T+5}, v{T+5}, v{T+1}
v_cmp_gt_u32 vcc, 32, v{L}
v_mov_b32 v{T+4}, 0x7fffffff
s_cmp_eq_u32 s{sW}, 0
s_cselect_b64 vcc, vcc, 0
s_nop 1
v_cndmask_b32 v{T+5}, v{T+4}, v{T+5}, vcc
buffer_store_dword v{T+2}, v{T+5}, s[{sWS}:{sWS+3}], s{sT0} offen sc1 ; @tag CLR''')

    def phase1(self):
        e = self.e
        self.stamp('p1wait')
        n0 = self.vm_need({'X0', 'W0'})
        e(f's_waitcnt vmcnt({n0})\ns_barrier')
        self.stamp('p1go')
        e(p1_reads(0, 0, 0))
        def one(G, m0, extra=()):
            G = [[x] for x in G]
            G[0] = [m0] + list(extra) + (['s_nop 0'] if not extra else []) + G[0]
            return G
        K0 = one(dma_K(0, 0, f's{sKsoff}'), f's_mov_b32 m0, s{sW4K}', [f's_mov_b32 s{sKsoff}, s{sRot}'])
        K1 = one(dma_K(1, 1, f's{sKsoff}'), f's_add_u32 m0, s{sW4K}, 16384', [f's_add_u32 s{sKsoff}, s{sRot}, 16384', f's_and_b32 s{sKsoff}, s{sKsoff}, 0x3ffff'])
        K2 = one(dma_K(2, 2, f's{sKsoff}'), f's_add_u32 m0, s{sW4K}, {2*16384}', [f's_add_u32 s{sKsoff}, s{sRot}, {2*16384}', f's_and_b32 s{sKsoff}, s{sKsoff}, 0x3ffff'])
        V0 = one(dma_V(0, 1, f's{sVsoff}'), f's_add_u32 m0, s{sW4K}, {LDS_V+16384}', [f's_add_u32 s{sVsoff}, s{sRot}, 8192', f's_and_b32 s{sVsoff}, s{sVsoff}, 0x3ffff'])
        V1 = one(dma_V(1, 2, f's{sVsoff}'), f's_add_u32 m0, s{sW4K}, {LDS_V+2*16384}', [f's_add_u32 s{sVsoff}, s{sRot}, {8192+16384}', f's_and_b32 s{sVsoff}, s{sVsoff}, 0x3ffff'])
        Vm = [[f's_lshl_b32 s{sT2}, s{sW}, 11', f's_add_u32 m0, s{sT2}, {LDS_V + 8192}', f's_sub_u32 s{sT2}, s{sRot}, s{sT2}']]
        for p in range(2):
            a = lambda w, p=p: LDS_V + 8192 + w * 2048 + p * 1024
            ins = f'buffer_load_dwordx4 v{vDV+p}, s[{sV}:{sV+3}], s{sT2} offen offset:{p*1024}{cfg.kv_flag} lds ; @dma Vm1 {kb(a)}'
            if p == 0: Vm[0].append(ins)
            else: Vm.append([ins])
        plan = {}
        rest = [c for c in range(9) if c not in cfg.coop_pre and c not in cfg.coop_mid and c not in cfg.coop_skip]
        plan[(0, 0)] = [self.coop(c) for c in rest] + dma_W(2)
        for c in range(9):
            g1 = []
            if c + 2 <= 8: g1 += dma_X(c + 2)
            plan[(c, 1)] = g1
            if NWS() == 3 and c + 3 <= 8: plan[(c + 1, 0)] = dma_W(c + 3)
        if NWS() == 4:
            plan[(0, 0)] = plan[(0, 0)] + dma_W(3)
            plan[(2, 0)] = dma_W(4) + dma_W(5)
            plan[(4, 0)] = dma_W(6) + dma_W(7)
            plan[(5, 0)] = dma_W(8)
        self.prefill = K0 + Vm + K1 + V0 + V1 + K2
        plan[(6, 1)] = plan[(6, 1)] + K0 + Vm
        plan[(7, 1)] = K1
        plan[(8, 0)] = V0
        plan[(8, 1)] = V1
        self.late_kv = K2
        for c in range(9):
            for n in range(2):
                e(p1_kstep(self, c, n, plan.get((c, n), []), last=(c == 8)))
            if c == 3:
                e(f'''s_lshl_b32 s{sT0}, s{sB}, 5
v_mov_b32 v{vT+4}, s{sT0}
v_mov_b32 v{vT+5}, 1
s_cmp_eq_u32 s{sW}, 0
s_cbranch_scc0 L_noreg
s_mov_b64 exec, 1
global_atomic_add v{vT+4}, v{vT+5}, s[16:17] sc1
s_mov_b64 exec, -1''', trace=False)
                self.p('L_noreg:')
            if c == 5: self.stamp('p1c6')
            self.stamp(f'c{c}')
        self.stamp('p1end')
        self.late_kv_pending = self.late_kv; self.late_kv = []
        assert not self.late_kv
    QK = [0, 17, 34, 42]
    PV = [50, 59, 8, 25]
    LS = [58, 67, 16, 33]
    EX = [11, 29, 45, 63]
    VG = [26, 27, 27, 28, 28, 30, 30, 32, 34, 34, 36, 38, 38, 40, 42, 42]
    KG = [44, 46, 46, 50, 50, 52, 54, 54]
    def step(self, k, par, kind='full', extra=None):
        NS = 68
        Sl = Slots(NS)
        it = k // 2; ktile = it + 1; vtile = it
        last = kind == 'last'
        for qt in range(4):
            if not last:
                for m in range(8):
                    ds, kt = m >> 1, m & 1
                    Sl.mf[self.QK[qt] + m] = mfma(vr(S(qt, kt), 4), ar(Kf(m), 4), ar(Qf(qt, ds), 4), vr(CI(qt) if ds == 0 else S(qt, kt), 4))
            if not last or qt >= 2:
                for dt in range(8):
                    Sl.mf[self.PV[qt] + dt] = mfma(vr(O(dt, qt), 4), ar(Vf(dt), 4), vr(P(qt), 4), vr(O(dt, qt), 4))
                Sl.mf[self.LS[qt]] = mfma(vr(LA(qt), 4), ar(aOnes, 4), vr(P(qt), 4), vr(LA(qt), 4))
        mem = [[] for _ in range(NS)]; alu = [[] for _ in range(NS)]
        def put(g, ins):
            g %= NS
            mn = ins.split()[0]
            (mem if mn.startswith('ds_') or mn.startswith('buffer_') or mn.startswith('global_') else alu)[g].append(ins)
        for qt in range(4):
            for i in range(8):
                g = self.EX[qt] + 2 * i
                if last and g < NS: continue
                r = S(qt, i >> 2) + (i & 3)
                put(g, f'v_exp_f32 v{r}, v{r}')
            for n in range(4):
                g = self.EX[qt] + 4 * n + 3
                if last and g < NS: continue
                r = S(qt, n >> 1) + 2 * (n & 1)
                if last and Sl.mf[g % NS] is None: put(g, 's_nop 0')
                put(g, f'v_cvt_pk_bf16_f32 v{P(qt)+n}, v{r}, v{r+1}')
        if last: Sl.pre[8].append('s_nop 1')
        if not last:
            for n in range(16):
                dt, u = n >> 1, n & 1
                put(self.VG[n], f'ds_read_b64_tr_b16 a[{Vf(dt)+2*u}:{Vf(dt)+2*u+1}], v{vVA+dt} offset:{par*8192+u*4096}')
            if kind == 'full':
                for m in range(8):
                    ds, kt = m >> 1, m & 1
                    put(self.KG[m], f'ds_read_b128 a[{Kf(m)}:{Kf(m)+3}], v{vKA+ds} offset:{par*8192+kt*4096}')
            nk = sum(1 for g in self.KG if g <= 48) if kind == 'full' else 0
            Sl.pre[49].append(f's_waitcnt lgkmcnt({nk})')
            if kind == 'full': Sl.pre[67].append('s_waitcnt lgkmcnt(0)')
            if par == 0:
                Sl.pre[1] += ['s_waitcnt vmcnt(VMW)', 's_barrier']
                for dt in range(8): put([2, 4, 4, 6, 8, 8, 10, 14][dt], f'v_xor_b32 v{vVA+dt}, s{sXor}, v{vVA+dt}')
                for ds in range(4): put([18, 20, 20, 22][ds], f'v_xor_b32 v{vKA+ds}, s{sXor}, v{vKA+ds}')
        if extra:
            for g, L in extra.items():
                mem[g % NS] += L
        ab = cfg.ablate
        if ab and kind == 'full':
            if 'exp' in ab: alu = [[x for x in a if not x.startswith('v_exp')] for a in alu]
            if 'cvt' in ab: alu = [[x for x in a if not x.startswith('v_cvt')] for a in alu]
            if 'vrd' in ab: mem = [[x for x in a if not x.startswith('ds_read_b64')] for a in mem]
            if 'krd' in ab: mem = [[x for x in a if not x.startswith('ds_read_b128')] for a in mem]
            if 'dma' in ab: mem = [[x for x in a if not x.startswith('buffer_load')] for a in mem]
            if 'lsum' in ab:
                for qt in range(4): Sl.mf[self.LS[qt]] = None
        for g in range(NS): Sl.post[g] = mem[g] + alu[g]
        if cfg.pad and not last:
            for g in range(3, NS, max(1, NS // cfg.pad)): Sl.post[g].append('s_nop 3')
        self.last_load = Sl.load()
        return Sl.out()

    def kv_extra(self, it, par, doK=True, doV=True):
        slot = (it + 3) & 3
        X = {}
        if par == 0:
            X.setdefault(61, []).append(f's_and_b32 s{sVsoff}, s{sVsoff}, 0x3ffff')
            if doK:
                D = dma_K(it + 3, slot, f's{sKsoff}')
                X[12] = [f's_mov_b32 m0, s{sDma}']
                for g, d in zip((16, 24, 58, 64), D): X.setdefault(g, []).append(d)
                X.setdefault(64, []).append(f's_add_u32 s{sKsoff}, s{sKsoff}, 16384')
        else:
            X.setdefault(12, []).append(f's_and_b32 s{sKsoff}, s{sKsoff}, 0x3ffff')
            if doV:
                D = dma_V(it + 2, slot, f's{sVsoff}')
                X[0] = [f's_add_u32 s{sT0}, s{sDma}, {LDS_V}']
                X[4] = [f's_mov_b32 m0, s{sT0}']
                for g, d in zip((8, 20, 58, 64), D): X.setdefault(g, []).append(d)
                X.setdefault(64, []).append(f's_add_u32 s{sVsoff}, s{sVsoff}, 16384')
            X.setdefault(61, []).append(f's_xor_b32 s{sXor}, s{sXor}, 0x8000')
            X.setdefault(62, []).append(f's_xor_b32 s{sDma}, s{sDma}, s{sXor}')
        return X

    def phase2(self):
        e = self.e
        def epi(qt):
            o = []
            for ds in range(4):
                for x in range(2):
                    b_ = O(2 * ds + x, qt)
                    o += [f'v_pk_mul_f32 v[{b_}:{b_+1}], v[{b_}:{b_+1}], s[{sC}:{sC+1}]', f'v_pk_mul_f32 v[{b_+2}:{b_+3}], v[{b_+2}:{b_+3}], s[{sC}:{sC+1}]']
                t = vC + (ds & 1) * 4
                for x in range(2):
                    b_ = O(2 * ds + x, qt)
                    o += [f'v_cvt_pk_bf16_f32 v{t+2*x}, v{b_}, v{b_+1}', f'v_cvt_pk_bf16_f32 v{t+2*x+1}, v{b_+2}, v{b_+3}']
                o += [f'v_accvgpr_write_b32 a{Qf(qt, ds)+i}, v{t+i}' for i in range(4)]
            return o
        def qk0(qt):
            return [mfma(vr(S(qt, m & 1), 4), ar(Kf(m), 4), ar(Qf(qt, m >> 1), 4), '0' if m < 2 else vr(S(qt, m & 1), 4)) for m in range(8)]
        def weave(valu, mf, lead=2):
            o = []; n = len(valu); step_ = max(1, (n - lead) // max(1, len(mf))); j = 0
            for i, x in enumerate(valu):
                o.append(x)
                if i >= lead and (i - lead) % step_ == 0 and j < len(mf): o += mf[j] if isinstance(mf[j], list) else [mf[j]]; j += 1
            for x in mf[j:]: o += x if isinstance(x, list) else [x]
            return o
        kreads = lambda off: [f'ds_read_b128 a[{Kf(m)}:{Kf(m)+3}], v{vKA+(m>>1)} offset:{off+(m&1)*4096} ; @rd K0' for m in range(8)]
        vreads = [f'ds_read_b64_tr_b16 a[{Vf(n>>1)+2*(n&1)}:{Vf(n>>1)+2*(n&1)+1}], v{vVA+(n>>1)} offset:{8192+(n&1)*4096}' for n in range(16)]
        zero = lambda qt: [mfma(vr(O(dt, qt), 4), ar(aZero, 4), ar(aZero, 4), '0') for dt in range(8)] + [mfma(vr(LA(qt), 4), ar(aZero, 4), ar(aZero, 4), '0')]
        wait0 = f's_waitcnt vmcnt({self.vm_need({"K0", "Vm1"})})'
        late = self.late_kv_pending
        e('s_nop 3')
        e(wait0); e('s_barrier')
        self.stamp('q0')
        e(kreads(0)); e(vreads)
        e(epi(0))
        self.stamp('q1')
        e('s_waitcnt lgkmcnt(15)\ns_waitcnt lgkmcnt(0)')
        e(weave(epi(1), qk0(0)))
        e(weave(epi(2), qk0(1) + [g for g in late[:2]]))
        e(weave(epi(3), qk0(2) + [g for g in late[2:]]))
        self.stamp('q2')
        e('s_branch L_p2q3', trace=False)
        self.p('L_p2start:')
        R = [wait0, 's_barrier'] + kreads(0) + vreads + ['s_waitcnt lgkmcnt(0)'] + qk0(0) + qk0(1) + qk0(2)
        self.e([x.split(';')[0].strip() for x in R], trace=False)
        self.p('L_p2q3:')
        q3 = qk0(3); k1 = kreads(8192)
        z = zero(2) + zero(3)
        e('s_nop 1')
        for m in range(8):
            e(q3[m]); e(k1[m]); e(z[2*m:2*m+2])
        e(z[16:])
        self.stamp('q3')
        for qt in range(4):
            a, b = S(qt, 0), S(qt, 1); m = vT + qt
            e(f'v_max3_f32 v{m}, v{a}, v{a+1}, v{vMG+qt}\nv_max3_f32 v{m}, v{m}, v{a+2}, v{a+3}\nv_max3_f32 v{m}, v{m}, v{b}, v{b+1}\nv_max3_f32 v{m}, v{m}, v{b+2}, v{b+3}')
        for sw in ('v_permlane32_swap_b32', 'v_permlane16_swap_b32'):
            for qt in range(4): e(f'v_mov_b32 v{vC+qt}, v{vT+qt}')
            e('s_nop 0')
            for qt in range(4): e(f'{sw} v{vT+qt}, v{vC+qt}')
            for qt in range(4): e(f'v_max_f32 v{vT+qt}, v{vT+qt}, v{vC+qt}')
        for qt in range(4):
            for r in range(4): e(f'v_sub_f32 v{CI(qt)+r}, 0, v{vT+qt}')
        for qt in range(4):
            for i in range(8): e(f'v_add_f32 v{S(qt,0)+i}, v{S(qt,0)+i}, v{CI(qt)}')
        for qt in range(3):
            for i in range(8): e(f'v_exp_f32 v{S(qt,0)+i}, v{S(qt,0)+i}')
        for i in range(3): e(f'v_exp_f32 v{S(3,0)+i}, v{S(3,0)+i}')
        for qt in range(3):
            for n in range(4):
                r = S(qt, n >> 1) + 2 * (n & 1)
                e(f'v_cvt_pk_bf16_f32 v{P(qt)+n}, v{r}, v{r+1}')
        e(f'v_cvt_pk_bf16_f32 v{P(3)}, v{S(3,0)}, v{S(3,0)+1}')
        self.stamp('q4')
        e('s_waitcnt lgkmcnt(0)')
        for qt in range(2):
            for dt in range(8):
                e(mfma(vr(O(dt, qt), 4), ar(Vf(dt), 4), vr(P(qt), 4), '0'))
            e(mfma(vr(LA(qt), 4), ar(aOnes, 4), vr(P(qt), 4), '0'))
        e(f'''s_mov_b32 s{sXor}, 0x4000
s_add_u32 s{sDma}, s{sW4K}, {3*16384}
s_add_u32 s{sKsoff}, s{sRot}, {3*16384}
s_and_b32 s{sKsoff}, s{sKsoff}, 0x3ffff
s_add_u32 s{sVsoff}, s{sRot}, {8192+2*16384}
s_and_b32 s{sVsoff}, s{sVsoff}, 0x3ffff
s_mov_b32 s{sIter}, 0''')
        self.stamp('p2loop')
        self.p('.p2align 3\nL_p2:')
        texts = []
        NL = 12
        for it in range(NL):
            L = self.step(2 * it, 0, 'full', self.kv_extra(it, 0)); l0 = self.last_load
            L += self.step(2 * it + 1, 1, 'full', self.kv_extra(it, 1)); l1 = self.last_load
            L = [x.replace('VMW', '8') for x in L]
            L += [f's_add_u32 s{sIter}, s{sIter}, 1', f's_cmp_lt_u32 s{sIter}, {NL}', 's_cbranch_scc1 L_p2']
            texts.append([x.split(';')[0].strip() for x in L])
            if it == 0:
                self.p(L); self.loop_body = L
                print('gap load step0:', l0); print('gap load step1:', l1)
            self.tr.extend(L)
        assert all(t == texts[0] for t in texts)
        self.stamp('p2peel')
        from g2p3 import peeled_tail
        peeled_tail(self)

    def fallback(self):
        e = lambda x: self.e(x, trace=False)
        self.p('L_fallback:')
        e('s_waitcnt vmcnt(0) lgkmcnt(0)\ns_barrier')
        e(kv_dma_addr()); e(kv_read_addr())
        for i in range(4): e(f'v_mov_b32 v{vMG+i}, 0xff800000')
        e(f's_mov_b32 s{sKsoff}, s{sW4K}')
        self.p('L_fb_loop:')
        e(f's_mov_b32 m0, s{sW4K}\ns_nop 0')
        e([x.split(';')[0] for x in dma_K(0, 0, f's{sKsoff}')])
        e('s_waitcnt vmcnt(0)\ns_barrier')
        for half in range(2):
            for m in range(8):
                ds, kt = m >> 1, m & 1
                e(f'ds_read_b128 a[{Kf(m)}:{Kf(m)+3}], v{vKA+ds} offset:{half*8192+kt*4096}')
            e('s_waitcnt lgkmcnt(0)')
            for qt in range(4):
                for m in range(8):
                    ds, kt = m >> 1, m & 1
                    e(mfma(vr(S(qt, kt), 4), ar(Kf(m), 4), ar(Qf(qt, ds), 4), '0' if ds == 0 else vr(S(qt, kt), 4)))
            e('s_nop 7')
            for qt in range(4):
                a, b = S(qt, 0), S(qt, 1); m = vMG + qt
                e(f'v_max3_f32 v{m}, v{m}, v{a}, v{a+1}\nv_max3_f32 v{m}, v{m}, v{a+2}, v{a+3}\nv_max3_f32 v{m}, v{m}, v{b}, v{b+1}\nv_max3_f32 v{m}, v{m}, v{b+2}, v{b+3}')
        e(f's_barrier\ns_add_u32 s{sKsoff}, s{sKsoff}, 16384\ns_cmp_lt_u32 s{sKsoff}, 262144\ns_cbranch_scc1 L_fb_loop')
        for g in self.prefill: e([x.split(';')[0] for x in g])
        e(f's_mov_b32 s{sMode}, 1\ns_branch L_p2start')

    def finish_stamps(self):
        if not cfg.stamps: return
        e = self.e
        if cfg.dbgstamps:
            e('s_waitcnt lgkmcnt(0)', trace=False)
            for n_, (wg, base) in enumerate(zip(cfg.dbgstamps, (1, 5, 9, 12))):
                e(f's_cmp_eq_u32 s2, {wg}\ns_cbranch_scc0 L_nodbg{n_}\ns_cmp_eq_u32 s{sW}, 0\ns_cbranch_scc0 L_nodbg{n_}', trace=False)
                vals = [(stamp_reg(1), stamp_reg(0)), (stamp_reg(2), stamp_reg(0)), (stamp_reg(2) + 2, stamp_reg(1) + 2)]
                for i, (x, y) in enumerate(vals):
                    e(f's_sub_u32 s{sT0}, s{x}, s{y}\nv_mov_b32 v{vT+2}, s{sT0}\nv_mov_b32 v{vT}, {4*(base+i)}\nglobal_store_dword v{vT}, v{vT+2}, s[16:17]', trace=False)
                self.p(f'L_nodbg{n_}:')
            return
        e(f'''s_waitcnt lgkmcnt(0)
s_lshl_b32 s{sT0}, s2, 2
s_add_u32 s{sT0}, s{sT0}, s{sW}
s_lshl_b32 s{sT0}, s{sT0}, 8
s_add_u32 s{sT0}, s{sT0}, {STAMPBASE}
s_add_u32 s18, s18, s{sT0}
s_addc_u32 s19, s19, 0
v_mov_b32 v{vT}, 0''')
        for i in range(self.nstamp):
            for j in range(4): e(f'v_mov_b32 v{vT+2+j}, s{stamp_reg(i)+j}')
            e(f'global_store_dwordx4 v{vT}, v[{vT+2}:{vT+5}], s[18:19] offset:{16*i}\ns_nop 1')

def build():
    k = Kernel()
    k.header(); k.setup(); k.phase1(); k.phase2()
    from g2p3 import phase3
    phase3(k)
    k.stamp('end')
    k.finish_stamps()
    k.e('s_endpgm', trace=False)
    k.fallback()
    k.footer()
    return k

def main():
    import argparse
    ap = argparse.ArgumentParser()
    ap.add_argument('-o', default=f'cdna_kernels/{NAME}.s')
    ap.add_argument('--stamps', default='')
    ap.add_argument('--set', action='append', default=[])
    a = ap.parse_args()
    cfg.stamps = a.stamps.split(',') if a.stamps else False
    for kv in a.set:
        kk, vv = kv.split('=', 1)
        try: vv = eval(vv)
        except Exception: pass
        setattr(cfg, kk, vv)
    k = build()
    errs = simulate(k.tr, 'trace')
    errs += check_hazards(k.tr, 'haz')
    txt = k.p.text()
    txt = txt.replace('CODEOFF', f'((L_pc - {NAME}_kernel) & 0xffffff00)').replace('CODELEN', f'(L_codeend - {NAME}_kernel - 128)')
    open(a.o, 'w').write(txt)
    print('written', a.o, 'errors:', len(errs), 'trace len', len(k.tr))
```

```python
import sys, math, struct
from asmlib import *

NAME = 'standalone__mha_block_cached__near_ridge'

class Cfg:
    stamps = False
    kv_flag = ' nt'
    x_flag = ''
    w_flag = ''
    wo_flag = ''
    force_safe = False
    ablate = ''
    l1inv = False
    codepf = True
    w4 = False
    wmall = False
    rot = True
    pad = 0
    dbgstamps = 0
    mapx = True
    dualflag = True
    out_flag = ''
    bswap = 0
    coop_pre = (0, 1, 2, 3, 4, 5, 6, 7, 8)
    coop_mid = ()
    coop_skip = ()
    coop_wait = None
    early_ost = True
    own_split = (2, 3)
    ps0_every = 2
    f2a_c = 11
    fin0_c = 15
    l3_every = 6
    kv_same = False
cfg = Cfg()

sW = 3
sX, sWq, sK, sV, sWS, sWo, sOut = 20, 24, 28, 32, 36, 40, 44
sW4K = 48; sKsoff = 49; sVsoff = 50; sDma = 51; sXor = 52; sIter = 53
sT0, sT1, sT2, sT3 = 54, 55, 56, 57
sC = 58
sXsoff = 60; sWsoff = 61; sW8K = 62; sDelta = 63
sB = 64; sH = 65; sJ = 66; sMode = 67
sKg = 68; sNb = 69; sRot = 70; sPass = 71
sStamp = 72

vLane = 1
vT = 2
vKA = 8
vVA = 12
vDK = 20
vDV = 24
vMG = 26
vT2 = 30
vS = 32
vC = 64
vP = 80
vL = 96
vXA = 112; vWA = 114
vWB = 120
vCo = 118
vOX = 32; vOW = 40
vWoD = 112
vWoR = 121
vAcc = 128
aQ = 0; aKf = 64; aVf = 96; aOnes = 252; aZero = 188
aPA = 96; aPB = 64

def O(dt, qt): return vAcc + (dt * 4 + qt) * 4
def S(qt, kt): return vS + qt * 8 + kt * 4
def CI(qt): return vC + 4 * qt
def P(qt): return vP + 4 * qt
def LA(qt): return vL + 4 * qt
def Qf(qt, ds): return aQ + (qt * 4 + ds) * 4
def Kf(m): return aKf + 4 * m
def Vf(dt): return aVf + 4 * dt

LDS_V = 65536
XS = [32768, 81920]
WS = [114688, 131072, 147456, 16384]
def NWS(): return 4 if cfg.mapx and cfg.w4 else 3
OBASE = 0
PBASE = 16 << 20
FBASE = 60 << 20
FTWIN = 1 << 16
STAMPBASE = 64 << 20

def kb(fn): return ','.join(str(fn(w) // 1024) for w in range(4))
def stamp_reg(i): return [72, 76, 80, 4, 8, 12, 92][i]
def mfma(d, a, b, c): return f'v_mfma_f32_16x16x32_bf16 {d}, {a}, {b}, {c}'

class Slots:
    def __init__(self, n):
        self.pre = [[] for _ in range(n)]
        self.post = [[] for _ in range(n)]
        self.mf = [None] * n
    def out(self):
        o = []
        for i in range(len(self.mf)):
            o += self.pre[i]
            if self.mf[i]: o.append(self.mf[i])
            o += self.post[i]
        return o
    def load(self):
        def cost(x):
            mn = x.split()[0]
            if mn.startswith('v_exp') or mn.startswith('v_rcp'): return 8
            return 4
        n = len(self.mf); res = []
        for i in range(n):
            g = self.post[i] + (self.pre[i + 1] if i + 1 < n else [])
            res.append(sum(cost(x) for x in g))
        return res

def dma_K(tile, slot, soff):
    L = []
    for p in range(4):
        a = lambda w, p=p: slot * 16384 + w * 4096 + p * 1024
        L.append(f'buffer_load_dwordx4 v{vDK+p}, s[{sK}:{sK+3}], {soff} offen offset:{p*1024}{cfg.kv_flag} lds ; @dma K{tile} {kb(a)}')
    return L
def dma_V(tile, slot, soff):
    L = []
    for p in range(4):
        a = lambda w, p=p: LDS_V + slot * 16384 + w * 4096 + p * 1024
        L.append(f'buffer_load_dwordx4 v{vDV+(p&1)}, s[{sV}:{sV+3}], {soff} offen offset:{p*1024}{cfg.kv_flag} lds ; @dma V{tile} {kb(a)}')
    return L

def dma_W(c):
    G = []
    for p in range(4):
        a = lambda w, p=p: WS[c % NWS()] + w * 4096 + p * 1024
        ins = f'buffer_load_dwordx4 v{vOW+p}, s[{sWq}:{sWq+3}], s{sWsoff} offen offset:{p*1024}{cfg.w_flag} lds ; @dma W{c} {kb(a)}'
        g = [ins]
        if p == 0: g = [f's_add_u32 m0, s{sW4K}, {WS[c%NWS()]}', f's_mov_b32 s{sWsoff}, {c*524288}', ins]
        G.append(g)
    return G
def dma_X(c):
    G = []
    for p in range(8):
        a = lambda w, p=p: XS[c % 2] + w * 8192 + p * 1024
        ins = f'buffer_load_dwordx4 v{vOX+p}, s[{sX}:{sX+3}], s{sXsoff} offen offset:{(p&3)*1024}{cfg.x_flag} lds ; @dma X{c} {kb(a)} priv'
        g = [ins]
        if p == 0: g = [f's_add_u32 m0, s{sW8K}, {XS[c%2]}', f's_mov_b32 s{sXsoff}, {c*128}', ins]
        if p == 4: g = [f's_add_u32 m0, s{sW8K}, {XS[c%2]+4096}', 's_nop 0', ins]
        G.append(g)
    return G

def kv_dma_addr():
    T = vT; L = vLane
    o = f'''v_lshrrev_b32 v{T+1}, 4, v{L}
v_and_b32 v{T+3}, 15, v{L}
v_mov_b32 v{T+4}, v{T+1}'''.split('\n')
    for p in range(4):
        o += [f'v_add_u32 v{T+2}, {4*p}, v{T+1}', f'v_xor_b32 v{T+2}, v{T+2}, v{T+3}', f'v_lshlrev_b32 v{T+2}, 4, v{T+2}', f'v_lshl_add_u32 v{vDK+p}, v{T+4}, 8, v{T+2}']
    for par in range(2):
        o += [f'v_add_u32 v{T+2}, {4*par}, v{T+1}', f'v_lshlrev_b32 v{T+2}, 1, v{T+2}', f'v_xor_b32 v{T+2}, v{T+2}, v{T+3}', f'v_lshlrev_b32 v{T+2}, 4, v{T+2}', f'v_lshl_add_u32 v{vDV+par}, v{T+4}, 8, v{T+2}']
    return o
def kv_read_addr():
    T = vT; L = vLane
    o = [f'v_lshrrev_b32 v{T}, 4, v{L}', f'v_bfe_u32 v{T+1}, v{L}, 2, 2', f'v_and_b32 v{T+2}, 3, v{L}', f'v_and_b32 v{T+3}, 15, v{L}',
         f'v_lshlrev_b32 v{T+4}, 8, v{T+3}']
    for ds in range(4):
        o += [f'v_add_u32 v{T+5}, {4*ds}, v{T}', f'v_xor_b32 v{T+5}, v{T+5}, v{T+3}', f'v_lshl_add_u32 v{vKA+ds}, v{T+5}, 4, v{T+4}']
    o += f'''v_lshl_add_u32 v{T+4}, v{T}, 2, v{T+1}
v_and_b32 v{vT2}, 7, v{T+4}
v_lshlrev_b32 v{vT2}, 1, v{vT2}
v_lshlrev_b32 v{T+4}, 8, v{T+4}
v_and_b32 v{T+5}, 1, v{T+2}
v_lshl_add_u32 v{T+4}, v{T+5}, 3, v{T+4}
v_add_u32 v{T+4}, {LDS_V}, v{T+4}
v_lshrrev_b32 v{vT2+1}, 1, v{T+2}'''.split('\n')
    for dt in range(8):
        o += [f'v_add_u32 v{T+5}, {2*dt}, v{vT2+1}', f'v_xor_b32 v{T+5}, v{T+5}, v{vT2}', f'v_lshl_add_u32 v{vVA+dt}, v{T+5}, 4, v{T+4}']
    return o

def p1_reads(c, n, buf):
    A = aPA + buf * 32; B = aPB + buf * 16
    def W(dt, u):
        ds, x = dt >> 1, dt & 1
        st = c % NWS()
        reg, so = (vWA + ds, st * 16384) if st < 3 else (vWB + ds, 0)
        return f'ds_read_b64_tr_b16 a[{A+4*dt+2*u}:{A+4*dt+2*u+1}], v{reg} offset:{so+(32*n+4*u)*256+8*x} ; @rd W{c}'
    def X(qt): return f'ds_read_b128 a[{B+4*qt}:{B+4*qt+3}], v{vXA+n} offset:{(c%2)*49152+qt*2048} ; @rd X{c}'
    R = [X(0), W(0, 0), W(0, 1), X(1), X(2), X(3)]
    for dt in range(1, 8): R += [W(dt, 0), W(dt, 1)]
    return R

def p1_kstep(k, c, n, groups, last=False):
    Sl = Slots(32)
    buf = n & 1
    for m in range(32):
        dt, qt = m >> 2, m & 3
        Sl.mf[m] = mfma(vr(O(dt, qt), 4), ar(aPA + buf * 32 + 4 * dt, 4), ar(aPB + buf * 16 + 4 * qt, 4), '0' if (c == 0 and n == 0) else vr(O(dt, qt), 4))
    if n == 0: R = p1_reads(c, 1, 1)
    else: R = [] if last else p1_reads(c + 1, 0, 0)
    if n == 1:
        vm = (k.vm_need({f'X{c+1}', f'W{c+1}'}) if not cfg.ablate else 20) if not last else 63
        Sl.pre[0] += [f's_waitcnt vmcnt({vm}) lgkmcnt(0)', 's_barrier']
    else: Sl.pre[0] += ['s_waitcnt lgkmcnt(0)']
    ab = cfg.ablate
    if 'p1rd' in ab: R = []
    if 'p1x' in ab: groups = [[x for x in g if '@dma X' not in x] for g in groups]
    if 'p1w' in ab: groups = [[x for x in g if '@dma W' not in x] for g in groups]
    if 'p1kv' in ab: groups = [[x for x in g if '@dma K' not in x and '@dma V' not in x] for g in groups]
    for i, r in enumerate(R): Sl.post[2 * (i // 2)].append(r)
    if groups:
        nn = len(groups)
        for i, g in enumerate(groups):
            Sl.post[min(31, 1 + 2 * ((i * 16) // nn))] += g
    return Sl.out()

class Kernel:
    def __init__(self):
        self.p = Prog(); self.tr = []; self.nstamp = 0; self.q = []
    def e(self, s, text=True, trace=True):
        if isinstance(s, str): s = [x.strip() for x in s.split('\n') if x.strip()]
        if text: self.p(s)
        if trace: self.tr.extend(s)
    def stamp(self, name):
        if cfg.stamps and name in cfg.stamps:
            i = cfg.stamps.index(name); b = stamp_reg(i)
            self.e(f's_memrealtime s[{b}:{b+1}]\ns_memtime s[{b+2}:{b+3}]')
            self.nstamp = max(self.nstamp, i + 1)
    def vm_need(self, tags):
        q = []
        for line in self.tr:
            code, _, com = line.partition(';')
            mn = code.split()[0] if code.split() else ''
            if mn.startswith('buffer_') and mn not in ('buffer_inv', 'buffer_wbl2') or mn.startswith('global_'):
                t = None
                a = com.split()
                if '@dma' in a: t = a[a.index('@dma') + 1]
                elif '@tag' in a: t = a[a.index('@tag') + 1]
                q.append(t)
        for t in tags: assert t in q, f'tag {t} was never issued'
        last = max((i for i, t in enumerate(q) if t in tags), default=-1)
        return min(63, len(q) - 1 - last)

    def header(self):
        self.p(f'; @launch grid=(256,1,1) block=(256,1,1) lds=163840')
        if cfg.stamps: self.p('; stamps: ' + ','.join(cfg.stamps))
        self.p('.amdgcn_target "amdgcn-amd-amdhsa--gfx950"\n.text')
        self.p(f'.globl {NAME}_kernel\n.p2align 8\n.type {NAME}_kernel,@function\n{NAME}_kernel:')
    def footer(self):
        self.p('L_end:\ns_endpgm')
        self.p('.p2align 6\nL_codeend:')
        self.p('.section .rodata,"a"\n.p2align 6')
        self.p(f'.amdhsa_kernel {NAME}_kernel')
        self.p('''.amdhsa_next_free_vgpr 512
.amdhsa_next_free_sgpr 102
.amdhsa_accum_offset 256
.amdhsa_group_segment_fixed_size 0
.amdhsa_kernarg_size 64
.amdhsa_user_sgpr_count 2
.amdhsa_user_sgpr_kernarg_segment_ptr 1
.amdhsa_system_sgpr_workgroup_id_x 1
.end_amdhsa_kernel''')

    def setup(self):
        e = self.e
        e('s_cmp_ge_u32 s2, 256\ns_cbranch_scc1 L_end')
        self.stamp('entry')
        e(f's_load_dwordx16 s[4:19], s[0:1], 0')
        e(f'''v_and_b32 v{vLane}, 63, v0
v_lshrrev_b32 v{vT}, 6, v0
s_and_b32 s{sT0}, s2, 7
s_lshr_b32 s{sJ}, s2, 3
v_readfirstlane_b32 s{sW}, v{vT}
s_and_b32 s{sB}, s{sT0}, 1
s_xor_b32 s{sB}, s{sB}, {cfg.bswap}
s_lshl_b32 s{sB}, s{sB}, 2
s_and_b32 s{sT1}, s{sJ}, 3
s_add_u32 s{sB}, s{sB}, s{sT1}
s_lshr_b32 s{sH}, s{sT0}, 1
s_lshl_b32 s{sH}, s{sH}, 3
s_lshr_b32 s{sT1}, s{sJ}, 2
s_add_u32 s{sH}, s{sH}, s{sT1}
MAPX
s_lshr_b32 s{sKg}, s{sH}, 2
s_and_b32 s{sNb}, s{sH}, 3
s_lshl_b32 s{sW4K}, s{sW}, 12
ROT
'''.replace('ROT', f's_add_u32 s{sRot}, s{sH}, s{sB}\ns_and_b32 s{sRot}, s{sRot}, 15\ns_lshl_b32 s{sRot}, s{sRot}, 14\ns_add_u32 s{sRot}, s{sRot}, s{sW4K}' if cfg.rot else f's_mov_b32 s{sRot}, s{sW4K}').replace('MAPX', f's_mov_b32 s{sB}, s{sT0}\ns_mov_b32 s{sH}, s{sJ}' if cfg.mapx else 's_nop 0'))
        L = vLane; T = vT
        e(f'''v_lshrrev_b32 v{T}, 3, v{L}
s_lshl_b32 s{sT0}, s{sW}, 6
v_add_u32 v{T}, s{sT0}, v{T}
v_mul_u32_u24 v{T}, 1152, v{T}
v_lshrrev_b32 v{T+1}, 4, v{L}
v_and_b32 v{T+2}, 7, v{L}
v_xor_b32 v{T+3}, v{T+2}, v{T+1}
v_xor_b32 v{T+4}, 4, v{T+3}
v_lshl_add_u32 v{T+3}, v{T+3}, 4, v{T}
v_lshl_add_u32 v{T+4}, v{T+4}, 4, v{T}''')
        for p in range(8):
            e(f'v_add_u32 v{vOX+p}, {p*9216 - (p&3)*1024}, v{T+3+(p&1)}')
        e(f'''v_lshlrev_b32 v{T+2}, 2, v{T+1}
v_and_b32 v{T+3}, 15, v{L}
v_xor_b32 v{T+2}, v{T+2}, v{T+3}
v_lshlrev_b32 v{T+2}, 4, v{T+2}
s_lshl_b32 s{sT0}, s{sW}, 4
v_add_u32 v{T+4}, s{sT0}, v{T+1}
v_lshl_add_u32 v{T+5}, v{T+4}, 13, v{T+2}''')
        for p in range(4):
            e(f'v_add_u32 v{vOW+p}, {p*(32768-1024)}, v{T+5}')
        e(f'''v_lshrrev_b32 v{T+5}, 3, v{L}
s_lshr_b32 s{sT0}, s{sJ}, 2
s_lshl_b32 s{sT0}, s{sT0}, 5
s_lshl_b32 s{sT1}, s{sW}, 3
s_add_u32 s{sT0}, s{sT0}, s{sT1}
v_add_u32 v{T+5}, s{sT0}, v{T+5}
v_mul_u32_u24 v{T+5}, 1152, v{T+5}
v_and_b32 v{T+2}, 7, v{L}
v_lshl_add_u32 v{vCo}, v{T+2}, 4, v{T+5}
s_and_b32 s{sT0}, s{sJ}, 3
s_lshl_b32 s{sT0}, s{sT0}, 4
s_lshl_b32 s{sT1}, s{sW}, 2
s_add_u32 s{sT0}, s{sT0}, s{sT1}
v_add_u32 v{T+5}, s{sT0}, v{T+1}
v_lshlrev_b32 v{T+5}, 13, v{T+5}
v_and_b32 v{T+2}, 15, v{L}
v_lshl_add_u32 v{vCo+1}, v{T+2}, 4, v{T+5}''')
        if cfg.mapx:
            e(f'''v_lshrrev_b32 v{T+5}, 3, v{L}
s_lshl_b32 s{sT0}, s{sJ}, 3
v_add_u32 v{T+5}, s{sT0}, v{T+5}
v_mul_u32_u24 v{T+5}, 1152, v{T+5}
v_and_b32 v{T+2}, 7, v{L}
v_lshl_add_u32 v{vCo}, v{T+2}, 4, v{T+5}''')
        e('s_waitcnt lgkmcnt(0)')
        self.stamp('karg')
        if cfg.l1inv:
            e(f's_cmp_eq_u32 s{sW}, 0\ns_cbranch_scc0 L_noinv\nbuffer_inv sc1', trace=False)
            self.p('L_noinv:')
        e(f'''s_mul_i32 s{sT0}, s{sB}, 294912
s_add_u32 s{sX}, s4, s{sT0}
s_addc_u32 s{sX+1}, s5, 0
s_mov_b32 s{sX+2}, 294912
s_mov_b32 s{sX+3}, 0x20000
s_lshl_b32 s{sT0}, s{sH}, 8
s_add_u32 s{sWq}, s10, s{sT0}
s_addc_u32 s{sWq+1}, s11, 0
s_sub_u32 s{sWq+2}, 4718592, s{sT0}
s_mov_b32 s{sWq+3}, 0x20000
s_mov_b32 s{sWS}, s18
s_mov_b32 s{sWS+1}, s19
s_mov_b32 s{sWS+2}, 0x8000000
s_mov_b32 s{sWS+3}, 0x20000''')
        e(f's_lshl_b32 s{sW8K}, s{sW}, 13')
        def coop(c):
            if cfg.mapx:
                if c >= 3: return []
                d = 44 + 4 * c
                return [f's_lshl_b32 s{sT1}, s{sW}, 7', f'buffer_load_dwordx4 v[{d}:{d+3}], v{vCo}, s[{sX}:{sX+3}], s{sT1} offen offset:{c*512} ; @tag CO{c}']
            d = 44 + 8 * c if c < 6 else 96 + 8 * (c - 6) if c < 8 else 120
            return [f's_mov_b32 s{sT1}, {c*524288}', f'buffer_load_dwordx4 v[{d}:{d+3}], v{vCo+1}, s[{sWq}:{sWq+3}], s{sT1} offen ; @tag CO{c}',
                    f'buffer_load_dwordx4 v[{d+4}:{d+7}], v{vCo}, s[{sX}:{sX+3}], 0 offen offset:{c*128} ; @tag CO{c}']
        for c in cfg.coop_pre: e(coop(c))
        self.coop = coop
        if cfg.codepf:
            e(f'''s_getpc_b64 s[{sT2}:{sT2+1}]
L_pc:
s_and_b32 s{sT2}, s{sT2}, 0xffffff00
s_sub_u32 s{sT2}, s{sT2}, CODEOFF
s_subb_u32 s{sT3}, s{sT3}, 0
v_and_b32 v{T+5}, 15, v{L}
s_lshl_b32 s{sT0}, s{sJ}, 4
v_add_u32 v{T+5}, s{sT0}, v{T+5}
v_lshlrev_b32 v{T+5}, 7, v{T+5}
v_min_u32 v{T+5}, CODELEN, v{T+5}
global_load_dword v92, v{T+5}, s[{sT2}:{sT2+1}]''')
        self.stamp('dma0')
        e(f'''s_lshl_b32 s{sT0}, s{sB}, 5
s_add_u32 s{sT0}, s{sT0}, s{sH}
s_lshl_b32 s{sT0}, s{sT0}, 18''')
        if cfg.kv_same: e(f's_mov_b32 s{sT0}, 0')
        e(f'''s_add_u32 s{sK}, s6, s{sT0}
s_addc_u32 s{sK+1}, s7, 0
s_mov_b32 s{sK+2}, 262144
s_mov_b32 s{sK+3}, 0x20000
s_add_u32 s{sV}, s8, s{sT0}
s_addc_u32 s{sV+1}, s9, 0
s_mov_b32 s{sV+2}, 262144
s_mov_b32 s{sV+3}, 0x20000''')
        e(f'''s_mul_i32 s{sT0}, s{sKg}, {512*1152}
s_mul_i32 s{sT1}, s{sNb}, 288
s_add_u32 s{sT0}, s{sT0}, s{sT1}
s_add_u32 s{sWo}, s12, s{sT0}
s_addc_u32 s{sWo+1}, s13, 0
s_sub_u32 s{sWo+2}, 4718592, s{sT0}
s_mov_b32 s{sWo+3}, 0x20000
s_mov_b32 s{sOut}, s14
s_mov_b32 s{sOut+1}, s15
s_mov_b32 s{sOut+2}, 2359296
s_mov_b32 s{sOut+3}, 0x20000''')
        e(kv_dma_addr())
        self.stamp('cw0')
        if cfg.coop_wait is not None: e(f's_waitcnt vmcnt({self.vm_need({f"CO{cfg.coop_wait}"})})')
        self.stamp('cw1')
        for g in dma_W(0) + dma_X(0): e(g)
        for c in cfg.coop_mid: e(self.coop(c))
        self.stamp('d0')
        e(f'''v_lshrrev_b32 v{T}, 4, v{L}
v_bfe_u32 v{T+1}, v{L}, 2, 2
v_and_b32 v{T+2}, 3, v{L}
v_and_b32 v{T+3}, 15, v{L}''')
        e(f'''v_lshl_add_u32 v{T+4}, v{T}, 3, v{T+1}
v_lshlrev_b32 v{T+4}, 8, v{T+4}
v_lshl_add_u32 v{T+4}, v{T+2}, 4, v{T+4}
v_add_u32 v{T+4}, {WS[0]}, v{T+4}''')
        for ds in range(4):
            e(f'v_xor_b32 v{T+5}, {ds}, v{T+1}\nv_lshl_add_u32 v{vWA+ds}, v{T+5}, 6, v{T+4}')
        if NWS() == 4:
            for ds in range(4): e(f'v_subrev_u32 v{vWB+ds}, {WS[0]-WS[3]}, v{vWA+ds}')
        e(f'''s_lshl_b32 s{sT0}, s{sW}, 13
s_add_u32 s{sT0}, s{sT0}, {XS[0]}
v_lshlrev_b32 v{T+4}, 7, v{T+3}
v_add_u32 v{T+4}, s{sT0}, v{T+4}
v_lshrrev_b32 v{vT2}, 1, v{T+3}''')
        for n in range(2):
            e(f'''v_add_u32 v{T+5}, {4*n}, v{T}
v_xor_b32 v{T+5}, v{T+5}, v{vT2}
v_lshl_add_u32 v{vXA+n}, v{T+5}, 4, v{T+4}''')
        e(kv_read_addr())
        cbits = '0x%08x' % int.from_bytes(struct.pack('<f', math.log2(math.e) / math.sqrt(128.0)), 'little')
        e(f's_mov_b32 s{sC}, {cbits}\ns_mov_b32 s{sC+1}, {cbits}')
        e(f'v_mov_b32 v{T+5}, 0x3f803f80')
        for i in range(4): e(f'v_accvgpr_write_b32 a{aOnes+i}, v{T+5}')
        for i in range(4): e(f'v_accvgpr_write_b32 a{aZero+i}, 0')
        for i in range(4): e(f'v_mov_b32 v{vMG+i}, 0xff800000')
        e(f's_mov_b32 s{sPass}, 0\ns_mov_b32 s{sMode}, 0')
        for g in dma_W(1) + dma_X(1): e(g)
        if cfg.wmall:
            e(f'''s_mul_i32 s{sT0}, s2, 18432
s_mul_i32 s{sT1}, s{sW}, 4608
s_add_u32 s{sT0}, s{sT0}, s{sT1}
s_lshl_b32 s{sT1}, s{sH}, 8
s_sub_u32 s{sT0}, s{sT0}, s{sT1}
v_lshlrev_b32 v{T+5}, 4, v{L}''')
            for i in range(5):
                e(f'buffer_load_dwordx4 v[{56+4*i}:{59+4*i}], v{T+5}, s[{sWq}:{sWq+3}], s{sT0} offen offset:{min(i*1024, 3584)} ; @tag WM')
        self.stamp('d1')
        e(f'''s_lshl_b32 s{sT0}, s{sB}, 5
s_add_u32 s{sT0}, s{sT0}, s{sH}
s_lshl_b32 s{sT0}, s{sT0}, 7
s_add_u32 s{sT0}, s{sT0}, {FBASE}
v_mov_b32 v{T+2}, 0
v_and_b32 v{T+3}, 15, v{L}
v_lshlrev_b32 v{T+5}, 2, v{T+3}
v_bfe_u32 v{T+1}, v{L}, 4, 1
v_mul_u32_u24 v{T+1}, {FTWIN}, v{T+1}
v_add_u32 v{T+5}, v{T+5}, v{T+1}
v_cmp_gt_u32 vcc, 32, v{L}
v_mov_b32 v{T+4}, 0x7fffffff
s_cmp_eq_u32 s{sW}, 0
s_cselect_b64 vcc, vcc, 0
s_nop 1
v_cndmask_b32 v{T+5}, v{T+4}, v{T+5}, vcc
buffer_store_dword v{T+2}, v{T+5}, s[{sWS}:{sWS+3}], s{sT0} offen sc1 ; @tag CLR''')

    def phase1(self):
        e = self.e
        self.stamp('p1wait')
        n0 = self.vm_need({'X0', 'W0'})
        e(f's_waitcnt vmcnt({n0})\ns_barrier')
        self.stamp('p1go')
        e(p1_reads(0, 0, 0))
        def one(G, m0, extra=()):
            G = [[x] for x in G]
            G[0] = [m0] + list(extra) + (['s_nop 0'] if not extra else []) + G[0]
            return G
        K0 = one(dma_K(0, 0, f's{sKsoff}'), f's_mov_b32 m0, s{sW4K}', [f's_mov_b32 s{sKsoff}, s{sRot}'])
        K1 = one(dma_K(1, 1, f's{sKsoff}'), f's_add_u32 m0, s{sW4K}, 16384', [f's_add_u32 s{sKsoff}, s{sRot}, 16384', f's_and_b32 s{sKsoff}, s{sKsoff}, 0x3ffff'])
        K2 = one(dma_K(2, 2, f's{sKsoff}'), f's_add_u32 m0, s{sW4K}, {2*16384}', [f's_add_u32 s{sKsoff}, s{sRot}, {2*16384}', f's_and_b32 s{sKsoff}, s{sKsoff}, 0x3ffff'])
        V0 = one(dma_V(0, 1, f's{sVsoff}'), f's_add_u32 m0, s{sW4K}, {LDS_V+16384}', [f's_add_u32 s{sVsoff}, s{sRot}, 8192', f's_and_b32 s{sVsoff}, s{sVsoff}, 0x3ffff'])
        V1 = one(dma_V(1, 2, f's{sVsoff}'), f's_add_u32 m0, s{sW4K}, {LDS_V+2*16384}', [f's_add_u32 s{sVsoff}, s{sRot}, {8192+16384}', f's_and_b32 s{sVsoff}, s{sVsoff}, 0x3ffff'])
        Vm = [[f's_lshl_b32 s{sT2}, s{sW}, 11', f's_add_u32 m0, s{sT2}, {LDS_V + 8192}', f's_sub_u32 s{sT2}, s{sRot}, s{sT2}']]
        for p in range(2):
            a = lambda w, p=p: LDS_V + 8192 + w * 2048 + p * 1024
            ins = f'buffer_load_dwordx4 v{vDV+p}, s[{sV}:{sV+3}], s{sT2} offen offset:{p*1024}{cfg.kv_flag} lds ; @dma Vm1 {kb(a)}'
            if p == 0: Vm[0].append(ins)
            else: Vm.append([ins])
        plan = {}
        rest = [c for c in range(9) if c not in cfg.coop_pre and c not in cfg.coop_mid and c not in cfg.coop_skip]
        plan[(0, 0)] = [self.coop(c) for c in rest] + dma_W(2)
        for c in range(9):
            g1 = []
            if c + 2 <= 8: g1 += dma_X(c + 2)
            plan[(c, 1)] = g1
            if NWS() == 3 and c + 3 <= 8: plan[(c + 1, 0)] = dma_W(c + 3)
        if NWS() == 4:
            plan[(0, 0)] = plan[(0, 0)] + dma_W(3)
            plan[(2, 0)] = dma_W(4) + dma_W(5)
            plan[(4, 0)] = dma_W(6) + dma_W(7)
            plan[(5, 0)] = dma_W(8)
        self.prefill = K0 + Vm + K1 + V0 + V1 + K2
        plan[(6, 1)] = plan[(6, 1)] + K0 + Vm
        plan[(7, 1)] = K1
        plan[(8, 0)] = V0
        plan[(8, 1)] = V1
        self.late_kv = K2
        for c in range(9):
            for n in range(2):
                e(p1_kstep(self, c, n, plan.get((c, n), []), last=(c == 8)))
            if c == 3:
                e(f'''s_lshl_b32 s{sT0}, s{sB}, 5
v_mov_b32 v{vT+4}, s{sT0}
v_mov_b32 v{vT+5}, 1
s_cmp_eq_u32 s{sW}, 0
s_cbranch_scc0 L_noreg
s_mov_b64 exec, 1
global_atomic_add v{vT+4}, v{vT+5}, s[16:17] sc1
s_mov_b64 exec, -1''', trace=False)
                self.p('L_noreg:')
            if c == 5: self.stamp('p1c6')
            self.stamp(f'c{c}')
        self.stamp('p1end')
        self.late_kv_pending = self.late_kv; self.late_kv = []
        assert not self.late_kv
    QK = [0, 17, 34, 42]
    PV = [50, 59, 8, 25]
    LS = [58, 67, 16, 33]
    EX = [11, 29, 45, 63]
    VG = [26, 27, 27, 28, 28, 30, 30, 32, 34, 34, 36, 38, 38, 40, 42, 42]
    KG = [44, 46, 46, 50, 50, 52, 54, 54]
    def step(self, k, par, kind='full', extra=None):
        NS = 68
        Sl = Slots(NS)
        it = k // 2; ktile = it + 1; vtile = it
        last = kind == 'last'
        for qt in range(4):
            if not last:
                for m in range(8):
                    ds, kt = m >> 1, m & 1
                    Sl.mf[self.QK[qt] + m] = mfma(vr(S(qt, kt), 4), ar(Kf(m), 4), ar(Qf(qt, ds), 4), vr(CI(qt) if ds == 0 else S(qt, kt), 4))
            if not last or qt >= 2:
                for dt in range(8):
                    Sl.mf[self.PV[qt] + dt] = mfma(vr(O(dt, qt), 4), ar(Vf(dt), 4), vr(P(qt), 4), vr(O(dt, qt), 4))
                Sl.mf[self.LS[qt]] = mfma(vr(LA(qt), 4), ar(aOnes, 4), vr(P(qt), 4), vr(LA(qt), 4))
        mem = [[] for _ in range(NS)]; alu = [[] for _ in range(NS)]
        def put(g, ins):
            g %= NS
            mn = ins.split()[0]
            (mem if mn.startswith('ds_') or mn.startswith('buffer_') or mn.startswith('global_') else alu)[g].append(ins)
        for qt in range(4):
            for i in range(8):
                g = self.EX[qt] + 2 * i
                if last and g < NS: continue
                r = S(qt, i >> 2) + (i & 3)
                put(g, f'v_exp_f32 v{r}, v{r}')
            for n in range(4):
                g = self.EX[qt] + 4 * n + 3
                if last and g < NS: continue
                r = S(qt, n >> 1) + 2 * (n & 1)
                if last and Sl.mf[g % NS] is None: put(g, 's_nop 0')
                put(g, f'v_cvt_pk_bf16_f32 v{P(qt)+n}, v{r}, v{r+1}')
        if last: Sl.pre[8].append('s_nop 1')
        if not last:
            for n in range(16):
                dt, u = n >> 1, n & 1
                put(self.VG[n], f'ds_read_b64_tr_b16 a[{Vf(dt)+2*u}:{Vf(dt)+2*u+1}], v{vVA+dt} offset:{par*8192+u*4096}')
            if kind == 'full':
                for m in range(8):
                    ds, kt = m >> 1, m & 1
                    put(self.KG[m], f'ds_read_b128 a[{Kf(m)}:{Kf(m)+3}], v{vKA+ds} offset:{par*8192+kt*4096}')
            nk = sum(1 for g in self.KG if g <= 48) if kind == 'full' else 0
            Sl.pre[49].append(f's_waitcnt lgkmcnt({nk})')
            if kind == 'full': Sl.pre[67].append('s_waitcnt lgkmcnt(0)')
            if par == 0:
                Sl.pre[1] += ['s_waitcnt vmcnt(VMW)', 's_barrier']
                for dt in range(8): put([2, 4, 4, 6, 8, 8, 10, 14][dt], f'v_xor_b32 v{vVA+dt}, s{sXor}, v{vVA+dt}')
                for ds in range(4): put([18, 20, 20, 22][ds], f'v_xor_b32 v{vKA+ds}, s{sXor}, v{vKA+ds}')
        if extra:
            for g, L in extra.items():
                mem[g % NS] += L
        ab = cfg.ablate
        if ab and kind == 'full':
            if 'exp' in ab: alu = [[x for x in a if not x.startswith('v_exp')] for a in alu]
            if 'cvt' in ab: alu = [[x for x in a if not x.startswith('v_cvt')] for a in alu]
            if 'vrd' in ab: mem = [[x for x in a if not x.startswith('ds_read_b64')] for a in mem]
            if 'krd' in ab: mem = [[x for x in a if not x.startswith('ds_read_b128')] for a in mem]
            if 'dma' in ab: mem = [[x for x in a if not x.startswith('buffer_load')] for a in mem]
            if 'lsum' in ab:
                for qt in range(4): Sl.mf[self.LS[qt]] = None
        for g in range(NS): Sl.post[g] = mem[g] + alu[g]
        if cfg.pad and not last:
            for g in range(3, NS, max(1, NS // cfg.pad)): Sl.post[g].append('s_nop 3')
        self.last_load = Sl.load()
        return Sl.out()

    def kv_extra(self, it, par, doK=True, doV=True):
        slot = (it + 3) & 3
        X = {}
        if par == 0:
            X.setdefault(61, []).append(f's_and_b32 s{sVsoff}, s{sVsoff}, 0x3ffff')
            if doK:
                D = dma_K(it + 3, slot, f's{sKsoff}')
                X[12] = [f's_mov_b32 m0, s{sDma}']
                for g, d in zip((16, 24, 58, 64), D): X.setdefault(g, []).append(d)
                X.setdefault(64, []).append(f's_add_u32 s{sKsoff}, s{sKsoff}, 16384')
        else:
            X.setdefault(12, []).append(f's_and_b32 s{sKsoff}, s{sKsoff}, 0x3ffff')
            if doV:
                D = dma_V(it + 2, slot, f's{sVsoff}')
                X[0] = [f's_add_u32 s{sT0}, s{sDma}, {LDS_V}']
                X[4] = [f's_mov_b32 m0, s{sT0}']
                for g, d in zip((8, 20, 58, 64), D): X.setdefault(g, []).append(d)
                X.setdefault(64, []).append(f's_add_u32 s{sVsoff}, s{sVsoff}, 16384')
            X.setdefault(61, []).append(f's_xor_b32 s{sXor}, s{sXor}, 0x8000')
            X.setdefault(62, []).append(f's_xor_b32 s{sDma}, s{sDma}, s{sXor}')
            X.setdefault(62, []).append(f's_add_u32 s{sIter}, s{sIter}, 1')
        return X

    def phase2(self):
        e = self.e
        def epi(qt):
            o = []
            for ds in range(4):
                for x in range(2):
                    b_ = O(2 * ds + x, qt)
                    o += [f'v_pk_mul_f32 v[{b_}:{b_+1}], v[{b_}:{b_+1}], s[{sC}:{sC+1}]', f'v_pk_mul_f32 v[{b_+2}:{b_+3}], v[{b_+2}:{b_+3}], s[{sC}:{sC+1}]']
                t = vC + (ds & 1) * 4
                for x in range(2):
                    b_ = O(2 * ds + x, qt)
                    o += [f'v_cvt_pk_bf16_f32 v{t+2*x}, v{b_}, v{b_+1}', f'v_cvt_pk_bf16_f32 v{t+2*x+1}, v{b_+2}, v{b_+3}']
                o += [f'v_accvgpr_write_b32 a{Qf(qt, ds)+i}, v{t+i}' for i in range(4)]
            return o
        def qk0(qt):
            return [mfma(vr(S(qt, m & 1), 4), ar(Kf(m), 4), ar(Qf(qt, m >> 1), 4), '0' if m < 2 else vr(S(qt, m & 1), 4)) for m in range(8)]
        def weave(valu, mf, lead=2):
            o = []; n = len(valu); step_ = max(1, (n - lead) // max(1, len(mf))); j = 0
            for i, x in enumerate(valu):
                o.append(x)
                if i >= lead and (i - lead) % step_ == 0 and j < len(mf): o += mf[j] if isinstance(mf[j], list) else [mf[j]]; j += 1
            for x in mf[j:]: o += x if isinstance(x, list) else [x]
            return o
        kreads = lambda off: [f'ds_read_b128 a[{Kf(m)}:{Kf(m)+3}], v{vKA+(m>>1)} offset:{off+(m&1)*4096} ; @rd K0' for m in range(8)]
        vreads = [f'ds_read_b64_tr_b16 a[{Vf(n>>1)+2*(n&1)}:{Vf(n>>1)+2*(n&1)+1}], v{vVA+(n>>1)} offset:{8192+(n&1)*4096}' for n in range(16)]
        zero = lambda qt: [mfma(vr(O(dt, qt), 4), ar(aZero, 4), ar(aZero, 4), '0') for dt in range(8)] + [mfma(vr(LA(qt), 4), ar(aZero, 4), ar(aZero, 4), '0')]
        wait0 = f's_waitcnt vmcnt({self.vm_need({"K0", "Vm1"})})'
        late = self.late_kv_pending
        e('s_nop 3')
        e(wait0); e('s_barrier')
        self.stamp('q0')
        e(kreads(0)); e(vreads)
        e(epi(0))
        self.stamp('q1')
        e('s_waitcnt lgkmcnt(15)\ns_waitcnt lgkmcnt(0)')
        e(weave(epi(1), qk0(0)))
        e(weave(epi(2), qk0(1) + [g for g in late[:2]]))
        e(weave(epi(3), qk0(2) + [g for g in late[2:]]))
        self.stamp('q2')
        e('s_branch L_p2q3', trace=False)
        self.p('L_p2start:')
        R = [wait0, 's_barrier'] + kreads(0) + vreads + ['s_waitcnt lgkmcnt(0)'] + qk0(0) + qk0(1) + qk0(2)
        self.e([x.split(';')[0].strip() for x in R], trace=False)
        self.p('L_p2q3:')
        q3 = qk0(3); k1 = kreads(8192)
        z = zero(2) + zero(3)
        e('s_nop 1')
        for m in range(8):
            e(q3[m]); e(k1[m]); e(z[2*m:2*m+2])
        e(z[16:])
        self.stamp('q3')
        for qt in range(4):
            a, b = S(qt, 0), S(qt, 1); m = vT + qt
            e(f'v_max3_f32 v{m}, v{a}, v{a+1}, v{vMG+qt}\nv_max3_f32 v{m}, v{m}, v{a+2}, v{a+3}\nv_max3_f32 v{m}, v{m}, v{b}, v{b+1}\nv_max3_f32 v{m}, v{m}, v{b+2}, v{b+3}')
        for sw in ('v_permlane32_swap_b32', 'v_permlane16_swap_b32'):
            for qt in range(4): e(f'v_mov_b32 v{vC+qt}, v{vT+qt}')
            e('s_nop 0')
            for qt in range(4): e(f'{sw} v{vT+qt}, v{vC+qt}')
            for qt in range(4): e(f'v_max_f32 v{vT+qt}, v{vT+qt}, v{vC+qt}')
        for qt in range(4):
            for r in range(4): e(f'v_sub_f32 v{CI(qt)+r}, 0, v{vT+qt}')
        for qt in range(4):
            for i in range(8): e(f'v_add_f32 v{S(qt,0)+i}, v{S(qt,0)+i}, v{CI(qt)}')
        for qt in range(3):
            for i in range(8): e(f'v_exp_f32 v{S(qt,0)+i}, v{S(qt,0)+i}')
        for i in range(3): e(f'v_exp_f32 v{S(3,0)+i}, v{S(3,0)+i}')
        for qt in range(3):
            for n in range(4):
                r = S(qt, n >> 1) + 2 * (n & 1)
                e(f'v_cvt_pk_bf16_f32 v{P(qt)+n}, v{r}, v{r+1}')
        e(f'v_cvt_pk_bf16_f32 v{P(3)}, v{S(3,0)}, v{S(3,0)+1}')
        self.stamp('q4')
        e('s_waitcnt lgkmcnt(0)')
        for qt in range(2):
            for dt in range(8):
                e(mfma(vr(O(dt, qt), 4), ar(Vf(dt), 4), vr(P(qt), 4), '0'))
            e(mfma(vr(LA(qt), 4), ar(aOnes, 4), vr(P(qt), 4), '0'))
        e(f'''s_mov_b32 s{sXor}, 0x4000
s_add_u32 s{sDma}, s{sW4K}, {3*16384}
s_add_u32 s{sKsoff}, s{sRot}, {3*16384}
s_and_b32 s{sKsoff}, s{sKsoff}, 0x3ffff
s_add_u32 s{sVsoff}, s{sRot}, {8192+2*16384}
s_and_b32 s{sVsoff}, s{sVsoff}, 0x3ffff
s_mov_b32 s{sIter}, 0''')
        self.stamp('p2loop')
        self.p('.p2align 3\nL_p2:')
        texts = []
        NL = 12
        for it in range(NL):
            L = self.step(2 * it, 0, 'full', self.kv_extra(it, 0)); l0 = self.last_load
            L += self.step(2 * it + 1, 1, 'full', self.kv_extra(it, 1)); l1 = self.last_load
            L = [x.replace('VMW', '8') for x in L]
            L += [f's_cmp_lt_u32 s{sIter}, {NL}', 's_cbranch_scc1 L_p2']
            texts.append([x.split(';')[0].strip() for x in L])
            if it == 0:
                self.p(L); self.loop_body = L
                print('gap load step0:', l0); print('gap load step1:', l1)
            self.tr.extend(L)
        assert all(t == texts[0] for t in texts)
        self.stamp('p2peel')
        from g2p3 import peeled_tail
        peeled_tail(self)

    def fallback(self):
        e = lambda x: self.e(x, trace=False)
        self.p('L_fallback:')
        e('s_waitcnt vmcnt(0) lgkmcnt(0)\ns_barrier')
        e(kv_dma_addr()); e(kv_read_addr())
        for i in range(4): e(f'v_mov_b32 v{vMG+i}, 0xff800000')
        e(f's_mov_b32 s{sKsoff}, s{sW4K}')
        self.p('L_fb_loop:')
        e(f's_mov_b32 m0, s{sW4K}\ns_nop 0')
        e([x.split(';')[0] for x in dma_K(0, 0, f's{sKsoff}')])
        e('s_waitcnt vmcnt(0)\ns_barrier')
        for half in range(2):
            for m in range(8):
                ds, kt = m >> 1, m & 1
                e(f'ds_read_b128 a[{Kf(m)}:{Kf(m)+3}], v{vKA+ds} offset:{half*8192+kt*4096}')
            e('s_waitcnt lgkmcnt(0)')
            for qt in range(4):
                for m in range(8):
                    ds, kt = m >> 1, m & 1
                    e(mfma(vr(S(qt, kt), 4), ar(Kf(m), 4), ar(Qf(qt, ds), 4), '0' if ds == 0 else vr(S(qt, kt), 4)))
            e('s_nop 7')
            for qt in range(4):
                a, b = S(qt, 0), S(qt, 1); m = vMG + qt
                e(f'v_max3_f32 v{m}, v{m}, v{a}, v{a+1}\nv_max3_f32 v{m}, v{m}, v{a+2}, v{a+3}\nv_max3_f32 v{m}, v{m}, v{b}, v{b+1}\nv_max3_f32 v{m}, v{m}, v{b+2}, v{b+3}')
        e(f's_barrier\ns_add_u32 s{sKsoff}, s{sKsoff}, 16384\ns_cmp_lt_u32 s{sKsoff}, 262144\ns_cbranch_scc1 L_fb_loop')
        for g in self.prefill: e([x.split(';')[0] for x in g])
        e(f's_mov_b32 s{sMode}, 1\ns_branch L_p2start')

    def finish_stamps(self):
        if not cfg.stamps: return
        e = self.e
        if cfg.dbgstamps:
            e('s_waitcnt lgkmcnt(0)', trace=False)
            for n_, (wg, base) in enumerate(zip(cfg.dbgstamps, (1, 5, 9, 12))):
                e(f's_cmp_eq_u32 s2, {wg}\ns_cbranch_scc0 L_nodbg{n_}\ns_cmp_eq_u32 s{sW}, 0\ns_cbranch_scc0 L_nodbg{n_}', trace=False)
                vals = [(stamp_reg(1), stamp_reg(0)), (stamp_reg(2), stamp_reg(0)), (stamp_reg(2) + 2, stamp_reg(1) + 2)]
                for i, (x, y) in enumerate(vals):
                    e(f's_sub_u32 s{sT0}, s{x}, s{y}\nv_mov_b32 v{vT+2}, s{sT0}\nv_mov_b32 v{vT}, {4*(base+i)}\nglobal_store_dword v{vT}, v{vT+2}, s[16:17]', trace=False)
                self.p(f'L_nodbg{n_}:')
            return
        e(f'''s_waitcnt lgkmcnt(0)
s_lshl_b32 s{sT0}, s2, 2
s_add_u32 s{sT0}, s{sT0}, s{sW}
s_lshl_b32 s{sT0}, s{sT0}, 8
s_add_u32 s{sT0}, s{sT0}, {STAMPBASE}
s_add_u32 s18, s18, s{sT0}
s_addc_u32 s19, s19, 0
v_mov_b32 v{vT}, 0''')
        for i in range(self.nstamp):
            for j in range(4): e(f'v_mov_b32 v{vT+2+j}, s{stamp_reg(i)+j}')
            e(f'global_store_dwordx4 v{vT}, v[{vT+2}:{vT+5}], s[18:19] offset:{16*i}\ns_nop 1')

def build():
    k = Kernel()
    k.header(); k.setup(); k.phase1(); k.phase2()
    from g2p3 import phase3
    phase3(k)
    k.stamp('end')
    k.finish_stamps()
    k.e('s_endpgm', trace=False)
    k.fallback()
    k.footer()
    return k

def main():
    import argparse
    ap = argparse.ArgumentParser()
    ap.add_argument('-o', default=f'cdna_kernels/{NAME}.s')
    ap.add_argument('--stamps', default='')
    ap.add_argument('--set', action='append', default=[])
    a = ap.parse_args()
    cfg.stamps = a.stamps.split(',') if a.stamps else False
    for kv in a.set:
        kk, vv = kv.split('=', 1)
        try: vv = eval(vv)
        except Exception: pass
        setattr(cfg, kk, vv)
    k = build()
    errs = simulate(k.tr, 'trace')
    errs += check_hazards(k.tr, 'haz')
    txt = k.p.text()
    txt = txt.replace('CODEOFF', f'((L_pc - {NAME}_kernel) & 0xffffff00)').replace('CODELEN', f'(L_codeend - {NAME}_kernel - 128)')
    open(a.o, 'w').write(txt)
    print('written', a.o, 'errors:', len(errs), 'trace len', len(k.tr))
```

```python
from asmlib import *
import g2 as G
from g2 import cfg, mfma, kb, Slots

REG = [13, 14, 0, 1, 2, 7, 3, 4, 8, 9, 5, 6, 10, 11, 12, 15]
def rbase(j):
    if j < 7: return j * 9216
    if j < 15: return 81920 + (j - 7) * 9216
    return 65536
sWoB = 60
sWoS = 84
sPh = 96
sOst = 99; sPst = 100; sFl = 101; sCnt = 59
vWoD = G.vWoD
vR = 8
vAd = 12
vOwn = 32
vD = 112
aPart = 0
aA = 192
def D(nt, qt): return vD + (nt * 4 + qt) * 4
def Own(qt, ks): return vOwn + (qt * 4 + ks) * 4
def Part(hp, qt, ks): return aPart + hp * 64 + (qt * 4 + ks) * 4

def wo_setup(k):
    e = k.e; T = G.vT; L = G.vLane
    out = []
    for p in range(9):
        out += [f'v_add_u32 v{T}, {64*p}, v{L}', f'v_mul_u32_u24 v{T+1}, 3641, v{T}', f'v_lshrrev_b32 v{T+1}, 16, v{T+1}',
                f'v_mul_u32_u24 v{T+2}, 18, v{T+1}', f'v_sub_u32 v{T+2}, v{T}, v{T+2}', f'v_mul_u32_u24 v{T+1}, 1152, v{T+1}',
                f'v_lshl_add_u32 v{vWoD+p}, v{T+2}, 4, v{T+1}']
        if p % 4: out.append(f'v_subrev_u32 v{vWoD+p}, {(p%4)*1024}, v{vWoD+p}')
    for grp in range(4):
        t = [rbase(REG[4 * grp + w]) for w in range(4)]
        out += [f's_mov_b32 s{sWoB+grp}, {t[0]}']
        for w in range(1, 4):
            out += [[f's_cmp_eq_u32 s{G.sW}, {w}', f's_cselect_b32 s{sWoB+grp}, {t[w]}, s{sWoB+grp}']]
        out += [f's_add_u32 s{G.sT0}, s{G.sNb}, {grp}', f's_and_b32 s{G.sT0}, s{G.sT0}, 3', f's_lshl_b32 s{G.sT0}, s{G.sT0}, 2',
                f's_add_u32 s{G.sT0}, s{G.sT0}, s{G.sW}', f's_mul_i32 s{sWoS+grp}, s{G.sT0}, {32*1152}']
    return out

def wo_dma(grp, vbase=None):
    L = []
    for p in range(9):
        g = []
        if p % 4 == 0:
            g += [f's_add_u32 s{G.sT0}, s{sWoB+grp}, {p*1024}', f's_mov_b32 m0, s{G.sT0}', 's_nop 0']
        a = lambda w, p=p: rbase(REG[4 * grp + w]) + p * 1024
        g.append(f'buffer_load_dwordx4 v{(vbase or vWoD)+p}, s[{G.sWo}:{G.sWo+3}], s{sWoS+grp} offen offset:{(p%4)*1024}{cfg.wo_flag} lds')
        L.append(g)
    return L

def spread(groups, gaps):
    X = {}
    for g, pos in zip(groups, gaps): X.setdefault(pos, []).extend(g)
    return X
def merge(a, b):
    for g, L in b.items(): a.setdefault(g, []).extend(L)
    return a

def peeled_tail(k):
    e = k.e
    gapsA = [12, 20, 24, 46, 62]; gapsB = [4, 20, 46, 62]
    def emit(step_lines, tags):
        n = k.vm_need(tags)
        e([x.replace('VMW', str(n)) for x in step_lines])
    su = wo_setup(k)
    reg = [f's_lshl_b32 s{G.sT0}, s{G.sB}, 5', f'v_mov_b32 v{G.vT2}, s{G.sT0}', f'global_load_dword v{G.vT2}, v{G.vT2}, s[16:17] sc1']
    X0 = {}
    h = len(su) // 2
    def sprinkle(L, gaps):
        X = {}; n = len(L); per = -(-n // len(gaps))
        for i, x in enumerate(L):
            if isinstance(x, list): X.setdefault(gaps[i // per], []).extend(x)
            else: X.setdefault(gaps[i // per], []).append(x)
        return X
    free = [12, 16, 24, 56, 58, 60, 61, 62, 64]
    emit(k.step(24, 0, 'full', merge(k.kv_extra(12, 0), sprinkle(su[:h], free))), {'V12', 'K13'})
    X = k.kv_extra(12, 1, doV=True)
    emit(k.step(25, 1, 'full', merge(X, sprinkle(su[h:] + reg, [12, 16, 24, 56, 60]))), set())
    for it, grp in ((13, 0), (14, 1)):
        W = wo_dma(grp)
        emit(k.step(2 * it, 0, 'full', spread(W[:4], [12, 24, 58, 64])), {f'V{it}', f'K{it+1}'})
        if it == 13:
            X = k.kv_extra(13, 1)
            X = {g: L for g, L in X.items()}
            D = G.dma_V(15, (13 + 3) & 3, f's{G.sVsoff}')
            X = {0: [f's_add_u32 m0, s{G.sDma}, {G.LDS_V}', f's_and_b32 s{G.sVsoff}, s{G.sVsoff}, 0x3ffff'], 2: [D[0]], 4: [D[1]], 6: [D[2]], 8: [D[3]], 61: [f's_xor_b32 s{G.sXor}, s{G.sXor}, 0x8000']}
            X = merge(X, spread(W[4:], [12, 16, 20, 58, 64]))
        else:
            X = spread(W[4:], [4, 12, 20, 58, 64])
            X.setdefault(61, []).append(f's_xor_b32 s{G.sXor}, s{G.sXor}, 0x8000')
        emit(k.step(2 * it + 1, 1, 'full', X), set())
    W = wo_dma(2)
    emit(k.step(30, 0, 'nok', spread(W, [12, 16, 24, 44, 48, 52, 56, 60, 64])), {'V15', 'WO0', 'WO1'})
    L31 = k.step(31, 1, 'last')
    W3 = wo_dma(3)
    pos = [i for i, x in enumerate(L31) if x.startswith('v_mfma')]
    cut = pos[0]
    e(L31[:cut])
    e(f's_cmp_eq_u32 s{G.sW}, 3\ns_cbranch_scc1 L_now3', trace=False)
    for g in W3: e([x.split(';')[0] for x in g], trace=False)
    k.p('L_now3:')
    e(L31[cut:])
    k.stamp('p2end')

def poll_dual(k, name, vaddr, soff_reg, nbits):
    e = k.e; T = G.vT
    full = (1 << (1 << nbits)) - 1
    e(f's_mov_b32 s{sCnt}, 0\ns_mov_b32 s{G.sT2}, 0\ns_add_u32 s{G.sT3 if False else 88}, s{soff_reg}, {G.FTWIN}', trace=False)
    k.p(f'L_poll_{name}:')
    e(f'''s_and_b32 s{G.sT1}, s{sCnt}, 7
s_cmp_eq_u32 s{G.sT1}, 7
s_cselect_b32 s89, s{soff_reg}, s88
s_add_u32 s{sCnt}, s{sCnt}, 1
buffer_load_dword v{T+1}, v{vaddr}, s[{G.sWS}:{G.sWS+3}], s89 offen sc1
s_waitcnt vmcnt(0)
v_cmp_eq_u32 vcc, 1, v{T+1}
s_nop 1
s_or_b32 s{G.sT2}, s{G.sT2}, vcc_lo
s_and_b32 s{G.sT1}, s{G.sT2}, {full}
s_cmp_eq_u32 s{G.sT1}, {full}
s_cbranch_scc1 L_pollx_{name}
s_cmp_ge_u32 s{sCnt}, 0x8000
s_cbranch_scc0 L_poll_{name}''', trace=False)
    k.p(f'L_pollx_{name}:')
    k.tr.append('s_waitcnt vmcnt(0)')

def poll(k, name, vaddr, soff_reg):
    e = k.e
    e(f's_mov_b32 s{sCnt}, 0', trace=False)
    k.p(f'L_poll_{name}:')
    e(f'''buffer_load_dword v{G.vT+1}, v{vaddr}, s[{G.sWS}:{G.sWS+3}], s{soff_reg} offen sc1
s_add_u32 s{sCnt}, s{sCnt}, 1
s_waitcnt vmcnt(0)
v_cmp_ne_u32 vcc, 1, v{G.vT+1}
s_cmp_ge_u32 s{sCnt}, 0x4000
s_cbranch_scc1 L_pollx_{name}
s_cbranch_vccz L_pollx_{name}
s_sleep 1
s_branch L_poll_{name}''', trace=False)
    k.p(f'L_pollx_{name}:')
    k.tr.append('s_waitcnt vmcnt(0)')

def set_flag(k, off_vreg, dual=False):
    o = ['s_mov_b64 exec, 1']
    if dual: o.append(f'buffer_store_dword v{vOne}, v{off_vreg}, s[{G.sWS}:{G.sWS+3}], s91 offen')
    o += [f'buffer_store_dword v{vOne}, v{off_vreg}, s[{G.sWS}:{G.sWS+3}], s{sFl} offen sc1', 's_mov_b64 exec, -1']
    return o

vOne = 20; vF1 = 21; vF2a = 24; vF2b = 25
vPk = [32, 68]

def phase3(k):
    e = k.e; T = G.vT; L = G.vLane
    e('s_nop 4')
    rp = [T, T + 2, T + 4, 122]
    sBad = 88
    for qt in range(4): e(f'v_rcp_f32 v{rp[qt]}, v{G.LA(qt)}')
    e(f's_mov_b32 s{G.sT0}, 0x6f800000')
    for qt in range(4):
        e(f'v_cmp_nlt_f32 vcc, v{G.LA(qt)}, v{G.LA(qt)}') if False else None
    e(f'v_mov_b32 v{G.vT2+1}, s{G.sT0}')
    e(f's_mov_b64 s[{sBad}:{sBad+1}], 0')
    for qt in range(4):
        e(f'v_cmp_nlt_f32 vcc, v{G.LA(qt)}, v{G.vT2+1}\ns_nop 0\ns_or_b64 s[{sBad}:{sBad+1}], s[{sBad}:{sBad+1}], vcc')
    e(f'''v_lshlrev_b32 v{vAd}, 4, v{L}
s_lshl_b32 s{sFl}, s{G.sB}, 5
s_add_u32 s{sFl}, s{sFl}, s{G.sH}
s_lshl_b32 s{sOst}, s{sFl}, 2
s_add_u32 s{sOst}, s{sOst}, s{G.sW}
s_lshl_b32 s{sOst}, s{sOst}, 14
s_lshl_b32 s{sFl}, s{sFl}, 7
s_add_u32 s{sFl}, s{sFl}, {G.FBASE}
s_add_u32 s91, s{sFl}, {G.FTWIN}''')
    for qt in range(4): e(f'v_mov_b32 v{rp[qt]+1}, v{rp[qt]}')
    for p in range(9): e(f'v_mov_b32 v{96+p}, v{vWoD+p}')
    for i in range(1, 4): e(f'v_add_u32 v{vAd+i}, {4096*i}, v{vAd}')
    vPr = 108
    prev = None; nprobe = 0
    for ks in range(4):
        for qt in range(4):
            for x in range(2):
                b = G.O(2 * ks + x, qt); r = rp[qt]
                e(f'v_pk_mul_f32 v[{b}:{b+1}], v[{b}:{b+1}], v[{r}:{r+1}]\nv_pk_mul_f32 v[{b+2}:{b+3}], v[{b+2}:{b+3}], v[{r}:{r+1}]')
            if prev is not None:
                e(mfma(vr(vPr, 4), ar(G.aZero, 4), vr(prev, 4), '0' if nprobe == 0 else vr(vPr, 4))); nprobe += 1
            for x in range(2):
                b = G.O(2 * ks + x, qt); d = Own(qt, ks) + 2 * x
                e(f'v_cvt_pk_bf16_f32 v{d}, v{b}, v{b+1}\nv_cvt_pk_bf16_f32 v{d+1}, v{b+2}, v{b+3}')
            if ks == 0 or cfg.early_ost:
                e(f'buffer_store_dwordx4 v[{Own(qt,ks)}:{Own(qt,ks)+3}], v{vAd+qt}, s[{G.sWS}:{G.sWS+3}], s{sOst} offen offset:{ks*1024} sc1')
            prev = Own(qt, ks)
    e('s_nop 1')
    e(mfma(vr(vPr, 4), ar(G.aZero, 4), vr(prev, 4), vr(vPr, 4)))
    ost = [f'buffer_store_dwordx4 v[{Own(qt,ks)}:{Own(qt,ks)+3}], v{vAd+qt}, s[{G.sWS}:{G.sWS+3}], s{sOst} offen offset:{ks*1024} sc1' for ks in range(1, 4) for qt in range(4)]
    if cfg.early_ost: ost = []
    e(f'''s_lshl_b32 s{G.sT0}, s{G.sW}, 2
s_add_u32 s{G.sT0}, s{G.sT0}, 64512
v_mov_b32 v{T}, s{G.sT0}
v_mov_b32 v{vOne}, 1
s_nop 3
v_cmp_u_f32 vcc, v{vPr}, v{vPr}
s_nop 0
s_or_b64 s[{sBad}:{sBad+1}], s[{sBad}:{sBad+1}], vcc
s_cmp_lg_u64 s[{sBad}:{sBad+1}], 0
s_cselect_b32 s{G.sT0}, 1, 0
v_mov_b32 v{T+1}, s{G.sT0}
ds_write_b32 v{T}, v{T+1}
v_mov_b32 v{T+2}, 64512''')
    n = k.vm_need({'WO2', 'REG'})
    e(f's_cmp_eq_u32 s{G.sW}, 3\ns_cbranch_scc1 L_vw3\ns_waitcnt vmcnt({n+9}) lgkmcnt(0)\ns_branch L_vw4', trace=False)
    k.p('L_vw3:')
    e(f's_waitcnt vmcnt({n}) lgkmcnt(0)')
    k.p('L_vw4:')
    e('s_barrier')
    e(f'ds_read_b128 v[124:127], v{T+2}')
    e(f'v_readfirstlane_b32 s90, v{G.vT2}')
    k.stamp('p3pk')
    e(f'''v_lshrrev_b32 v30, 4, v{L}
v_bfe_u32 v31, v{L}, 2, 2
v_lshl_add_u32 v30, v30, 2, v31
v_mul_u32_u24 v30, 288, v30
v_and_b32 v31, 3, v{L}
v_lshl_add_u32 v{vR}, v31, 3, v30
v_add_u32 v{vR+1}, 61440, v{vR}
v_add_u32 v{vR+2}, 122880, v{vR}
v_mov_b32 v{vOne}, 1
s_lshl_b32 s{G.sT0}, s{G.sW}, 2
v_mov_b32 v{vF1}, s{G.sT0}
s_lshl_b32 s{G.sT0}, s{G.sW}, 3
s_add_u32 s{G.sT0}, s{G.sT0}, 16
v_mov_b32 v{vF2a}, s{G.sT0}
s_add_u32 s{G.sT0}, s{G.sT0}, 4
v_mov_b32 v{vF2b}, s{G.sT0}''')
    e(f'''s_waitcnt lgkmcnt(0)
v_or_b32 v124, v124, v125
v_or3_b32 v124, v124, v126, v127
s_nop 0
v_readfirstlane_b32 s{G.sT0}, v124
s_andn2_b32 s{G.sT0}, s{G.sT0}, s{G.sMode}
s_cmp_lg_u32 s{G.sT0}, 0
s_cbranch_scc1 L_fallback''')
    assert cfg.early_ost
    e(f's_cmp_eq_u32 s{G.sW}, 3\ns_cbranch_scc0 L_no315', trace=False)
    for g in wo_dma(3, 96): e([x.split(';')[0] for x in g], trace=False)
    k.p('L_no315:')
    def a_read(c, nt, slot):
        base = rbase(REG[c]); idx = base // 61440
        return [f'ds_read_b64_tr_b16 a[{aA+4*slot+2*u}:{aA+4*slot+2*u+1}], v{vR+idx} offset:{base-61440*idx+u*4608+nt*32}' for u in range(2)]
    seq = [(c, nt, (0, 1, 2, 3)) for c in range(4) for nt in range(9)]
    seq += [(c, nt, (0, 1)) for c in range(4, 16) for nt in range(9)]
    seq += [(c, nt, (2, 3)) for c in range(4, 16) for nt in range(9)]
    AH_OWN, AH = 6, 8
    for i in range(AH_OWN): e(a_read(seq[i][0], seq[i][1], i % 16))
    for hp in range(3):
        e(f'''s_add_u32 s{G.sT0}, s{G.sNb}, {hp+1}
s_and_b32 s{G.sT0}, s{G.sT0}, 3
s_lshl_b32 s{G.sT1}, s{G.sKg}, 2
s_add_u32 s{G.sT0}, s{G.sT0}, s{G.sT1}
s_lshl_b32 s{G.sT1}, s{G.sB}, 5
s_add_u32 s{G.sT0}, s{G.sT0}, s{G.sT1}
s_lshl_b32 s{G.sT0}, s{G.sT0}, 2
s_add_u32 s{G.sT0}, s{G.sT0}, s{G.sW}
s_lshl_b32 s{sPh+hp}, s{G.sT0}, 14''')
    k.stamp('p3go')
    def part_load(hp, qt, ks):
        return f'buffer_load_dwordx4 a[{Part(hp,qt,ks)}:{Part(hp,qt,ks)+3}], v{vAd+qt}, s[{G.sWS}:{G.sWS+3}], s{sPh+hp} offen offset:{ks*1024}'
    loads = [[part_load(hp, qt, ks) for ks in range(4) for qt in (2 * half, 2 * half + 1)] for half in range(2) for hp in range(3)]
    paddr = f'''s_lshl_b32 s{G.sT0}, s{G.sB}, 2
s_add_u32 s{G.sT0}, s{G.sT0}, s{G.sNb}
s_lshl_b32 s{G.sT0}, s{G.sT0}, 3
s_lshl_b32 s{G.sT1}, s{G.sW}, 1
s_add_u32 s{G.sT1}, s{G.sT0}, s{G.sT1}
s_lshl_b32 s{G.sT1}, s{G.sT1}, 4
s_add_u32 s{G.sT1}, s{G.sT1}, s{G.sKg}
s_mul_i32 s{sPst}, s{G.sT1}, 5120
s_add_u32 s{sPst}, s{sPst}, {G.PBASE}
s_add_u32 s{G.sT0}, s{G.sT0}, s{G.sKg}
s_mul_i32 s{G.sT3}, s{G.sT0}, {16*5120}
s_add_u32 s{G.sT3}, s{G.sT3}, {G.PBASE}'''
    def pack_store(half):
        cv = []; st = []
        for x in range(2):
            qt = 2 * half + x
            for blk in range(5):
                d = D(2 * blk, qt)
                cv += [f'v_cvt_pk_bf16_f32 v{d}, v{d}, v{d+1}', f'v_cvt_pk_bf16_f32 v{d+1}, v{d+2}, v{d+3}']
                if blk < 4:
                    b_ = D(2 * blk + 1, qt)
                    cv += [f'v_cvt_pk_bf16_f32 v{d+2}, v{b_}, v{b_+1}', f'v_cvt_pk_bf16_f32 v{d+3}, v{b_+2}, v{b_+3}']
                g = []
                if blk == 0: g.append(f's_add_u32 s{sOst}, s{sPst}, {x*81920 + half*40960}')
                g.append(f'buffer_store_dwordx4 v[{d}:{d+3}], v{vAd + (blk >> 2)}, s[{G.sWS}:{G.sWS+3}], s{sOst} offen offset:{(blk & 3)*1024} sc1')
                st.append(g)
        return cv, st
    R = 32; SUM = 80
    def fin_addr(part):
        return f'''v_and_b32 v{T}, 7, v{L}
v_lshlrev_b32 v{T}, 2, v{T}
v_add_u32 v{T}, s{G.sNb}, v{T}
v_lshlrev_b32 v{T}, 7, v{T}
s_lshr_b32 s{G.sT0}, s{G.sKg}, 1
s_lshl_b32 s{G.sT0}, s{G.sT0}, 3
s_add_u32 s{G.sT0}, s{G.sT0}, {16 + 4*part}
v_add_u32 v{T}, s{G.sT0}, v{T}
s_lshl_b32 s{G.sT0}, s{G.sB}, 12
s_add_u32 s{G.sT0}, s{G.sT0}, {G.FBASE}'''
    def fin_loads(part):
        o = []
        for src in range(8):
            o.append([f's_add_u32 s{G.sT1}, s{G.sT3}, {part*40960 + src*5120}',
                      f'buffer_load_dwordx4 v[{R+4*src}:{R+4*src+3}], v{vAd+4}, s[{G.sWS}:{G.sWS+3}], s{G.sT1} offen',
                      f'buffer_load_dwordx2 v[{R+32+2*src}:{R+32+2*src+1}], v{vAd+5}, s[{G.sWS}:{G.sWS+3}], s{G.sT1} offen'])
        return o
    def fin_reduce(part):
        e(f's_waitcnt vmcnt({k.vm_need({f"FIN{part}"})})')
        e(f's_mov_b32 s{G.sT1}, 0x00003f80\ns_mov_b32 s{G.sT2}, 0x3f800000')
        for src in range(8):
            for j in range(4):
                for hi_ in range(2):
                    acc = SUM + 2 * j + hi_
                    e(f'v_dot2_f32_bf16 v{acc}, v{R+4*src+j}, s{G.sT1+hi_}, {"0" if src == 0 else f"v{acc}"}')
            for j in range(2):
                for hi_ in range(2):
                    acc = SUM + 8 + 2 * j + hi_
                    e(f'v_dot2_f32_bf16 v{acc}, v{R+32+2*src+j}, s{G.sT1+hi_}, {"0" if src == 0 else f"v{acc}"}')
        e('s_nop 2')
        for j in range(6): e(f'v_cvt_pk_bf16_f32 v{SUM+12+j}, v{SUM+2*j}, v{SUM+2*j+1}')
        e(f'''s_add_u32 s{G.sT0}, s{sPh}, {part*32*1152}
s_cmp_ge_u32 s{G.sW}, 1
s_cselect_b32 s{G.sT1}, 0x7ffff000, s{G.sT0}
s_lshl_b32 s{G.sT2}, s{G.sW}, 6
s_add_u32 s{G.sT0}, s{G.sT0}, s{G.sT2}
buffer_store_dwordx2 v[{SUM+12}:{SUM+13}], v{vAd+6}, s[{G.sOut}:{G.sOut+3}], s{G.sT0} offen{cfg.out_flag}
buffer_store_dwordx2 v[{SUM+14}:{SUM+15}], v{vAd+6}, s[{G.sOut}:{G.sOut+3}], s{G.sT0} offen offset:32{cfg.out_flag}
buffer_store_dwordx2 v[{SUM+16}:{SUM+17}], v{vAd+6}, s[{G.sOut}:{G.sOut+3}], s{G.sT1} offen offset:256{cfg.out_flag}''')
    issued = AH_OWN
    SPL, POL = cfg.own_split
    seg_bounds = [(0, 9 * SPL), (9 * SPL, 9 * POL), (9 * POL, 36), (36, 144), (144, 252)]
    extra = {}
    def place(i0, items, every):
        for n_, it_ in enumerate(items):
            extra.setdefault(i0 + n_ * every, []).append(it_ if isinstance(it_, list) else [it_])
    if ost: place(1, ost, max(1, (9 * SPL - 2) // len(ost)))
    place(36 + 1, loads[2], 1)
    place(36 + 18, loads[3], cfg.l3_every)
    place(36 + 70, loads[4], 2)
    place(36 + 88, loads[5], 2)
    for seg, (lo, hi) in enumerate(seg_bounds):
        if seg == 1:
            nn = k.vm_need({'OST'})
            e(f's_cmp_eq_u32 s{G.sW}, 3\ns_cbranch_scc1 L_ow3\ns_waitcnt vmcnt({nn})\ns_branch L_ow4', trace=False)
            k.p('L_ow3:')
            e(f's_waitcnt vmcnt({nn+9})', trace=False)
            k.p('L_ow4:')
            k.tr.append(f's_waitcnt vmcnt({nn})')
            e(set_flag(k, vF1, dual=cfg.dualflag))
            k.stamp('p3d1')
            e(paddr)
        if seg == 2:
            e(f's_mov_b32 s{G.sT2}, s90')
            k.p('L_regchk:')
            e(f's_cmp_ge_u32 s{G.sT2}, 32\ns_cbranch_scc1 L_regok')
            e(f'''s_add_u32 s{G.sPass}, s{G.sPass}, 1
s_cmp_ge_u32 s{G.sPass}, 0x4000
s_cbranch_scc1 L_regok
s_lshl_b32 s{G.sT0}, s{G.sB}, 5
v_mov_b32 v{G.vT2}, s{G.sT0}
s_sleep 1
global_load_dword v{G.vT2}, v{G.vT2}, s[16:17] sc1
s_waitcnt vmcnt(0)
v_readfirstlane_b32 s{G.sT2}, v{G.vT2}
s_branch L_regchk''', trace=False)
            k.p('L_regok:')
            e(f'''v_and_b32 v{T}, 3, v{L}
s_lshl_b32 s{G.sT0}, s{G.sKg}, 2
v_add_u32 v{T}, s{G.sT0}, v{T}
v_lshlrev_b32 v{T}, 7, v{T}
v_add_u32 v{T}, v{T}, v{vF1}
s_lshl_b32 s{G.sT0}, s{G.sB}, 12
s_add_u32 s{G.sT0}, s{G.sT0}, {G.FBASE}''')
            if cfg.dualflag:
                poll_dual(k, 'f1', T, G.sT0, 2)
            else: poll(k, 'f1', T, G.sT0)
            k.stamp('p3f1')
            for x in loads[0] + loads[1]: e(x)
        for i in range(lo, hi):
            c, nt, qts = seq[i]
            half = 0 if seg == 3 else 1
            slot = i % 16
            ah = AH_OWN if seg < 3 else AH
            rd = []
            while issued < min(len(seq), i + ah + 1):
                rd += a_read(seq[issued][0], seq[issued][1], issued % 16); issued += 1
            younger = 2 * (issued - len(rd) // 2 - 1 - i)
            pre = [f's_waitcnt lgkmcnt({min(15, younger)})']
            if seg >= 3 and nt == 0:
                pre.append(f's_waitcnt vmcnt({k.vm_need({f"PH{(c>>2)-1}_{half}_{c&3}"})})')
                if seg == 3 and c == 9: pre.append('s_barrier')
            hook = None
            if seg == 4 and nt == 0 and c == cfg.f2a_c: hook = 'f2a'
            if seg == 4 and nt == 0 and c == cfg.fin0_c: hook = 'fin0'
            mf = []
            for qt in qts:
                Bop = vr(Own(qt, c), 4) if c < 4 else ar(Part((c >> 2) - 1, qt, c & 3), 4)
                Cop = '0' if c == 0 else vr(D(nt, qt), 4)
                mf.append(mfma(vr(D(nt, qt), 4), ar(aA + 4 * slot, 4), Bop, Cop))
            if hook == 'f2a':
                e(f's_waitcnt vmcnt({k.vm_need({"PS0"})})'); e(set_flag(k, vF2a, dual=cfg.dualflag))
            if hook == 'fin0':
                e(f'''v_lshlrev_b32 v{vAd+4}, 4, v{L}
s_lshl_b32 s{G.sT1}, s{G.sW}, 10
v_add_u32 v{vAd+5}, 4096, v{vAd+4}
v_add_u32 v{vAd+4}, s{G.sT1}, v{vAd+4}
s_cmp_ge_u32 s{G.sW}, 1
s_cselect_b32 s{G.sT1}, 0x40000000, 0
v_add_u32 v{vAd+5}, s{G.sT1}, v{vAd+5}
v_and_b32 v{vAd+6}, 15, v{L}
v_mul_u32_u24 v{vAd+6}, 1152, v{vAd+6}
v_lshrrev_b32 v{vAd+7}, 4, v{L}
v_lshl_add_u32 v{vAd+6}, v{vAd+7}, 3, v{vAd+6}
s_lshr_b32 s{G.sT0}, s{G.sKg}, 1
s_lshl_b32 s{G.sT0}, s{G.sT0}, 2
s_and_b32 s{G.sT1}, s{G.sKg}, 1
s_add_u32 s{G.sT0}, s{G.sT0}, s{G.sT1}
s_lshl_b32 s{G.sT1}, s{G.sB}, 4
s_add_u32 s{G.sT0}, s{G.sT0}, s{G.sT1}
s_mul_i32 s{sPh}, s{G.sT0}, {16*1152}
s_mul_i32 s{G.sT1}, s{G.sNb}, 288
s_add_u32 s{sPh}, s{sPh}, s{G.sT1}''')
                e(fin_addr(0))
                poll_dual(k, 'f2a', T, G.sT0, 3)
                k.stamp('p3f2a')
                place(i, fin_loads(0), 1)
            e(pre)
            e(mf[0]); e(rd)
            e(mf[1])
            for x in extra.pop(i, []): e(x)
            for m in mf[2:]: e(m)
        k.stamp(f'p3seg{seg}')
        if seg == 3:
            e('s_nop 4')
            cv, st = pack_store(0); e(cv)
            place(144, st, cfg.ps0_every)
        if seg == 4:
            e('s_nop 4')
            cv, st = pack_store(1)
            e(cv[:18]);
            for g in st[:5]: e(g)
            e(cv[18:])
            for g in st[5:]: e(g)
    assert not extra, extra.keys()
    k.stamp('p3mm')
    e(f's_waitcnt vmcnt({k.vm_need({"PS1"})})'); e(set_flag(k, vF2b, dual=cfg.dualflag))
    k.stamp('p3st')
    fin_reduce(0)
    k.stamp('p3r0')
    e(fin_addr(1))
    poll_dual(k, 'f2b', T, G.sT0, 3)
    k.stamp('p3f2')
    for g in fin_loads(1): e(g)
    k.stamp('p3fi')
    fin_reduce(1)
```

```python
import sys, math, struct
from asmlib import *

NAME = 'standalone__mha_block_cached__near_ridge'

class Cfg:
    stamps = False
    kv_flag = ' nt'
    x_flag = ''
    w_flag = ''
    wo_flag = ''
    force_safe = False
    ablate = ''
    l1inv = False
    codepf = True
    w4 = False
    wmall = False
    rot = True
    pad = 0
    dbgstamps = 0
    mapx = True
    dualflag = True
    out_flag = ''
    bswap = 0
    coop_pre = (0, 1, 2, 3, 4, 5, 6, 7, 8)
    coop_mid = ()
    coop_skip = ()
    coop_wait = None
    early_ost = True
    own_split = (0, 2)
    ps0_every = 2
    f2a_c = 10
    fin0_c = 14
    l3_every = 6
    kv_same = False
cfg = Cfg()

sW = 3
sX, sWq, sK, sV, sWS, sWo, sOut = 20, 24, 28, 32, 36, 40, 44
sW4K = 48; sKsoff = 49; sVsoff = 50; sDma = 51; sXor = 52; sIter = 53
sT0, sT1, sT2, sT3 = 54, 55, 56, 57
sC = 58
sXsoff = 60; sWsoff = 61; sW8K = 62; sDelta = 63
sB = 64; sH = 65; sJ = 66; sMode = 67
sKg = 68; sNb = 69; sRot = 70; sPass = 71
sStamp = 72

vLane = 1
vT = 2
vKA = 8
vVA = 12
vDK = 20
vDV = 24
vMG = 26
vT2 = 30
vS = 32
vC = 64
vP = 80
vL = 96
vXA = 112; vWA = 114
vWB = 120
vCo = 118
vOX = 32; vOW = 40
vWoD = 112
vWoR = 121
vAcc = 128
aQ = 0; aKf = 64; aVf = 96; aOnes = 252; aZero = 188
aPA = 96; aPB = 64

def O(dt, qt): return vAcc + (dt * 4 + qt) * 4
def S(qt, kt): return vS + qt * 8 + kt * 4
def CI(qt): return vC + 4 * qt
def P(qt): return vP + 4 * qt
def LA(qt): return vL + 4 * qt
def Qf(qt, ds): return aQ + (qt * 4 + ds) * 4
def Kf(m): return aKf + 4 * m
def Vf(dt): return aVf + 4 * dt

LDS_V = 65536
XS = [32768, 81920]
WS = [114688, 131072, 147456, 16384]
def NWS(): return 4 if cfg.mapx and cfg.w4 else 3
OBASE = 0
PBASE = 16 << 20
FBASE = 60 << 20
FTWIN = 1 << 16
STAMPBASE = 64 << 20

def kb(fn): return ','.join(str(fn(w) // 1024) for w in range(4))
def stamp_reg(i): return [72, 76, 80, 4, 8, 12, 92][i]
def mfma(d, a, b, c): return f'v_mfma_f32_16x16x32_bf16 {d}, {a}, {b}, {c}'

class Slots:
    def __init__(self, n):
        self.pre = [[] for _ in range(n)]
        self.post = [[] for _ in range(n)]
        self.mf = [None] * n
    def out(self):
        o = []
        for i in range(len(self.mf)):
            o += self.pre[i]
            if self.mf[i]: o.append(self.mf[i])
            o += self.post[i]
        return o
    def load(self):
        def cost(x):
            mn = x.split()[0]
            if mn.startswith('v_exp') or mn.startswith('v_rcp'): return 8
            return 4
        n = len(self.mf); res = []
        for i in range(n):
            g = self.post[i] + (self.pre[i + 1] if i + 1 < n else [])
            res.append(sum(cost(x) for x in g))
        return res

def dma_K(tile, slot, soff):
    L = []
    for p in range(4):
        a = lambda w, p=p: slot * 16384 + w * 4096 + p * 1024
        L.append(f'buffer_load_dwordx4 v{vDK+p}, s[{sK}:{sK+3}], {soff} offen offset:{p*1024}{cfg.kv_flag} lds ; @dma K{tile} {kb(a)}')
    return L
def dma_V(tile, slot, soff):
    L = []
    for p in range(4):
        a = lambda w, p=p: LDS_V + slot * 16384 + w * 4096 + p * 1024
        L.append(f'buffer_load_dwordx4 v{vDV+(p&1)}, s[{sV}:{sV+3}], {soff} offen offset:{p*1024}{cfg.kv_flag} lds ; @dma V{tile} {kb(a)}')
    return L

def dma_W(c):
    G = []
    for p in range(4):
        a = lambda w, p=p: WS[c % NWS()] + w * 4096 + p * 1024
        ins = f'buffer_load_dwordx4 v{vOW+p}, s[{sWq}:{sWq+3}], s{sWsoff} offen offset:{p*1024}{cfg.w_flag} lds ; @dma W{c} {kb(a)}'
        g = [ins]
        if p == 0: g = [f's_add_u32 m0, s{sW4K}, {WS[c%NWS()]}', f's_mov_b32 s{sWsoff}, {c*524288}', ins]
        G.append(g)
    return G
def dma_X(c):
    G = []
    for p in range(8):
        a = lambda w, p=p: XS[c % 2] + w * 8192 + p * 1024
        ins = f'buffer_load_dwordx4 v{vOX+p}, s[{sX}:{sX+3}], s{sXsoff} offen offset:{(p&3)*1024}{cfg.x_flag} lds ; @dma X{c} {kb(a)} priv'
        g = [ins]
        if p == 0: g = [f's_add_u32 m0, s{sW8K}, {XS[c%2]}', f's_mov_b32 s{sXsoff}, {c*128}', ins]
        if p == 4: g = [f's_add_u32 m0, s{sW8K}, {XS[c%2]+4096}', 's_nop 0', ins]
        G.append(g)
    return G

def kv_dma_addr():
    T = vT; L = vLane
    o = f'''v_lshrrev_b32 v{T+1}, 4, v{L}
v_and_b32 v{T+3}, 15, v{L}
v_mov_b32 v{T+4}, v{T+1}'''.split('\n')
    for p in range(4):
        o += [f'v_add_u32 v{T+2}, {4*p}, v{T+1}', f'v_xor_b32 v{T+2}, v{T+2}, v{T+3}', f'v_lshlrev_b32 v{T+2}, 4, v{T+2}', f'v_lshl_add_u32 v{vDK+p}, v{T+4}, 8, v{T+2}']
    for par in range(2):
        o += [f'v_add_u32 v{T+2}, {4*par}, v{T+1}', f'v_lshlrev_b32 v{T+2}, 1, v{T+2}', f'v_xor_b32 v{T+2}, v{T+2}, v{T+3}', f'v_lshlrev_b32 v{T+2}, 4, v{T+2}', f'v_lshl_add_u32 v{vDV+par}, v{T+4}, 8, v{T+2}']
    return o
def kv_read_addr():
    T = vT; L = vLane
    o = [f'v_lshrrev_b32 v{T}, 4, v{L}', f'v_bfe_u32 v{T+1}, v{L}, 2, 2', f'v_and_b32 v{T+2}, 3, v{L}', f'v_and_b32 v{T+3}, 15, v{L}',
         f'v_lshlrev_b32 v{T+4}, 8, v{T+3}']
    for ds in range(4):
        o += [f'v_add_u32 v{T+5}, {4*ds}, v{T}', f'v_xor_b32 v{T+5}, v{T+5}, v{T+3}', f'v_lshl_add_u32 v{vKA+ds}, v{T+5}, 4, v{T+4}']
    o += f'''v_lshl_add_u32 v{T+4}, v{T}, 2, v{T+1}
v_and_b32 v{vT2}, 7, v{T+4}
v_lshlrev_b32 v{vT2}, 1, v{vT2}
v_lshlrev_b32 v{T+4}, 8, v{T+4}
v_and_b32 v{T+5}, 1, v{T+2}
v_lshl_add_u32 v{T+4}, v{T+5}, 3, v{T+4}
v_add_u32 v{T+4}, {LDS_V}, v{T+4}
v_lshrrev_b32 v{vT2+1}, 1, v{T+2}'''.split('\n')
    for dt in range(8):
        o += [f'v_add_u32 v{T+5}, {2*dt}, v{vT2+1}', f'v_xor_b32 v{T+5}, v{T+5}, v{vT2}', f'v_lshl_add_u32 v{vVA+dt}, v{T+5}, 4, v{T+4}']
    return o

def p1_reads(c, n, buf):
    A = aPA + buf * 32; B = aPB + buf * 16
    def W(dt, u):
        ds, x = dt >> 1, dt & 1
        st = c % NWS()
        reg, so = (vWA + ds, st * 16384) if st < 3 else (vWB + ds, 0)
        return f'ds_read_b64_tr_b16 a[{A+4*dt+2*u}:{A+4*dt+2*u+1}], v{reg} offset:{so+(32*n+4*u)*256+8*x} ; @rd W{c}'
    def X(qt): return f'ds_read_b128 a[{B+4*qt}:{B+4*qt+3}], v{vXA+n} offset:{(c%2)*49152+qt*2048} ; @rd X{c}'
    R = [X(0), W(0, 0), W(0, 1), X(1), X(2), X(3)]
    for dt in range(1, 8): R += [W(dt, 0), W(dt, 1)]
    return R

def p1_kstep(k, c, n, groups, last=False):
    Sl = Slots(32)
    buf = n & 1
    for m in range(32):
        dt, qt = m >> 2, m & 3
        Sl.mf[m] = mfma(vr(O(dt, qt), 4), ar(aPA + buf * 32 + 4 * dt, 4), ar(aPB + buf * 16 + 4 * qt, 4), '0' if (c == 0 and n == 0) else vr(O(dt, qt), 4))
    if n == 0: R = p1_reads(c, 1, 1)
    else: R = [] if last else p1_reads(c + 1, 0, 0)
    if n == 1:
        vm = (k.vm_need({f'X{c+1}', f'W{c+1}'}) if not cfg.ablate else 20) if not last else 63
        Sl.pre[0] += [f's_waitcnt vmcnt({vm}) lgkmcnt(0)', 's_barrier']
    else: Sl.pre[0] += ['s_waitcnt lgkmcnt(0)']
    ab = cfg.ablate
    if 'p1rd' in ab: R = []
    if 'p1x' in ab: groups = [[x for x in g if '@dma X' not in x] for g in groups]
    if 'p1w' in ab: groups = [[x for x in g if '@dma W' not in x] for g in groups]
    if 'p1kv' in ab: groups = [[x for x in g if '@dma K' not in x and '@dma V' not in x] for g in groups]
    for i, r in enumerate(R): Sl.post[2 * (i // 2)].append(r)
    if groups:
        nn = len(groups)
        for i, g in enumerate(groups):
            Sl.post[min(31, 1 + 2 * ((i * 16) // nn))] += g
    return Sl.out()

class Kernel:
    def __init__(self):
        self.p = Prog(); self.tr = []; self.nstamp = 0; self.q = []
    def e(self, s, text=True, trace=True):
        if isinstance(s, str): s = [x.strip() for x in s.split('\n') if x.strip()]
        if text: self.p(s)
        if trace: self.tr.extend(s)
    def stamp(self, name):
        if cfg.stamps and name in cfg.stamps:
            i = cfg.stamps.index(name); b = stamp_reg(i)
            self.e(f's_memrealtime s[{b}:{b+1}]\ns_memtime s[{b+2}:{b+3}]')
            self.nstamp = max(self.nstamp, i + 1)
    def vm_need(self, tags):
        q = []
        for line in self.tr:
            code, _, com = line.partition(';')
            mn = code.split()[0] if code.split() else ''
            if mn.startswith('buffer_') and mn not in ('buffer_inv', 'buffer_wbl2') or mn.startswith('global_'):
                t = None
                a = com.split()
                if '@dma' in a: t = a[a.index('@dma') + 1]
                elif '@tag' in a: t = a[a.index('@tag') + 1]
                q.append(t)
        for t in tags: assert t in q, f'tag {t} was never issued'
        last = max((i for i, t in enumerate(q) if t in tags), default=-1)
        return min(63, len(q) - 1 - last)

    def header(self):
        self.p(f'; @launch grid=(256,1,1) block=(256,1,1) lds=163840')
        if cfg.stamps: self.p('; stamps: ' + ','.join(cfg.stamps))
        self.p('.amdgcn_target "amdgcn-amd-amdhsa--gfx950"\n.text')
        self.p(f'.globl {NAME}_kernel\n.p2align 8\n.type {NAME}_kernel,@function\n{NAME}_kernel:')
    def footer(self):
        self.p('L_end:\ns_endpgm')
        self.p('.p2align 6\nL_codeend:')
        self.p('.section .rodata,"a"\n.p2align 6')
        self.p(f'.amdhsa_kernel {NAME}_kernel')
        self.p('''.amdhsa_next_free_vgpr 512
.amdhsa_next_free_sgpr 102
.amdhsa_accum_offset 256
.amdhsa_group_segment_fixed_size 0
.amdhsa_kernarg_size 64
.amdhsa_user_sgpr_count 2
.amdhsa_user_sgpr_kernarg_segment_ptr 1
.amdhsa_system_sgpr_workgroup_id_x 1
.end_amdhsa_kernel''')

    def setup(self):
        e = self.e
        e('s_cmp_ge_u32 s2, 256\ns_cbranch_scc1 L_end')
        self.stamp('entry')
        e(f's_load_dwordx16 s[4:19], s[0:1], 0')
        if cfg.codepf:
            e(f'''s_getpc_b64 s[{sT2}:{sT2+1}]
L_pc:
v_and_b32 v{vT+5}, 15, v0
s_lshr_b32 s{sT0}, s2, 3
s_and_b32 s{sT2}, s{sT2}, 0xffffff00
s_lshl_b32 s{sT0}, s{sT0}, 4
s_sub_u32 s{sT2}, s{sT2}, CODEOFF
v_add_u32 v{vT+5}, s{sT0}, v{vT+5}
s_subb_u32 s{sT3}, s{sT3}, 0
v_lshlrev_b32 v{vT+5}, 7, v{vT+5}
v_min_u32 v{vT+5}, CODELEN, v{vT+5}
global_load_dword v92, v{vT+5}, s[{sT2}:{sT2+1}]''')
        e(f'''v_and_b32 v{vLane}, 63, v0
v_lshrrev_b32 v{vT}, 6, v0
s_and_b32 s{sT0}, s2, 7
s_lshr_b32 s{sJ}, s2, 3
v_readfirstlane_b32 s{sW}, v{vT}
s_and_b32 s{sB}, s{sT0}, 1
s_xor_b32 s{sB}, s{sB}, {cfg.bswap}
s_lshl_b32 s{sB}, s{sB}, 2
s_and_b32 s{sT1}, s{sJ}, 3
s_add_u32 s{sB}, s{sB}, s{sT1}
s_lshr_b32 s{sH}, s{sT0}, 1
s_lshl_b32 s{sH}, s{sH}, 3
s_lshr_b32 s{sT1}, s{sJ}, 2
s_add_u32 s{sH}, s{sH}, s{sT1}
MAPX
s_lshr_b32 s{sKg}, s{sH}, 2
s_and_b32 s{sNb}, s{sH}, 3
s_lshl_b32 s{sW4K}, s{sW}, 12
ROT
'''.replace('ROT', f's_add_u32 s{sRot}, s{sH}, s{sB}\ns_and_b32 s{sRot}, s{sRot}, 15\ns_lshl_b32 s{sRot}, s{sRot}, 14\ns_add_u32 s{sRot}, s{sRot}, s{sW4K}' if cfg.rot else f's_mov_b32 s{sRot}, s{sW4K}').replace('MAPX', f's_mov_b32 s{sB}, s{sT0}\ns_mov_b32 s{sH}, s{sJ}' if cfg.mapx else 's_nop 0'))
        L = vLane; T = vT
        e(f'''v_lshrrev_b32 v{T}, 3, v{L}
s_lshl_b32 s{sT0}, s{sW}, 6
v_add_u32 v{T}, s{sT0}, v{T}
v_mul_u32_u24 v{T}, 1152, v{T}
v_lshrrev_b32 v{T+1}, 4, v{L}
v_and_b32 v{T+2}, 7, v{L}
v_xor_b32 v{T+3}, v{T+2}, v{T+1}
v_xor_b32 v{T+4}, 4, v{T+3}
v_lshl_add_u32 v{T+3}, v{T+3}, 4, v{T}
v_lshl_add_u32 v{T+4}, v{T+4}, 4, v{T}''')
        for p in range(8):
            e(f'v_add_u32 v{vOX+p}, {p*9216 - (p&3)*1024}, v{T+3+(p&1)}')
        e(f'''v_lshlrev_b32 v{T+2}, 2, v{T+1}
v_and_b32 v{T+3}, 15, v{L}
v_xor_b32 v{T+2}, v{T+2}, v{T+3}
v_lshlrev_b32 v{T+2}, 4, v{T+2}
s_lshl_b32 s{sT0}, s{sW}, 4
v_add_u32 v{T+4}, s{sT0}, v{T+1}
v_lshl_add_u32 v{T+5}, v{T+4}, 13, v{T+2}''')
        for p in range(4):
            e(f'v_add_u32 v{vOW+p}, {p*(32768-1024)}, v{T+5}')
        e(f'''v_lshrrev_b32 v{T+5}, 3, v{L}
s_lshr_b32 s{sT0}, s{sJ}, 2
s_lshl_b32 s{sT0}, s{sT0}, 5
s_lshl_b32 s{sT1}, s{sW}, 3
s_add_u32 s{sT0}, s{sT0}, s{sT1}
v_add_u32 v{T+5}, s{sT0}, v{T+5}
v_mul_u32_u24 v{T+5}, 1152, v{T+5}
v_and_b32 v{T+2}, 7, v{L}
v_lshl_add_u32 v{vCo}, v{T+2}, 4, v{T+5}
s_and_b32 s{sT0}, s{sJ}, 3
s_lshl_b32 s{sT0}, s{sT0}, 4
s_lshl_b32 s{sT1}, s{sW}, 2
s_add_u32 s{sT0}, s{sT0}, s{sT1}
v_add_u32 v{T+5}, s{sT0}, v{T+1}
v_lshlrev_b32 v{T+5}, 13, v{T+5}
v_and_b32 v{T+2}, 15, v{L}
v_lshl_add_u32 v{vCo+1}, v{T+2}, 4, v{T+5}''')
        if cfg.mapx:
            e(f'''v_lshrrev_b32 v{T+5}, 3, v{L}
s_lshl_b32 s{sT0}, s{sJ}, 3
v_add_u32 v{T+5}, s{sT0}, v{T+5}
v_mul_u32_u24 v{T+5}, 1152, v{T+5}
v_and_b32 v{T+2}, 7, v{L}
v_lshl_add_u32 v{vCo}, v{T+2}, 4, v{T+5}''')
        e('s_waitcnt lgkmcnt(0)')
        self.stamp('karg')
        if cfg.l1inv:
            e(f's_cmp_eq_u32 s{sW}, 0\ns_cbranch_scc0 L_noinv\nbuffer_inv sc1', trace=False)
            self.p('L_noinv:')
        e(f'''s_mul_i32 s{sT0}, s{sB}, 294912
s_add_u32 s{sX}, s4, s{sT0}
s_addc_u32 s{sX+1}, s5, 0
s_mov_b32 s{sX+2}, 294912
s_mov_b32 s{sX+3}, 0x20000
s_lshl_b32 s{sT0}, s{sH}, 8
s_add_u32 s{sWq}, s10, s{sT0}
s_addc_u32 s{sWq+1}, s11, 0
s_sub_u32 s{sWq+2}, 4718592, s{sT0}
s_mov_b32 s{sWq+3}, 0x20000
s_mov_b32 s{sWS}, s18
s_mov_b32 s{sWS+1}, s19
s_mov_b32 s{sWS+2}, 0x8000000
s_mov_b32 s{sWS+3}, 0x20000''')
        e(f's_lshl_b32 s{sW8K}, s{sW}, 13')
        def coop(c):
            if cfg.mapx:
                if c >= 3: return []
                d = 44 + 4 * c
                return [f's_lshl_b32 s{sT1}, s{sW}, 7', f'buffer_load_dwordx4 v[{d}:{d+3}], v{vCo}, s[{sX}:{sX+3}], s{sT1} offen offset:{c*512} ; @tag CO{c}']
            d = 44 + 8 * c if c < 6 else 96 + 8 * (c - 6) if c < 8 else 120
            return [f's_mov_b32 s{sT1}, {c*524288}', f'buffer_load_dwordx4 v[{d}:{d+3}], v{vCo+1}, s[{sWq}:{sWq+3}], s{sT1} offen ; @tag CO{c}',
                    f'buffer_load_dwordx4 v[{d+4}:{d+7}], v{vCo}, s[{sX}:{sX+3}], 0 offen offset:{c*128} ; @tag CO{c}']
        for c in cfg.coop_pre: e(coop(c))
        self.coop = coop
        self.stamp('dma0')
        e(f'''s_lshl_b32 s{sT0}, s{sB}, 5
s_add_u32 s{sT0}, s{sT0}, s{sH}
s_lshl_b32 s{sT0}, s{sT0}, 18''')
        if cfg.kv_same: e(f's_mov_b32 s{sT0}, 0')
        e(f'''s_add_u32 s{sK}, s6, s{sT0}
s_addc_u32 s{sK+1}, s7, 0
s_mov_b32 s{sK+2}, 262144
s_mov_b32 s{sK+3}, 0x20000
s_add_u32 s{sV}, s8, s{sT0}
s_addc_u32 s{sV+1}, s9, 0
s_mov_b32 s{sV+2}, 262144
s_mov_b32 s{sV+3}, 0x20000''')
        e(f'''s_mul_i32 s{sT0}, s{sKg}, {512*1152}
s_mul_i32 s{sT1}, s{sNb}, 288
s_add_u32 s{sT0}, s{sT0}, s{sT1}
s_add_u32 s{sWo}, s12, s{sT0}
s_addc_u32 s{sWo+1}, s13, 0
s_sub_u32 s{sWo+2}, 4718592, s{sT0}
s_mov_b32 s{sWo+3}, 0x20000
s_mov_b32 s{sOut}, s14
s_mov_b32 s{sOut+1}, s15
s_mov_b32 s{sOut+2}, 2359296
s_mov_b32 s{sOut+3}, 0x20000''')
        e(kv_dma_addr())
        self.stamp('cw0')
        if cfg.coop_wait is not None: e(f's_waitcnt vmcnt({self.vm_need({f"CO{cfg.coop_wait}"})})')
        self.stamp('cw1')
        for g in dma_W(0) + dma_X(0): e(g)
        for c in cfg.coop_mid: e(self.coop(c))
        self.stamp('d0')
        e(f'''v_lshrrev_b32 v{T}, 4, v{L}
v_bfe_u32 v{T+1}, v{L}, 2, 2
v_and_b32 v{T+2}, 3, v{L}
v_and_b32 v{T+3}, 15, v{L}''')
        e(f'''v_lshl_add_u32 v{T+4}, v{T}, 3, v{T+1}
v_lshlrev_b32 v{T+4}, 8, v{T+4}
v_lshl_add_u32 v{T+4}, v{T+2}, 4, v{T+4}
v_add_u32 v{T+4}, {WS[0]}, v{T+4}''')
        for ds in range(4):
            e(f'v_xor_b32 v{T+5}, {ds}, v{T+1}\nv_lshl_add_u32 v{vWA+ds}, v{T+5}, 6, v{T+4}')
        if NWS() == 4:
            for ds in range(4): e(f'v_subrev_u32 v{vWB+ds}, {WS[0]-WS[3]}, v{vWA+ds}')
        e(f'''s_lshl_b32 s{sT0}, s{sW}, 13
s_add_u32 s{sT0}, s{sT0}, {XS[0]}
v_lshlrev_b32 v{T+4}, 7, v{T+3}
v_add_u32 v{T+4}, s{sT0}, v{T+4}
v_lshrrev_b32 v{vT2}, 1, v{T+3}''')
        for n in range(2):
            e(f'''v_add_u32 v{T+5}, {4*n}, v{T}
v_xor_b32 v{T+5}, v{T+5}, v{vT2}
v_lshl_add_u32 v{vXA+n}, v{T+5}, 4, v{T+4}''')
        e(kv_read_addr())
        cbits = '0x%08x' % int.from_bytes(struct.pack('<f', math.log2(math.e) / math.sqrt(128.0)), 'little')
        e(f's_mov_b32 s{sC}, {cbits}\ns_mov_b32 s{sC+1}, {cbits}')
        e(f'v_mov_b32 v{T+5}, 0x3f803f80')
        for i in range(4): e(f'v_accvgpr_write_b32 a{aOnes+i}, v{T+5}')
        for i in range(4): e(f'v_accvgpr_write_b32 a{aZero+i}, 0')
        for i in range(4): e(f'v_mov_b32 v{vMG+i}, 0xff800000')
        e(f's_mov_b32 s{sPass}, 0\ns_mov_b32 s{sMode}, 0')
        for g in dma_W(1) + dma_X(1): e(g)
        if cfg.wmall:
            e(f'''s_mul_i32 s{sT0}, s2, 18432
s_mul_i32 s{sT1}, s{sW}, 4608
s_add_u32 s{sT0}, s{sT0}, s{sT1}
s_lshl_b32 s{sT1}, s{sH}, 8
s_sub_u32 s{sT0}, s{sT0}, s{sT1}
v_lshlrev_b32 v{T+5}, 4, v{L}''')
            for i in range(5):
                e(f'buffer_load_dwordx4 v[{56+4*i}:{59+4*i}], v{T+5}, s[{sWq}:{sWq+3}], s{sT0} offen offset:{min(i*1024, 3584)} ; @tag WM')
        self.stamp('d1')
        e(f'''s_lshl_b32 s{sT0}, s{sB}, 5
s_add_u32 s{sT0}, s{sT0}, s{sH}
s_lshl_b32 s{sT0}, s{sT0}, 7
s_add_u32 s{sT0}, s{sT0}, {FBASE}
v_mov_b32 v{T+2}, 0
v_and_b32 v{T+3}, 15, v{L}
v_lshlrev_b32 v{T+5}, 2, v{T+3}
v_bfe_u32 v{T+1}, v{L}, 4, 1
v_mul_u32_u24 v{T+1}, {FTWIN}, v{T+1}
v_add_u32 v{T+5}, v{T+5}, v{T+1}
v_cmp_gt_u32 vcc, 32, v{L}
v_mov_b32 v{T+4}, 0x7fffffff
s_cmp_eq_u32 s{sW}, 0
s_cselect_b64 vcc, vcc, 0
s_nop 1
v_cndmask_b32 v{T+5}, v{T+4}, v{T+5}, vcc
buffer_store_dword v{T+2}, v{T+5}, s[{sWS}:{sWS+3}], s{sT0} offen sc1 ; @tag CLR''')

    def phase1(self):
        e = self.e
        self.stamp('p1wait')
        n0 = self.vm_need({'X0', 'W0'})
        e(f's_waitcnt vmcnt({n0})\ns_barrier')
        self.stamp('p1go')
        e(p1_reads(0, 0, 0))
        def one(G, m0, extra=()):
            G = [[x] for x in G]
            G[0] = [m0] + list(extra) + (['s_nop 0'] if not extra else []) + G[0]
            return G
        K0 = one(dma_K(0, 0, f's{sKsoff}'), f's_mov_b32 m0, s{sW4K}', [f's_mov_b32 s{sKsoff}, s{sRot}'])
        K1 = one(dma_K(1, 1, f's{sKsoff}'), f's_add_u32 m0, s{sW4K}, 16384', [f's_add_u32 s{sKsoff}, s{sRot}, 16384', f's_and_b32 s{sKsoff}, s{sKsoff}, 0x3ffff'])
        K2 = one(dma_K(2, 2, f's{sKsoff}'), f's_add_u32 m0, s{sW4K}, {2*16384}', [f's_add_u32 s{sKsoff}, s{sRot}, {2*16384}', f's_and_b32 s{sKsoff}, s{sKsoff}, 0x3ffff'])
        V0 = one(dma_V(0, 1, f's{sVsoff}'), f's_add_u32 m0, s{sW4K}, {LDS_V+16384}', [f's_add_u32 s{sVsoff}, s{sRot}, 8192', f's_and_b32 s{sVsoff}, s{sVsoff}, 0x3ffff'])
        V1 = one(dma_V(1, 2, f's{sVsoff}'), f's_add_u32 m0, s{sW4K}, {LDS_V+2*16384}', [f's_add_u32 s{sVsoff}, s{sRot}, {8192+16384}', f's_and_b32 s{sVsoff}, s{sVsoff}, 0x3ffff'])
        Vm = [[f's_lshl_b32 s{sT2}, s{sW}, 11', f's_add_u32 m0, s{sT2}, {LDS_V + 8192}', f's_sub_u32 s{sT2}, s{sRot}, s{sT2}']]
        for p in range(2):
            a = lambda w, p=p: LDS_V + 8192 + w * 2048 + p * 1024
            ins = f'buffer_load_dwordx4 v{vDV+p}, s[{sV}:{sV+3}], s{sT2} offen offset:{p*1024}{cfg.kv_flag} lds ; @dma Vm1 {kb(a)}'
            if p == 0: Vm[0].append(ins)
            else: Vm.append([ins])
        plan = {}
        rest = [c for c in range(9) if c not in cfg.coop_pre and c not in cfg.coop_mid and c not in cfg.coop_skip]
        plan[(0, 0)] = [self.coop(c) for c in rest] + dma_W(2)
        for c in range(9):
            g1 = []
            if c + 2 <= 8: g1 += dma_X(c + 2)
            plan[(c, 1)] = g1
            if NWS() == 3 and c + 3 <= 8: plan[(c + 1, 0)] = dma_W(c + 3)
        if NWS() == 4:
            plan[(0, 0)] = plan[(0, 0)] + dma_W(3)
            plan[(2, 0)] = dma_W(4) + dma_W(5)
            plan[(4, 0)] = dma_W(6) + dma_W(7)
            plan[(5, 0)] = dma_W(8)
        self.prefill = K0 + Vm + K1 + V0 + V1 + K2
        plan[(6, 1)] = plan[(6, 1)] + K0 + Vm
        plan[(7, 1)] = K1
        plan[(8, 0)] = V0
        plan[(8, 1)] = V1
        self.late_kv = K2
        for c in range(9):
            for n in range(2):
                e(p1_kstep(self, c, n, plan.get((c, n), []), last=(c == 8)))
            if c == 3:
                e(f'''s_lshl_b32 s{sT0}, s{sB}, 5
v_mov_b32 v{vT+4}, s{sT0}
v_mov_b32 v{vT+5}, 1
s_cmp_eq_u32 s{sW}, 0
s_cbranch_scc0 L_noreg
s_mov_b64 exec, 1
global_atomic_add v{vT+4}, v{vT+5}, s[16:17] sc1
s_mov_b64 exec, -1''', trace=False)
                self.p('L_noreg:')
            if c == 5: self.stamp('p1c6')
            self.stamp(f'c{c}')
        self.stamp('p1end')
        self.late_kv_pending = self.late_kv; self.late_kv = []
        assert not self.late_kv
    QK = [0, 17, 34, 42]
    PV = [50, 59, 8, 25]
    LS = [58, 67, 16, 33]
    EX = [11, 29, 45, 63]
    VG = [26, 27, 27, 28, 28, 30, 30, 32, 34, 34, 36, 38, 38, 40, 42, 42]
    KG = [44, 46, 46, 50, 50, 52, 54, 54]
    def step(self, k, par, kind='full', extra=None):
        NS = 68
        Sl = Slots(NS)
        it = k // 2; ktile = it + 1; vtile = it
        last = kind == 'last'
        for qt in range(4):
            if not last:
                for m in range(8):
                    ds, kt = m >> 1, m & 1
                    Sl.mf[self.QK[qt] + m] = mfma(vr(S(qt, kt), 4), ar(Kf(m), 4), ar(Qf(qt, ds), 4), vr(CI(qt) if ds == 0 else S(qt, kt), 4))
            if not last or qt >= 2:
                for dt in range(8):
                    Sl.mf[self.PV[qt] + dt] = mfma(vr(O(dt, qt), 4), ar(Vf(dt), 4), vr(P(qt), 4), vr(O(dt, qt), 4))
                Sl.mf[self.LS[qt]] = mfma(vr(LA(qt), 4), ar(aOnes, 4), vr(P(qt), 4), vr(LA(qt), 4))
        mem = [[] for _ in range(NS)]; alu = [[] for _ in range(NS)]
        def put(g, ins):
            g %= NS
            mn = ins.split()[0]
            (mem if mn.startswith('ds_') or mn.startswith('buffer_') or mn.startswith('global_') else alu)[g].append(ins)
        for qt in range(4):
            for i in range(8):
                g = self.EX[qt] + 2 * i
                if last and g < NS: continue
                r = S(qt, i >> 2) + (i & 3)
                put(g, f'v_exp_f32 v{r}, v{r}')
            for n in range(4):
                g = self.EX[qt] + 4 * n + 3
                if last and g < NS: continue
                r = S(qt, n >> 1) + 2 * (n & 1)
                if last and Sl.mf[g % NS] is None: put(g, 's_nop 0')
                put(g, f'v_cvt_pk_bf16_f32 v{P(qt)+n}, v{r}, v{r+1}')
        if last: Sl.pre[8].append('s_nop 1')
        if not last:
            for n in range(16):
                dt, u = n >> 1, n & 1
                put(self.VG[n], f'ds_read_b64_tr_b16 a[{Vf(dt)+2*u}:{Vf(dt)+2*u+1}], v{vVA+dt} offset:{par*8192+u*4096}')
            if kind == 'full':
                for m in range(8):
                    ds, kt = m >> 1, m & 1
                    put(self.KG[m], f'ds_read_b128 a[{Kf(m)}:{Kf(m)+3}], v{vKA+ds} offset:{par*8192+kt*4096}')
            nk = sum(1 for g in self.KG if g <= 48) if kind == 'full' else 0
            Sl.pre[49].append(f's_waitcnt lgkmcnt({nk})')
            if kind == 'full': Sl.pre[67].append('s_waitcnt lgkmcnt(0)')
            if par == 0:
                Sl.pre[1] += ['s_waitcnt vmcnt(VMW)', 's_barrier']
                for dt in range(8): put([2, 4, 4, 6, 8, 8, 10, 14][dt], f'v_xor_b32 v{vVA+dt}, s{sXor}, v{vVA+dt}')
                for ds in range(4): put([18, 20, 20, 22][ds], f'v_xor_b32 v{vKA+ds}, s{sXor}, v{vKA+ds}')
        if extra:
            for g, L in extra.items():
                mem[g % NS] += L
        ab = cfg.ablate
        if ab and kind == 'full':
            if 'exp' in ab: alu = [[x for x in a if not x.startswith('v_exp')] for a in alu]
            if 'cvt' in ab: alu = [[x for x in a if not x.startswith('v_cvt')] for a in alu]
            if 'vrd' in ab: mem = [[x for x in a if not x.startswith('ds_read_b64')] for a in mem]
            if 'krd' in ab: mem = [[x for x in a if not x.startswith('ds_read_b128')] for a in mem]
            if 'dma' in ab: mem = [[x for x in a if not x.startswith('buffer_load')] for a in mem]
            if 'lsum' in ab:
                for qt in range(4): Sl.mf[self.LS[qt]] = None
        for g in range(NS): Sl.post[g] = mem[g] + alu[g]
        if cfg.pad and not last:
            for g in range(3, NS, max(1, NS // cfg.pad)): Sl.post[g].append('s_nop 3')
        self.last_load = Sl.load()
        return Sl.out()

    def kv_extra(self, it, par, doK=True, doV=True):
        slot = (it + 3) & 3
        X = {}
        if par == 0:
            X.setdefault(61, []).append(f's_and_b32 s{sVsoff}, s{sVsoff}, 0x3ffff')
            if doK:
                D = dma_K(it + 3, slot, f's{sKsoff}')
                X[12] = [f's_mov_b32 m0, s{sDma}']
                for g, d in zip((16, 24, 58, 64), D): X.setdefault(g, []).append(d)
                X.setdefault(64, []).append(f's_add_u32 s{sKsoff}, s{sKsoff}, 16384')
        else:
            X.setdefault(12, []).append(f's_and_b32 s{sKsoff}, s{sKsoff}, 0x3ffff')
            if doV:
                D = dma_V(it + 2, slot, f's{sVsoff}')
                X[0] = [f's_add_u32 s{sT0}, s{sDma}, {LDS_V}']
                X[4] = [f's_mov_b32 m0, s{sT0}']
                for g, d in zip((8, 20, 58, 64), D): X.setdefault(g, []).append(d)
                X.setdefault(64, []).append(f's_add_u32 s{sVsoff}, s{sVsoff}, 16384')
            X.setdefault(61, []).append(f's_xor_b32 s{sXor}, s{sXor}, 0x8000')
            X.setdefault(62, []).append(f's_xor_b32 s{sDma}, s{sDma}, s{sXor}')
            X.setdefault(62, []).append(f's_add_u32 s{sIter}, s{sIter}, 1')
        return X

    def phase2(self):
        e = self.e
        def epi(qt):
            o = []
            for ds in range(4):
                for x in range(2):
                    b_ = O(2 * ds + x, qt)
                    o += [f'v_pk_mul_f32 v[{b_}:{b_+1}], v[{b_}:{b_+1}], s[{sC}:{sC+1}]', f'v_pk_mul_f32 v[{b_+2}:{b_+3}], v[{b_+2}:{b_+3}], s[{sC}:{sC+1}]']
                t = vC + (ds & 1) * 4
                for x in range(2):
                    b_ = O(2 * ds + x, qt)
                    o += [f'v_cvt_pk_bf16_f32 v{t+2*x}, v{b_}, v{b_+1}', f'v_cvt_pk_bf16_f32 v{t+2*x+1}, v{b_+2}, v{b_+3}']
                o += [f'v_accvgpr_write_b32 a{Qf(qt, ds)+i}, v{t+i}' for i in range(4)]
            return o
        def qk0(qt):
            return [mfma(vr(S(qt, m & 1), 4), ar(Kf(m), 4), ar(Qf(qt, m >> 1), 4), '0' if m < 2 else vr(S(qt, m & 1), 4)) for m in range(8)]
        def weave(valu, mf, lead=2):
            o = []; n = len(valu); step_ = max(1, (n - lead) // max(1, len(mf))); j = 0
            for i, x in enumerate(valu):
                o.append(x)
                if i >= lead and (i - lead) % step_ == 0 and j < len(mf): o += mf[j] if isinstance(mf[j], list) else [mf[j]]; j += 1
            for x in mf[j:]: o += x if isinstance(x, list) else [x]
            return o
        kreads = lambda off: [f'ds_read_b128 a[{Kf(m)}:{Kf(m)+3}], v{vKA+(m>>1)} offset:{off+(m&1)*4096} ; @rd K0' for m in range(8)]
        vreads = [f'ds_read_b64_tr_b16 a[{Vf(n>>1)+2*(n&1)}:{Vf(n>>1)+2*(n&1)+1}], v{vVA+(n>>1)} offset:{8192+(n&1)*4096}' for n in range(16)]
        zero = lambda qt: [mfma(vr(O(dt, qt), 4), ar(aZero, 4), ar(aZero, 4), '0') for dt in range(8)] + [mfma(vr(LA(qt), 4), ar(aZero, 4), ar(aZero, 4), '0')]
        wait0 = f's_waitcnt vmcnt({self.vm_need({"K0", "Vm1"})})'
        late = self.late_kv_pending
        e('s_nop 3')
        e(wait0); e('s_barrier')
        self.stamp('q0')
        e(kreads(0)); e(vreads)
        e(epi(0))
        self.stamp('q1')
        e('s_waitcnt lgkmcnt(15)\ns_waitcnt lgkmcnt(0)')
        e(weave(epi(1), qk0(0)))
        e(weave(epi(2), qk0(1) + [g for g in late[:2]]))
        e(weave(epi(3), qk0(2) + [g for g in late[2:]]))
        self.stamp('q2')
        e('s_branch L_p2q3', trace=False)
        self.p('L_p2start:')
        R = [wait0, 's_barrier'] + kreads(0) + vreads + ['s_waitcnt lgkmcnt(0)'] + qk0(0) + qk0(1) + qk0(2)
        self.e([x.split(';')[0].strip() for x in R], trace=False)
        self.p('L_p2q3:')
        q3 = qk0(3); k1 = kreads(8192)
        z = zero(2) + zero(3)
        e('s_nop 1')
        for m in range(8):
            e(q3[m]); e(k1[m]); e(z[2*m:2*m+2])
        e(z[16:])
        self.stamp('q3')
        for qt in range(4):
            a, b = S(qt, 0), S(qt, 1); m = vT + qt
            e(f'v_max3_f32 v{m}, v{a}, v{a+1}, v{vMG+qt}\nv_max3_f32 v{m}, v{m}, v{a+2}, v{a+3}\nv_max3_f32 v{m}, v{m}, v{b}, v{b+1}\nv_max3_f32 v{m}, v{m}, v{b+2}, v{b+3}')
        for sw in ('v_permlane32_swap_b32', 'v_permlane16_swap_b32'):
            for qt in range(4): e(f'v_mov_b32 v{vC+qt}, v{vT+qt}')
            e('s_nop 0')
            for qt in range(4): e(f'{sw} v{vT+qt}, v{vC+qt}')
            for qt in range(4): e(f'v_max_f32 v{vT+qt}, v{vT+qt}, v{vC+qt}')
        for qt in range(4):
            for r in range(4): e(f'v_sub_f32 v{CI(qt)+r}, 0, v{vT+qt}')
        for qt in range(4):
            for i in range(8): e(f'v_add_f32 v{S(qt,0)+i}, v{S(qt,0)+i}, v{CI(qt)}')
        for qt in range(3):
            for i in range(8): e(f'v_exp_f32 v{S(qt,0)+i}, v{S(qt,0)+i}')
        for i in range(3): e(f'v_exp_f32 v{S(3,0)+i}, v{S(3,0)+i}')
        for qt in range(3):
            for n in range(4):
                r = S(qt, n >> 1) + 2 * (n & 1)
                e(f'v_cvt_pk_bf16_f32 v{P(qt)+n}, v{r}, v{r+1}')
        e(f'v_cvt_pk_bf16_f32 v{P(3)}, v{S(3,0)}, v{S(3,0)+1}')
        self.stamp('q4')
        e('s_waitcnt lgkmcnt(0)')
        for qt in range(2):
            for dt in range(8):
                e(mfma(vr(O(dt, qt), 4), ar(Vf(dt), 4), vr(P(qt), 4), '0'))
            e(mfma(vr(LA(qt), 4), ar(aOnes, 4), vr(P(qt), 4), '0'))
        e(f'''s_mov_b32 s{sXor}, 0x4000
s_add_u32 s{sDma}, s{sW4K}, {3*16384}
s_add_u32 s{sKsoff}, s{sRot}, {3*16384}
s_and_b32 s{sKsoff}, s{sKsoff}, 0x3ffff
s_add_u32 s{sVsoff}, s{sRot}, {8192+2*16384}
s_and_b32 s{sVsoff}, s{sVsoff}, 0x3ffff
s_mov_b32 s{sIter}, 0''')
        self.stamp('p2loop')
        self.p('.p2align 3\nL_p2:')
        texts = []
        NL = 12
        for it in range(NL):
            L = self.step(2 * it, 0, 'full', self.kv_extra(it, 0)); l0 = self.last_load
            L += self.step(2 * it + 1, 1, 'full', self.kv_extra(it, 1)); l1 = self.last_load
            L = [x.replace('VMW', '8') for x in L]
            L += [f's_cmp_lt_u32 s{sIter}, {NL}', 's_cbranch_scc1 L_p2']
            texts.append([x.split(';')[0].strip() for x in L])
            if it == 0:
                self.p(L); self.loop_body = L
                print('gap load step0:', l0); print('gap load step1:', l1)
            self.tr.extend(L)
        assert all(t == texts[0] for t in texts)
        self.stamp('p2peel')
        from g2p3 import peeled_tail
        peeled_tail(self)

    def fallback(self):
        e = lambda x: self.e(x, trace=False)
        self.p('L_fallback:')
        e('s_waitcnt vmcnt(0) lgkmcnt(0)\ns_barrier')
        e(kv_dma_addr()); e(kv_read_addr())
        for i in range(4): e(f'v_mov_b32 v{vMG+i}, 0xff800000')
        e(f's_mov_b32 s{sKsoff}, s{sW4K}')
        self.p('L_fb_loop:')
        e(f's_mov_b32 m0, s{sW4K}\ns_nop 0')
        e([x.split(';')[0] for x in dma_K(0, 0, f's{sKsoff}')])
        e('s_waitcnt vmcnt(0)\ns_barrier')
        for half in range(2):
            for m in range(8):
                ds, kt = m >> 1, m & 1
                e(f'ds_read_b128 a[{Kf(m)}:{Kf(m)+3}], v{vKA+ds} offset:{half*8192+kt*4096}')
            e('s_waitcnt lgkmcnt(0)')
            for qt in range(4):
                for m in range(8):
                    ds, kt = m >> 1, m & 1
                    e(mfma(vr(S(qt, kt), 4), ar(Kf(m), 4), ar(Qf(qt, ds), 4), '0' if ds == 0 else vr(S(qt, kt), 4)))
            e('s_nop 7')
            for qt in range(4):
                a, b = S(qt, 0), S(qt, 1); m = vMG + qt
                e(f'v_max3_f32 v{m}, v{m}, v{a}, v{a+1}\nv_max3_f32 v{m}, v{m}, v{a+2}, v{a+3}\nv_max3_f32 v{m}, v{m}, v{b}, v{b+1}\nv_max3_f32 v{m}, v{m}, v{b+2}, v{b+3}')
        e(f's_barrier\ns_add_u32 s{sKsoff}, s{sKsoff}, 16384\ns_cmp_lt_u32 s{sKsoff}, 262144\ns_cbranch_scc1 L_fb_loop')
        for g in self.prefill: e([x.split(';')[0] for x in g])
        e(f's_mov_b32 s{sMode}, 1\ns_branch L_p2start')

    def finish_stamps(self):
        if not cfg.stamps: return
        e = self.e
        if cfg.dbgstamps:
            e('s_waitcnt lgkmcnt(0)', trace=False)
            for n_, (wg, base) in enumerate(zip(cfg.dbgstamps, (1, 5, 9, 12))):
                e(f's_cmp_eq_u32 s2, {wg}\ns_cbranch_scc0 L_nodbg{n_}\ns_cmp_eq_u32 s{sW}, 0\ns_cbranch_scc0 L_nodbg{n_}', trace=False)
                vals = [(stamp_reg(1), stamp_reg(0)), (stamp_reg(2), stamp_reg(0)), (stamp_reg(2) + 2, stamp_reg(1) + 2)]
                for i, (x, y) in enumerate(vals):
                    e(f's_sub_u32 s{sT0}, s{x}, s{y}\nv_mov_b32 v{vT+2}, s{sT0}\nv_mov_b32 v{vT}, {4*(base+i)}\nglobal_store_dword v{vT}, v{vT+2}, s[16:17]', trace=False)
                self.p(f'L_nodbg{n_}:')
            return
        e(f'''s_waitcnt lgkmcnt(0)
s_lshl_b32 s{sT0}, s2, 2
s_add_u32 s{sT0}, s{sT0}, s{sW}
s_lshl_b32 s{sT0}, s{sT0}, 8
s_add_u32 s{sT0}, s{sT0}, {STAMPBASE}
s_add_u32 s18, s18, s{sT0}
s_addc_u32 s19, s19, 0
v_mov_b32 v{vT}, 0''')
        for i in range(self.nstamp):
            for j in range(4): e(f'v_mov_b32 v{vT+2+j}, s{stamp_reg(i)+j}')
            e(f'global_store_dwordx4 v{vT}, v[{vT+2}:{vT+5}], s[18:19] offset:{16*i}\ns_nop 1')

def build():
    k = Kernel()
    k.header(); k.setup(); k.phase1(); k.phase2()
    from g2p3 import phase3
    phase3(k)
    k.stamp('end')
    k.finish_stamps()
    k.e('s_endpgm', trace=False)
    k.fallback()
    k.footer()
    return k

def main():
    import argparse
    ap = argparse.ArgumentParser()
    ap.add_argument('-o', default=f'cdna_kernels/{NAME}.s')
    ap.add_argument('--stamps', default='')
    ap.add_argument('--set', action='append', default=[])
    a = ap.parse_args()
    cfg.stamps = a.stamps.split(',') if a.stamps else False
    for kv in a.set:
        kk, vv = kv.split('=', 1)
        try: vv = eval(vv)
        except Exception: pass
        setattr(cfg, kk, vv)
    k = build()
    errs = simulate(k.tr, 'trace')
    errs += check_hazards(k.tr, 'haz')
    txt = k.p.text()
    txt = txt.replace('CODEOFF', f'((L_pc - {NAME}_kernel) & 0xffffff00)').replace('CODELEN', f'(L_codeend - {NAME}_kernel - 128)')
    open(a.o, 'w').write(txt)
    print('written', a.o, 'errors:', len(errs), 'trace len', len(k.tr))
```

```python
import sys, math, struct
from asmlib import *

NAME = 'standalone__mha_block_cached__near_ridge'

class Cfg:
    stamps = False
    kv_flag = ' nt'
    x_flag = ''
    w_flag = ''
    wo_flag = ''
    force_safe = False
    ablate = ''
    l1inv = False
    codepf = True
    D = 2
    perm = False
    w4 = False
    wmall = False
    rot = True
    pad = 0
    dbgstamps = 0
    mapx = True
    dualflag = True
    out_flag = ''
    bswap = 0
    coop_pre = (0, 1, 2, 3, 4, 5, 6, 7, 8)
    coop_mid = ()
    coop_skip = ()
    coop_wait = None
    early_ost = True
    own_split = (0, 2)
    ps0_every = 2
    f2a_c = 10
    fin0_c = 14
    l3_every = 6
    kv_same = False
cfg = Cfg()

sW = 3
sX, sWq, sK, sV, sWS, sWo, sOut = 20, 24, 28, 32, 36, 40, 44
sW4K = 48; sKsoff = 49; sVsoff = 50; sDma = 51; sXor = 52; sIter = 53
sT0, sT1, sT2, sT3 = 54, 55, 56, 57
sC = 58
sXsoff = 60; sWsoff = 61; sW8K = 62; sDelta = 63
sB = 64; sH = 65; sJ = 66; sMode = 67
sKg = 68; sNb = 69; sRot = 70; sPass = 71
sStamp = 72

vLane = 1
vT = 2
vKA = 8
vVA = 12
vDK = 20
vDV = 24
vMG = 26
vT2 = 30
vS = 32
vC = 64
vP = 80
vL = 96
vXA = 112; vWA = 114
vWB = 120
vCo = 118
vOX = 32; vOW = 40
vWoD = 112
vWoR = 121
vAcc = 128
aQ = 0; aKf = 64; aVf = 96; aOnes = 252; aZero = 188
aPA = 96; aPB = 64

def O(dt, qt): return vAcc + (dt * 4 + qt) * 4
def S(qt, kt): return vS + qt * 8 + kt * 4
def CI(qt): return vC + 4 * qt
def P(qt): return vP + 4 * qt
def LA(qt): return vL + 4 * qt
def Qf(qt, ds): return aQ + (qt * 4 + ds) * 4
def Kf(m): return aKf + 4 * m
def Vf(dt): return aVf + 4 * dt

LDS_V = 65536
XS = [32768, 81920]
WS = [114688, 131072, 147456, 16384]
def NWS(): return 4 if cfg.mapx and cfg.w4 else 3
OBASE = 0
PBASE = 16 << 20
FBASE = 60 << 20
FTWIN = 1 << 16
STAMPBASE = 64 << 20

def kb(fn): return ','.join(str(fn(w) // 1024) for w in range(4))
def stamp_reg(i): return [72, 76, 80, 4, 8, 12, 92][i]
def mfma(d, a, b, c): return f'v_mfma_f32_16x16x32_bf16 {d}, {a}, {b}, {c}'

class Slots:
    def __init__(self, n):
        self.pre = [[] for _ in range(n)]
        self.post = [[] for _ in range(n)]
        self.mf = [None] * n
    def out(self):
        o = []
        for i in range(len(self.mf)):
            o += self.pre[i]
            if self.mf[i]: o.append(self.mf[i])
            o += self.post[i]
        return o
    def load(self):
        def cost(x):
            mn = x.split()[0]
            if mn.startswith('v_exp') or mn.startswith('v_rcp'): return 8
            return 4
        n = len(self.mf); res = []
        for i in range(n):
            g = self.post[i] + (self.pre[i + 1] if i + 1 < n else [])
            res.append(sum(cost(x) for x in g))
        return res

def dma_K(tile, slot, soff):
    L = []
    for p in range(4):
        a = lambda w, p=p: slot * 16384 + w * 4096 + p * 1024
        L.append(f'buffer_load_dwordx4 v{vDK+p}, s[{sK}:{sK+3}], {soff} offen offset:{p*1024}{cfg.kv_flag} lds ; @dma K{tile} {kb(a)}')
    return L
def dma_V(tile, slot, soff):
    L = []
    for p in range(4):
        a = lambda w, p=p: LDS_V + slot * 16384 + w * 4096 + p * 1024
        L.append(f'buffer_load_dwordx4 v{vDV+(p&1)}, s[{sV}:{sV+3}], {soff} offen offset:{p*1024}{cfg.kv_flag} lds ; @dma V{tile} {kb(a)}')
    return L

def dma_W(c):
    G = []
    for p in range(4):
        a = lambda w, p=p: WS[c % NWS()] + w * 4096 + p * 1024
        ins = f'buffer_load_dwordx4 v{vOW+p}, s[{sWq}:{sWq+3}], s{sWsoff} offen offset:{p*1024}{cfg.w_flag} lds ; @dma W{c} {kb(a)}'
        g = [ins]
        if p == 0: g = [f's_add_u32 m0, s{sW4K}, {WS[c%NWS()]}', f's_mov_b32 s{sWsoff}, {c*524288}', ins]
        G.append(g)
    return G
def dma_X(c):
    G = []
    for p in range(8):
        a = lambda w, p=p: XS[c % 2] + w * 8192 + p * 1024
        ins = f'buffer_load_dwordx4 v{vOX+p}, s[{sX}:{sX+3}], s{sXsoff} offen offset:{(p&3)*1024}{cfg.x_flag} lds ; @dma X{c} {kb(a)} priv'
        g = [ins]
        if p == 0: g = [f's_add_u32 m0, s{sW8K}, {XS[c%2]}', f's_mov_b32 s{sXsoff}, {c*128}', ins]
        if p == 4: g = [f's_add_u32 m0, s{sW8K}, {XS[c%2]+4096}', 's_nop 0', ins]
        G.append(g)
    return G

def kv_dma_addr():
    T = vT; L = vLane
    o = f'''v_lshrrev_b32 v{T+1}, 4, v{L}
v_and_b32 v{T+3}, 15, v{L}
v_mov_b32 v{T+4}, v{T+1}'''.split('\n')
    for p in range(4):
        o += [f'v_add_u32 v{T+2}, {4*p}, v{T+1}', f'v_xor_b32 v{T+2}, v{T+2}, v{T+3}', f'v_lshlrev_b32 v{T+2}, 4, v{T+2}', f'v_lshl_add_u32 v{vDK+p}, v{T+4}, 8, v{T+2}']
    for par in range(2):
        o += [f'v_add_u32 v{T+2}, {4*par}, v{T+1}', f'v_lshlrev_b32 v{T+2}, 1, v{T+2}', f'v_xor_b32 v{T+2}, v{T+2}, v{T+3}', f'v_lshlrev_b32 v{T+2}, 4, v{T+2}', f'v_lshl_add_u32 v{vDV+par}, v{T+4}, 8, v{T+2}']
    return o
def kv_read_addr():
    T = vT; L = vLane
    o = [f'v_lshrrev_b32 v{T}, 4, v{L}', f'v_bfe_u32 v{T+1}, v{L}, 2, 2', f'v_and_b32 v{T+2}, 3, v{L}', f'v_and_b32 v{T+3}, 15, v{L}',
         f'v_lshlrev_b32 v{T+4}, 8, v{T+3}']
    for ds in range(4):
        o += [f'v_add_u32 v{T+5}, {4*ds}, v{T}', f'v_xor_b32 v{T+5}, v{T+5}, v{T+3}', f'v_lshl_add_u32 v{vKA+ds}, v{T+5}, 4, v{T+4}']
    o += f'''v_lshl_add_u32 v{T+4}, v{T}, 2, v{T+1}
v_and_b32 v{vT2}, 7, v{T+4}
v_lshlrev_b32 v{vT2}, 1, v{vT2}
v_lshlrev_b32 v{T+4}, 8, v{T+4}
v_and_b32 v{T+5}, 1, v{T+2}
v_lshl_add_u32 v{T+4}, v{T+5}, 3, v{T+4}
v_add_u32 v{T+4}, {LDS_V}, v{T+4}
v_lshrrev_b32 v{vT2+1}, 1, v{T+2}'''.split('\n')
    for dt in range(8):
        o += [f'v_add_u32 v{T+5}, {2*dt}, v{vT2+1}', f'v_xor_b32 v{T+5}, v{T+5}, v{vT2}', f'v_lshl_add_u32 v{vVA+dt}, v{T+5}, 4, v{T+4}']
    return o

def p1_reads(c, n, buf):
    A = aPA + buf * 32; B = aPB + buf * 16
    def W(dt, u):
        ds, x = dt >> 1, dt & 1
        st = c % NWS()
        reg, so = (vWA + ds, st * 16384) if st < 3 else (vWB + ds, 0)
        return f'ds_read_b64_tr_b16 a[{A+4*dt+2*u}:{A+4*dt+2*u+1}], v{reg} offset:{so+(32*n+4*u)*256+8*x} ; @rd W{c}'
    def X(qt): return f'ds_read_b128 a[{B+4*qt}:{B+4*qt+3}], v{vXA+n} offset:{(c%2)*49152+qt*2048} ; @rd X{c}'
    R = [X(0), W(0, 0), W(0, 1), X(1), X(2), X(3)]
    for dt in range(1, 8): R += [W(dt, 0), W(dt, 1)]
    return R

def p1_kstep(k, c, n, groups, last=False):
    Sl = Slots(32)
    buf = n & 1
    for m in range(32):
        dt, qt = m >> 2, m & 3
        Sl.mf[m] = mfma(vr(O(dt, qt), 4), ar(aPA + buf * 32 + 4 * dt, 4), ar(aPB + buf * 16 + 4 * qt, 4), '0' if (c == 0 and n == 0) else vr(O(dt, qt), 4))
    if n == 0: R = p1_reads(c, 1, 1)
    else: R = [] if last else p1_reads(c + 1, 0, 0)
    if n == 1:
        vm = (k.vm_need({f'X{c+1}', f'W{c+1}'}) if not cfg.ablate else 20) if not last else 63
        Sl.pre[0] += [f's_waitcnt vmcnt({vm}) lgkmcnt(0)', 's_barrier']
    else: Sl.pre[0] += ['s_waitcnt lgkmcnt(0)']
    ab = cfg.ablate
    if 'p1rd' in ab: R = []
    if 'p1x' in ab: groups = [[x for x in g if '@dma X' not in x] for g in groups]
    if 'p1w' in ab: groups = [[x for x in g if '@dma W' not in x] for g in groups]
    if 'p1kv' in ab: groups = [[x for x in g if '@dma K' not in x and '@dma V' not in x] for g in groups]
    for i, r in enumerate(R): Sl.post[2 * (i // 2)].append(r)
    if groups:
        nn = len(groups)
        for i, g in enumerate(groups):
            Sl.post[min(31, 1 + 2 * ((i * 16) // nn))] += g
    return Sl.out()

class Kernel:
    def __init__(self):
        self.p = Prog(); self.tr = []; self.nstamp = 0; self.q = []
    def e(self, s, text=True, trace=True):
        if isinstance(s, str): s = [x.strip() for x in s.split('\n') if x.strip()]
        if text: self.p(s)
        if trace: self.tr.extend(s)
    def stamp(self, name):
        if cfg.stamps and name in cfg.stamps:
            i = cfg.stamps.index(name); b = stamp_reg(i)
            self.e(f's_memrealtime s[{b}:{b+1}]\ns_memtime s[{b+2}:{b+3}]')
            self.nstamp = max(self.nstamp, i + 1)
    def vm_need(self, tags):
        q = []
        for line in self.tr:
            code, _, com = line.partition(';')
            mn = code.split()[0] if code.split() else ''
            if mn.startswith('buffer_') and mn not in ('buffer_inv', 'buffer_wbl2') or mn.startswith('global_'):
                t = None
                a = com.split()
                if '@dma' in a: t = a[a.index('@dma') + 1]
                elif '@tag' in a: t = a[a.index('@tag') + 1]
                q.append(t)
        for t in tags: assert t in q, f'tag {t} was never issued'
        last = max((i for i, t in enumerate(q) if t in tags), default=-1)
        return min(63, len(q) - 1 - last)

    def header(self):
        self.p(f'; @launch grid=(256,1,1) block=(256,1,1) lds=163840')
        if cfg.stamps: self.p('; stamps: ' + ','.join(cfg.stamps))
        self.p('.amdgcn_target "amdgcn-amd-amdhsa--gfx950"\n.text')
        self.p(f'.globl {NAME}_kernel\n.p2align 8\n.type {NAME}_kernel,@function\n{NAME}_kernel:')
    def footer(self):
        self.p('L_end:\ns_endpgm')
        self.p('.p2align 6\nL_codeend:')
        self.p('.section .rodata,"a"\n.p2align 6')
        self.p(f'.amdhsa_kernel {NAME}_kernel')
        self.p('''.amdhsa_next_free_vgpr 512
.amdhsa_next_free_sgpr 102
.amdhsa_accum_offset 256
.amdhsa_group_segment_fixed_size 0
.amdhsa_kernarg_size 64
.amdhsa_user_sgpr_count 2
.amdhsa_user_sgpr_kernarg_segment_ptr 1
.amdhsa_system_sgpr_workgroup_id_x 1
.end_amdhsa_kernel''')

    def setup(self):
        e = self.e
        e('s_cmp_ge_u32 s2, 256\ns_cbranch_scc1 L_end')
        if cfg.perm: e('s_lshr_b32 s3, s2, 3\ns_and_b32 s3, s3, 7\ns_xor_b32 s2, s2, s3')
        self.stamp('entry')
        e(f's_load_dwordx16 s[4:19], s[0:1], 0')
        if cfg.codepf:
            e(f'''s_getpc_b64 s[{sT2}:{sT2+1}]
L_pc:
v_and_b32 v{vT+5}, 15, v0
s_lshr_b32 s{sT0}, s2, 3
s_and_b32 s{sT2}, s{sT2}, 0xffffff00
s_lshl_b32 s{sT0}, s{sT0}, 4
s_sub_u32 s{sT2}, s{sT2}, CODEOFF
v_add_u32 v{vT+5}, s{sT0}, v{vT+5}
s_subb_u32 s{sT3}, s{sT3}, 0
v_lshlrev_b32 v{vT+5}, 7, v{vT+5}
v_min_u32 v{vT+5}, CODELEN, v{vT+5}
global_load_dword v92, v{vT+5}, s[{sT2}:{sT2+1}]''')
        e(f'''v_and_b32 v{vLane}, 63, v0
v_lshrrev_b32 v{vT}, 6, v0
s_and_b32 s{sT0}, s2, 7
s_lshr_b32 s{sJ}, s2, 3
v_readfirstlane_b32 s{sW}, v{vT}
s_and_b32 s{sB}, s{sT0}, 1
s_xor_b32 s{sB}, s{sB}, {cfg.bswap}
s_lshl_b32 s{sB}, s{sB}, 2
s_and_b32 s{sT1}, s{sJ}, 3
s_add_u32 s{sB}, s{sB}, s{sT1}
s_lshr_b32 s{sH}, s{sT0}, 1
s_lshl_b32 s{sH}, s{sH}, 3
s_lshr_b32 s{sT1}, s{sJ}, 2
s_add_u32 s{sH}, s{sH}, s{sT1}
MAPX
s_lshr_b32 s{sKg}, s{sH}, 2
s_and_b32 s{sNb}, s{sH}, 3
s_lshl_b32 s{sW4K}, s{sW}, 12
ROT
'''.replace('ROT', f's_add_u32 s{sRot}, s{sH}, s{sB}\ns_and_b32 s{sRot}, s{sRot}, 15\ns_lshl_b32 s{sRot}, s{sRot}, 14\ns_add_u32 s{sRot}, s{sRot}, s{sW4K}' if cfg.rot else f's_mov_b32 s{sRot}, s{sW4K}').replace('MAPX', f's_mov_b32 s{sB}, s{sT0}\ns_mov_b32 s{sH}, s{sJ}' if cfg.mapx else 's_nop 0'))
        L = vLane; T = vT
        e(f'''v_lshrrev_b32 v{T}, 3, v{L}
s_lshl_b32 s{sT0}, s{sW}, 6
v_add_u32 v{T}, s{sT0}, v{T}
v_mul_u32_u24 v{T}, 1152, v{T}
v_lshrrev_b32 v{T+1}, 4, v{L}
v_and_b32 v{T+2}, 7, v{L}
v_xor_b32 v{T+3}, v{T+2}, v{T+1}
v_xor_b32 v{T+4}, 4, v{T+3}
v_lshl_add_u32 v{T+3}, v{T+3}, 4, v{T}
v_lshl_add_u32 v{T+4}, v{T+4}, 4, v{T}''')
        for p in range(8):
            e(f'v_add_u32 v{vOX+p}, {p*9216 - (p&3)*1024}, v{T+3+(p&1)}')
        e(f'''v_lshlrev_b32 v{T+2}, 2, v{T+1}
v_and_b32 v{T+3}, 15, v{L}
v_xor_b32 v{T+2}, v{T+2}, v{T+3}
v_lshlrev_b32 v{T+2}, 4, v{T+2}
s_lshl_b32 s{sT0}, s{sW}, 4
v_add_u32 v{T+4}, s{sT0}, v{T+1}
v_lshl_add_u32 v{T+5}, v{T+4}, 13, v{T+2}''')
        for p in range(4):
            e(f'v_add_u32 v{vOW+p}, {p*(32768-1024)}, v{T+5}')
        e(f'''v_lshrrev_b32 v{T+5}, 3, v{L}
s_lshr_b32 s{sT0}, s{sJ}, 2
s_lshl_b32 s{sT0}, s{sT0}, 5
s_lshl_b32 s{sT1}, s{sW}, 3
s_add_u32 s{sT0}, s{sT0}, s{sT1}
v_add_u32 v{T+5}, s{sT0}, v{T+5}
v_mul_u32_u24 v{T+5}, 1152, v{T+5}
v_and_b32 v{T+2}, 7, v{L}
v_lshl_add_u32 v{vCo}, v{T+2}, 4, v{T+5}
s_and_b32 s{sT0}, s{sJ}, 3
s_lshl_b32 s{sT0}, s{sT0}, 4
s_lshl_b32 s{sT1}, s{sW}, 2
s_add_u32 s{sT0}, s{sT0}, s{sT1}
v_add_u32 v{T+5}, s{sT0}, v{T+1}
v_lshlrev_b32 v{T+5}, 13, v{T+5}
v_and_b32 v{T+2}, 15, v{L}
v_lshl_add_u32 v{vCo+1}, v{T+2}, 4, v{T+5}''')
        if cfg.mapx:
            e(f'''v_lshrrev_b32 v{T+5}, 3, v{L}
s_lshl_b32 s{sT0}, s{sJ}, 3
v_add_u32 v{T+5}, s{sT0}, v{T+5}
v_mul_u32_u24 v{T+5}, 1152, v{T+5}
v_and_b32 v{T+2}, 7, v{L}
v_lshl_add_u32 v{vCo}, v{T+2}, 4, v{T+5}''')
        e('s_waitcnt lgkmcnt(0)')
        self.stamp('karg')
        if cfg.l1inv:
            e(f's_cmp_eq_u32 s{sW}, 0\ns_cbranch_scc0 L_noinv\nbuffer_inv sc1', trace=False)
            self.p('L_noinv:')
        e(f'''s_mul_i32 s{sT0}, s{sB}, 294912
s_add_u32 s{sX}, s4, s{sT0}
s_addc_u32 s{sX+1}, s5, 0
s_mov_b32 s{sX+2}, 294912
s_mov_b32 s{sX+3}, 0x20000
s_lshl_b32 s{sT0}, s{sH}, 8
s_add_u32 s{sWq}, s10, s{sT0}
s_addc_u32 s{sWq+1}, s11, 0
s_sub_u32 s{sWq+2}, 4718592, s{sT0}
s_mov_b32 s{sWq+3}, 0x20000
s_mov_b32 s{sWS}, s18
s_mov_b32 s{sWS+1}, s19
s_mov_b32 s{sWS+2}, 0x8000000
s_mov_b32 s{sWS+3}, 0x20000''')
        e(f's_lshl_b32 s{sW8K}, s{sW}, 13')
        def coop(c):
            if cfg.mapx:
                if c >= 3: return []
                d = 44 + 4 * c
                return [f's_lshl_b32 s{sT1}, s{sW}, 7', f'buffer_load_dwordx4 v[{d}:{d+3}], v{vCo}, s[{sX}:{sX+3}], s{sT1} offen offset:{c*512} ; @tag CO{c}']
            d = 44 + 8 * c if c < 6 else 96 + 8 * (c - 6) if c < 8 else 120
            return [f's_mov_b32 s{sT1}, {c*524288}', f'buffer_load_dwordx4 v[{d}:{d+3}], v{vCo+1}, s[{sWq}:{sWq+3}], s{sT1} offen ; @tag CO{c}',
                    f'buffer_load_dwordx4 v[{d+4}:{d+7}], v{vCo}, s[{sX}:{sX+3}], 0 offen offset:{c*128} ; @tag CO{c}']
        for c in cfg.coop_pre: e(coop(c))
        self.coop = coop
        self.stamp('dma0')
        e(f'''s_lshl_b32 s{sT0}, s{sB}, 5
s_add_u32 s{sT0}, s{sT0}, s{sH}
s_lshl_b32 s{sT0}, s{sT0}, 18''')
        if cfg.kv_same: e(f's_mov_b32 s{sT0}, 0')
        e(f'''s_add_u32 s{sK}, s6, s{sT0}
s_addc_u32 s{sK+1}, s7, 0
s_mov_b32 s{sK+2}, 262144
s_mov_b32 s{sK+3}, 0x20000
s_add_u32 s{sV}, s8, s{sT0}
s_addc_u32 s{sV+1}, s9, 0
s_mov_b32 s{sV+2}, 262144
s_mov_b32 s{sV+3}, 0x20000''')
        e(f'''s_mul_i32 s{sT0}, s{sKg}, {512*1152}
s_mul_i32 s{sT1}, s{sNb}, 288
s_add_u32 s{sT0}, s{sT0}, s{sT1}
s_add_u32 s{sWo}, s12, s{sT0}
s_addc_u32 s{sWo+1}, s13, 0
s_sub_u32 s{sWo+2}, 4718592, s{sT0}
s_mov_b32 s{sWo+3}, 0x20000
s_mov_b32 s{sOut}, s14
s_mov_b32 s{sOut+1}, s15
s_mov_b32 s{sOut+2}, 2359296
s_mov_b32 s{sOut+3}, 0x20000''')
        e(kv_dma_addr())
        self.stamp('cw0')
        if cfg.coop_wait is not None: e(f's_waitcnt vmcnt({self.vm_need({f"CO{cfg.coop_wait}"})})')
        self.stamp('cw1')
        for g in dma_W(0) + dma_X(0): e(g)
        for c in cfg.coop_mid: e(self.coop(c))
        self.stamp('d0')
        e(f'''v_lshrrev_b32 v{T}, 4, v{L}
v_bfe_u32 v{T+1}, v{L}, 2, 2
v_and_b32 v{T+2}, 3, v{L}
v_and_b32 v{T+3}, 15, v{L}''')
        e(f'''v_lshl_add_u32 v{T+4}, v{T}, 3, v{T+1}
v_lshlrev_b32 v{T+4}, 8, v{T+4}
v_lshl_add_u32 v{T+4}, v{T+2}, 4, v{T+4}
v_add_u32 v{T+4}, {WS[0]}, v{T+4}''')
        for ds in range(4):
            e(f'v_xor_b32 v{T+5}, {ds}, v{T+1}\nv_lshl_add_u32 v{vWA+ds}, v{T+5}, 6, v{T+4}')
        if NWS() == 4:
            for ds in range(4): e(f'v_subrev_u32 v{vWB+ds}, {WS[0]-WS[3]}, v{vWA+ds}')
        e(f'''s_lshl_b32 s{sT0}, s{sW}, 13
s_add_u32 s{sT0}, s{sT0}, {XS[0]}
v_lshlrev_b32 v{T+4}, 7, v{T+3}
v_add_u32 v{T+4}, s{sT0}, v{T+4}
v_lshrrev_b32 v{vT2}, 1, v{T+3}''')
        for n in range(2):
            e(f'''v_add_u32 v{T+5}, {4*n}, v{T}
v_xor_b32 v{T+5}, v{T+5}, v{vT2}
v_lshl_add_u32 v{vXA+n}, v{T+5}, 4, v{T+4}''')
        e(kv_read_addr())
        cbits = '0x%08x' % int.from_bytes(struct.pack('<f', math.log2(math.e) / math.sqrt(128.0)), 'little')
        e(f's_mov_b32 s{sC}, {cbits}\ns_mov_b32 s{sC+1}, {cbits}')
        e(f'v_mov_b32 v{T+5}, 0x3f803f80')
        for i in range(4): e(f'v_accvgpr_write_b32 a{aOnes+i}, v{T+5}')
        for i in range(4): e(f'v_accvgpr_write_b32 a{aZero+i}, 0')
        for i in range(4): e(f'v_mov_b32 v{vMG+i}, 0xff800000')
        e(f's_mov_b32 s{sPass}, 0\ns_mov_b32 s{sMode}, 0')
        for g in dma_W(1) + dma_X(1): e(g)
        if cfg.wmall:
            e(f'''s_mul_i32 s{sT0}, s2, 18432
s_mul_i32 s{sT1}, s{sW}, 4608
s_add_u32 s{sT0}, s{sT0}, s{sT1}
s_lshl_b32 s{sT1}, s{sH}, 8
s_sub_u32 s{sT0}, s{sT0}, s{sT1}
v_lshlrev_b32 v{T+5}, 4, v{L}''')
            for i in range(5):
                e(f'buffer_load_dwordx4 v[{56+4*i}:{59+4*i}], v{T+5}, s[{sWq}:{sWq+3}], s{sT0} offen offset:{min(i*1024, 3584)} ; @tag WM')
        self.stamp('d1')
        e(f'''s_lshl_b32 s{sT0}, s{sB}, 5
s_add_u32 s{sT0}, s{sT0}, s{sH}
s_lshl_b32 s{sT0}, s{sT0}, 7
s_add_u32 s{sT0}, s{sT0}, {FBASE}
v_mov_b32 v{T+2}, 0
v_and_b32 v{T+3}, 15, v{L}
v_lshlrev_b32 v{T+5}, 2, v{T+3}
v_bfe_u32 v{T+1}, v{L}, 4, 1
v_mul_u32_u24 v{T+1}, {FTWIN}, v{T+1}
v_add_u32 v{T+5}, v{T+5}, v{T+1}
v_cmp_gt_u32 vcc, 32, v{L}
v_mov_b32 v{T+4}, 0x7fffffff
s_cmp_eq_u32 s{sW}, 0
s_cselect_b64 vcc, vcc, 0
s_nop 1
v_cndmask_b32 v{T+5}, v{T+4}, v{T+5}, vcc
buffer_store_dword v{T+2}, v{T+5}, s[{sWS}:{sWS+3}], s{sT0} offen sc1 ; @tag CLR''')

    def phase1(self):
        e = self.e
        self.stamp('p1wait')
        n0 = self.vm_need({'X0', 'W0'})
        e(f's_waitcnt vmcnt({n0})\ns_barrier')
        self.stamp('p1go')
        e(p1_reads(0, 0, 0))
        def one(G, m0, extra=()):
            G = [[x] for x in G]
            G[0] = [m0] + list(extra) + (['s_nop 0'] if not extra else []) + G[0]
            return G
        K0 = one(dma_K(0, 0, f's{sKsoff}'), f's_mov_b32 m0, s{sW4K}', [f's_mov_b32 s{sKsoff}, s{sRot}'])
        K1 = one(dma_K(1, 1, f's{sKsoff}'), f's_add_u32 m0, s{sW4K}, 16384', [f's_add_u32 s{sKsoff}, s{sRot}, 16384', f's_and_b32 s{sKsoff}, s{sKsoff}, 0x3ffff'])
        K2 = one(dma_K(2, 2, f's{sKsoff}'), f's_add_u32 m0, s{sW4K}, {2*16384}', [f's_add_u32 s{sKsoff}, s{sRot}, {2*16384}', f's_and_b32 s{sKsoff}, s{sKsoff}, 0x3ffff'])
        V0 = one(dma_V(0, 1, f's{sVsoff}'), f's_add_u32 m0, s{sW4K}, {LDS_V+16384}', [f's_add_u32 s{sVsoff}, s{sRot}, 8192', f's_and_b32 s{sVsoff}, s{sVsoff}, 0x3ffff'])
        V1 = one(dma_V(1, 2, f's{sVsoff}'), f's_add_u32 m0, s{sW4K}, {LDS_V+2*16384}', [f's_add_u32 s{sVsoff}, s{sRot}, {8192+16384}', f's_and_b32 s{sVsoff}, s{sVsoff}, 0x3ffff'])
        Vm = [[f's_lshl_b32 s{sT2}, s{sW}, 11', f's_add_u32 m0, s{sT2}, {LDS_V + 8192}', f's_sub_u32 s{sT2}, s{sRot}, s{sT2}']]
        for p in range(2):
            a = lambda w, p=p: LDS_V + 8192 + w * 2048 + p * 1024
            ins = f'buffer_load_dwordx4 v{vDV+p}, s[{sV}:{sV+3}], s{sT2} offen offset:{p*1024}{cfg.kv_flag} lds ; @dma Vm1 {kb(a)}'
            if p == 0: Vm[0].append(ins)
            else: Vm.append([ins])
        plan = {}
        rest = [c for c in range(9) if c not in cfg.coop_pre and c not in cfg.coop_mid and c not in cfg.coop_skip]
        plan[(0, 0)] = [self.coop(c) for c in rest] + dma_W(2)
        for c in range(9):
            g1 = []
            if c + 2 <= 8: g1 += dma_X(c + 2)
            plan[(c, 1)] = g1
            if NWS() == 3 and c + 3 <= 8: plan[(c + 1, 0)] = dma_W(c + 3)
        if NWS() == 4:
            plan[(0, 0)] = plan[(0, 0)] + dma_W(3)
            plan[(2, 0)] = dma_W(4) + dma_W(5)
            plan[(4, 0)] = dma_W(6) + dma_W(7)
            plan[(5, 0)] = dma_W(8)
        K3 = one(dma_K(3, 3, f's{sKsoff}'), f's_add_u32 m0, s{sW4K}, {3*16384}', [f's_add_u32 s{sKsoff}, s{sRot}, {3*16384}', f's_and_b32 s{sKsoff}, s{sKsoff}, 0x3ffff'])
        V2 = one(dma_V(2, 3, f's{sVsoff}'), f's_add_u32 m0, s{sW4K}, {LDS_V+3*16384}', [f's_add_u32 s{sVsoff}, s{sRot}, {8192+2*16384}', f's_and_b32 s{sVsoff}, s{sVsoff}, 0x3ffff'])
        self.prefill = K0 + Vm + K1 + V0 + V1 + K2 + (V2 + K3 if cfg.D == 3 else [])
        plan[(6, 1)] = plan[(6, 1)] + K0 + Vm
        plan[(7, 1)] = K1
        plan[(8, 0)] = V0
        plan[(8, 1)] = V1
        self.late_kv = K2 + (V2 + K3 if cfg.D == 3 else [])
        for c in range(9):
            for n in range(2):
                e(p1_kstep(self, c, n, plan.get((c, n), []), last=(c == 8)))
            if c == 3:
                e(f'''s_lshl_b32 s{sT0}, s{sB}, 5
v_mov_b32 v{vT+4}, s{sT0}
v_mov_b32 v{vT+5}, 1
s_cmp_eq_u32 s{sW}, 0
s_cbranch_scc0 L_noreg
s_mov_b64 exec, 1
global_atomic_add v{vT+4}, v{vT+5}, s[16:17] sc1
s_mov_b64 exec, -1''', trace=False)
                self.p('L_noreg:')
            if c == 5: self.stamp('p1c6')
            self.stamp(f'c{c}')
        self.stamp('p1end')
        self.late_kv_pending = self.late_kv; self.late_kv = []
        assert not self.late_kv
    QK = [0, 17, 34, 42]
    PV = [50, 59, 8, 25]
    LS = [58, 67, 16, 33]
    EX = [11, 29, 45, 63]
    VG = [26, 27, 27, 28, 28, 30, 30, 32, 34, 34, 36, 38, 38, 40, 42, 42]
    KG = [44, 46, 46, 50, 50, 52, 54, 54]
    def step(self, k, par, kind='full', extra=None):
        NS = 68
        Sl = Slots(NS)
        it = k // 2; ktile = it + 1; vtile = it
        last = kind == 'last'
        for qt in range(4):
            if not last:
                for m in range(8):
                    ds, kt = m >> 1, m & 1
                    Sl.mf[self.QK[qt] + m] = mfma(vr(S(qt, kt), 4), ar(Kf(m), 4), ar(Qf(qt, ds), 4), vr(CI(qt) if ds == 0 else S(qt, kt), 4))
            if not last or qt >= 2:
                for dt in range(8):
                    Sl.mf[self.PV[qt] + dt] = mfma(vr(O(dt, qt), 4), ar(Vf(dt), 4), vr(P(qt), 4), vr(O(dt, qt), 4))
                Sl.mf[self.LS[qt]] = mfma(vr(LA(qt), 4), ar(aOnes, 4), vr(P(qt), 4), vr(LA(qt), 4))
        mem = [[] for _ in range(NS)]; alu = [[] for _ in range(NS)]
        def put(g, ins):
            g %= NS
            mn = ins.split()[0]
            (mem if mn.startswith('ds_') or mn.startswith('buffer_') or mn.startswith('global_') else alu)[g].append(ins)
        for qt in range(4):
            for i in range(8):
                g = self.EX[qt] + 2 * i
                if last and g < NS: continue
                r = S(qt, i >> 2) + (i & 3)
                put(g, f'v_exp_f32 v{r}, v{r}')
            for n in range(4):
                g = self.EX[qt] + 4 * n + 3
                if last and g < NS: continue
                r = S(qt, n >> 1) + 2 * (n & 1)
                if last and Sl.mf[g % NS] is None: put(g, 's_nop 0')
                put(g, f'v_cvt_pk_bf16_f32 v{P(qt)+n}, v{r}, v{r+1}')
        if last: Sl.pre[8].append('s_nop 1')
        if not last:
            for n in range(16):
                dt, u = n >> 1, n & 1
                put(self.VG[n], f'ds_read_b64_tr_b16 a[{Vf(dt)+2*u}:{Vf(dt)+2*u+1}], v{vVA+dt} offset:{par*8192+u*4096}')
            if kind == 'full':
                for m in range(8):
                    ds, kt = m >> 1, m & 1
                    put(self.KG[m], f'ds_read_b128 a[{Kf(m)}:{Kf(m)+3}], v{vKA+ds} offset:{par*8192+kt*4096}')
            nk = sum(1 for g in self.KG if g <= 48) if kind == 'full' else 0
            Sl.pre[49].append(f's_waitcnt lgkmcnt({nk})')
            if kind == 'full': Sl.pre[67].append('s_waitcnt lgkmcnt(0)')
            if par == 0:
                Sl.pre[1] += ['s_waitcnt vmcnt(VMW)', 's_barrier']
                for dt in range(8): put([2, 4, 4, 6, 8, 8, 10, 14][dt], f'v_xor_b32 v{vVA+dt}, s{sXor}, v{vVA+dt}')
                for ds in range(4): put([18, 20, 20, 22][ds], f'v_xor_b32 v{vKA+ds}, s{sXor}, v{vKA+ds}')
        if extra:
            for g, L in extra.items():
                mem[g % NS] += L
        ab = cfg.ablate
        if ab and kind == 'full':
            if 'exp' in ab: alu = [[x for x in a if not x.startswith('v_exp')] for a in alu]
            if 'cvt' in ab: alu = [[x for x in a if not x.startswith('v_cvt')] for a in alu]
            if 'vrd' in ab: mem = [[x for x in a if not x.startswith('ds_read_b64')] for a in mem]
            if 'krd' in ab: mem = [[x for x in a if not x.startswith('ds_read_b128')] for a in mem]
            if 'dma' in ab: mem = [[x for x in a if not x.startswith('buffer_load')] for a in mem]
            if 'lsum' in ab:
                for qt in range(4): Sl.mf[self.LS[qt]] = None
        for g in range(NS): Sl.post[g] = mem[g] + alu[g]
        if cfg.pad and not last:
            for g in range(3, NS, max(1, NS // cfg.pad)): Sl.post[g].append('s_nop 3')
        self.last_load = Sl.load()
        return Sl.out()

    def kv_extra(self, it, par, doK=True, doV=True):
        slot = (it + 1 + cfg.D) & 3
        X = {}
        if par == 0:
            X.setdefault(61, []).append(f's_and_b32 s{sVsoff}, s{sVsoff}, 0x3ffff')
            if doK:
                D = dma_K(it + 1 + cfg.D, slot, f's{sKsoff}')
                X[12] = [f's_mov_b32 m0, s{sDma}']
                for g, d in zip((16, 24, 58, 64), D): X.setdefault(g, []).append(d)
                X.setdefault(64, []).append(f's_add_u32 s{sKsoff}, s{sKsoff}, 16384')
        else:
            X.setdefault(12, []).append(f's_and_b32 s{sKsoff}, s{sKsoff}, 0x3ffff')
            if doV:
                D = dma_V(it + cfg.D, slot, f's{sVsoff}')
                X[0] = [f's_add_u32 s{sT0}, s{sDma}, {LDS_V}']
                X[4] = [f's_mov_b32 m0, s{sT0}']
                for g, d in zip((8, 20, 58, 64), D): X.setdefault(g, []).append(d)
                X.setdefault(64, []).append(f's_add_u32 s{sVsoff}, s{sVsoff}, 16384')
            if cfg.D == 2:
                X.setdefault(61, []).append(f's_xor_b32 s{sXor}, s{sXor}, 0x8000')
                X.setdefault(62, []).append(f's_xor_b32 s{sDma}, s{sDma}, s{sXor}')
            else:
                X.setdefault(61, []).append(f's_xor_b32 s{sDma}, s{sDma}, s{sXor}')
                X.setdefault(62, []).append(f's_xor_b32 s{sXor}, s{sXor}, 0x8000')
            X.setdefault(62, []).append(f's_add_u32 s{sIter}, s{sIter}, 1')
        return X

    def phase2(self):
        e = self.e
        def epi(qt):
            o = []
            for ds in range(4):
                for x in range(2):
                    b_ = O(2 * ds + x, qt)
                    o += [f'v_pk_mul_f32 v[{b_}:{b_+1}], v[{b_}:{b_+1}], s[{sC}:{sC+1}]', f'v_pk_mul_f32 v[{b_+2}:{b_+3}], v[{b_+2}:{b_+3}], s[{sC}:{sC+1}]']
                t = vC + (ds & 1) * 4
                for x in range(2):
                    b_ = O(2 * ds + x, qt)
                    o += [f'v_cvt_pk_bf16_f32 v{t+2*x}, v{b_}, v{b_+1}', f'v_cvt_pk_bf16_f32 v{t+2*x+1}, v{b_+2}, v{b_+3}']
                o += [f'v_accvgpr_write_b32 a{Qf(qt, ds)+i}, v{t+i}' for i in range(4)]
            return o
        def qk0(qt):
            return [mfma(vr(S(qt, m & 1), 4), ar(Kf(m), 4), ar(Qf(qt, m >> 1), 4), '0' if m < 2 else vr(S(qt, m & 1), 4)) for m in range(8)]
        def weave(valu, mf, lead=2):
            o = []; n = len(valu); step_ = max(1, (n - lead) // max(1, len(mf))); j = 0
            for i, x in enumerate(valu):
                o.append(x)
                if i >= lead and (i - lead) % step_ == 0 and j < len(mf): o += mf[j] if isinstance(mf[j], list) else [mf[j]]; j += 1
            for x in mf[j:]: o += x if isinstance(x, list) else [x]
            return o
        kreads = lambda off: [f'ds_read_b128 a[{Kf(m)}:{Kf(m)+3}], v{vKA+(m>>1)} offset:{off+(m&1)*4096} ; @rd K0' for m in range(8)]
        vreads = [f'ds_read_b64_tr_b16 a[{Vf(n>>1)+2*(n&1)}:{Vf(n>>1)+2*(n&1)+1}], v{vVA+(n>>1)} offset:{8192+(n&1)*4096}' for n in range(16)]
        zero = lambda qt: [mfma(vr(O(dt, qt), 4), ar(aZero, 4), ar(aZero, 4), '0') for dt in range(8)] + [mfma(vr(LA(qt), 4), ar(aZero, 4), ar(aZero, 4), '0')]
        wait0 = f's_waitcnt vmcnt({self.vm_need({"K0", "Vm1"})})'
        late = self.late_kv_pending
        e('s_nop 3')
        e(wait0); e('s_barrier')
        self.stamp('q0')
        e(kreads(0)); e(vreads)
        e(epi(0))
        self.stamp('q1')
        e('s_waitcnt lgkmcnt(15)\ns_waitcnt lgkmcnt(0)')
        e(weave(epi(1), qk0(0)))
        h_ = len(late) // 2
        e(weave(epi(2), qk0(1) + [g for g in late[:h_]]))
        e(weave(epi(3), qk0(2) + [g for g in late[h_:]]))
        self.stamp('q2')
        e('s_branch L_p2q3', trace=False)
        self.p('L_p2start:')
        R = [wait0, 's_barrier'] + kreads(0) + vreads + ['s_waitcnt lgkmcnt(0)'] + qk0(0) + qk0(1) + qk0(2)
        self.e([x.split(';')[0].strip() for x in R], trace=False)
        self.p('L_p2q3:')
        q3 = qk0(3); k1 = kreads(8192)
        z = zero(2) + zero(3)
        e('s_nop 1')
        for m in range(8):
            e(q3[m]); e(k1[m]); e(z[2*m:2*m+2])
        e(z[16:])
        self.stamp('q3')
        for qt in range(4):
            a, b = S(qt, 0), S(qt, 1); m = vT + qt
            e(f'v_max3_f32 v{m}, v{a}, v{a+1}, v{vMG+qt}\nv_max3_f32 v{m}, v{m}, v{a+2}, v{a+3}\nv_max3_f32 v{m}, v{m}, v{b}, v{b+1}\nv_max3_f32 v{m}, v{m}, v{b+2}, v{b+3}')
        for sw in ('v_permlane32_swap_b32', 'v_permlane16_swap_b32'):
            for qt in range(4): e(f'v_mov_b32 v{vC+qt}, v{vT+qt}')
            e('s_nop 0')
            for qt in range(4): e(f'{sw} v{vT+qt}, v{vC+qt}')
            for qt in range(4): e(f'v_max_f32 v{vT+qt}, v{vT+qt}, v{vC+qt}')
        for qt in range(4):
            for r in range(4): e(f'v_sub_f32 v{CI(qt)+r}, 0, v{vT+qt}')
        for qt in range(4):
            for i in range(8): e(f'v_add_f32 v{S(qt,0)+i}, v{S(qt,0)+i}, v{CI(qt)}')
        for qt in range(3):
            for i in range(8): e(f'v_exp_f32 v{S(qt,0)+i}, v{S(qt,0)+i}')
        for i in range(3): e(f'v_exp_f32 v{S(3,0)+i}, v{S(3,0)+i}')
        for qt in range(3):
            for n in range(4):
                r = S(qt, n >> 1) + 2 * (n & 1)
                e(f'v_cvt_pk_bf16_f32 v{P(qt)+n}, v{r}, v{r+1}')
        e(f'v_cvt_pk_bf16_f32 v{P(3)}, v{S(3,0)}, v{S(3,0)+1}')
        self.stamp('q4')
        e('s_waitcnt lgkmcnt(0)')
        for qt in range(2):
            for dt in range(8):
                e(mfma(vr(O(dt, qt), 4), ar(Vf(dt), 4), vr(P(qt), 4), '0'))
            e(mfma(vr(LA(qt), 4), ar(aOnes, 4), vr(P(qt), 4), '0'))
        e(f'''s_mov_b32 s{sXor}, 0x4000
s_add_u32 s{sDma}, s{sW4K}, {((1+cfg.D)&3)*16384}
s_add_u32 s{sKsoff}, s{sRot}, {(1+cfg.D)*16384}
s_and_b32 s{sKsoff}, s{sKsoff}, 0x3ffff
s_add_u32 s{sVsoff}, s{sRot}, {8192+cfg.D*16384}
s_and_b32 s{sVsoff}, s{sVsoff}, 0x3ffff
s_mov_b32 s{sIter}, 0''')
        self.stamp('p2loop')
        self.p('.p2align 3\nL_p2:')
        texts = []
        NL = 12
        for it in range(NL):
            L = self.step(2 * it, 0, 'full', self.kv_extra(it, 0)); l0 = self.last_load
            L += self.step(2 * it + 1, 1, 'full', self.kv_extra(it, 1)); l1 = self.last_load
            L = [x.replace('VMW', str(8 * (cfg.D - 1))) for x in L]
            L += [f's_cmp_lt_u32 s{sIter}, {NL}', 's_cbranch_scc1 L_p2']
            texts.append([x.split(';')[0].strip() for x in L])
            if it == 0:
                self.p(L); self.loop_body = L
                print('gap load step0:', l0); print('gap load step1:', l1)
            self.tr.extend(L)
        assert all(t == texts[0] for t in texts)
        self.stamp('p2peel')
        from g2p3 import peeled_tail
        peeled_tail(self)

    def fallback(self):
        e = lambda x: self.e(x, trace=False)
        self.p('L_fallback:')
        e('s_waitcnt vmcnt(0) lgkmcnt(0)\ns_barrier')
        e(kv_dma_addr()); e(kv_read_addr())
        for i in range(4): e(f'v_mov_b32 v{vMG+i}, 0xff800000')
        e(f's_mov_b32 s{sKsoff}, s{sW4K}')
        self.p('L_fb_loop:')
        e(f's_mov_b32 m0, s{sW4K}\ns_nop 0')
        e([x.split(';')[0] for x in dma_K(0, 0, f's{sKsoff}')])
        e('s_waitcnt vmcnt(0)\ns_barrier')
        for half in range(2):
            for m in range(8):
                ds, kt = m >> 1, m & 1
                e(f'ds_read_b128 a[{Kf(m)}:{Kf(m)+3}], v{vKA+ds} offset:{half*8192+kt*4096}')
            e('s_waitcnt lgkmcnt(0)')
            for qt in range(4):
                for m in range(8):
                    ds, kt = m >> 1, m & 1
                    e(mfma(vr(S(qt, kt), 4), ar(Kf(m), 4), ar(Qf(qt, ds), 4), '0' if ds == 0 else vr(S(qt, kt), 4)))
            e('s_nop 7')
            for qt in range(4):
                a, b = S(qt, 0), S(qt, 1); m = vMG + qt
                e(f'v_max3_f32 v{m}, v{m}, v{a}, v{a+1}\nv_max3_f32 v{m}, v{m}, v{a+2}, v{a+3}\nv_max3_f32 v{m}, v{m}, v{b}, v{b+1}\nv_max3_f32 v{m}, v{m}, v{b+2}, v{b+3}')
        e(f's_barrier\ns_add_u32 s{sKsoff}, s{sKsoff}, 16384\ns_cmp_lt_u32 s{sKsoff}, 262144\ns_cbranch_scc1 L_fb_loop')
        for g in self.prefill: e([x.split(';')[0] for x in g])
        e(f's_mov_b32 s{sMode}, 1\ns_branch L_p2start')

    def finish_stamps(self):
        if not cfg.stamps: return
        e = self.e
        if cfg.dbgstamps:
            e('s_waitcnt lgkmcnt(0)', trace=False)
            for n_, (wg, base) in enumerate(zip(cfg.dbgstamps, (1, 5, 9, 12))):
                e(f's_cmp_eq_u32 s2, {wg}\ns_cbranch_scc0 L_nodbg{n_}\ns_cmp_eq_u32 s{sW}, 0\ns_cbranch_scc0 L_nodbg{n_}', trace=False)
                vals = [(stamp_reg(1), stamp_reg(0)), (stamp_reg(2), stamp_reg(0)), (stamp_reg(2) + 2, stamp_reg(1) + 2)]
                for i, (x, y) in enumerate(vals):
                    e(f's_sub_u32 s{sT0}, s{x}, s{y}\nv_mov_b32 v{vT+2}, s{sT0}\nv_mov_b32 v{vT}, {4*(base+i)}\nglobal_store_dword v{vT}, v{vT+2}, s[16:17]', trace=False)
                self.p(f'L_nodbg{n_}:')
            return
        e(f'''s_waitcnt lgkmcnt(0)
s_lshl_b32 s{sT0}, s2, 2
s_add_u32 s{sT0}, s{sT0}, s{sW}
s_lshl_b32 s{sT0}, s{sT0}, 8
s_add_u32 s{sT0}, s{sT0}, {STAMPBASE}
s_add_u32 s18, s18, s{sT0}
s_addc_u32 s19, s19, 0
v_mov_b32 v{vT}, 0''')
        for i in range(self.nstamp):
            for j in range(4): e(f'v_mov_b32 v{vT+2+j}, s{stamp_reg(i)+j}')
            e(f'global_store_dwordx4 v{vT}, v[{vT+2}:{vT+5}], s[18:19] offset:{16*i}\ns_nop 1')

def build():
    k = Kernel()
    k.header(); k.setup(); k.phase1(); k.phase2()
    from g2p3 import phase3
    phase3(k)
    k.stamp('end')
    k.finish_stamps()
    k.e('s_endpgm', trace=False)
    k.fallback()
    k.footer()
    return k

def main():
    import argparse
    ap = argparse.ArgumentParser()
    ap.add_argument('-o', default=f'cdna_kernels/{NAME}.s')
    ap.add_argument('--stamps', default='')
    ap.add_argument('--set', action='append', default=[])
    a = ap.parse_args()
    cfg.stamps = a.stamps.split(',') if a.stamps else False
    for kv in a.set:
        kk, vv = kv.split('=', 1)
        try: vv = eval(vv)
        except Exception: pass
        setattr(cfg, kk, vv)
    k = build()
    errs = simulate(k.tr, 'trace')
    errs += check_hazards(k.tr, 'haz')
    txt = k.p.text()
    txt = txt.replace('CODEOFF', f'((L_pc - {NAME}_kernel) & 0xffffff00)').replace('CODELEN', f'(L_codeend - {NAME}_kernel - 128)')
    open(a.o, 'w').write(txt)
    print('written', a.o, 'errors:', len(errs), 'trace len', len(k.tr))
```

```python
from asmlib import *
import g2 as G
from g2 import cfg, mfma, kb, Slots

REG = [13, 14, 0, 1, 2, 7, 3, 4, 8, 9, 5, 6, 10, 11, 12, 15]
def rbase(j):
    if j < 7: return j * 9216
    if j < 15: return 81920 + (j - 7) * 9216
    return 65536
sWoB = 60
sWoS = 84
sPh = 96
sOst = 99; sPst = 100; sFl = 101; sCnt = 59
vWoD = G.vWoD
vR = 8
vAd = 12
vOwn = 32
vD = 112
aPart = 0
aA = 192
def D(nt, qt): return vD + (nt * 4 + qt) * 4
def Own(qt, ks): return vOwn + (qt * 4 + ks) * 4
def Part(hp, qt, ks): return aPart + hp * 64 + (qt * 4 + ks) * 4

def wo_setup(k):
    e = k.e; T = G.vT; L = G.vLane
    out = []
    for p in range(9):
        out += [f'v_add_u32 v{T}, {64*p}, v{L}', f'v_mul_u32_u24 v{T+1}, 3641, v{T}', f'v_lshrrev_b32 v{T+1}, 16, v{T+1}',
                f'v_mul_u32_u24 v{T+2}, 18, v{T+1}', f'v_sub_u32 v{T+2}, v{T}, v{T+2}', f'v_mul_u32_u24 v{T+1}, 1152, v{T+1}',
                f'v_lshl_add_u32 v{vWoD+p}, v{T+2}, 4, v{T+1}']
        if p % 4: out.append(f'v_subrev_u32 v{vWoD+p}, {(p%4)*1024}, v{vWoD+p}')
    for grp in range(4):
        t = [rbase(REG[4 * grp + w]) for w in range(4)]
        out += [f's_mov_b32 s{sWoB+grp}, {t[0]}']
        for w in range(1, 4):
            out += [[f's_cmp_eq_u32 s{G.sW}, {w}', f's_cselect_b32 s{sWoB+grp}, {t[w]}, s{sWoB+grp}']]
        out += [f's_add_u32 s{G.sT0}, s{G.sNb}, {grp}', f's_and_b32 s{G.sT0}, s{G.sT0}, 3', f's_lshl_b32 s{G.sT0}, s{G.sT0}, 2',
                f's_add_u32 s{G.sT0}, s{G.sT0}, s{G.sW}', f's_mul_i32 s{sWoS+grp}, s{G.sT0}, {32*1152}']
    return out

def wo_dma(grp, vbase=None):
    L = []
    for p in range(9):
        g = []
        if p % 4 == 0:
            g += [f's_add_u32 s{G.sT0}, s{sWoB+grp}, {p*1024}', f's_mov_b32 m0, s{G.sT0}', 's_nop 0']
        a = lambda w, p=p: rbase(REG[4 * grp + w]) + p * 1024
        g.append(f'buffer_load_dwordx4 v{(vbase or vWoD)+p}, s[{G.sWo}:{G.sWo+3}], s{sWoS+grp} offen offset:{(p%4)*1024}{cfg.wo_flag} lds')
        L.append(g)
    return L

def spread(groups, gaps):
    X = {}
    for g, pos in zip(groups, gaps): X.setdefault(pos, []).extend(g)
    return X
def merge(a, b):
    for g, L in b.items(): a.setdefault(g, []).extend(L)
    return a

def peeled_tail(k):
    e = k.e
    gapsA = [12, 20, 24, 46, 62]; gapsB = [4, 20, 46, 62]
    def emit(step_lines, tags):
        n = k.vm_need(tags)
        e([x.replace('VMW', str(n)) for x in step_lines])
    su = wo_setup(k)
    reg = [f's_lshl_b32 s{G.sT0}, s{G.sB}, 5', f'v_mov_b32 v{G.vT2}, s{G.sT0}', f'global_load_dword v{G.vT2}, v{G.vT2}, s[16:17] sc1']
    X0 = {}
    h = len(su) // 2
    def sprinkle(L, gaps):
        X = {}; n = len(L); per = -(-n // len(gaps))
        for i, x in enumerate(L):
            if isinstance(x, list): X.setdefault(gaps[i // per], []).extend(x)
            else: X.setdefault(gaps[i // per], []).append(x)
        return X
    free = [12, 16, 24, 56, 58, 60, 61, 62, 64]
    D_ = cfg.D
    emit(k.step(24, 0, 'full', merge(k.kv_extra(12, 0, doK=(13 + D_ <= 15)), sprinkle(su[:h], free))), {'V12', 'K13'})
    X = k.kv_extra(12, 1, doV=True)
    emit(k.step(25, 1, 'full', merge(X, sprinkle(su[h:] + reg, [12, 16, 24, 56, 60]))), set())
    for it, grp in ((13, 0), (14, 1)):
        W = wo_dma(grp)
        emit(k.step(2 * it, 0, 'full', spread(W[:4], [12, 24, 58, 64])), {f'V{it}', f'K{it+1}'})
        if it == 13 and D_ == 2:
            Dv = G.dma_V(15, (13 + 3) & 3, f's{G.sVsoff}')
            X = {0: [f's_add_u32 m0, s{G.sDma}, {G.LDS_V}', f's_and_b32 s{G.sVsoff}, s{G.sVsoff}, 0x3ffff'], 2: [Dv[0]], 4: [Dv[1]], 6: [Dv[2]], 8: [Dv[3]], 61: [f's_xor_b32 s{G.sXor}, s{G.sXor}, 0x8000']}
            X = merge(X, spread(W[4:], [12, 16, 20, 58, 64]))
        else:
            X = spread(W[4:], [4, 12, 20, 58, 64])
            X.setdefault(61, []).append(f's_xor_b32 s{G.sXor}, s{G.sXor}, 0x8000')
        emit(k.step(2 * it + 1, 1, 'full', X), set())
    W = wo_dma(2)
    emit(k.step(30, 0, 'nok', spread(W, [12, 16, 24, 44, 48, 52, 56, 60, 64])), {'V15', 'WO0', 'WO1'})
    L31 = k.step(31, 1, 'last')
    W3 = wo_dma(3)
    pos = [i for i, x in enumerate(L31) if x.startswith('v_mfma')]
    cut = pos[0]
    e(L31[:cut])
    e(f's_cmp_eq_u32 s{G.sW}, 3\ns_cbranch_scc1 L_now3', trace=False)
    for g in W3: e([x.split(';')[0] for x in g], trace=False)
    k.p('L_now3:')
    e(L31[cut:])
    k.stamp('p2end')

def poll_dual(k, name, vaddr, soff_reg, nbits):
    e = k.e; T = G.vT
    full = (1 << (1 << nbits)) - 1
    e(f's_mov_b32 s{sCnt}, 0\ns_mov_b32 s{G.sT2}, 0\ns_add_u32 s{G.sT3 if False else 88}, s{soff_reg}, {G.FTWIN}', trace=False)
    k.p(f'L_poll_{name}:')
    e(f'''s_and_b32 s{G.sT1}, s{sCnt}, 7
s_cmp_eq_u32 s{G.sT1}, 7
s_cselect_b32 s89, s{soff_reg}, s88
s_add_u32 s{sCnt}, s{sCnt}, 1
buffer_load_dword v{T+1}, v{vaddr}, s[{G.sWS}:{G.sWS+3}], s89 offen sc1
s_waitcnt vmcnt(0)
v_cmp_eq_u32 vcc, 1, v{T+1}
s_nop 1
s_or_b32 s{G.sT2}, s{G.sT2}, vcc_lo
s_and_b32 s{G.sT1}, s{G.sT2}, {full}
s_cmp_eq_u32 s{G.sT1}, {full}
s_cbranch_scc1 L_pollx_{name}
s_cmp_ge_u32 s{sCnt}, 0x8000
s_cbranch_scc0 L_poll_{name}''', trace=False)
    k.p(f'L_pollx_{name}:')
    k.tr.append('s_waitcnt vmcnt(0)')

def poll(k, name, vaddr, soff_reg):
    e = k.e
    e(f's_mov_b32 s{sCnt}, 0', trace=False)
    k.p(f'L_poll_{name}:')
    e(f'''buffer_load_dword v{G.vT+1}, v{vaddr}, s[{G.sWS}:{G.sWS+3}], s{soff_reg} offen sc1
s_add_u32 s{sCnt}, s{sCnt}, 1
s_waitcnt vmcnt(0)
v_cmp_ne_u32 vcc, 1, v{G.vT+1}
s_cmp_ge_u32 s{sCnt}, 0x4000
s_cbranch_scc1 L_pollx_{name}
s_cbranch_vccz L_pollx_{name}
s_sleep 1
s_branch L_poll_{name}''', trace=False)
    k.p(f'L_pollx_{name}:')
    k.tr.append('s_waitcnt vmcnt(0)')

def set_flag(k, off_vreg, dual=False):
    o = ['s_mov_b64 exec, 1']
    if dual: o.append(f'buffer_store_dword v{vOne}, v{off_vreg}, s[{G.sWS}:{G.sWS+3}], s91 offen')
    o += [f'buffer_store_dword v{vOne}, v{off_vreg}, s[{G.sWS}:{G.sWS+3}], s{sFl} offen sc1', 's_mov_b64 exec, -1']
    return o

vOne = 20; vF1 = 21; vF2a = 24; vF2b = 25
vPk = [32, 68]

def phase3(k):
    e = k.e; T = G.vT; L = G.vLane
    e('s_nop 4')
    rp = [T, T + 2, T + 4, 122]
    sBad = 88
    for qt in range(4): e(f'v_rcp_f32 v{rp[qt]}, v{G.LA(qt)}')
    e(f's_mov_b32 s{G.sT0}, 0x6f800000')
    for qt in range(4):
        e(f'v_cmp_nlt_f32 vcc, v{G.LA(qt)}, v{G.LA(qt)}') if False else None
    e(f'v_mov_b32 v{G.vT2+1}, s{G.sT0}')
    e(f's_mov_b64 s[{sBad}:{sBad+1}], 0')
    for qt in range(4):
        e(f'v_cmp_nlt_f32 vcc, v{G.LA(qt)}, v{G.vT2+1}\ns_nop 0\ns_or_b64 s[{sBad}:{sBad+1}], s[{sBad}:{sBad+1}], vcc')
    e(f'''v_lshlrev_b32 v{vAd}, 4, v{L}
s_lshl_b32 s{sFl}, s{G.sB}, 5
s_add_u32 s{sFl}, s{sFl}, s{G.sH}
s_lshl_b32 s{sOst}, s{sFl}, 2
s_add_u32 s{sOst}, s{sOst}, s{G.sW}
s_lshl_b32 s{sOst}, s{sOst}, 14
s_lshl_b32 s{sFl}, s{sFl}, 7
s_add_u32 s{sFl}, s{sFl}, {G.FBASE}
s_add_u32 s91, s{sFl}, {G.FTWIN}''')
    for qt in range(4): e(f'v_mov_b32 v{rp[qt]+1}, v{rp[qt]}')
    for p in range(9): e(f'v_mov_b32 v{96+p}, v{vWoD+p}')
    for i in range(1, 4): e(f'v_add_u32 v{vAd+i}, {4096*i}, v{vAd}')
    vPr = 108
    prev = None; nprobe = 0
    for ks in range(4):
        for qt in range(4):
            for x in range(2):
                b = G.O(2 * ks + x, qt); r = rp[qt]
                e(f'v_pk_mul_f32 v[{b}:{b+1}], v[{b}:{b+1}], v[{r}:{r+1}]\nv_pk_mul_f32 v[{b+2}:{b+3}], v[{b+2}:{b+3}], v[{r}:{r+1}]')
            if prev is not None:
                e(mfma(vr(vPr, 4), ar(G.aZero, 4), vr(prev, 4), '0' if nprobe == 0 else vr(vPr, 4))); nprobe += 1
            for x in range(2):
                b = G.O(2 * ks + x, qt); d = Own(qt, ks) + 2 * x
                e(f'v_cvt_pk_bf16_f32 v{d}, v{b}, v{b+1}\nv_cvt_pk_bf16_f32 v{d+1}, v{b+2}, v{b+3}')
            if ks == 0 or cfg.early_ost:
                e(f'buffer_store_dwordx4 v[{Own(qt,ks)}:{Own(qt,ks)+3}], v{vAd+qt}, s[{G.sWS}:{G.sWS+3}], s{sOst} offen offset:{ks*1024} sc1')
            prev = Own(qt, ks)
    e('s_nop 1')
    e(mfma(vr(vPr, 4), ar(G.aZero, 4), vr(prev, 4), vr(vPr, 4)))
    ost = [f'buffer_store_dwordx4 v[{Own(qt,ks)}:{Own(qt,ks)+3}], v{vAd+qt}, s[{G.sWS}:{G.sWS+3}], s{sOst} offen offset:{ks*1024} sc1' for ks in range(1, 4) for qt in range(4)]
    if cfg.early_ost: ost = []
    e(f'''s_lshl_b32 s{G.sT0}, s{G.sW}, 2
s_add_u32 s{G.sT0}, s{G.sT0}, 64512
v_mov_b32 v{T}, s{G.sT0}
v_mov_b32 v{vOne}, 1
s_nop 3
v_cmp_u_f32 vcc, v{vPr}, v{vPr}
s_nop 0
s_or_b64 s[{sBad}:{sBad+1}], s[{sBad}:{sBad+1}], vcc
s_cmp_lg_u64 s[{sBad}:{sBad+1}], 0
s_cselect_b32 s{G.sT0}, 1, 0
v_mov_b32 v{T+1}, s{G.sT0}
ds_write_b32 v{T}, v{T+1}
v_mov_b32 v{T+2}, 64512''')
    n = k.vm_need({'WO2', 'REG'})
    e(f's_cmp_eq_u32 s{G.sW}, 3\ns_cbranch_scc1 L_vw3\ns_waitcnt vmcnt({n+9}) lgkmcnt(0)\ns_branch L_vw4', trace=False)
    k.p('L_vw3:')
    e(f's_waitcnt vmcnt({n}) lgkmcnt(0)')
    k.p('L_vw4:')
    e('s_barrier')
    e(f'ds_read_b128 v[124:127], v{T+2}')
    e(f'v_readfirstlane_b32 s90, v{G.vT2}')
    k.stamp('p3pk')
    e(f'''v_lshrrev_b32 v30, 4, v{L}
v_bfe_u32 v31, v{L}, 2, 2
v_lshl_add_u32 v30, v30, 2, v31
v_mul_u32_u24 v30, 288, v30
v_and_b32 v31, 3, v{L}
v_lshl_add_u32 v{vR}, v31, 3, v30
v_add_u32 v{vR+1}, 61440, v{vR}
v_add_u32 v{vR+2}, 122880, v{vR}
v_mov_b32 v{vOne}, 1
s_lshl_b32 s{G.sT0}, s{G.sW}, 2
v_mov_b32 v{vF1}, s{G.sT0}
s_lshl_b32 s{G.sT0}, s{G.sW}, 3
s_add_u32 s{G.sT0}, s{G.sT0}, 16
v_mov_b32 v{vF2a}, s{G.sT0}
s_add_u32 s{G.sT0}, s{G.sT0}, 4
v_mov_b32 v{vF2b}, s{G.sT0}''')
    e(f'''s_waitcnt lgkmcnt(0)
v_or_b32 v124, v124, v125
v_or3_b32 v124, v124, v126, v127
s_nop 0
v_readfirstlane_b32 s{G.sT0}, v124
s_andn2_b32 s{G.sT0}, s{G.sT0}, s{G.sMode}
s_cmp_lg_u32 s{G.sT0}, 0
s_cbranch_scc1 L_fallback''')
    assert cfg.early_ost
    e(f's_cmp_eq_u32 s{G.sW}, 3\ns_cbranch_scc0 L_no315', trace=False)
    for g in wo_dma(3, 96): e([x.split(';')[0] for x in g], trace=False)
    k.p('L_no315:')
    def a_read(c, nt, slot):
        base = rbase(REG[c]); idx = base // 61440
        return [f'ds_read_b64_tr_b16 a[{aA+4*slot+2*u}:{aA+4*slot+2*u+1}], v{vR+idx} offset:{base-61440*idx+u*4608+nt*32}' for u in range(2)]
    seq = [(c, nt, (0, 1, 2, 3)) for c in range(4) for nt in range(9)]
    seq += [(c, nt, (0, 1)) for c in range(4, 16) for nt in range(9)]
    seq += [(c, nt, (2, 3)) for c in range(4, 16) for nt in range(9)]
    AH_OWN, AH = 6, 8
    for i in range(AH_OWN): e(a_read(seq[i][0], seq[i][1], i % 16))
    for hp in range(3):
        e(f'''s_add_u32 s{G.sT0}, s{G.sNb}, {hp+1}
s_and_b32 s{G.sT0}, s{G.sT0}, 3
s_lshl_b32 s{G.sT1}, s{G.sKg}, 2
s_add_u32 s{G.sT0}, s{G.sT0}, s{G.sT1}
s_lshl_b32 s{G.sT1}, s{G.sB}, 5
s_add_u32 s{G.sT0}, s{G.sT0}, s{G.sT1}
s_lshl_b32 s{G.sT0}, s{G.sT0}, 2
s_add_u32 s{G.sT0}, s{G.sT0}, s{G.sW}
s_lshl_b32 s{sPh+hp}, s{G.sT0}, 14''')
    k.stamp('p3go')
    def part_load(hp, qt, ks):
        return f'buffer_load_dwordx4 a[{Part(hp,qt,ks)}:{Part(hp,qt,ks)+3}], v{vAd+qt}, s[{G.sWS}:{G.sWS+3}], s{sPh+hp} offen offset:{ks*1024}'
    loads = [[part_load(hp, qt, ks) for ks in range(4) for qt in (2 * half, 2 * half + 1)] for half in range(2) for hp in range(3)]
    paddr = f'''s_lshl_b32 s{G.sT0}, s{G.sB}, 2
s_add_u32 s{G.sT0}, s{G.sT0}, s{G.sNb}
s_lshl_b32 s{G.sT0}, s{G.sT0}, 3
s_lshl_b32 s{G.sT1}, s{G.sW}, 1
s_add_u32 s{G.sT1}, s{G.sT0}, s{G.sT1}
s_lshl_b32 s{G.sT1}, s{G.sT1}, 4
s_add_u32 s{G.sT1}, s{G.sT1}, s{G.sKg}
s_mul_i32 s{sPst}, s{G.sT1}, 5120
s_add_u32 s{sPst}, s{sPst}, {G.PBASE}
s_add_u32 s{G.sT0}, s{G.sT0}, s{G.sKg}
s_mul_i32 s{G.sT3}, s{G.sT0}, {16*5120}
s_add_u32 s{G.sT3}, s{G.sT3}, {G.PBASE}'''
    def pack_store(half):
        cv = []; st = []
        for x in range(2):
            qt = 2 * half + x
            for blk in range(5):
                d = D(2 * blk, qt)
                cv += [f'v_cvt_pk_bf16_f32 v{d}, v{d}, v{d+1}', f'v_cvt_pk_bf16_f32 v{d+1}, v{d+2}, v{d+3}']
                if blk < 4:
                    b_ = D(2 * blk + 1, qt)
                    cv += [f'v_cvt_pk_bf16_f32 v{d+2}, v{b_}, v{b_+1}', f'v_cvt_pk_bf16_f32 v{d+3}, v{b_+2}, v{b_+3}']
                g = []
                if blk == 0: g.append(f's_add_u32 s{sOst}, s{sPst}, {x*81920 + half*40960}')
                g.append(f'buffer_store_dwordx4 v[{d}:{d+3}], v{vAd + (blk >> 2)}, s[{G.sWS}:{G.sWS+3}], s{sOst} offen offset:{(blk & 3)*1024} sc1')
                st.append(g)
        return cv, st
    R = 32; SUM = 80
    def fin_addr(part):
        return f'''v_and_b32 v{T}, 7, v{L}
v_lshlrev_b32 v{T}, 2, v{T}
v_add_u32 v{T}, s{G.sNb}, v{T}
v_lshlrev_b32 v{T}, 7, v{T}
s_lshr_b32 s{G.sT0}, s{G.sKg}, 1
s_lshl_b32 s{G.sT0}, s{G.sT0}, 3
s_add_u32 s{G.sT0}, s{G.sT0}, {16 + 4*part}
v_add_u32 v{T}, s{G.sT0}, v{T}
s_lshl_b32 s{G.sT0}, s{G.sB}, 12
s_add_u32 s{G.sT0}, s{G.sT0}, {G.FBASE}'''
    def fin_loads(part):
        o = []
        for src in range(8):
            o.append([f's_add_u32 s{G.sT1}, s{G.sT3}, {part*40960 + src*5120}',
                      f'buffer_load_dwordx4 v[{R+4*src}:{R+4*src+3}], v{vAd+4}, s[{G.sWS}:{G.sWS+3}], s{G.sT1} offen',
                      f'buffer_load_dwordx2 v[{R+32+2*src}:{R+32+2*src+1}], v{vAd+5}, s[{G.sWS}:{G.sWS+3}], s{G.sT1} offen'])
        return o
    def fin_reduce(part):
        e(f's_waitcnt vmcnt({k.vm_need({f"FIN{part}"})})')
        e(f's_mov_b32 s{G.sT1}, 0x00003f80\ns_mov_b32 s{G.sT2}, 0x3f800000')
        for src in range(8):
            for j in range(4):
                for hi_ in range(2):
                    acc = SUM + 2 * j + hi_
                    e(f'v_dot2_f32_bf16 v{acc}, v{R+4*src+j}, s{G.sT1+hi_}, {"0" if src == 0 else f"v{acc}"}')
            for j in range(2):
                for hi_ in range(2):
                    acc = SUM + 8 + 2 * j + hi_
                    e(f'v_dot2_f32_bf16 v{acc}, v{R+32+2*src+j}, s{G.sT1+hi_}, {"0" if src == 0 else f"v{acc}"}')
        e('s_nop 2')
        for j in range(6): e(f'v_cvt_pk_bf16_f32 v{SUM+12+j}, v{SUM+2*j}, v{SUM+2*j+1}')
        e(f'''s_add_u32 s{G.sT0}, s{sPh}, {part*32*1152}
s_cmp_ge_u32 s{G.sW}, 1
s_cselect_b32 s{G.sT1}, 0x7ffff000, s{G.sT0}
s_lshl_b32 s{G.sT2}, s{G.sW}, 6
s_add_u32 s{G.sT0}, s{G.sT0}, s{G.sT2}
buffer_store_dwordx2 v[{SUM+12}:{SUM+13}], v{vAd+6}, s[{G.sOut}:{G.sOut+3}], s{G.sT0} offen{cfg.out_flag}
buffer_store_dwordx2 v[{SUM+14}:{SUM+15}], v{vAd+6}, s[{G.sOut}:{G.sOut+3}], s{G.sT0} offen offset:32{cfg.out_flag}
buffer_store_dwordx2 v[{SUM+16}:{SUM+17}], v{vAd+6}, s[{G.sOut}:{G.sOut+3}], s{G.sT1} offen offset:256{cfg.out_flag}''')
    issued = AH_OWN
    SPL, POL = cfg.own_split
    seg_bounds = [(0, 9 * SPL), (9 * SPL, 9 * POL), (9 * POL, 36), (36, 144), (144, 252)]
    extra = {}
    def place(i0, items, every):
        for n_, it_ in enumerate(items):
            extra.setdefault(i0 + n_ * every, []).append(it_ if isinstance(it_, list) else [it_])
    if ost: place(1, ost, max(1, (9 * SPL - 2) // len(ost)))
    place(36 + 1, loads[2], 1)
    place(36 + 18, loads[3], cfg.l3_every)
    place(36 + 70, loads[4], 2)
    place(36 + 88, loads[5], 2)
    for seg, (lo, hi) in enumerate(seg_bounds):
        if seg == 1:
            nn = k.vm_need({'OST'})
            e(f's_cmp_eq_u32 s{G.sW}, 3\ns_cbranch_scc1 L_ow3\ns_waitcnt vmcnt({nn})\ns_branch L_ow4', trace=False)
            k.p('L_ow3:')
            e(f's_waitcnt vmcnt({nn+9})', trace=False)
            k.p('L_ow4:')
            k.tr.append(f's_waitcnt vmcnt({nn})')
            e(set_flag(k, vF1, dual=cfg.dualflag))
            k.stamp('p3d1')
            e(paddr)
        if seg == 2:
            e(f's_mov_b32 s{G.sT2}, s90')
            k.p('L_regchk:')
            e(f's_cmp_ge_u32 s{G.sT2}, 32\ns_cbranch_scc1 L_regok')
            e(f'''s_add_u32 s{G.sPass}, s{G.sPass}, 1
s_cmp_ge_u32 s{G.sPass}, 0x4000
s_cbranch_scc1 L_regok
s_lshl_b32 s{G.sT0}, s{G.sB}, 5
v_mov_b32 v{G.vT2}, s{G.sT0}
s_sleep 1
global_load_dword v{G.vT2}, v{G.vT2}, s[16:17] sc1
s_waitcnt vmcnt(0)
v_readfirstlane_b32 s{G.sT2}, v{G.vT2}
s_branch L_regchk''', trace=False)
            k.p('L_regok:')
            e(f'''v_and_b32 v{T}, 3, v{L}
s_lshl_b32 s{G.sT0}, s{G.sKg}, 2
v_add_u32 v{T}, s{G.sT0}, v{T}
v_lshlrev_b32 v{T}, 7, v{T}
v_add_u32 v{T}, v{T}, v{vF1}
s_lshl_b32 s{G.sT0}, s{G.sB}, 12
s_add_u32 s{G.sT0}, s{G.sT0}, {G.FBASE}''')
            if cfg.dualflag:
                poll_dual(k, 'f1', T, G.sT0, 2)
            else: poll(k, 'f1', T, G.sT0)
            k.stamp('p3f1')
            for x in loads[0] + loads[1]: e(x)
        for i in range(lo, hi):
            c, nt, qts = seq[i]
            half = 0 if seg == 3 else 1
            slot = i % 16
            ah = AH_OWN if seg < 3 else AH
            rd = []
            while issued < min(len(seq), i + ah + 1):
                rd += a_read(seq[issued][0], seq[issued][1], issued % 16); issued += 1
            younger = 2 * (issued - len(rd) // 2 - 1 - i)
            pre = [f's_waitcnt lgkmcnt({min(15, younger)})']
            if seg >= 3 and nt == 0:
                pre.append(f's_waitcnt vmcnt({k.vm_need({f"PH{(c>>2)-1}_{half}_{c&3}"})})')
                if seg == 3 and c == 9: pre.append('s_barrier')
            hook = None
            if seg == 4 and nt == 0 and c == cfg.f2a_c: hook = 'f2a'
            if seg == 4 and nt == 0 and c == cfg.fin0_c: hook = 'fin0'
            mf = []
            for qt in qts:
                Bop = vr(Own(qt, c), 4) if c < 4 else ar(Part((c >> 2) - 1, qt, c & 3), 4)
                Cop = '0' if c == 0 else vr(D(nt, qt), 4)
                mf.append(mfma(vr(D(nt, qt), 4), ar(aA + 4 * slot, 4), Bop, Cop))
            if hook == 'f2a':
                e(f's_waitcnt vmcnt({k.vm_need({"PS0"})})'); e(set_flag(k, vF2a, dual=cfg.dualflag))
            if hook == 'fin0':
                e(f'''v_lshlrev_b32 v{vAd+4}, 4, v{L}
s_lshl_b32 s{G.sT1}, s{G.sW}, 10
v_add_u32 v{vAd+5}, 4096, v{vAd+4}
v_add_u32 v{vAd+4}, s{G.sT1}, v{vAd+4}
s_cmp_ge_u32 s{G.sW}, 1
s_cselect_b32 s{G.sT1}, 0x40000000, 0
v_add_u32 v{vAd+5}, s{G.sT1}, v{vAd+5}
v_and_b32 v{vAd+6}, 15, v{L}
v_mul_u32_u24 v{vAd+6}, 1152, v{vAd+6}
v_lshrrev_b32 v{vAd+7}, 4, v{L}
v_lshl_add_u32 v{vAd+6}, v{vAd+7}, 3, v{vAd+6}
s_lshr_b32 s{G.sT0}, s{G.sKg}, 1
s_lshl_b32 s{G.sT0}, s{G.sT0}, 2
s_and_b32 s{G.sT1}, s{G.sKg}, 1
s_add_u32 s{G.sT0}, s{G.sT0}, s{G.sT1}
s_lshl_b32 s{G.sT1}, s{G.sB}, 4
s_add_u32 s{G.sT0}, s{G.sT0}, s{G.sT1}
s_mul_i32 s{sPh}, s{G.sT0}, {16*1152}
s_mul_i32 s{G.sT1}, s{G.sNb}, 288
s_add_u32 s{sPh}, s{sPh}, s{G.sT1}''')
                e(fin_addr(0))
                poll_dual(k, 'f2a', T, G.sT0, 3)
                k.stamp('p3f2a')
                place(i, fin_loads(0), 1)
            e(pre)
            e(mf[0]); e(rd)
            e(mf[1])
            for x in extra.pop(i, []): e(x)
            for m in mf[2:]: e(m)
        k.stamp(f'p3seg{seg}')
        if seg == 3:
            e('s_nop 4')
            cv, st = pack_store(0); e(cv)
            place(144, st, cfg.ps0_every)
        if seg == 4:
            e('s_nop 4')
            cv, st = pack_store(1)
            e(cv[:18]);
            for g in st[:5]: e(g)
            e(cv[18:])
            for g in st[5:]: e(g)
    assert not extra, extra.keys()
    k.stamp('p3mm')
    e(f's_waitcnt vmcnt({k.vm_need({"PS1"})})'); e(set_flag(k, vF2b, dual=cfg.dualflag))
    k.stamp('p3st')
    fin_reduce(0)
    k.stamp('p3r0')
    e(fin_addr(1))
    poll_dual(k, 'f2b', T, G.sT0, 3)
    k.stamp('p3f2')
    for g in fin_loads(1): e(g)
    k.stamp('p3fi')
    fin_reduce(1)
```

```python
import sys, math, struct
from asmlib import *

NAME = 'standalone__mha_block_cached__near_ridge'

class Cfg:
    stamps = False
    kv_flag = ' nt'
    x_flag = ''
    w_flag = ''
    wo_flag = ''
    force_safe = False
    ablate = ''
    l1inv = False
    codepf = 1
    exp_enc = ''
    loop_align = 3
    loop_nop = 0
    late_mode = 0
    kv0_at = (6, 1)
    k1_at = (7, 1)
    D = 2
    perm = False
    w4 = False
    wmall = False
    rot = True
    pad = 0
    dbgstamps = 0
    mapx = True
    dualflag = True
    out_flag = ''
    bswap = 0
    coop_pre = (0, 1, 2, 3, 4, 5, 6, 7, 8)
    coop_mid = ()
    coop_skip = ()
    coop_wait = None
    early_ost = True
    own_split = (0, 2)
    ps0_every = 2
    f2a_c = 10
    fin0_c = 14
    l3_every = 6
    kv_same = False
cfg = Cfg()

sW = 3
sX, sWq, sK, sV, sWS, sWo, sOut = 20, 24, 28, 32, 36, 40, 44
sW4K = 48; sKsoff = 49; sVsoff = 50; sDma = 51; sXor = 52; sIter = 53
sT0, sT1, sT2, sT3 = 54, 55, 56, 57
sC = 58
sXsoff = 60; sWsoff = 61; sW8K = 62; sDelta = 63
sB = 64; sH = 65; sJ = 66; sMode = 67
sKg = 68; sNb = 69; sRot = 70; sPass = 71
sStamp = 72

vLane = 1
vT = 2
vKA = 8
vVA = 12
vDK = 20
vDV = 24
vMG = 26
vT2 = 30
vS = 32
vC = 64
vP = 80
vL = 96
vXA = 112; vWA = 114
vWB = 120
vCo = 118
vOX = 32; vOW = 40
vWoD = 112
vWoR = 121
vAcc = 128
aQ = 0; aKf = 64; aVf = 96; aOnes = 252; aZero = 188
aPA = 96; aPB = 64

def O(dt, qt): return vAcc + (dt * 4 + qt) * 4
def S(qt, kt): return vS + qt * 8 + kt * 4
def CI(qt): return vC + 4 * qt
def P(qt): return vP + 4 * qt
def LA(qt): return vL + 4 * qt
def Qf(qt, ds): return aQ + (qt * 4 + ds) * 4
def Kf(m): return aKf + 4 * m
def Vf(dt): return aVf + 4 * dt

LDS_V = 65536
XS = [32768, 81920]
WS = [114688, 131072, 147456, 16384]
def NWS(): return 4 if cfg.mapx and cfg.w4 else 3
OBASE = 0
PBASE = 16 << 20
FBASE = 60 << 20
FTWIN = 1 << 16
STAMPBASE = 64 << 20

def kb(fn): return ','.join(str(fn(w) // 1024) for w in range(4))
def stamp_reg(i): return [72, 76, 80, 84, 92][i]
def mfma(d, a, b, c): return f'v_mfma_f32_16x16x32_bf16 {d}, {a}, {b}, {c}'

class Slots:
    def __init__(self, n):
        self.pre = [[] for _ in range(n)]
        self.post = [[] for _ in range(n)]
        self.mf = [None] * n
    def out(self):
        o = []
        for i in range(len(self.mf)):
            o += self.pre[i]
            if self.mf[i]: o.append(self.mf[i])
            o += self.post[i]
        return o
    def load(self):
        def cost(x):
            mn = x.split()[0]
            if mn.startswith('v_exp') or mn.startswith('v_rcp'): return 8
            return 4
        n = len(self.mf); res = []
        for i in range(n):
            g = self.post[i] + (self.pre[i + 1] if i + 1 < n else [])
            res.append(sum(cost(x) for x in g))
        return res

def dma_K(tile, slot, soff):
    L = []
    for p in range(4):
        a = lambda w, p=p: slot * 16384 + w * 4096 + p * 1024
        L.append(f'buffer_load_dwordx4 v{vDK+p}, s[{sK}:{sK+3}], {soff} offen offset:{p*1024}{cfg.kv_flag} lds ; @dma K{tile} {kb(a)}')
    return L
def dma_V(tile, slot, soff):
    L = []
    for p in range(4):
        a = lambda w, p=p: LDS_V + slot * 16384 + w * 4096 + p * 1024
        L.append(f'buffer_load_dwordx4 v{vDV+(p&1)}, s[{sV}:{sV+3}], {soff} offen offset:{p*1024}{cfg.kv_flag} lds ; @dma V{tile} {kb(a)}')
    return L

def dma_W(c):
    G = []
    for p in range(4):
        a = lambda w, p=p: WS[c % NWS()] + w * 4096 + p * 1024
        ins = f'buffer_load_dwordx4 v{vOW+p}, s[{sWq}:{sWq+3}], s{sWsoff} offen offset:{p*1024}{cfg.w_flag} lds ; @dma W{c} {kb(a)}'
        g = [ins]
        if p == 0: g = [f's_add_u32 m0, s{sW4K}, {WS[c%NWS()]}', f's_mov_b32 s{sWsoff}, {c*524288}', ins]
        G.append(g)
    return G
def dma_X(c):
    G = []
    for p in range(8):
        a = lambda w, p=p: XS[c % 2] + w * 8192 + p * 1024
        ins = f'buffer_load_dwordx4 v{vOX+p}, s[{sX}:{sX+3}], s{sXsoff} offen offset:{(p&3)*1024}{cfg.x_flag} lds ; @dma X{c} {kb(a)} priv'
        g = [ins]
        if p == 0: g = [f's_add_u32 m0, s{sW8K}, {XS[c%2]}', f's_mov_b32 s{sXsoff}, {c*128}', ins]
        if p == 4: g = [f's_add_u32 m0, s{sW8K}, {XS[c%2]+4096}', 's_nop 0', ins]
        G.append(g)
    return G

def kv_dma_addr():
    T = vT; L = vLane
    o = f'''v_lshrrev_b32 v{T+1}, 4, v{L}
v_and_b32 v{T+3}, 15, v{L}
v_mov_b32 v{T+4}, v{T+1}'''.split('\n')
    for p in range(4):
        o += [f'v_add_u32 v{T+2}, {4*p}, v{T+1}', f'v_xor_b32 v{T+2}, v{T+2}, v{T+3}', f'v_lshlrev_b32 v{T+2}, 4, v{T+2}', f'v_lshl_add_u32 v{vDK+p}, v{T+4}, 8, v{T+2}']
    for par in range(2):
        o += [f'v_add_u32 v{T+2}, {4*par}, v{T+1}', f'v_lshlrev_b32 v{T+2}, 1, v{T+2}', f'v_xor_b32 v{T+2}, v{T+2}, v{T+3}', f'v_lshlrev_b32 v{T+2}, 4, v{T+2}', f'v_lshl_add_u32 v{vDV+par}, v{T+4}, 8, v{T+2}']
    return o
def kv_read_addr():
    T = vT; L = vLane
    o = [f'v_lshrrev_b32 v{T}, 4, v{L}', f'v_bfe_u32 v{T+1}, v{L}, 2, 2', f'v_and_b32 v{T+2}, 3, v{L}', f'v_and_b32 v{T+3}, 15, v{L}',
         f'v_lshlrev_b32 v{T+4}, 8, v{T+3}']
    for ds in range(4):
        o += [f'v_add_u32 v{T+5}, {4*ds}, v{T}', f'v_xor_b32 v{T+5}, v{T+5}, v{T+3}', f'v_lshl_add_u32 v{vKA+ds}, v{T+5}, 4, v{T+4}']
    o += f'''v_lshl_add_u32 v{T+4}, v{T}, 2, v{T+1}
v_and_b32 v{vT2}, 7, v{T+4}
v_lshlrev_b32 v{vT2}, 1, v{vT2}
v_lshlrev_b32 v{T+4}, 8, v{T+4}
v_and_b32 v{T+5}, 1, v{T+2}
v_lshl_add_u32 v{T+4}, v{T+5}, 3, v{T+4}
v_add_u32 v{T+4}, {LDS_V}, v{T+4}
v_lshrrev_b32 v{vT2+1}, 1, v{T+2}'''.split('\n')
    for dt in range(8):
        o += [f'v_add_u32 v{T+5}, {2*dt}, v{vT2+1}', f'v_xor_b32 v{T+5}, v{T+5}, v{vT2}', f'v_lshl_add_u32 v{vVA+dt}, v{T+5}, 4, v{T+4}']
    return o

def p1_reads(c, n, buf):
    A = aPA + buf * 32; B = aPB + buf * 16
    def W(dt, u):
        ds, x = dt >> 1, dt & 1
        st = c % NWS()
        reg, so = (vWA + ds, st * 16384) if st < 3 else (vWB + ds, 0)
        return f'ds_read_b64_tr_b16 a[{A+4*dt+2*u}:{A+4*dt+2*u+1}], v{reg} offset:{so+(32*n+4*u)*256+8*x} ; @rd W{c}'
    def X(qt): return f'ds_read_b128 a[{B+4*qt}:{B+4*qt+3}], v{vXA+n} offset:{(c%2)*49152+qt*2048} ; @rd X{c}'
    R = [X(0), W(0, 0), W(0, 1), X(1), X(2), X(3)]
    for dt in range(1, 8): R += [W(dt, 0), W(dt, 1)]
    return R

def p1_kstep(k, c, n, groups, last=False):
    Sl = Slots(32)
    buf = n & 1
    for m in range(32):
        dt, qt = m >> 2, m & 3
        Sl.mf[m] = mfma(vr(O(dt, qt), 4), ar(aPA + buf * 32 + 4 * dt, 4), ar(aPB + buf * 16 + 4 * qt, 4), '0' if (c == 0 and n == 0) else vr(O(dt, qt), 4))
    if n == 0: R = p1_reads(c, 1, 1)
    else: R = [] if last else p1_reads(c + 1, 0, 0)
    if n == 1:
        vm = (k.vm_need({f'X{c+1}', f'W{c+1}'}) if not cfg.ablate else 20) if not last else 63
        Sl.pre[0] += [f's_waitcnt vmcnt({vm}) lgkmcnt(0)', 's_barrier']
    else: Sl.pre[0] += ['s_waitcnt lgkmcnt(0)']
    ab = cfg.ablate
    if 'p1rd' in ab: R = []
    if 'p1x' in ab: groups = [[x for x in g if '@dma X' not in x] for g in groups]
    if 'p1w' in ab: groups = [[x for x in g if '@dma W' not in x] for g in groups]
    if 'p1kv' in ab: groups = [[x for x in g if '@dma K' not in x and '@dma V' not in x] for g in groups]
    for i, r in enumerate(R): Sl.post[2 * (i // 2)].append(r)
    if groups:
        nn = len(groups)
        for i, g in enumerate(groups):
            Sl.post[min(31, 1 + 2 * ((i * 16) // nn))] += g
    return Sl.out()

class Kernel:
    def __init__(self):
        self.p = Prog(); self.tr = []; self.nstamp = 0; self.q = []; self.nt_marks = []
    def e(self, s, text=True, trace=True):
        if isinstance(s, str): s = [x.strip() for x in s.split('\n') if x.strip()]
        if text: self.p(s)
        if trace: self.tr.extend(s)
    def stamp(self, name):
        if cfg.stamps and name in cfg.stamps:
            i = cfg.stamps.index(name); b = stamp_reg(i)
            self.e(f's_memrealtime s[{b}:{b+1}]\ns_memtime s[{b+2}:{b+3}]')
            self.nstamp = max(self.nstamp, i + 1)
    def vm_need(self, tags, incl=False):
        q = []
        marks = list(self.nt_marks)
        for pos, line in enumerate(self.tr + ['s_nop 0']):
            while incl and marks and marks[0] <= pos:
                q.append(None); marks.pop(0)
            code, _, com = line.partition(';')
            mn = code.split()[0] if code.split() else ''
            if mn.startswith('buffer_') and mn not in ('buffer_inv', 'buffer_wbl2') or mn.startswith('global_'):
                t = None
                a = com.split()
                if '@dma' in a: t = a[a.index('@dma') + 1]
                elif '@tag' in a: t = a[a.index('@tag') + 1]
                q.append(t)
        for t in tags: assert t in q, f'tag {t} was never issued'
        last = max((i for i, t in enumerate(q) if t in tags), default=-1)
        return min(63, len(q) - 1 - last)

    def header(self):
        self.p(f'; @launch grid=(256,1,1) block=(256,1,1) lds=163840')
        if cfg.stamps: self.p('; stamps: ' + ','.join(cfg.stamps))
        self.p('.amdgcn_target "amdgcn-amd-amdhsa--gfx950"\n.text')
        self.p(f'.globl {NAME}_kernel\n.p2align 8\n.type {NAME}_kernel,@function\n{NAME}_kernel:')
    def footer(self):
        self.p('L_end:\ns_endpgm')
        self.p('.p2align 6\nL_codeend:')
        self.p('.section .rodata,"a"\n.p2align 6')
        self.p(f'.amdhsa_kernel {NAME}_kernel')
        self.p('''.amdhsa_next_free_vgpr 512
.amdhsa_next_free_sgpr 102
.amdhsa_accum_offset 256
.amdhsa_group_segment_fixed_size 0
.amdhsa_kernarg_size 64
.amdhsa_user_sgpr_count 2
.amdhsa_user_sgpr_kernarg_segment_ptr 1
.amdhsa_system_sgpr_workgroup_id_x 1
.end_amdhsa_kernel''')

    def code_prefetch(self, where):
        e = self.e
        if cfg.codepf == where:
            e(f'''s_getpc_b64 s[{sT2}:{sT2+1}]
L_pc:
v_and_b32 v{vT+5}, 15, v{vLane}
s_lshr_b32 s{sT0}, s2, 3
s_and_b32 s{sT2}, s{sT2}, 0xffffff00
s_lshl_b32 s{sT0}, s{sT0}, 4
s_sub_u32 s{sT2}, s{sT2}, CODEOFF
v_add_u32 v{vT+5}, s{sT0}, v{vT+5}
s_subb_u32 s{sT3}, s{sT3}, 0
v_lshlrev_b32 v{vT+5}, 7, v{vT+5}
v_min_u32 v{vT+5}, CODELEN, v{vT+5}
global_load_dword v92, v{vT+5}, s[{sT2}:{sT2+1}]''')

    def setup(self):
        e = self.e
        e('s_cmp_ge_u32 s2, 256\ns_cbranch_scc1 L_end')
        if cfg.perm: e('s_lshr_b32 s3, s2, 3\ns_and_b32 s3, s3, 7\ns_xor_b32 s2, s2, s3')
        self.stamp('entry')
        e(f's_load_dwordx16 s[4:19], s[0:1], 0')
        e(f'''v_and_b32 v{vLane}, 63, v0
v_lshrrev_b32 v{vT}, 6, v0
s_and_b32 s{sT0}, s2, 7
s_lshr_b32 s{sJ}, s2, 3
v_readfirstlane_b32 s{sW}, v{vT}
s_and_b32 s{sB}, s{sT0}, 1
s_xor_b32 s{sB}, s{sB}, {cfg.bswap}
s_lshl_b32 s{sB}, s{sB}, 2
s_and_b32 s{sT1}, s{sJ}, 3
s_add_u32 s{sB}, s{sB}, s{sT1}
s_lshr_b32 s{sH}, s{sT0}, 1
s_lshl_b32 s{sH}, s{sH}, 3
s_lshr_b32 s{sT1}, s{sJ}, 2
s_add_u32 s{sH}, s{sH}, s{sT1}
MAPX
s_lshr_b32 s{sKg}, s{sH}, 2
s_and_b32 s{sNb}, s{sH}, 3
s_lshl_b32 s{sW4K}, s{sW}, 12
ROT
'''.replace('ROT', f's_add_u32 s{sRot}, s{sH}, s{sB}\ns_and_b32 s{sRot}, s{sRot}, 15\ns_lshl_b32 s{sRot}, s{sRot}, 14\ns_add_u32 s{sRot}, s{sRot}, s{sW4K}' if cfg.rot else f's_mov_b32 s{sRot}, s{sW4K}').replace('MAPX', f's_mov_b32 s{sB}, s{sT0}\ns_mov_b32 s{sH}, s{sJ}' if cfg.mapx else 's_nop 0'))
        L = vLane; T = vT
        e(f'''v_lshrrev_b32 v{T}, 3, v{L}
s_lshl_b32 s{sT0}, s{sW}, 6
v_add_u32 v{T}, s{sT0}, v{T}
v_mul_u32_u24 v{T}, 1152, v{T}
v_lshrrev_b32 v{T+1}, 4, v{L}
v_and_b32 v{T+2}, 7, v{L}
v_xor_b32 v{T+3}, v{T+2}, v{T+1}
v_xor_b32 v{T+4}, 4, v{T+3}
v_lshl_add_u32 v{T+3}, v{T+3}, 4, v{T}
v_lshl_add_u32 v{T+4}, v{T+4}, 4, v{T}''')
        for p in range(8):
            e(f'v_add_u32 v{vOX+p}, {p*9216 - (p&3)*1024}, v{T+3+(p&1)}')
        e(f'''v_lshlrev_b32 v{T+2}, 2, v{T+1}
v_and_b32 v{T+3}, 15, v{L}
v_xor_b32 v{T+2}, v{T+2}, v{T+3}
v_lshlrev_b32 v{T+2}, 4, v{T+2}
s_lshl_b32 s{sT0}, s{sW}, 4
v_add_u32 v{T+4}, s{sT0}, v{T+1}
v_lshl_add_u32 v{T+5}, v{T+4}, 13, v{T+2}''')
        for p in range(4):
            e(f'v_add_u32 v{vOW+p}, {p*(32768-1024)}, v{T+5}')
        e(f'''v_lshrrev_b32 v{T+5}, 3, v{L}
s_lshr_b32 s{sT0}, s{sJ}, 2
s_lshl_b32 s{sT0}, s{sT0}, 5
s_lshl_b32 s{sT1}, s{sW}, 3
s_add_u32 s{sT0}, s{sT0}, s{sT1}
v_add_u32 v{T+5}, s{sT0}, v{T+5}
v_mul_u32_u24 v{T+5}, 1152, v{T+5}
v_and_b32 v{T+2}, 7, v{L}
v_lshl_add_u32 v{vCo}, v{T+2}, 4, v{T+5}
s_and_b32 s{sT0}, s{sJ}, 3
s_lshl_b32 s{sT0}, s{sT0}, 4
s_lshl_b32 s{sT1}, s{sW}, 2
s_add_u32 s{sT0}, s{sT0}, s{sT1}
v_add_u32 v{T+5}, s{sT0}, v{T+1}
v_lshlrev_b32 v{T+5}, 13, v{T+5}
v_and_b32 v{T+2}, 15, v{L}
v_lshl_add_u32 v{vCo+1}, v{T+2}, 4, v{T+5}''')
        if cfg.mapx:
            e(f'''v_lshrrev_b32 v{T+5}, 3, v{L}
s_lshl_b32 s{sT0}, s{sJ}, 3
v_add_u32 v{T+5}, s{sT0}, v{T+5}
v_mul_u32_u24 v{T+5}, 1152, v{T+5}
v_and_b32 v{T+2}, 7, v{L}
v_lshl_add_u32 v{vCo}, v{T+2}, 4, v{T+5}''')
        e('s_waitcnt lgkmcnt(0)')
        self.stamp('karg')
        if cfg.l1inv:
            e(f's_cmp_eq_u32 s{sW}, 0\ns_cbranch_scc0 L_noinv\nbuffer_inv sc1', trace=False)
            self.p('L_noinv:')
        e(f'''s_mul_i32 s{sT0}, s{sB}, 294912
s_add_u32 s{sX}, s4, s{sT0}
s_addc_u32 s{sX+1}, s5, 0
s_mov_b32 s{sX+2}, 294912
s_mov_b32 s{sX+3}, 0x20000
s_lshl_b32 s{sT0}, s{sH}, 8
s_add_u32 s{sWq}, s10, s{sT0}
s_addc_u32 s{sWq+1}, s11, 0
s_sub_u32 s{sWq+2}, 4718592, s{sT0}
s_mov_b32 s{sWq+3}, 0x20000
s_mov_b32 s{sWS}, s18
s_mov_b32 s{sWS+1}, s19
s_mov_b32 s{sWS+2}, 0x8000000
s_mov_b32 s{sWS+3}, 0x20000''')
        e(f's_lshl_b32 s{sW8K}, s{sW}, 13')
        def coop(c):
            if cfg.mapx:
                if c >= 3: return []
                d = 44 + 4 * c
                return [f's_lshl_b32 s{sT1}, s{sW}, 7', f'buffer_load_dwordx4 v[{d}:{d+3}], v{vCo}, s[{sX}:{sX+3}], s{sT1} offen offset:{c*512} ; @tag CO{c}']
            d = 44 + 8 * c if c < 6 else 96 + 8 * (c - 6) if c < 8 else 120
            return [f's_mov_b32 s{sT1}, {c*524288}', f'buffer_load_dwordx4 v[{d}:{d+3}], v{vCo+1}, s[{sWq}:{sWq+3}], s{sT1} offen ; @tag CO{c}',
                    f'buffer_load_dwordx4 v[{d+4}:{d+7}], v{vCo}, s[{sX}:{sX+3}], 0 offen offset:{c*128} ; @tag CO{c}']
        for c in cfg.coop_pre: e(coop(c))
        self.code_prefetch(1)
        self.coop = coop
        self.stamp('dma0')
        e(f'''s_lshl_b32 s{sT0}, s{sB}, 5
s_add_u32 s{sT0}, s{sT0}, s{sH}
s_lshl_b32 s{sT0}, s{sT0}, 18''')
        if cfg.kv_same: e(f's_mov_b32 s{sT0}, 0')
        e(f'''s_add_u32 s{sK}, s6, s{sT0}
s_addc_u32 s{sK+1}, s7, 0
s_mov_b32 s{sK+2}, 262144
s_mov_b32 s{sK+3}, 0x20000
s_add_u32 s{sV}, s8, s{sT0}
s_addc_u32 s{sV+1}, s9, 0
s_mov_b32 s{sV+2}, 262144
s_mov_b32 s{sV+3}, 0x20000''')
        e(f'''s_mul_i32 s{sT0}, s{sKg}, {512*1152}
s_mul_i32 s{sT1}, s{sNb}, 288
s_add_u32 s{sT0}, s{sT0}, s{sT1}
s_add_u32 s{sWo}, s12, s{sT0}
s_addc_u32 s{sWo+1}, s13, 0
s_sub_u32 s{sWo+2}, 4718592, s{sT0}
s_mov_b32 s{sWo+3}, 0x20000
s_mov_b32 s{sOut}, s14
s_mov_b32 s{sOut+1}, s15
s_mov_b32 s{sOut+2}, 2359296
s_mov_b32 s{sOut+3}, 0x20000''')
        e(kv_dma_addr())
        self.stamp('cw0')
        if cfg.coop_wait is not None: e(f's_waitcnt vmcnt({self.vm_need({f"CO{cfg.coop_wait}"})})')
        self.stamp('cw1')
        for g in dma_W(0) + dma_X(0): e(g)
        for c in cfg.coop_mid: e(self.coop(c))
        self.code_prefetch(2)
        self.stamp('d0')
        e(f'''v_lshrrev_b32 v{T}, 4, v{L}
v_bfe_u32 v{T+1}, v{L}, 2, 2
v_and_b32 v{T+2}, 3, v{L}
v_and_b32 v{T+3}, 15, v{L}''')
        e(f'''v_lshl_add_u32 v{T+4}, v{T}, 3, v{T+1}
v_lshlrev_b32 v{T+4}, 8, v{T+4}
v_lshl_add_u32 v{T+4}, v{T+2}, 4, v{T+4}
v_add_u32 v{T+4}, {WS[0]}, v{T+4}''')
        for ds in range(4):
            e(f'v_xor_b32 v{T+5}, {ds}, v{T+1}\nv_lshl_add_u32 v{vWA+ds}, v{T+5}, 6, v{T+4}')
        if NWS() == 4:
            for ds in range(4): e(f'v_subrev_u32 v{vWB+ds}, {WS[0]-WS[3]}, v{vWA+ds}')
        e(f'''s_lshl_b32 s{sT0}, s{sW}, 13
s_add_u32 s{sT0}, s{sT0}, {XS[0]}
v_lshlrev_b32 v{T+4}, 7, v{T+3}
v_add_u32 v{T+4}, s{sT0}, v{T+4}
v_lshrrev_b32 v{vT2}, 1, v{T+3}''')
        for n in range(2):
            e(f'''v_add_u32 v{T+5}, {4*n}, v{T}
v_xor_b32 v{T+5}, v{T+5}, v{vT2}
v_lshl_add_u32 v{vXA+n}, v{T+5}, 4, v{T+4}''')
        e(kv_read_addr())
        cbits = '0x%08x' % int.from_bytes(struct.pack('<f', math.log2(math.e) / math.sqrt(128.0)), 'little')
        e(f's_mov_b32 s{sC}, {cbits}\ns_mov_b32 s{sC+1}, {cbits}')
        e(f'v_mov_b32 v{T+5}, 0x3f803f80')
        for i in range(4): e(f'v_accvgpr_write_b32 a{aOnes+i}, v{T+5}')
        for i in range(4): e(f'v_accvgpr_write_b32 a{aZero+i}, 0')
        for i in range(4): e(f'v_mov_b32 v{vMG+i}, 0xff800000')
        e(f's_mov_b32 s{sPass}, 0\ns_mov_b32 s{sMode}, 0')
        for g in dma_W(1) + dma_X(1): e(g)
        self.code_prefetch(3)
        if cfg.wmall:
            e(f'''s_mul_i32 s{sT0}, s2, 18432
s_mul_i32 s{sT1}, s{sW}, 4608
s_add_u32 s{sT0}, s{sT0}, s{sT1}
s_lshl_b32 s{sT1}, s{sH}, 8
s_sub_u32 s{sT0}, s{sT0}, s{sT1}
v_lshlrev_b32 v{T+5}, 4, v{L}''')
            for i in range(5):
                e(f'buffer_load_dwordx4 v[{56+4*i}:{59+4*i}], v{T+5}, s[{sWq}:{sWq+3}], s{sT0} offen offset:{min(i*1024, 3584)} ; @tag WM')
        self.stamp('d1')
        from g2p3 import wo_setup
        e(wo_setup())
        e(f'''s_lshl_b32 s{sT0}, s{sB}, 5
s_add_u32 s{sT0}, s{sT0}, s{sH}
s_lshl_b32 s{sT0}, s{sT0}, 7
s_add_u32 s{sT0}, s{sT0}, {FBASE}
v_mov_b32 v{T+2}, 0
v_and_b32 v{T+3}, 15, v{L}
v_lshlrev_b32 v{T+5}, 2, v{T+3}
v_bfe_u32 v{T+1}, v{L}, 4, 1
v_mul_u32_u24 v{T+1}, {FTWIN}, v{T+1}
v_add_u32 v{T+5}, v{T+5}, v{T+1}
v_cmp_gt_u32 vcc, 32, v{L}
v_mov_b32 v{T+4}, 0x7fffffff
s_cmp_eq_u32 s{sW}, 0
s_cselect_b64 vcc, vcc, 0
s_nop 1
v_cndmask_b32 v{T+5}, v{T+4}, v{T+5}, vcc
buffer_store_dword v{T+2}, v{T+5}, s[{sWS}:{sWS+3}], s{sT0} offen sc1 ; @tag CLR''')

    def phase1(self):
        e = self.e
        self.stamp('p1wait')
        n0 = self.vm_need({'X0', 'W0'})
        e(f's_waitcnt vmcnt({n0})\ns_barrier')
        self.stamp('p1go')
        e(p1_reads(0, 0, 0))
        def one(G, m0, extra=()):
            G = [[x] for x in G]
            G[0] = [m0] + list(extra) + (['s_nop 0'] if not extra else []) + G[0]
            return G
        K0 = one(dma_K(0, 0, f's{sKsoff}'), f's_mov_b32 m0, s{sW4K}', [f's_mov_b32 s{sKsoff}, s{sRot}'])
        K1 = one(dma_K(1, 1, f's{sKsoff}'), f's_add_u32 m0, s{sW4K}, 16384', [f's_add_u32 s{sKsoff}, s{sRot}, 16384', f's_and_b32 s{sKsoff}, s{sKsoff}, 0x3ffff'])
        K2 = one(dma_K(2, 2, f's{sKsoff}'), f's_add_u32 m0, s{sW4K}, {2*16384}', [f's_add_u32 s{sKsoff}, s{sRot}, {2*16384}', f's_and_b32 s{sKsoff}, s{sKsoff}, 0x3ffff'])
        V0 = one(dma_V(0, 1, f's{sVsoff}'), f's_add_u32 m0, s{sW4K}, {LDS_V+16384}', [f's_add_u32 s{sVsoff}, s{sRot}, 8192', f's_and_b32 s{sVsoff}, s{sVsoff}, 0x3ffff'])
        V1 = one(dma_V(1, 2, f's{sVsoff}'), f's_add_u32 m0, s{sW4K}, {LDS_V+2*16384}', [f's_add_u32 s{sVsoff}, s{sRot}, {8192+16384}', f's_and_b32 s{sVsoff}, s{sVsoff}, 0x3ffff'])
        Vm = [[f's_lshl_b32 s{sT2}, s{sW}, 11', f's_add_u32 m0, s{sT2}, {LDS_V + 8192}', f's_sub_u32 s{sT2}, s{sRot}, s{sT2}']]
        for p in range(2):
            a = lambda w, p=p: LDS_V + 8192 + w * 2048 + p * 1024
            ins = f'buffer_load_dwordx4 v{vDV+p}, s[{sV}:{sV+3}], s{sT2} offen offset:{p*1024}{cfg.kv_flag} lds ; @dma Vm1 {kb(a)}'
            if p == 0: Vm[0].append(ins)
            else: Vm.append([ins])
        plan = {}
        rest = [c for c in range(9) if c not in cfg.coop_pre and c not in cfg.coop_mid and c not in cfg.coop_skip]
        plan[(0, 0)] = [self.coop(c) for c in rest] + dma_W(2)
        for c in range(9):
            g1 = []
            if c + 2 <= 8: g1 += dma_X(c + 2)
            plan[(c, 1)] = g1
            if NWS() == 3 and c + 3 <= 8: plan[(c + 1, 0)] = dma_W(c + 3)
        if NWS() == 4:
            plan[(0, 0)] = plan[(0, 0)] + dma_W(3)
            plan[(2, 0)] = dma_W(4) + dma_W(5)
            plan[(4, 0)] = dma_W(6) + dma_W(7)
            plan[(5, 0)] = dma_W(8)
        K3 = one(dma_K(3, 3, f's{sKsoff}'), f's_add_u32 m0, s{sW4K}, {3*16384}', [f's_add_u32 s{sKsoff}, s{sRot}, {3*16384}', f's_and_b32 s{sKsoff}, s{sKsoff}, 0x3ffff'])
        V2 = one(dma_V(2, 3, f's{sVsoff}'), f's_add_u32 m0, s{sW4K}, {LDS_V+3*16384}', [f's_add_u32 s{sVsoff}, s{sRot}, {8192+2*16384}', f's_and_b32 s{sVsoff}, s{sVsoff}, 0x3ffff'])
        self.prefill = K0 + Vm + K1 + V0 + V1 + K2 + (V2 + K3 if cfg.D == 3 else [])
        plan[cfg.kv0_at] = plan.get(cfg.kv0_at, []) + K0 + Vm
        plan[cfg.k1_at] = plan.get(cfg.k1_at, []) + K1
        plan[(8, 0)] = V0
        if cfg.late_mode == 0:
            plan[(8, 1)] = V1
            self.late_kv = K2 + (V2 + K3 if cfg.D == 3 else []); self.last_kv = []
        elif cfg.late_mode == 1:
            self.late_kv = []; self.last_kv = V1 + K2
        else:
            plan[(8, 1)] = V1
            self.late_kv = []; self.last_kv = K2
        for c in range(9):
            for n in range(2):
                e(p1_kstep(self, c, n, plan.get((c, n), []), last=(c == 8)))
            if c == 3:
                e(f'''s_lshl_b32 s{sT0}, s{sB}, 5
v_mov_b32 v{vT+4}, s{sT0}
v_mov_b32 v{vT+5}, 1
s_cmp_eq_u32 s{sW}, 0
s_cbranch_scc0 L_noreg
s_mov_b64 exec, 1
global_atomic_add v{vT+4}, v{vT+5}, s[16:17] sc1
s_mov_b64 exec, -1''', trace=False)
                self.p('L_noreg:')
            if c == 5: self.stamp('p1c6')
            self.stamp(f'c{c}')
        self.stamp('p1end')
        self.late_kv_pending = self.late_kv; self.late_kv = []
        assert not self.late_kv
    QK = [0, 17, 34, 42]
    PV = [50, 59, 8, 25]
    LS = [58, 67, 16, 33]
    EX = [11, 29, 45, 63]
    VG = [26, 27, 27, 28, 28, 30, 30, 32, 34, 34, 36, 38, 38, 40, 42, 42]
    KG = [44, 46, 46, 50, 50, 52, 54, 54]
    def step(self, k, par, kind='full', extra=None):
        NS = 68
        Sl = Slots(NS)
        it = k // 2; ktile = it + 1; vtile = it
        last = kind == 'last'
        for qt in range(4):
            if not last:
                for m in range(8):
                    ds, kt = m >> 1, m & 1
                    Sl.mf[self.QK[qt] + m] = mfma(vr(S(qt, kt), 4), ar(Kf(m), 4), ar(Qf(qt, ds), 4), vr(CI(qt) if ds == 0 else S(qt, kt), 4))
            if not last or qt >= 2:
                for dt in range(8):
                    Sl.mf[self.PV[qt] + dt] = mfma(vr(O(dt, qt), 4), ar(Vf(dt), 4), vr(P(qt), 4), vr(O(dt, qt), 4))
                Sl.mf[self.LS[qt]] = mfma(vr(LA(qt), 4), ar(aOnes, 4), vr(P(qt), 4), vr(LA(qt), 4))
        mem = [[] for _ in range(NS)]; alu = [[] for _ in range(NS)]
        def put(g, ins):
            g %= NS
            mn = ins.split()[0]
            (mem if mn.startswith('ds_') or mn.startswith('buffer_') or mn.startswith('global_') else alu)[g].append(ins)
        for qt in range(4):
            for i in range(8):
                g = self.EX[qt] + 2 * i
                if last and g < NS: continue
                r = S(qt, i >> 2) + (i & 3)
                put(g, f'v_exp_f32{cfg.exp_enc} v{r}, v{r}')
            for n in range(4):
                g = self.EX[qt] + 4 * n + 3
                if last and g < NS: continue
                r = S(qt, n >> 1) + 2 * (n & 1)
                if last and Sl.mf[g % NS] is None: put(g, 's_nop 0')
                put(g, f'v_cvt_pk_bf16_f32 v{P(qt)+n}, v{r}, v{r+1}')
        if last: Sl.pre[8].append('s_nop 1')
        if not last:
            for n in range(16):
                dt, u = n >> 1, n & 1
                put(self.VG[n], f'ds_read_b64_tr_b16 a[{Vf(dt)+2*u}:{Vf(dt)+2*u+1}], v{vVA+dt} offset:{par*8192+u*4096}')
            if kind == 'full':
                for m in range(8):
                    ds, kt = m >> 1, m & 1
                    put(self.KG[m], f'ds_read_b128 a[{Kf(m)}:{Kf(m)+3}], v{vKA+ds} offset:{par*8192+kt*4096}')
            nk = sum(1 for g in self.KG if g <= 48) if kind == 'full' else 0
            Sl.pre[49].append(f's_waitcnt lgkmcnt({nk})')
            if kind == 'full': Sl.pre[67].append('s_waitcnt lgkmcnt(0)')
            if par == 0:
                Sl.pre[1] += ['s_waitcnt vmcnt(VMW)', 's_barrier']
                for dt in range(8): put([2, 4, 4, 6, 8, 8, 10, 14][dt], f'v_xor_b32{cfg.exp_enc} v{vVA+dt}, s{sXor}, v{vVA+dt}')
                for ds in range(4): put([18, 20, 20, 22][ds], f'v_xor_b32{cfg.exp_enc} v{vKA+ds}, s{sXor}, v{vKA+ds}')
        if extra:
            for g, L in extra.items():
                mem[g % NS] += L
        ab = cfg.ablate
        if ab and kind == 'full':
            if 'exp' in ab: alu = [[x for x in a if not x.startswith('v_exp')] for a in alu]
            if 'cvt' in ab: alu = [[x for x in a if not x.startswith('v_cvt')] for a in alu]
            if 'vrd' in ab: mem = [[x for x in a if not x.startswith('ds_read_b64')] for a in mem]
            if 'krd' in ab: mem = [[x for x in a if not x.startswith('ds_read_b128')] for a in mem]
            if 'dma' in ab: mem = [[x for x in a if not x.startswith('buffer_load')] for a in mem]
            if 'lsum' in ab:
                for qt in range(4): Sl.mf[self.LS[qt]] = None
        for g in range(NS): Sl.post[g] = mem[g] + alu[g]
        if cfg.pad and not last:
            for g in range(3, NS, max(1, NS // cfg.pad)): Sl.post[g].append('s_nop 3')
        self.last_load = Sl.load()
        return Sl.out()

    def kv_extra(self, it, par, doK=True, doV=True):
        slot = (it + 1 + cfg.D) & 3
        X = {}
        if par == 0:
            X.setdefault(61, []).append(f's_and_b32 s{sVsoff}, s{sVsoff}, 0x3ffff')
            if doK:
                D = dma_K(it + 1 + cfg.D, slot, f's{sKsoff}')
                X[12] = [f's_mov_b32 m0, s{sDma}']
                for g, d in zip((16, 24, 58, 64), D): X.setdefault(g, []).append(d)
                X.setdefault(64, []).append(f's_add_u32 s{sKsoff}, s{sKsoff}, 16384')
        else:
            X.setdefault(12, []).append(f's_and_b32 s{sKsoff}, s{sKsoff}, 0x3ffff')
            if doV:
                D = dma_V(it + cfg.D, slot, f's{sVsoff}')
                X[0] = [f's_add_u32 s{sT0}, s{sDma}, {LDS_V}']
                X[4] = [f's_mov_b32 m0, s{sT0}']
                for g, d in zip((8, 20, 58, 64), D): X.setdefault(g, []).append(d)
                X.setdefault(64, []).append(f's_add_u32 s{sVsoff}, s{sVsoff}, 16384')
            if cfg.D == 2:
                X.setdefault(61, []).append(f's_xor_b32 s{sXor}, s{sXor}, 0x8000')
                X.setdefault(62, []).append(f's_xor_b32 s{sDma}, s{sDma}, s{sXor}')
            else:
                X.setdefault(61, []).append(f's_xor_b32 s{sDma}, s{sDma}, s{sXor}')
                X.setdefault(62, []).append(f's_xor_b32 s{sXor}, s{sXor}, 0x8000')
            X.setdefault(62, []).append(f's_add_u32 s{sIter}, s{sIter}, 1')
        return X

    def phase2(self):
        e = self.e
        def epi(qt):
            o = []
            for ds in range(4):
                for x in range(2):
                    b_ = O(2 * ds + x, qt)
                    o += [f'v_pk_mul_f32 v[{b_}:{b_+1}], v[{b_}:{b_+1}], s[{sC}:{sC+1}]', f'v_pk_mul_f32 v[{b_+2}:{b_+3}], v[{b_+2}:{b_+3}], s[{sC}:{sC+1}]']
                t = vC + (ds & 1) * 4
                for x in range(2):
                    b_ = O(2 * ds + x, qt)
                    o += [f'v_cvt_pk_bf16_f32 v{t+2*x}, v{b_}, v{b_+1}', f'v_cvt_pk_bf16_f32 v{t+2*x+1}, v{b_+2}, v{b_+3}']
                o += [f'v_accvgpr_write_b32 a{Qf(qt, ds)+i}, v{t+i}' for i in range(4)]
            return o
        def qk0(qt):
            return [mfma(vr(S(qt, m & 1), 4), ar(Kf(m), 4), ar(Qf(qt, m >> 1), 4), '0' if m < 2 else vr(S(qt, m & 1), 4)) for m in range(8)]
        def weave(valu, mf, lead=2):
            o = []; n = len(valu); step_ = max(1, (n - lead) // max(1, len(mf))); j = 0
            for i, x in enumerate(valu):
                o.append(x)
                if i >= lead and (i - lead) % step_ == 0 and j < len(mf): o += mf[j] if isinstance(mf[j], list) else [mf[j]]; j += 1
            for x in mf[j:]: o += x if isinstance(x, list) else [x]
            return o
        kreads = lambda off: [f'ds_read_b128 a[{Kf(m)}:{Kf(m)+3}], v{vKA+(m>>1)} offset:{off+(m&1)*4096} ; @rd K0' for m in range(8)]
        vreads = [f'ds_read_b64_tr_b16 a[{Vf(n>>1)+2*(n&1)}:{Vf(n>>1)+2*(n&1)+1}], v{vVA+(n>>1)} offset:{8192+(n&1)*4096}' for n in range(16)]
        zero = lambda qt: [mfma(vr(O(dt, qt), 4), ar(aZero, 4), ar(aZero, 4), '0') for dt in range(8)] + [mfma(vr(LA(qt), 4), ar(aZero, 4), ar(aZero, 4), '0')]
        wait0 = f's_waitcnt vmcnt({self.vm_need({"K0", "Vm1"})})'
        late = self.late_kv_pending
        e('s_nop 3')
        e(wait0); e('s_barrier')
        self.stamp('q0')
        e(kreads(0)); e(vreads)
        e(epi(0))
        self.stamp('q1')
        e('s_waitcnt lgkmcnt(15)\ns_waitcnt lgkmcnt(0)')
        e(weave(epi(1), qk0(0)))
        h_ = len(late) // 2
        e(weave(epi(2), qk0(1) + [g for g in late[:h_]]))
        e(weave(epi(3), qk0(2) + [g for g in late[h_:]]))
        self.stamp('q2')
        e('s_branch L_p2q3', trace=False)
        self.p('L_p2start:')
        R = [wait0, 's_barrier'] + kreads(0) + vreads + ['s_waitcnt lgkmcnt(0)'] + qk0(0) + qk0(1) + qk0(2)
        self.e([x.split(';')[0].strip() for x in R], trace=False)
        self.p('L_p2q3:')
        q3 = qk0(3); k1 = kreads(8192)
        z = zero(2) + zero(3)
        e('s_nop 1')
        for m in range(8):
            e(q3[m]); e(k1[m]); e(z[2*m:2*m+2])
        e(z[16:])
        self.stamp('q3')
        for qt in range(4):
            a, b = S(qt, 0), S(qt, 1); m = vT + qt
            e(f'v_max3_f32 v{m}, v{a}, v{a+1}, v{vMG+qt}\nv_max3_f32 v{m}, v{m}, v{a+2}, v{a+3}\nv_max3_f32 v{m}, v{m}, v{b}, v{b+1}\nv_max3_f32 v{m}, v{m}, v{b+2}, v{b+3}')
        for sw in ('v_permlane32_swap_b32', 'v_permlane16_swap_b32'):
            for qt in range(4): e(f'v_mov_b32 v{vC+qt}, v{vT+qt}')
            e('s_nop 0')
            for qt in range(4): e(f'{sw} v{vT+qt}, v{vC+qt}')
            for qt in range(4): e(f'v_max_f32 v{vT+qt}, v{vT+qt}, v{vC+qt}')
        for qt in range(4):
            for r in range(4): e(f'v_sub_f32 v{CI(qt)+r}, 0, v{vT+qt}')
        for qt in range(4):
            for i in range(8): e(f'v_add_f32 v{S(qt,0)+i}, v{S(qt,0)+i}, v{CI(qt)}')
        for qt in range(3):
            for i in range(8): e(f'v_exp_f32 v{S(qt,0)+i}, v{S(qt,0)+i}')
        for i in range(3): e(f'v_exp_f32 v{S(3,0)+i}, v{S(3,0)+i}')
        for qt in range(3):
            for n in range(4):
                r = S(qt, n >> 1) + 2 * (n & 1)
                e(f'v_cvt_pk_bf16_f32 v{P(qt)+n}, v{r}, v{r+1}')
        e(f'v_cvt_pk_bf16_f32 v{P(3)}, v{S(3,0)}, v{S(3,0)+1}')
        self.stamp('q4')
        e('s_waitcnt lgkmcnt(0)')
        for qt in range(2):
            for dt in range(8):
                e(mfma(vr(O(dt, qt), 4), ar(Vf(dt), 4), vr(P(qt), 4), '0'))
            e(mfma(vr(LA(qt), 4), ar(aOnes, 4), vr(P(qt), 4), '0'))
        for g in self.last_kv: e(g)
        e(f'''s_mov_b32 s{sXor}, 0x4000
s_add_u32 s{sDma}, s{sW4K}, {((1+cfg.D)&3)*16384}
s_add_u32 s{sKsoff}, s{sRot}, {(1+cfg.D)*16384}
s_and_b32 s{sKsoff}, s{sKsoff}, 0x3ffff
s_add_u32 s{sVsoff}, s{sRot}, {8192+cfg.D*16384}
s_and_b32 s{sVsoff}, s{sVsoff}, 0x3ffff
s_mov_b32 s{sIter}, 0''')
        self.stamp('p2loop')
        self.p(f'.p2align {cfg.loop_align}')
        for _ in range(cfg.loop_nop): self.p('s_nop 0')
        self.p('L_p2:')
        texts = []
        NL = 12
        for it in range(NL):
            L = self.step(2 * it, 0, 'full', self.kv_extra(it, 0)); l0 = self.last_load
            L += self.step(2 * it + 1, 1, 'full', self.kv_extra(it, 1)); l1 = self.last_load
            L = [x.replace('VMW', str(8 * (cfg.D - 1))) for x in L]
            L += [f's_cmp_lt_u32 s{sIter}, {NL}', 's_cbranch_scc1 L_p2']
            texts.append([x.split(';')[0].strip() for x in L])
            if it == 0:
                self.p(L); self.loop_body = L
                print('gap load step0:', l0); print('gap load step1:', l1)
            self.tr.extend(L)
        assert all(t == texts[0] for t in texts)
        self.stamp('p2peel')
        from g2p3 import peeled_tail
        peeled_tail(self)

    def fallback(self):
        e = lambda x: self.e(x, trace=False)
        self.p('L_fallback:')
        e('s_waitcnt vmcnt(0) lgkmcnt(0)\ns_barrier')
        e(kv_dma_addr()); e(kv_read_addr())
        for i in range(4): e(f'v_mov_b32 v{vMG+i}, 0xff800000')
        e(f's_mov_b32 s{sKsoff}, s{sW4K}')
        self.p('L_fb_loop:')
        e(f's_mov_b32 m0, s{sW4K}\ns_nop 0')
        e([x.split(';')[0] for x in dma_K(0, 0, f's{sKsoff}')])
        e('s_waitcnt vmcnt(0)\ns_barrier')
        for half in range(2):
            for m in range(8):
                ds, kt = m >> 1, m & 1
                e(f'ds_read_b128 a[{Kf(m)}:{Kf(m)+3}], v{vKA+ds} offset:{half*8192+kt*4096}')
            e('s_waitcnt lgkmcnt(0)')
            for qt in range(4):
                for m in range(8):
                    ds, kt = m >> 1, m & 1
                    e(mfma(vr(S(qt, kt), 4), ar(Kf(m), 4), ar(Qf(qt, ds), 4), '0' if ds == 0 else vr(S(qt, kt), 4)))
            e('s_nop 7')
            for qt in range(4):
                a, b = S(qt, 0), S(qt, 1); m = vMG + qt
                e(f'v_max3_f32 v{m}, v{m}, v{a}, v{a+1}\nv_max3_f32 v{m}, v{m}, v{a+2}, v{a+3}\nv_max3_f32 v{m}, v{m}, v{b}, v{b+1}\nv_max3_f32 v{m}, v{m}, v{b+2}, v{b+3}')
        e(f's_barrier\ns_add_u32 s{sKsoff}, s{sKsoff}, 16384\ns_cmp_lt_u32 s{sKsoff}, 262144\ns_cbranch_scc1 L_fb_loop')
        for g in self.prefill: e([x.split(';')[0] for x in g])
        e(f's_mov_b32 s{sMode}, 1\ns_branch L_p2start')

    def finish_stamps(self):
        if not cfg.stamps: return
        e = self.e
        if cfg.dbgstamps:
            e('s_waitcnt lgkmcnt(0)', trace=False)
            for n_, (wg, base) in enumerate(zip(cfg.dbgstamps, (1, 5, 9, 12))):
                e(f's_cmp_eq_u32 s2, {wg}\ns_cbranch_scc0 L_nodbg{n_}\ns_cmp_eq_u32 s{sW}, 0\ns_cbranch_scc0 L_nodbg{n_}', trace=False)
                vals = [(stamp_reg(1), stamp_reg(0)), (stamp_reg(2), stamp_reg(0)), (stamp_reg(2) + 2, stamp_reg(1) + 2)]
                for i, (x, y) in enumerate(vals):
                    e(f's_sub_u32 s{sT0}, s{x}, s{y}\nv_mov_b32 v{vT+2}, s{sT0}\nv_mov_b32 v{vT}, {4*(base+i)}\nglobal_store_dword v{vT}, v{vT+2}, s[16:17]', trace=False)
                self.p(f'L_nodbg{n_}:')
            return
        e(f'''s_waitcnt lgkmcnt(0)
s_lshl_b32 s{sT0}, s2, 2
s_add_u32 s{sT0}, s{sT0}, s{sW}
s_lshl_b32 s{sT0}, s{sT0}, 8
s_add_u32 s{sT0}, s{sT0}, {STAMPBASE}
s_add_u32 s18, s18, s{sT0}
s_addc_u32 s19, s19, 0
v_mov_b32 v{vT}, 0''')
        for i in range(self.nstamp):
            for j in range(4): e(f'v_mov_b32 v{vT+2+j}, s{stamp_reg(i)+j}')
            e(f'global_store_dwordx4 v{vT}, v[{vT+2}:{vT+5}], s[18:19] offset:{16*i}\ns_nop 1')

def build():
    k = Kernel()
    k.header(); k.setup(); k.phase1(); k.phase2()
    from g2p3 import phase3
    phase3(k)
    k.stamp('end')
    k.finish_stamps()
    k.e('s_endpgm', trace=False)
    k.fallback()
    k.footer()
    return k

def main():
    import argparse
    ap = argparse.ArgumentParser()
    ap.add_argument('-o', default=f'cdna_kernels/{NAME}.s')
    ap.add_argument('--stamps', default='')
    ap.add_argument('--set', action='append', default=[])
    a = ap.parse_args()
    cfg.stamps = a.stamps.split(',') if a.stamps else False
    for kv in a.set:
        kk, vv = kv.split('=', 1)
        try: vv = eval(vv)
        except Exception: pass
        setattr(cfg, kk, vv)
    k = build()
    errs = simulate(k.tr, 'trace')
    errs += check_hazards(k.tr, 'haz')
    txt = k.p.text()
    txt = txt.replace('CODEOFF', f'((L_pc - {NAME}_kernel) & 0xffffff00)').replace('CODELEN', f'(L_codeend - {NAME}_kernel - 128)')
    open(a.o, 'w').write(txt)
    print('written', a.o, 'errors:', len(errs), 'trace len', len(k.tr))
```

```python
from asmlib import *
import g2 as G
from g2 import cfg, mfma, kb, Slots

REG = [13, 14, 0, 1, 2, 7, 3, 4, 8, 9, 5, 6, 10, 11, 12, 15]
WSLOT = {'t12': (0, 3), 't13': (3, 3), 't14': (6, 4), 't15': (10, 3), 'tP': (13, 3)}
WNAME = list(WSLOT)
def rbase(j):
    if j < 7: return j * 9216
    if j < 15: return 81920 + (j - 7) * 9216
    return 65536
sWoB = 4
sWoS = 9
sPh = 96
sOst = 99; sPst = 100; sFl = 101; sCnt = 59
vWoD = G.vWoD
aWoD = 240
vR = 8
vAd = 12
vOwn = 32
vD = 112
aPart = 0
aA = 192
def D(nt, qt): return vD + (nt * 4 + qt) * 4
def Own(qt, ks): return vOwn + (qt * 4 + ks) * 4
def Part(hp, qt, ks): return aPart + hp * 64 + (qt * 4 + ks) * 4

def wo_setup():
    T = G.vT; L = G.vLane
    out = []
    for p in range(9):
        out += [f'v_add_u32 v{T}, {64*p}, v{L}', f'v_mul_u32_u24 v{T+1}, 3641, v{T}', f'v_lshrrev_b32 v{T+1}, 16, v{T+1}',
                f'v_mul_u32_u24 v{T+2}, 18, v{T+1}', f'v_sub_u32 v{T+2}, v{T}, v{T+2}', f'v_mul_u32_u24 v{T+1}, 1152, v{T+1}',
                f'v_lshl_add_u32 v{T+1}, v{T+2}, 4, v{T+1}']
        if p % 4: out.append(f'v_subrev_u32 v{T+1}, {(p%4)*1024}, v{T+1}')
        out.append(f'v_accvgpr_write_b32 a{aWoD+p}, v{T+1}')
    for i, name in enumerate(WNAME):
        c0, nw = WSLOT[name]
        t = [rbase(REG[c0 + min(w, nw - 1)]) for w in range(4)]
        out += [f's_mov_b32 s{sWoB+i}, {t[0]}']
        for w in range(1, 4): out += [[f's_cmp_eq_u32 s{G.sW}, {w}', f's_cselect_b32 s{sWoB+i}, {t[w]}, s{sWoB+i}']]
        out += [f's_add_u32 s{G.sT1}, s{G.sW}, {c0}', f's_lshr_b32 s{G.sT0}, s{G.sT1}, 2', f's_add_u32 s{G.sT0}, s{G.sT0}, s{G.sNb}', f's_and_b32 s{G.sT0}, s{G.sT0}, 3',
                f's_lshl_b32 s{G.sT0}, s{G.sT0}, 2', f's_and_b32 s{G.sT1}, s{G.sT1}, 3', f's_add_u32 s{G.sT0}, s{G.sT0}, s{G.sT1}', f's_mul_i32 s{sWoS+i}, s{G.sT0}, {32*1152}']
    return out

_skip = [0]
def wo_dma(name, vbase=None):
    i = WNAME.index(name); c0, nw = WSLOT[name]
    L = []
    for p in range(9):
        g = []
        if p % 4 == 0: g += [f's_add_u32 m0, s{sWoB+i}, {p*1024}']
        ins = f'buffer_load_dwordx4 v{(vbase or vWoD)+p}, s[{G.sWo}:{G.sWo+3}], s{sWoS+i} offen offset:{(p%4)*1024}{cfg.wo_flag} lds'
        if nw == 4:
            a = lambda w, p=p: rbase(REG[c0 + w]) + p * 1024
            if p % 4 == 0: g.append('s_nop 0')
            g.append(f'{ins} ; @dma WO{name} {kb(a)}')
        else:
            _skip[0] += 1
            g += [f's_cbranch_vccnz L_wsk{_skip[0]}', f'{ins} ;@notrace', f'L_wsk{_skip[0]}:']
        L.append(g)
    return L

def spread(groups, gaps):
    X = {}
    for g, pos in zip(groups, gaps): X.setdefault(pos, []).extend(g)
    return X
def merge(a, b):
    for g, L in b.items(): a.setdefault(g, []).extend(L)
    return a

def peeled_tail(k):
    e = k.e
    cnt = [0]
    def emit(step_lines, tags):
        n = k.vm_need(tags); ni = k.vm_need(tags, incl=True)
        out = []
        for x in step_lines:
            if 'VMW' in x and ni != n:
                cnt[0] += 1
                out += [f's_cbranch_vccnz L_vwa{cnt[0]} ;@skip', x.replace('VMW', str(ni)) + ' ;@skip', f's_branch L_vwb{cnt[0]} ;@skip', f'L_vwa{cnt[0]}:', x.replace('VMW', str(n)), f'L_vwb{cnt[0]}:']
            else: out.append(x.replace('VMW', str(n)))
        emit2(out)
    def emit2(lines):
        for x in lines:
            if '@notrace' in x:
                e(x.replace(' ;@notrace', ''), trace=False); k.nt_marks.append(len(k.tr))
            elif '@skip' in x: e(x.replace(' ;@skip', ''), trace=False)
            elif x.endswith(':') or x.startswith('s_cbranch_vccnz L_wsk'): e(x, trace=False)
            else: e(x)
    k.emit2 = emit2
    reg = [f's_lshl_b32 s{G.sT0}, s{G.sB}, 5', f'v_mov_b32 v{G.vT2}, s{G.sT0}', f'global_load_dword v{G.vT2}, v{G.vT2}, s[16:17] sc1']
    D_ = cfg.D
    assert D_ == 2
    rd = [f'v_accvgpr_read_b32 v{vWoD+p}, a{aWoD+p}' for p in range(9)]
    e(f's_cmp_eq_u32 s{G.sW}, 3\ns_cselect_b64 vcc, -1, 0')
    W = wo_dma('t12')
    Dk = G.dma_K(15, 3, f's{G.sKsoff}')
    X = {2: [rd[0]], 4: [f's_mov_b32 m0, s{G.sDma}'], 6: [rd[1]], 12: [Dk[0], rd[2]], 16: [Dk[1], rd[3]], 24: [Dk[2]], 56: [Dk[3]], 58: [rd[4], rd[5]], 60: [rd[6]], 61: [rd[7], rd[8]],
         62: [f's_and_b32 s{G.sVsoff}, s{G.sVsoff}, 0x3ffff']}
    X = {g: L for g, L in X.items()}
    emit(k.step(24, 0, 'full', X), {'V12', 'K13'})
    Dv = G.dma_V(14, 3, f's{G.sVsoff}')
    X = {0: [f's_add_u32 m0, s{G.sDma}, {G.LDS_V}'], 2: [Dv[0]], 4: [Dv[1]], 6: [Dv[2]], 8: [Dv[3]], 10: [f's_add_u32 s{G.sVsoff}, s{G.sVsoff}, 16384'],
         61: [f's_xor_b32 s{G.sXor}, s{G.sXor}, 0x8000'], 62: [f's_xor_b32 s{G.sDma}, s{G.sDma}, s{G.sXor}']}
    X = merge(X, spread(W, [12, 16, 20, 24, 44, 48, 56, 58, 64]))
    X = merge(X, {60: reg[:1], 64: [], 66: []})
    emit(k.step(25, 1, 'full', X), set())
    e(reg[1:])
    k.stamp('it12')
    W = wo_dma('t13')
    Dv = G.dma_V(15, 0, f's{G.sVsoff}')
    X = {2: [f's_and_b32 s{G.sVsoff}, s{G.sVsoff}, 0x3ffff'], 4: [f's_add_u32 m0, s{G.sDma}, {G.LDS_V}'], 12: [Dv[0]], 16: [Dv[1]], 24: [Dv[2]], 56: [Dv[3]]}
    X = merge(X, spread(W[:2], [60, 64]))
    emit(k.step(26, 0, 'full', X), {'V13', 'K14'})
    X = spread(W[2:], [0, 8, 16, 24, 56, 60, 64]); X.setdefault(61, []).append(f's_xor_b32 s{G.sXor}, s{G.sXor}, 0x8000')
    emit(k.step(27, 1, 'full', X), set())
    k.stamp('it13')
    W = wo_dma('t14')
    emit(k.step(28, 0, 'full', spread(W[:4], [12, 24, 58, 64])), {'V14', 'K15'})
    X = spread(W[4:], [4, 12, 20, 58, 64]); X.setdefault(61, []).append(f's_xor_b32 s{G.sXor}, s{G.sXor}, 0x8000')
    emit(k.step(29, 1, 'full', X), set())
    k.stamp('it14')
    W = wo_dma('t15')
    L30 = k.step(30, 0, 'nok', spread(W[:7], [12, 20, 44, 50, 56, 60, 64]))
    assert k.vm_need({'V15'}) == 9
    emit2([x.replace('VMW', '9') for x in L30])
    k.stamp('s30')
    emit2(k.step(31, 1, 'last', spread(W[7:], [2, 6])))
    k.stamp('p2end')

def poll_dual(k, name, vaddr, soff_reg, nbits):
    e = k.e; T = G.vT
    full = (1 << (1 << nbits)) - 1
    e(f's_mov_b32 s{sCnt}, 0\ns_mov_b32 s{G.sT2}, 0\ns_add_u32 s{G.sT3 if False else 88}, s{soff_reg}, {G.FTWIN}', trace=False)
    k.p(f'L_poll_{name}:')
    e(f'''s_and_b32 s{G.sT1}, s{sCnt}, 7
s_cmp_eq_u32 s{G.sT1}, 7
s_cselect_b32 s89, s{soff_reg}, s88
s_add_u32 s{sCnt}, s{sCnt}, 1
buffer_load_dword v{T+1}, v{vaddr}, s[{G.sWS}:{G.sWS+3}], s89 offen sc1
s_waitcnt vmcnt(0)
v_cmp_eq_u32 vcc, 1, v{T+1}
s_nop 1
s_or_b32 s{G.sT2}, s{G.sT2}, vcc_lo
s_and_b32 s{G.sT1}, s{G.sT2}, {full}
s_cmp_eq_u32 s{G.sT1}, {full}
s_cbranch_scc1 L_pollx_{name}
s_cmp_ge_u32 s{sCnt}, 0x8000
s_cbranch_scc0 L_poll_{name}''', trace=False)
    k.p(f'L_pollx_{name}:')
    k.tr.append('s_waitcnt vmcnt(0)')

def poll(k, name, vaddr, soff_reg):
    e = k.e
    e(f's_mov_b32 s{sCnt}, 0', trace=False)
    k.p(f'L_poll_{name}:')
    e(f'''buffer_load_dword v{G.vT+1}, v{vaddr}, s[{G.sWS}:{G.sWS+3}], s{soff_reg} offen sc1
s_add_u32 s{sCnt}, s{sCnt}, 1
s_waitcnt vmcnt(0)
v_cmp_ne_u32 vcc, 1, v{G.vT+1}
s_cmp_ge_u32 s{sCnt}, 0x4000
s_cbranch_scc1 L_pollx_{name}
s_cbranch_vccz L_pollx_{name}
s_sleep 1
s_branch L_poll_{name}''', trace=False)
    k.p(f'L_pollx_{name}:')
    k.tr.append('s_waitcnt vmcnt(0)')

def set_flag(k, off_vreg, dual=False):
    o = ['s_mov_b64 exec, 1']
    if dual: o.append(f'buffer_store_dword v{vOne}, v{off_vreg}, s[{G.sWS}:{G.sWS+3}], s91 offen')
    o += [f'buffer_store_dword v{vOne}, v{off_vreg}, s[{G.sWS}:{G.sWS+3}], s{sFl} offen sc1', 's_mov_b64 exec, -1']
    return o

vOne = 20; vF1 = 21; vF2a = 24; vF2b = 25
vPk = [32, 68]

def phase3(k):
    e = k.e; T = G.vT; L = G.vLane
    e('s_nop 4')
    rp = [T, T + 2, T + 4, 122]
    sBad = 88
    for qt in range(4): e(f'v_rcp_f32 v{rp[qt]}, v{G.LA(qt)}')
    e(f's_mov_b32 s{G.sT0}, 0x6f800000')
    for qt in range(4):
        e(f'v_cmp_nlt_f32 vcc, v{G.LA(qt)}, v{G.LA(qt)}') if False else None
    e(f'v_mov_b32 v{G.vT2+1}, s{G.sT0}')
    e(f's_mov_b64 s[{sBad}:{sBad+1}], 0')
    for qt in range(4):
        e(f'v_cmp_nlt_f32 vcc, v{G.LA(qt)}, v{G.vT2+1}\ns_nop 0\ns_or_b64 s[{sBad}:{sBad+1}], s[{sBad}:{sBad+1}], vcc')
    e(f'''v_lshlrev_b32 v{vAd}, 4, v{L}
s_lshl_b32 s{sFl}, s{G.sB}, 5
s_add_u32 s{sFl}, s{sFl}, s{G.sH}
s_lshl_b32 s{sOst}, s{sFl}, 2
s_add_u32 s{sOst}, s{sOst}, s{G.sW}
s_lshl_b32 s{sOst}, s{sOst}, 14
s_lshl_b32 s{sFl}, s{sFl}, 7
s_add_u32 s{sFl}, s{sFl}, {G.FBASE}
s_add_u32 s91, s{sFl}, {G.FTWIN}''')
    for qt in range(4): e(f'v_mov_b32 v{rp[qt]+1}, v{rp[qt]}')
    for p in range(9): e(f'v_mov_b32 v{96+p}, v{vWoD+p}')
    for i in range(1, 4): e(f'v_add_u32 v{vAd+i}, {4096*i}, v{vAd}')
    vPr = 108
    prev = None; nprobe = 0
    for ks in range(4):
        for qt in range(4):
            for x in range(2):
                b = G.O(2 * ks + x, qt); r = rp[qt]
                e(f'v_pk_mul_f32 v[{b}:{b+1}], v[{b}:{b+1}], v[{r}:{r+1}]\nv_pk_mul_f32 v[{b+2}:{b+3}], v[{b+2}:{b+3}], v[{r}:{r+1}]')
            if prev is not None:
                e(mfma(vr(vPr, 4), ar(G.aZero, 4), vr(prev, 4), '0' if nprobe == 0 else vr(vPr, 4))); nprobe += 1
            for x in range(2):
                b = G.O(2 * ks + x, qt); d = Own(qt, ks) + 2 * x
                e(f'v_cvt_pk_bf16_f32 v{d}, v{b}, v{b+1}\nv_cvt_pk_bf16_f32 v{d+1}, v{b+2}, v{b+3}')
            if ks == 0 or cfg.early_ost:
                e(f'buffer_store_dwordx4 v[{Own(qt,ks)}:{Own(qt,ks)+3}], v{vAd+qt}, s[{G.sWS}:{G.sWS+3}], s{sOst} offen offset:{ks*1024} sc1')
            prev = Own(qt, ks)
    e('s_nop 1')
    e(mfma(vr(vPr, 4), ar(G.aZero, 4), vr(prev, 4), vr(vPr, 4)))
    ost = [f'buffer_store_dwordx4 v[{Own(qt,ks)}:{Own(qt,ks)+3}], v{vAd+qt}, s[{G.sWS}:{G.sWS+3}], s{sOst} offen offset:{ks*1024} sc1' for ks in range(1, 4) for qt in range(4)]
    if cfg.early_ost: ost = []
    e(f'''s_lshl_b32 s{G.sT0}, s{G.sW}, 2
s_add_u32 s{G.sT0}, s{G.sT0}, 64512
v_mov_b32 v{T}, s{G.sT0}
v_mov_b32 v{vOne}, 1
s_nop 3
v_cmp_u_f32 vcc, v{vPr}, v{vPr}
s_nop 0
s_or_b64 s[{sBad}:{sBad+1}], s[{sBad}:{sBad+1}], vcc
s_cmp_lg_u64 s[{sBad}:{sBad+1}], 0
s_cselect_b32 s{G.sT0}, 1, 0
v_mov_b32 v{T+1}, s{G.sT0}
ds_write_b32 v{T}, v{T+1}
v_mov_b32 v{T+2}, 64512''')
    n = k.vm_need({'REG', 'WOt14'})
    e(f's_waitcnt vmcnt({n}) lgkmcnt(0)\ns_barrier')
    e(f'ds_read_b128 v[124:127], v{T+2}')
    e(f'v_readfirstlane_b32 s90, v{G.vT2}')
    k.stamp('p3pk')
    e(f'''v_lshrrev_b32 v30, 4, v{L}
v_bfe_u32 v31, v{L}, 2, 2
v_lshl_add_u32 v30, v30, 2, v31
v_mul_u32_u24 v30, 288, v30
v_and_b32 v31, 3, v{L}
v_lshl_add_u32 v{vR}, v31, 3, v30
v_add_u32 v{vR+1}, 61440, v{vR}
v_add_u32 v{vR+2}, 122880, v{vR}
v_mov_b32 v{vOne}, 1
s_lshl_b32 s{G.sT0}, s{G.sW}, 2
v_mov_b32 v{vF1}, s{G.sT0}
s_lshl_b32 s{G.sT0}, s{G.sW}, 3
s_add_u32 s{G.sT0}, s{G.sT0}, 16
v_mov_b32 v{vF2a}, s{G.sT0}
s_add_u32 s{G.sT0}, s{G.sT0}, 4
v_mov_b32 v{vF2b}, s{G.sT0}''')
    e(f'''s_waitcnt lgkmcnt(0)
v_or_b32 v124, v124, v125
v_or3_b32 v124, v124, v126, v127
s_nop 0
v_readfirstlane_b32 s{G.sT0}, v124
s_andn2_b32 s{G.sT0}, s{G.sT0}, s{G.sMode}
s_cmp_lg_u32 s{G.sT0}, 0
s_cbranch_scc1 L_fallback''')
    assert cfg.early_ost
    e(f's_cmp_eq_u32 s{G.sW}, 3\ns_cselect_b64 vcc, -1, 0')
    def a_read(c, nt, slot):
        base = rbase(REG[c]); idx = base // 61440
        return [f'ds_read_b64_tr_b16 a[{aA+4*slot+2*u}:{aA+4*slot+2*u+1}], v{vR+idx} offset:{base-61440*idx+u*4608+nt*32} ; ' + ('@rd WOt14' if c >= 6 else '') for u in range(2)]
    seq = [(c, nt, (0, 1, 2, 3)) for c in range(4) for nt in range(9)]
    seq += [(c, nt, (0, 1)) for c in range(4, 16) for nt in range(9)]
    seq += [(c, nt, (2, 3)) for c in range(4, 16) for nt in range(9)]
    AH_OWN, AH = 6, 8
    for i in range(AH_OWN): e(a_read(seq[i][0], seq[i][1], i % 16))
    for hp in range(3):
        e(f'''s_add_u32 s{G.sT0}, s{G.sNb}, {hp+1}
s_and_b32 s{G.sT0}, s{G.sT0}, 3
s_lshl_b32 s{G.sT1}, s{G.sKg}, 2
s_add_u32 s{G.sT0}, s{G.sT0}, s{G.sT1}
s_lshl_b32 s{G.sT1}, s{G.sB}, 5
s_add_u32 s{G.sT0}, s{G.sT0}, s{G.sT1}
s_lshl_b32 s{G.sT0}, s{G.sT0}, 2
s_add_u32 s{G.sT0}, s{G.sT0}, s{G.sW}
s_lshl_b32 s{sPh+hp}, s{G.sT0}, 14''')
    k.stamp('p3go')
    def part_load(hp, qt, ks):
        return f'buffer_load_dwordx4 a[{Part(hp,qt,ks)}:{Part(hp,qt,ks)+3}], v{vAd+qt}, s[{G.sWS}:{G.sWS+3}], s{sPh+hp} offen offset:{ks*1024}'
    loads = [[part_load(hp, qt, ks) for ks in range(4) for qt in (2 * half, 2 * half + 1)] for half in range(2) for hp in range(3)]
    paddr = f'''s_lshl_b32 s{G.sT0}, s{G.sB}, 2
s_add_u32 s{G.sT0}, s{G.sT0}, s{G.sNb}
s_lshl_b32 s{G.sT0}, s{G.sT0}, 3
s_lshl_b32 s{G.sT1}, s{G.sW}, 1
s_add_u32 s{G.sT1}, s{G.sT0}, s{G.sT1}
s_lshl_b32 s{G.sT1}, s{G.sT1}, 4
s_add_u32 s{G.sT1}, s{G.sT1}, s{G.sKg}
s_mul_i32 s{sPst}, s{G.sT1}, 5120
s_add_u32 s{sPst}, s{sPst}, {G.PBASE}
s_add_u32 s{G.sT0}, s{G.sT0}, s{G.sKg}
s_mul_i32 s{G.sT3}, s{G.sT0}, {16*5120}
s_add_u32 s{G.sT3}, s{G.sT3}, {G.PBASE}'''
    def pack_store(half):
        cv = []; st = []
        for x in range(2):
            qt = 2 * half + x
            for blk in range(5):
                d = D(2 * blk, qt)
                cv += [f'v_cvt_pk_bf16_f32 v{d}, v{d}, v{d+1}', f'v_cvt_pk_bf16_f32 v{d+1}, v{d+2}, v{d+3}']
                if blk < 4:
                    b_ = D(2 * blk + 1, qt)
                    cv += [f'v_cvt_pk_bf16_f32 v{d+2}, v{b_}, v{b_+1}', f'v_cvt_pk_bf16_f32 v{d+3}, v{b_+2}, v{b_+3}']
                g = []
                if blk == 0: g.append(f's_add_u32 s{sOst}, s{sPst}, {x*81920 + half*40960}')
                g.append(f'buffer_store_dwordx4 v[{d}:{d+3}], v{vAd + (blk >> 2)}, s[{G.sWS}:{G.sWS+3}], s{sOst} offen offset:{(blk & 3)*1024} sc1')
                st.append(g)
        return cv, st
    R = 32; SUM = 80
    def fin_addr(part):
        return f'''v_and_b32 v{T}, 7, v{L}
v_lshlrev_b32 v{T}, 2, v{T}
v_add_u32 v{T}, s{G.sNb}, v{T}
v_lshlrev_b32 v{T}, 7, v{T}
s_lshr_b32 s{G.sT0}, s{G.sKg}, 1
s_lshl_b32 s{G.sT0}, s{G.sT0}, 3
s_add_u32 s{G.sT0}, s{G.sT0}, {16 + 4*part}
v_add_u32 v{T}, s{G.sT0}, v{T}
s_lshl_b32 s{G.sT0}, s{G.sB}, 12
s_add_u32 s{G.sT0}, s{G.sT0}, {G.FBASE}'''
    def fin_loads(part):
        o = []
        for src in range(8):
            o.append([f's_add_u32 s{G.sT1}, s{G.sT3}, {part*40960 + src*5120}',
                      f'buffer_load_dwordx4 v[{R+4*src}:{R+4*src+3}], v{vAd+4}, s[{G.sWS}:{G.sWS+3}], s{G.sT1} offen',
                      f'buffer_load_dwordx2 v[{R+32+2*src}:{R+32+2*src+1}], v{vAd+5}, s[{G.sWS}:{G.sWS+3}], s{G.sT1} offen'])
        return o
    def fin_reduce(part):
        e(f's_waitcnt vmcnt({k.vm_need({f"FIN{part}"})})')
        e(f's_mov_b32 s{G.sT1}, 0x00003f80\ns_mov_b32 s{G.sT2}, 0x3f800000')
        for src in range(8):
            for j in range(4):
                for hi_ in range(2):
                    acc = SUM + 2 * j + hi_
                    e(f'v_dot2_f32_bf16 v{acc}, v{R+4*src+j}, s{G.sT1+hi_}, {"0" if src == 0 else f"v{acc}"}')
            for j in range(2):
                for hi_ in range(2):
                    acc = SUM + 8 + 2 * j + hi_
                    e(f'v_dot2_f32_bf16 v{acc}, v{R+32+2*src+j}, s{G.sT1+hi_}, {"0" if src == 0 else f"v{acc}"}')
        e('s_nop 2')
        for j in range(6): e(f'v_cvt_pk_bf16_f32 v{SUM+12+j}, v{SUM+2*j}, v{SUM+2*j+1}')
        e(f'''s_add_u32 s{G.sT0}, s{sPh}, {part*32*1152}
s_cmp_ge_u32 s{G.sW}, 1
s_cselect_b32 s{G.sT1}, 0x7ffff000, s{G.sT0}
s_lshl_b32 s{G.sT2}, s{G.sW}, 6
s_add_u32 s{G.sT0}, s{G.sT0}, s{G.sT2}
buffer_store_dwordx2 v[{SUM+12}:{SUM+13}], v{vAd+6}, s[{G.sOut}:{G.sOut+3}], s{G.sT0} offen{cfg.out_flag}
buffer_store_dwordx2 v[{SUM+14}:{SUM+15}], v{vAd+6}, s[{G.sOut}:{G.sOut+3}], s{G.sT0} offen offset:32{cfg.out_flag}
buffer_store_dwordx2 v[{SUM+16}:{SUM+17}], v{vAd+6}, s[{G.sOut}:{G.sOut+3}], s{G.sT1} offen offset:256{cfg.out_flag}''')
    issued = AH_OWN
    SPL, POL = cfg.own_split
    seg_bounds = [(0, 9 * SPL), (9 * SPL, 9 * POL), (9 * POL, 36), (36, 144), (144, 252)]
    extra = {}
    def place(i0, items, every):
        for n_, it_ in enumerate(items):
            extra.setdefault(i0 + n_ * every, []).append(it_ if isinstance(it_, list) else [it_])
    if ost: place(1, ost, max(1, (9 * SPL - 2) // len(ost)))
    place(36 + 1, loads[2], 1)
    place(36 + 18, loads[3], cfg.l3_every)
    place(36 + 70, loads[4], 2)
    place(36 + 88, loads[5], 2)
    for seg, (lo, hi) in enumerate(seg_bounds):
        if seg == 1:
            nn = k.vm_need({'OST'})
            e(f's_waitcnt vmcnt({nn})')
            e(set_flag(k, vF1, dual=cfg.dualflag))
            k.stamp('p3d1')
            e(paddr)
            place(lo + 1, wo_dma('tP', 96), 2)
        if seg == 2:
            e(f's_mov_b32 s{G.sT2}, s90')
            k.p('L_regchk:')
            e(f's_cmp_ge_u32 s{G.sT2}, 32\ns_cbranch_scc1 L_regok')
            e(f'''s_add_u32 s{G.sPass}, s{G.sPass}, 1
s_cmp_ge_u32 s{G.sPass}, 0x4000
s_cbranch_scc1 L_regok
s_lshl_b32 s{G.sT0}, s{G.sB}, 5
v_mov_b32 v{G.vT2}, s{G.sT0}
s_sleep 1
global_load_dword v{G.vT2}, v{G.vT2}, s[16:17] sc1
s_waitcnt vmcnt(0)
v_readfirstlane_b32 s{G.sT2}, v{G.vT2}
s_branch L_regchk''', trace=False)
            k.p('L_regok:')
            e(f'''v_and_b32 v{T}, 3, v{L}
s_lshl_b32 s{G.sT0}, s{G.sKg}, 2
v_add_u32 v{T}, s{G.sT0}, v{T}
v_lshlrev_b32 v{T}, 7, v{T}
v_add_u32 v{T}, v{T}, v{vF1}
s_lshl_b32 s{G.sT0}, s{G.sB}, 12
s_add_u32 s{G.sT0}, s{G.sT0}, {G.FBASE}''')
            if cfg.dualflag:
                poll_dual(k, 'f1', T, G.sT0, 2)
            else: poll(k, 'f1', T, G.sT0)
            k.stamp('p3f1')
            for x in loads[0] + loads[1]: e(x)
        for i in range(lo, hi):
            c, nt, qts = seq[i]
            half = 0 if seg == 3 else 1
            slot = i % 16
            ah = AH_OWN if seg < 3 else AH
            rd = []
            while issued < min(len(seq), i + ah + 1):
                rd += a_read(seq[issued][0], seq[issued][1], issued % 16); issued += 1
            younger = 2 * (issued - len(rd) // 2 - 1 - i)
            pre = [f's_waitcnt lgkmcnt({min(15, younger)})']
            if seg >= 3 and nt == 0:
                pre.append(f's_waitcnt vmcnt({k.vm_need({f"PH{(c>>2)-1}_{half}_{c&3}"})})')
                if seg == 3 and c == 9: pre.append('s_barrier')
            hook = None
            if seg == 4 and nt == 0 and c == cfg.f2a_c: hook = 'f2a'
            if seg == 4 and nt == 0 and c == cfg.fin0_c: hook = 'fin0'
            mf = []
            for qt in qts:
                Bop = vr(Own(qt, c), 4) if c < 4 else ar(Part((c >> 2) - 1, qt, c & 3), 4)
                Cop = '0' if c == 0 else vr(D(nt, qt), 4)
                mf.append(mfma(vr(D(nt, qt), 4), ar(aA + 4 * slot, 4), Bop, Cop))
            if hook == 'f2a':
                e(f's_waitcnt vmcnt({k.vm_need({"PS0"})})'); e(set_flag(k, vF2a, dual=cfg.dualflag))
            if hook == 'fin0':
                e(f'''v_lshlrev_b32 v{vAd+4}, 4, v{L}
s_lshl_b32 s{G.sT1}, s{G.sW}, 10
v_add_u32 v{vAd+5}, 4096, v{vAd+4}
v_add_u32 v{vAd+4}, s{G.sT1}, v{vAd+4}
s_cmp_ge_u32 s{G.sW}, 1
s_cselect_b32 s{G.sT1}, 0x40000000, 0
v_add_u32 v{vAd+5}, s{G.sT1}, v{vAd+5}
v_and_b32 v{vAd+6}, 15, v{L}
v_mul_u32_u24 v{vAd+6}, 1152, v{vAd+6}
v_lshrrev_b32 v{vAd+7}, 4, v{L}
v_lshl_add_u32 v{vAd+6}, v{vAd+7}, 3, v{vAd+6}
s_lshr_b32 s{G.sT0}, s{G.sKg}, 1
s_lshl_b32 s{G.sT0}, s{G.sT0}, 2
s_and_b32 s{G.sT1}, s{G.sKg}, 1
s_add_u32 s{G.sT0}, s{G.sT0}, s{G.sT1}
s_lshl_b32 s{G.sT1}, s{G.sB}, 4
s_add_u32 s{G.sT0}, s{G.sT0}, s{G.sT1}
s_mul_i32 s{sPh}, s{G.sT0}, {16*1152}
s_mul_i32 s{G.sT1}, s{G.sNb}, 288
s_add_u32 s{sPh}, s{sPh}, s{G.sT1}''')
                e(fin_addr(0))
                poll_dual(k, 'f2a', T, G.sT0, 3)
                k.stamp('p3f2a')
                place(i, fin_loads(0), 1)
            e(pre)
            e(mf[0]); e(rd)
            e(mf[1])
            for x in extra.pop(i, []): k.emit2(x)
            for m in mf[2:]: e(m)
        k.stamp(f'p3seg{seg}')
        if seg == 3:
            e('s_nop 4')
            cv, st = pack_store(0); e(cv)
            place(144, st, cfg.ps0_every)
        if seg == 4:
            e('s_nop 4')
            cv, st = pack_store(1)
            e(cv[:18]);
            for g in st[:5]: e(g)
            e(cv[18:])
            for g in st[5:]: e(g)
    assert not extra, extra.keys()
    k.stamp('p3mm')
    e(f's_waitcnt vmcnt({k.vm_need({"PS1"})})'); e(set_flag(k, vF2b, dual=cfg.dualflag))
    k.stamp('p3st')
    fin_reduce(0)
    k.stamp('p3r0')
    e(fin_addr(1))
    poll_dual(k, 'f2b', T, G.sT0, 3)
    k.stamp('p3f2')
    for g in fin_loads(1): e(g)
    k.stamp('p3fi')
    fin_reduce(1)
```

```python
import sys, math, struct
from asmlib import *

NAME = 'standalone__mha_block_cached__near_ridge'

class Cfg:
    stamps = False
    kv_flag = ' nt'
    x_flag = ''
    w_flag = ''
    wo_flag = ''
    force_safe = False
    ablate = ''
    l1inv = False
    codepf = 1
    tp_late = False
    exp_enc = ''
    loop_align = 3
    loop_nop = 0
    late_mode = 0
    kv0_at = (6, 1)
    k1_at = (7, 1)
    D = 2
    perm = False
    w4 = False
    wmall = False
    rot = True
    pad = 0
    dbgstamps = 0
    mapx = True
    dualflag = True
    out_flag = ''
    bswap = 0
    coop_pre = (0, 1, 2, 3, 4, 5, 6, 7, 8)
    coop_mid = ()
    coop_skip = ()
    coop_wait = None
    early_ost = True
    own_split = (0, 2)
    ps0_every = 2
    f2a_c = 10
    fin0_c = 14
    l3_every = 6
    kv_same = False
cfg = Cfg()

sW = 3
sX, sWq, sK, sV, sWS, sWo, sOut = 20, 24, 28, 32, 36, 40, 44
sW4K = 48; sKsoff = 49; sVsoff = 50; sDma = 51; sXor = 52; sIter = 53
sT0, sT1, sT2, sT3 = 54, 55, 56, 57
sC = 58
sXsoff = 60; sWsoff = 61; sW8K = 62; sDelta = 63
sB = 64; sH = 65; sJ = 66; sMode = 67
sKg = 68; sNb = 69; sRot = 70; sPass = 71
sStamp = 72

vLane = 1
vT = 2
vKA = 8
vVA = 12
vDK = 20
vDV = 24
vMG = 26
vT2 = 30
vS = 32
vC = 64
vP = 80
vL = 96
vXA = 112; vWA = 114
vWB = 120
vCo = 118
vOX = 32; vOW = 40
vWoD = 112
vWoR = 121
vAcc = 128
aQ = 0; aKf = 64; aVf = 96; aOnes = 252; aZero = 188
aPA = 96; aPB = 64

def O(dt, qt): return vAcc + (dt * 4 + qt) * 4
def S(qt, kt): return vS + qt * 8 + kt * 4
def CI(qt): return vC + 4 * qt
def P(qt): return vP + 4 * qt
def LA(qt): return vL + 4 * qt
def Qf(qt, ds): return aQ + (qt * 4 + ds) * 4
def Kf(m): return aKf + 4 * m
def Vf(dt): return aVf + 4 * dt

LDS_V = 65536
XS = [32768, 81920]
WS = [114688, 131072, 147456, 16384]
def NWS(): return 4 if cfg.mapx and cfg.w4 else 3
OBASE = 0
PBASE = 16 << 20
FBASE = 60 << 20
FTWIN = 1 << 16
STAMPBASE = 64 << 20

def kb(fn): return ','.join(str(fn(w) // 1024) for w in range(4))
def stamp_reg(i): return [72, 76, 80, 84, 92][i]
def mfma(d, a, b, c): return f'v_mfma_f32_16x16x32_bf16 {d}, {a}, {b}, {c}'

class Slots:
    def __init__(self, n):
        self.pre = [[] for _ in range(n)]
        self.post = [[] for _ in range(n)]
        self.mf = [None] * n
    def out(self):
        o = []
        for i in range(len(self.mf)):
            o += self.pre[i]
            if self.mf[i]: o.append(self.mf[i])
            o += self.post[i]
        return o
    def load(self):
        def cost(x):
            mn = x.split()[0]
            if mn.startswith('v_exp') or mn.startswith('v_rcp'): return 8
            return 4
        n = len(self.mf); res = []
        for i in range(n):
            g = self.post[i] + (self.pre[i + 1] if i + 1 < n else [])
            res.append(sum(cost(x) for x in g))
        return res

def dma_K(tile, slot, soff):
    L = []
    for p in range(4):
        a = lambda w, p=p: slot * 16384 + w * 4096 + p * 1024
        L.append(f'buffer_load_dwordx4 v{vDK+p}, s[{sK}:{sK+3}], {soff} offen offset:{p*1024}{cfg.kv_flag} lds ; @dma K{tile} {kb(a)}')
    return L
def dma_V(tile, slot, soff):
    L = []
    for p in range(4):
        a = lambda w, p=p: LDS_V + slot * 16384 + w * 4096 + p * 1024
        L.append(f'buffer_load_dwordx4 v{vDV+(p&1)}, s[{sV}:{sV+3}], {soff} offen offset:{p*1024}{cfg.kv_flag} lds ; @dma V{tile} {kb(a)}')
    return L

def dma_W(c):
    G = []
    for p in range(4):
        a = lambda w, p=p: WS[c % NWS()] + w * 4096 + p * 1024
        ins = f'buffer_load_dwordx4 v{vOW+p}, s[{sWq}:{sWq+3}], s{sWsoff} offen offset:{p*1024}{cfg.w_flag} lds ; @dma W{c} {kb(a)}'
        g = [ins]
        if p == 0: g = [f's_add_u32 m0, s{sW4K}, {WS[c%NWS()]}', f's_mov_b32 s{sWsoff}, {c*524288}', ins]
        G.append(g)
    return G
def dma_X(c):
    G = []
    for p in range(8):
        a = lambda w, p=p: XS[c % 2] + w * 8192 + p * 1024
        ins = f'buffer_load_dwordx4 v{vOX+p}, s[{sX}:{sX+3}], s{sXsoff} offen offset:{(p&3)*1024}{cfg.x_flag} lds ; @dma X{c} {kb(a)} priv'
        g = [ins]
        if p == 0: g = [f's_add_u32 m0, s{sW8K}, {XS[c%2]}', f's_mov_b32 s{sXsoff}, {c*128}', ins]
        if p == 4: g = [f's_add_u32 m0, s{sW8K}, {XS[c%2]+4096}', 's_nop 0', ins]
        G.append(g)
    return G

def kv_dma_addr():
    T = vT; L = vLane
    o = f'''v_lshrrev_b32 v{T+1}, 4, v{L}
v_and_b32 v{T+3}, 15, v{L}
v_mov_b32 v{T+4}, v{T+1}'''.split('\n')
    for p in range(4):
        o += [f'v_add_u32 v{T+2}, {4*p}, v{T+1}', f'v_xor_b32 v{T+2}, v{T+2}, v{T+3}', f'v_lshlrev_b32 v{T+2}, 4, v{T+2}', f'v_lshl_add_u32 v{vDK+p}, v{T+4}, 8, v{T+2}']
    for par in range(2):
        o += [f'v_add_u32 v{T+2}, {4*par}, v{T+1}', f'v_lshlrev_b32 v{T+2}, 1, v{T+2}', f'v_xor_b32 v{T+2}, v{T+2}, v{T+3}', f'v_lshlrev_b32 v{T+2}, 4, v{T+2}', f'v_lshl_add_u32 v{vDV+par}, v{T+4}, 8, v{T+2}']
    return o
def kv_read_addr():
    T = vT; L = vLane
    o = [f'v_lshrrev_b32 v{T}, 4, v{L}', f'v_bfe_u32 v{T+1}, v{L}, 2, 2', f'v_and_b32 v{T+2}, 3, v{L}', f'v_and_b32 v{T+3}, 15, v{L}',
         f'v_lshlrev_b32 v{T+4}, 8, v{T+3}']
    for ds in range(4):
        o += [f'v_add_u32 v{T+5}, {4*ds}, v{T}', f'v_xor_b32 v{T+5}, v{T+5}, v{T+3}', f'v_lshl_add_u32 v{vKA+ds}, v{T+5}, 4, v{T+4}']
    o += f'''v_lshl_add_u32 v{T+4}, v{T}, 2, v{T+1}
v_and_b32 v{vT2}, 7, v{T+4}
v_lshlrev_b32 v{vT2}, 1, v{vT2}
v_lshlrev_b32 v{T+4}, 8, v{T+4}
v_and_b32 v{T+5}, 1, v{T+2}
v_lshl_add_u32 v{T+4}, v{T+5}, 3, v{T+4}
v_add_u32 v{T+4}, {LDS_V}, v{T+4}
v_lshrrev_b32 v{vT2+1}, 1, v{T+2}'''.split('\n')
    for dt in range(8):
        o += [f'v_add_u32 v{T+5}, {2*dt}, v{vT2+1}', f'v_xor_b32 v{T+5}, v{T+5}, v{vT2}', f'v_lshl_add_u32 v{vVA+dt}, v{T+5}, 4, v{T+4}']
    return o

def p1_reads(c, n, buf):
    A = aPA + buf * 32; B = aPB + buf * 16
    def W(dt, u):
        ds, x = dt >> 1, dt & 1
        st = c % NWS()
        reg, so = (vWA + ds, st * 16384) if st < 3 else (vWB + ds, 0)
        return f'ds_read_b64_tr_b16 a[{A+4*dt+2*u}:{A+4*dt+2*u+1}], v{reg} offset:{so+(32*n+4*u)*256+8*x} ; @rd W{c}'
    def X(qt): return f'ds_read_b128 a[{B+4*qt}:{B+4*qt+3}], v{vXA+n} offset:{(c%2)*49152+qt*2048} ; @rd X{c}'
    R = [X(0), W(0, 0), W(0, 1), X(1), X(2), X(3)]
    for dt in range(1, 8): R += [W(dt, 0), W(dt, 1)]
    return R

def p1_kstep(k, c, n, groups, last=False, fill=None):
    Sl = Slots(32)
    buf = n & 1
    for m in range(32):
        dt, qt = m >> 2, m & 3
        Sl.mf[m] = mfma(vr(O(dt, qt), 4), ar(aPA + buf * 32 + 4 * dt, 4), ar(aPB + buf * 16 + 4 * qt, 4), '0' if (c == 0 and n == 0) else vr(O(dt, qt), 4))
    if n == 0: R = p1_reads(c, 1, 1)
    else: R = [] if last else p1_reads(c + 1, 0, 0)
    if n == 1:
        vm = (k.vm_need({f'X{c+1}', f'W{c+1}'}) if not cfg.ablate else 20) if not last else 63
        Sl.pre[0] += [f's_waitcnt vmcnt({vm}) lgkmcnt(0)', 's_barrier']
    else: Sl.pre[0] += ['s_waitcnt lgkmcnt(0)']
    ab = cfg.ablate
    if 'p1rd' in ab: R = []
    if 'p1x' in ab: groups = [[x for x in g if '@dma X' not in x] for g in groups]
    if 'p1w' in ab: groups = [[x for x in g if '@dma W' not in x] for g in groups]
    if 'p1kv' in ab: groups = [[x for x in g if '@dma K' not in x and '@dma V' not in x] for g in groups]
    for i, r in enumerate(R): Sl.post[2 * (i // 2)].append(r)
    if groups:
        nn = len(groups)
        for i, g in enumerate(groups):
            Sl.post[min(31, 1 + 2 * ((i * 16) // nn))] += g
    if fill:
        g = 1
        while fill and g < 32:
            if len(Sl.post[g]) == 0:
                for _ in range(2):
                    if fill:
                        x = fill.pop(0)
                        Sl.post[g] += x if isinstance(x, list) else [x]
                        if isinstance(x, list): break
            g += 1
    return Sl.out()

class Kernel:
    def __init__(self):
        self.p = Prog(); self.tr = []; self.nstamp = 0; self.q = []; self.nt_marks = []
    def e(self, s, text=True, trace=True):
        if isinstance(s, str): s = [x.strip() for x in s.split('\n') if x.strip()]
        if text: self.p(s)
        if trace: self.tr.extend(s)
    def stamp(self, name):
        if cfg.stamps and name in cfg.stamps:
            i = cfg.stamps.index(name); b = stamp_reg(i)
            self.e(f's_memrealtime s[{b}:{b+1}]\ns_memtime s[{b+2}:{b+3}]')
            self.nstamp = max(self.nstamp, i + 1)
    def vm_need(self, tags, incl=False):
        q = []
        marks = list(self.nt_marks)
        for pos, line in enumerate(self.tr + ['s_nop 0']):
            while incl and marks and marks[0] <= pos:
                q.append(None); marks.pop(0)
            code, _, com = line.partition(';')
            mn = code.split()[0] if code.split() else ''
            if mn.startswith('buffer_') and mn not in ('buffer_inv', 'buffer_wbl2') or mn.startswith('global_'):
                t = None
                a = com.split()
                if '@dma' in a: t = a[a.index('@dma') + 1]
                elif '@tag' in a: t = a[a.index('@tag') + 1]
                q.append(t)
        for t in tags: assert t in q, f'tag {t} was never issued'
        last = max((i for i, t in enumerate(q) if t in tags), default=-1)
        return min(63, len(q) - 1 - last)

    def header(self):
        self.p(f'; @launch grid=(256,1,1) block=(256,1,1) lds=163840')
        if cfg.stamps: self.p('; stamps: ' + ','.join(cfg.stamps))
        self.p('.amdgcn_target "amdgcn-amd-amdhsa--gfx950"\n.text')
        self.p(f'.globl {NAME}_kernel\n.p2align 8\n.type {NAME}_kernel,@function\n{NAME}_kernel:')
    def footer(self):
        self.p('L_end:\ns_endpgm')
        self.p('.p2align 6\nL_codeend:')
        self.p('.section .rodata,"a"\n.p2align 6')
        self.p(f'.amdhsa_kernel {NAME}_kernel')
        self.p('''.amdhsa_next_free_vgpr 512
.amdhsa_next_free_sgpr 102
.amdhsa_accum_offset 256
.amdhsa_group_segment_fixed_size 0
.amdhsa_kernarg_size 64
.amdhsa_user_sgpr_count 2
.amdhsa_user_sgpr_kernarg_segment_ptr 1
.amdhsa_system_sgpr_workgroup_id_x 1
.end_amdhsa_kernel''')

    def code_prefetch(self, where):
        e = self.e
        if cfg.codepf == where:
            e(f'''s_getpc_b64 s[{sT2}:{sT2+1}]
L_pc:
v_and_b32 v{vT+5}, 15, v{vLane}
s_lshr_b32 s{sT0}, s2, 3
s_and_b32 s{sT2}, s{sT2}, 0xffffff00
s_lshl_b32 s{sT0}, s{sT0}, 4
s_sub_u32 s{sT2}, s{sT2}, CODEOFF
v_add_u32 v{vT+5}, s{sT0}, v{vT+5}
s_subb_u32 s{sT3}, s{sT3}, 0
v_lshlrev_b32 v{vT+5}, 7, v{vT+5}
v_min_u32 v{vT+5}, CODELEN, v{vT+5}
global_load_dword v92, v{vT+5}, s[{sT2}:{sT2+1}]''')

    def setup(self):
        e = self.e
        e('s_cmp_ge_u32 s2, 256\ns_cbranch_scc1 L_end')
        if cfg.perm: e('s_lshr_b32 s3, s2, 3\ns_and_b32 s3, s3, 7\ns_xor_b32 s2, s2, s3')
        self.stamp('entry')
        e(f's_load_dwordx16 s[4:19], s[0:1], 0')
        e(f'''v_and_b32 v{vLane}, 63, v0
v_lshrrev_b32 v{vT}, 6, v0
s_and_b32 s{sT0}, s2, 7
s_lshr_b32 s{sJ}, s2, 3
v_readfirstlane_b32 s{sW}, v{vT}
s_and_b32 s{sB}, s{sT0}, 1
s_xor_b32 s{sB}, s{sB}, {cfg.bswap}
s_lshl_b32 s{sB}, s{sB}, 2
s_and_b32 s{sT1}, s{sJ}, 3
s_add_u32 s{sB}, s{sB}, s{sT1}
s_lshr_b32 s{sH}, s{sT0}, 1
s_lshl_b32 s{sH}, s{sH}, 3
s_lshr_b32 s{sT1}, s{sJ}, 2
s_add_u32 s{sH}, s{sH}, s{sT1}
MAPX
s_lshr_b32 s{sKg}, s{sH}, 2
s_and_b32 s{sNb}, s{sH}, 3
s_lshl_b32 s{sW4K}, s{sW}, 12
ROT
'''.replace('ROT', f's_add_u32 s{sRot}, s{sH}, s{sB}\ns_and_b32 s{sRot}, s{sRot}, 15\ns_lshl_b32 s{sRot}, s{sRot}, 14\ns_add_u32 s{sRot}, s{sRot}, s{sW4K}' if cfg.rot else f's_mov_b32 s{sRot}, s{sW4K}').replace('MAPX', f's_mov_b32 s{sB}, s{sT0}\ns_mov_b32 s{sH}, s{sJ}' if cfg.mapx else 's_nop 0'))
        L = vLane; T = vT
        e(f'''v_lshrrev_b32 v{T}, 3, v{L}
s_lshl_b32 s{sT0}, s{sW}, 6
v_add_u32 v{T}, s{sT0}, v{T}
v_mul_u32_u24 v{T}, 1152, v{T}
v_lshrrev_b32 v{T+1}, 4, v{L}
v_and_b32 v{T+2}, 7, v{L}
v_xor_b32 v{T+3}, v{T+2}, v{T+1}
v_xor_b32 v{T+4}, 4, v{T+3}
v_lshl_add_u32 v{T+3}, v{T+3}, 4, v{T}
v_lshl_add_u32 v{T+4}, v{T+4}, 4, v{T}''')
        for p in range(8):
            e(f'v_add_u32 v{vOX+p}, {p*9216 - (p&3)*1024}, v{T+3+(p&1)}')
        e(f'''v_lshlrev_b32 v{T+2}, 2, v{T+1}
v_and_b32 v{T+3}, 15, v{L}
v_xor_b32 v{T+2}, v{T+2}, v{T+3}
v_lshlrev_b32 v{T+2}, 4, v{T+2}
s_lshl_b32 s{sT0}, s{sW}, 4
v_add_u32 v{T+4}, s{sT0}, v{T+1}
v_lshl_add_u32 v{T+5}, v{T+4}, 13, v{T+2}''')
        for p in range(4):
            e(f'v_add_u32 v{vOW+p}, {p*(32768-1024)}, v{T+5}')
        e(f'''v_lshrrev_b32 v{T+5}, 3, v{L}
s_lshr_b32 s{sT0}, s{sJ}, 2
s_lshl_b32 s{sT0}, s{sT0}, 5
s_lshl_b32 s{sT1}, s{sW}, 3
s_add_u32 s{sT0}, s{sT0}, s{sT1}
v_add_u32 v{T+5}, s{sT0}, v{T+5}
v_mul_u32_u24 v{T+5}, 1152, v{T+5}
v_and_b32 v{T+2}, 7, v{L}
v_lshl_add_u32 v{vCo}, v{T+2}, 4, v{T+5}
s_and_b32 s{sT0}, s{sJ}, 3
s_lshl_b32 s{sT0}, s{sT0}, 4
s_lshl_b32 s{sT1}, s{sW}, 2
s_add_u32 s{sT0}, s{sT0}, s{sT1}
v_add_u32 v{T+5}, s{sT0}, v{T+1}
v_lshlrev_b32 v{T+5}, 13, v{T+5}
v_and_b32 v{T+2}, 15, v{L}
v_lshl_add_u32 v{vCo+1}, v{T+2}, 4, v{T+5}''')
        if cfg.mapx:
            e(f'''v_lshrrev_b32 v{T+5}, 3, v{L}
s_lshl_b32 s{sT0}, s{sJ}, 3
v_add_u32 v{T+5}, s{sT0}, v{T+5}
v_mul_u32_u24 v{T+5}, 1152, v{T+5}
v_and_b32 v{T+2}, 7, v{L}
v_lshl_add_u32 v{vCo}, v{T+2}, 4, v{T+5}''')
        e('s_waitcnt lgkmcnt(0)')
        self.stamp('karg')
        if cfg.l1inv:
            e(f's_cmp_eq_u32 s{sW}, 0\ns_cbranch_scc0 L_noinv\nbuffer_inv sc1', trace=False)
            self.p('L_noinv:')
        e(f'''s_mul_i32 s{sT0}, s{sB}, 294912
s_add_u32 s{sX}, s4, s{sT0}
s_addc_u32 s{sX+1}, s5, 0
s_mov_b32 s{sX+2}, 294912
s_mov_b32 s{sX+3}, 0x20000
s_lshl_b32 s{sT0}, s{sH}, 8
s_add_u32 s{sWq}, s10, s{sT0}
s_addc_u32 s{sWq+1}, s11, 0
s_sub_u32 s{sWq+2}, 4718592, s{sT0}
s_mov_b32 s{sWq+3}, 0x20000
s_mov_b32 s{sWS}, s18
s_mov_b32 s{sWS+1}, s19
s_mov_b32 s{sWS+2}, 0x8000000
s_mov_b32 s{sWS+3}, 0x20000''')
        e(f's_lshl_b32 s{sW8K}, s{sW}, 13')
        def coop(c):
            if cfg.mapx:
                if c >= 3: return []
                d = 44 + 4 * c
                return [f's_lshl_b32 s{sT1}, s{sW}, 7', f'buffer_load_dwordx4 v[{d}:{d+3}], v{vCo}, s[{sX}:{sX+3}], s{sT1} offen offset:{c*512} ; @tag CO{c}']
            d = 44 + 8 * c if c < 6 else 96 + 8 * (c - 6) if c < 8 else 120
            return [f's_mov_b32 s{sT1}, {c*524288}', f'buffer_load_dwordx4 v[{d}:{d+3}], v{vCo+1}, s[{sWq}:{sWq+3}], s{sT1} offen ; @tag CO{c}',
                    f'buffer_load_dwordx4 v[{d+4}:{d+7}], v{vCo}, s[{sX}:{sX+3}], 0 offen offset:{c*128} ; @tag CO{c}']
        for c in cfg.coop_pre: e(coop(c))
        self.code_prefetch(1)
        self.coop = coop
        self.stamp('dma0')
        e(f'''s_lshl_b32 s{sT0}, s{sB}, 5
s_add_u32 s{sT0}, s{sT0}, s{sH}
s_lshl_b32 s{sT0}, s{sT0}, 18''')
        if cfg.kv_same: e(f's_mov_b32 s{sT0}, 0')
        e(f'''s_add_u32 s{sK}, s6, s{sT0}
s_addc_u32 s{sK+1}, s7, 0
s_mov_b32 s{sK+2}, 262144
s_mov_b32 s{sK+3}, 0x20000
s_add_u32 s{sV}, s8, s{sT0}
s_addc_u32 s{sV+1}, s9, 0
s_mov_b32 s{sV+2}, 262144
s_mov_b32 s{sV+3}, 0x20000''')
        e(f'''s_mul_i32 s{sT0}, s{sKg}, {512*1152}
s_mul_i32 s{sT1}, s{sNb}, 288
s_add_u32 s{sT0}, s{sT0}, s{sT1}
s_add_u32 s{sWo}, s12, s{sT0}
s_addc_u32 s{sWo+1}, s13, 0
s_sub_u32 s{sWo+2}, 4718592, s{sT0}
s_mov_b32 s{sWo+3}, 0x20000
s_mov_b32 s{sOut}, s14
s_mov_b32 s{sOut+1}, s15
s_mov_b32 s{sOut+2}, 2359296
s_mov_b32 s{sOut+3}, 0x20000''')
        e(kv_dma_addr())
        self.stamp('cw0')
        if cfg.coop_wait is not None: e(f's_waitcnt vmcnt({self.vm_need({f"CO{cfg.coop_wait}"})})')
        self.stamp('cw1')
        for g in dma_W(0) + dma_X(0): e(g)
        for c in cfg.coop_mid: e(self.coop(c))
        self.code_prefetch(2)
        self.stamp('d0')
        e(f'''v_lshrrev_b32 v{T}, 4, v{L}
v_bfe_u32 v{T+1}, v{L}, 2, 2
v_and_b32 v{T+2}, 3, v{L}
v_and_b32 v{T+3}, 15, v{L}''')
        e(f'''v_lshl_add_u32 v{T+4}, v{T}, 3, v{T+1}
v_lshlrev_b32 v{T+4}, 8, v{T+4}
v_lshl_add_u32 v{T+4}, v{T+2}, 4, v{T+4}
v_add_u32 v{T+4}, {WS[0]}, v{T+4}''')
        for ds in range(4):
            e(f'v_xor_b32 v{T+5}, {ds}, v{T+1}\nv_lshl_add_u32 v{vWA+ds}, v{T+5}, 6, v{T+4}')
        if NWS() == 4:
            for ds in range(4): e(f'v_subrev_u32 v{vWB+ds}, {WS[0]-WS[3]}, v{vWA+ds}')
        e(f'''s_lshl_b32 s{sT0}, s{sW}, 13
s_add_u32 s{sT0}, s{sT0}, {XS[0]}
v_lshlrev_b32 v{T+4}, 7, v{T+3}
v_add_u32 v{T+4}, s{sT0}, v{T+4}
v_lshrrev_b32 v{vT2}, 1, v{T+3}''')
        for n in range(2):
            e(f'''v_add_u32 v{T+5}, {4*n}, v{T}
v_xor_b32 v{T+5}, v{T+5}, v{vT2}
v_lshl_add_u32 v{vXA+n}, v{T+5}, 4, v{T+4}''')
        e(kv_read_addr())
        cbits = '0x%08x' % int.from_bytes(struct.pack('<f', math.log2(math.e) / math.sqrt(128.0)), 'little')
        e(f's_mov_b32 s{sC}, {cbits}\ns_mov_b32 s{sC+1}, {cbits}')
        e(f'v_mov_b32 v{T+5}, 0x3f803f80')
        for i in range(4): e(f'v_accvgpr_write_b32 a{aOnes+i}, v{T+5}')
        for i in range(4): e(f'v_accvgpr_write_b32 a{aZero+i}, 0')
        for i in range(4): e(f'v_mov_b32 v{vMG+i}, 0xff800000')
        e(f's_mov_b32 s{sPass}, 0\ns_mov_b32 s{sMode}, 0')
        for g in dma_W(1) + dma_X(1): e(g)
        self.code_prefetch(3)
        if cfg.wmall:
            e(f'''s_mul_i32 s{sT0}, s2, 18432
s_mul_i32 s{sT1}, s{sW}, 4608
s_add_u32 s{sT0}, s{sT0}, s{sT1}
s_lshl_b32 s{sT1}, s{sH}, 8
s_sub_u32 s{sT0}, s{sT0}, s{sT1}
v_lshlrev_b32 v{T+5}, 4, v{L}''')
            for i in range(5):
                e(f'buffer_load_dwordx4 v[{56+4*i}:{59+4*i}], v{T+5}, s[{sWq}:{sWq+3}], s{sT0} offen offset:{min(i*1024, 3584)} ; @tag WM')
        self.stamp('d1')
        e(f'''s_lshl_b32 s{sT0}, s{sB}, 5
s_add_u32 s{sT0}, s{sT0}, s{sH}
s_lshl_b32 s{sT0}, s{sT0}, 7
s_add_u32 s{sT0}, s{sT0}, {FBASE}
v_mov_b32 v{T+2}, 0
v_and_b32 v{T+3}, 15, v{L}
v_lshlrev_b32 v{T+5}, 2, v{T+3}
v_bfe_u32 v{T+1}, v{L}, 4, 1
v_mul_u32_u24 v{T+1}, {FTWIN}, v{T+1}
v_add_u32 v{T+5}, v{T+5}, v{T+1}
v_cmp_gt_u32 vcc, 32, v{L}
v_mov_b32 v{T+4}, 0x7fffffff
s_cmp_eq_u32 s{sW}, 0
s_cselect_b64 vcc, vcc, 0
s_nop 1
v_cndmask_b32 v{T+5}, v{T+4}, v{T+5}, vcc
buffer_store_dword v{T+2}, v{T+5}, s[{sWS}:{sWS+3}], s{sT0} offen sc1 ; @tag CLR''')

    def phase1(self):
        e = self.e
        self.stamp('p1wait')
        n0 = self.vm_need({'X0', 'W0'})
        e(f's_waitcnt vmcnt({n0})\ns_barrier')
        self.stamp('p1go')
        e(p1_reads(0, 0, 0))
        def one(G, m0, extra=()):
            G = [[x] for x in G]
            G[0] = [m0] + list(extra) + (['s_nop 0'] if not extra else []) + G[0]
            return G
        K0 = one(dma_K(0, 0, f's{sKsoff}'), f's_mov_b32 m0, s{sW4K}', [f's_mov_b32 s{sKsoff}, s{sRot}'])
        K1 = one(dma_K(1, 1, f's{sKsoff}'), f's_add_u32 m0, s{sW4K}, 16384', [f's_add_u32 s{sKsoff}, s{sRot}, 16384', f's_and_b32 s{sKsoff}, s{sKsoff}, 0x3ffff'])
        K2 = one(dma_K(2, 2, f's{sKsoff}'), f's_add_u32 m0, s{sW4K}, {2*16384}', [f's_add_u32 s{sKsoff}, s{sRot}, {2*16384}', f's_and_b32 s{sKsoff}, s{sKsoff}, 0x3ffff'])
        V0 = one(dma_V(0, 1, f's{sVsoff}'), f's_add_u32 m0, s{sW4K}, {LDS_V+16384}', [f's_add_u32 s{sVsoff}, s{sRot}, 8192', f's_and_b32 s{sVsoff}, s{sVsoff}, 0x3ffff'])
        V1 = one(dma_V(1, 2, f's{sVsoff}'), f's_add_u32 m0, s{sW4K}, {LDS_V+2*16384}', [f's_add_u32 s{sVsoff}, s{sRot}, {8192+16384}', f's_and_b32 s{sVsoff}, s{sVsoff}, 0x3ffff'])
        Vm = [[f's_lshl_b32 s{sT2}, s{sW}, 11', f's_add_u32 m0, s{sT2}, {LDS_V + 8192}', f's_sub_u32 s{sT2}, s{sRot}, s{sT2}']]
        for p in range(2):
            a = lambda w, p=p: LDS_V + 8192 + w * 2048 + p * 1024
            ins = f'buffer_load_dwordx4 v{vDV+p}, s[{sV}:{sV+3}], s{sT2} offen offset:{p*1024}{cfg.kv_flag} lds ; @dma Vm1 {kb(a)}'
            if p == 0: Vm[0].append(ins)
            else: Vm.append([ins])
        plan = {}
        rest = [c for c in range(9) if c not in cfg.coop_pre and c not in cfg.coop_mid and c not in cfg.coop_skip]
        plan[(0, 0)] = [self.coop(c) for c in rest] + dma_W(2)
        for c in range(9):
            g1 = []
            if c + 2 <= 8: g1 += dma_X(c + 2)
            plan[(c, 1)] = g1
            if NWS() == 3 and c + 3 <= 8: plan[(c + 1, 0)] = dma_W(c + 3)
        if NWS() == 4:
            plan[(0, 0)] = plan[(0, 0)] + dma_W(3)
            plan[(2, 0)] = dma_W(4) + dma_W(5)
            plan[(4, 0)] = dma_W(6) + dma_W(7)
            plan[(5, 0)] = dma_W(8)
        K3 = one(dma_K(3, 3, f's{sKsoff}'), f's_add_u32 m0, s{sW4K}, {3*16384}', [f's_add_u32 s{sKsoff}, s{sRot}, {3*16384}', f's_and_b32 s{sKsoff}, s{sKsoff}, 0x3ffff'])
        V2 = one(dma_V(2, 3, f's{sVsoff}'), f's_add_u32 m0, s{sW4K}, {LDS_V+3*16384}', [f's_add_u32 s{sVsoff}, s{sRot}, {8192+2*16384}', f's_and_b32 s{sVsoff}, s{sVsoff}, 0x3ffff'])
        self.prefill = K0 + Vm + K1 + V0 + V1 + K2 + (V2 + K3 if cfg.D == 3 else [])
        plan[cfg.kv0_at] = plan.get(cfg.kv0_at, []) + K0 + Vm
        plan[cfg.k1_at] = plan.get(cfg.k1_at, []) + K1
        plan[(8, 0)] = V0
        if cfg.late_mode == 0:
            plan[(8, 1)] = V1
            self.late_kv = K2 + (V2 + K3 if cfg.D == 3 else []); self.last_kv = []
        elif cfg.late_mode == 1:
            self.late_kv = []; self.last_kv = V1 + K2
        else:
            plan[(8, 1)] = V1
            self.late_kv = []; self.last_kv = K2
        from g2p3 import wo_setup
        fill = wo_setup()
        for c in range(9):
            for n in range(2):
                e(p1_kstep(self, c, n, plan.get((c, n), []), last=(c == 8), fill=(fill if c >= 1 else None)))
            if c == 5: assert not fill
            if c == 3:
                e(f'''s_lshl_b32 s{sT3}, s{sB}, 5
v_mov_b32 v{vT+4}, s{sT3}
v_mov_b32 v{vT+5}, 1
s_cmp_eq_u32 s{sW}, 0
s_cbranch_scc0 L_noreg
s_mov_b64 exec, 1
global_atomic_add v{vT+4}, v{vT+5}, s[16:17] sc1
s_mov_b64 exec, -1''', trace=False)
                self.p('L_noreg:')
            if c == 5: self.stamp('p1c6')
            self.stamp(f'c{c}')
        self.stamp('p1end')
        self.late_kv_pending = self.late_kv; self.late_kv = []
        assert not self.late_kv
    QK = [0, 17, 34, 42]
    PV = [50, 59, 8, 25]
    LS = [58, 67, 16, 33]
    EX = [11, 29, 45, 63]
    VG = [26, 27, 27, 28, 28, 30, 30, 32, 34, 34, 36, 38, 38, 40, 42, 42]
    KG = [44, 46, 46, 50, 50, 52, 54, 54]
    def step(self, k, par, kind='full', extra=None):
        NS = 68
        Sl = Slots(NS)
        it = k // 2; ktile = it + 1; vtile = it
        last = kind == 'last'
        for qt in range(4):
            if not last:
                for m in range(8):
                    ds, kt = m >> 1, m & 1
                    Sl.mf[self.QK[qt] + m] = mfma(vr(S(qt, kt), 4), ar(Kf(m), 4), ar(Qf(qt, ds), 4), vr(CI(qt) if ds == 0 else S(qt, kt), 4))
            if not last or qt >= 2:
                for dt in range(8):
                    Sl.mf[self.PV[qt] + dt] = mfma(vr(O(dt, qt), 4), ar(Vf(dt), 4), vr(P(qt), 4), vr(O(dt, qt), 4))
                Sl.mf[self.LS[qt]] = mfma(vr(LA(qt), 4), ar(aOnes, 4), vr(P(qt), 4), vr(LA(qt), 4))
        mem = [[] for _ in range(NS)]; alu = [[] for _ in range(NS)]
        def put(g, ins):
            g %= NS
            mn = ins.split()[0]
            (mem if mn.startswith('ds_') or mn.startswith('buffer_') or mn.startswith('global_') else alu)[g].append(ins)
        for qt in range(4):
            for i in range(8):
                g = self.EX[qt] + 2 * i
                if last and g < NS: continue
                r = S(qt, i >> 2) + (i & 3)
                put(g, f'v_exp_f32{cfg.exp_enc} v{r}, v{r}')
            for n in range(4):
                g = self.EX[qt] + 4 * n + 3
                if last and g < NS: continue
                r = S(qt, n >> 1) + 2 * (n & 1)
                if last and Sl.mf[g % NS] is None: put(g, 's_nop 0')
                put(g, f'v_cvt_pk_bf16_f32 v{P(qt)+n}, v{r}, v{r+1}')
        if last: Sl.pre[8].append('s_nop 1')
        if not last:
            for n in range(16):
                dt, u = n >> 1, n & 1
                put(self.VG[n], f'ds_read_b64_tr_b16 a[{Vf(dt)+2*u}:{Vf(dt)+2*u+1}], v{vVA+dt} offset:{par*8192+u*4096}')
            if kind == 'full':
                for m in range(8):
                    ds, kt = m >> 1, m & 1
                    put(self.KG[m], f'ds_read_b128 a[{Kf(m)}:{Kf(m)+3}], v{vKA+ds} offset:{par*8192+kt*4096}')
            nk = sum(1 for g in self.KG if g <= 48) if kind == 'full' else 0
            Sl.pre[49].append(f's_waitcnt lgkmcnt({nk})')
            if kind == 'full': Sl.pre[67].append('s_waitcnt lgkmcnt(0)')
            if par == 0:
                Sl.pre[1] += ['s_waitcnt vmcnt(VMW)', 's_barrier']
                for dt in range(8): put([2, 4, 4, 6, 8, 8, 10, 14][dt], f'v_xor_b32{cfg.exp_enc} v{vVA+dt}, s{sXor}, v{vVA+dt}')
                for ds in range(4): put([18, 20, 20, 22][ds], f'v_xor_b32{cfg.exp_enc} v{vKA+ds}, s{sXor}, v{vKA+ds}')
        if extra:
            for g, L in extra.items():
                mem[g % NS] += L
        ab = cfg.ablate
        if ab and kind == 'full':
            if 'exp' in ab: alu = [[x for x in a if not x.startswith('v_exp')] for a in alu]
            if 'cvt' in ab: alu = [[x for x in a if not x.startswith('v_cvt')] for a in alu]
            if 'vrd' in ab: mem = [[x for x in a if not x.startswith('ds_read_b64')] for a in mem]
            if 'krd' in ab: mem = [[x for x in a if not x.startswith('ds_read_b128')] for a in mem]
            if 'dma' in ab: mem = [[x for x in a if not x.startswith('buffer_load')] for a in mem]
            if 'lsum' in ab:
                for qt in range(4): Sl.mf[self.LS[qt]] = None
        for g in range(NS): Sl.post[g] = mem[g] + alu[g]
        if cfg.pad and not last:
            for g in range(3, NS, max(1, NS // cfg.pad)): Sl.post[g].append('s_nop 3')
        self.last_load = Sl.load()
        return Sl.out()

    def kv_extra(self, it, par, doK=True, doV=True):
        slot = (it + 1 + cfg.D) & 3
        X = {}
        if par == 0:
            X.setdefault(61, []).append(f's_and_b32 s{sVsoff}, s{sVsoff}, 0x3ffff')
            if doK:
                D = dma_K(it + 1 + cfg.D, slot, f's{sKsoff}')
                X[12] = [f's_mov_b32 m0, s{sDma}']
                for g, d in zip((16, 24, 58, 64), D): X.setdefault(g, []).append(d)
                X.setdefault(64, []).append(f's_add_u32 s{sKsoff}, s{sKsoff}, 16384')
        else:
            X.setdefault(12, []).append(f's_and_b32 s{sKsoff}, s{sKsoff}, 0x3ffff')
            if doV:
                D = dma_V(it + cfg.D, slot, f's{sVsoff}')
                X[0] = [f's_add_u32 s{sT0}, s{sDma}, {LDS_V}']
                X[4] = [f's_mov_b32 m0, s{sT0}']
                for g, d in zip((8, 20, 58, 64), D): X.setdefault(g, []).append(d)
                X.setdefault(64, []).append(f's_add_u32 s{sVsoff}, s{sVsoff}, 16384')
            if cfg.D == 2:
                X.setdefault(61, []).append(f's_xor_b32 s{sXor}, s{sXor}, 0x8000')
                X.setdefault(62, []).append(f's_xor_b32 s{sDma}, s{sDma}, s{sXor}')
            else:
                X.setdefault(61, []).append(f's_xor_b32 s{sDma}, s{sDma}, s{sXor}')
                X.setdefault(62, []).append(f's_xor_b32 s{sXor}, s{sXor}, 0x8000')
            X.setdefault(62, []).append(f's_add_u32 s{sIter}, s{sIter}, 1')
        return X

    def phase2(self):
        e = self.e
        def epi(qt):
            o = []
            for ds in range(4):
                for x in range(2):
                    b_ = O(2 * ds + x, qt)
                    o += [f'v_pk_mul_f32 v[{b_}:{b_+1}], v[{b_}:{b_+1}], s[{sC}:{sC+1}]', f'v_pk_mul_f32 v[{b_+2}:{b_+3}], v[{b_+2}:{b_+3}], s[{sC}:{sC+1}]']
                t = vC + (ds & 1) * 4
                for x in range(2):
                    b_ = O(2 * ds + x, qt)
                    o += [f'v_cvt_pk_bf16_f32 v{t+2*x}, v{b_}, v{b_+1}', f'v_cvt_pk_bf16_f32 v{t+2*x+1}, v{b_+2}, v{b_+3}']
                o += [f'v_accvgpr_write_b32 a{Qf(qt, ds)+i}, v{t+i}' for i in range(4)]
            return o
        def qk0(qt):
            return [mfma(vr(S(qt, m & 1), 4), ar(Kf(m), 4), ar(Qf(qt, m >> 1), 4), '0' if m < 2 else vr(S(qt, m & 1), 4)) for m in range(8)]
        def weave(valu, mf, lead=2):
            o = []; n = len(valu); step_ = max(1, (n - lead) // max(1, len(mf))); j = 0
            for i, x in enumerate(valu):
                o.append(x)
                if i >= lead and (i - lead) % step_ == 0 and j < len(mf): o += mf[j] if isinstance(mf[j], list) else [mf[j]]; j += 1
            for x in mf[j:]: o += x if isinstance(x, list) else [x]
            return o
        kreads = lambda off: [f'ds_read_b128 a[{Kf(m)}:{Kf(m)+3}], v{vKA+(m>>1)} offset:{off+(m&1)*4096} ; @rd K0' for m in range(8)]
        vreads = [f'ds_read_b64_tr_b16 a[{Vf(n>>1)+2*(n&1)}:{Vf(n>>1)+2*(n&1)+1}], v{vVA+(n>>1)} offset:{8192+(n&1)*4096}' for n in range(16)]
        zero = lambda qt: [mfma(vr(O(dt, qt), 4), ar(aZero, 4), ar(aZero, 4), '0') for dt in range(8)] + [mfma(vr(LA(qt), 4), ar(aZero, 4), ar(aZero, 4), '0')]
        wait0 = f's_waitcnt vmcnt({self.vm_need({"K0", "Vm1"})})'
        late = self.late_kv_pending
        e('s_nop 3')
        e(wait0); e('s_barrier')
        self.stamp('q0')
        e(kreads(0)); e(vreads)
        e(epi(0))
        self.stamp('q1')
        e('s_waitcnt lgkmcnt(15)\ns_waitcnt lgkmcnt(0)')
        e(weave(epi(1), qk0(0)))
        h_ = len(late) // 2
        e(weave(epi(2), qk0(1) + [g for g in late[:h_]]))
        e(weave(epi(3), qk0(2) + [g for g in late[h_:]]))
        self.stamp('q2')
        e('s_branch L_p2q3', trace=False)
        self.p('L_p2start:')
        R = [wait0, 's_barrier'] + kreads(0) + vreads + ['s_waitcnt lgkmcnt(0)'] + qk0(0) + qk0(1) + qk0(2)
        self.e([x.split(';')[0].strip() for x in R], trace=False)
        self.p('L_p2q3:')
        q3 = qk0(3); k1 = kreads(8192)
        z = zero(2) + zero(3)
        e('s_nop 1')
        for m in range(8):
            e(q3[m]); e(k1[m]); e(z[2*m:2*m+2])
        e(z[16:])
        self.stamp('q3')
        for qt in range(4):
            a, b = S(qt, 0), S(qt, 1); m = vT + qt
            e(f'v_max3_f32 v{m}, v{a}, v{a+1}, v{vMG+qt}\nv_max3_f32 v{m}, v{m}, v{a+2}, v{a+3}\nv_max3_f32 v{m}, v{m}, v{b}, v{b+1}\nv_max3_f32 v{m}, v{m}, v{b+2}, v{b+3}')
        for sw in ('v_permlane32_swap_b32', 'v_permlane16_swap_b32'):
            for qt in range(4): e(f'v_mov_b32 v{vC+qt}, v{vT+qt}')
            e('s_nop 0')
            for qt in range(4): e(f'{sw} v{vT+qt}, v{vC+qt}')
            for qt in range(4): e(f'v_max_f32 v{vT+qt}, v{vT+qt}, v{vC+qt}')
        for qt in range(4):
            for r in range(4): e(f'v_sub_f32 v{CI(qt)+r}, 0, v{vT+qt}')
        for qt in range(4):
            for i in range(8): e(f'v_add_f32 v{S(qt,0)+i}, v{S(qt,0)+i}, v{CI(qt)}')
        for qt in range(3):
            for i in range(8): e(f'v_exp_f32 v{S(qt,0)+i}, v{S(qt,0)+i}')
        for i in range(3): e(f'v_exp_f32 v{S(3,0)+i}, v{S(3,0)+i}')
        for qt in range(3):
            for n in range(4):
                r = S(qt, n >> 1) + 2 * (n & 1)
                e(f'v_cvt_pk_bf16_f32 v{P(qt)+n}, v{r}, v{r+1}')
        e(f'v_cvt_pk_bf16_f32 v{P(3)}, v{S(3,0)}, v{S(3,0)+1}')
        self.stamp('q4')
        e('s_waitcnt lgkmcnt(0)')
        for qt in range(2):
            for dt in range(8):
                e(mfma(vr(O(dt, qt), 4), ar(Vf(dt), 4), vr(P(qt), 4), '0'))
            e(mfma(vr(LA(qt), 4), ar(aOnes, 4), vr(P(qt), 4), '0'))
        for g in self.last_kv: e(g)
        e(f'''s_mov_b32 s{sXor}, 0x4000
s_add_u32 s{sDma}, s{sW4K}, {((1+cfg.D)&3)*16384}
s_add_u32 s{sKsoff}, s{sRot}, {(1+cfg.D)*16384}
s_and_b32 s{sKsoff}, s{sKsoff}, 0x3ffff
s_add_u32 s{sVsoff}, s{sRot}, {8192+cfg.D*16384}
s_and_b32 s{sVsoff}, s{sVsoff}, 0x3ffff
s_mov_b32 s{sIter}, 0''')
        self.stamp('p2loop')
        self.p(f'.p2align {cfg.loop_align}')
        for _ in range(cfg.loop_nop): self.p('s_nop 0')
        self.p('L_p2:')
        texts = []
        NL = 12
        for it in range(NL):
            L = self.step(2 * it, 0, 'full', self.kv_extra(it, 0)); l0 = self.last_load
            L += self.step(2 * it + 1, 1, 'full', self.kv_extra(it, 1)); l1 = self.last_load
            L = [x.replace('VMW', str(8 * (cfg.D - 1))) for x in L]
            L += [f's_cmp_lt_u32 s{sIter}, {NL}', 's_cbranch_scc1 L_p2']
            texts.append([x.split(';')[0].strip() for x in L])
            if it == 0:
                self.p(L); self.loop_body = L
                print('gap load step0:', l0); print('gap load step1:', l1)
            self.tr.extend(L)
        assert all(t == texts[0] for t in texts)
        self.stamp('p2peel')
        from g2p3 import peeled_tail
        peeled_tail(self)

    def fallback(self):
        e = lambda x: self.e(x, trace=False)
        self.p('L_fallback:')
        e('s_waitcnt vmcnt(0) lgkmcnt(0)\ns_barrier')
        e(kv_dma_addr()); e(kv_read_addr())
        for i in range(4): e(f'v_mov_b32 v{vMG+i}, 0xff800000')
        e(f's_mov_b32 s{sKsoff}, s{sW4K}')
        self.p('L_fb_loop:')
        e(f's_mov_b32 m0, s{sW4K}\ns_nop 0')
        e([x.split(';')[0] for x in dma_K(0, 0, f's{sKsoff}')])
        e('s_waitcnt vmcnt(0)\ns_barrier')
        for half in range(2):
            for m in range(8):
                ds, kt = m >> 1, m & 1
                e(f'ds_read_b128 a[{Kf(m)}:{Kf(m)+3}], v{vKA+ds} offset:{half*8192+kt*4096}')
            e('s_waitcnt lgkmcnt(0)')
            for qt in range(4):
                for m in range(8):
                    ds, kt = m >> 1, m & 1
                    e(mfma(vr(S(qt, kt), 4), ar(Kf(m), 4), ar(Qf(qt, ds), 4), '0' if ds == 0 else vr(S(qt, kt), 4)))
            e('s_nop 7')
            for qt in range(4):
                a, b = S(qt, 0), S(qt, 1); m = vMG + qt
                e(f'v_max3_f32 v{m}, v{m}, v{a}, v{a+1}\nv_max3_f32 v{m}, v{m}, v{a+2}, v{a+3}\nv_max3_f32 v{m}, v{m}, v{b}, v{b+1}\nv_max3_f32 v{m}, v{m}, v{b+2}, v{b+3}')
        e(f's_barrier\ns_add_u32 s{sKsoff}, s{sKsoff}, 16384\ns_cmp_lt_u32 s{sKsoff}, 262144\ns_cbranch_scc1 L_fb_loop')
        for g in self.prefill: e([x.split(';')[0] for x in g])
        e(f's_mov_b32 s{sMode}, 1\ns_branch L_p2start')

    def finish_stamps(self):
        if not cfg.stamps: return
        e = self.e
        if cfg.dbgstamps:
            e('s_waitcnt lgkmcnt(0)', trace=False)
            for n_, (wg, base) in enumerate(zip(cfg.dbgstamps, (1, 5, 9, 12))):
                e(f's_cmp_eq_u32 s2, {wg}\ns_cbranch_scc0 L_nodbg{n_}\ns_cmp_eq_u32 s{sW}, 0\ns_cbranch_scc0 L_nodbg{n_}', trace=False)
                vals = [(stamp_reg(1), stamp_reg(0)), (stamp_reg(2), stamp_reg(0)), (stamp_reg(2) + 2, stamp_reg(1) + 2)]
                for i, (x, y) in enumerate(vals):
                    e(f's_sub_u32 s{sT0}, s{x}, s{y}\nv_mov_b32 v{vT+2}, s{sT0}\nv_mov_b32 v{vT}, {4*(base+i)}\nglobal_store_dword v{vT}, v{vT+2}, s[16:17]', trace=False)
                self.p(f'L_nodbg{n_}:')
            return
        e(f'''s_waitcnt lgkmcnt(0)
s_lshl_b32 s{sT0}, s2, 2
s_add_u32 s{sT0}, s{sT0}, s{sW}
s_lshl_b32 s{sT0}, s{sT0}, 8
s_add_u32 s{sT0}, s{sT0}, {STAMPBASE}
s_add_u32 s18, s18, s{sT0}
s_addc_u32 s19, s19, 0
v_mov_b32 v{vT}, 0''')
        for i in range(self.nstamp):
            for j in range(4): e(f'v_mov_b32 v{vT+2+j}, s{stamp_reg(i)+j}')
            e(f'global_store_dwordx4 v{vT}, v[{vT+2}:{vT+5}], s[18:19] offset:{16*i}\ns_nop 1')

def build():
    k = Kernel()
    k.header(); k.setup(); k.phase1(); k.phase2()
    from g2p3 import phase3
    phase3(k)
    k.stamp('end')
    k.finish_stamps()
    k.e('s_endpgm', trace=False)
    k.fallback()
    k.footer()
    return k

def main():
    import argparse
    ap = argparse.ArgumentParser()
    ap.add_argument('-o', default=f'cdna_kernels/{NAME}.s')
    ap.add_argument('--stamps', default='')
    ap.add_argument('--set', action='append', default=[])
    a = ap.parse_args()
    cfg.stamps = a.stamps.split(',') if a.stamps else False
    for kv in a.set:
        kk, vv = kv.split('=', 1)
        try: vv = eval(vv)
        except Exception: pass
        setattr(cfg, kk, vv)
    k = build()
    errs = simulate(k.tr, 'trace')
    errs += check_hazards(k.tr, 'haz')
    txt = k.p.text()
    txt = txt.replace('CODEOFF', f'((L_pc - {NAME}_kernel) & 0xffffff00)').replace('CODELEN', f'(L_codeend - {NAME}_kernel - 128)')
    open(a.o, 'w').write(txt)
    print('written', a.o, 'errors:', len(errs), 'trace len', len(k.tr))
```

```python
from asmlib import *
import g2 as G
from g2 import cfg, mfma, kb, Slots

REG = [13, 14, 0, 1, 2, 7, 3, 4, 8, 9, 5, 6, 10, 11, 12, 15]
WSLOT = {'t12': (0, 3), 't13': (3, 3), 't14': (6, 4), 't15': (10, 3), 'tP': (13, 3)}
WNAME = list(WSLOT)
def rbase(j):
    if j < 7: return j * 9216
    if j < 15: return 81920 + (j - 7) * 9216
    return 65536
sWoB = 4
sWoS = 9
sPh = 96
sOst = 99; sPst = 100; sFl = 101; sCnt = 59
vWoD = G.vWoD
aWoD = 240
vR = 8
vAd = 12
vOwn = 32
vD = 112
aPart = 0
aA = 192
def D(nt, qt): return vD + (nt * 4 + qt) * 4
def Own(qt, ks): return vOwn + (qt * 4 + ks) * 4
def Part(hp, qt, ks): return aPart + hp * 64 + (qt * 4 + ks) * 4

def wo_setup():
    T = G.vT; L = G.vLane
    out = []
    for p in range(9):
        out += [f'v_add_u32 v{T}, {64*p}, v{L}', f'v_mul_u32_u24 v{T+1}, 3641, v{T}', f'v_lshrrev_b32 v{T+1}, 16, v{T+1}',
                f'v_mul_u32_u24 v{T+2}, 18, v{T+1}', f'v_sub_u32 v{T+2}, v{T}, v{T+2}', f'v_mul_u32_u24 v{T+1}, 1152, v{T+1}',
                f'v_lshl_add_u32 v{T+1}, v{T+2}, 4, v{T+1}']
        if p % 4: out.append(f'v_subrev_u32 v{T+1}, {(p%4)*1024}, v{T+1}')
        out.append(f'v_accvgpr_write_b32 a{aWoD+p}, v{T+1}')
    for i, name in enumerate(WNAME):
        c0, nw = WSLOT[name]
        t = [rbase(REG[c0 + min(w, nw - 1)]) for w in range(4)]
        out += [f's_mov_b32 s{sWoB+i}, {t[0]}']
        for w in range(1, 4): out += [[f's_cmp_eq_u32 s{G.sW}, {w}', f's_cselect_b32 s{sWoB+i}, {t[w]}, s{sWoB+i}']]
        out += [f's_add_u32 s{G.sT1}, s{G.sW}, {c0}', f's_lshr_b32 s{G.sT0}, s{G.sT1}, 2', f's_add_u32 s{G.sT0}, s{G.sT0}, s{G.sNb}', f's_and_b32 s{G.sT0}, s{G.sT0}, 3',
                f's_lshl_b32 s{G.sT0}, s{G.sT0}, 2', f's_and_b32 s{G.sT1}, s{G.sT1}, 3', f's_add_u32 s{G.sT0}, s{G.sT0}, s{G.sT1}', f's_mul_i32 s{sWoS+i}, s{G.sT0}, {32*1152}']
    return out

_skip = [0]
def wo_dma(name, vbase=None):
    i = WNAME.index(name); c0, nw = WSLOT[name]
    L = []
    for p in range(9):
        g = []
        if p % 4 == 0: g += [f's_add_u32 m0, s{sWoB+i}, {p*1024}']
        ins = f'buffer_load_dwordx4 v{(vbase or vWoD)+p}, s[{G.sWo}:{G.sWo+3}], s{sWoS+i} offen offset:{(p%4)*1024}{cfg.wo_flag} lds'
        if nw == 4:
            a = lambda w, p=p: rbase(REG[c0 + w]) + p * 1024
            if p % 4 == 0: g.append('s_nop 0')
            g.append(f'{ins} ; @dma WO{name} {kb(a)}')
        else:
            _skip[0] += 1
            g += [f's_cbranch_vccnz L_wsk{_skip[0]}', f'{ins} ;@notrace', f'L_wsk{_skip[0]}:']
        L.append(g)
    return L

def spread(groups, gaps):
    X = {}
    for g, pos in zip(groups, gaps): X.setdefault(pos, []).extend(g)
    return X
def merge(a, b):
    for g, L in b.items(): a.setdefault(g, []).extend(L)
    return a

def peeled_tail(k):
    e = k.e
    cnt = [0]
    def emit(step_lines, tags):
        n = k.vm_need(tags); ni = k.vm_need(tags, incl=True)
        out = []
        for x in step_lines:
            if 'VMW' in x and ni != n:
                cnt[0] += 1
                out += [f's_cbranch_vccnz L_vwa{cnt[0]} ;@skip', x.replace('VMW', str(ni)) + ' ;@skip', f's_branch L_vwb{cnt[0]} ;@skip', f'L_vwa{cnt[0]}:', x.replace('VMW', str(n)), f'L_vwb{cnt[0]}:']
            else: out.append(x.replace('VMW', str(n)))
        emit2(out)
    def emit2(lines):
        for x in lines:
            if '@notrace' in x:
                e(x.replace(' ;@notrace', ''), trace=False); k.nt_marks.append(len(k.tr))
            elif '@skip' in x: e(x.replace(' ;@skip', ''), trace=False)
            elif x.endswith(':') or x.startswith('s_cbranch_vccnz L_wsk'): e(x, trace=False)
            else: e(x)
    k.emit2 = emit2
    reg = [f's_lshl_b32 s{G.sT0}, s{G.sB}, 5', f'v_mov_b32 v{G.vT2}, s{G.sT0}', f'global_load_dword v{G.vT2}, v{G.vT2}, s[16:17] sc1']
    D_ = cfg.D
    assert D_ == 2
    rd = [f'v_accvgpr_read_b32 v{vWoD+p}, a{aWoD+p}' for p in range(9)]
    e(f's_cmp_eq_u32 s{G.sW}, 3\ns_cselect_b64 vcc, -1, 0')
    W = wo_dma('t12')
    Dk = G.dma_K(15, 3, f's{G.sKsoff}')
    X = {2: [rd[0]], 4: [f's_mov_b32 m0, s{G.sDma}'], 6: [rd[1]], 12: [Dk[0], rd[2]], 16: [Dk[1], rd[3]], 24: [Dk[2]], 56: [Dk[3]], 58: [rd[4], rd[5]], 60: [rd[6]], 61: [rd[7], rd[8]],
         62: [f's_and_b32 s{G.sVsoff}, s{G.sVsoff}, 0x3ffff']}
    X = {g: L for g, L in X.items()}
    emit(k.step(24, 0, 'full', X), {'V12', 'K13'})
    Dv = G.dma_V(14, 3, f's{G.sVsoff}')
    X = {0: [f's_add_u32 m0, s{G.sDma}, {G.LDS_V}'], 2: [Dv[0]], 4: [Dv[1]], 6: [Dv[2]], 8: [Dv[3]], 10: [f's_add_u32 s{G.sVsoff}, s{G.sVsoff}, 16384'],
         61: [f's_xor_b32 s{G.sXor}, s{G.sXor}, 0x8000'], 62: [f's_xor_b32 s{G.sDma}, s{G.sDma}, s{G.sXor}']}
    X = merge(X, spread(W, [12, 16, 20, 24, 44, 48, 56, 58, 64]))
    X = merge(X, {60: reg[:1], 64: [], 66: []})
    emit(k.step(25, 1, 'full', X), set())
    e(reg[1:])
    k.stamp('it12')
    W = wo_dma('t13')
    Dv = G.dma_V(15, 0, f's{G.sVsoff}')
    X = {2: [f's_and_b32 s{G.sVsoff}, s{G.sVsoff}, 0x3ffff'], 4: [f's_add_u32 m0, s{G.sDma}, {G.LDS_V}'], 12: [Dv[0]], 16: [Dv[1]], 24: [Dv[2]], 56: [Dv[3]]}
    X = merge(X, spread(W[:2], [60, 64]))
    emit(k.step(26, 0, 'full', X), {'V13', 'K14'})
    X = spread(W[2:], [0, 8, 16, 24, 56, 60, 64]); X.setdefault(61, []).append(f's_xor_b32 s{G.sXor}, s{G.sXor}, 0x8000')
    emit(k.step(27, 1, 'full', X), set())
    k.stamp('it13')
    W = wo_dma('t14')
    emit(k.step(28, 0, 'full', spread(W[:4], [12, 24, 58, 64])), {'V14', 'K15'})
    X = spread(W[4:], [4, 12, 20, 58, 64]); X.setdefault(61, []).append(f's_xor_b32 s{G.sXor}, s{G.sXor}, 0x8000')
    emit(k.step(29, 1, 'full', X), set())
    k.stamp('it14')
    W = wo_dma('t15')
    L30 = k.step(30, 0, 'nok', spread(W[:7], [12, 20, 44, 50, 56, 60, 64]))
    assert k.vm_need({'V15'}) == 9
    emit2([x.replace('VMW', '9') for x in L30])
    k.stamp('s30')
    emit2(k.step(31, 1, 'last', spread(W[7:], [2, 6])))
    k.stamp('p2end')

def poll_dual(k, name, vaddr, soff_reg, nbits):
    e = k.e; T = G.vT
    full = (1 << (1 << nbits)) - 1
    e(f's_mov_b32 s{sCnt}, 0\ns_mov_b32 s{G.sT2}, 0\ns_add_u32 s{G.sT3 if False else 88}, s{soff_reg}, {G.FTWIN}', trace=False)
    k.p(f'L_poll_{name}:')
    e(f'''s_and_b32 s{G.sT1}, s{sCnt}, 7
s_cmp_eq_u32 s{G.sT1}, 7
s_cselect_b32 s89, s{soff_reg}, s88
s_add_u32 s{sCnt}, s{sCnt}, 1
buffer_load_dword v{T+1}, v{vaddr}, s[{G.sWS}:{G.sWS+3}], s89 offen sc1
s_waitcnt vmcnt(0)
v_cmp_eq_u32 vcc, 1, v{T+1}
s_nop 1
s_or_b32 s{G.sT2}, s{G.sT2}, vcc_lo
s_and_b32 s{G.sT1}, s{G.sT2}, {full}
s_cmp_eq_u32 s{G.sT1}, {full}
s_cbranch_scc1 L_pollx_{name}
s_cmp_ge_u32 s{sCnt}, 0x8000
s_cbranch_scc0 L_poll_{name}''', trace=False)
    k.p(f'L_pollx_{name}:')
    k.tr.append('s_waitcnt vmcnt(0)')

def poll(k, name, vaddr, soff_reg):
    e = k.e
    e(f's_mov_b32 s{sCnt}, 0', trace=False)
    k.p(f'L_poll_{name}:')
    e(f'''buffer_load_dword v{G.vT+1}, v{vaddr}, s[{G.sWS}:{G.sWS+3}], s{soff_reg} offen sc1
s_add_u32 s{sCnt}, s{sCnt}, 1
s_waitcnt vmcnt(0)
v_cmp_ne_u32 vcc, 1, v{G.vT+1}
s_cmp_ge_u32 s{sCnt}, 0x4000
s_cbranch_scc1 L_pollx_{name}
s_cbranch_vccz L_pollx_{name}
s_sleep 1
s_branch L_poll_{name}''', trace=False)
    k.p(f'L_pollx_{name}:')
    k.tr.append('s_waitcnt vmcnt(0)')

def set_flag(k, off_vreg, dual=False):
    o = ['s_mov_b64 exec, 1']
    if dual: o.append(f'buffer_store_dword v{vOne}, v{off_vreg}, s[{G.sWS}:{G.sWS+3}], s91 offen')
    o += [f'buffer_store_dword v{vOne}, v{off_vreg}, s[{G.sWS}:{G.sWS+3}], s{sFl} offen sc1', 's_mov_b64 exec, -1']
    return o

vOne = 20; vF1 = 21; vF2a = 24; vF2b = 25
vPk = [32, 68]

def phase3(k):
    e = k.e; T = G.vT; L = G.vLane
    e('s_nop 4')
    rp = [T, T + 2, T + 4, 122]
    sBad = 88
    for qt in range(4): e(f'v_rcp_f32 v{rp[qt]}, v{G.LA(qt)}')
    e(f's_mov_b32 s{G.sT0}, 0x6f800000')
    for qt in range(4):
        e(f'v_cmp_nlt_f32 vcc, v{G.LA(qt)}, v{G.LA(qt)}') if False else None
    e(f'v_mov_b32 v{G.vT2+1}, s{G.sT0}')
    e(f's_mov_b64 s[{sBad}:{sBad+1}], 0')
    for qt in range(4):
        e(f'v_cmp_nlt_f32 vcc, v{G.LA(qt)}, v{G.vT2+1}\ns_nop 0\ns_or_b64 s[{sBad}:{sBad+1}], s[{sBad}:{sBad+1}], vcc')
    e(f'''v_lshlrev_b32 v{vAd}, 4, v{L}
s_lshl_b32 s{sFl}, s{G.sB}, 5
s_add_u32 s{sFl}, s{sFl}, s{G.sH}
s_lshl_b32 s{sOst}, s{sFl}, 2
s_add_u32 s{sOst}, s{sOst}, s{G.sW}
s_lshl_b32 s{sOst}, s{sOst}, 14
s_lshl_b32 s{sFl}, s{sFl}, 7
s_add_u32 s{sFl}, s{sFl}, {G.FBASE}
s_add_u32 s91, s{sFl}, {G.FTWIN}''')
    for qt in range(4): e(f'v_mov_b32 v{rp[qt]+1}, v{rp[qt]}')
    for p in range(9): e(f'v_mov_b32 v{96+p}, v{vWoD+p}')
    for i in range(1, 4): e(f'v_add_u32 v{vAd+i}, {4096*i}, v{vAd}')
    vPr = 108
    prev = None; nprobe = 0
    for ks in range(4):
        for qt in range(4):
            for x in range(2):
                b = G.O(2 * ks + x, qt); r = rp[qt]
                e(f'v_pk_mul_f32 v[{b}:{b+1}], v[{b}:{b+1}], v[{r}:{r+1}]\nv_pk_mul_f32 v[{b+2}:{b+3}], v[{b+2}:{b+3}], v[{r}:{r+1}]')
            if prev is not None:
                e(mfma(vr(vPr, 4), ar(G.aZero, 4), vr(prev, 4), '0' if nprobe == 0 else vr(vPr, 4))); nprobe += 1
            for x in range(2):
                b = G.O(2 * ks + x, qt); d = Own(qt, ks) + 2 * x
                e(f'v_cvt_pk_bf16_f32 v{d}, v{b}, v{b+1}\nv_cvt_pk_bf16_f32 v{d+1}, v{b+2}, v{b+3}')
            if ks == 0 or cfg.early_ost:
                e(f'buffer_store_dwordx4 v[{Own(qt,ks)}:{Own(qt,ks)+3}], v{vAd+qt}, s[{G.sWS}:{G.sWS+3}], s{sOst} offen offset:{ks*1024}{cfg.ost_flag}')
            prev = Own(qt, ks)
    e('s_nop 1')
    e(mfma(vr(vPr, 4), ar(G.aZero, 4), vr(prev, 4), vr(vPr, 4)))
    ost = [f'buffer_store_dwordx4 v[{Own(qt,ks)}:{Own(qt,ks)+3}], v{vAd+qt}, s[{G.sWS}:{G.sWS+3}], s{sOst} offen offset:{ks*1024} sc1' for ks in range(1, 4) for qt in range(4)]
    if cfg.early_ost: ost = []
    e(f'''s_lshl_b32 s{G.sT0}, s{G.sW}, 2
s_add_u32 s{G.sT0}, s{G.sT0}, 64512
v_mov_b32 v{T}, s{G.sT0}
v_mov_b32 v{vOne}, 1
s_nop 3
v_cmp_u_f32 vcc, v{vPr}, v{vPr}
s_nop 0
s_or_b64 s[{sBad}:{sBad+1}], s[{sBad}:{sBad+1}], vcc
s_cmp_lg_u64 s[{sBad}:{sBad+1}], 0
s_cselect_b32 s{G.sT0}, 1, 0
v_mov_b32 v{T+1}, s{G.sT0}
ds_write_b32 v{T}, v{T+1}
v_mov_b32 v{T+2}, 64512''')
    n = k.vm_need({'REG', 'WOt14'})
    e(f's_waitcnt vmcnt({n}) lgkmcnt(0)\ns_barrier')
    e(f'ds_read_b128 v[124:127], v{T+2}')
    e(f'v_readfirstlane_b32 s90, v{G.vT2}')
    k.stamp('p3pk')
    e(f'''v_lshrrev_b32 v30, 4, v{L}
v_bfe_u32 v31, v{L}, 2, 2
v_lshl_add_u32 v30, v30, 2, v31
v_mul_u32_u24 v30, 288, v30
v_and_b32 v31, 3, v{L}
v_lshl_add_u32 v{vR}, v31, 3, v30
v_add_u32 v{vR+1}, 61440, v{vR}
v_add_u32 v{vR+2}, 122880, v{vR}
v_mov_b32 v{vOne}, 1
s_lshl_b32 s{G.sT0}, s{G.sW}, 2
v_mov_b32 v{vF1}, s{G.sT0}
s_lshl_b32 s{G.sT0}, s{G.sW}, 3
s_add_u32 s{G.sT0}, s{G.sT0}, 16
v_mov_b32 v{vF2a}, s{G.sT0}
s_add_u32 s{G.sT0}, s{G.sT0}, 4
v_mov_b32 v{vF2b}, s{G.sT0}''')
    e(f'''s_waitcnt lgkmcnt(0)
v_or_b32 v124, v124, v125
v_or3_b32 v124, v124, v126, v127
s_nop 0
v_readfirstlane_b32 s{G.sT0}, v124
s_andn2_b32 s{G.sT0}, s{G.sT0}, s{G.sMode}
s_cmp_lg_u32 s{G.sT0}, 0
s_cbranch_scc1 L_fallback''')
    assert cfg.early_ost
    e(f's_cmp_eq_u32 s{G.sW}, 3\ns_cselect_b64 vcc, -1, 0')
    def a_read(c, nt, slot):
        base = rbase(REG[c]); idx = base // 61440
        return [f'ds_read_b64_tr_b16 a[{aA+4*slot+2*u}:{aA+4*slot+2*u+1}], v{vR+idx} offset:{base-61440*idx+u*4608+nt*32} ; ' + ('@rd WOt14' if c >= 6 else '') for u in range(2)]
    seq = [(c, nt, (0, 1, 2, 3)) for c in range(4) for nt in range(9)]
    seq += [(c, nt, (0, 1)) for c in range(4, 16) for nt in range(9)]
    seq += [(c, nt, (2, 3)) for c in range(4, 16) for nt in range(9)]
    AH_OWN, AH = 6, 8
    for i in range(AH_OWN): e(a_read(seq[i][0], seq[i][1], i % 16))
    for hp in range(3):
        e(f'''s_add_u32 s{G.sT0}, s{G.sNb}, {hp+1}
s_and_b32 s{G.sT0}, s{G.sT0}, 3
s_lshl_b32 s{G.sT1}, s{G.sKg}, 2
s_add_u32 s{G.sT0}, s{G.sT0}, s{G.sT1}
s_lshl_b32 s{G.sT1}, s{G.sB}, 5
s_add_u32 s{G.sT0}, s{G.sT0}, s{G.sT1}
s_lshl_b32 s{G.sT0}, s{G.sT0}, 2
s_add_u32 s{G.sT0}, s{G.sT0}, s{G.sW}
s_lshl_b32 s{sPh+hp}, s{G.sT0}, 14''')
    k.stamp('p3go')
    def part_load(hp, qt, ks):
        return f'buffer_load_dwordx4 a[{Part(hp,qt,ks)}:{Part(hp,qt,ks)+3}], v{vAd+qt}, s[{G.sWS}:{G.sWS+3}], s{sPh+hp} offen offset:{ks*1024}'
    loads = [[part_load(hp, qt, ks) for ks in range(4) for qt in (2 * half, 2 * half + 1)] for half in range(2) for hp in range(3)]
    paddr = f'''s_lshl_b32 s{G.sT0}, s{G.sB}, 2
s_add_u32 s{G.sT0}, s{G.sT0}, s{G.sNb}
s_lshl_b32 s{G.sT0}, s{G.sT0}, 3
s_lshl_b32 s{G.sT1}, s{G.sW}, 1
s_add_u32 s{G.sT1}, s{G.sT0}, s{G.sT1}
s_lshl_b32 s{G.sT1}, s{G.sT1}, 4
s_add_u32 s{G.sT1}, s{G.sT1}, s{G.sKg}
s_mul_i32 s{sPst}, s{G.sT1}, 5120
s_add_u32 s{sPst}, s{sPst}, {G.PBASE}
s_add_u32 s{G.sT0}, s{G.sT0}, s{G.sKg}
s_mul_i32 s{G.sT3}, s{G.sT0}, {16*5120}
s_add_u32 s{G.sT3}, s{G.sT3}, {G.PBASE}'''
    def pack_store(half):
        cv = []; st = []
        for x in range(2):
            qt = 2 * half + x
            for blk in range(5):
                d = D(2 * blk, qt)
                cv += [f'v_cvt_pk_bf16_f32 v{d}, v{d}, v{d+1}', f'v_cvt_pk_bf16_f32 v{d+1}, v{d+2}, v{d+3}']
                if blk < 4:
                    b_ = D(2 * blk + 1, qt)
                    cv += [f'v_cvt_pk_bf16_f32 v{d+2}, v{b_}, v{b_+1}', f'v_cvt_pk_bf16_f32 v{d+3}, v{b_+2}, v{b_+3}']
                g = []
                if blk == 0: g.append(f's_add_u32 s{sOst}, s{sPst}, {x*81920 + half*40960}')
                g.append(f'buffer_store_dwordx4 v[{d}:{d+3}], v{vAd + (blk >> 2)}, s[{G.sWS}:{G.sWS+3}], s{sOst} offen offset:{(blk & 3)*1024} sc1')
                st.append(g)
        return cv, st
    R = 32; SUM = 80
    def fin_addr(part):
        return f'''v_and_b32 v{T}, 7, v{L}
v_lshlrev_b32 v{T}, 2, v{T}
v_add_u32 v{T}, s{G.sNb}, v{T}
v_lshlrev_b32 v{T}, 7, v{T}
s_lshr_b32 s{G.sT0}, s{G.sKg}, 1
s_lshl_b32 s{G.sT0}, s{G.sT0}, 3
s_add_u32 s{G.sT0}, s{G.sT0}, {16 + 4*part}
v_add_u32 v{T}, s{G.sT0}, v{T}
s_lshl_b32 s{G.sT0}, s{G.sB}, 12
s_add_u32 s{G.sT0}, s{G.sT0}, {G.FBASE}'''
    def fin_loads(part):
        o = []
        for src in range(8):
            o.append([f's_add_u32 s{G.sT1}, s{G.sT3}, {part*40960 + src*5120}',
                      f'buffer_load_dwordx4 v[{R+4*src}:{R+4*src+3}], v{vAd+4}, s[{G.sWS}:{G.sWS+3}], s{G.sT1} offen',
                      f'buffer_load_dwordx2 v[{R+32+2*src}:{R+32+2*src+1}], v{vAd+5}, s[{G.sWS}:{G.sWS+3}], s{G.sT1} offen'])
        return o
    def fin_reduce(part):
        e(f's_waitcnt vmcnt({k.vm_need({f"FIN{part}"})})')
        e(f's_mov_b32 s{G.sT1}, 0x00003f80\ns_mov_b32 s{G.sT2}, 0x3f800000')
        for src in range(8):
            for j in range(4):
                for hi_ in range(2):
                    acc = SUM + 2 * j + hi_
                    e(f'v_dot2_f32_bf16 v{acc}, v{R+4*src+j}, s{G.sT1+hi_}, {"0" if src == 0 else f"v{acc}"}')
            for j in range(2):
                for hi_ in range(2):
                    acc = SUM + 8 + 2 * j + hi_
                    e(f'v_dot2_f32_bf16 v{acc}, v{R+32+2*src+j}, s{G.sT1+hi_}, {"0" if src == 0 else f"v{acc}"}')
        e('s_nop 2')
        for j in range(6): e(f'v_cvt_pk_bf16_f32 v{SUM+12+j}, v{SUM+2*j}, v{SUM+2*j+1}')
        e(f'''s_add_u32 s{G.sT0}, s{sPh}, {part*32*1152}
s_cmp_ge_u32 s{G.sW}, 1
s_cselect_b32 s{G.sT1}, 0x7ffff000, s{G.sT0}
s_lshl_b32 s{G.sT2}, s{G.sW}, 6
s_add_u32 s{G.sT0}, s{G.sT0}, s{G.sT2}
buffer_store_dwordx2 v[{SUM+12}:{SUM+13}], v{vAd+6}, s[{G.sOut}:{G.sOut+3}], s{G.sT0} offen{cfg.out_flag}
buffer_store_dwordx2 v[{SUM+14}:{SUM+15}], v{vAd+6}, s[{G.sOut}:{G.sOut+3}], s{G.sT0} offen offset:32{cfg.out_flag}
buffer_store_dwordx2 v[{SUM+16}:{SUM+17}], v{vAd+6}, s[{G.sOut}:{G.sOut+3}], s{G.sT1} offen offset:256{cfg.out_flag}''')
    issued = AH_OWN
    SPL, POL = cfg.own_split
    seg_bounds = [(0, 9 * SPL), (9 * SPL, 9 * POL), (9 * POL, 36), (36, 144), (144, 252)]
    extra = {}
    def place(i0, items, every):
        for n_, it_ in enumerate(items):
            extra.setdefault(i0 + n_ * every, []).append(it_ if isinstance(it_, list) else [it_])
    if ost: place(1, ost, max(1, (9 * SPL - 2) // len(ost)))
    place(36 + 1, loads[2], 1)
    place(36 + 18, loads[3], cfg.l3_every)
    if cfg.tp_late: place(36 + 21, wo_dma('tP', 96), 3)
    place(36 + 70, loads[4], 2)
    place(36 + 88, loads[5], 2)
    for seg, (lo, hi) in enumerate(seg_bounds):
        if seg == 1:
            nn = k.vm_need({'OST'})
            e(f's_waitcnt vmcnt({nn})')
            e(set_flag(k, vF1, dual=cfg.dualflag))
            k.stamp('p3d1')
            e(paddr)
            if not cfg.tp_late: place(lo + 1, wo_dma('tP', 96), 2)
        if seg == 2:
            e(f's_mov_b32 s{G.sT2}, s90')
            k.p('L_regchk:')
            e(f's_cmp_ge_u32 s{G.sT2}, 32\ns_cbranch_scc1 L_regok')
            e(f'''s_add_u32 s{G.sPass}, s{G.sPass}, 1
s_cmp_ge_u32 s{G.sPass}, 0x4000
s_cbranch_scc1 L_regok
s_lshl_b32 s{G.sT0}, s{G.sB}, 5
v_mov_b32 v{G.vT2}, s{G.sT0}
s_sleep 1
global_load_dword v{G.vT2}, v{G.vT2}, s[16:17] sc1
s_waitcnt vmcnt(0)
v_readfirstlane_b32 s{G.sT2}, v{G.vT2}
s_branch L_regchk''', trace=False)
            k.p('L_regok:')
            e(f'''v_and_b32 v{T}, 3, v{L}
s_lshl_b32 s{G.sT0}, s{G.sKg}, 2
v_add_u32 v{T}, s{G.sT0}, v{T}
v_lshlrev_b32 v{T}, 7, v{T}
v_add_u32 v{T}, v{T}, v{vF1}
s_lshl_b32 s{G.sT0}, s{G.sB}, 12
s_add_u32 s{G.sT0}, s{G.sT0}, {G.FBASE}''')
            if cfg.dualflag:
                poll_dual(k, 'f1', T, G.sT0, 2)
            else: poll(k, 'f1', T, G.sT0)
            k.stamp('p3f1')
            for x in loads[0] + loads[1]: e(x)
            e(f's_cmp_eq_u32 s{G.sW}, 3\ns_cselect_b64 vcc, -1, 0')
        for i in range(lo, hi):
            c, nt, qts = seq[i]
            half = 0 if seg == 3 else 1
            slot = i % 16
            ah = AH_OWN if seg < 3 else AH
            rd = []
            while issued < min(len(seq), i + ah + 1):
                rd += a_read(seq[issued][0], seq[issued][1], issued % 16); issued += 1
            younger = 2 * (issued - len(rd) // 2 - 1 - i)
            pre = [f's_waitcnt lgkmcnt({min(15, younger)})']
            if seg >= 3 and nt == 0:
                pre.append(f's_waitcnt vmcnt({k.vm_need({f"PH{(c>>2)-1}_{half}_{c&3}"})})')
                if seg == 3 and c == 9: pre.append('s_barrier')
                if cfg.tp_late and seg == 3 and c == 12:
                    last = k.nt_marks[-1]
                    younger = sum(1 for x in k.tr[last:] if x.split()[0].startswith('buffer_') or x.split()[0].startswith('global_'))
                    pre += [f's_waitcnt vmcnt({younger})', 's_barrier']
            hook = None
            if seg == 4 and nt == 0 and c == cfg.f2a_c: hook = 'f2a'
            if seg == 4 and nt == 0 and c == cfg.fin0_c: hook = 'fin0'
            mf = []
            for qt in qts:
                Bop = vr(Own(qt, c), 4) if c < 4 else ar(Part((c >> 2) - 1, qt, c & 3), 4)
                Cop = '0' if c == 0 else vr(D(nt, qt), 4)
                mf.append(mfma(vr(D(nt, qt), 4), ar(aA + 4 * slot, 4), Bop, Cop))
            if hook == 'f2a':
                e(f's_waitcnt vmcnt({k.vm_need({"PS0"})})'); e(set_flag(k, vF2a, dual=cfg.dualflag))
            if hook == 'fin0':
                e(f'''v_lshlrev_b32 v{vAd+4}, 4, v{L}
s_lshl_b32 s{G.sT1}, s{G.sW}, 10
v_add_u32 v{vAd+5}, 4096, v{vAd+4}
v_add_u32 v{vAd+4}, s{G.sT1}, v{vAd+4}
s_cmp_ge_u32 s{G.sW}, 1
s_cselect_b32 s{G.sT1}, 0x40000000, 0
v_add_u32 v{vAd+5}, s{G.sT1}, v{vAd+5}
v_and_b32 v{vAd+6}, 15, v{L}
v_mul_u32_u24 v{vAd+6}, 1152, v{vAd+6}
v_lshrrev_b32 v{vAd+7}, 4, v{L}
v_lshl_add_u32 v{vAd+6}, v{vAd+7}, 3, v{vAd+6}
s_lshr_b32 s{G.sT0}, s{G.sKg}, 1
s_lshl_b32 s{G.sT0}, s{G.sT0}, 2
s_and_b32 s{G.sT1}, s{G.sKg}, 1
s_add_u32 s{G.sT0}, s{G.sT0}, s{G.sT1}
s_lshl_b32 s{G.sT1}, s{G.sB}, 4
s_add_u32 s{G.sT0}, s{G.sT0}, s{G.sT1}
s_mul_i32 s{sPh}, s{G.sT0}, {16*1152}
s_mul_i32 s{G.sT1}, s{G.sNb}, 288
s_add_u32 s{sPh}, s{sPh}, s{G.sT1}''')
                e(fin_addr(0))
                poll_dual(k, 'f2a', T, G.sT0, 3)
                k.stamp('p3f2a')
                place(i, fin_loads(0), 1)
            e(pre)
            e(mf[0]); e(rd)
            e(mf[1])
            for x in extra.pop(i, []): k.emit2(x)
            for m in mf[2:]: e(m)
        k.stamp(f'p3seg{seg}')
        if seg == 3:
            e('s_nop 4')
            cv, st = pack_store(0); e(cv)
            place(144, st, cfg.ps0_every)
        if seg == 4:
            e('s_nop 4')
            cv, st = pack_store(1)
            e(cv[:18]);
            for g in st[:5]: e(g)
            e(cv[18:])
            for g in st[5:]: e(g)
    assert not extra, extra.keys()
    k.stamp('p3mm')
    e(f's_waitcnt vmcnt({k.vm_need({"PS1"})})'); e(set_flag(k, vF2b, dual=cfg.dualflag))
    k.stamp('p3st')
    fin_reduce(0)
    k.stamp('p3r0')
    e(fin_addr(1))
    poll_dual(k, 'f2b', T, G.sT0, 3)
    k.stamp('p3f2')
    for g in fin_loads(1): e(g)
    k.stamp('p3fi')
    fin_reduce(1)
```

```python
import sys, math, struct
from asmlib import *

NAME = 'standalone__mha_block_cached__near_ridge'

class Cfg:
    stamps = False
    kv_flag = ' nt'
    x_flag = ''
    w_flag = ''
    wo_flag = ''
    force_safe = False
    ablate = ''
    l1inv = False
    codepf = 1
    wo_coop = False
    ost_flag = ' sc1'
    epi_early = True
    tp_late = False
    exp_enc = ''
    loop_align = 3
    loop_nop = 0
    late_mode = 0
    kv0_at = (6, 1)
    k1_at = (7, 1)
    D = 2
    perm = False
    w4 = False
    wmall = False
    rot = True
    pad = 0
    dbgstamps = 0
    mapx = True
    dualflag = True
    out_flag = ''
    bswap = 0
    coop_pre = (0, 1, 2, 3, 4, 5, 6, 7, 8)
    coop_mid = ()
    coop_skip = ()
    coop_wait = None
    early_ost = True
    own_split = (0, 2)
    ps0_every = 2
    f2a_c = 10
    fin0_c = 14
    l3_every = 6
    kv_same = False
cfg = Cfg()

sW = 3
sX, sWq, sK, sV, sWS, sWo, sOut = 20, 24, 28, 32, 36, 40, 44
sW4K = 48; sKsoff = 49; sVsoff = 50; sDma = 51; sXor = 52; sIter = 53
sT0, sT1, sT2, sT3 = 54, 55, 56, 57
sC = 58
sXsoff = 60; sWsoff = 61; sW8K = 62; sDelta = 63
sB = 64; sH = 65; sJ = 66; sMode = 67
sKg = 68; sNb = 69; sRot = 70; sPass = 71
sStamp = 72

vLane = 1
vT = 2
vKA = 8
vVA = 12
vDK = 20
vDV = 24
vMG = 26
vT2 = 30
vS = 32
vC = 64
vP = 80
vL = 96
vXA = 112; vWA = 114
vWB = 120
vCo = 118
vOX = 32; vOW = 40
vWoD = 112
vWoR = 121
vAcc = 128
aQ = 0; aKf = 64; aVf = 96; aOnes = 252; aZero = 188
aPA = 96; aPB = 64

def O(dt, qt): return vAcc + (dt * 4 + qt) * 4
def S(qt, kt): return vS + qt * 8 + kt * 4
def CI(qt): return vC + 4 * qt
def P(qt): return vP + 4 * qt
def LA(qt): return vL + 4 * qt
def Qf(qt, ds): return aQ + (qt * 4 + ds) * 4
def Kf(m): return aKf + 4 * m
def Vf(dt): return aVf + 4 * dt

LDS_V = 65536
XS = [32768, 81920]
WS = [114688, 131072, 147456, 16384]
def NWS(): return 4 if cfg.mapx and cfg.w4 else 3
OBASE = 0
PBASE = 16 << 20
FBASE = 60 << 20
FTWIN = 1 << 16
STAMPBASE = 64 << 20

def kb(fn): return ','.join(str(fn(w) // 1024) for w in range(4))
def stamp_reg(i): return [72, 76, 80, 84, 92][i]
def mfma(d, a, b, c): return f'v_mfma_f32_16x16x32_bf16 {d}, {a}, {b}, {c}'

class Slots:
    def __init__(self, n):
        self.pre = [[] for _ in range(n)]
        self.post = [[] for _ in range(n)]
        self.mf = [None] * n
    def out(self):
        o = []
        for i in range(len(self.mf)):
            o += self.pre[i]
            if self.mf[i]: o.append(self.mf[i])
            o += self.post[i]
        return o
    def load(self):
        def cost(x):
            mn = x.split()[0]
            if mn.startswith('v_exp') or mn.startswith('v_rcp'): return 8
            return 4
        n = len(self.mf); res = []
        for i in range(n):
            g = self.post[i] + (self.pre[i + 1] if i + 1 < n else [])
            res.append(sum(cost(x) for x in g))
        return res

def dma_K(tile, slot, soff):
    L = []
    for p in range(4):
        a = lambda w, p=p: slot * 16384 + w * 4096 + p * 1024
        L.append(f'buffer_load_dwordx4 v{vDK+p}, s[{sK}:{sK+3}], {soff} offen offset:{p*1024}{cfg.kv_flag} lds ; @dma K{tile} {kb(a)}')
    return L
def dma_V(tile, slot, soff):
    L = []
    for p in range(4):
        a = lambda w, p=p: LDS_V + slot * 16384 + w * 4096 + p * 1024
        L.append(f'buffer_load_dwordx4 v{vDV+(p&1)}, s[{sV}:{sV+3}], {soff} offen offset:{p*1024}{cfg.kv_flag} lds ; @dma V{tile} {kb(a)}')
    return L

def dma_W(c):
    G = []
    for p in range(4):
        a = lambda w, p=p: WS[c % NWS()] + w * 4096 + p * 1024
        ins = f'buffer_load_dwordx4 v{vOW+p}, s[{sWq}:{sWq+3}], s{sWsoff} offen offset:{p*1024}{cfg.w_flag} lds ; @dma W{c} {kb(a)}'
        g = [ins]
        if p == 0: g = [f's_add_u32 m0, s{sW4K}, {WS[c%NWS()]}', f's_mov_b32 s{sWsoff}, {c*524288}', ins]
        G.append(g)
    return G
def dma_X(c):
    G = []
    for p in range(8):
        a = lambda w, p=p: XS[c % 2] + w * 8192 + p * 1024
        ins = f'buffer_load_dwordx4 v{vOX+p}, s[{sX}:{sX+3}], s{sXsoff} offen offset:{(p&3)*1024}{cfg.x_flag} lds ; @dma X{c} {kb(a)} priv'
        g = [ins]
        if p == 0: g = [f's_add_u32 m0, s{sW8K}, {XS[c%2]}', f's_mov_b32 s{sXsoff}, {c*128}', ins]
        if p == 4: g = [f's_add_u32 m0, s{sW8K}, {XS[c%2]+4096}', 's_nop 0', ins]
        G.append(g)
    return G

def kv_dma_addr():
    T = vT; L = vLane
    o = f'''v_lshrrev_b32 v{T+1}, 4, v{L}
v_and_b32 v{T+3}, 15, v{L}
v_mov_b32 v{T+4}, v{T+1}'''.split('\n')
    for p in range(4):
        o += [f'v_add_u32 v{T+2}, {4*p}, v{T+1}', f'v_xor_b32 v{T+2}, v{T+2}, v{T+3}', f'v_lshlrev_b32 v{T+2}, 4, v{T+2}', f'v_lshl_add_u32 v{vDK+p}, v{T+4}, 8, v{T+2}']
    for par in range(2):
        o += [f'v_add_u32 v{T+2}, {4*par}, v{T+1}', f'v_lshlrev_b32 v{T+2}, 1, v{T+2}', f'v_xor_b32 v{T+2}, v{T+2}, v{T+3}', f'v_lshlrev_b32 v{T+2}, 4, v{T+2}', f'v_lshl_add_u32 v{vDV+par}, v{T+4}, 8, v{T+2}']
    return o
def kv_read_addr():
    T = vT; L = vLane
    o = [f'v_lshrrev_b32 v{T}, 4, v{L}', f'v_bfe_u32 v{T+1}, v{L}, 2, 2', f'v_and_b32 v{T+2}, 3, v{L}', f'v_and_b32 v{T+3}, 15, v{L}',
         f'v_lshlrev_b32 v{T+4}, 8, v{T+3}']
    for ds in range(4):
        o += [f'v_add_u32 v{T+5}, {4*ds}, v{T}', f'v_xor_b32 v{T+5}, v{T+5}, v{T+3}', f'v_lshl_add_u32 v{vKA+ds}, v{T+5}, 4, v{T+4}']
    o += f'''v_lshl_add_u32 v{T+4}, v{T}, 2, v{T+1}
v_and_b32 v{vT2}, 7, v{T+4}
v_lshlrev_b32 v{vT2}, 1, v{vT2}
v_lshlrev_b32 v{T+4}, 8, v{T+4}
v_and_b32 v{T+5}, 1, v{T+2}
v_lshl_add_u32 v{T+4}, v{T+5}, 3, v{T+4}
v_add_u32 v{T+4}, {LDS_V}, v{T+4}
v_lshrrev_b32 v{vT2+1}, 1, v{T+2}'''.split('\n')
    for dt in range(8):
        o += [f'v_add_u32 v{T+5}, {2*dt}, v{vT2+1}', f'v_xor_b32 v{T+5}, v{T+5}, v{vT2}', f'v_lshl_add_u32 v{vVA+dt}, v{T+5}, 4, v{T+4}']
    return o

def epi(qt):
    o = []
    for ds in range(4):
        for x in range(2):
            b_ = O(2 * ds + x, qt)
            o += [f'v_pk_mul_f32 v[{b_}:{b_+1}], v[{b_}:{b_+1}], s[{sC}:{sC+1}]', f'v_pk_mul_f32 v[{b_+2}:{b_+3}], v[{b_+2}:{b_+3}], s[{sC}:{sC+1}]']
        t = vC + (ds & 1) * 4
        for x in range(2):
            b_ = O(2 * ds + x, qt)
            o += [f'v_cvt_pk_bf16_f32 v{t+2*x}, v{b_}, v{b_+1}', f'v_cvt_pk_bf16_f32 v{t+2*x+1}, v{b_+2}, v{b_+3}']
        o += [f'v_accvgpr_write_b32 a{Qf(qt, ds)+i}, v{t+i}' for i in range(4)]
    return o
def kreads0(off): return [f'ds_read_b128 a[{Kf(m)}:{Kf(m)+3}], v{vKA+(m>>1)} offset:{off+(m&1)*4096} ; @rd K0' for m in range(8)]
def vreads0(): return [f'ds_read_b64_tr_b16 a[{Vf(n>>1)+2*(n&1)}:{Vf(n>>1)+2*(n&1)+1}], v{vVA+(n>>1)} offset:{8192+(n&1)*4096}' for n in range(16)]

def p1_reads(c, n, buf):
    A = aPA + buf * 32; B = aPB + buf * 16
    def W(dt, u):
        ds, x = dt >> 1, dt & 1
        st = c % NWS()
        reg, so = (vWA + ds, st * 16384) if st < 3 else (vWB + ds, 0)
        return f'ds_read_b64_tr_b16 a[{A+4*dt+2*u}:{A+4*dt+2*u+1}], v{reg} offset:{so+(32*n+4*u)*256+8*x} ; @rd W{c}'
    def X(qt): return f'ds_read_b128 a[{B+4*qt}:{B+4*qt+3}], v{vXA+n} offset:{(c%2)*49152+qt*2048} ; @rd X{c}'
    R = [X(0), W(0, 0), W(0, 1), X(1), X(2), X(3)]
    for dt in range(1, 8): R += [W(dt, 0), W(dt, 1)]
    return R

def p1_kstep(k, c, n, groups, last=False, fill=None):
    Sl = Slots(32)
    buf = n & 1
    final = last and n == 1 and cfg.epi_early
    for m in range(32):
        dt, qt = (m >> 2, m & 3) if not final else (m & 7, m >> 3)
        Sl.mf[m] = mfma(vr(O(dt, qt), 4), ar(aPA + buf * 32 + 4 * dt, 4), ar(aPB + buf * 16 + 4 * qt, 4), '0' if (c == 0 and n == 0) else vr(O(dt, qt), 4))
    if n == 0: R = p1_reads(c, 1, 1)
    else: R = [] if last else p1_reads(c + 1, 0, 0)
    if n == 1:
        vm = (k.vm_need({f'X{c+1}', f'W{c+1}'}) if not cfg.ablate else 20) if not last else (k.vm_need({'K0', 'Vm1'}) if final else 63)
        Sl.pre[0] += [f's_waitcnt vmcnt({vm}) lgkmcnt(0)', 's_barrier']
    else: Sl.pre[0] += ['s_waitcnt lgkmcnt(0)']
    if final:
        R = kreads0(0)[:4] + vreads0()
    ab = cfg.ablate
    if 'p1rd' in ab: R = []
    if 'p1x' in ab: groups = [[x for x in g if '@dma X' not in x] for g in groups]
    if 'p1w' in ab: groups = [[x for x in g if '@dma W' not in x] for g in groups]
    if 'p1kv' in ab: groups = [[x for x in g if '@dma K' not in x and '@dma V' not in x] for g in groups]
    for i, r in enumerate(R): Sl.post[2 * (i // 2)].append(r)
    if final:
        E0 = epi(0)
        g = 10
        while E0:
            n_ = (1 if len(Sl.post[g]) >= 2 else 3) if g < 31 else len(E0)
            Sl.post[g] += E0[:n_]; E0 = E0[n_:]; g = min(31, g + 1)
    if groups:
        nn = len(groups)
        for i, g in enumerate(groups):
            Sl.post[min(31, 1 + 2 * ((i * 16) // nn))] += g
    if fill:
        g = 1
        while fill and g < 32:
            if len(Sl.post[g]) == 0:
                for _ in range(2):
                    if fill:
                        x = fill.pop(0)
                        Sl.post[g] += x if isinstance(x, list) else [x]
                        if isinstance(x, list): break
            g += 1
    return Sl.out()

class Kernel:
    def __init__(self):
        self.p = Prog(); self.tr = []; self.nstamp = 0; self.q = []; self.nt_marks = []
    def e(self, s, text=True, trace=True):
        if isinstance(s, str): s = [x.strip() for x in s.split('\n') if x.strip()]
        if text: self.p(s)
        if trace: self.tr.extend(s)
    def stamp(self, name):
        if cfg.stamps and name in cfg.stamps:
            i = cfg.stamps.index(name); b = stamp_reg(i)
            self.e(f's_memrealtime s[{b}:{b+1}]\ns_memtime s[{b+2}:{b+3}]')
            self.nstamp = max(self.nstamp, i + 1)
    def vm_need(self, tags, incl=False):
        q = []
        marks = list(self.nt_marks)
        for pos, line in enumerate(self.tr + ['s_nop 0']):
            while incl and marks and marks[0] <= pos:
                q.append(None); marks.pop(0)
            code, _, com = line.partition(';')
            mn = code.split()[0] if code.split() else ''
            if mn.startswith('buffer_') and mn not in ('buffer_inv', 'buffer_wbl2') or mn.startswith('global_'):
                t = None
                a = com.split()
                if '@dma' in a: t = a[a.index('@dma') + 1]
                elif '@tag' in a: t = a[a.index('@tag') + 1]
                q.append(t)
        for t in tags: assert t in q, f'tag {t} was never issued'
        last = max((i for i, t in enumerate(q) if t in tags), default=-1)
        return min(63, len(q) - 1 - last)

    def header(self):
        self.p(f'; @launch grid=(256,1,1) block=(256,1,1) lds=163840')
        if cfg.stamps: self.p('; stamps: ' + ','.join(cfg.stamps))
        self.p('.amdgcn_target "amdgcn-amd-amdhsa--gfx950"\n.text')
        self.p(f'.globl {NAME}_kernel\n.p2align 8\n.type {NAME}_kernel,@function\n{NAME}_kernel:')
    def footer(self):
        self.p('L_end:\ns_endpgm')
        self.p('.p2align 6\nL_codeend:')
        self.p('.section .rodata,"a"\n.p2align 6')
        self.p(f'.amdhsa_kernel {NAME}_kernel')
        self.p('''.amdhsa_next_free_vgpr 512
.amdhsa_next_free_sgpr 102
.amdhsa_accum_offset 256
.amdhsa_group_segment_fixed_size 0
.amdhsa_kernarg_size 64
.amdhsa_user_sgpr_count 2
.amdhsa_user_sgpr_kernarg_segment_ptr 1
.amdhsa_system_sgpr_workgroup_id_x 1
.end_amdhsa_kernel''')

    def code_prefetch(self, where):
        e = self.e
        if cfg.codepf == where:
            e(f'''s_getpc_b64 s[{sT2}:{sT2+1}]
L_pc:
v_and_b32 v{vT+5}, 15, v{vLane}
s_lshr_b32 s{sT0}, s2, 3
s_and_b32 s{sT2}, s{sT2}, 0xffffff00
s_lshl_b32 s{sT0}, s{sT0}, 4
s_sub_u32 s{sT2}, s{sT2}, CODEOFF
v_add_u32 v{vT+5}, s{sT0}, v{vT+5}
s_subb_u32 s{sT3}, s{sT3}, 0
v_lshlrev_b32 v{vT+5}, 7, v{vT+5}
v_min_u32 v{vT+5}, CODELEN, v{vT+5}
global_load_dword v92, v{vT+5}, s[{sT2}:{sT2+1}]''')

    def setup(self):
        e = self.e
        e('s_cmp_ge_u32 s2, 256\ns_cbranch_scc1 L_end')
        if cfg.perm: e('s_lshr_b32 s3, s2, 3\ns_and_b32 s3, s3, 7\ns_xor_b32 s2, s2, s3')
        self.stamp('entry')
        e(f's_load_dwordx16 s[4:19], s[0:1], 0')
        e(f'''v_and_b32 v{vLane}, 63, v0
v_lshrrev_b32 v{vT}, 6, v0
s_and_b32 s{sT0}, s2, 7
s_lshr_b32 s{sJ}, s2, 3
v_readfirstlane_b32 s{sW}, v{vT}
s_and_b32 s{sB}, s{sT0}, 1
s_xor_b32 s{sB}, s{sB}, {cfg.bswap}
s_lshl_b32 s{sB}, s{sB}, 2
s_and_b32 s{sT1}, s{sJ}, 3
s_add_u32 s{sB}, s{sB}, s{sT1}
s_lshr_b32 s{sH}, s{sT0}, 1
s_lshl_b32 s{sH}, s{sH}, 3
s_lshr_b32 s{sT1}, s{sJ}, 2
s_add_u32 s{sH}, s{sH}, s{sT1}
MAPX
s_lshr_b32 s{sKg}, s{sH}, 2
s_and_b32 s{sNb}, s{sH}, 3
s_lshl_b32 s{sW4K}, s{sW}, 12
ROT
'''.replace('ROT', f's_add_u32 s{sRot}, s{sH}, s{sB}\ns_and_b32 s{sRot}, s{sRot}, 15\ns_lshl_b32 s{sRot}, s{sRot}, 14\ns_add_u32 s{sRot}, s{sRot}, s{sW4K}' if cfg.rot else f's_mov_b32 s{sRot}, s{sW4K}').replace('MAPX', f's_mov_b32 s{sB}, s{sT0}\ns_mov_b32 s{sH}, s{sJ}' if cfg.mapx else 's_nop 0'))
        L = vLane; T = vT
        e(f'''v_lshrrev_b32 v{T}, 3, v{L}
s_lshl_b32 s{sT0}, s{sW}, 6
v_add_u32 v{T}, s{sT0}, v{T}
v_mul_u32_u24 v{T}, 1152, v{T}
v_lshrrev_b32 v{T+1}, 4, v{L}
v_and_b32 v{T+2}, 7, v{L}
v_xor_b32 v{T+3}, v{T+2}, v{T+1}
v_xor_b32 v{T+4}, 4, v{T+3}
v_lshl_add_u32 v{T+3}, v{T+3}, 4, v{T}
v_lshl_add_u32 v{T+4}, v{T+4}, 4, v{T}''')
        for p in range(8):
            e(f'v_add_u32 v{vOX+p}, {p*9216 - (p&3)*1024}, v{T+3+(p&1)}')
        e(f'''v_lshlrev_b32 v{T+2}, 2, v{T+1}
v_and_b32 v{T+3}, 15, v{L}
v_xor_b32 v{T+2}, v{T+2}, v{T+3}
v_lshlrev_b32 v{T+2}, 4, v{T+2}
s_lshl_b32 s{sT0}, s{sW}, 4
v_add_u32 v{T+4}, s{sT0}, v{T+1}
v_lshl_add_u32 v{T+5}, v{T+4}, 13, v{T+2}''')
        for p in range(4):
            e(f'v_add_u32 v{vOW+p}, {p*(32768-1024)}, v{T+5}')
        e(f'''v_lshrrev_b32 v{T+5}, 3, v{L}
s_lshr_b32 s{sT0}, s{sJ}, 2
s_lshl_b32 s{sT0}, s{sT0}, 5
s_lshl_b32 s{sT1}, s{sW}, 3
s_add_u32 s{sT0}, s{sT0}, s{sT1}
v_add_u32 v{T+5}, s{sT0}, v{T+5}
v_mul_u32_u24 v{T+5}, 1152, v{T+5}
v_and_b32 v{T+2}, 7, v{L}
v_lshl_add_u32 v{vCo}, v{T+2}, 4, v{T+5}
s_and_b32 s{sT0}, s{sJ}, 3
s_lshl_b32 s{sT0}, s{sT0}, 4
s_lshl_b32 s{sT1}, s{sW}, 2
s_add_u32 s{sT0}, s{sT0}, s{sT1}
v_add_u32 v{T+5}, s{sT0}, v{T+1}
v_lshlrev_b32 v{T+5}, 13, v{T+5}
v_and_b32 v{T+2}, 15, v{L}
v_lshl_add_u32 v{vCo+1}, v{T+2}, 4, v{T+5}''')
        if cfg.mapx:
            e(f'''v_lshrrev_b32 v{T+5}, 3, v{L}
s_lshl_b32 s{sT0}, s{sJ}, 3
v_add_u32 v{T+5}, s{sT0}, v{T+5}
v_mul_u32_u24 v{T+5}, 1152, v{T+5}
v_and_b32 v{T+2}, 7, v{L}
v_lshl_add_u32 v{vCo}, v{T+2}, 4, v{T+5}''')
        e('s_waitcnt lgkmcnt(0)')
        self.stamp('karg')
        if cfg.l1inv:
            e(f's_cmp_eq_u32 s{sW}, 0\ns_cbranch_scc0 L_noinv\nbuffer_inv sc1', trace=False)
            self.p('L_noinv:')
        e(f'''s_mul_i32 s{sT0}, s{sB}, 294912
s_add_u32 s{sX}, s4, s{sT0}
s_addc_u32 s{sX+1}, s5, 0
s_mov_b32 s{sX+2}, 294912
s_mov_b32 s{sX+3}, 0x20000
s_lshl_b32 s{sT0}, s{sH}, 8
s_add_u32 s{sWq}, s10, s{sT0}
s_addc_u32 s{sWq+1}, s11, 0
s_sub_u32 s{sWq+2}, 4718592, s{sT0}
s_mov_b32 s{sWq+3}, 0x20000
s_mov_b32 s{sWS}, s18
s_mov_b32 s{sWS+1}, s19
s_mov_b32 s{sWS+2}, 0x8000000
s_mov_b32 s{sWS+3}, 0x20000''')
        e(f's_lshl_b32 s{sW8K}, s{sW}, 13')
        def coop(c):
            if cfg.mapx:
                if c >= 3: return []
                d = 44 + 4 * c
                return [f's_lshl_b32 s{sT1}, s{sW}, 7', f'buffer_load_dwordx4 v[{d}:{d+3}], v{vCo}, s[{sX}:{sX+3}], s{sT1} offen offset:{c*512} ; @tag CO{c}']
            d = 44 + 8 * c if c < 6 else 96 + 8 * (c - 6) if c < 8 else 120
            return [f's_mov_b32 s{sT1}, {c*524288}', f'buffer_load_dwordx4 v[{d}:{d+3}], v{vCo+1}, s[{sWq}:{sWq+3}], s{sT1} offen ; @tag CO{c}',
                    f'buffer_load_dwordx4 v[{d+4}:{d+7}], v{vCo}, s[{sX}:{sX+3}], 0 offen offset:{c*128} ; @tag CO{c}']
        for c in cfg.coop_pre: e(coop(c))
        self.code_prefetch(1)
        self.coop = coop
        self.stamp('dma0')
        e(f'''s_lshl_b32 s{sT0}, s{sB}, 5
s_add_u32 s{sT0}, s{sT0}, s{sH}
s_lshl_b32 s{sT0}, s{sT0}, 18''')
        if cfg.kv_same: e(f's_mov_b32 s{sT0}, 0')
        e(f'''s_add_u32 s{sK}, s6, s{sT0}
s_addc_u32 s{sK+1}, s7, 0
s_mov_b32 s{sK+2}, 262144
s_mov_b32 s{sK+3}, 0x20000
s_add_u32 s{sV}, s8, s{sT0}
s_addc_u32 s{sV+1}, s9, 0
s_mov_b32 s{sV+2}, 262144
s_mov_b32 s{sV+3}, 0x20000''')
        e(f'''s_mul_i32 s{sT0}, s{sKg}, {512*1152}
s_mul_i32 s{sT1}, s{sNb}, 288
s_add_u32 s{sT0}, s{sT0}, s{sT1}
s_add_u32 s{sWo}, s12, s{sT0}
s_addc_u32 s{sWo+1}, s13, 0
s_sub_u32 s{sWo+2}, 4718592, s{sT0}
s_mov_b32 s{sWo+3}, 0x20000
s_mov_b32 s{sOut}, s14
s_mov_b32 s{sOut+1}, s15
s_mov_b32 s{sOut+2}, 2359296
s_mov_b32 s{sOut+3}, 0x20000''')
        e(kv_dma_addr())
        self.stamp('cw0')
        if cfg.coop_wait is not None: e(f's_waitcnt vmcnt({self.vm_need({f"CO{cfg.coop_wait}"})})')
        self.stamp('cw1')
        for g in dma_W(0) + dma_X(0): e(g)
        for c in cfg.coop_mid: e(self.coop(c))
        self.code_prefetch(2)
        self.stamp('d0')
        e(f'''v_lshrrev_b32 v{T}, 4, v{L}
v_bfe_u32 v{T+1}, v{L}, 2, 2
v_and_b32 v{T+2}, 3, v{L}
v_and_b32 v{T+3}, 15, v{L}''')
        e(f'''v_lshl_add_u32 v{T+4}, v{T}, 3, v{T+1}
v_lshlrev_b32 v{T+4}, 8, v{T+4}
v_lshl_add_u32 v{T+4}, v{T+2}, 4, v{T+4}
v_add_u32 v{T+4}, {WS[0]}, v{T+4}''')
        for ds in range(4):
            e(f'v_xor_b32 v{T+5}, {ds}, v{T+1}\nv_lshl_add_u32 v{vWA+ds}, v{T+5}, 6, v{T+4}')
        if NWS() == 4:
            for ds in range(4): e(f'v_subrev_u32 v{vWB+ds}, {WS[0]-WS[3]}, v{vWA+ds}')
        e(f'''s_lshl_b32 s{sT0}, s{sW}, 13
s_add_u32 s{sT0}, s{sT0}, {XS[0]}
v_lshlrev_b32 v{T+4}, 7, v{T+3}
v_add_u32 v{T+4}, s{sT0}, v{T+4}
v_lshrrev_b32 v{vT2}, 1, v{T+3}''')
        for n in range(2):
            e(f'''v_add_u32 v{T+5}, {4*n}, v{T}
v_xor_b32 v{T+5}, v{T+5}, v{vT2}
v_lshl_add_u32 v{vXA+n}, v{T+5}, 4, v{T+4}''')
        e(kv_read_addr())
        cbits = '0x%08x' % int.from_bytes(struct.pack('<f', math.log2(math.e) / math.sqrt(128.0)), 'little')
        e(f's_mov_b32 s{sC}, {cbits}\ns_mov_b32 s{sC+1}, {cbits}')
        e(f'v_mov_b32 v{T+5}, 0x3f803f80')
        for i in range(4): e(f'v_accvgpr_write_b32 a{aOnes+i}, v{T+5}')
        for i in range(4): e(f'v_accvgpr_write_b32 a{aZero+i}, 0')
        for i in range(4): e(f'v_mov_b32 v{vMG+i}, 0xff800000')
        e(f's_mov_b32 s{sPass}, 0\ns_mov_b32 s{sMode}, 0')
        for g in dma_W(1) + dma_X(1): e(g)
        self.code_prefetch(3)
        if cfg.wmall:
            e(f'''s_mul_i32 s{sT0}, s2, 18432
s_mul_i32 s{sT1}, s{sW}, 4608
s_add_u32 s{sT0}, s{sT0}, s{sT1}
s_lshl_b32 s{sT1}, s{sH}, 8
s_sub_u32 s{sT0}, s{sT0}, s{sT1}
v_lshlrev_b32 v{T+5}, 4, v{L}''')
            for i in range(5):
                e(f'buffer_load_dwordx4 v[{56+4*i}:{59+4*i}], v{T+5}, s[{sWq}:{sWq+3}], s{sT0} offen offset:{min(i*1024, 3584)} ; @tag WM')
        self.stamp('d1')
        e(f'''s_lshl_b32 s{sT0}, s{sB}, 5
s_add_u32 s{sT0}, s{sT0}, s{sH}
s_lshl_b32 s{sT0}, s{sT0}, 7
s_add_u32 s{sT0}, s{sT0}, {FBASE}
v_mov_b32 v{T+2}, 0
v_and_b32 v{T+3}, 15, v{L}
v_lshlrev_b32 v{T+5}, 2, v{T+3}
v_bfe_u32 v{T+1}, v{L}, 4, 1
v_mul_u32_u24 v{T+1}, {FTWIN}, v{T+1}
v_add_u32 v{T+5}, v{T+5}, v{T+1}
v_cmp_gt_u32 vcc, 32, v{L}
v_mov_b32 v{T+4}, 0x7fffffff
s_cmp_eq_u32 s{sW}, 0
s_cselect_b64 vcc, vcc, 0
s_nop 1
v_cndmask_b32 v{T+5}, v{T+4}, v{T+5}, vcc
buffer_store_dword v{T+2}, v{T+5}, s[{sWS}:{sWS+3}], s{sT0} offen sc1 ; @tag CLR''')

    def phase1(self):
        e = self.e
        self.stamp('p1wait')
        n0 = self.vm_need({'X0', 'W0'})
        e(f's_waitcnt vmcnt({n0})\ns_barrier')
        self.stamp('p1go')
        e(p1_reads(0, 0, 0))
        def one(G, m0, extra=()):
            G = [[x] for x in G]
            G[0] = [m0] + list(extra) + (['s_nop 0'] if not extra else []) + G[0]
            return G
        K0 = one(dma_K(0, 0, f's{sKsoff}'), f's_mov_b32 m0, s{sW4K}', [f's_mov_b32 s{sKsoff}, s{sRot}'])
        K1 = one(dma_K(1, 1, f's{sKsoff}'), f's_add_u32 m0, s{sW4K}, 16384', [f's_add_u32 s{sKsoff}, s{sRot}, 16384', f's_and_b32 s{sKsoff}, s{sKsoff}, 0x3ffff'])
        K2 = one(dma_K(2, 2, f's{sKsoff}'), f's_add_u32 m0, s{sW4K}, {2*16384}', [f's_add_u32 s{sKsoff}, s{sRot}, {2*16384}', f's_and_b32 s{sKsoff}, s{sKsoff}, 0x3ffff'])
        V0 = one(dma_V(0, 1, f's{sVsoff}'), f's_add_u32 m0, s{sW4K}, {LDS_V+16384}', [f's_add_u32 s{sVsoff}, s{sRot}, 8192', f's_and_b32 s{sVsoff}, s{sVsoff}, 0x3ffff'])
        V1 = one(dma_V(1, 2, f's{sVsoff}'), f's_add_u32 m0, s{sW4K}, {LDS_V+2*16384}', [f's_add_u32 s{sVsoff}, s{sRot}, {8192+16384}', f's_and_b32 s{sVsoff}, s{sVsoff}, 0x3ffff'])
        Vm = [[f's_lshl_b32 s{sT2}, s{sW}, 11', f's_add_u32 m0, s{sT2}, {LDS_V + 8192}', f's_sub_u32 s{sT2}, s{sRot}, s{sT2}']]
        for p in range(2):
            a = lambda w, p=p: LDS_V + 8192 + w * 2048 + p * 1024
            ins = f'buffer_load_dwordx4 v{vDV+p}, s[{sV}:{sV+3}], s{sT2} offen offset:{p*1024}{cfg.kv_flag} lds ; @dma Vm1 {kb(a)}'
            if p == 0: Vm[0].append(ins)
            else: Vm.append([ins])
        plan = {}
        rest = [c for c in range(9) if c not in cfg.coop_pre and c not in cfg.coop_mid and c not in cfg.coop_skip]
        plan[(0, 0)] = [self.coop(c) for c in rest] + dma_W(2)
        for c in range(9):
            g1 = []
            if c + 2 <= 8: g1 += dma_X(c + 2)
            plan[(c, 1)] = g1
            if NWS() == 3 and c + 3 <= 8: plan[(c + 1, 0)] = dma_W(c + 3)
        if NWS() == 4:
            plan[(0, 0)] = plan[(0, 0)] + dma_W(3)
            plan[(2, 0)] = dma_W(4) + dma_W(5)
            plan[(4, 0)] = dma_W(6) + dma_W(7)
            plan[(5, 0)] = dma_W(8)
        K3 = one(dma_K(3, 3, f's{sKsoff}'), f's_add_u32 m0, s{sW4K}, {3*16384}', [f's_add_u32 s{sKsoff}, s{sRot}, {3*16384}', f's_and_b32 s{sKsoff}, s{sKsoff}, 0x3ffff'])
        V2 = one(dma_V(2, 3, f's{sVsoff}'), f's_add_u32 m0, s{sW4K}, {LDS_V+3*16384}', [f's_add_u32 s{sVsoff}, s{sRot}, {8192+2*16384}', f's_and_b32 s{sVsoff}, s{sVsoff}, 0x3ffff'])
        self.prefill = K0 + Vm + K1 + V0 + V1 + K2 + (V2 + K3 if cfg.D == 3 else [])
        plan[cfg.kv0_at] = plan.get(cfg.kv0_at, []) + K0 + Vm
        plan[cfg.k1_at] = plan.get(cfg.k1_at, []) + K1
        plan[(8, 0)] = V0
        if cfg.late_mode == 0:
            plan[(8, 1)] = V1
            self.late_kv = K2 + (V2 + K3 if cfg.D == 3 else []); self.last_kv = []
        elif cfg.late_mode == 1:
            self.late_kv = []; self.last_kv = V1 + K2
        else:
            plan[(8, 1)] = V1
            self.late_kv = []; self.last_kv = K2
        from g2p3 import wo_setup, p3_scalars
        fill = wo_setup() + p3_scalars()
        for c in range(9):
            for n in range(2):
                e(p1_kstep(self, c, n, plan.get((c, n), []), last=(c == 8), fill=(fill if c >= 1 else None)))
            if c == 7: assert not fill
            if c == 3:
                e(f'''s_lshl_b32 s{sT3}, s{sB}, 5
v_mov_b32 v{vT+4}, s{sT3}
v_mov_b32 v{vT+5}, 1
s_cmp_eq_u32 s{sW}, 0
s_cbranch_scc0 L_noreg
s_mov_b64 exec, 1
global_atomic_add v{vT+4}, v{vT+5}, s[16:17] sc1
s_mov_b64 exec, -1''', trace=False)
                self.p('L_noreg:')
            if c == 5: self.stamp('p1c6')
            self.stamp(f'c{c}')
        self.stamp('p1end')
        self.late_kv_pending = self.late_kv; self.late_kv = []
        assert not self.late_kv
    QK = [0, 17, 34, 42]
    PV = [50, 59, 8, 25]
    LS = [58, 67, 16, 33]
    EX = [11, 29, 45, 63]
    VG = [26, 27, 27, 28, 28, 30, 30, 32, 34, 34, 36, 38, 38, 40, 42, 42]
    KG = [44, 46, 46, 50, 50, 52, 54, 54]
    def step(self, k, par, kind='full', extra=None):
        NS = 68
        Sl = Slots(NS)
        it = k // 2; ktile = it + 1; vtile = it
        last = kind == 'last'
        for qt in range(4):
            if not last:
                for m in range(8):
                    ds, kt = m >> 1, m & 1
                    Sl.mf[self.QK[qt] + m] = mfma(vr(S(qt, kt), 4), ar(Kf(m), 4), ar(Qf(qt, ds), 4), vr(CI(qt) if ds == 0 else S(qt, kt), 4))
            if not last or qt >= 2:
                for dt in range(8):
                    Sl.mf[self.PV[qt] + dt] = mfma(vr(O(dt, qt), 4), ar(Vf(dt), 4), vr(P(qt), 4), vr(O(dt, qt), 4))
                Sl.mf[self.LS[qt]] = mfma(vr(LA(qt), 4), ar(aOnes, 4), vr(P(qt), 4), vr(LA(qt), 4))
        mem = [[] for _ in range(NS)]; alu = [[] for _ in range(NS)]
        def put(g, ins):
            g %= NS
            mn = ins.split()[0]
            (mem if mn.startswith('ds_') or mn.startswith('buffer_') or mn.startswith('global_') else alu)[g].append(ins)
        for qt in range(4):
            for i in range(8):
                g = self.EX[qt] + 2 * i
                if last and g < NS: continue
                r = S(qt, i >> 2) + (i & 3)
                put(g, f'v_exp_f32{cfg.exp_enc} v{r}, v{r}')
            for n in range(4):
                g = self.EX[qt] + 4 * n + 3
                if last and g < NS: continue
                r = S(qt, n >> 1) + 2 * (n & 1)
                if last and Sl.mf[g % NS] is None: put(g, 's_nop 0')
                put(g, f'v_cvt_pk_bf16_f32 v{P(qt)+n}, v{r}, v{r+1}')
        if last: Sl.pre[8].append('s_nop 1')
        if not last:
            for n in range(16):
                dt, u = n >> 1, n & 1
                put(self.VG[n], f'ds_read_b64_tr_b16 a[{Vf(dt)+2*u}:{Vf(dt)+2*u+1}], v{vVA+dt} offset:{par*8192+u*4096}')
            if kind == 'full':
                for m in range(8):
                    ds, kt = m >> 1, m & 1
                    put(self.KG[m], f'ds_read_b128 a[{Kf(m)}:{Kf(m)+3}], v{vKA+ds} offset:{par*8192+kt*4096}')
            nk = sum(1 for g in self.KG if g <= 48) if kind == 'full' else 0
            Sl.pre[49].append(f's_waitcnt lgkmcnt({nk})')
            if kind == 'full': Sl.pre[67].append('s_waitcnt lgkmcnt(0)')
            if par == 0:
                Sl.pre[1] += ['s_waitcnt vmcnt(VMW)', 's_barrier']
                for dt in range(8): put([2, 4, 4, 6, 8, 8, 10, 14][dt], f'v_xor_b32{cfg.exp_enc} v{vVA+dt}, s{sXor}, v{vVA+dt}')
                for ds in range(4): put([18, 20, 20, 22][ds], f'v_xor_b32{cfg.exp_enc} v{vKA+ds}, s{sXor}, v{vKA+ds}')
        if extra:
            for g, L in extra.items():
                mem[g % NS] += L
        ab = cfg.ablate
        if ab and kind == 'full':
            if 'exp' in ab: alu = [[x for x in a if not x.startswith('v_exp')] for a in alu]
            if 'cvt' in ab: alu = [[x for x in a if not x.startswith('v_cvt')] for a in alu]
            if 'vrd' in ab: mem = [[x for x in a if not x.startswith('ds_read_b64')] for a in mem]
            if 'krd' in ab: mem = [[x for x in a if not x.startswith('ds_read_b128')] for a in mem]
            if 'dma' in ab: mem = [[x for x in a if not x.startswith('buffer_load')] for a in mem]
            if 'lsum' in ab:
                for qt in range(4): Sl.mf[self.LS[qt]] = None
        for g in range(NS): Sl.post[g] = mem[g] + alu[g]
        if cfg.pad and not last:
            for g in range(3, NS, max(1, NS // cfg.pad)): Sl.post[g].append('s_nop 3')
        self.last_load = Sl.load()
        return Sl.out()

    def kv_extra(self, it, par, doK=True, doV=True):
        slot = (it + 1 + cfg.D) & 3
        X = {}
        if par == 0:
            X.setdefault(61, []).append(f's_and_b32 s{sVsoff}, s{sVsoff}, 0x3ffff')
            if doK:
                D = dma_K(it + 1 + cfg.D, slot, f's{sKsoff}')
                X[12] = [f's_mov_b32 m0, s{sDma}']
                for g, d in zip((16, 24, 58, 64), D): X.setdefault(g, []).append(d)
                X.setdefault(64, []).append(f's_add_u32 s{sKsoff}, s{sKsoff}, 16384')
        else:
            X.setdefault(12, []).append(f's_and_b32 s{sKsoff}, s{sKsoff}, 0x3ffff')
            if doV:
                D = dma_V(it + cfg.D, slot, f's{sVsoff}')
                X[0] = [f's_add_u32 s{sT0}, s{sDma}, {LDS_V}']
                X[4] = [f's_mov_b32 m0, s{sT0}']
                for g, d in zip((8, 20, 58, 64), D): X.setdefault(g, []).append(d)
                X.setdefault(64, []).append(f's_add_u32 s{sVsoff}, s{sVsoff}, 16384')
            if cfg.D == 2:
                X.setdefault(61, []).append(f's_xor_b32 s{sXor}, s{sXor}, 0x8000')
                X.setdefault(62, []).append(f's_xor_b32 s{sDma}, s{sDma}, s{sXor}')
            else:
                X.setdefault(61, []).append(f's_xor_b32 s{sDma}, s{sDma}, s{sXor}')
                X.setdefault(62, []).append(f's_xor_b32 s{sXor}, s{sXor}, 0x8000')
            X.setdefault(62, []).append(f's_add_u32 s{sIter}, s{sIter}, 1')
        return X

    def phase2(self):
        e = self.e
        def qk0(qt):
            return [mfma(vr(S(qt, m & 1), 4), ar(Kf(m), 4), ar(Qf(qt, m >> 1), 4), '0' if m < 2 else vr(S(qt, m & 1), 4)) for m in range(8)]
        def weave(valu, mf, lead=2):
            o = []; n = len(valu); step_ = max(1, (n - lead) // max(1, len(mf))); j = 0
            for i, x in enumerate(valu):
                o.append(x)
                if i >= lead and (i - lead) % step_ == 0 and j < len(mf): o += mf[j] if isinstance(mf[j], list) else [mf[j]]; j += 1
            for x in mf[j:]: o += x if isinstance(x, list) else [x]
            return o
        kreads = kreads0
        vreads = vreads0()
        zero = lambda qt: [mfma(vr(O(dt, qt), 4), ar(aZero, 4), ar(aZero, 4), '0') for dt in range(8)] + [mfma(vr(LA(qt), 4), ar(aZero, 4), ar(aZero, 4), '0')]
        wait0 = f's_waitcnt vmcnt({self.vm_need({"K0", "Vm1"})})'
        late = self.late_kv_pending
        if cfg.epi_early:
            e(kreads0(0)[4:])
            e('s_nop 1')
            E1 = epi(1)
            e(E1[:8]); e('s_waitcnt lgkmcnt(0)')
            e(weave(E1[8:], qk0(0)))
        else:
            e('s_nop 3')
            e(wait0); e('s_barrier')
            self.stamp('q0')
            e(kreads(0)); e(vreads)
            e(epi(0))
            self.stamp('q1')
            e('s_waitcnt lgkmcnt(15)\ns_waitcnt lgkmcnt(0)')
            e(weave(epi(1), qk0(0)))
        h_ = len(late) // 2
        e(weave(epi(2), qk0(1) + [g for g in late[:h_]]))
        e(weave(epi(3), qk0(2) + [g for g in late[h_:]]))
        self.stamp('q2')
        e('s_branch L_p2q3', trace=False)
        self.p('L_p2start:')
        R = [wait0, 's_barrier'] + kreads(0) + vreads + ['s_waitcnt lgkmcnt(0)'] + qk0(0) + qk0(1) + qk0(2)
        self.e([x.split(';')[0].strip() for x in R], trace=False)
        self.p('L_p2q3:')
        q3 = qk0(3); k1 = kreads(8192)
        z = zero(2) + zero(3)
        e('s_nop 1')
        for m in range(8):
            e(q3[m]); e(k1[m]); e(z[2*m:2*m+2])
        e(z[16:])
        self.stamp('q3')
        for qt in range(4):
            a, b = S(qt, 0), S(qt, 1); m = vT + qt
            e(f'v_max3_f32 v{m}, v{a}, v{a+1}, v{vMG+qt}\nv_max3_f32 v{m}, v{m}, v{a+2}, v{a+3}\nv_max3_f32 v{m}, v{m}, v{b}, v{b+1}\nv_max3_f32 v{m}, v{m}, v{b+2}, v{b+3}')
        for sw in ('v_permlane32_swap_b32', 'v_permlane16_swap_b32'):
            for qt in range(4): e(f'v_mov_b32 v{vC+qt}, v{vT+qt}')
            e('s_nop 0')
            for qt in range(4): e(f'{sw} v{vT+qt}, v{vC+qt}')
            for qt in range(4): e(f'v_max_f32 v{vT+qt}, v{vT+qt}, v{vC+qt}')
        for qt in range(4):
            for r in range(4): e(f'v_sub_f32 v{CI(qt)+r}, 0, v{vT+qt}')
        for qt in range(4):
            for i in range(8): e(f'v_add_f32 v{S(qt,0)+i}, v{S(qt,0)+i}, v{CI(qt)}')
        for qt in range(3):
            for i in range(8): e(f'v_exp_f32 v{S(qt,0)+i}, v{S(qt,0)+i}')
        for i in range(3): e(f'v_exp_f32 v{S(3,0)+i}, v{S(3,0)+i}')
        for qt in range(3):
            for n in range(4):
                r = S(qt, n >> 1) + 2 * (n & 1)
                e(f'v_cvt_pk_bf16_f32 v{P(qt)+n}, v{r}, v{r+1}')
        e(f'v_cvt_pk_bf16_f32 v{P(3)}, v{S(3,0)}, v{S(3,0)+1}')
        self.stamp('q4')
        e('s_waitcnt lgkmcnt(0)')
        for qt in range(2):
            for dt in range(8):
                e(mfma(vr(O(dt, qt), 4), ar(Vf(dt), 4), vr(P(qt), 4), '0'))
            e(mfma(vr(LA(qt), 4), ar(aOnes, 4), vr(P(qt), 4), '0'))
        for g in self.last_kv: e(g)
        e(f'''s_mov_b32 s{sXor}, 0x4000
s_add_u32 s{sDma}, s{sW4K}, {((1+cfg.D)&3)*16384}
s_add_u32 s{sKsoff}, s{sRot}, {(1+cfg.D)*16384}
s_and_b32 s{sKsoff}, s{sKsoff}, 0x3ffff
s_add_u32 s{sVsoff}, s{sRot}, {8192+cfg.D*16384}
s_and_b32 s{sVsoff}, s{sVsoff}, 0x3ffff
s_mov_b32 s{sIter}, 0''')
        self.stamp('p2loop')
        self.p(f'.p2align {cfg.loop_align}')
        for _ in range(cfg.loop_nop): self.p('s_nop 0')
        self.p('L_p2:')
        texts = []
        NL = 12
        for it in range(NL):
            L = self.step(2 * it, 0, 'full', self.kv_extra(it, 0)); l0 = self.last_load
            L += self.step(2 * it + 1, 1, 'full', self.kv_extra(it, 1)); l1 = self.last_load
            L = [x.replace('VMW', str(8 * (cfg.D - 1))) for x in L]
            L += [f's_cmp_lt_u32 s{sIter}, {NL}', 's_cbranch_scc1 L_p2']
            texts.append([x.split(';')[0].strip() for x in L])
            if it == 0:
                self.p(L); self.loop_body = L
                print('gap load step0:', l0); print('gap load step1:', l1)
            self.tr.extend(L)
        assert all(t == texts[0] for t in texts)
        self.stamp('p2peel')
        from g2p3 import peeled_tail
        peeled_tail(self)

    def fallback(self):
        e = lambda x: self.e(x, trace=False)
        self.p('L_fallback:')
        e('s_waitcnt vmcnt(0) lgkmcnt(0)\ns_barrier')
        e(kv_dma_addr()); e(kv_read_addr())
        for i in range(4): e(f'v_mov_b32 v{vMG+i}, 0xff800000')
        e(f's_mov_b32 s{sKsoff}, s{sW4K}')
        self.p('L_fb_loop:')
        e(f's_mov_b32 m0, s{sW4K}\ns_nop 0')
        e([x.split(';')[0] for x in dma_K(0, 0, f's{sKsoff}')])
        e('s_waitcnt vmcnt(0)\ns_barrier')
        for half in range(2):
            for m in range(8):
                ds, kt = m >> 1, m & 1
                e(f'ds_read_b128 a[{Kf(m)}:{Kf(m)+3}], v{vKA+ds} offset:{half*8192+kt*4096}')
            e('s_waitcnt lgkmcnt(0)')
            for qt in range(4):
                for m in range(8):
                    ds, kt = m >> 1, m & 1
                    e(mfma(vr(S(qt, kt), 4), ar(Kf(m), 4), ar(Qf(qt, ds), 4), '0' if ds == 0 else vr(S(qt, kt), 4)))
            e('s_nop 7')
            for qt in range(4):
                a, b = S(qt, 0), S(qt, 1); m = vMG + qt
                e(f'v_max3_f32 v{m}, v{m}, v{a}, v{a+1}\nv_max3_f32 v{m}, v{m}, v{a+2}, v{a+3}\nv_max3_f32 v{m}, v{m}, v{b}, v{b+1}\nv_max3_f32 v{m}, v{m}, v{b+2}, v{b+3}')
        e(f's_barrier\ns_add_u32 s{sKsoff}, s{sKsoff}, 16384\ns_cmp_lt_u32 s{sKsoff}, 262144\ns_cbranch_scc1 L_fb_loop')
        for g in self.prefill: e([x.split(';')[0] for x in g])
        e(f's_mov_b32 s{sMode}, 1\ns_branch L_p2start')

    def finish_stamps(self):
        if not cfg.stamps: return
        e = self.e
        if cfg.dbgstamps:
            e('s_waitcnt lgkmcnt(0)', trace=False)
            for n_, (wg, base) in enumerate(zip(cfg.dbgstamps, (1, 5, 9, 12))):
                e(f's_cmp_eq_u32 s2, {wg}\ns_cbranch_scc0 L_nodbg{n_}\ns_cmp_eq_u32 s{sW}, 0\ns_cbranch_scc0 L_nodbg{n_}', trace=False)
                vals = [(stamp_reg(1), stamp_reg(0)), (stamp_reg(2), stamp_reg(0)), (stamp_reg(2) + 2, stamp_reg(1) + 2)]
                for i, (x, y) in enumerate(vals):
                    e(f's_sub_u32 s{sT0}, s{x}, s{y}\nv_mov_b32 v{vT+2}, s{sT0}\nv_mov_b32 v{vT}, {4*(base+i)}\nglobal_store_dword v{vT}, v{vT+2}, s[16:17]', trace=False)
                self.p(f'L_nodbg{n_}:')
            return
        e(f'''s_waitcnt lgkmcnt(0)
s_lshl_b32 s{sT0}, s2, 2
s_add_u32 s{sT0}, s{sT0}, s{sW}
s_lshl_b32 s{sT0}, s{sT0}, 8
s_add_u32 s{sT0}, s{sT0}, {STAMPBASE}
s_add_u32 s18, s18, s{sT0}
s_addc_u32 s19, s19, 0
v_mov_b32 v{vT}, 0''')
        for i in range(self.nstamp):
            for j in range(4): e(f'v_mov_b32 v{vT+2+j}, s{stamp_reg(i)+j}')
            e(f'global_store_dwordx4 v{vT}, v[{vT+2}:{vT+5}], s[18:19] offset:{16*i}\ns_nop 1')

def build():
    k = Kernel()
    k.header(); k.setup(); k.phase1(); k.phase2()
    from g2p3 import phase3
    phase3(k)
    k.stamp('end')
    k.finish_stamps()
    k.e('s_endpgm', trace=False)
    k.fallback()
    k.footer()
    return k

def main():
    import argparse
    ap = argparse.ArgumentParser()
    ap.add_argument('-o', default=f'cdna_kernels/{NAME}.s')
    ap.add_argument('--stamps', default='')
    ap.add_argument('--set', action='append', default=[])
    a = ap.parse_args()
    cfg.stamps = a.stamps.split(',') if a.stamps else False
    for kv in a.set:
        kk, vv = kv.split('=', 1)
        try: vv = eval(vv)
        except Exception: pass
        setattr(cfg, kk, vv)
    k = build()
    errs = simulate(k.tr, 'trace')
    errs += check_hazards(k.tr, 'haz')
    txt = k.p.text()
    txt = txt.replace('CODEOFF', f'((L_pc - {NAME}_kernel) & 0xffffff00)').replace('CODELEN', f'(L_codeend - {NAME}_kernel - 128)')
    open(a.o, 'w').write(txt)
    print('written', a.o, 'errors:', len(errs), 'trace len', len(k.tr))
```

```python
from asmlib import *
import g2 as G
from g2 import cfg, mfma, kb, Slots

REG = [13, 14, 0, 1, 2, 7, 3, 4, 8, 9, 5, 6, 10, 11, 12, 15]
WSLOT = {'t12': (0, 3), 't13': (3, 3), 't14': (6, 4), 't15': (10, 3), 'tP': (13, 3)}
WNAME = list(WSLOT)
def rbase(j):
    if j < 7: return j * 9216
    if j < 15: return 81920 + (j - 7) * 9216
    return 65536
sWoB = 4
sWoS = 9
sPh = 96
sOst = 99; sPst = 100; sFl = 101; sCnt = 59
sCB = 14; sOB = 15
vWoD = G.vWoD
aWoD = 240
vR = 8
vAd = 12
vOwn = 32
vD = 112
aPart = 0
aA = 192
def D(nt, qt): return vD + (nt * 4 + qt) * 4
def Own(qt, ks): return vOwn + (qt * 4 + ks) * 4
def Part(hp, qt, ks): return aPart + hp * 64 + (qt * 4 + ks) * 4

def wo_setup():
    T = G.vT; L = G.vLane
    out = []
    for p in range(9):
        out += [f'v_add_u32 v{T}, {64*p}, v{L}', f'v_mul_u32_u24 v{T+1}, 3641, v{T}', f'v_lshrrev_b32 v{T+1}, 16, v{T+1}',
                f'v_mul_u32_u24 v{T+2}, 18, v{T+1}', f'v_sub_u32 v{T+2}, v{T}, v{T+2}', f'v_mul_u32_u24 v{T+1}, 1152, v{T+1}',
                f'v_lshl_add_u32 v{T+1}, v{T+2}, 4, v{T+1}']
        if p % 4: out.append(f'v_subrev_u32 v{T+1}, {(p%4)*1024}, v{T+1}')
        out.append(f'v_accvgpr_write_b32 a{aWoD+p}, v{T+1}')
    for i, name in enumerate(WNAME):
        c0, nw = WSLOT[name]
        t = [rbase(REG[c0 + min(w, nw - 1)]) for w in range(4)]
        out += [f's_mov_b32 s{sWoB+i}, {t[0]}']
        for w in range(1, 4): out += [[f's_cmp_eq_u32 s{G.sW}, {w}', f's_cselect_b32 s{sWoB+i}, {t[w]}, s{sWoB+i}']]
        out += [f's_add_u32 s{G.sT1}, s{G.sW}, {c0}', f's_lshr_b32 s{G.sT0}, s{G.sT1}, 2', f's_add_u32 s{G.sT0}, s{G.sT0}, s{G.sNb}', f's_and_b32 s{G.sT0}, s{G.sT0}, 3',
                f's_lshl_b32 s{G.sT0}, s{G.sT0}, 2', f's_and_b32 s{G.sT1}, s{G.sT1}, 3', f's_add_u32 s{G.sT0}, s{G.sT0}, s{G.sT1}', f's_mul_i32 s{sWoS+i}, s{G.sT0}, {32*1152}']
    return out

def p3_scalars():
    t0, t1 = G.sT0, G.sT1
    o = f'''s_lshl_b32 s{sFl}, s{G.sB}, 5
s_add_u32 s{sFl}, s{sFl}, s{G.sH}
s_lshl_b32 s{sOst}, s{sFl}, 2
s_add_u32 s{sOst}, s{sOst}, s{G.sW}
s_lshl_b32 s{sOst}, s{sOst}, 14
s_lshl_b32 s{sFl}, s{sFl}, 7
s_add_u32 s{sFl}, s{sFl}, {G.FBASE}
s_add_u32 s91, s{sFl}, {G.FTWIN}'''.split('\n')
    for hp in range(3):
        o += f'''s_add_u32 s{t0}, s{G.sNb}, {hp+1}
s_and_b32 s{t0}, s{t0}, 3
s_lshl_b32 s{t1}, s{G.sKg}, 2
s_add_u32 s{t0}, s{t0}, s{t1}
s_lshl_b32 s{t1}, s{G.sB}, 5
s_add_u32 s{t0}, s{t0}, s{t1}
s_lshl_b32 s{t0}, s{t0}, 2
s_add_u32 s{t0}, s{t0}, s{G.sW}
s_lshl_b32 s{sPh+hp}, s{t0}, 14'''.split('\n')
    o += f'''s_lshl_b32 s{t0}, s{G.sB}, 2
s_add_u32 s{t0}, s{t0}, s{G.sNb}
s_lshl_b32 s{t0}, s{t0}, 3
s_lshl_b32 s{t1}, s{G.sW}, 1
s_add_u32 s{t1}, s{t0}, s{t1}
s_lshl_b32 s{t1}, s{t1}, 4
s_add_u32 s{t1}, s{t1}, s{G.sKg}
s_mul_i32 s{sPst}, s{t1}, 5120
s_add_u32 s{sPst}, s{sPst}, {G.PBASE}
s_add_u32 s{t0}, s{t0}, s{G.sKg}
s_mul_i32 s{sCB}, s{t0}, {16*5120}
s_add_u32 s{sCB}, s{sCB}, {G.PBASE}
s_lshr_b32 s{t0}, s{G.sKg}, 1
s_lshl_b32 s{t0}, s{t0}, 2
s_and_b32 s{t1}, s{G.sKg}, 1
s_add_u32 s{t0}, s{t0}, s{t1}
s_lshl_b32 s{t1}, s{G.sB}, 4
s_add_u32 s{t0}, s{t0}, s{t1}
s_mul_i32 s{sOB}, s{t0}, {16*1152}
s_mul_i32 s{t1}, s{G.sNb}, 288
s_add_u32 s{sOB}, s{sOB}, s{t1}'''.split('\n')
    return o

_skip = [0]
def wo_dma(name, vbase=None):
    i = WNAME.index(name); c0, nw = WSLOT[name]
    L = []
    for p in range(9):
        g = []
        if p % 4 == 0: g += [f's_add_u32 m0, s{sWoB+i}, {p*1024}']
        ins = f'buffer_load_dwordx4 v{(vbase or vWoD)+p}, s[{G.sWo}:{G.sWo+3}], s{sWoS+i} offen offset:{(p%4)*1024}{cfg.wo_flag} lds'
        if nw == 4:
            a = lambda w, p=p: rbase(REG[c0 + w]) + p * 1024
            if p % 4 == 0: g.append('s_nop 0')
            g.append(f'{ins} ; @dma WO{name} {kb(a)}')
        else:
            _skip[0] += 1
            g += [f's_cbranch_vccnz L_wsk{_skip[0]}', f'{ins} ;@notrace', f'L_wsk{_skip[0]}:']
        L.append(g)
    return L

def spread(groups, gaps):
    X = {}
    for g, pos in zip(groups, gaps): X.setdefault(pos, []).extend(g)
    return X
def merge(a, b):
    for g, L in b.items(): a.setdefault(g, []).extend(L)
    return a

def peeled_tail(k):
    e = k.e
    cnt = [0]
    def emit(step_lines, tags):
        n = k.vm_need(tags); ni = k.vm_need(tags, incl=True)
        out = []
        for x in step_lines:
            if 'VMW' in x and ni != n:
                cnt[0] += 1
                out += [f's_cbranch_vccnz L_vwa{cnt[0]} ;@skip', x.replace('VMW', str(ni)) + ' ;@skip', f's_branch L_vwb{cnt[0]} ;@skip', f'L_vwa{cnt[0]}:', x.replace('VMW', str(n)), f'L_vwb{cnt[0]}:']
            else: out.append(x.replace('VMW', str(n)))
        emit2(out)
    def emit2(lines):
        for x in lines:
            if '@notrace' in x:
                e(x.replace(' ;@notrace', ''), trace=False); k.nt_marks.append(len(k.tr))
            elif '@skip' in x: e(x.replace(' ;@skip', ''), trace=False)
            elif x.endswith(':') or x.startswith('s_cbranch_vccnz L_wsk'): e(x, trace=False)
            else: e(x)
    k.emit2 = emit2
    reg = [f's_lshl_b32 s{G.sT0}, s{G.sB}, 5', f'v_mov_b32 v{G.vT2}, s{G.sT0}', f'global_load_dword v{G.vT2}, v{G.vT2}, s[16:17] sc1']
    D_ = cfg.D
    assert D_ == 2
    rd = [f'v_accvgpr_read_b32 v{vWoD+p}, a{aWoD+p}' for p in range(9)]
    e(f's_cmp_eq_u32 s{G.sW}, 3\ns_cselect_b64 vcc, -1, 0')
    W = wo_dma('t12')
    Dk = G.dma_K(15, 3, f's{G.sKsoff}')
    X = {2: [rd[0]], 4: [f's_mov_b32 m0, s{G.sDma}'], 6: [rd[1]], 12: [Dk[0], rd[2]], 16: [Dk[1], rd[3]], 24: [Dk[2]], 56: [Dk[3]], 58: [rd[4], rd[5]], 60: [rd[6]], 61: [rd[7], rd[8]],
         62: [f's_and_b32 s{G.sVsoff}, s{G.sVsoff}, 0x3ffff']}
    X = {g: L for g, L in X.items()}
    emit(k.step(24, 0, 'full', X), {'V12', 'K13'})
    Dv = G.dma_V(14, 3, f's{G.sVsoff}')
    X = {0: [f's_add_u32 m0, s{G.sDma}, {G.LDS_V}'], 2: [Dv[0]], 4: [Dv[1]], 6: [Dv[2]], 8: [Dv[3]], 10: [f's_add_u32 s{G.sVsoff}, s{G.sVsoff}, 16384'],
         61: [f's_xor_b32 s{G.sXor}, s{G.sXor}, 0x8000'], 62: [f's_xor_b32 s{G.sDma}, s{G.sDma}, s{G.sXor}']}
    X = merge(X, spread(W, [12, 16, 20, 24, 44, 48, 56, 58, 64]))
    X = merge(X, {60: reg[:1], 64: [], 66: []})
    emit(k.step(25, 1, 'full', X), set())
    e(reg[1:])
    k.stamp('it12')
    W = wo_dma('t13')
    Dv = G.dma_V(15, 0, f's{G.sVsoff}')
    X = {2: [f's_and_b32 s{G.sVsoff}, s{G.sVsoff}, 0x3ffff'], 4: [f's_add_u32 m0, s{G.sDma}, {G.LDS_V}'], 12: [Dv[0]], 16: [Dv[1]], 24: [Dv[2]], 56: [Dv[3]]}
    X = merge(X, spread(W[:2], [60, 64]))
    emit(k.step(26, 0, 'full', X), {'V13', 'K14'})
    X = spread(W[2:], [0, 8, 16, 24, 56, 60, 64]); X.setdefault(61, []).append(f's_xor_b32 s{G.sXor}, s{G.sXor}, 0x8000')
    emit(k.step(27, 1, 'full', X), set())
    k.stamp('it13')
    W = wo_dma('t14')
    emit(k.step(28, 0, 'full', spread(W[:4], [12, 24, 58, 64])), {'V14', 'K15'})
    X = spread(W[4:], [4, 12, 20, 58, 64]); X.setdefault(61, []).append(f's_xor_b32 s{G.sXor}, s{G.sXor}, 0x8000')
    emit(k.step(29, 1, 'full', X), set())
    k.stamp('it14')
    W = wo_dma('t15')
    L30 = k.step(30, 0, 'nok', spread(W[:7], [12, 20, 44, 50, 56, 60, 64]))
    assert k.vm_need({'V15'}) == 9
    emit2([x.replace('VMW', '9') for x in L30])
    k.stamp('s30')
    emit2(k.step(31, 1, 'last', spread(W[7:], [2, 6])))
    k.stamp('p2end')

def poll_dual(k, name, vaddr, soff_reg, nbits):
    e = k.e; T = G.vT
    full = (1 << (1 << nbits)) - 1
    e(f's_mov_b32 s{sCnt}, 0\ns_mov_b32 s{G.sT2}, 0\ns_add_u32 s{G.sT3 if False else 88}, s{soff_reg}, {G.FTWIN}', trace=False)
    k.p(f'L_poll_{name}:')
    e(f'''s_and_b32 s{G.sT1}, s{sCnt}, 7
s_cmp_eq_u32 s{G.sT1}, 7
s_cselect_b32 s89, s{soff_reg}, s88
s_add_u32 s{sCnt}, s{sCnt}, 1
buffer_load_dword v{T+1}, v{vaddr}, s[{G.sWS}:{G.sWS+3}], s89 offen sc1
s_waitcnt vmcnt(0)
v_cmp_eq_u32 vcc, 1, v{T+1}
s_nop 1
s_or_b32 s{G.sT2}, s{G.sT2}, vcc_lo
s_and_b32 s{G.sT1}, s{G.sT2}, {full}
s_cmp_eq_u32 s{G.sT1}, {full}
s_cbranch_scc1 L_pollx_{name}
s_cmp_ge_u32 s{sCnt}, 0x8000
s_cbranch_scc0 L_poll_{name}''', trace=False)
    k.p(f'L_pollx_{name}:')
    k.tr.append('s_waitcnt vmcnt(0)')

def poll(k, name, vaddr, soff_reg):
    e = k.e
    e(f's_mov_b32 s{sCnt}, 0', trace=False)
    k.p(f'L_poll_{name}:')
    e(f'''buffer_load_dword v{G.vT+1}, v{vaddr}, s[{G.sWS}:{G.sWS+3}], s{soff_reg} offen sc1
s_add_u32 s{sCnt}, s{sCnt}, 1
s_waitcnt vmcnt(0)
v_cmp_ne_u32 vcc, 1, v{G.vT+1}
s_cmp_ge_u32 s{sCnt}, 0x4000
s_cbranch_scc1 L_pollx_{name}
s_cbranch_vccz L_pollx_{name}
s_sleep 1
s_branch L_poll_{name}''', trace=False)
    k.p(f'L_pollx_{name}:')
    k.tr.append('s_waitcnt vmcnt(0)')

def set_flag(k, off_vreg, dual=False):
    o = ['s_mov_b64 exec, 1']
    if dual: o.append(f'buffer_store_dword v{vOne}, v{off_vreg}, s[{G.sWS}:{G.sWS+3}], s91 offen')
    o += [f'buffer_store_dword v{vOne}, v{off_vreg}, s[{G.sWS}:{G.sWS+3}], s{sFl} offen sc1', 's_mov_b64 exec, -1']
    return o

vOne = 20; vF1 = 21; vF2a = 24; vF2b = 25
vPk = [32, 68]

def phase3(k):
    e = k.e; T = G.vT; L = G.vLane
    e('s_nop 4')
    rp = [T, T + 2, T + 4, 122]
    sBad = 88
    for qt in range(4): e(f'v_rcp_f32 v{rp[qt]}, v{G.LA(qt)}')
    e(f's_mov_b32 s{G.sT0}, 0x6f800000')
    for qt in range(4):
        e(f'v_cmp_nlt_f32 vcc, v{G.LA(qt)}, v{G.LA(qt)}') if False else None
    e(f'v_mov_b32 v{G.vT2+1}, s{G.sT0}')
    e(f's_mov_b64 s[{sBad}:{sBad+1}], 0')
    for qt in range(4):
        e(f'v_cmp_nlt_f32 vcc, v{G.LA(qt)}, v{G.vT2+1}\ns_nop 0\ns_or_b64 s[{sBad}:{sBad+1}], s[{sBad}:{sBad+1}], vcc')
    e(f'v_lshlrev_b32 v{vAd}, 4, v{L}')
    for qt in range(4): e(f'v_mov_b32 v{rp[qt]+1}, v{rp[qt]}')
    for i in range(1, 4): e(f'v_add_u32 v{vAd+i}, {4096*i}, v{vAd}')
    vPr = 108
    prev = None; nprobe = 0
    for ks in range(4):
        for qt in range(4):
            for x in range(2):
                b = G.O(2 * ks + x, qt); r = rp[qt]
                e(f'v_pk_mul_f32 v[{b}:{b+1}], v[{b}:{b+1}], v[{r}:{r+1}]\nv_pk_mul_f32 v[{b+2}:{b+3}], v[{b+2}:{b+3}], v[{r}:{r+1}]')
            if prev is not None:
                e(mfma(vr(vPr, 4), ar(G.aZero, 4), vr(prev, 4), '0' if nprobe == 0 else vr(vPr, 4))); nprobe += 1
            for x in range(2):
                b = G.O(2 * ks + x, qt); d = Own(qt, ks) + 2 * x
                e(f'v_cvt_pk_bf16_f32 v{d}, v{b}, v{b+1}\nv_cvt_pk_bf16_f32 v{d+1}, v{b+2}, v{b+3}')
            if ks == 0 or cfg.early_ost:
                e(f'buffer_store_dwordx4 v[{Own(qt,ks)}:{Own(qt,ks)+3}], v{vAd+qt}, s[{G.sWS}:{G.sWS+3}], s{sOst} offen offset:{ks*1024}{cfg.ost_flag}')
            prev = Own(qt, ks)
    e('s_nop 1')
    e(mfma(vr(vPr, 4), ar(G.aZero, 4), vr(prev, 4), vr(vPr, 4)))
    for p in range(9): e(f'v_mov_b32 v{96+p}, v{vWoD+p}')
    ost = [f'buffer_store_dwordx4 v[{Own(qt,ks)}:{Own(qt,ks)+3}], v{vAd+qt}, s[{G.sWS}:{G.sWS+3}], s{sOst} offen offset:{ks*1024} sc1' for ks in range(1, 4) for qt in range(4)]
    if cfg.early_ost: ost = []
    e(f'''s_lshl_b32 s{G.sT0}, s{G.sW}, 2
s_add_u32 s{G.sT0}, s{G.sT0}, 64512
v_mov_b32 v{T}, s{G.sT0}
v_mov_b32 v{vOne}, 1
s_nop 3
v_cmp_u_f32 vcc, v{vPr}, v{vPr}
s_nop 0
s_or_b64 s[{sBad}:{sBad+1}], s[{sBad}:{sBad+1}], vcc
s_cmp_lg_u64 s[{sBad}:{sBad+1}], 0
s_cselect_b32 s{G.sT0}, 1, 0
v_mov_b32 v{T+1}, s{G.sT0}
ds_write_b32 v{T}, v{T+1}
v_mov_b32 v{T+2}, 64512''')
    n = k.vm_need({'REG', 'WOt14'})
    e(f's_waitcnt vmcnt({n}) lgkmcnt(0)\ns_barrier')
    e(f'ds_read_b128 v[124:127], v{T+2}')
    e(f'v_readfirstlane_b32 s90, v{G.vT2}')
    k.stamp('p3pk')
    e(f'''v_lshrrev_b32 v30, 4, v{L}
v_bfe_u32 v31, v{L}, 2, 2
v_lshl_add_u32 v30, v30, 2, v31
v_mul_u32_u24 v30, 288, v30
v_and_b32 v31, 3, v{L}
v_lshl_add_u32 v{vR}, v31, 3, v30
v_add_u32 v{vR+1}, 61440, v{vR}
v_add_u32 v{vR+2}, 122880, v{vR}
v_mov_b32 v{vOne}, 1
s_lshl_b32 s{G.sT0}, s{G.sW}, 2
v_mov_b32 v{vF1}, s{G.sT0}
s_lshl_b32 s{G.sT0}, s{G.sW}, 3
s_add_u32 s{G.sT0}, s{G.sT0}, 16
v_mov_b32 v{vF2a}, s{G.sT0}
s_add_u32 s{G.sT0}, s{G.sT0}, 4
v_mov_b32 v{vF2b}, s{G.sT0}''')
    e(f'''s_waitcnt lgkmcnt(0)
v_or_b32 v124, v124, v125
v_or3_b32 v124, v124, v126, v127
s_nop 0
v_readfirstlane_b32 s{G.sT0}, v124
s_andn2_b32 s{G.sT0}, s{G.sT0}, s{G.sMode}
s_cmp_lg_u32 s{G.sT0}, 0
s_cbranch_scc1 L_fallback''')
    assert cfg.early_ost
    e(f's_cmp_eq_u32 s{G.sW}, 3\ns_cselect_b64 vcc, -1, 0')
    def a_read(c, nt, slot):
        base = rbase(REG[c]); idx = base // 61440
        return [f'ds_read_b64_tr_b16 a[{aA+4*slot+2*u}:{aA+4*slot+2*u+1}], v{vR+idx} offset:{base-61440*idx+u*4608+nt*32} ; ' + ('@rd WOt14' if c >= 6 else '') for u in range(2)]
    seq = [(c, nt, (0, 1, 2, 3)) for c in range(4) for nt in range(9)]
    seq += [(c, nt, (0, 1)) for c in range(4, 16) for nt in range(9)]
    seq += [(c, nt, (2, 3)) for c in range(4, 16) for nt in range(9)]
    AH_OWN, AH = 6, 8
    for i in range(AH_OWN): e(a_read(seq[i][0], seq[i][1], i % 16))
    k.stamp('p3go')
    def part_load(hp, qt, ks):
        return f'buffer_load_dwordx4 a[{Part(hp,qt,ks)}:{Part(hp,qt,ks)+3}], v{vAd+qt}, s[{G.sWS}:{G.sWS+3}], s{sPh+hp} offen offset:{ks*1024}'
    loads = [[part_load(hp, qt, ks) for ks in range(4) for qt in (2 * half, 2 * half + 1)] for half in range(2) for hp in range(3)]
    def pack_store(half):
        cv = []; st = []
        for x in range(2):
            qt = 2 * half + x
            for blk in range(5):
                d = D(2 * blk, qt)
                cv += [f'v_cvt_pk_bf16_f32 v{d}, v{d}, v{d+1}', f'v_cvt_pk_bf16_f32 v{d+1}, v{d+2}, v{d+3}']
                if blk < 4:
                    b_ = D(2 * blk + 1, qt)
                    cv += [f'v_cvt_pk_bf16_f32 v{d+2}, v{b_}, v{b_+1}', f'v_cvt_pk_bf16_f32 v{d+3}, v{b_+2}, v{b_+3}']
                g = []
                if blk == 0: g.append(f's_add_u32 s{sOst}, s{sPst}, {x*81920 + half*40960}')
                g.append(f'buffer_store_dwordx4 v[{d}:{d+3}], v{vAd + (blk >> 2)}, s[{G.sWS}:{G.sWS+3}], s{sOst} offen offset:{(blk & 3)*1024} sc1')
                st.append(g)
        return cv, st
    R = 32; SUM = 80
    def fin_addr(part):
        return f'''v_and_b32 v{T}, 7, v{L}
v_lshlrev_b32 v{T}, 2, v{T}
v_add_u32 v{T}, s{G.sNb}, v{T}
v_lshlrev_b32 v{T}, 7, v{T}
s_lshr_b32 s{G.sT0}, s{G.sKg}, 1
s_lshl_b32 s{G.sT0}, s{G.sT0}, 3
s_add_u32 s{G.sT0}, s{G.sT0}, {16 + 4*part}
v_add_u32 v{T}, s{G.sT0}, v{T}
s_lshl_b32 s{G.sT0}, s{G.sB}, 12
s_add_u32 s{G.sT0}, s{G.sT0}, {G.FBASE}'''
    def fin_loads(part):
        o = []
        for src in range(8):
            o.append([f's_add_u32 s{G.sT1}, s{sCB}, {part*40960 + src*5120}',
                      f'buffer_load_dwordx4 v[{R+4*src}:{R+4*src+3}], v{vAd+4}, s[{G.sWS}:{G.sWS+3}], s{G.sT1} offen',
                      f'buffer_load_dwordx2 v[{R+32+2*src}:{R+32+2*src+1}], v{vAd+5}, s[{G.sWS}:{G.sWS+3}], s{G.sT1} offen'])
        return o
    def fin_reduce(part):
        e(f's_waitcnt vmcnt({k.vm_need({f"FIN{part}"})})')
        e(f's_mov_b32 s{G.sT1}, 0x00003f80\ns_mov_b32 s{G.sT2}, 0x3f800000')
        for src in range(8):
            for j in range(4):
                for hi_ in range(2):
                    acc = SUM + 2 * j + hi_
                    e(f'v_dot2_f32_bf16 v{acc}, v{R+4*src+j}, s{G.sT1+hi_}, {"0" if src == 0 else f"v{acc}"}')
            for j in range(2):
                for hi_ in range(2):
                    acc = SUM + 8 + 2 * j + hi_
                    e(f'v_dot2_f32_bf16 v{acc}, v{R+32+2*src+j}, s{G.sT1+hi_}, {"0" if src == 0 else f"v{acc}"}')
        e('s_nop 2')
        for j in range(6): e(f'v_cvt_pk_bf16_f32 v{SUM+12+j}, v{SUM+2*j}, v{SUM+2*j+1}')
        e(f'''s_add_u32 s{G.sT0}, s{sOB}, {part*32*1152}
s_cmp_ge_u32 s{G.sW}, 1
s_cselect_b32 s{G.sT1}, 0x7ffff000, s{G.sT0}
s_lshl_b32 s{G.sT2}, s{G.sW}, 6
s_add_u32 s{G.sT0}, s{G.sT0}, s{G.sT2}
buffer_store_dwordx2 v[{SUM+12}:{SUM+13}], v{vAd+6}, s[{G.sOut}:{G.sOut+3}], s{G.sT0} offen{cfg.out_flag}
buffer_store_dwordx2 v[{SUM+14}:{SUM+15}], v{vAd+6}, s[{G.sOut}:{G.sOut+3}], s{G.sT0} offen offset:32{cfg.out_flag}
buffer_store_dwordx2 v[{SUM+16}:{SUM+17}], v{vAd+6}, s[{G.sOut}:{G.sOut+3}], s{G.sT1} offen offset:256{cfg.out_flag}''')
    issued = AH_OWN
    SPL, POL = cfg.own_split
    seg_bounds = [(0, 9 * SPL), (9 * SPL, 9 * POL), (9 * POL, 36), (36, 144), (144, 252)]
    extra = {}
    def place(i0, items, every):
        for n_, it_ in enumerate(items):
            extra.setdefault(i0 + n_ * every, []).append(it_ if isinstance(it_, list) else [it_])
    if ost: place(1, ost, max(1, (9 * SPL - 2) // len(ost)))
    place(36 + 1, loads[2], 1)
    place(36 + 18, loads[3], cfg.l3_every)
    if cfg.tp_late: place(36 + 21, wo_dma('tP', 96), 3)
    place(36 + 70, loads[4], 2)
    place(36 + 88, loads[5], 2)
    for seg, (lo, hi) in enumerate(seg_bounds):
        if seg == 1:
            nn = k.vm_need({'OST'})
            e(f's_waitcnt vmcnt({nn})')
            e(set_flag(k, vF1, dual=cfg.dualflag))
            k.stamp('p3d1')
            if not cfg.tp_late: place(lo + 1, wo_dma('tP', 96), 2)
        if seg == 2:
            e(f's_mov_b32 s{G.sT2}, s90')
            k.p('L_regchk:')
            e(f's_cmp_ge_u32 s{G.sT2}, 32\ns_cbranch_scc1 L_regok')
            e(f'''s_add_u32 s{G.sPass}, s{G.sPass}, 1
s_cmp_ge_u32 s{G.sPass}, 0x4000
s_cbranch_scc1 L_regok
s_lshl_b32 s{G.sT0}, s{G.sB}, 5
v_mov_b32 v{G.vT2}, s{G.sT0}
s_sleep 1
global_load_dword v{G.vT2}, v{G.vT2}, s[16:17] sc1
s_waitcnt vmcnt(0)
v_readfirstlane_b32 s{G.sT2}, v{G.vT2}
s_branch L_regchk''', trace=False)
            k.p('L_regok:')
            e(f'''v_and_b32 v{T}, 3, v{L}
s_lshl_b32 s{G.sT0}, s{G.sKg}, 2
v_add_u32 v{T}, s{G.sT0}, v{T}
v_lshlrev_b32 v{T}, 7, v{T}
v_add_u32 v{T}, v{T}, v{vF1}
s_lshl_b32 s{G.sT0}, s{G.sB}, 12
s_add_u32 s{G.sT0}, s{G.sT0}, {G.FBASE}''')
            if cfg.dualflag:
                poll_dual(k, 'f1', T, G.sT0, 2)
            else: poll(k, 'f1', T, G.sT0)
            k.stamp('p3f1')
            for x in loads[0] + loads[1]: e(x)
            e(f's_cmp_eq_u32 s{G.sW}, 3\ns_cselect_b64 vcc, -1, 0')
        for i in range(lo, hi):
            c, nt, qts = seq[i]
            half = 0 if seg == 3 else 1
            slot = i % 16
            ah = AH_OWN if seg < 3 else AH
            rd = []
            while issued < min(len(seq), i + ah + 1):
                rd += a_read(seq[issued][0], seq[issued][1], issued % 16); issued += 1
            younger = 2 * (issued - len(rd) // 2 - 1 - i)
            pre = [f's_waitcnt lgkmcnt({min(15, younger)})']
            if seg >= 3 and nt == 0:
                pre.append(f's_waitcnt vmcnt({k.vm_need({f"PH{(c>>2)-1}_{half}_{c&3}"})})')
                if seg == 3 and c == 9: pre.append('s_barrier')
                if cfg.tp_late and seg == 3 and c == 12:
                    last = k.nt_marks[-1]
                    younger = sum(1 for x in k.tr[last:] if x.split()[0].startswith('buffer_') or x.split()[0].startswith('global_'))
                    pre += [f's_waitcnt vmcnt({younger})', 's_barrier']
            hook = None
            if seg == 4 and nt == 0 and c == cfg.f2a_c: hook = 'f2a'
            if seg == 4 and nt == 0 and c == cfg.fin0_c: hook = 'fin0'
            mf = []
            for qt in qts:
                Bop = vr(Own(qt, c), 4) if c < 4 else ar(Part((c >> 2) - 1, qt, c & 3), 4)
                Cop = '0' if c == 0 else vr(D(nt, qt), 4)
                mf.append(mfma(vr(D(nt, qt), 4), ar(aA + 4 * slot, 4), Bop, Cop))
            if hook == 'f2a':
                e(f's_waitcnt vmcnt({k.vm_need({"PS0"})})'); e(set_flag(k, vF2a, dual=cfg.dualflag))
            if hook == 'fin0':
                e(f'''v_lshlrev_b32 v{vAd+4}, 4, v{L}
s_lshl_b32 s{G.sT1}, s{G.sW}, 10
v_add_u32 v{vAd+5}, 4096, v{vAd+4}
v_add_u32 v{vAd+4}, s{G.sT1}, v{vAd+4}
s_cmp_ge_u32 s{G.sW}, 1
s_cselect_b32 s{G.sT1}, 0x40000000, 0
v_add_u32 v{vAd+5}, s{G.sT1}, v{vAd+5}
v_and_b32 v{vAd+6}, 15, v{L}
v_mul_u32_u24 v{vAd+6}, 1152, v{vAd+6}
v_lshrrev_b32 v{vAd+7}, 4, v{L}
v_lshl_add_u32 v{vAd+6}, v{vAd+7}, 3, v{vAd+6}''')
                e(fin_addr(0))
                poll_dual(k, 'f2a', T, G.sT0, 3)
                k.stamp('p3f2a')
                place(i, fin_loads(0), 1)
            e(pre)
            e(mf[0]); e(rd)
            e(mf[1])
            for x in extra.pop(i, []): k.emit2(x)
            for m in mf[2:]: e(m)
        k.stamp(f'p3seg{seg}')
        if seg == 3:
            e('s_nop 4')
            cv, st = pack_store(0); e(cv)
            place(144, st, cfg.ps0_every)
        if seg == 4:
            e('s_nop 4')
            cv, st = pack_store(1)
            e(cv[:18]);
            for g in st[:5]: e(g)
            e(cv[18:])
            for g in st[5:]: e(g)
    assert not extra, extra.keys()
    k.stamp('p3mm')
    e(f's_waitcnt vmcnt({k.vm_need({"PS1"})})'); e(set_flag(k, vF2b, dual=cfg.dualflag))
    k.stamp('p3st')
    fin_reduce(0)
    k.stamp('p3r0')
    e(fin_addr(1))
    poll_dual(k, 'f2b', T, G.sT0, 3)
    k.stamp('p3f2')
    for g in fin_loads(1): e(g)
    k.stamp('p3fi')
    fin_reduce(1)
```

```python
from asmlib import *
import g2 as G
from g2 import cfg, mfma, kb, Slots

REG = [13, 14, 0, 1, 2, 7, 3, 4, 8, 9, 5, 6, 10, 11, 12, 15]
WSLOT = {'t12': (0, 3), 't13': (3, 3), 't14': (6, 4), 't15': (10, 3), 'tP': (13, 3)}
WNAME = list(WSLOT)
def rbase(j):
    if j < 7: return j * 9216
    if j < 15: return 81920 + (j - 7) * 9216
    return 65536
sWoB = 4
sWoS = 9
sPh = 96
sOst = 99; sPst = 100; sFl = 101; sCnt = 59
sCB = 14; sOB = 15
vWoD = G.vWoD
aWoD = 240
vR = 8
vAd = 12
vOwn = 32
vD = 112
aPart = 0
aA = 192
def D(nt, qt): return vD + (nt * 4 + qt) * 4
def Own(qt, ks): return vOwn + (qt * 4 + ks) * 4
def Part(hp, qt, ks): return aPart + hp * 64 + (qt * 4 + ks) * 4

def wo_setup():
    T = G.vT; L = G.vLane
    out = []
    for p in range(9):
        out += [f'v_add_u32 v{T}, {64*p}, v{L}', f'v_mul_u32_u24 v{T+1}, 3641, v{T}', f'v_lshrrev_b32 v{T+1}, 16, v{T+1}',
                f'v_mul_u32_u24 v{T+2}, 18, v{T+1}', f'v_sub_u32 v{T+2}, v{T}, v{T+2}', f'v_mul_u32_u24 v{T+1}, 1152, v{T+1}',
                f'v_lshl_add_u32 v{T+1}, v{T+2}, 4, v{T+1}']
        if p % 4: out.append(f'v_subrev_u32 v{T+1}, {(p%4)*1024}, v{T+1}')
        out.append(f'v_accvgpr_write_b32 a{aWoD+p}, v{T+1}')
    for i, name in enumerate(WNAME):
        c0, nw = WSLOT[name]
        t = [rbase(REG[c0 + min(w, nw - 1)]) for w in range(4)]
        out += [f's_mov_b32 s{sWoB+i}, {t[0]}']
        for w in range(1, 4): out += [[f's_cmp_eq_u32 s{G.sW}, {w}', f's_cselect_b32 s{sWoB+i}, {t[w]}, s{sWoB+i}']]
        out += [f's_add_u32 s{G.sT1}, s{G.sW}, {c0}', f's_lshr_b32 s{G.sT0}, s{G.sT1}, 2', f's_add_u32 s{G.sT0}, s{G.sT0}, s{G.sNb}', f's_and_b32 s{G.sT0}, s{G.sT0}, 3',
                f's_lshl_b32 s{G.sT0}, s{G.sT0}, 2', f's_and_b32 s{G.sT1}, s{G.sT1}, 3', f's_add_u32 s{G.sT0}, s{G.sT0}, s{G.sT1}', f's_mul_i32 s{sWoS+i}, s{G.sT0}, {32*1152}']
    return out

def p3_scalars():
    t0, t1 = G.sT0, G.sT1
    o = f'''s_lshl_b32 s{sFl}, s{G.sB}, 5
s_add_u32 s{sFl}, s{sFl}, s{G.sH}
s_lshl_b32 s{sOst}, s{sFl}, 2
s_add_u32 s{sOst}, s{sOst}, s{G.sW}
s_lshl_b32 s{sOst}, s{sOst}, 14
s_lshl_b32 s{sFl}, s{sFl}, 7
s_add_u32 s{sFl}, s{sFl}, {G.FBASE}
s_add_u32 s91, s{sFl}, {G.FTWIN}'''.split('\n')
    for hp in range(3):
        o += f'''s_add_u32 s{t0}, s{G.sNb}, {hp+1}
s_and_b32 s{t0}, s{t0}, 3
s_lshl_b32 s{t1}, s{G.sKg}, 2
s_add_u32 s{t0}, s{t0}, s{t1}
s_lshl_b32 s{t1}, s{G.sB}, 5
s_add_u32 s{t0}, s{t0}, s{t1}
s_lshl_b32 s{t0}, s{t0}, 2
s_add_u32 s{t0}, s{t0}, s{G.sW}
s_lshl_b32 s{sPh+hp}, s{t0}, 14'''.split('\n')
    o += f'''s_lshl_b32 s{t0}, s{G.sB}, 2
s_add_u32 s{t0}, s{t0}, s{G.sNb}
s_lshl_b32 s{t0}, s{t0}, 3
s_lshl_b32 s{t1}, s{G.sW}, 1
s_add_u32 s{t1}, s{t0}, s{t1}
s_lshl_b32 s{t1}, s{t1}, 4
s_add_u32 s{t1}, s{t1}, s{G.sKg}
s_mul_i32 s{sPst}, s{t1}, 5120
s_add_u32 s{sPst}, s{sPst}, {G.PBASE}
s_add_u32 s{t0}, s{t0}, s{G.sKg}
s_mul_i32 s{sCB}, s{t0}, {16*5120}
s_add_u32 s{sCB}, s{sCB}, {G.PBASE}
s_lshr_b32 s{t0}, s{G.sKg}, 1
s_lshl_b32 s{t0}, s{t0}, 2
s_and_b32 s{t1}, s{G.sKg}, 1
s_add_u32 s{t0}, s{t0}, s{t1}
s_lshl_b32 s{t1}, s{G.sB}, 4
s_add_u32 s{t0}, s{t0}, s{t1}
s_mul_i32 s{sOB}, s{t0}, {16*1152}
s_mul_i32 s{t1}, s{G.sNb}, 288
s_add_u32 s{sOB}, s{sOB}, s{t1}'''.split('\n')
    return o

_skip = [0]
def wo_dma(name, vbase=None):
    i = WNAME.index(name); c0, nw = WSLOT[name]
    L = []
    for p in range(9):
        g = []
        if p % 4 == 0: g += [f's_add_u32 m0, s{sWoB+i}, {p*1024}']
        ins = f'buffer_load_dwordx4 v{(vbase or vWoD)+p}, s[{G.sWo}:{G.sWo+3}], s{sWoS+i} offen offset:{(p%4)*1024}{cfg.wo_flag} lds'
        if nw == 4:
            a = lambda w, p=p: rbase(REG[c0 + w]) + p * 1024
            if p % 4 == 0: g.append('s_nop 0')
            g.append(f'{ins} ; @dma WO{name} {kb(a)}')
        else:
            _skip[0] += 1
            g += [f's_cbranch_vccnz L_wsk{_skip[0]}', f'{ins} ;@notrace', f'L_wsk{_skip[0]}:']
        L.append(g)
    return L

def spread(groups, gaps):
    X = {}
    for g, pos in zip(groups, gaps): X.setdefault(pos, []).extend(g)
    return X
def merge(a, b):
    for g, L in b.items(): a.setdefault(g, []).extend(L)
    return a

def peeled_tail(k):
    e = k.e
    cnt = [0]
    def emit(step_lines, tags):
        n = k.vm_need(tags); ni = k.vm_need(tags, incl=True)
        out = []
        for x in step_lines:
            if 'VMW' in x and ni != n:
                cnt[0] += 1
                out += [f's_cbranch_vccnz L_vwa{cnt[0]} ;@skip', x.replace('VMW', str(ni)) + ' ;@skip', f's_branch L_vwb{cnt[0]} ;@skip', f'L_vwa{cnt[0]}:', x.replace('VMW', str(n)), f'L_vwb{cnt[0]}:']
            else: out.append(x.replace('VMW', str(n)))
        emit2(out)
    def emit2(lines):
        for x in lines:
            if '@notrace' in x:
                e(x.replace(' ;@notrace', ''), trace=False); k.nt_marks.append(len(k.tr))
            elif '@skip' in x: e(x.replace(' ;@skip', ''), trace=False)
            elif x.endswith(':') or x.startswith('s_cbranch_vccnz L_wsk'): e(x, trace=False)
            else: e(x)
    k.emit2 = emit2
    reg = [f's_lshl_b32 s{G.sT0}, s{G.sB}, 5', f'v_mov_b32 v{G.vT2}, s{G.sT0}', f'global_load_dword v{G.vT2}, v{G.vT2}, s[16:17] sc1']
    D_ = cfg.D
    assert D_ == 2
    rd = [f'v_accvgpr_read_b32 v{vWoD+p}, a{aWoD+p}' for p in range(9)]
    e(f's_cmp_eq_u32 s{G.sW}, 3\ns_cselect_b64 vcc, -1, 0')
    if cfg.wo_coop:
        Dk = G.dma_K(15, 3, f's{G.sKsoff}')
        X = {2: [rd[0]], 4: [f's_mov_b32 m0, s{G.sDma}'], 6: [rd[1]], 12: [Dk[0], rd[2]], 16: [Dk[1], rd[3]], 24: [Dk[2]], 56: [Dk[3]], 58: [rd[4], rd[5]], 60: [rd[6]], 61: [rd[7], rd[8]],
             62: [f's_and_b32 s{G.sVsoff}, s{G.sVsoff}, 0x3ffff'],
             64: [f's_and_b32 s{G.sT0}, s{G.sJ}, 3', f's_lshl_b32 s{G.sT0}, s{G.sT0}, 2']}
        emit(k.step(24, 0, 'full', X), {'V12', 'K13'})
        Dv = G.dma_V(14, 3, f's{G.sVsoff}')
        co = [f'buffer_load_dwordx4 a[{128+4*p}:{131+4*p}], v{vWoD+p}, s[{G.sWo}:{G.sWo+3}], s{G.sT2} offen offset:{(p%4)*1024}' for p in range(9)]
        X = {0: [f's_add_u32 m0, s{G.sDma}, {G.LDS_V}', f's_add_u32 s{G.sT0}, s{G.sT0}, s{G.sW}'], 2: [Dv[0]], 4: [Dv[1], f's_mul_i32 s{G.sT2}, s{G.sT0}, {32*1152}'], 6: [Dv[2]], 8: [Dv[3]],
             10: [f's_add_u32 s{G.sVsoff}, s{G.sVsoff}, 16384'], 61: [f's_xor_b32 s{G.sXor}, s{G.sXor}, 0x8000'], 62: [f's_xor_b32 s{G.sDma}, s{G.sDma}, s{G.sXor}']}
        X = merge(X, spread([[x] for x in co], [12, 14, 16, 18, 20, 22, 24, 44, 46]))
        X = merge(X, {60: reg[:1]})
        emit(k.step(25, 1, 'full', X), set())
        e(reg[1:])
        k.stamp('it12')
        W = wo_dma('t12') + wo_dma('t13')
        Dv = G.dma_V(15, 0, f's{G.sVsoff}')
        X = {2: [f's_and_b32 s{G.sVsoff}, s{G.sVsoff}, 0x3ffff'], 4: [f's_add_u32 m0, s{G.sDma}, {G.LDS_V}'], 8: [Dv[0]], 12: [Dv[1]], 16: [Dv[2]], 20: [Dv[3]]}
        X = merge(X, spread(W[:4], [56, 58, 60, 64]))
        emit(k.step(26, 0, 'full', X), {'V13', 'K14'})
        X = spread(W[4:], [0, 4, 8, 12, 16, 20, 24, 44, 48, 52, 56, 58, 60, 64]); X.setdefault(61, []).append(f's_xor_b32 s{G.sXor}, s{G.sXor}, 0x8000')
        emit(k.step(27, 1, 'full', X), set())
        k.stamp('it13')
    else:
        W = wo_dma('t12')
        Dk = G.dma_K(15, 3, f's{G.sKsoff}')
        X = {2: [rd[0]], 4: [f's_mov_b32 m0, s{G.sDma}'], 6: [rd[1]], 12: [Dk[0], rd[2]], 16: [Dk[1], rd[3]], 24: [Dk[2]], 56: [Dk[3]], 58: [rd[4], rd[5]], 60: [rd[6]], 61: [rd[7], rd[8]],
             62: [f's_and_b32 s{G.sVsoff}, s{G.sVsoff}, 0x3ffff']}
        X = {g: L for g, L in X.items()}
        emit(k.step(24, 0, 'full', X), {'V12', 'K13'})
        Dv = G.dma_V(14, 3, f's{G.sVsoff}')
        X = {0: [f's_add_u32 m0, s{G.sDma}, {G.LDS_V}'], 2: [Dv[0]], 4: [Dv[1]], 6: [Dv[2]], 8: [Dv[3]], 10: [f's_add_u32 s{G.sVsoff}, s{G.sVsoff}, 16384'],
             61: [f's_xor_b32 s{G.sXor}, s{G.sXor}, 0x8000'], 62: [f's_xor_b32 s{G.sDma}, s{G.sDma}, s{G.sXor}']}
        X = merge(X, spread(W, [12, 16, 20, 24, 44, 48, 56, 58, 64]))
        X = merge(X, {60: reg[:1], 64: [], 66: []})
        emit(k.step(25, 1, 'full', X), set())
        e(reg[1:])
        k.stamp('it12')
        W = wo_dma('t13')
        Dv = G.dma_V(15, 0, f's{G.sVsoff}')
        X = {2: [f's_and_b32 s{G.sVsoff}, s{G.sVsoff}, 0x3ffff'], 4: [f's_add_u32 m0, s{G.sDma}, {G.LDS_V}'], 12: [Dv[0]], 16: [Dv[1]], 24: [Dv[2]], 56: [Dv[3]]}
        X = merge(X, spread(W[:2], [60, 64]))
        emit(k.step(26, 0, 'full', X), {'V13', 'K14'})
        X = spread(W[2:], [0, 8, 16, 24, 56, 60, 64]); X.setdefault(61, []).append(f's_xor_b32 s{G.sXor}, s{G.sXor}, 0x8000')
        emit(k.step(27, 1, 'full', X), set())
        k.stamp('it13')
    W = wo_dma('t14')
    emit(k.step(28, 0, 'full', spread(W[:4], [12, 24, 58, 64])), {'V14', 'K15'})
    X = spread(W[4:], [4, 12, 20, 58, 64]); X.setdefault(61, []).append(f's_xor_b32 s{G.sXor}, s{G.sXor}, 0x8000')
    emit(k.step(29, 1, 'full', X), set())
    k.stamp('it14')
    W = wo_dma('t15')
    L30 = k.step(30, 0, 'nok', spread(W[:7], [12, 20, 44, 50, 56, 60, 64]))
    assert k.vm_need({'V15'}) == 9
    emit2([x.replace('VMW', '9') for x in L30])
    k.stamp('s30')
    emit2(k.step(31, 1, 'last', spread(W[7:], [2, 6])))
    k.stamp('p2end')

def poll_dual(k, name, vaddr, soff_reg, nbits):
    e = k.e; T = G.vT
    full = (1 << (1 << nbits)) - 1
    e(f's_mov_b32 s{sCnt}, 0\ns_mov_b32 s{G.sT2}, 0\ns_add_u32 s{G.sT3 if False else 88}, s{soff_reg}, {G.FTWIN}', trace=False)
    k.p(f'L_poll_{name}:')
    e(f'''s_and_b32 s{G.sT1}, s{sCnt}, 7
s_cmp_eq_u32 s{G.sT1}, 7
s_cselect_b32 s89, s{soff_reg}, s88
s_add_u32 s{sCnt}, s{sCnt}, 1
buffer_load_dword v{T+1}, v{vaddr}, s[{G.sWS}:{G.sWS+3}], s89 offen sc1
s_waitcnt vmcnt(0)
v_cmp_eq_u32 vcc, 1, v{T+1}
s_nop 1
s_or_b32 s{G.sT2}, s{G.sT2}, vcc_lo
s_and_b32 s{G.sT1}, s{G.sT2}, {full}
s_cmp_eq_u32 s{G.sT1}, {full}
s_cbranch_scc1 L_pollx_{name}
s_cmp_ge_u32 s{sCnt}, 0x8000
s_cbranch_scc0 L_poll_{name}''', trace=False)
    k.p(f'L_pollx_{name}:')
    k.tr.append('s_waitcnt vmcnt(0)')

def poll(k, name, vaddr, soff_reg):
    e = k.e
    e(f's_mov_b32 s{sCnt}, 0', trace=False)
    k.p(f'L_poll_{name}:')
    e(f'''buffer_load_dword v{G.vT+1}, v{vaddr}, s[{G.sWS}:{G.sWS+3}], s{soff_reg} offen sc1
s_add_u32 s{sCnt}, s{sCnt}, 1
s_waitcnt vmcnt(0)
v_cmp_ne_u32 vcc, 1, v{G.vT+1}
s_cmp_ge_u32 s{sCnt}, 0x4000
s_cbranch_scc1 L_pollx_{name}
s_cbranch_vccz L_pollx_{name}
s_sleep 1
s_branch L_poll_{name}''', trace=False)
    k.p(f'L_pollx_{name}:')
    k.tr.append('s_waitcnt vmcnt(0)')

def set_flag(k, off_vreg, dual=False):
    o = ['s_mov_b64 exec, 1']
    if dual: o.append(f'buffer_store_dword v{vOne}, v{off_vreg}, s[{G.sWS}:{G.sWS+3}], s91 offen')
    o += [f'buffer_store_dword v{vOne}, v{off_vreg}, s[{G.sWS}:{G.sWS+3}], s{sFl} offen sc1', 's_mov_b64 exec, -1']
    return o

vOne = 20; vF1 = 21; vF2a = 24; vF2b = 25
vPk = [32, 68]

def phase3(k):
    e = k.e; T = G.vT; L = G.vLane
    e('s_nop 4')
    rp = [T, T + 2, T + 4, 122]
    sBad = 88
    for qt in range(4): e(f'v_rcp_f32 v{rp[qt]}, v{G.LA(qt)}')
    e(f's_mov_b32 s{G.sT0}, 0x6f800000')
    for qt in range(4):
        e(f'v_cmp_nlt_f32 vcc, v{G.LA(qt)}, v{G.LA(qt)}') if False else None
    e(f'v_mov_b32 v{G.vT2+1}, s{G.sT0}')
    e(f's_mov_b64 s[{sBad}:{sBad+1}], 0')
    for qt in range(4):
        e(f'v_cmp_nlt_f32 vcc, v{G.LA(qt)}, v{G.vT2+1}\ns_nop 0\ns_or_b64 s[{sBad}:{sBad+1}], s[{sBad}:{sBad+1}], vcc')
    e(f'v_lshlrev_b32 v{vAd}, 4, v{L}')
    for qt in range(4): e(f'v_mov_b32 v{rp[qt]+1}, v{rp[qt]}')
    for i in range(1, 4): e(f'v_add_u32 v{vAd+i}, {4096*i}, v{vAd}')
    vPr = 108
    prev = None; nprobe = 0
    for ks in range(4):
        for qt in range(4):
            for x in range(2):
                b = G.O(2 * ks + x, qt); r = rp[qt]
                e(f'v_pk_mul_f32 v[{b}:{b+1}], v[{b}:{b+1}], v[{r}:{r+1}]\nv_pk_mul_f32 v[{b+2}:{b+3}], v[{b+2}:{b+3}], v[{r}:{r+1}]')
            if prev is not None:
                e(mfma(vr(vPr, 4), ar(G.aZero, 4), vr(prev, 4), '0' if nprobe == 0 else vr(vPr, 4))); nprobe += 1
            for x in range(2):
                b = G.O(2 * ks + x, qt); d = Own(qt, ks) + 2 * x
                e(f'v_cvt_pk_bf16_f32 v{d}, v{b}, v{b+1}\nv_cvt_pk_bf16_f32 v{d+1}, v{b+2}, v{b+3}')
            if ks == 0 or cfg.early_ost:
                e(f'buffer_store_dwordx4 v[{Own(qt,ks)}:{Own(qt,ks)+3}], v{vAd+qt}, s[{G.sWS}:{G.sWS+3}], s{sOst} offen offset:{ks*1024}{cfg.ost_flag}')
            prev = Own(qt, ks)
    e('s_nop 1')
    e(mfma(vr(vPr, 4), ar(G.aZero, 4), vr(prev, 4), vr(vPr, 4)))
    for p in range(9): e(f'v_mov_b32 v{96+p}, v{vWoD+p}')
    ost = [f'buffer_store_dwordx4 v[{Own(qt,ks)}:{Own(qt,ks)+3}], v{vAd+qt}, s[{G.sWS}:{G.sWS+3}], s{sOst} offen offset:{ks*1024} sc1' for ks in range(1, 4) for qt in range(4)]
    if cfg.early_ost: ost = []
    e(f'''s_lshl_b32 s{G.sT0}, s{G.sW}, 2
s_add_u32 s{G.sT0}, s{G.sT0}, 64512
v_mov_b32 v{T}, s{G.sT0}
v_mov_b32 v{vOne}, 1
s_nop 3
v_cmp_u_f32 vcc, v{vPr}, v{vPr}
s_nop 0
s_or_b64 s[{sBad}:{sBad+1}], s[{sBad}:{sBad+1}], vcc
s_cmp_lg_u64 s[{sBad}:{sBad+1}], 0
s_cselect_b32 s{G.sT0}, 1, 0
v_mov_b32 v{T+1}, s{G.sT0}
ds_write_b32 v{T}, v{T+1}
v_mov_b32 v{T+2}, 64512''')
    n = k.vm_need({'REG', 'WOt14'})
    e(f's_waitcnt vmcnt({n}) lgkmcnt(0)\ns_barrier')
    e(f'ds_read_b128 v[124:127], v{T+2}')
    e(f'v_readfirstlane_b32 s90, v{G.vT2}')
    k.stamp('p3pk')
    e(f'''v_lshrrev_b32 v30, 4, v{L}
v_bfe_u32 v31, v{L}, 2, 2
v_lshl_add_u32 v30, v30, 2, v31
v_mul_u32_u24 v30, 288, v30
v_and_b32 v31, 3, v{L}
v_lshl_add_u32 v{vR}, v31, 3, v30
v_add_u32 v{vR+1}, 61440, v{vR}
v_add_u32 v{vR+2}, 122880, v{vR}
v_mov_b32 v{vOne}, 1
s_lshl_b32 s{G.sT0}, s{G.sW}, 2
v_mov_b32 v{vF1}, s{G.sT0}
s_lshl_b32 s{G.sT0}, s{G.sW}, 3
s_add_u32 s{G.sT0}, s{G.sT0}, 16
v_mov_b32 v{vF2a}, s{G.sT0}
s_add_u32 s{G.sT0}, s{G.sT0}, 4
v_mov_b32 v{vF2b}, s{G.sT0}''')
    e(f'''s_waitcnt lgkmcnt(0)
v_or_b32 v124, v124, v125
v_or3_b32 v124, v124, v126, v127
s_nop 0
v_readfirstlane_b32 s{G.sT0}, v124
s_andn2_b32 s{G.sT0}, s{G.sT0}, s{G.sMode}
s_cmp_lg_u32 s{G.sT0}, 0
s_cbranch_scc1 L_fallback''')
    assert cfg.early_ost
    e(f's_cmp_eq_u32 s{G.sW}, 3\ns_cselect_b64 vcc, -1, 0')
    def a_read(c, nt, slot):
        base = rbase(REG[c]); idx = base // 61440
        return [f'ds_read_b64_tr_b16 a[{aA+4*slot+2*u}:{aA+4*slot+2*u+1}], v{vR+idx} offset:{base-61440*idx+u*4608+nt*32} ; ' + ('@rd WOt14' if c >= 6 else '') for u in range(2)]
    seq = [(c, nt, (0, 1, 2, 3)) for c in range(4) for nt in range(9)]
    seq += [(c, nt, (0, 1)) for c in range(4, 16) for nt in range(9)]
    seq += [(c, nt, (2, 3)) for c in range(4, 16) for nt in range(9)]
    AH_OWN, AH = 6, 8
    for i in range(AH_OWN): e(a_read(seq[i][0], seq[i][1], i % 16))
    k.stamp('p3go')
    def part_load(hp, qt, ks):
        return f'buffer_load_dwordx4 a[{Part(hp,qt,ks)}:{Part(hp,qt,ks)+3}], v{vAd+qt}, s[{G.sWS}:{G.sWS+3}], s{sPh+hp} offen offset:{ks*1024}'
    loads = [[part_load(hp, qt, ks) for ks in range(4) for qt in (2 * half, 2 * half + 1)] for half in range(2) for hp in range(3)]
    def pack_store(half):
        cv = []; st = []
        for x in range(2):
            qt = 2 * half + x
            for blk in range(5):
                d = D(2 * blk, qt)
                cv += [f'v_cvt_pk_bf16_f32 v{d}, v{d}, v{d+1}', f'v_cvt_pk_bf16_f32 v{d+1}, v{d+2}, v{d+3}']
                if blk < 4:
                    b_ = D(2 * blk + 1, qt)
                    cv += [f'v_cvt_pk_bf16_f32 v{d+2}, v{b_}, v{b_+1}', f'v_cvt_pk_bf16_f32 v{d+3}, v{b_+2}, v{b_+3}']
                g = []
                if blk == 0: g.append(f's_add_u32 s{sOst}, s{sPst}, {x*81920 + half*40960}')
                g.append(f'buffer_store_dwordx4 v[{d}:{d+3}], v{vAd + (blk >> 2)}, s[{G.sWS}:{G.sWS+3}], s{sOst} offen offset:{(blk & 3)*1024} sc1')
                st.append(g)
        return cv, st
    R = 32; SUM = 80
    def fin_addr(part):
        return f'''v_and_b32 v{T}, 7, v{L}
v_lshlrev_b32 v{T}, 2, v{T}
v_add_u32 v{T}, s{G.sNb}, v{T}
v_lshlrev_b32 v{T}, 7, v{T}
s_lshr_b32 s{G.sT0}, s{G.sKg}, 1
s_lshl_b32 s{G.sT0}, s{G.sT0}, 3
s_add_u32 s{G.sT0}, s{G.sT0}, {16 + 4*part}
v_add_u32 v{T}, s{G.sT0}, v{T}
s_lshl_b32 s{G.sT0}, s{G.sB}, 12
s_add_u32 s{G.sT0}, s{G.sT0}, {G.FBASE}'''
    def fin_loads(part):
        o = []
        for src in range(8):
            o.append([f's_add_u32 s{G.sT1}, s{sCB}, {part*40960 + src*5120}',
                      f'buffer_load_dwordx4 v[{R+4*src}:{R+4*src+3}], v{vAd+4}, s[{G.sWS}:{G.sWS+3}], s{G.sT1} offen',
                      f'buffer_load_dwordx2 v[{R+32+2*src}:{R+32+2*src+1}], v{vAd+5}, s[{G.sWS}:{G.sWS+3}], s{G.sT1} offen'])
        return o
    def fin_reduce(part):
        e(f's_waitcnt vmcnt({k.vm_need({f"FIN{part}"})})')
        e(f's_mov_b32 s{G.sT1}, 0x00003f80\ns_mov_b32 s{G.sT2}, 0x3f800000')
        for src in range(8):
            for j in range(4):
                for hi_ in range(2):
                    acc = SUM + 2 * j + hi_
                    e(f'v_dot2_f32_bf16 v{acc}, v{R+4*src+j}, s{G.sT1+hi_}, {"0" if src == 0 else f"v{acc}"}')
            for j in range(2):
                for hi_ in range(2):
                    acc = SUM + 8 + 2 * j + hi_
                    e(f'v_dot2_f32_bf16 v{acc}, v{R+32+2*src+j}, s{G.sT1+hi_}, {"0" if src == 0 else f"v{acc}"}')
        e('s_nop 2')
        for j in range(6): e(f'v_cvt_pk_bf16_f32 v{SUM+12+j}, v{SUM+2*j}, v{SUM+2*j+1}')
        e(f'''s_add_u32 s{G.sT0}, s{sOB}, {part*32*1152}
s_cmp_ge_u32 s{G.sW}, 1
s_cselect_b32 s{G.sT1}, 0x7ffff000, s{G.sT0}
s_lshl_b32 s{G.sT2}, s{G.sW}, 6
s_add_u32 s{G.sT0}, s{G.sT0}, s{G.sT2}
buffer_store_dwordx2 v[{SUM+12}:{SUM+13}], v{vAd+6}, s[{G.sOut}:{G.sOut+3}], s{G.sT0} offen{cfg.out_flag}
buffer_store_dwordx2 v[{SUM+14}:{SUM+15}], v{vAd+6}, s[{G.sOut}:{G.sOut+3}], s{G.sT0} offen offset:32{cfg.out_flag}
buffer_store_dwordx2 v[{SUM+16}:{SUM+17}], v{vAd+6}, s[{G.sOut}:{G.sOut+3}], s{G.sT1} offen offset:256{cfg.out_flag}''')
    issued = AH_OWN
    SPL, POL = cfg.own_split
    seg_bounds = [(0, 9 * SPL), (9 * SPL, 9 * POL), (9 * POL, 36), (36, 144), (144, 252)]
    extra = {}
    def place(i0, items, every):
        for n_, it_ in enumerate(items):
            extra.setdefault(i0 + n_ * every, []).append(it_ if isinstance(it_, list) else [it_])
    if ost: place(1, ost, max(1, (9 * SPL - 2) // len(ost)))
    place(36 + 1, loads[2], 1)
    place(36 + 18, loads[3], cfg.l3_every)
    if cfg.tp_late: place(36 + 21, wo_dma('tP', 96), 3)
    place(36 + 70, loads[4], 2)
    place(36 + 88, loads[5], 2)
    for seg, (lo, hi) in enumerate(seg_bounds):
        if seg == 1:
            nn = k.vm_need({'OST'})
            e(f's_waitcnt vmcnt({nn})')
            e(set_flag(k, vF1, dual=cfg.dualflag))
            k.stamp('p3d1')
            if not cfg.tp_late: place(lo + 1, wo_dma('tP', 96), 2)
        if seg == 2:
            e(f's_mov_b32 s{G.sT2}, s90')
            k.p('L_regchk:')
            e(f's_cmp_ge_u32 s{G.sT2}, 32\ns_cbranch_scc1 L_regok')
            e(f'''s_add_u32 s{G.sPass}, s{G.sPass}, 1
s_cmp_ge_u32 s{G.sPass}, 0x4000
s_cbranch_scc1 L_regok
s_lshl_b32 s{G.sT0}, s{G.sB}, 5
v_mov_b32 v{G.vT2}, s{G.sT0}
s_sleep 1
global_load_dword v{G.vT2}, v{G.vT2}, s[16:17] sc1
s_waitcnt vmcnt(0)
v_readfirstlane_b32 s{G.sT2}, v{G.vT2}
s_branch L_regchk''', trace=False)
            k.p('L_regok:')
            e(f'''v_and_b32 v{T}, 3, v{L}
s_lshl_b32 s{G.sT0}, s{G.sKg}, 2
v_add_u32 v{T}, s{G.sT0}, v{T}
v_lshlrev_b32 v{T}, 7, v{T}
v_add_u32 v{T}, v{T}, v{vF1}
s_lshl_b32 s{G.sT0}, s{G.sB}, 12
s_add_u32 s{G.sT0}, s{G.sT0}, {G.FBASE}''')
            if cfg.dualflag:
                poll_dual(k, 'f1', T, G.sT0, 2)
            else: poll(k, 'f1', T, G.sT0)
            k.stamp('p3f1')
            for x in loads[0] + loads[1]: e(x)
            e(f's_cmp_eq_u32 s{G.sW}, 3\ns_cselect_b64 vcc, -1, 0')
        for i in range(lo, hi):
            c, nt, qts = seq[i]
            half = 0 if seg == 3 else 1
            slot = i % 16
            ah = AH_OWN if seg < 3 else AH
            rd = []
            while issued < min(len(seq), i + ah + 1):
                rd += a_read(seq[issued][0], seq[issued][1], issued % 16); issued += 1
            younger = 2 * (issued - len(rd) // 2 - 1 - i)
            pre = [f's_waitcnt lgkmcnt({min(15, younger)})']
            if seg >= 3 and nt == 0:
                pre.append(f's_waitcnt vmcnt({k.vm_need({f"PH{(c>>2)-1}_{half}_{c&3}"})})')
                if seg == 3 and c == 9: pre.append('s_barrier')
                if cfg.tp_late and seg == 3 and c == 12:
                    last = k.nt_marks[-1]
                    younger = sum(1 for x in k.tr[last:] if x.split()[0].startswith('buffer_') or x.split()[0].startswith('global_'))
                    pre += [f's_waitcnt vmcnt({younger})', 's_barrier']
            hook = None
            if seg == 4 and nt == 0 and c == cfg.f2a_c: hook = 'f2a'
            if seg == 4 and nt == 0 and c == cfg.fin0_c: hook = 'fin0'
            mf = []
            for qt in qts:
                Bop = vr(Own(qt, c), 4) if c < 4 else ar(Part((c >> 2) - 1, qt, c & 3), 4)
                Cop = '0' if c == 0 else vr(D(nt, qt), 4)
                mf.append(mfma(vr(D(nt, qt), 4), ar(aA + 4 * slot, 4), Bop, Cop))
            if hook == 'f2a':
                e(f's_waitcnt vmcnt({k.vm_need({"PS0"})})'); e(set_flag(k, vF2a, dual=cfg.dualflag))
            if hook == 'fin0':
                e(f'''v_lshlrev_b32 v{vAd+4}, 4, v{L}
s_lshl_b32 s{G.sT1}, s{G.sW}, 10
v_add_u32 v{vAd+5}, 4096, v{vAd+4}
v_add_u32 v{vAd+4}, s{G.sT1}, v{vAd+4}
s_cmp_ge_u32 s{G.sW}, 1
s_cselect_b32 s{G.sT1}, 0x40000000, 0
v_add_u32 v{vAd+5}, s{G.sT1}, v{vAd+5}
v_and_b32 v{vAd+6}, 15, v{L}
v_mul_u32_u24 v{vAd+6}, 1152, v{vAd+6}
v_lshrrev_b32 v{vAd+7}, 4, v{L}
v_lshl_add_u32 v{vAd+6}, v{vAd+7}, 3, v{vAd+6}''')
                e(fin_addr(0))
                poll_dual(k, 'f2a', T, G.sT0, 3)
                k.stamp('p3f2a')
                place(i, fin_loads(0), 1)
            e(pre)
            e(mf[0]); e(rd)
            e(mf[1])
            for x in extra.pop(i, []): k.emit2(x)
            for m in mf[2:]: e(m)
        k.stamp(f'p3seg{seg}')
        if seg == 3:
            e('s_nop 4')
            cv, st = pack_store(0); e(cv)
            place(144, st, cfg.ps0_every)
        if seg == 4:
            e('s_nop 4')
            cv, st = pack_store(1)
            e(cv[:18]);
            for g in st[:5]: e(g)
            e(cv[18:])
            for g in st[5:]: e(g)
    assert not extra, extra.keys()
    k.stamp('p3mm')
    e(f's_waitcnt vmcnt({k.vm_need({"PS1"})})'); e(set_flag(k, vF2b, dual=cfg.dualflag))
    k.stamp('p3st')
    fin_reduce(0)
    k.stamp('p3r0')
    e(fin_addr(1))
    poll_dual(k, 'f2b', T, G.sT0, 3)
    k.stamp('p3f2')
    for g in fin_loads(1): e(g)
    k.stamp('p3fi')
    fin_reduce(1)
```

```python
import sys, math, struct
from asmlib import *

NAME = 'standalone__mha_block_cached__near_ridge'

class Cfg:
    stamps = False
    kv_flag = ' nt'
    x_flag = ''
    w_flag = ''
    wo_flag = ''
    force_safe = False
    ablate = ''
    l1inv = False
    codepf = 1
    womall = False
    wo_coop = False
    ost_flag = ' sc1'
    epi_early = True
    tp_late = False
    exp_enc = ''
    loop_align = 3
    loop_nop = 0
    late_mode = 0
    kv0_at = (6, 1)
    k1_at = (7, 1)
    D = 2
    perm = False
    w4 = False
    wmall = False
    rot = True
    pad = 0
    dbgstamps = 0
    mapx = True
    dualflag = True
    out_flag = ''
    bswap = 0
    coop_pre = (0, 1, 2, 3, 4, 5, 6, 7, 8)
    coop_mid = ()
    coop_skip = ()
    coop_wait = None
    early_ost = True
    own_split = (0, 2)
    ps0_every = 2
    f2a_c = 10
    fin0_c = 14
    l3_every = 6
    kv_same = False
cfg = Cfg()

sW = 3
sX, sWq, sK, sV, sWS, sWo, sOut = 20, 24, 28, 32, 36, 40, 44
sW4K = 48; sKsoff = 49; sVsoff = 50; sDma = 51; sXor = 52; sIter = 53
sT0, sT1, sT2, sT3 = 54, 55, 56, 57
sC = 58
sXsoff = 60; sWsoff = 61; sW8K = 62; sDelta = 63
sB = 64; sH = 65; sJ = 66; sMode = 67
sKg = 68; sNb = 69; sRot = 70; sPass = 71
sStamp = 72

vLane = 1
vT = 2
vKA = 8
vVA = 12
vDK = 20
vDV = 24
vMG = 26
vT2 = 30
vS = 32
vC = 64
vP = 80
vL = 96
vXA = 112; vWA = 114
vWB = 120
vCo = 118
vOX = 32; vOW = 40
vWoD = 112
vWoR = 121
vAcc = 128
aQ = 0; aKf = 64; aVf = 96; aOnes = 252; aZero = 188
aPA = 96; aPB = 64

def O(dt, qt): return vAcc + (dt * 4 + qt) * 4
def S(qt, kt): return vS + qt * 8 + kt * 4
def CI(qt): return vC + 4 * qt
def P(qt): return vP + 4 * qt
def LA(qt): return vL + 4 * qt
def Qf(qt, ds): return aQ + (qt * 4 + ds) * 4
def Kf(m): return aKf + 4 * m
def Vf(dt): return aVf + 4 * dt

LDS_V = 65536
XS = [32768, 81920]
WS = [114688, 131072, 147456, 16384]
def NWS(): return 4 if cfg.mapx and cfg.w4 else 3
OBASE = 0
PBASE = 16 << 20
FBASE = 60 << 20
FTWIN = 1 << 16
STAMPBASE = 64 << 20

def kb(fn): return ','.join(str(fn(w) // 1024) for w in range(4))
def stamp_reg(i): return [72, 76, 80, 84, 92][i]
def mfma(d, a, b, c): return f'v_mfma_f32_16x16x32_bf16 {d}, {a}, {b}, {c}'

class Slots:
    def __init__(self, n):
        self.pre = [[] for _ in range(n)]
        self.post = [[] for _ in range(n)]
        self.mf = [None] * n
    def out(self):
        o = []
        for i in range(len(self.mf)):
            o += self.pre[i]
            if self.mf[i]: o.append(self.mf[i])
            o += self.post[i]
        return o
    def load(self):
        def cost(x):
            mn = x.split()[0]
            if mn.startswith('v_exp') or mn.startswith('v_rcp'): return 8
            return 4
        n = len(self.mf); res = []
        for i in range(n):
            g = self.post[i] + (self.pre[i + 1] if i + 1 < n else [])
            res.append(sum(cost(x) for x in g))
        return res

def dma_K(tile, slot, soff):
    L = []
    for p in range(4):
        a = lambda w, p=p: slot * 16384 + w * 4096 + p * 1024
        L.append(f'buffer_load_dwordx4 v{vDK+p}, s[{sK}:{sK+3}], {soff} offen offset:{p*1024}{cfg.kv_flag} lds ; @dma K{tile} {kb(a)}')
    return L
def dma_V(tile, slot, soff):
    L = []
    for p in range(4):
        a = lambda w, p=p: LDS_V + slot * 16384 + w * 4096 + p * 1024
        L.append(f'buffer_load_dwordx4 v{vDV+(p&1)}, s[{sV}:{sV+3}], {soff} offen offset:{p*1024}{cfg.kv_flag} lds ; @dma V{tile} {kb(a)}')
    return L

def dma_W(c):
    G = []
    for p in range(4):
        a = lambda w, p=p: WS[c % NWS()] + w * 4096 + p * 1024
        ins = f'buffer_load_dwordx4 v{vOW+p}, s[{sWq}:{sWq+3}], s{sWsoff} offen offset:{p*1024}{cfg.w_flag} lds ; @dma W{c} {kb(a)}'
        g = [ins]
        if p == 0: g = [f's_add_u32 m0, s{sW4K}, {WS[c%NWS()]}', f's_mov_b32 s{sWsoff}, {c*524288}', ins]
        G.append(g)
    return G
def dma_X(c):
    G = []
    for p in range(8):
        a = lambda w, p=p: XS[c % 2] + w * 8192 + p * 1024
        ins = f'buffer_load_dwordx4 v{vOX+p}, s[{sX}:{sX+3}], s{sXsoff} offen offset:{(p&3)*1024}{cfg.x_flag} lds ; @dma X{c} {kb(a)} priv'
        g = [ins]
        if p == 0: g = [f's_add_u32 m0, s{sW8K}, {XS[c%2]}', f's_mov_b32 s{sXsoff}, {c*128}', ins]
        if p == 4: g = [f's_add_u32 m0, s{sW8K}, {XS[c%2]+4096}', 's_nop 0', ins]
        G.append(g)
    return G

def kv_dma_addr():
    T = vT; L = vLane
    o = f'''v_lshrrev_b32 v{T+1}, 4, v{L}
v_and_b32 v{T+3}, 15, v{L}
v_mov_b32 v{T+4}, v{T+1}'''.split('\n')
    for p in range(4):
        o += [f'v_add_u32 v{T+2}, {4*p}, v{T+1}', f'v_xor_b32 v{T+2}, v{T+2}, v{T+3}', f'v_lshlrev_b32 v{T+2}, 4, v{T+2}', f'v_lshl_add_u32 v{vDK+p}, v{T+4}, 8, v{T+2}']
    for par in range(2):
        o += [f'v_add_u32 v{T+2}, {4*par}, v{T+1}', f'v_lshlrev_b32 v{T+2}, 1, v{T+2}', f'v_xor_b32 v{T+2}, v{T+2}, v{T+3}', f'v_lshlrev_b32 v{T+2}, 4, v{T+2}', f'v_lshl_add_u32 v{vDV+par}, v{T+4}, 8, v{T+2}']
    return o
def kv_read_addr():
    T = vT; L = vLane
    o = [f'v_lshrrev_b32 v{T}, 4, v{L}', f'v_bfe_u32 v{T+1}, v{L}, 2, 2', f'v_and_b32 v{T+2}, 3, v{L}', f'v_and_b32 v{T+3}, 15, v{L}',
         f'v_lshlrev_b32 v{T+4}, 8, v{T+3}']
    for ds in range(4):
        o += [f'v_add_u32 v{T+5}, {4*ds}, v{T}', f'v_xor_b32 v{T+5}, v{T+5}, v{T+3}', f'v_lshl_add_u32 v{vKA+ds}, v{T+5}, 4, v{T+4}']
    o += f'''v_lshl_add_u32 v{T+4}, v{T}, 2, v{T+1}
v_and_b32 v{vT2}, 7, v{T+4}
v_lshlrev_b32 v{vT2}, 1, v{vT2}
v_lshlrev_b32 v{T+4}, 8, v{T+4}
v_and_b32 v{T+5}, 1, v{T+2}
v_lshl_add_u32 v{T+4}, v{T+5}, 3, v{T+4}
v_add_u32 v{T+4}, {LDS_V}, v{T+4}
v_lshrrev_b32 v{vT2+1}, 1, v{T+2}'''.split('\n')
    for dt in range(8):
        o += [f'v_add_u32 v{T+5}, {2*dt}, v{vT2+1}', f'v_xor_b32 v{T+5}, v{T+5}, v{vT2}', f'v_lshl_add_u32 v{vVA+dt}, v{T+5}, 4, v{T+4}']
    return o

def epi(qt):
    o = []
    for ds in range(4):
        for x in range(2):
            b_ = O(2 * ds + x, qt)
            o += [f'v_pk_mul_f32 v[{b_}:{b_+1}], v[{b_}:{b_+1}], s[{sC}:{sC+1}]', f'v_pk_mul_f32 v[{b_+2}:{b_+3}], v[{b_+2}:{b_+3}], s[{sC}:{sC+1}]']
        t = vC + (ds & 1) * 4
        for x in range(2):
            b_ = O(2 * ds + x, qt)
            o += [f'v_cvt_pk_bf16_f32 v{t+2*x}, v{b_}, v{b_+1}', f'v_cvt_pk_bf16_f32 v{t+2*x+1}, v{b_+2}, v{b_+3}']
        o += [f'v_accvgpr_write_b32 a{Qf(qt, ds)+i}, v{t+i}' for i in range(4)]
    return o
def kreads0(off): return [f'ds_read_b128 a[{Kf(m)}:{Kf(m)+3}], v{vKA+(m>>1)} offset:{off+(m&1)*4096} ; @rd K0' for m in range(8)]
def vreads0(): return [f'ds_read_b64_tr_b16 a[{Vf(n>>1)+2*(n&1)}:{Vf(n>>1)+2*(n&1)+1}], v{vVA+(n>>1)} offset:{8192+(n&1)*4096}' for n in range(16)]

def p1_reads(c, n, buf):
    A = aPA + buf * 32; B = aPB + buf * 16
    def W(dt, u):
        ds, x = dt >> 1, dt & 1
        st = c % NWS()
        reg, so = (vWA + ds, st * 16384) if st < 3 else (vWB + ds, 0)
        return f'ds_read_b64_tr_b16 a[{A+4*dt+2*u}:{A+4*dt+2*u+1}], v{reg} offset:{so+(32*n+4*u)*256+8*x} ; @rd W{c}'
    def X(qt): return f'ds_read_b128 a[{B+4*qt}:{B+4*qt+3}], v{vXA+n} offset:{(c%2)*49152+qt*2048} ; @rd X{c}'
    R = [X(0), W(0, 0), W(0, 1), X(1), X(2), X(3)]
    for dt in range(1, 8): R += [W(dt, 0), W(dt, 1)]
    return R

def p1_kstep(k, c, n, groups, last=False, fill=None):
    Sl = Slots(32)
    buf = n & 1
    final = last and n == 1 and cfg.epi_early
    for m in range(32):
        dt, qt = (m >> 2, m & 3) if not final else (m & 7, m >> 3)
        Sl.mf[m] = mfma(vr(O(dt, qt), 4), ar(aPA + buf * 32 + 4 * dt, 4), ar(aPB + buf * 16 + 4 * qt, 4), '0' if (c == 0 and n == 0) else vr(O(dt, qt), 4))
    if n == 0: R = p1_reads(c, 1, 1)
    else: R = [] if last else p1_reads(c + 1, 0, 0)
    if n == 1:
        vm = (k.vm_need({f'X{c+1}', f'W{c+1}'}) if not cfg.ablate else 20) if not last else (k.vm_need({'K0', 'Vm1'}) if final else 63)
        Sl.pre[0] += [f's_waitcnt vmcnt({vm}) lgkmcnt(0)', 's_barrier']
    else: Sl.pre[0] += ['s_waitcnt lgkmcnt(0)']
    if final:
        R = kreads0(0)[:4] + vreads0()
    ab = cfg.ablate
    if 'p1rd' in ab: R = []
    if 'p1x' in ab: groups = [[x for x in g if '@dma X' not in x] for g in groups]
    if 'p1w' in ab: groups = [[x for x in g if '@dma W' not in x] for g in groups]
    if 'p1kv' in ab: groups = [[x for x in g if '@dma K' not in x and '@dma V' not in x] for g in groups]
    for i, r in enumerate(R): Sl.post[2 * (i // 2)].append(r)
    if final:
        E0 = epi(0)
        g = 10
        while E0:
            n_ = (1 if len(Sl.post[g]) >= 2 else 3) if g < 31 else len(E0)
            Sl.post[g] += E0[:n_]; E0 = E0[n_:]; g = min(31, g + 1)
    if groups:
        nn = len(groups)
        for i, g in enumerate(groups):
            Sl.post[min(31, 1 + 2 * ((i * 16) // nn))] += g
    if fill:
        g = 1
        while fill and g < 32:
            if len(Sl.post[g]) == 0:
                for _ in range(2):
                    if fill:
                        x = fill.pop(0)
                        Sl.post[g] += x if isinstance(x, list) else [x]
                        if isinstance(x, list): break
            g += 1
    return Sl.out()

class Kernel:
    def __init__(self):
        self.p = Prog(); self.tr = []; self.nstamp = 0; self.q = []; self.nt_marks = []
    def e(self, s, text=True, trace=True):
        if isinstance(s, str): s = [x.strip() for x in s.split('\n') if x.strip()]
        if text: self.p(s)
        if trace: self.tr.extend(s)
    def stamp(self, name):
        if cfg.stamps and name in cfg.stamps:
            i = cfg.stamps.index(name); b = stamp_reg(i)
            self.e(f's_memrealtime s[{b}:{b+1}]\ns_memtime s[{b+2}:{b+3}]')
            self.nstamp = max(self.nstamp, i + 1)
    def vm_need(self, tags, incl=False):
        q = []
        marks = list(self.nt_marks)
        for pos, line in enumerate(self.tr + ['s_nop 0']):
            while incl and marks and marks[0] <= pos:
                q.append(None); marks.pop(0)
            code, _, com = line.partition(';')
            mn = code.split()[0] if code.split() else ''
            if mn.startswith('buffer_') and mn not in ('buffer_inv', 'buffer_wbl2') or mn.startswith('global_'):
                t = None
                a = com.split()
                if '@dma' in a: t = a[a.index('@dma') + 1]
                elif '@tag' in a: t = a[a.index('@tag') + 1]
                q.append(t)
        for t in tags: assert t in q, f'tag {t} was never issued'
        last = max((i for i, t in enumerate(q) if t in tags), default=-1)
        return min(63, len(q) - 1 - last)

    def header(self):
        self.p(f'; @launch grid=(256,1,1) block=(256,1,1) lds=163840')
        if cfg.stamps: self.p('; stamps: ' + ','.join(cfg.stamps))
        self.p('.amdgcn_target "amdgcn-amd-amdhsa--gfx950"\n.text')
        self.p(f'.globl {NAME}_kernel\n.p2align 8\n.type {NAME}_kernel,@function\n{NAME}_kernel:')
    def footer(self):
        self.p('L_end:\ns_endpgm')
        self.p('.p2align 6\nL_codeend:')
        self.p('.section .rodata,"a"\n.p2align 6')
        self.p(f'.amdhsa_kernel {NAME}_kernel')
        self.p('''.amdhsa_next_free_vgpr 512
.amdhsa_next_free_sgpr 102
.amdhsa_accum_offset 256
.amdhsa_group_segment_fixed_size 0
.amdhsa_kernarg_size 64
.amdhsa_user_sgpr_count 2
.amdhsa_user_sgpr_kernarg_segment_ptr 1
.amdhsa_system_sgpr_workgroup_id_x 1
.end_amdhsa_kernel''')

    def code_prefetch(self, where):
        e = self.e
        if cfg.codepf == where:
            e(f'''s_getpc_b64 s[{sT2}:{sT2+1}]
L_pc:
v_and_b32 v{vT+5}, 15, v{vLane}
s_lshr_b32 s{sT0}, s2, 3
s_and_b32 s{sT2}, s{sT2}, 0xffffff00
s_lshl_b32 s{sT0}, s{sT0}, 4
s_sub_u32 s{sT2}, s{sT2}, CODEOFF
v_add_u32 v{vT+5}, s{sT0}, v{vT+5}
s_subb_u32 s{sT3}, s{sT3}, 0
v_lshlrev_b32 v{vT+5}, 7, v{vT+5}
v_min_u32 v{vT+5}, CODELEN, v{vT+5}
global_load_dword v92, v{vT+5}, s[{sT2}:{sT2+1}]''')

    def setup(self):
        e = self.e
        e('s_cmp_ge_u32 s2, 256\ns_cbranch_scc1 L_end')
        if cfg.perm: e('s_lshr_b32 s3, s2, 3\ns_and_b32 s3, s3, 7\ns_xor_b32 s2, s2, s3')
        self.stamp('entry')
        e(f's_load_dwordx16 s[4:19], s[0:1], 0')
        e(f'''v_and_b32 v{vLane}, 63, v0
v_lshrrev_b32 v{vT}, 6, v0
s_and_b32 s{sT0}, s2, 7
s_lshr_b32 s{sJ}, s2, 3
v_readfirstlane_b32 s{sW}, v{vT}
s_and_b32 s{sB}, s{sT0}, 1
s_xor_b32 s{sB}, s{sB}, {cfg.bswap}
s_lshl_b32 s{sB}, s{sB}, 2
s_and_b32 s{sT1}, s{sJ}, 3
s_add_u32 s{sB}, s{sB}, s{sT1}
s_lshr_b32 s{sH}, s{sT0}, 1
s_lshl_b32 s{sH}, s{sH}, 3
s_lshr_b32 s{sT1}, s{sJ}, 2
s_add_u32 s{sH}, s{sH}, s{sT1}
MAPX
s_lshr_b32 s{sKg}, s{sH}, 2
s_and_b32 s{sNb}, s{sH}, 3
s_lshl_b32 s{sW4K}, s{sW}, 12
ROT
'''.replace('ROT', f's_add_u32 s{sRot}, s{sH}, s{sB}\ns_and_b32 s{sRot}, s{sRot}, 15\ns_lshl_b32 s{sRot}, s{sRot}, 14\ns_add_u32 s{sRot}, s{sRot}, s{sW4K}' if cfg.rot else f's_mov_b32 s{sRot}, s{sW4K}').replace('MAPX', f's_mov_b32 s{sB}, s{sT0}\ns_mov_b32 s{sH}, s{sJ}' if cfg.mapx else 's_nop 0'))
        L = vLane; T = vT
        e(f'''v_lshrrev_b32 v{T}, 3, v{L}
s_lshl_b32 s{sT0}, s{sW}, 6
v_add_u32 v{T}, s{sT0}, v{T}
v_mul_u32_u24 v{T}, 1152, v{T}
v_lshrrev_b32 v{T+1}, 4, v{L}
v_and_b32 v{T+2}, 7, v{L}
v_xor_b32 v{T+3}, v{T+2}, v{T+1}
v_xor_b32 v{T+4}, 4, v{T+3}
v_lshl_add_u32 v{T+3}, v{T+3}, 4, v{T}
v_lshl_add_u32 v{T+4}, v{T+4}, 4, v{T}''')
        for p in range(8):
            e(f'v_add_u32 v{vOX+p}, {p*9216 - (p&3)*1024}, v{T+3+(p&1)}')
        e(f'''v_lshlrev_b32 v{T+2}, 2, v{T+1}
v_and_b32 v{T+3}, 15, v{L}
v_xor_b32 v{T+2}, v{T+2}, v{T+3}
v_lshlrev_b32 v{T+2}, 4, v{T+2}
s_lshl_b32 s{sT0}, s{sW}, 4
v_add_u32 v{T+4}, s{sT0}, v{T+1}
v_lshl_add_u32 v{T+5}, v{T+4}, 13, v{T+2}''')
        for p in range(4):
            e(f'v_add_u32 v{vOW+p}, {p*(32768-1024)}, v{T+5}')
        e(f'''v_lshrrev_b32 v{T+5}, 3, v{L}
s_lshr_b32 s{sT0}, s{sJ}, 2
s_lshl_b32 s{sT0}, s{sT0}, 5
s_lshl_b32 s{sT1}, s{sW}, 3
s_add_u32 s{sT0}, s{sT0}, s{sT1}
v_add_u32 v{T+5}, s{sT0}, v{T+5}
v_mul_u32_u24 v{T+5}, 1152, v{T+5}
v_and_b32 v{T+2}, 7, v{L}
v_lshl_add_u32 v{vCo}, v{T+2}, 4, v{T+5}
s_and_b32 s{sT0}, s{sJ}, 3
s_lshl_b32 s{sT0}, s{sT0}, 4
s_lshl_b32 s{sT1}, s{sW}, 2
s_add_u32 s{sT0}, s{sT0}, s{sT1}
v_add_u32 v{T+5}, s{sT0}, v{T+1}
v_lshlrev_b32 v{T+5}, 13, v{T+5}
v_and_b32 v{T+2}, 15, v{L}
v_lshl_add_u32 v{vCo+1}, v{T+2}, 4, v{T+5}''')
        if cfg.mapx:
            e(f'''v_lshrrev_b32 v{T+5}, 3, v{L}
s_lshl_b32 s{sT0}, s{sJ}, 3
v_add_u32 v{T+5}, s{sT0}, v{T+5}
v_mul_u32_u24 v{T+5}, 1152, v{T+5}
v_and_b32 v{T+2}, 7, v{L}
v_lshl_add_u32 v{vCo}, v{T+2}, 4, v{T+5}''')
        e('s_waitcnt lgkmcnt(0)')
        self.stamp('karg')
        if cfg.l1inv:
            e(f's_cmp_eq_u32 s{sW}, 0\ns_cbranch_scc0 L_noinv\nbuffer_inv sc1', trace=False)
            self.p('L_noinv:')
        e(f'''s_mul_i32 s{sT0}, s{sB}, 294912
s_add_u32 s{sX}, s4, s{sT0}
s_addc_u32 s{sX+1}, s5, 0
s_mov_b32 s{sX+2}, 294912
s_mov_b32 s{sX+3}, 0x20000
s_lshl_b32 s{sT0}, s{sH}, 8
s_add_u32 s{sWq}, s10, s{sT0}
s_addc_u32 s{sWq+1}, s11, 0
s_sub_u32 s{sWq+2}, 4718592, s{sT0}
s_mov_b32 s{sWq+3}, 0x20000
s_mov_b32 s{sWS}, s18
s_mov_b32 s{sWS+1}, s19
s_mov_b32 s{sWS+2}, 0x8000000
s_mov_b32 s{sWS+3}, 0x20000''')
        e(f's_lshl_b32 s{sW8K}, s{sW}, 13')
        def coop(c):
            if cfg.mapx:
                if c >= 3: return []
                d = 44 + 4 * c
                return [f's_lshl_b32 s{sT1}, s{sW}, 7', f'buffer_load_dwordx4 v[{d}:{d+3}], v{vCo}, s[{sX}:{sX+3}], s{sT1} offen offset:{c*512} ; @tag CO{c}']
            d = 44 + 8 * c if c < 6 else 96 + 8 * (c - 6) if c < 8 else 120
            return [f's_mov_b32 s{sT1}, {c*524288}', f'buffer_load_dwordx4 v[{d}:{d+3}], v{vCo+1}, s[{sWq}:{sWq+3}], s{sT1} offen ; @tag CO{c}',
                    f'buffer_load_dwordx4 v[{d+4}:{d+7}], v{vCo}, s[{sX}:{sX+3}], 0 offen offset:{c*128} ; @tag CO{c}']
        for c in cfg.coop_pre: e(coop(c))
        self.code_prefetch(1)
        self.coop = coop
        self.stamp('dma0')
        e(f'''s_lshl_b32 s{sT0}, s{sB}, 5
s_add_u32 s{sT0}, s{sT0}, s{sH}
s_lshl_b32 s{sT0}, s{sT0}, 18''')
        if cfg.kv_same: e(f's_mov_b32 s{sT0}, 0')
        e(f'''s_add_u32 s{sK}, s6, s{sT0}
s_addc_u32 s{sK+1}, s7, 0
s_mov_b32 s{sK+2}, 262144
s_mov_b32 s{sK+3}, 0x20000
s_add_u32 s{sV}, s8, s{sT0}
s_addc_u32 s{sV+1}, s9, 0
s_mov_b32 s{sV+2}, 262144
s_mov_b32 s{sV+3}, 0x20000''')
        e(f'''s_mul_i32 s{sT0}, s{sKg}, {512*1152}
s_mul_i32 s{sT1}, s{sNb}, 288
s_add_u32 s{sT0}, s{sT0}, s{sT1}
s_add_u32 s{sWo}, s12, s{sT0}
s_addc_u32 s{sWo+1}, s13, 0
s_sub_u32 s{sWo+2}, 4718592, s{sT0}
s_mov_b32 s{sWo+3}, 0x20000
s_mov_b32 s{sOut}, s14
s_mov_b32 s{sOut+1}, s15
s_mov_b32 s{sOut+2}, 2359296
s_mov_b32 s{sOut+3}, 0x20000''')
        e(kv_dma_addr())
        self.stamp('cw0')
        if cfg.coop_wait is not None: e(f's_waitcnt vmcnt({self.vm_need({f"CO{cfg.coop_wait}"})})')
        self.stamp('cw1')
        for g in dma_W(0) + dma_X(0): e(g)
        for c in cfg.coop_mid: e(self.coop(c))
        self.code_prefetch(2)
        self.stamp('d0')
        e(f'''v_lshrrev_b32 v{T}, 4, v{L}
v_bfe_u32 v{T+1}, v{L}, 2, 2
v_and_b32 v{T+2}, 3, v{L}
v_and_b32 v{T+3}, 15, v{L}''')
        e(f'''v_lshl_add_u32 v{T+4}, v{T}, 3, v{T+1}
v_lshlrev_b32 v{T+4}, 8, v{T+4}
v_lshl_add_u32 v{T+4}, v{T+2}, 4, v{T+4}
v_add_u32 v{T+4}, {WS[0]}, v{T+4}''')
        for ds in range(4):
            e(f'v_xor_b32 v{T+5}, {ds}, v{T+1}\nv_lshl_add_u32 v{vWA+ds}, v{T+5}, 6, v{T+4}')
        if NWS() == 4:
            for ds in range(4): e(f'v_subrev_u32 v{vWB+ds}, {WS[0]-WS[3]}, v{vWA+ds}')
        e(f'''s_lshl_b32 s{sT0}, s{sW}, 13
s_add_u32 s{sT0}, s{sT0}, {XS[0]}
v_lshlrev_b32 v{T+4}, 7, v{T+3}
v_add_u32 v{T+4}, s{sT0}, v{T+4}
v_lshrrev_b32 v{vT2}, 1, v{T+3}''')
        for n in range(2):
            e(f'''v_add_u32 v{T+5}, {4*n}, v{T}
v_xor_b32 v{T+5}, v{T+5}, v{vT2}
v_lshl_add_u32 v{vXA+n}, v{T+5}, 4, v{T+4}''')
        e(kv_read_addr())
        cbits = '0x%08x' % int.from_bytes(struct.pack('<f', math.log2(math.e) / math.sqrt(128.0)), 'little')
        e(f's_mov_b32 s{sC}, {cbits}\ns_mov_b32 s{sC+1}, {cbits}')
        e(f'v_mov_b32 v{T+5}, 0x3f803f80')
        for i in range(4): e(f'v_accvgpr_write_b32 a{aOnes+i}, v{T+5}')
        for i in range(4): e(f'v_accvgpr_write_b32 a{aZero+i}, 0')
        for i in range(4): e(f'v_mov_b32 v{vMG+i}, 0xff800000')
        e(f's_mov_b32 s{sPass}, 0\ns_mov_b32 s{sMode}, 0')
        for g in dma_W(1) + dma_X(1): e(g)
        self.code_prefetch(3)
        if cfg.wmall:
            e(f'''s_mul_i32 s{sT0}, s2, 18432
s_mul_i32 s{sT1}, s{sW}, 4608
s_add_u32 s{sT0}, s{sT0}, s{sT1}
s_lshl_b32 s{sT1}, s{sH}, 8
s_sub_u32 s{sT0}, s{sT0}, s{sT1}
v_lshlrev_b32 v{T+5}, 4, v{L}''')
            for i in range(5):
                e(f'buffer_load_dwordx4 v[{56+4*i}:{59+4*i}], v{T+5}, s[{sWq}:{sWq+3}], s{sT0} offen offset:{min(i*1024, 3584)} ; @tag WM')
        self.stamp('d1')
        e(f'''s_lshl_b32 s{sT0}, s{sB}, 5
s_add_u32 s{sT0}, s{sT0}, s{sH}
s_lshl_b32 s{sT0}, s{sT0}, 7
s_add_u32 s{sT0}, s{sT0}, {FBASE}
v_mov_b32 v{T+2}, 0
v_and_b32 v{T+3}, 15, v{L}
v_lshlrev_b32 v{T+5}, 2, v{T+3}
v_bfe_u32 v{T+1}, v{L}, 4, 1
v_mul_u32_u24 v{T+1}, {FTWIN}, v{T+1}
v_add_u32 v{T+5}, v{T+5}, v{T+1}
v_cmp_gt_u32 vcc, 32, v{L}
v_mov_b32 v{T+4}, 0x7fffffff
s_cmp_eq_u32 s{sW}, 0
s_cselect_b64 vcc, vcc, 0
s_nop 1
v_cndmask_b32 v{T+5}, v{T+4}, v{T+5}, vcc
buffer_store_dword v{T+2}, v{T+5}, s[{sWS}:{sWS+3}], s{sT0} offen sc1 ; @tag CLR''')

    def phase1(self):
        e = self.e
        self.stamp('p1wait')
        n0 = self.vm_need({'X0', 'W0'})
        e(f's_waitcnt vmcnt({n0})\ns_barrier')
        self.stamp('p1go')
        e(p1_reads(0, 0, 0))
        def one(G, m0, extra=()):
            G = [[x] for x in G]
            G[0] = [m0] + list(extra) + (['s_nop 0'] if not extra else []) + G[0]
            return G
        K0 = one(dma_K(0, 0, f's{sKsoff}'), f's_mov_b32 m0, s{sW4K}', [f's_mov_b32 s{sKsoff}, s{sRot}'])
        K1 = one(dma_K(1, 1, f's{sKsoff}'), f's_add_u32 m0, s{sW4K}, 16384', [f's_add_u32 s{sKsoff}, s{sRot}, 16384', f's_and_b32 s{sKsoff}, s{sKsoff}, 0x3ffff'])
        K2 = one(dma_K(2, 2, f's{sKsoff}'), f's_add_u32 m0, s{sW4K}, {2*16384}', [f's_add_u32 s{sKsoff}, s{sRot}, {2*16384}', f's_and_b32 s{sKsoff}, s{sKsoff}, 0x3ffff'])
        V0 = one(dma_V(0, 1, f's{sVsoff}'), f's_add_u32 m0, s{sW4K}, {LDS_V+16384}', [f's_add_u32 s{sVsoff}, s{sRot}, 8192', f's_and_b32 s{sVsoff}, s{sVsoff}, 0x3ffff'])
        V1 = one(dma_V(1, 2, f's{sVsoff}'), f's_add_u32 m0, s{sW4K}, {LDS_V+2*16384}', [f's_add_u32 s{sVsoff}, s{sRot}, {8192+16384}', f's_and_b32 s{sVsoff}, s{sVsoff}, 0x3ffff'])
        Vm = [[f's_lshl_b32 s{sT2}, s{sW}, 11', f's_add_u32 m0, s{sT2}, {LDS_V + 8192}', f's_sub_u32 s{sT2}, s{sRot}, s{sT2}']]
        for p in range(2):
            a = lambda w, p=p: LDS_V + 8192 + w * 2048 + p * 1024
            ins = f'buffer_load_dwordx4 v{vDV+p}, s[{sV}:{sV+3}], s{sT2} offen offset:{p*1024}{cfg.kv_flag} lds ; @dma Vm1 {kb(a)}'
            if p == 0: Vm[0].append(ins)
            else: Vm.append([ins])
        plan = {}
        rest = [c for c in range(9) if c not in cfg.coop_pre and c not in cfg.coop_mid and c not in cfg.coop_skip]
        plan[(0, 0)] = [self.coop(c) for c in rest] + dma_W(2)
        for c in range(9):
            g1 = []
            if c + 2 <= 8: g1 += dma_X(c + 2)
            plan[(c, 1)] = g1
            if NWS() == 3 and c + 3 <= 8: plan[(c + 1, 0)] = dma_W(c + 3)
        if NWS() == 4:
            plan[(0, 0)] = plan[(0, 0)] + dma_W(3)
            plan[(2, 0)] = dma_W(4) + dma_W(5)
            plan[(4, 0)] = dma_W(6) + dma_W(7)
            plan[(5, 0)] = dma_W(8)
        K3 = one(dma_K(3, 3, f's{sKsoff}'), f's_add_u32 m0, s{sW4K}, {3*16384}', [f's_add_u32 s{sKsoff}, s{sRot}, {3*16384}', f's_and_b32 s{sKsoff}, s{sKsoff}, 0x3ffff'])
        V2 = one(dma_V(2, 3, f's{sVsoff}'), f's_add_u32 m0, s{sW4K}, {LDS_V+3*16384}', [f's_add_u32 s{sVsoff}, s{sRot}, {8192+2*16384}', f's_and_b32 s{sVsoff}, s{sVsoff}, 0x3ffff'])
        self.prefill = K0 + Vm + K1 + V0 + V1 + K2 + (V2 + K3 if cfg.D == 3 else [])
        plan[cfg.kv0_at] = plan.get(cfg.kv0_at, []) + K0 + Vm
        plan[cfg.k1_at] = plan.get(cfg.k1_at, []) + K1
        if cfg.womall:
            g0 = [f's_mul_i32 s63, s{sKg}, {512*1152}', f's_mul_i32 s60, s{sNb}, 288', 's_add_u32 s63, s63, s60', f's_sub_u32 s60, s{sWo}, s63', f's_subb_u32 s61, s{sWo+1}, 0',
                  's_mul_i32 s63, s2, 18432', f's_mul_i32 s62, s{sW}, 4608', 's_add_u32 s63, s63, s62', f'v_lshlrev_b32 v{vT+3}, 4, v{vLane}', f'v_add_u32 v{vT+3}, s63, v{vT+3}']
            WM = [[f'global_load_dwordx4 a[{164+4*i}:{167+4*i}], v{vT+3}, s[60:61] offset:{min(i*1024, 3584)} ; @tag WM'] for i in range(5)]
            WM[0] = g0 + WM[0]
            plan[cfg.womall] = plan.get(cfg.womall, []) + WM
        plan[(8, 0)] = V0
        if cfg.late_mode == 0:
            plan[(8, 1)] = V1
            self.late_kv = K2 + (V2 + K3 if cfg.D == 3 else []); self.last_kv = []
        elif cfg.late_mode == 1:
            self.late_kv = []; self.last_kv = V1 + K2
        else:
            plan[(8, 1)] = V1
            self.late_kv = []; self.last_kv = K2
        from g2p3 import wo_setup, p3_scalars
        fill = wo_setup() + p3_scalars()
        for c in range(9):
            for n in range(2):
                e(p1_kstep(self, c, n, plan.get((c, n), []), last=(c == 8), fill=(fill if c >= 1 else None)))
            if c == 7: assert not fill
            if c == 3:
                e(f'''s_lshl_b32 s{sT3}, s{sB}, 5
v_mov_b32 v{vT+4}, s{sT3}
v_mov_b32 v{vT+5}, 1
s_cmp_eq_u32 s{sW}, 0
s_cbranch_scc0 L_noreg
s_mov_b64 exec, 1
global_atomic_add v{vT+4}, v{vT+5}, s[16:17] sc1
s_mov_b64 exec, -1''', trace=False)
                self.p('L_noreg:')
            if c == 5: self.stamp('p1c6')
            self.stamp(f'c{c}')
        self.stamp('p1end')
        self.late_kv_pending = self.late_kv; self.late_kv = []
        assert not self.late_kv
    QK = [0, 17, 34, 42]
    PV = [50, 59, 8, 25]
    LS = [58, 67, 16, 33]
    EX = [11, 29, 45, 63]
    VG = [26, 27, 27, 28, 28, 30, 30, 32, 34, 34, 36, 38, 38, 40, 42, 42]
    KG = [44, 46, 46, 50, 50, 52, 54, 54]
    def step(self, k, par, kind='full', extra=None):
        NS = 68
        Sl = Slots(NS)
        it = k // 2; ktile = it + 1; vtile = it
        last = kind == 'last'
        for qt in range(4):
            if not last:
                for m in range(8):
                    ds, kt = m >> 1, m & 1
                    Sl.mf[self.QK[qt] + m] = mfma(vr(S(qt, kt), 4), ar(Kf(m), 4), ar(Qf(qt, ds), 4), vr(CI(qt) if ds == 0 else S(qt, kt), 4))
            if not last or qt >= 2:
                for dt in range(8):
                    Sl.mf[self.PV[qt] + dt] = mfma(vr(O(dt, qt), 4), ar(Vf(dt), 4), vr(P(qt), 4), vr(O(dt, qt), 4))
                Sl.mf[self.LS[qt]] = mfma(vr(LA(qt), 4), ar(aOnes, 4), vr(P(qt), 4), vr(LA(qt), 4))
        mem = [[] for _ in range(NS)]; alu = [[] for _ in range(NS)]
        def put(g, ins):
            g %= NS
            mn = ins.split()[0]
            (mem if mn.startswith('ds_') or mn.startswith('buffer_') or mn.startswith('global_') else alu)[g].append(ins)
        for qt in range(4):
            for i in range(8):
                g = self.EX[qt] + 2 * i
                if last and g < NS: continue
                r = S(qt, i >> 2) + (i & 3)
                put(g, f'v_exp_f32{cfg.exp_enc} v{r}, v{r}')
            for n in range(4):
                g = self.EX[qt] + 4 * n + 3
                if last and g < NS: continue
                r = S(qt, n >> 1) + 2 * (n & 1)
                if last and Sl.mf[g % NS] is None: put(g, 's_nop 0')
                put(g, f'v_cvt_pk_bf16_f32 v{P(qt)+n}, v{r}, v{r+1}')
        if last: Sl.pre[8].append('s_nop 1')
        if not last:
            for n in range(16):
                dt, u = n >> 1, n & 1
                put(self.VG[n], f'ds_read_b64_tr_b16 a[{Vf(dt)+2*u}:{Vf(dt)+2*u+1}], v{vVA+dt} offset:{par*8192+u*4096}')
            if kind == 'full':
                for m in range(8):
                    ds, kt = m >> 1, m & 1
                    put(self.KG[m], f'ds_read_b128 a[{Kf(m)}:{Kf(m)+3}], v{vKA+ds} offset:{par*8192+kt*4096}')
            nk = sum(1 for g in self.KG if g <= 48) if kind == 'full' else 0
            Sl.pre[49].append(f's_waitcnt lgkmcnt({nk})')
            if kind == 'full': Sl.pre[67].append('s_waitcnt lgkmcnt(0)')
            if par == 0:
                Sl.pre[1] += ['s_waitcnt vmcnt(VMW)', 's_barrier']
                for dt in range(8): put([2, 4, 4, 6, 8, 8, 10, 14][dt], f'v_xor_b32{cfg.exp_enc} v{vVA+dt}, s{sXor}, v{vVA+dt}')
                for ds in range(4): put([18, 20, 20, 22][ds], f'v_xor_b32{cfg.exp_enc} v{vKA+ds}, s{sXor}, v{vKA+ds}')
        if extra:
            for g, L in extra.items():
                mem[g % NS] += L
        ab = cfg.ablate
        if ab and kind == 'full':
            if 'exp' in ab: alu = [[x for x in a if not x.startswith('v_exp')] for a in alu]
            if 'cvt' in ab: alu = [[x for x in a if not x.startswith('v_cvt')] for a in alu]
            if 'vrd' in ab: mem = [[x for x in a if not x.startswith('ds_read_b64')] for a in mem]
            if 'krd' in ab: mem = [[x for x in a if not x.startswith('ds_read_b128')] for a in mem]
            if 'dma' in ab: mem = [[x for x in a if not x.startswith('buffer_load')] for a in mem]
            if 'lsum' in ab:
                for qt in range(4): Sl.mf[self.LS[qt]] = None
        for g in range(NS): Sl.post[g] = mem[g] + alu[g]
        if cfg.pad and not last:
            for g in range(3, NS, max(1, NS // cfg.pad)): Sl.post[g].append('s_nop 3')
        self.last_load = Sl.load()
        return Sl.out()

    def kv_extra(self, it, par, doK=True, doV=True):
        slot = (it + 1 + cfg.D) & 3
        X = {}
        if par == 0:
            X.setdefault(61, []).append(f's_and_b32 s{sVsoff}, s{sVsoff}, 0x3ffff')
            if doK:
                D = dma_K(it + 1 + cfg.D, slot, f's{sKsoff}')
                X[12] = [f's_mov_b32 m0, s{sDma}']
                for g, d in zip((16, 24, 58, 64), D): X.setdefault(g, []).append(d)
                X.setdefault(64, []).append(f's_add_u32 s{sKsoff}, s{sKsoff}, 16384')
        else:
            X.setdefault(12, []).append(f's_and_b32 s{sKsoff}, s{sKsoff}, 0x3ffff')
            if doV:
                D = dma_V(it + cfg.D, slot, f's{sVsoff}')
                X[0] = [f's_add_u32 s{sT0}, s{sDma}, {LDS_V}']
                X[4] = [f's_mov_b32 m0, s{sT0}']
                for g, d in zip((8, 20, 58, 64), D): X.setdefault(g, []).append(d)
                X.setdefault(64, []).append(f's_add_u32 s{sVsoff}, s{sVsoff}, 16384')
            if cfg.D == 2:
                X.setdefault(61, []).append(f's_xor_b32 s{sXor}, s{sXor}, 0x8000')
                X.setdefault(62, []).append(f's_xor_b32 s{sDma}, s{sDma}, s{sXor}')
            else:
                X.setdefault(61, []).append(f's_xor_b32 s{sDma}, s{sDma}, s{sXor}')
                X.setdefault(62, []).append(f's_xor_b32 s{sXor}, s{sXor}, 0x8000')
            X.setdefault(62, []).append(f's_add_u32 s{sIter}, s{sIter}, 1')
        return X

    def phase2(self):
        e = self.e
        def qk0(qt):
            return [mfma(vr(S(qt, m & 1), 4), ar(Kf(m), 4), ar(Qf(qt, m >> 1), 4), '0' if m < 2 else vr(S(qt, m & 1), 4)) for m in range(8)]
        def weave(valu, mf, lead=2):
            o = []; n = len(valu); step_ = max(1, (n - lead) // max(1, len(mf))); j = 0
            for i, x in enumerate(valu):
                o.append(x)
                if i >= lead and (i - lead) % step_ == 0 and j < len(mf): o += mf[j] if isinstance(mf[j], list) else [mf[j]]; j += 1
            for x in mf[j:]: o += x if isinstance(x, list) else [x]
            return o
        kreads = kreads0
        vreads = vreads0()
        zero = lambda qt: [mfma(vr(O(dt, qt), 4), ar(aZero, 4), ar(aZero, 4), '0') for dt in range(8)] + [mfma(vr(LA(qt), 4), ar(aZero, 4), ar(aZero, 4), '0')]
        wait0 = f's_waitcnt vmcnt({self.vm_need({"K0", "Vm1"})})'
        late = self.late_kv_pending
        if cfg.epi_early:
            e(kreads0(0)[4:])
            e('s_nop 1')
            E1 = epi(1)
            e(E1[:8]); e('s_waitcnt lgkmcnt(0)')
            e(weave(E1[8:], qk0(0)))
        else:
            e('s_nop 3')
            e(wait0); e('s_barrier')
            self.stamp('q0')
            e(kreads(0)); e(vreads)
            e(epi(0))
            self.stamp('q1')
            e('s_waitcnt lgkmcnt(15)\ns_waitcnt lgkmcnt(0)')
            e(weave(epi(1), qk0(0)))
        h_ = len(late) // 2
        e(weave(epi(2), qk0(1) + [g for g in late[:h_]]))
        e(weave(epi(3), qk0(2) + [g for g in late[h_:]]))
        self.stamp('q2')
        e('s_branch L_p2q3', trace=False)
        self.p('L_p2start:')
        R = [wait0, 's_barrier'] + kreads(0) + vreads + ['s_waitcnt lgkmcnt(0)'] + qk0(0) + qk0(1) + qk0(2)
        self.e([x.split(';')[0].strip() for x in R], trace=False)
        self.p('L_p2q3:')
        q3 = qk0(3); k1 = kreads(8192)
        z = zero(2) + zero(3)
        e('s_nop 1')
        for m in range(8):
            e(q3[m]); e(k1[m]); e(z[2*m:2*m+2])
        e(z[16:])
        self.stamp('q3')
        for qt in range(4):
            a, b = S(qt, 0), S(qt, 1); m = vT + qt
            e(f'v_max3_f32 v{m}, v{a}, v{a+1}, v{vMG+qt}\nv_max3_f32 v{m}, v{m}, v{a+2}, v{a+3}\nv_max3_f32 v{m}, v{m}, v{b}, v{b+1}\nv_max3_f32 v{m}, v{m}, v{b+2}, v{b+3}')
        for sw in ('v_permlane32_swap_b32', 'v_permlane16_swap_b32'):
            for qt in range(4): e(f'v_mov_b32 v{vC+qt}, v{vT+qt}')
            e('s_nop 0')
            for qt in range(4): e(f'{sw} v{vT+qt}, v{vC+qt}')
            for qt in range(4): e(f'v_max_f32 v{vT+qt}, v{vT+qt}, v{vC+qt}')
        for qt in range(4):
            for r in range(4): e(f'v_sub_f32 v{CI(qt)+r}, 0, v{vT+qt}')
        for qt in range(4):
            for i in range(8): e(f'v_add_f32 v{S(qt,0)+i}, v{S(qt,0)+i}, v{CI(qt)}')
        for qt in range(3):
            for i in range(8): e(f'v_exp_f32 v{S(qt,0)+i}, v{S(qt,0)+i}')
        for i in range(3): e(f'v_exp_f32 v{S(3,0)+i}, v{S(3,0)+i}')
        for qt in range(3):
            for n in range(4):
                r = S(qt, n >> 1) + 2 * (n & 1)
                e(f'v_cvt_pk_bf16_f32 v{P(qt)+n}, v{r}, v{r+1}')
        e(f'v_cvt_pk_bf16_f32 v{P(3)}, v{S(3,0)}, v{S(3,0)+1}')
        self.stamp('q4')
        e('s_waitcnt lgkmcnt(0)')
        for qt in range(2):
            for dt in range(8):
                e(mfma(vr(O(dt, qt), 4), ar(Vf(dt), 4), vr(P(qt), 4), '0'))
            e(mfma(vr(LA(qt), 4), ar(aOnes, 4), vr(P(qt), 4), '0'))
        for g in self.last_kv: e(g)
        e(f'''s_mov_b32 s{sXor}, 0x4000
s_add_u32 s{sDma}, s{sW4K}, {((1+cfg.D)&3)*16384}
s_add_u32 s{sKsoff}, s{sRot}, {(1+cfg.D)*16384}
s_and_b32 s{sKsoff}, s{sKsoff}, 0x3ffff
s_add_u32 s{sVsoff}, s{sRot}, {8192+cfg.D*16384}
s_and_b32 s{sVsoff}, s{sVsoff}, 0x3ffff
s_mov_b32 s{sIter}, 0''')
        self.stamp('p2loop')
        self.p(f'.p2align {cfg.loop_align}')
        for _ in range(cfg.loop_nop): self.p('s_nop 0')
        self.p('L_p2:')
        texts = []
        NL = 12
        for it in range(NL):
            L = self.step(2 * it, 0, 'full', self.kv_extra(it, 0)); l0 = self.last_load
            L += self.step(2 * it + 1, 1, 'full', self.kv_extra(it, 1)); l1 = self.last_load
            L = [x.replace('VMW', str(8 * (cfg.D - 1))) for x in L]
            L += [f's_cmp_lt_u32 s{sIter}, {NL}', 's_cbranch_scc1 L_p2']
            texts.append([x.split(';')[0].strip() for x in L])
            if it == 0:
                self.p(L); self.loop_body = L
                print('gap load step0:', l0); print('gap load step1:', l1)
            self.tr.extend(L)
        assert all(t == texts[0] for t in texts)
        self.stamp('p2peel')
        from g2p3 import peeled_tail
        peeled_tail(self)

    def fallback(self):
        e = lambda x: self.e(x, trace=False)
        self.p('L_fallback:')
        e('s_waitcnt vmcnt(0) lgkmcnt(0)\ns_barrier')
        e(kv_dma_addr()); e(kv_read_addr())
        for i in range(4): e(f'v_mov_b32 v{vMG+i}, 0xff800000')
        e(f's_mov_b32 s{sKsoff}, s{sW4K}')
        self.p('L_fb_loop:')
        e(f's_mov_b32 m0, s{sW4K}\ns_nop 0')
        e([x.split(';')[0] for x in dma_K(0, 0, f's{sKsoff}')])
        e('s_waitcnt vmcnt(0)\ns_barrier')
        for half in range(2):
            for m in range(8):
                ds, kt = m >> 1, m & 1
                e(f'ds_read_b128 a[{Kf(m)}:{Kf(m)+3}], v{vKA+ds} offset:{half*8192+kt*4096}')
            e('s_waitcnt lgkmcnt(0)')
            for qt in range(4):
                for m in range(8):
                    ds, kt = m >> 1, m & 1
                    e(mfma(vr(S(qt, kt), 4), ar(Kf(m), 4), ar(Qf(qt, ds), 4), '0' if ds == 0 else vr(S(qt, kt), 4)))
            e('s_nop 7')
            for qt in range(4):
                a, b = S(qt, 0), S(qt, 1); m = vMG + qt
                e(f'v_max3_f32 v{m}, v{m}, v{a}, v{a+1}\nv_max3_f32 v{m}, v{m}, v{a+2}, v{a+3}\nv_max3_f32 v{m}, v{m}, v{b}, v{b+1}\nv_max3_f32 v{m}, v{m}, v{b+2}, v{b+3}')
        e(f's_barrier\ns_add_u32 s{sKsoff}, s{sKsoff}, 16384\ns_cmp_lt_u32 s{sKsoff}, 262144\ns_cbranch_scc1 L_fb_loop')
        for g in self.prefill: e([x.split(';')[0] for x in g])
        e(f's_mov_b32 s{sMode}, 1\ns_branch L_p2start')

    def finish_stamps(self):
        if not cfg.stamps: return
        e = self.e
        if cfg.dbgstamps:
            e('s_waitcnt lgkmcnt(0)', trace=False)
            for n_, (wg, base) in enumerate(zip(cfg.dbgstamps, (1, 5, 9, 12))):
                e(f's_cmp_eq_u32 s2, {wg}\ns_cbranch_scc0 L_nodbg{n_}\ns_cmp_eq_u32 s{sW}, 0\ns_cbranch_scc0 L_nodbg{n_}', trace=False)
                vals = [(stamp_reg(1), stamp_reg(0)), (stamp_reg(2), stamp_reg(0)), (stamp_reg(2) + 2, stamp_reg(1) + 2)]
                for i, (x, y) in enumerate(vals):
                    e(f's_sub_u32 s{sT0}, s{x}, s{y}\nv_mov_b32 v{vT+2}, s{sT0}\nv_mov_b32 v{vT}, {4*(base+i)}\nglobal_store_dword v{vT}, v{vT+2}, s[16:17]', trace=False)
                self.p(f'L_nodbg{n_}:')
            return
        e(f'''s_waitcnt lgkmcnt(0)
s_lshl_b32 s{sT0}, s2, 2
s_add_u32 s{sT0}, s{sT0}, s{sW}
s_lshl_b32 s{sT0}, s{sT0}, 8
s_add_u32 s{sT0}, s{sT0}, {STAMPBASE}
s_add_u32 s18, s18, s{sT0}
s_addc_u32 s19, s19, 0
v_mov_b32 v{vT}, 0''')
        for i in range(self.nstamp):
            for j in range(4): e(f'v_mov_b32 v{vT+2+j}, s{stamp_reg(i)+j}')
            e(f'global_store_dwordx4 v{vT}, v[{vT+2}:{vT+5}], s[18:19] offset:{16*i}\ns_nop 1')

def build():
    k = Kernel()
    k.header(); k.setup(); k.phase1(); k.phase2()
    from g2p3 import phase3
    phase3(k)
    k.stamp('end')
    k.finish_stamps()
    k.e('s_endpgm', trace=False)
    k.fallback()
    k.footer()
    return k

def main():
    import argparse
    ap = argparse.ArgumentParser()
    ap.add_argument('-o', default=f'cdna_kernels/{NAME}.s')
    ap.add_argument('--stamps', default='')
    ap.add_argument('--set', action='append', default=[])
    a = ap.parse_args()
    cfg.stamps = a.stamps.split(',') if a.stamps else False
    for kv in a.set:
        kk, vv = kv.split('=', 1)
        try: vv = eval(vv)
        except Exception: pass
        setattr(cfg, kk, vv)
    k = build()
    errs = simulate(k.tr, 'trace')
    errs += check_hazards(k.tr, 'haz')
    txt = k.p.text()
    txt = txt.replace('CODEOFF', f'((L_pc - {NAME}_kernel) & 0xffffff00)').replace('CODELEN', f'(L_codeend - {NAME}_kernel - 128)')
    open(a.o, 'w').write(txt)
    print('written', a.o, 'errors:', len(errs), 'trace len', len(k.tr))
```

```python
import sys, math, struct
from asmlib import *

NAME = 'standalone__mha_block_cached__near_ridge'

class Cfg:
    stamps = False
    kv_flag = ' nt'
    x_flag = ''
    w_flag = ''
    wo_flag = ''
    force_safe = False
    ablate = ''
    l1inv = False
    codepf = 1
    poll_exec = False
    tail2 = False
    late_final = False
    poll_sleep = 4
    sleep_all = False
    f2_mask = 0
    womall = False
    wo_coop = False
    ost_flag = ' sc1'
    epi_early = True
    tp_late = False
    exp_enc = ''
    loop_align = 3
    loop_nop = 0
    late_mode = 0
    kv0_at = (6, 1)
    k1_at = (7, 1)
    D = 2
    perm = False
    w4 = False
    wmall = False
    rot = True
    pad = 0
    dbgstamps = 0
    mapx = False
    dualflag = True
    out_flag = ''
    bswap = 0
    coop_pre = (0, 1, 2, 3)
    coop_mid = ()
    coop_skip = ()
    coop_wait = 0
    early_ost = True
    own_split = (0, 2)
    ps0_every = 2
    f2a_c = 10
    fin0_c = 14
    l3_every = 6
    kv_same = False
cfg = Cfg()

sW = 3
sX, sWq, sK, sV, sWS, sWo, sOut = 20, 24, 28, 32, 36, 40, 44
sW4K = 48; sKsoff = 49; sVsoff = 50; sDma = 51; sXor = 52; sIter = 53
sT0, sT1, sT2, sT3 = 54, 55, 56, 57
sC = 58
sXsoff = 60; sWsoff = 61; sW8K = 62; sDelta = 63
sB = 64; sH = 65; sJ = 66; sMode = 67
sKg = 68; sNb = 69; sRot = 70; sPass = 71
sStamp = 72

vLane = 1
vT = 2
vKA = 8
vVA = 12
vDK = 20
vDV = 24
vMG = 26
vT2 = 30
vS = 32
vC = 64
vP = 80
vL = 96
vXA = 112; vWA = 114
vWB = 120
vCo = 118
vOX = 32; vOW = 40
vWoD = 112
vWoR = 121
vAcc = 128
aQ = 0; aKf = 64; aVf = 96; aOnes = 252; aZero = 188
aPA = 96; aPB = 64

def O(dt, qt): return vAcc + (dt * 4 + qt) * 4
def S(qt, kt): return vS + qt * 8 + kt * 4
def CI(qt): return vC + 4 * qt
def P(qt): return vP + 4 * qt
def LA(qt): return vL + 4 * qt
def Qf(qt, ds): return aQ + (qt * 4 + ds) * 4
def Kf(m): return aKf + 4 * m
def Vf(dt): return aVf + 4 * dt

LDS_V = 65536
XS = [32768, 81920]
WS = [114688, 131072, 147456, 16384]
def NWS(): return 4 if cfg.mapx and cfg.w4 else 3
OBASE = 0
PBASE = 16 << 20
FBASE = 60 << 20
FTWIN = 1 << 16
STAMPBASE = 64 << 20

def kb(fn): return ','.join(str(fn(w) // 1024) for w in range(4))
def stamp_reg(i): return [72, 76, 80, 84, 92][i]
def mfma(d, a, b, c): return f'v_mfma_f32_16x16x32_bf16 {d}, {a}, {b}, {c}'

class Slots:
    def __init__(self, n):
        self.pre = [[] for _ in range(n)]
        self.post = [[] for _ in range(n)]
        self.mf = [None] * n
    def out(self):
        o = []
        for i in range(len(self.mf)):
            o += self.pre[i]
            if self.mf[i]: o.append(self.mf[i])
            o += self.post[i]
        return o
    def load(self):
        def cost(x):
            mn = x.split()[0]
            if mn.startswith('v_exp') or mn.startswith('v_rcp'): return 8
            return 4
        n = len(self.mf); res = []
        for i in range(n):
            g = self.post[i] + (self.pre[i + 1] if i + 1 < n else [])
            res.append(sum(cost(x) for x in g))
        return res

def dma_K(tile, slot, soff):
    L = []
    for p in range(4):
        a = lambda w, p=p: slot * 16384 + w * 4096 + p * 1024
        L.append(f'buffer_load_dwordx4 v{vDK+p}, s[{sK}:{sK+3}], {soff} offen offset:{p*1024}{cfg.kv_flag} lds ; @dma K{tile} {kb(a)}')
    return L
def dma_V(tile, slot, soff):
    L = []
    for p in range(4):
        a = lambda w, p=p: LDS_V + slot * 16384 + w * 4096 + p * 1024
        L.append(f'buffer_load_dwordx4 v{vDV+(p&1)}, s[{sV}:{sV+3}], {soff} offen offset:{p*1024}{cfg.kv_flag} lds ; @dma V{tile} {kb(a)}')
    return L

def dma_W(c):
    G = []
    for p in range(4):
        a = lambda w, p=p: WS[c % NWS()] + w * 4096 + p * 1024
        ins = f'buffer_load_dwordx4 v{vOW+p}, s[{sWq}:{sWq+3}], s{sWsoff} offen offset:{p*1024}{cfg.w_flag} lds ; @dma W{c} {kb(a)}'
        g = [ins]
        if p == 0: g = [f's_add_u32 m0, s{sW4K}, {WS[c%NWS()]}', f's_mov_b32 s{sWsoff}, {c*524288}', ins]
        G.append(g)
    return G
def dma_X(c):
    G = []
    for p in range(8):
        a = lambda w, p=p: XS[c % 2] + w * 8192 + p * 1024
        ins = f'buffer_load_dwordx4 v{vOX+p}, s[{sX}:{sX+3}], s{sXsoff} offen offset:{(p&3)*1024}{cfg.x_flag} lds ; @dma X{c} {kb(a)} priv'
        g = [ins]
        if p == 0: g = [f's_add_u32 m0, s{sW8K}, {XS[c%2]}', f's_mov_b32 s{sXsoff}, {c*128}', ins]
        if p == 4: g = [f's_add_u32 m0, s{sW8K}, {XS[c%2]+4096}', 's_nop 0', ins]
        G.append(g)
    return G

def kv_dma_addr():
    T = vT; L = vLane
    o = f'''v_lshrrev_b32 v{T+1}, 4, v{L}
v_and_b32 v{T+3}, 15, v{L}
v_mov_b32 v{T+4}, v{T+1}'''.split('\n')
    for p in range(4):
        o += [f'v_add_u32 v{T+2}, {4*p}, v{T+1}', f'v_xor_b32 v{T+2}, v{T+2}, v{T+3}', f'v_lshlrev_b32 v{T+2}, 4, v{T+2}', f'v_lshl_add_u32 v{vDK+p}, v{T+4}, 8, v{T+2}']
    for par in range(2):
        o += [f'v_add_u32 v{T+2}, {4*par}, v{T+1}', f'v_lshlrev_b32 v{T+2}, 1, v{T+2}', f'v_xor_b32 v{T+2}, v{T+2}, v{T+3}', f'v_lshlrev_b32 v{T+2}, 4, v{T+2}', f'v_lshl_add_u32 v{vDV+par}, v{T+4}, 8, v{T+2}']
    return o
def kv_read_addr():
    T = vT; L = vLane
    o = [f'v_lshrrev_b32 v{T}, 4, v{L}', f'v_bfe_u32 v{T+1}, v{L}, 2, 2', f'v_and_b32 v{T+2}, 3, v{L}', f'v_and_b32 v{T+3}, 15, v{L}',
         f'v_lshlrev_b32 v{T+4}, 8, v{T+3}']
    for ds in range(4):
        o += [f'v_add_u32 v{T+5}, {4*ds}, v{T}', f'v_xor_b32 v{T+5}, v{T+5}, v{T+3}', f'v_lshl_add_u32 v{vKA+ds}, v{T+5}, 4, v{T+4}']
    o += f'''v_lshl_add_u32 v{T+4}, v{T}, 2, v{T+1}
v_and_b32 v{vT2}, 7, v{T+4}
v_lshlrev_b32 v{vT2}, 1, v{vT2}
v_lshlrev_b32 v{T+4}, 8, v{T+4}
v_and_b32 v{T+5}, 1, v{T+2}
v_lshl_add_u32 v{T+4}, v{T+5}, 3, v{T+4}
v_add_u32 v{T+4}, {LDS_V}, v{T+4}
v_lshrrev_b32 v{vT2+1}, 1, v{T+2}'''.split('\n')
    for dt in range(8):
        o += [f'v_add_u32 v{T+5}, {2*dt}, v{vT2+1}', f'v_xor_b32 v{T+5}, v{T+5}, v{vT2}', f'v_lshl_add_u32 v{vVA+dt}, v{T+5}, 4, v{T+4}']
    return o

def epi(qt):
    o = []
    for ds in range(4):
        for x in range(2):
            b_ = O(2 * ds + x, qt)
            o += [f'v_pk_mul_f32 v[{b_}:{b_+1}], v[{b_}:{b_+1}], s[{sC}:{sC+1}]', f'v_pk_mul_f32 v[{b_+2}:{b_+3}], v[{b_+2}:{b_+3}], s[{sC}:{sC+1}]']
        t = vC + (ds & 1) * 4
        for x in range(2):
            b_ = O(2 * ds + x, qt)
            o += [f'v_cvt_pk_bf16_f32 v{t+2*x}, v{b_}, v{b_+1}', f'v_cvt_pk_bf16_f32 v{t+2*x+1}, v{b_+2}, v{b_+3}']
        o += [f'v_accvgpr_write_b32 a{Qf(qt, ds)+i}, v{t+i}' for i in range(4)]
    return o
def kreads0(off): return [f'ds_read_b128 a[{Kf(m)}:{Kf(m)+3}], v{vKA+(m>>1)} offset:{off+(m&1)*4096} ; @rd K0' for m in range(8)]
def vreads0(): return [f'ds_read_b64_tr_b16 a[{Vf(n>>1)+2*(n&1)}:{Vf(n>>1)+2*(n&1)+1}], v{vVA+(n>>1)} offset:{8192+(n&1)*4096}' for n in range(16)]

def p1_reads(c, n, buf):
    A = aPA + buf * 32; B = aPB + buf * 16
    def W(dt, u):
        ds, x = dt >> 1, dt & 1
        st = c % NWS()
        reg, so = (vWA + ds, st * 16384) if st < 3 else (vWB + ds, 0)
        return f'ds_read_b64_tr_b16 a[{A+4*dt+2*u}:{A+4*dt+2*u+1}], v{reg} offset:{so+(32*n+4*u)*256+8*x} ; @rd W{c}'
    def X(qt): return f'ds_read_b128 a[{B+4*qt}:{B+4*qt+3}], v{vXA+n} offset:{(c%2)*49152+qt*2048} ; @rd X{c}'
    R = [X(0), W(0, 0), W(0, 1), X(1), X(2), X(3)]
    for dt in range(1, 8): R += [W(dt, 0), W(dt, 1)]
    return R

def p1_kstep(k, c, n, groups, last=False, fill=None):
    Sl = Slots(32)
    buf = n & 1
    final = last and n == 1 and cfg.epi_early
    for m in range(32):
        dt, qt = (m >> 2, m & 3) if not final else (m & 7, m >> 3)
        Sl.mf[m] = mfma(vr(O(dt, qt), 4), ar(aPA + buf * 32 + 4 * dt, 4), ar(aPB + buf * 16 + 4 * qt, 4), '0' if (c == 0 and n == 0) else vr(O(dt, qt), 4))
    if n == 0: R = p1_reads(c, 1, 1)
    else: R = [] if last else p1_reads(c + 1, 0, 0)
    if n == 1:
        vm = (k.vm_need({f'X{c+1}', f'W{c+1}'}) if not cfg.ablate else 20) if not last else (k.vm_need({'K0', 'Vm1'}) if final else 63)
        Sl.pre[0] += [f's_waitcnt vmcnt({vm}) lgkmcnt(0)', 's_barrier']
    else: Sl.pre[0] += ['s_waitcnt lgkmcnt(0)']
    if final:
        R = kreads0(0)[:4] + vreads0()
    ab = cfg.ablate
    if 'p1rd' in ab: R = []
    if 'p1x' in ab: groups = [[x for x in g if '@dma X' not in x] for g in groups]
    if 'p1w' in ab: groups = [[x for x in g if '@dma W' not in x] for g in groups]
    if 'p1kv' in ab: groups = [[x for x in g if '@dma K' not in x and '@dma V' not in x] for g in groups]
    for i, r in enumerate(R): Sl.post[2 * (i // 2)].append(r)
    if final:
        E0 = epi(0)
        g = 10
        while E0:
            n_ = (1 if len(Sl.post[g]) >= 2 else 3) if g < 31 else len(E0)
            Sl.post[g] += E0[:n_]; E0 = E0[n_:]; g = min(31, g + 1)
    if groups:
        nn = len(groups)
        for i, g in enumerate(groups):
            Sl.post[min(31, 1 + 2 * ((i * 16) // nn))] += g
    if fill:
        g = 1
        while fill and g < 32:
            if len(Sl.post[g]) == 0:
                for _ in range(2):
                    if fill:
                        x = fill.pop(0)
                        Sl.post[g] += x if isinstance(x, list) else [x]
                        if isinstance(x, list): break
            g += 1
    return Sl.out()

class Kernel:
    def __init__(self):
        self.p = Prog(); self.tr = []; self.nstamp = 0; self.q = []; self.nt_marks = []
    def e(self, s, text=True, trace=True):
        if isinstance(s, str): s = [x.strip() for x in s.split('\n') if x.strip()]
        if text: self.p(s)
        if trace: self.tr.extend(s)
    def stamp(self, name):
        if cfg.stamps and name in cfg.stamps:
            i = cfg.stamps.index(name); b = stamp_reg(i)
            self.e(f's_memrealtime s[{b}:{b+1}]\ns_memtime s[{b+2}:{b+3}]')
            self.nstamp = max(self.nstamp, i + 1)
    def vm_need(self, tags, incl=False):
        q = []
        marks = list(self.nt_marks)
        for pos, line in enumerate(self.tr + ['s_nop 0']):
            while incl and marks and marks[0] <= pos:
                q.append(None); marks.pop(0)
            code, _, com = line.partition(';')
            mn = code.split()[0] if code.split() else ''
            if mn.startswith('buffer_') and mn not in ('buffer_inv', 'buffer_wbl2') or mn.startswith('global_'):
                t = None
                a = com.split()
                if '@dma' in a: t = a[a.index('@dma') + 1]
                elif '@tag' in a: t = a[a.index('@tag') + 1]
                q.append(t)
        for t in tags: assert t in q, f'tag {t} was never issued'
        last = max((i for i, t in enumerate(q) if t in tags), default=-1)
        return min(63, len(q) - 1 - last)

    def header(self):
        self.p(f'; @launch grid=(256,1,1) block=(256,1,1) lds=163840')
        if cfg.stamps: self.p('; stamps: ' + ','.join(cfg.stamps))
        self.p('.amdgcn_target "amdgcn-amd-amdhsa--gfx950"\n.text')
        self.p(f'.globl {NAME}_kernel\n.p2align 8\n.type {NAME}_kernel,@function\n{NAME}_kernel:')
    def footer(self):
        self.p('L_end:\ns_endpgm')
        self.p('.p2align 6\nL_codeend:')
        self.p('.section .rodata,"a"\n.p2align 6')
        self.p(f'.amdhsa_kernel {NAME}_kernel')
        self.p('''.amdhsa_next_free_vgpr 512
.amdhsa_next_free_sgpr 102
.amdhsa_accum_offset 256
.amdhsa_group_segment_fixed_size 0
.amdhsa_kernarg_size 64
.amdhsa_user_sgpr_count 2
.amdhsa_user_sgpr_kernarg_segment_ptr 1
.amdhsa_system_sgpr_workgroup_id_x 1
.end_amdhsa_kernel''')

    def code_prefetch(self, where):
        e = self.e
        if cfg.codepf == where:
            e(f'''s_getpc_b64 s[{sT2}:{sT2+1}]
L_pc:
v_and_b32 v{vT+5}, 15, v{vLane}
s_lshr_b32 s{sT0}, s2, 3
s_and_b32 s{sT2}, s{sT2}, 0xffffff00
s_lshl_b32 s{sT0}, s{sT0}, 4
s_sub_u32 s{sT2}, s{sT2}, CODEOFF
v_add_u32 v{vT+5}, s{sT0}, v{vT+5}
s_subb_u32 s{sT3}, s{sT3}, 0
v_lshlrev_b32 v{vT+5}, 7, v{vT+5}
v_min_u32 v{vT+5}, CODELEN, v{vT+5}
global_load_dword v92, v{vT+5}, s[{sT2}:{sT2+1}]''')

    def setup(self):
        e = self.e
        e('s_cmp_ge_u32 s2, 256\ns_cbranch_scc1 L_end')
        if cfg.perm: e('s_lshr_b32 s3, s2, 3\ns_and_b32 s3, s3, 7\ns_xor_b32 s2, s2, s3')
        self.stamp('entry')
        e(f's_load_dwordx16 s[4:19], s[0:1], 0')
        e(f'''v_and_b32 v{vLane}, 63, v0
v_lshrrev_b32 v{vT}, 6, v0
s_and_b32 s{sT0}, s2, 7
s_lshr_b32 s{sJ}, s2, 3
v_readfirstlane_b32 s{sW}, v{vT}
s_and_b32 s{sB}, s{sT0}, 1
s_xor_b32 s{sB}, s{sB}, {cfg.bswap}
s_lshl_b32 s{sB}, s{sB}, 2
s_and_b32 s{sT1}, s{sJ}, 3
s_add_u32 s{sB}, s{sB}, s{sT1}
s_lshr_b32 s{sH}, s{sT0}, 1
s_lshl_b32 s{sH}, s{sH}, 3
s_lshr_b32 s{sT1}, s{sJ}, 2
s_add_u32 s{sH}, s{sH}, s{sT1}
MAPX
s_lshr_b32 s{sKg}, s{sH}, 2
s_and_b32 s{sNb}, s{sH}, 3
s_lshl_b32 s{sW4K}, s{sW}, 12
ROT
'''.replace('ROT', f's_add_u32 s{sRot}, s{sH}, s{sB}\ns_and_b32 s{sRot}, s{sRot}, 15\ns_lshl_b32 s{sRot}, s{sRot}, 14\ns_add_u32 s{sRot}, s{sRot}, s{sW4K}' if cfg.rot else f's_mov_b32 s{sRot}, s{sW4K}').replace('MAPX', f's_mov_b32 s{sB}, s{sT0}\ns_mov_b32 s{sH}, s{sJ}' if cfg.mapx else 's_nop 0'))
        L = vLane; T = vT
        e(f'''v_lshrrev_b32 v{T}, 3, v{L}
s_lshl_b32 s{sT0}, s{sW}, 6
v_add_u32 v{T}, s{sT0}, v{T}
v_mul_u32_u24 v{T}, 1152, v{T}
v_lshrrev_b32 v{T+1}, 4, v{L}
v_and_b32 v{T+2}, 7, v{L}
v_xor_b32 v{T+3}, v{T+2}, v{T+1}
v_xor_b32 v{T+4}, 4, v{T+3}
v_lshl_add_u32 v{T+3}, v{T+3}, 4, v{T}
v_lshl_add_u32 v{T+4}, v{T+4}, 4, v{T}''')
        for p in range(8):
            e(f'v_add_u32 v{vOX+p}, {p*9216 - (p&3)*1024}, v{T+3+(p&1)}')
        e(f'''v_lshlrev_b32 v{T+2}, 2, v{T+1}
v_and_b32 v{T+3}, 15, v{L}
v_xor_b32 v{T+2}, v{T+2}, v{T+3}
v_lshlrev_b32 v{T+2}, 4, v{T+2}
s_lshl_b32 s{sT0}, s{sW}, 4
v_add_u32 v{T+4}, s{sT0}, v{T+1}
v_lshl_add_u32 v{T+5}, v{T+4}, 13, v{T+2}''')
        for p in range(4):
            e(f'v_add_u32 v{vOW+p}, {p*(32768-1024)}, v{T+5}')
        e(f'''v_lshrrev_b32 v{T+5}, 3, v{L}
s_lshr_b32 s{sT0}, s{sJ}, 2
s_lshl_b32 s{sT0}, s{sT0}, 5
s_lshl_b32 s{sT1}, s{sW}, 3
s_add_u32 s{sT0}, s{sT0}, s{sT1}
v_add_u32 v{T+5}, s{sT0}, v{T+5}
v_mul_u32_u24 v{T+5}, 1152, v{T+5}
v_and_b32 v{T+2}, 7, v{L}
v_lshl_add_u32 v{vCo}, v{T+2}, 4, v{T+5}
s_and_b32 s{sT0}, s{sJ}, 3
s_lshl_b32 s{sT0}, s{sT0}, 4
s_lshl_b32 s{sT1}, s{sW}, 2
s_add_u32 s{sT0}, s{sT0}, s{sT1}
v_add_u32 v{T+5}, s{sT0}, v{T+1}
v_lshlrev_b32 v{T+5}, 13, v{T+5}
v_and_b32 v{T+2}, 15, v{L}
v_lshl_add_u32 v{vCo+1}, v{T+2}, 4, v{T+5}''')
        if cfg.mapx:
            e(f'''v_lshrrev_b32 v{T+5}, 3, v{L}
s_lshl_b32 s{sT0}, s{sJ}, 3
v_add_u32 v{T+5}, s{sT0}, v{T+5}
v_mul_u32_u24 v{T+5}, 1152, v{T+5}
v_and_b32 v{T+2}, 7, v{L}
v_lshl_add_u32 v{vCo}, v{T+2}, 4, v{T+5}''')
        e('s_waitcnt lgkmcnt(0)')
        self.stamp('karg')
        if cfg.l1inv:
            e(f's_cmp_eq_u32 s{sW}, 0\ns_cbranch_scc0 L_noinv\nbuffer_inv sc1', trace=False)
            self.p('L_noinv:')
        e(f'''s_mul_i32 s{sT0}, s{sB}, 294912
s_add_u32 s{sX}, s4, s{sT0}
s_addc_u32 s{sX+1}, s5, 0
s_mov_b32 s{sX+2}, 294912
s_mov_b32 s{sX+3}, 0x20000
s_lshl_b32 s{sT0}, s{sH}, 8
s_add_u32 s{sWq}, s10, s{sT0}
s_addc_u32 s{sWq+1}, s11, 0
s_sub_u32 s{sWq+2}, 4718592, s{sT0}
s_mov_b32 s{sWq+3}, 0x20000
s_mov_b32 s{sWS}, s18
s_mov_b32 s{sWS+1}, s19
s_mov_b32 s{sWS+2}, 0x8000000
s_mov_b32 s{sWS+3}, 0x20000''')
        e(f's_lshl_b32 s{sW8K}, s{sW}, 13')
        def coop(c):
            if cfg.mapx:
                if c >= 3: return []
                d = 44 + 4 * c
                return [f's_lshl_b32 s{sT1}, s{sW}, 7', f'buffer_load_dwordx4 v[{d}:{d+3}], v{vCo}, s[{sX}:{sX+3}], s{sT1} offen offset:{c*512} ; @tag CO{c}']
            d = 44 + 8 * c if c < 6 else 96 + 8 * (c - 6) if c < 8 else 120
            return [f's_mov_b32 s{sT1}, {c*524288}', f'buffer_load_dwordx4 v[{d}:{d+3}], v{vCo+1}, s[{sWq}:{sWq+3}], s{sT1} offen ; @tag CO{c}',
                    f'buffer_load_dwordx4 v[{d+4}:{d+7}], v{vCo}, s[{sX}:{sX+3}], 0 offen offset:{c*128} ; @tag CO{c}']
        for c in cfg.coop_pre: e(coop(c))
        self.code_prefetch(1)
        self.coop = coop
        self.stamp('dma0')
        e(f'''s_lshl_b32 s{sT0}, s{sB}, 5
s_add_u32 s{sT0}, s{sT0}, s{sH}
s_lshl_b32 s{sT0}, s{sT0}, 18''')
        if cfg.kv_same: e(f's_mov_b32 s{sT0}, 0')
        e(f'''s_add_u32 s{sK}, s6, s{sT0}
s_addc_u32 s{sK+1}, s7, 0
s_mov_b32 s{sK+2}, 262144
s_mov_b32 s{sK+3}, 0x20000
s_add_u32 s{sV}, s8, s{sT0}
s_addc_u32 s{sV+1}, s9, 0
s_mov_b32 s{sV+2}, 262144
s_mov_b32 s{sV+3}, 0x20000''')
        e(f'''s_mul_i32 s{sT0}, s{sKg}, {512*1152}
s_mul_i32 s{sT1}, s{sNb}, 288
s_add_u32 s{sT0}, s{sT0}, s{sT1}
s_add_u32 s{sWo}, s12, s{sT0}
s_addc_u32 s{sWo+1}, s13, 0
s_sub_u32 s{sWo+2}, 4718592, s{sT0}
s_mov_b32 s{sWo+3}, 0x20000
s_mov_b32 s{sOut}, s14
s_mov_b32 s{sOut+1}, s15
s_mov_b32 s{sOut+2}, 2359296
s_mov_b32 s{sOut+3}, 0x20000''')
        e(kv_dma_addr())
        self.stamp('cw0')
        if cfg.coop_wait is not None: e(f's_waitcnt vmcnt({self.vm_need({f"CO{cfg.coop_wait}"})})')
        self.stamp('cw1')
        for g in dma_W(0) + dma_X(0): e(g)
        for c in cfg.coop_mid: e(self.coop(c))
        self.code_prefetch(2)
        self.stamp('d0')
        e(f'''v_lshrrev_b32 v{T}, 4, v{L}
v_bfe_u32 v{T+1}, v{L}, 2, 2
v_and_b32 v{T+2}, 3, v{L}
v_and_b32 v{T+3}, 15, v{L}''')
        e(f'''v_lshl_add_u32 v{T+4}, v{T}, 3, v{T+1}
v_lshlrev_b32 v{T+4}, 8, v{T+4}
v_lshl_add_u32 v{T+4}, v{T+2}, 4, v{T+4}
v_add_u32 v{T+4}, {WS[0]}, v{T+4}''')
        for ds in range(4):
            e(f'v_xor_b32 v{T+5}, {ds}, v{T+1}\nv_lshl_add_u32 v{vWA+ds}, v{T+5}, 6, v{T+4}')
        if NWS() == 4:
            for ds in range(4): e(f'v_subrev_u32 v{vWB+ds}, {WS[0]-WS[3]}, v{vWA+ds}')
        e(f'''s_lshl_b32 s{sT0}, s{sW}, 13
s_add_u32 s{sT0}, s{sT0}, {XS[0]}
v_lshlrev_b32 v{T+4}, 7, v{T+3}
v_add_u32 v{T+4}, s{sT0}, v{T+4}
v_lshrrev_b32 v{vT2}, 1, v{T+3}''')
        for n in range(2):
            e(f'''v_add_u32 v{T+5}, {4*n}, v{T}
v_xor_b32 v{T+5}, v{T+5}, v{vT2}
v_lshl_add_u32 v{vXA+n}, v{T+5}, 4, v{T+4}''')
        e(kv_read_addr())
        cbits = '0x%08x' % int.from_bytes(struct.pack('<f', math.log2(math.e) / math.sqrt(128.0)), 'little')
        e(f's_mov_b32 s{sC}, {cbits}\ns_mov_b32 s{sC+1}, {cbits}')
        e(f'v_mov_b32 v{T+5}, 0x3f803f80')
        for i in range(4): e(f'v_accvgpr_write_b32 a{aOnes+i}, v{T+5}')
        for i in range(4): e(f'v_accvgpr_write_b32 a{aZero+i}, 0')
        for i in range(4): e(f'v_mov_b32 v{vMG+i}, 0xff800000')
        e(f's_mov_b32 s{sPass}, 0\ns_mov_b32 s{sMode}, 0')
        for g in dma_W(1) + dma_X(1): e(g)
        self.code_prefetch(3)
        if cfg.wmall:
            e(f'''s_mul_i32 s{sT0}, s2, 18432
s_mul_i32 s{sT1}, s{sW}, 4608
s_add_u32 s{sT0}, s{sT0}, s{sT1}
s_lshl_b32 s{sT1}, s{sH}, 8
s_sub_u32 s{sT0}, s{sT0}, s{sT1}
v_lshlrev_b32 v{T+5}, 4, v{L}''')
            for i in range(5):
                e(f'buffer_load_dwordx4 v[{56+4*i}:{59+4*i}], v{T+5}, s[{sWq}:{sWq+3}], s{sT0} offen offset:{min(i*1024, 3584)} ; @tag WM')
        self.stamp('d1')
        e(f'''s_lshl_b32 s{sT0}, s{sB}, 5
s_add_u32 s{sT0}, s{sT0}, s{sH}
s_lshl_b32 s{sT0}, s{sT0}, 7
s_add_u32 s{sT0}, s{sT0}, {FBASE}
v_mov_b32 v{T+2}, 0
v_and_b32 v{T+3}, 15, v{L}
v_lshlrev_b32 v{T+5}, 2, v{T+3}
v_bfe_u32 v{T+1}, v{L}, 4, 1
v_mul_u32_u24 v{T+1}, {FTWIN}, v{T+1}
v_add_u32 v{T+5}, v{T+5}, v{T+1}
v_cmp_gt_u32 vcc, 32, v{L}
v_mov_b32 v{T+4}, 0x7fffffff
s_cmp_eq_u32 s{sW}, 0
s_cselect_b64 vcc, vcc, 0
s_nop 1
v_cndmask_b32 v{T+5}, v{T+4}, v{T+5}, vcc
buffer_store_dword v{T+2}, v{T+5}, s[{sWS}:{sWS+3}], s{sT0} offen sc1 ; @tag CLR''')

    def phase1(self):
        e = self.e
        self.stamp('p1wait')
        n0 = self.vm_need({'X0', 'W0'})
        e(f's_waitcnt vmcnt({n0})\ns_barrier')
        self.stamp('p1go')
        e(p1_reads(0, 0, 0))
        def one(G, m0, extra=()):
            G = [[x] for x in G]
            G[0] = [m0] + list(extra) + (['s_nop 0'] if not extra else []) + G[0]
            return G
        K0 = one(dma_K(0, 0, f's{sKsoff}'), f's_mov_b32 m0, s{sW4K}', [f's_mov_b32 s{sKsoff}, s{sRot}'])
        K1 = one(dma_K(1, 1, f's{sKsoff}'), f's_add_u32 m0, s{sW4K}, 16384', [f's_add_u32 s{sKsoff}, s{sRot}, 16384', f's_and_b32 s{sKsoff}, s{sKsoff}, 0x3ffff'])
        K2 = one(dma_K(2, 2, f's{sKsoff}'), f's_add_u32 m0, s{sW4K}, {2*16384}', [f's_add_u32 s{sKsoff}, s{sRot}, {2*16384}', f's_and_b32 s{sKsoff}, s{sKsoff}, 0x3ffff'])
        V0 = one(dma_V(0, 1, f's{sVsoff}'), f's_add_u32 m0, s{sW4K}, {LDS_V+16384}', [f's_add_u32 s{sVsoff}, s{sRot}, 8192', f's_and_b32 s{sVsoff}, s{sVsoff}, 0x3ffff'])
        V1 = one(dma_V(1, 2, f's{sVsoff}'), f's_add_u32 m0, s{sW4K}, {LDS_V+2*16384}', [f's_add_u32 s{sVsoff}, s{sRot}, {8192+16384}', f's_and_b32 s{sVsoff}, s{sVsoff}, 0x3ffff'])
        Vm = [[f's_lshl_b32 s{sT2}, s{sW}, 11', f's_add_u32 m0, s{sT2}, {LDS_V + 8192}', f's_sub_u32 s{sT2}, s{sRot}, s{sT2}']]
        for p in range(2):
            a = lambda w, p=p: LDS_V + 8192 + w * 2048 + p * 1024
            ins = f'buffer_load_dwordx4 v{vDV+p}, s[{sV}:{sV+3}], s{sT2} offen offset:{p*1024}{cfg.kv_flag} lds ; @dma Vm1 {kb(a)}'
            if p == 0: Vm[0].append(ins)
            else: Vm.append([ins])
        plan = {}
        rest = [c for c in range(9) if c not in cfg.coop_pre and c not in cfg.coop_mid and c not in cfg.coop_skip]
        plan[(0, 0)] = [self.coop(c) for c in rest] + dma_W(2)
        for c in range(9):
            g1 = []
            if c + 2 <= 8: g1 += dma_X(c + 2)
            plan[(c, 1)] = g1
            if NWS() == 3 and c + 3 <= 8: plan[(c + 1, 0)] = dma_W(c + 3)
        if NWS() == 4:
            plan[(0, 0)] = plan[(0, 0)] + dma_W(3)
            plan[(2, 0)] = dma_W(4) + dma_W(5)
            plan[(4, 0)] = dma_W(6) + dma_W(7)
            plan[(5, 0)] = dma_W(8)
        K3 = one(dma_K(3, 3, f's{sKsoff}'), f's_add_u32 m0, s{sW4K}, {3*16384}', [f's_add_u32 s{sKsoff}, s{sRot}, {3*16384}', f's_and_b32 s{sKsoff}, s{sKsoff}, 0x3ffff'])
        V2 = one(dma_V(2, 3, f's{sVsoff}'), f's_add_u32 m0, s{sW4K}, {LDS_V+3*16384}', [f's_add_u32 s{sVsoff}, s{sRot}, {8192+2*16384}', f's_and_b32 s{sVsoff}, s{sVsoff}, 0x3ffff'])
        self.prefill = K0 + Vm + K1 + V0 + V1 + K2 + (V2 + K3 if cfg.D == 3 else [])
        plan[cfg.kv0_at] = plan.get(cfg.kv0_at, []) + K0 + Vm
        plan[cfg.k1_at] = plan.get(cfg.k1_at, []) + K1
        if cfg.womall:
            g0 = [f's_mul_i32 s63, s{sKg}, {512*1152}', f's_mul_i32 s60, s{sNb}, 288', 's_add_u32 s63, s63, s60', f's_sub_u32 s60, s{sWo}, s63', f's_subb_u32 s61, s{sWo+1}, 0',
                  's_mul_i32 s63, s2, 18432', f's_mul_i32 s62, s{sW}, 4608', 's_add_u32 s63, s63, s62', f'v_lshlrev_b32 v{vT+3}, 4, v{vLane}', f'v_add_u32 v{vT+3}, s63, v{vT+3}']
            WM = [[f'global_load_dwordx4 a[{164+4*i}:{167+4*i}], v{vT+3}, s[60:61] offset:{min(i*1024, 3584)} ; @tag WM'] for i in range(5)]
            WM[0] = g0 + WM[0]
            plan[cfg.womall] = plan.get(cfg.womall, []) + WM
        plan[(8, 0)] = V0
        if cfg.late_mode == 0:
            plan[(8, 1)] = V1
            self.late_kv = K2 + (V2 + K3 if cfg.D == 3 else []); self.last_kv = []
        elif cfg.late_mode == 1:
            self.late_kv = []; self.last_kv = V1 + K2
        else:
            plan[(8, 1)] = V1
            self.late_kv = []; self.last_kv = K2
        from g2p3 import wo_setup, p3_scalars
        fill = wo_setup() + p3_scalars()
        for c in range(9):
            for n in range(2):
                e(p1_kstep(self, c, n, plan.get((c, n), []), last=(c == 8), fill=(fill if c >= 1 else None)))
            if c == 7: assert not fill
            if c == 3:
                e(f'''s_lshl_b32 s{sT3}, s{sB}, 5
v_mov_b32 v{vT+4}, s{sT3}
v_mov_b32 v{vT+5}, 1
s_cmp_eq_u32 s{sW}, 0
s_cbranch_scc0 L_noreg
s_mov_b64 exec, 1
global_atomic_add v{vT+4}, v{vT+5}, s[16:17] sc1
s_mov_b64 exec, -1''', trace=False)
                self.p('L_noreg:')
            if c == 5: self.stamp('p1c6')
            self.stamp(f'c{c}')
        self.stamp('p1end')
        self.late_kv_pending = self.late_kv; self.late_kv = []
        assert not self.late_kv
    QK = [0, 17, 34, 42]
    PV = [50, 59, 8, 25]
    LS = [58, 67, 16, 33]
    EX = [11, 29, 45, 63]
    VG = [26, 27, 27, 28, 28, 30, 30, 32, 34, 34, 36, 38, 38, 40, 42, 42]
    KG = [44, 46, 46, 50, 50, 52, 54, 54]
    def step(self, k, par, kind='full', extra=None):
        NS = 68
        Sl = Slots(NS)
        it = k // 2; ktile = it + 1; vtile = it
        last = kind == 'last'
        for qt in range(4):
            if not last:
                for m in range(8):
                    ds, kt = m >> 1, m & 1
                    Sl.mf[self.QK[qt] + m] = mfma(vr(S(qt, kt), 4), ar(Kf(m), 4), ar(Qf(qt, ds), 4), vr(CI(qt) if ds == 0 else S(qt, kt), 4))
            if not last or qt >= 2:
                for dt in range(8):
                    Sl.mf[self.PV[qt] + dt] = mfma(vr(O(dt, qt), 4), ar(Vf(dt), 4), vr(P(qt), 4), vr(O(dt, qt), 4))
                Sl.mf[self.LS[qt]] = mfma(vr(LA(qt), 4), ar(aOnes, 4), vr(P(qt), 4), vr(LA(qt), 4))
        mem = [[] for _ in range(NS)]; alu = [[] for _ in range(NS)]
        def put(g, ins):
            g %= NS
            mn = ins.split()[0]
            (mem if mn.startswith('ds_') or mn.startswith('buffer_') or mn.startswith('global_') else alu)[g].append(ins)
        for qt in range(4):
            for i in range(8):
                g = self.EX[qt] + 2 * i
                if last and g < NS: continue
                r = S(qt, i >> 2) + (i & 3)
                put(g, f'v_exp_f32{cfg.exp_enc} v{r}, v{r}')
            for n in range(4):
                g = self.EX[qt] + 4 * n + 3
                if last and g < NS: continue
                r = S(qt, n >> 1) + 2 * (n & 1)
                if last and Sl.mf[g % NS] is None: put(g, 's_nop 0')
                put(g, f'v_cvt_pk_bf16_f32 v{P(qt)+n}, v{r}, v{r+1}')
        if last: Sl.pre[8].append('s_nop 1')
        if not last:
            for n in range(16):
                dt, u = n >> 1, n & 1
                put(self.VG[n], f'ds_read_b64_tr_b16 a[{Vf(dt)+2*u}:{Vf(dt)+2*u+1}], v{vVA+dt} offset:{par*8192+u*4096}')
            if kind == 'full':
                for m in range(8):
                    ds, kt = m >> 1, m & 1
                    put(self.KG[m], f'ds_read_b128 a[{Kf(m)}:{Kf(m)+3}], v{vKA+ds} offset:{par*8192+kt*4096}')
            nk = sum(1 for g in self.KG if g <= 48) if kind == 'full' else 0
            Sl.pre[49].append(f's_waitcnt lgkmcnt({nk})')
            if kind == 'full': Sl.pre[67].append('s_waitcnt lgkmcnt(0)')
            if par == 0:
                Sl.pre[1] += ['s_waitcnt vmcnt(VMW)', 's_barrier']
                for dt in range(8): put([2, 4, 4, 6, 8, 8, 10, 14][dt], f'v_xor_b32{cfg.exp_enc} v{vVA+dt}, s{sXor}, v{vVA+dt}')
                for ds in range(4): put([18, 20, 20, 22][ds], f'v_xor_b32{cfg.exp_enc} v{vKA+ds}, s{sXor}, v{vKA+ds}')
        if extra:
            for g, L in extra.items():
                mem[g % NS] += L
        ab = cfg.ablate
        if ab and kind == 'full':
            if 'exp' in ab: alu = [[x for x in a if not x.startswith('v_exp')] for a in alu]
            if 'cvt' in ab: alu = [[x for x in a if not x.startswith('v_cvt')] for a in alu]
            if 'vrd' in ab: mem = [[x for x in a if not x.startswith('ds_read_b64')] for a in mem]
            if 'krd' in ab: mem = [[x for x in a if not x.startswith('ds_read_b128')] for a in mem]
            if 'dma' in ab: mem = [[x for x in a if not x.startswith('buffer_load')] for a in mem]
            if 'lsum' in ab:
                for qt in range(4): Sl.mf[self.LS[qt]] = None
        for g in range(NS): Sl.post[g] = mem[g] + alu[g]
        if cfg.pad and not last:
            for g in range(3, NS, max(1, NS // cfg.pad)): Sl.post[g].append('s_nop 3')
        self.last_load = Sl.load()
        return Sl.out()

    def kv_extra(self, it, par, doK=True, doV=True):
        slot = (it + 1 + cfg.D) & 3
        X = {}
        if par == 0:
            X.setdefault(61, []).append(f's_and_b32 s{sVsoff}, s{sVsoff}, 0x3ffff')
            if doK:
                D = dma_K(it + 1 + cfg.D, slot, f's{sKsoff}')
                X[12] = [f's_mov_b32 m0, s{sDma}']
                for g, d in zip((16, 24, 58, 64), D): X.setdefault(g, []).append(d)
                X.setdefault(64, []).append(f's_add_u32 s{sKsoff}, s{sKsoff}, 16384')
        else:
            X.setdefault(12, []).append(f's_and_b32 s{sKsoff}, s{sKsoff}, 0x3ffff')
            if doV:
                D = dma_V(it + cfg.D, slot, f's{sVsoff}')
                X[0] = [f's_add_u32 s{sT0}, s{sDma}, {LDS_V}']
                X[4] = [f's_mov_b32 m0, s{sT0}']
                for g, d in zip((8, 20, 58, 64), D): X.setdefault(g, []).append(d)
                X.setdefault(64, []).append(f's_add_u32 s{sVsoff}, s{sVsoff}, 16384')
            if cfg.D == 2:
                X.setdefault(61, []).append(f's_xor_b32 s{sXor}, s{sXor}, 0x8000')
                X.setdefault(62, []).append(f's_xor_b32 s{sDma}, s{sDma}, s{sXor}')
            else:
                X.setdefault(61, []).append(f's_xor_b32 s{sDma}, s{sDma}, s{sXor}')
                X.setdefault(62, []).append(f's_xor_b32 s{sXor}, s{sXor}, 0x8000')
            X.setdefault(62, []).append(f's_add_u32 s{sIter}, s{sIter}, 1')
        return X

    def phase2(self):
        e = self.e
        def qk0(qt):
            return [mfma(vr(S(qt, m & 1), 4), ar(Kf(m), 4), ar(Qf(qt, m >> 1), 4), '0' if m < 2 else vr(S(qt, m & 1), 4)) for m in range(8)]
        def weave(valu, mf, lead=2):
            o = []; n = len(valu); step_ = max(1, (n - lead) // max(1, len(mf))); j = 0
            for i, x in enumerate(valu):
                o.append(x)
                if i >= lead and (i - lead) % step_ == 0 and j < len(mf): o += mf[j] if isinstance(mf[j], list) else [mf[j]]; j += 1
            for x in mf[j:]: o += x if isinstance(x, list) else [x]
            return o
        kreads = kreads0
        vreads = vreads0()
        zero = lambda qt: [mfma(vr(O(dt, qt), 4), ar(aZero, 4), ar(aZero, 4), '0') for dt in range(8)] + [mfma(vr(LA(qt), 4), ar(aZero, 4), ar(aZero, 4), '0')]
        wait0 = f's_waitcnt vmcnt({self.vm_need({"K0", "Vm1"})})'
        late = self.late_kv_pending
        if cfg.epi_early:
            e(kreads0(0)[4:])
            e('s_nop 1')
            E1 = epi(1)
            e(E1[:8]); e('s_waitcnt lgkmcnt(0)')
            e(weave(E1[8:], qk0(0)))
        else:
            e('s_nop 3')
            e(wait0); e('s_barrier')
            self.stamp('q0')
            e(kreads(0)); e(vreads)
            e(epi(0))
            self.stamp('q1')
            e('s_waitcnt lgkmcnt(15)\ns_waitcnt lgkmcnt(0)')
            e(weave(epi(1), qk0(0)))
        h_ = len(late) // 2
        e(weave(epi(2), qk0(1) + [g for g in late[:h_]]))
        e(weave(epi(3), qk0(2) + [g for g in late[h_:]]))
        self.stamp('q2')
        e('s_branch L_p2q3', trace=False)
        self.p('L_p2start:')
        R = [wait0, 's_barrier'] + kreads(0) + vreads + ['s_waitcnt lgkmcnt(0)'] + qk0(0) + qk0(1) + qk0(2)
        self.e([x.split(';')[0].strip() for x in R], trace=False)
        self.p('L_p2q3:')
        q3 = qk0(3); k1 = kreads(8192)
        z = zero(2) + zero(3)
        e('s_nop 1')
        for m in range(8):
            e(q3[m]); e(k1[m]); e(z[2*m:2*m+2])
        e(z[16:])
        self.stamp('q3')
        for qt in range(4):
            a, b = S(qt, 0), S(qt, 1); m = vT + qt
            e(f'v_max3_f32 v{m}, v{a}, v{a+1}, v{vMG+qt}\nv_max3_f32 v{m}, v{m}, v{a+2}, v{a+3}\nv_max3_f32 v{m}, v{m}, v{b}, v{b+1}\nv_max3_f32 v{m}, v{m}, v{b+2}, v{b+3}')
        for sw in ('v_permlane32_swap_b32', 'v_permlane16_swap_b32'):
            for qt in range(4): e(f'v_mov_b32 v{vC+qt}, v{vT+qt}')
            e('s_nop 0')
            for qt in range(4): e(f'{sw} v{vT+qt}, v{vC+qt}')
            for qt in range(4): e(f'v_max_f32 v{vT+qt}, v{vT+qt}, v{vC+qt}')
        for qt in range(4):
            for r in range(4): e(f'v_sub_f32 v{CI(qt)+r}, 0, v{vT+qt}')
        for qt in range(4):
            for i in range(8): e(f'v_add_f32 v{S(qt,0)+i}, v{S(qt,0)+i}, v{CI(qt)}')
        for qt in range(3):
            for i in range(8): e(f'v_exp_f32 v{S(qt,0)+i}, v{S(qt,0)+i}')
        for i in range(3): e(f'v_exp_f32 v{S(3,0)+i}, v{S(3,0)+i}')
        for qt in range(3):
            for n in range(4):
                r = S(qt, n >> 1) + 2 * (n & 1)
                e(f'v_cvt_pk_bf16_f32 v{P(qt)+n}, v{r}, v{r+1}')
        e(f'v_cvt_pk_bf16_f32 v{P(3)}, v{S(3,0)}, v{S(3,0)+1}')
        self.stamp('q4')
        e('s_waitcnt lgkmcnt(0)')
        for qt in range(2):
            for dt in range(8):
                e(mfma(vr(O(dt, qt), 4), ar(Vf(dt), 4), vr(P(qt), 4), '0'))
            e(mfma(vr(LA(qt), 4), ar(aOnes, 4), vr(P(qt), 4), '0'))
        for g in self.last_kv: e(g)
        e(f'''s_mov_b32 s{sXor}, 0x4000
s_add_u32 s{sDma}, s{sW4K}, {((1+cfg.D)&3)*16384}
s_add_u32 s{sKsoff}, s{sRot}, {(1+cfg.D)*16384}
s_and_b32 s{sKsoff}, s{sKsoff}, 0x3ffff
s_add_u32 s{sVsoff}, s{sRot}, {8192+cfg.D*16384}
s_and_b32 s{sVsoff}, s{sVsoff}, 0x3ffff
s_mov_b32 s{sIter}, 0''')
        self.stamp('p2loop')
        self.p(f'.p2align {cfg.loop_align}')
        for _ in range(cfg.loop_nop): self.p('s_nop 0')
        self.p('L_p2:')
        texts = []
        NL = 12
        for it in range(NL):
            L = self.step(2 * it, 0, 'full', self.kv_extra(it, 0)); l0 = self.last_load
            L += self.step(2 * it + 1, 1, 'full', self.kv_extra(it, 1)); l1 = self.last_load
            L = [x.replace('VMW', str(8 * (cfg.D - 1))) for x in L]
            L += [f's_cmp_lt_u32 s{sIter}, {NL}', 's_cbranch_scc1 L_p2']
            texts.append([x.split(';')[0].strip() for x in L])
            if it == 0:
                self.p(L); self.loop_body = L
                print('gap load step0:', l0); print('gap load step1:', l1)
            self.tr.extend(L)
        assert all(t == texts[0] for t in texts)
        self.stamp('p2peel')
        from g2p3 import peeled_tail
        peeled_tail(self)

    def fallback(self):
        e = lambda x: self.e(x, trace=False)
        self.p('L_fallback:')
        e('s_waitcnt vmcnt(0) lgkmcnt(0)\ns_barrier')
        e(kv_dma_addr()); e(kv_read_addr())
        for i in range(4): e(f'v_mov_b32 v{vMG+i}, 0xff800000')
        e(f's_mov_b32 s{sKsoff}, s{sW4K}')
        self.p('L_fb_loop:')
        e(f's_mov_b32 m0, s{sW4K}\ns_nop 0')
        e([x.split(';')[0] for x in dma_K(0, 0, f's{sKsoff}')])
        e('s_waitcnt vmcnt(0)\ns_barrier')
        for half in range(2):
            for m in range(8):
                ds, kt = m >> 1, m & 1
                e(f'ds_read_b128 a[{Kf(m)}:{Kf(m)+3}], v{vKA+ds} offset:{half*8192+kt*4096}')
            e('s_waitcnt lgkmcnt(0)')
            for qt in range(4):
                for m in range(8):
                    ds, kt = m >> 1, m & 1
                    e(mfma(vr(S(qt, kt), 4), ar(Kf(m), 4), ar(Qf(qt, ds), 4), '0' if ds == 0 else vr(S(qt, kt), 4)))
            e('s_nop 7')
            for qt in range(4):
                a, b = S(qt, 0), S(qt, 1); m = vMG + qt
                e(f'v_max3_f32 v{m}, v{m}, v{a}, v{a+1}\nv_max3_f32 v{m}, v{m}, v{a+2}, v{a+3}\nv_max3_f32 v{m}, v{m}, v{b}, v{b+1}\nv_max3_f32 v{m}, v{m}, v{b+2}, v{b+3}')
        e(f's_barrier\ns_add_u32 s{sKsoff}, s{sKsoff}, 16384\ns_cmp_lt_u32 s{sKsoff}, 262144\ns_cbranch_scc1 L_fb_loop')
        for g in self.prefill: e([x.split(';')[0] for x in g])
        e(f's_mov_b32 s{sMode}, 1\ns_branch L_p2start')

    def finish_stamps(self):
        if not cfg.stamps: return
        e = self.e
        if cfg.dbgstamps:
            e('s_waitcnt lgkmcnt(0)', trace=False)
            for n_, (wg, base) in enumerate(zip(cfg.dbgstamps, (1, 5, 9, 12))):
                e(f's_cmp_eq_u32 s2, {wg}\ns_cbranch_scc0 L_nodbg{n_}\ns_cmp_eq_u32 s{sW}, 0\ns_cbranch_scc0 L_nodbg{n_}', trace=False)
                vals = [(stamp_reg(1), stamp_reg(0)), (stamp_reg(2), stamp_reg(0)), (stamp_reg(2) + 2, stamp_reg(1) + 2)]
                for i, (x, y) in enumerate(vals):
                    e(f's_sub_u32 s{sT0}, s{x}, s{y}\nv_mov_b32 v{vT+2}, s{sT0}\nv_mov_b32 v{vT}, {4*(base+i)}\nglobal_store_dword v{vT}, v{vT+2}, s[16:17]', trace=False)
                self.p(f'L_nodbg{n_}:')
            return
        e(f'''s_waitcnt lgkmcnt(0)
s_lshl_b32 s{sT0}, s2, 2
s_add_u32 s{sT0}, s{sT0}, s{sW}
s_lshl_b32 s{sT0}, s{sT0}, 8
s_add_u32 s{sT0}, s{sT0}, {STAMPBASE}
s_add_u32 s18, s18, s{sT0}
s_addc_u32 s19, s19, 0
v_mov_b32 v{vT}, 0''')
        for i in range(self.nstamp):
            for j in range(4): e(f'v_mov_b32 v{vT+2+j}, s{stamp_reg(i)+j}')
            e(f'global_store_dwordx4 v{vT}, v[{vT+2}:{vT+5}], s[18:19] offset:{16*i}\ns_nop 1')

def build():
    k = Kernel()
    k.header(); k.setup(); k.phase1(); k.phase2()
    from g2p3 import phase3
    phase3(k)
    k.stamp('end')
    k.finish_stamps()
    k.e('s_endpgm', trace=False)
    k.fallback()
    k.footer()
    return k

def main():
    import argparse
    ap = argparse.ArgumentParser()
    ap.add_argument('-o', default=f'cdna_kernels/{NAME}.s')
    ap.add_argument('--stamps', default='')
    ap.add_argument('--set', action='append', default=[])
    a = ap.parse_args()
    cfg.stamps = a.stamps.split(',') if a.stamps else False
    for kv in a.set:
        kk, vv = kv.split('=', 1)
        try: vv = eval(vv)
        except Exception: pass
        setattr(cfg, kk, vv)
    k = build()
    errs = simulate(k.tr, 'trace')
    errs += check_hazards(k.tr, 'haz')
    txt = k.p.text()
    txt = txt.replace('CODEOFF', f'((L_pc - {NAME}_kernel) & 0xffffff00)').replace('CODELEN', f'(L_codeend - {NAME}_kernel - 128)')
    open(a.o, 'w').write(txt)
    print('written', a.o, 'errors:', len(errs), 'trace len', len(k.tr))
```

```python
from asmlib import *
import g2 as G
from g2 import cfg, mfma, kb, Slots

REG = [13, 14, 0, 1, 2, 7, 3, 4, 8, 9, 5, 6, 10, 11, 12, 15]
WSLOT = {'t12': (0, 3), 't13': (3, 3), 't14': (6, 4), 't15': (10, 3), 'tP': (13, 3)}
WNAME = list(WSLOT)
def rbase(j):
    if j < 7: return j * 9216
    if j < 15: return 81920 + (j - 7) * 9216
    return 65536
sWoB = 4
sWoS = 9
sPh = 96
sOst = 99; sPst = 100; sFl = 101; sCnt = 59
sCB = 14; sOB = 15
vWoD = G.vWoD
aWoD = 240
vR = 8
vAd = 12
vOwn = 32
vD = 112
aPart = 0
aA = 192
def D(nt, qt): return vD + (nt * 4 + qt) * 4
def Own(qt, ks): return vOwn + (qt * 4 + ks) * 4
def Part(hp, qt, ks): return aPart + hp * 64 + (qt * 4 + ks) * 4

def wo_setup():
    T = G.vT; L = G.vLane
    out = []
    for p in range(9):
        out += [f'v_add_u32 v{T}, {64*p}, v{L}', f'v_mul_u32_u24 v{T+1}, 3641, v{T}', f'v_lshrrev_b32 v{T+1}, 16, v{T+1}',
                f'v_mul_u32_u24 v{T+2}, 18, v{T+1}', f'v_sub_u32 v{T+2}, v{T}, v{T+2}', f'v_mul_u32_u24 v{T+1}, 1152, v{T+1}',
                f'v_lshl_add_u32 v{T+1}, v{T+2}, 4, v{T+1}']
        if p % 4: out.append(f'v_subrev_u32 v{T+1}, {(p%4)*1024}, v{T+1}')
        out.append(f'v_accvgpr_write_b32 a{aWoD+p}, v{T+1}')
    for i, name in enumerate(WNAME):
        c0, nw = WSLOT[name]
        t = [rbase(REG[c0 + min(w, nw - 1)]) for w in range(4)]
        out += [f's_mov_b32 s{sWoB+i}, {t[0]}']
        for w in range(1, 4): out += [[f's_cmp_eq_u32 s{G.sW}, {w}', f's_cselect_b32 s{sWoB+i}, {t[w]}, s{sWoB+i}']]
        out += [f's_add_u32 s{G.sT1}, s{G.sW}, {c0}', f's_lshr_b32 s{G.sT0}, s{G.sT1}, 2', f's_add_u32 s{G.sT0}, s{G.sT0}, s{G.sNb}', f's_and_b32 s{G.sT0}, s{G.sT0}, 3',
                f's_lshl_b32 s{G.sT0}, s{G.sT0}, 2', f's_and_b32 s{G.sT1}, s{G.sT1}, 3', f's_add_u32 s{G.sT0}, s{G.sT0}, s{G.sT1}', f's_mul_i32 s{sWoS+i}, s{G.sT0}, {32*1152}']
    return out

def p3_scalars():
    t0, t1 = G.sT0, G.sT1
    o = f'''s_lshl_b32 s{sFl}, s{G.sB}, 5
s_add_u32 s{sFl}, s{sFl}, s{G.sH}
s_lshl_b32 s{sOst}, s{sFl}, 2
s_add_u32 s{sOst}, s{sOst}, s{G.sW}
s_lshl_b32 s{sOst}, s{sOst}, 14
s_lshl_b32 s{sFl}, s{sFl}, 7
s_add_u32 s{sFl}, s{sFl}, {G.FBASE}
s_add_u32 s91, s{sFl}, {G.FTWIN}'''.split('\n')
    for hp in range(3):
        o += f'''s_add_u32 s{t0}, s{G.sNb}, {hp+1}
s_and_b32 s{t0}, s{t0}, 3
s_lshl_b32 s{t1}, s{G.sKg}, 2
s_add_u32 s{t0}, s{t0}, s{t1}
s_lshl_b32 s{t1}, s{G.sB}, 5
s_add_u32 s{t0}, s{t0}, s{t1}
s_lshl_b32 s{t0}, s{t0}, 2
s_add_u32 s{t0}, s{t0}, s{G.sW}
s_lshl_b32 s{sPh+hp}, s{t0}, 14'''.split('\n')
    o += f'''s_lshl_b32 s{t0}, s{G.sB}, 2
s_add_u32 s{t0}, s{t0}, s{G.sNb}
s_lshl_b32 s{t0}, s{t0}, 3
s_lshl_b32 s{t1}, s{G.sW}, 1
s_add_u32 s{t1}, s{t0}, s{t1}
s_lshl_b32 s{t1}, s{t1}, 4
s_add_u32 s{t1}, s{t1}, s{G.sKg}
s_mul_i32 s{sPst}, s{t1}, 5120
s_add_u32 s{sPst}, s{sPst}, {G.PBASE}
s_add_u32 s{t0}, s{t0}, s{G.sKg}
s_mul_i32 s{sCB}, s{t0}, {16*5120}
s_add_u32 s{sCB}, s{sCB}, {G.PBASE}
s_lshr_b32 s{t0}, s{G.sKg}, 1
s_lshl_b32 s{t0}, s{t0}, 2
s_and_b32 s{t1}, s{G.sKg}, 1
s_add_u32 s{t0}, s{t0}, s{t1}
s_lshl_b32 s{t1}, s{G.sB}, 4
s_add_u32 s{t0}, s{t0}, s{t1}
s_mul_i32 s{sOB}, s{t0}, {16*1152}
s_mul_i32 s{t1}, s{G.sNb}, 288
s_add_u32 s{sOB}, s{sOB}, s{t1}'''.split('\n')
    return o

_skip = [0]
def wo_dma(name, vbase=None):
    i = WNAME.index(name); c0, nw = WSLOT[name]
    L = []
    for p in range(9):
        g = []
        if p % 4 == 0: g += [f's_add_u32 m0, s{sWoB+i}, {p*1024}']
        ins = f'buffer_load_dwordx4 v{(vbase or vWoD)+p}, s[{G.sWo}:{G.sWo+3}], s{sWoS+i} offen offset:{(p%4)*1024}{cfg.wo_flag} lds'
        if nw == 4:
            a = lambda w, p=p: rbase(REG[c0 + w]) + p * 1024
            if p % 4 == 0: g.append('s_nop 0')
            g.append(f'{ins} ; @dma WO{name} {kb(a)}')
        else:
            _skip[0] += 1
            g += [f's_cbranch_vccnz L_wsk{_skip[0]}', f'{ins} ;@notrace', f'L_wsk{_skip[0]}:']
        L.append(g)
    return L

def spread(groups, gaps):
    X = {}
    for g, pos in zip(groups, gaps): X.setdefault(pos, []).extend(g)
    return X
def merge(a, b):
    for g, L in b.items(): a.setdefault(g, []).extend(L)
    return a

def peeled_tail(k):
    e = k.e
    cnt = [0]
    def emit(step_lines, tags):
        n = k.vm_need(tags); ni = k.vm_need(tags, incl=True)
        out = []
        for x in step_lines:
            if 'VMW' in x and ni != n:
                cnt[0] += 1
                out += [f's_cbranch_vccnz L_vwa{cnt[0]} ;@skip', x.replace('VMW', str(ni)) + ' ;@skip', f's_branch L_vwb{cnt[0]} ;@skip', f'L_vwa{cnt[0]}:', x.replace('VMW', str(n)), f'L_vwb{cnt[0]}:']
            else: out.append(x.replace('VMW', str(n)))
        emit2(out)
    def emit2(lines):
        for x in lines:
            if '@notrace' in x:
                e(x.replace(' ;@notrace', ''), trace=False); k.nt_marks.append(len(k.tr))
            elif '@skip' in x: e(x.replace(' ;@skip', ''), trace=False)
            elif x.endswith(':') or x.startswith('s_cbranch_vccnz L_wsk'): e(x, trace=False)
            else: e(x)
    k.emit2 = emit2
    reg = [f's_lshl_b32 s{G.sT0}, s{G.sB}, 5', f'v_mov_b32 v{G.vT2}, s{G.sT0}', f'global_load_dword v{G.vT2}, v{G.vT2}, s[16:17] sc1']
    D_ = cfg.D
    assert D_ == 2
    rd = [f'v_accvgpr_read_b32 v{vWoD+p}, a{aWoD+p}' for p in range(9)]
    e(f's_cmp_eq_u32 s{G.sW}, 3\ns_cselect_b64 vcc, -1, 0')
    if cfg.wo_coop:
        Dk = G.dma_K(15, 3, f's{G.sKsoff}')
        X = {2: [rd[0]], 4: [f's_mov_b32 m0, s{G.sDma}'], 6: [rd[1]], 12: [Dk[0], rd[2]], 16: [Dk[1], rd[3]], 24: [Dk[2]], 56: [Dk[3]], 58: [rd[4], rd[5]], 60: [rd[6]], 61: [rd[7], rd[8]],
             62: [f's_and_b32 s{G.sVsoff}, s{G.sVsoff}, 0x3ffff'],
             64: [f's_and_b32 s{G.sT0}, s{G.sJ}, 3', f's_lshl_b32 s{G.sT0}, s{G.sT0}, 2']}
        emit(k.step(24, 0, 'full', X), {'V12', 'K13'})
        Dv = G.dma_V(14, 3, f's{G.sVsoff}')
        co = [f'buffer_load_dwordx4 a[{128+4*p}:{131+4*p}], v{vWoD+p}, s[{G.sWo}:{G.sWo+3}], s{G.sT2} offen offset:{(p%4)*1024}' for p in range(9)]
        X = {0: [f's_add_u32 m0, s{G.sDma}, {G.LDS_V}', f's_add_u32 s{G.sT0}, s{G.sT0}, s{G.sW}'], 2: [Dv[0]], 4: [Dv[1], f's_mul_i32 s{G.sT2}, s{G.sT0}, {32*1152}'], 6: [Dv[2]], 8: [Dv[3]],
             10: [f's_add_u32 s{G.sVsoff}, s{G.sVsoff}, 16384'], 61: [f's_xor_b32 s{G.sXor}, s{G.sXor}, 0x8000'], 62: [f's_xor_b32 s{G.sDma}, s{G.sDma}, s{G.sXor}']}
        X = merge(X, spread([[x] for x in co], [12, 14, 16, 18, 20, 22, 24, 44, 46]))
        X = merge(X, {60: reg[:1]})
        emit(k.step(25, 1, 'full', X), set())
        e(reg[1:])
        k.stamp('it12')
        W = wo_dma('t12') + wo_dma('t13')
        Dv = G.dma_V(15, 0, f's{G.sVsoff}')
        X = {2: [f's_and_b32 s{G.sVsoff}, s{G.sVsoff}, 0x3ffff'], 4: [f's_add_u32 m0, s{G.sDma}, {G.LDS_V}'], 8: [Dv[0]], 12: [Dv[1]], 16: [Dv[2]], 20: [Dv[3]]}
        X = merge(X, spread(W[:4], [56, 58, 60, 64]))
        emit(k.step(26, 0, 'full', X), {'V13', 'K14'})
        X = spread(W[4:], [0, 4, 8, 12, 16, 20, 24, 44, 48, 52, 56, 58, 60, 64]); X.setdefault(61, []).append(f's_xor_b32 s{G.sXor}, s{G.sXor}, 0x8000')
        emit(k.step(27, 1, 'full', X), set())
        k.stamp('it13')
    else:
        W = wo_dma('t12')
        Dk = G.dma_K(15, 3, f's{G.sKsoff}')
        X = {2: [rd[0]], 4: [f's_mov_b32 m0, s{G.sDma}'], 6: [rd[1]], 12: [Dk[0], rd[2]], 16: [Dk[1], rd[3]], 24: [Dk[2]], 56: [Dk[3]], 58: [rd[4], rd[5]], 60: [rd[6]], 61: [rd[7], rd[8]],
             62: [f's_and_b32 s{G.sVsoff}, s{G.sVsoff}, 0x3ffff']}
        X = {g: L for g, L in X.items()}
        emit(k.step(24, 0, 'full', X), {'V12', 'K13'})
        Dv = G.dma_V(14, 3, f's{G.sVsoff}')
        X = {0: [f's_add_u32 m0, s{G.sDma}, {G.LDS_V}'], 2: [Dv[0]], 4: [Dv[1]], 6: [Dv[2]], 8: [Dv[3]], 10: [f's_add_u32 s{G.sVsoff}, s{G.sVsoff}, 16384'],
             61: [f's_xor_b32 s{G.sXor}, s{G.sXor}, 0x8000'], 62: [f's_xor_b32 s{G.sDma}, s{G.sDma}, s{G.sXor}']}
        X = merge(X, spread(W, [12, 16, 20, 24, 44, 48, 56, 58, 64]))
        X = merge(X, {60: reg[:1], 64: [], 66: []})
        emit(k.step(25, 1, 'full', X), set())
        e(reg[1:])
        k.stamp('it12')
        W = wo_dma('t13')
        Dv = G.dma_V(15, 0, f's{G.sVsoff}')
        X = {2: [f's_and_b32 s{G.sVsoff}, s{G.sVsoff}, 0x3ffff'], 4: [f's_add_u32 m0, s{G.sDma}, {G.LDS_V}'], 12: [Dv[0]], 16: [Dv[1]], 24: [Dv[2]], 56: [Dv[3]]}
        X = merge(X, spread(W[:2], [60, 64]))
        emit(k.step(26, 0, 'full', X), {'V13', 'K14'})
        X = spread(W[2:], [0, 8, 16, 24, 56, 60, 64]); X.setdefault(61, []).append(f's_xor_b32 s{G.sXor}, s{G.sXor}, 0x8000')
        emit(k.step(27, 1, 'full', X), set())
        k.stamp('it13')
    W = wo_dma('t14')
    emit(k.step(28, 0, 'full', spread(W[:4], [12, 24, 58, 64])), {'V14', 'K15'})
    X = spread(W[4:], [4, 12, 20, 58, 64]); X.setdefault(61, []).append(f's_xor_b32 s{G.sXor}, s{G.sXor}, 0x8000')
    emit(k.step(29, 1, 'full', X), set())
    k.stamp('it14')
    W = wo_dma('t15')
    L30 = k.step(30, 0, 'nok', spread(W[:7], [12, 20, 44, 50, 56, 60, 64]))
    assert k.vm_need({'V15'}) == 9
    emit2([x.replace('VMW', '9') for x in L30])
    k.stamp('s30')
    emit2(k.step(31, 1, 'last', spread(W[7:], [2, 6])))
    k.stamp('p2end')

def poll_dual(k, name, vaddr, soff_reg, nbits, mask=7):
    e = k.e; T = G.vT
    full = (1 << (1 << nbits)) - 1
    e(f's_mov_b32 s{sCnt}, 0\ns_mov_b32 s{G.sT2}, 0\ns_add_u32 s{G.sT3 if False else 88}, s{soff_reg}, {G.FTWIN}', trace=False)
    k.p(f'L_poll_{name}:')
    e(f'''s_and_b32 s{G.sT1}, s{sCnt}, {mask}
s_cmp_eq_u32 s{G.sT1}, {mask}
s_cselect_b32 s89, s{soff_reg}, s88
s_add_u32 s{sCnt}, s{sCnt}, 1
buffer_load_dword v{T+1}, v{vaddr}, s[{G.sWS}:{G.sWS+3}], s89 offen sc1
s_waitcnt vmcnt(0)
v_cmp_eq_u32 vcc, 1, v{T+1}
s_nop 1
s_or_b32 s{G.sT2}, s{G.sT2}, vcc_lo
s_and_b32 s{G.sT1}, s{G.sT2}, {full}
s_cmp_eq_u32 s{G.sT1}, {full}
s_cbranch_scc1 L_pollx_{name}
{'s_sleep ' + str(cfg.poll_sleep) if (cfg.poll_sleep and mask == 0) else 's_nop 0'}
s_cmp_ge_u32 s{sCnt}, 0x8000
s_cbranch_scc0 L_poll_{name}''', trace=False)
    k.p(f'L_pollx_{name}:')
    k.tr.append('s_waitcnt vmcnt(0)')

def poll(k, name, vaddr, soff_reg):
    e = k.e
    e(f's_mov_b32 s{sCnt}, 0', trace=False)
    k.p(f'L_poll_{name}:')
    e(f'''buffer_load_dword v{G.vT+1}, v{vaddr}, s[{G.sWS}:{G.sWS+3}], s{soff_reg} offen sc1
s_add_u32 s{sCnt}, s{sCnt}, 1
s_waitcnt vmcnt(0)
v_cmp_ne_u32 vcc, 1, v{G.vT+1}
s_cmp_ge_u32 s{sCnt}, 0x4000
s_cbranch_scc1 L_pollx_{name}
s_cbranch_vccz L_pollx_{name}
s_sleep 1
s_branch L_poll_{name}''', trace=False)
    k.p(f'L_pollx_{name}:')
    k.tr.append('s_waitcnt vmcnt(0)')

def set_flag(k, off_vreg, dual=False):
    o = ['s_mov_b64 exec, 1']
    if dual: o.append(f'buffer_store_dword v{vOne}, v{off_vreg}, s[{G.sWS}:{G.sWS+3}], s91 offen')
    o += [f'buffer_store_dword v{vOne}, v{off_vreg}, s[{G.sWS}:{G.sWS+3}], s{sFl} offen sc1', 's_mov_b64 exec, -1']
    return o

vOne = 20; vF1 = 21; vF2a = 24; vF2b = 25
vPk = [32, 68]

def phase3(k):
    e = k.e; T = G.vT; L = G.vLane
    e('s_nop 4')
    rp = [T, T + 2, T + 4, 122]
    sBad = 88
    for qt in range(4): e(f'v_rcp_f32 v{rp[qt]}, v{G.LA(qt)}')
    e(f's_mov_b32 s{G.sT0}, 0x6f800000')
    for qt in range(4):
        e(f'v_cmp_nlt_f32 vcc, v{G.LA(qt)}, v{G.LA(qt)}') if False else None
    e(f'v_mov_b32 v{G.vT2+1}, s{G.sT0}')
    e(f's_mov_b64 s[{sBad}:{sBad+1}], 0')
    for qt in range(4):
        e(f'v_cmp_nlt_f32 vcc, v{G.LA(qt)}, v{G.vT2+1}\ns_nop 0\ns_or_b64 s[{sBad}:{sBad+1}], s[{sBad}:{sBad+1}], vcc')
    e(f'v_lshlrev_b32 v{vAd}, 4, v{L}')
    for qt in range(4): e(f'v_mov_b32 v{rp[qt]+1}, v{rp[qt]}')
    for i in range(1, 4): e(f'v_add_u32 v{vAd+i}, {4096*i}, v{vAd}')
    vPr = 108
    prev = None; nprobe = 0
    for ks in range(4):
        for qt in range(4):
            for x in range(2):
                b = G.O(2 * ks + x, qt); r = rp[qt]
                e(f'v_pk_mul_f32 v[{b}:{b+1}], v[{b}:{b+1}], v[{r}:{r+1}]\nv_pk_mul_f32 v[{b+2}:{b+3}], v[{b+2}:{b+3}], v[{r}:{r+1}]')
            if prev is not None:
                e(mfma(vr(vPr, 4), ar(G.aZero, 4), vr(prev, 4), '0' if nprobe == 0 else vr(vPr, 4))); nprobe += 1
            for x in range(2):
                b = G.O(2 * ks + x, qt); d = Own(qt, ks) + 2 * x
                e(f'v_cvt_pk_bf16_f32 v{d}, v{b}, v{b+1}\nv_cvt_pk_bf16_f32 v{d+1}, v{b+2}, v{b+3}')
            if ks == 0 or cfg.early_ost:
                e(f'buffer_store_dwordx4 v[{Own(qt,ks)}:{Own(qt,ks)+3}], v{vAd+qt}, s[{G.sWS}:{G.sWS+3}], s{sOst} offen offset:{ks*1024}{cfg.ost_flag}')
            prev = Own(qt, ks)
    e('s_nop 1')
    e(mfma(vr(vPr, 4), ar(G.aZero, 4), vr(prev, 4), vr(vPr, 4)))
    for p in range(9): e(f'v_mov_b32 v{96+p}, v{vWoD+p}')
    ost = [f'buffer_store_dwordx4 v[{Own(qt,ks)}:{Own(qt,ks)+3}], v{vAd+qt}, s[{G.sWS}:{G.sWS+3}], s{sOst} offen offset:{ks*1024} sc1' for ks in range(1, 4) for qt in range(4)]
    if cfg.early_ost: ost = []
    e(f'''s_lshl_b32 s{G.sT0}, s{G.sW}, 2
s_add_u32 s{G.sT0}, s{G.sT0}, 64512
v_mov_b32 v{T}, s{G.sT0}
v_mov_b32 v{vOne}, 1
s_nop 3
v_cmp_u_f32 vcc, v{vPr}, v{vPr}
s_nop 0
s_or_b64 s[{sBad}:{sBad+1}], s[{sBad}:{sBad+1}], vcc
s_cmp_lg_u64 s[{sBad}:{sBad+1}], 0
s_cselect_b32 s{G.sT0}, 1, 0
v_mov_b32 v{T+1}, s{G.sT0}
ds_write_b32 v{T}, v{T+1}
v_mov_b32 v{T+2}, 64512''')
    n = k.vm_need({'REG', 'WOt14'})
    e(f's_waitcnt vmcnt({n}) lgkmcnt(0)\ns_barrier')
    e(f'ds_read_b128 v[124:127], v{T+2}')
    e(f'v_readfirstlane_b32 s90, v{G.vT2}')
    k.stamp('p3pk')
    e(f'''v_lshrrev_b32 v30, 4, v{L}
v_bfe_u32 v31, v{L}, 2, 2
v_lshl_add_u32 v30, v30, 2, v31
v_mul_u32_u24 v30, 288, v30
v_and_b32 v31, 3, v{L}
v_lshl_add_u32 v{vR}, v31, 3, v30
v_add_u32 v{vR+1}, 61440, v{vR}
v_add_u32 v{vR+2}, 122880, v{vR}
v_mov_b32 v{vOne}, 1
s_lshl_b32 s{G.sT0}, s{G.sW}, 2
v_mov_b32 v{vF1}, s{G.sT0}
s_lshl_b32 s{G.sT0}, s{G.sW}, 3
s_add_u32 s{G.sT0}, s{G.sT0}, 16
v_mov_b32 v{vF2a}, s{G.sT0}
s_add_u32 s{G.sT0}, s{G.sT0}, 4
v_mov_b32 v{vF2b}, s{G.sT0}''')
    e(f'''s_waitcnt lgkmcnt(0)
v_or_b32 v124, v124, v125
v_or3_b32 v124, v124, v126, v127
s_nop 0
v_readfirstlane_b32 s{G.sT0}, v124
s_andn2_b32 s{G.sT0}, s{G.sT0}, s{G.sMode}
s_cmp_lg_u32 s{G.sT0}, 0
s_cbranch_scc1 L_fallback''')
    assert cfg.early_ost
    e(f's_cmp_eq_u32 s{G.sW}, 3\ns_cselect_b64 vcc, -1, 0')
    def a_read(c, nt, slot):
        base = rbase(REG[c]); idx = base // 61440
        return [f'ds_read_b64_tr_b16 a[{aA+4*slot+2*u}:{aA+4*slot+2*u+1}], v{vR+idx} offset:{base-61440*idx+u*4608+nt*32} ; ' + ('@rd WOt14' if c >= 6 else '') for u in range(2)]
    seq = [(c, nt, (0, 1, 2, 3)) for c in range(4) for nt in range(9)]
    seq += [(c, nt, (0, 1)) for c in range(4, 16) for nt in range(9)]
    seq += [(c, nt, (2, 3)) for c in range(4, 16) for nt in range(9)]
    AH_OWN, AH = 6, 8
    for i in range(AH_OWN): e(a_read(seq[i][0], seq[i][1], i % 16))
    k.stamp('p3go')
    def part_load(hp, qt, ks):
        return f'buffer_load_dwordx4 a[{Part(hp,qt,ks)}:{Part(hp,qt,ks)+3}], v{vAd+qt}, s[{G.sWS}:{G.sWS+3}], s{sPh+hp} offen offset:{ks*1024}'
    loads = [[part_load(hp, qt, ks) for ks in range(4) for qt in (2 * half, 2 * half + 1)] for half in range(2) for hp in range(3)]
    def pack_store(half):
        cv = []; st = []
        for x in range(2):
            qt = 2 * half + x
            for blk in range(5):
                d = D(2 * blk, qt)
                cv += [f'v_cvt_pk_bf16_f32 v{d}, v{d}, v{d+1}', f'v_cvt_pk_bf16_f32 v{d+1}, v{d+2}, v{d+3}']
                if blk < 4:
                    b_ = D(2 * blk + 1, qt)
                    cv += [f'v_cvt_pk_bf16_f32 v{d+2}, v{b_}, v{b_+1}', f'v_cvt_pk_bf16_f32 v{d+3}, v{b_+2}, v{b_+3}']
                g = []
                if blk == 0: g.append(f's_add_u32 s{sOst}, s{sPst}, {x*81920 + half*40960}')
                g.append(f'buffer_store_dwordx4 v[{d}:{d+3}], v{vAd + (blk >> 2)}, s[{G.sWS}:{G.sWS+3}], s{sOst} offen offset:{(blk & 3)*1024} sc1')
                st.append(g)
        return cv, st
    R = 32; SUM = 80
    def fin_addr(part):
        return f'''v_and_b32 v{T}, 7, v{L}
v_lshlrev_b32 v{T}, 2, v{T}
v_add_u32 v{T}, s{G.sNb}, v{T}
v_lshlrev_b32 v{T}, 7, v{T}
s_lshr_b32 s{G.sT0}, s{G.sKg}, 1
s_lshl_b32 s{G.sT0}, s{G.sT0}, 3
s_add_u32 s{G.sT0}, s{G.sT0}, {16 + 4*part}
v_add_u32 v{T}, s{G.sT0}, v{T}
s_lshl_b32 s{G.sT0}, s{G.sB}, 12
s_add_u32 s{G.sT0}, s{G.sT0}, {G.FBASE}'''
    def fin_loads(part):
        o = []
        for src in range(8):
            o.append([f's_add_u32 s{G.sT1}, s{sCB}, {part*40960 + src*5120}',
                      f'buffer_load_dwordx4 v[{R+4*src}:{R+4*src+3}], v{vAd+4}, s[{G.sWS}:{G.sWS+3}], s{G.sT1} offen',
                      f'buffer_load_dwordx2 v[{R+32+2*src}:{R+32+2*src+1}], v{vAd+5}, s[{G.sWS}:{G.sWS+3}], s{G.sT1} offen'])
        return o
    def fin_reduce(part):
        e(f's_waitcnt vmcnt({k.vm_need({f"FIN{part}"})})')
        e(f's_mov_b32 s{G.sT1}, 0x00003f80\ns_mov_b32 s{G.sT2}, 0x3f800000')
        for src in range(8):
            for j in range(4):
                for hi_ in range(2):
                    acc = SUM + 2 * j + hi_
                    e(f'v_dot2_f32_bf16 v{acc}, v{R+4*src+j}, s{G.sT1+hi_}, {"0" if src == 0 else f"v{acc}"}')
            for j in range(2):
                for hi_ in range(2):
                    acc = SUM + 8 + 2 * j + hi_
                    e(f'v_dot2_f32_bf16 v{acc}, v{R+32+2*src+j}, s{G.sT1+hi_}, {"0" if src == 0 else f"v{acc}"}')
        e('s_nop 2')
        for j in range(6): e(f'v_cvt_pk_bf16_f32 v{SUM+12+j}, v{SUM+2*j}, v{SUM+2*j+1}')
        e(f'''s_add_u32 s{G.sT0}, s{sOB}, {part*32*1152}
s_cmp_ge_u32 s{G.sW}, 1
s_cselect_b32 s{G.sT1}, 0x7ffff000, s{G.sT0}
s_lshl_b32 s{G.sT2}, s{G.sW}, 6
s_add_u32 s{G.sT0}, s{G.sT0}, s{G.sT2}
buffer_store_dwordx2 v[{SUM+12}:{SUM+13}], v{vAd+6}, s[{G.sOut}:{G.sOut+3}], s{G.sT0} offen{cfg.out_flag}
buffer_store_dwordx2 v[{SUM+14}:{SUM+15}], v{vAd+6}, s[{G.sOut}:{G.sOut+3}], s{G.sT0} offen offset:32{cfg.out_flag}
buffer_store_dwordx2 v[{SUM+16}:{SUM+17}], v{vAd+6}, s[{G.sOut}:{G.sOut+3}], s{G.sT1} offen offset:256{cfg.out_flag}''')
    issued = AH_OWN
    SPL, POL = cfg.own_split
    seg_bounds = [(0, 9 * SPL), (9 * SPL, 9 * POL), (9 * POL, 36), (36, 144), (144, 252)]
    extra = {}
    def place(i0, items, every):
        for n_, it_ in enumerate(items):
            extra.setdefault(i0 + n_ * every, []).append(it_ if isinstance(it_, list) else [it_])
    if ost: place(1, ost, max(1, (9 * SPL - 2) // len(ost)))
    place(36 + 1, loads[2], 1)
    place(36 + 18, loads[3], cfg.l3_every)
    if cfg.tp_late: place(36 + 21, wo_dma('tP', 96), 3)
    place(36 + 70, loads[4], 2)
    place(36 + 88, loads[5], 2)
    for seg, (lo, hi) in enumerate(seg_bounds):
        if seg == 1:
            nn = k.vm_need({'OST'})
            e(f's_waitcnt vmcnt({nn})')
            e(set_flag(k, vF1, dual=cfg.dualflag))
            k.stamp('p3d1')
            if not cfg.tp_late: place(lo + 1, wo_dma('tP', 96), 2)
        if seg == 2:
            e(f's_mov_b32 s{G.sT2}, s90')
            k.p('L_regchk:')
            e(f's_cmp_ge_u32 s{G.sT2}, 32\ns_cbranch_scc1 L_regok')
            e(f'''s_add_u32 s{G.sPass}, s{G.sPass}, 1
s_cmp_ge_u32 s{G.sPass}, 0x4000
s_cbranch_scc1 L_regok
s_lshl_b32 s{G.sT0}, s{G.sB}, 5
v_mov_b32 v{G.vT2}, s{G.sT0}
s_sleep 1
global_load_dword v{G.vT2}, v{G.vT2}, s[16:17] sc1
s_waitcnt vmcnt(0)
v_readfirstlane_b32 s{G.sT2}, v{G.vT2}
s_branch L_regchk''', trace=False)
            k.p('L_regok:')
            e(f'''v_and_b32 v{T}, 3, v{L}
s_lshl_b32 s{G.sT0}, s{G.sKg}, 2
v_add_u32 v{T}, s{G.sT0}, v{T}
v_lshlrev_b32 v{T}, 7, v{T}
v_add_u32 v{T}, v{T}, v{vF1}
s_lshl_b32 s{G.sT0}, s{G.sB}, 12
s_add_u32 s{G.sT0}, s{G.sT0}, {G.FBASE}''')
            if cfg.dualflag:
                poll_dual(k, 'f1', T, G.sT0, 2)
            else: poll(k, 'f1', T, G.sT0)
            k.stamp('p3f1')
            for x in loads[0] + loads[1]: e(x)
            e(f's_cmp_eq_u32 s{G.sW}, 3\ns_cselect_b64 vcc, -1, 0')
        for i in range(lo, hi):
            c, nt, qts = seq[i]
            half = 0 if seg == 3 else 1
            slot = i % 16
            ah = AH_OWN if seg < 3 else AH
            rd = []
            while issued < min(len(seq), i + ah + 1):
                rd += a_read(seq[issued][0], seq[issued][1], issued % 16); issued += 1
            younger = 2 * (issued - len(rd) // 2 - 1 - i)
            pre = [f's_waitcnt lgkmcnt({min(15, younger)})']
            if seg >= 3 and nt == 0:
                pre.append(f's_waitcnt vmcnt({k.vm_need({f"PH{(c>>2)-1}_{half}_{c&3}"})})')
                if seg == 3 and c == 9: pre.append('s_barrier')
                if cfg.tp_late and seg == 3 and c == 12:
                    last = k.nt_marks[-1]
                    younger = sum(1 for x in k.tr[last:] if x.split()[0].startswith('buffer_') or x.split()[0].startswith('global_'))
                    pre += [f's_waitcnt vmcnt({younger})', 's_barrier']
            hook = None
            if seg == 4 and nt == 0 and c == cfg.f2a_c: hook = 'f2a'
            if seg == 4 and nt == 0 and c == cfg.fin0_c: hook = 'fin0'
            mf = []
            for qt in qts:
                Bop = vr(Own(qt, c), 4) if c < 4 else ar(Part((c >> 2) - 1, qt, c & 3), 4)
                Cop = '0' if c == 0 else vr(D(nt, qt), 4)
                mf.append(mfma(vr(D(nt, qt), 4), ar(aA + 4 * slot, 4), Bop, Cop))
            if hook == 'f2a':
                e(f's_waitcnt vmcnt({k.vm_need({"PS0"})})'); e(set_flag(k, vF2a, dual=cfg.dualflag and cfg.f2_mask > 0))
            if hook == 'fin0':
                e(f'''v_lshlrev_b32 v{vAd+4}, 4, v{L}
s_lshl_b32 s{G.sT1}, s{G.sW}, 10
v_add_u32 v{vAd+5}, 4096, v{vAd+4}
v_add_u32 v{vAd+4}, s{G.sT1}, v{vAd+4}
s_cmp_ge_u32 s{G.sW}, 1
s_cselect_b32 s{G.sT1}, 0x40000000, 0
v_add_u32 v{vAd+5}, s{G.sT1}, v{vAd+5}
v_and_b32 v{vAd+6}, 15, v{L}
v_mul_u32_u24 v{vAd+6}, 1152, v{vAd+6}
v_lshrrev_b32 v{vAd+7}, 4, v{L}
v_lshl_add_u32 v{vAd+6}, v{vAd+7}, 3, v{vAd+6}''')
                e(fin_addr(0))
                poll_dual(k, 'f2a', T, G.sT0, 3, cfg.f2_mask)
                k.stamp('p3f2a')
                place(i, fin_loads(0), 1)
            e(pre)
            e(mf[0]); e(rd)
            e(mf[1])
            for x in extra.pop(i, []): k.emit2(x)
            for m in mf[2:]: e(m)
        k.stamp(f'p3seg{seg}')
        if seg == 3:
            e('s_nop 4')
            cv, st = pack_store(0); e(cv)
            place(144, st, cfg.ps0_every)
        if seg == 4:
            e('s_nop 4')
            cv, st = pack_store(1)
            e(cv[:18]);
            for g in st[:5]: e(g)
            e(cv[18:])
            for g in st[5:]: e(g)
    assert not extra, extra.keys()
    k.stamp('p3mm')
    e(f's_waitcnt vmcnt({k.vm_need({"PS1"})})'); e(set_flag(k, vF2b, dual=cfg.dualflag and cfg.f2_mask > 0))
    k.stamp('p3st')
    fin_reduce(0)
    k.stamp('p3r0')
    e(fin_addr(1))
    poll_dual(k, 'f2b', T, G.sT0, 3, cfg.f2_mask)
    k.stamp('p3f2')
    for g in fin_loads(1): e(g)
    k.stamp('p3fi')
    fin_reduce(1)
```

```python
from asmlib import *
import g2 as G
from g2 import cfg, mfma, kb, Slots

REG = [13, 14, 0, 1, 2, 7, 3, 4, 8, 9, 5, 6, 10, 11, 12, 15]
WSLOT = {'t12': (0, 3), 't13': (3, 3), 't14': (6, 4), 't15': (10, 3), 'tP': (13, 3)}
WNAME = list(WSLOT)
def rbase(j):
    if j < 7: return j * 9216
    if j < 15: return 81920 + (j - 7) * 9216
    return 65536
sWoB = 4
sWoS = 9
sPh = 96
sOst = 99; sPst = 100; sFl = 101; sCnt = 59
sCB = 14; sOB = 15
vWoD = G.vWoD
aWoD = 240
vR = 8
vAd = 12
vOwn = 32
vD = 112
aPart = 0
aA = 192
def D(nt, qt): return vD + (nt * 4 + qt) * 4
def Own(qt, ks): return vOwn + (qt * 4 + ks) * 4
def Part(hp, qt, ks): return aPart + hp * 64 + (qt * 4 + ks) * 4

def wo_setup():
    T = G.vT; L = G.vLane
    out = []
    for p in range(9):
        out += [f'v_add_u32 v{T}, {64*p}, v{L}', f'v_mul_u32_u24 v{T+1}, 3641, v{T}', f'v_lshrrev_b32 v{T+1}, 16, v{T+1}',
                f'v_mul_u32_u24 v{T+2}, 18, v{T+1}', f'v_sub_u32 v{T+2}, v{T}, v{T+2}', f'v_mul_u32_u24 v{T+1}, 1152, v{T+1}',
                f'v_lshl_add_u32 v{T+1}, v{T+2}, 4, v{T+1}']
        if p % 4: out.append(f'v_subrev_u32 v{T+1}, {(p%4)*1024}, v{T+1}')
        out.append(f'v_accvgpr_write_b32 a{aWoD+p}, v{T+1}')
    for i, name in enumerate(WNAME):
        c0, nw = WSLOT[name]
        t = [rbase(REG[c0 + min(w, nw - 1)]) for w in range(4)]
        out += [f's_mov_b32 s{sWoB+i}, {t[0]}']
        for w in range(1, 4): out += [[f's_cmp_eq_u32 s{G.sW}, {w}', f's_cselect_b32 s{sWoB+i}, {t[w]}, s{sWoB+i}']]
        out += [f's_add_u32 s{G.sT1}, s{G.sW}, {c0}', f's_lshr_b32 s{G.sT0}, s{G.sT1}, 2', f's_add_u32 s{G.sT0}, s{G.sT0}, s{G.sNb}', f's_and_b32 s{G.sT0}, s{G.sT0}, 3',
                f's_lshl_b32 s{G.sT0}, s{G.sT0}, 2', f's_and_b32 s{G.sT1}, s{G.sT1}, 3', f's_add_u32 s{G.sT0}, s{G.sT0}, s{G.sT1}', f's_mul_i32 s{sWoS+i}, s{G.sT0}, {32*1152}']
    return out

def p3_scalars():
    t0, t1 = G.sT0, G.sT1
    o = f'''s_lshl_b32 s{sFl}, s{G.sB}, 5
s_add_u32 s{sFl}, s{sFl}, s{G.sH}
s_lshl_b32 s{sOst}, s{sFl}, 2
s_add_u32 s{sOst}, s{sOst}, s{G.sW}
s_lshl_b32 s{sOst}, s{sOst}, 14
s_lshl_b32 s{sFl}, s{sFl}, 7
s_add_u32 s{sFl}, s{sFl}, {G.FBASE}
s_add_u32 s91, s{sFl}, {G.FTWIN}'''.split('\n')
    for hp in range(3):
        o += f'''s_add_u32 s{t0}, s{G.sNb}, {hp+1}
s_and_b32 s{t0}, s{t0}, 3
s_lshl_b32 s{t1}, s{G.sKg}, 2
s_add_u32 s{t0}, s{t0}, s{t1}
s_lshl_b32 s{t1}, s{G.sB}, 5
s_add_u32 s{t0}, s{t0}, s{t1}
s_lshl_b32 s{t0}, s{t0}, 2
s_add_u32 s{t0}, s{t0}, s{G.sW}
s_lshl_b32 s{sPh+hp}, s{t0}, 14'''.split('\n')
    o += f'''s_lshl_b32 s{t0}, s{G.sB}, 2
s_add_u32 s{t0}, s{t0}, s{G.sNb}
s_lshl_b32 s{t0}, s{t0}, 3
s_lshl_b32 s{t1}, s{G.sW}, 1
s_add_u32 s{t1}, s{t0}, s{t1}
s_lshl_b32 s{t1}, s{t1}, 4
s_add_u32 s{t1}, s{t1}, s{G.sKg}
s_mul_i32 s{sPst}, s{t1}, 5120
s_add_u32 s{sPst}, s{sPst}, {G.PBASE}
s_add_u32 s{t0}, s{t0}, s{G.sKg}
s_mul_i32 s{sCB}, s{t0}, {16*5120}
s_add_u32 s{sCB}, s{sCB}, {G.PBASE}
s_lshr_b32 s{t0}, s{G.sKg}, 1
s_lshl_b32 s{t0}, s{t0}, 2
s_and_b32 s{t1}, s{G.sKg}, 1
s_add_u32 s{t0}, s{t0}, s{t1}
s_lshl_b32 s{t1}, s{G.sB}, 4
s_add_u32 s{t0}, s{t0}, s{t1}
s_mul_i32 s{sOB}, s{t0}, {16*1152}
s_mul_i32 s{t1}, s{G.sNb}, 288
s_add_u32 s{sOB}, s{sOB}, s{t1}'''.split('\n')
    return o

_skip = [0]
def wo_dma(name, vbase=None):
    i = WNAME.index(name); c0, nw = WSLOT[name]
    L = []
    for p in range(9):
        g = []
        if p % 4 == 0: g += [f's_add_u32 m0, s{sWoB+i}, {p*1024}']
        ins = f'buffer_load_dwordx4 v{(vbase or vWoD)+p}, s[{G.sWo}:{G.sWo+3}], s{sWoS+i} offen offset:{(p%4)*1024}{cfg.wo_flag} lds'
        if nw == 4:
            a = lambda w, p=p: rbase(REG[c0 + w]) + p * 1024
            if p % 4 == 0: g.append('s_nop 0')
            g.append(f'{ins} ; @dma WO{name} {kb(a)}')
        else:
            _skip[0] += 1
            g += [f's_cbranch_vccnz L_wsk{_skip[0]}', f'{ins} ;@notrace', f'L_wsk{_skip[0]}:']
        L.append(g)
    return L

def spread(groups, gaps):
    X = {}
    for g, pos in zip(groups, gaps): X.setdefault(pos, []).extend(g)
    return X
def merge(a, b):
    for g, L in b.items(): a.setdefault(g, []).extend(L)
    return a

def peeled_tail(k):
    e = k.e
    cnt = [0]
    def emit(step_lines, tags):
        n = k.vm_need(tags); ni = k.vm_need(tags, incl=True)
        out = []
        for x in step_lines:
            if 'VMW' in x and ni != n:
                cnt[0] += 1
                out += [f's_cbranch_vccnz L_vwa{cnt[0]} ;@skip', x.replace('VMW', str(ni)) + ' ;@skip', f's_branch L_vwb{cnt[0]} ;@skip', f'L_vwa{cnt[0]}:', x.replace('VMW', str(n)), f'L_vwb{cnt[0]}:']
            else: out.append(x.replace('VMW', str(n)))
        emit2(out)
    def emit2(lines):
        for x in lines:
            if '@notrace' in x:
                e(x.replace(' ;@notrace', ''), trace=False); k.nt_marks.append(len(k.tr))
            elif '@skip' in x: e(x.replace(' ;@skip', ''), trace=False)
            elif x.endswith(':') or x.startswith('s_cbranch_vccnz L_wsk'): e(x, trace=False)
            else: e(x)
    k.emit2 = emit2
    reg = [f's_lshl_b32 s{G.sT0}, s{G.sB}, 5', f'v_mov_b32 v{G.vT2}, s{G.sT0}', f'global_load_dword v{G.vT2}, v{G.vT2}, s[16:17] sc1']
    D_ = cfg.D
    assert D_ == 2
    rd = [f'v_accvgpr_read_b32 v{vWoD+p}, a{aWoD+p}' for p in range(9)]
    e(f's_cmp_eq_u32 s{G.sW}, 3\ns_cselect_b64 vcc, -1, 0')
    if cfg.wo_coop:
        Dk = G.dma_K(15, 3, f's{G.sKsoff}')
        X = {2: [rd[0]], 4: [f's_mov_b32 m0, s{G.sDma}'], 6: [rd[1]], 12: [Dk[0], rd[2]], 16: [Dk[1], rd[3]], 24: [Dk[2]], 56: [Dk[3]], 58: [rd[4], rd[5]], 60: [rd[6]], 61: [rd[7], rd[8]],
             62: [f's_and_b32 s{G.sVsoff}, s{G.sVsoff}, 0x3ffff'],
             64: [f's_and_b32 s{G.sT0}, s{G.sJ}, 3', f's_lshl_b32 s{G.sT0}, s{G.sT0}, 2']}
        emit(k.step(24, 0, 'full', X), {'V12', 'K13'})
        Dv = G.dma_V(14, 3, f's{G.sVsoff}')
        co = [f'buffer_load_dwordx4 a[{128+4*p}:{131+4*p}], v{vWoD+p}, s[{G.sWo}:{G.sWo+3}], s{G.sT2} offen offset:{(p%4)*1024}' for p in range(9)]
        X = {0: [f's_add_u32 m0, s{G.sDma}, {G.LDS_V}', f's_add_u32 s{G.sT0}, s{G.sT0}, s{G.sW}'], 2: [Dv[0]], 4: [Dv[1], f's_mul_i32 s{G.sT2}, s{G.sT0}, {32*1152}'], 6: [Dv[2]], 8: [Dv[3]],
             10: [f's_add_u32 s{G.sVsoff}, s{G.sVsoff}, 16384'], 61: [f's_xor_b32 s{G.sXor}, s{G.sXor}, 0x8000'], 62: [f's_xor_b32 s{G.sDma}, s{G.sDma}, s{G.sXor}']}
        X = merge(X, spread([[x] for x in co], [12, 14, 16, 18, 20, 22, 24, 44, 46]))
        X = merge(X, {60: reg[:1]})
        emit(k.step(25, 1, 'full', X), set())
        e(reg[1:])
        k.stamp('it12')
        W = wo_dma('t12') + wo_dma('t13')
        Dv = G.dma_V(15, 0, f's{G.sVsoff}')
        X = {2: [f's_and_b32 s{G.sVsoff}, s{G.sVsoff}, 0x3ffff'], 4: [f's_add_u32 m0, s{G.sDma}, {G.LDS_V}'], 8: [Dv[0]], 12: [Dv[1]], 16: [Dv[2]], 20: [Dv[3]]}
        X = merge(X, spread(W[:4], [56, 58, 60, 64]))
        emit(k.step(26, 0, 'full', X), {'V13', 'K14'})
        X = spread(W[4:], [0, 4, 8, 12, 16, 20, 24, 44, 48, 52, 56, 58, 60, 64]); X.setdefault(61, []).append(f's_xor_b32 s{G.sXor}, s{G.sXor}, 0x8000')
        emit(k.step(27, 1, 'full', X), set())
        k.stamp('it13')
    else:
        W = wo_dma('t12')
        Dk = G.dma_K(15, 3, f's{G.sKsoff}')
        X = {2: [rd[0]], 4: [f's_mov_b32 m0, s{G.sDma}'], 6: [rd[1]], 12: [Dk[0], rd[2]], 16: [Dk[1], rd[3]], 24: [Dk[2]], 56: [Dk[3]], 58: [rd[4], rd[5]], 60: [rd[6]], 61: [rd[7], rd[8]],
             62: [f's_and_b32 s{G.sVsoff}, s{G.sVsoff}, 0x3ffff']}
        X = {g: L for g, L in X.items()}
        emit(k.step(24, 0, 'full', X), {'V12', 'K13'})
        Dv = G.dma_V(14, 3, f's{G.sVsoff}')
        X = {0: [f's_add_u32 m0, s{G.sDma}, {G.LDS_V}'], 2: [Dv[0]], 4: [Dv[1]], 6: [Dv[2]], 8: [Dv[3]], 10: [f's_add_u32 s{G.sVsoff}, s{G.sVsoff}, 16384'],
             61: [f's_xor_b32 s{G.sXor}, s{G.sXor}, 0x8000'], 62: [f's_xor_b32 s{G.sDma}, s{G.sDma}, s{G.sXor}']}
        X = merge(X, spread(W, [12, 16, 20, 24, 44, 48, 56, 58, 64]))
        X = merge(X, {60: reg[:1], 64: [], 66: []})
        emit(k.step(25, 1, 'full', X), set())
        e(reg[1:])
        k.stamp('it12')
        W = wo_dma('t13')
        Dv = G.dma_V(15, 0, f's{G.sVsoff}')
        X = {2: [f's_and_b32 s{G.sVsoff}, s{G.sVsoff}, 0x3ffff'], 4: [f's_add_u32 m0, s{G.sDma}, {G.LDS_V}'], 12: [Dv[0]], 16: [Dv[1]], 24: [Dv[2]], 56: [Dv[3]]}
        X = merge(X, spread(W[:2], [60, 64]))
        emit(k.step(26, 0, 'full', X), {'V13', 'K14'})
        X = spread(W[2:], [0, 8, 16, 24, 56, 60, 64]); X.setdefault(61, []).append(f's_xor_b32 s{G.sXor}, s{G.sXor}, 0x8000')
        emit(k.step(27, 1, 'full', X), set())
        k.stamp('it13')
    W = wo_dma('t14')
    emit(k.step(28, 0, 'full', spread(W[:4], [12, 24, 58, 64])), {'V14', 'K15'})
    X = spread(W[4:], [4, 12, 20, 58, 64]); X.setdefault(61, []).append(f's_xor_b32 s{G.sXor}, s{G.sXor}, 0x8000')
    emit(k.step(29, 1, 'full', X), set())
    k.stamp('it14')
    W = wo_dma('t15')
    L30 = k.step(30, 0, 'nok', spread(W[:7], [12, 20, 44, 50, 56, 60, 64]))
    assert k.vm_need({'V15'}) == 9
    emit2([x.replace('VMW', '9') for x in L30])
    k.stamp('s30')
    emit2(k.step(31, 1, 'last', spread(W[7:], [2, 6])))
    k.stamp('p2end')

def poll_dual(k, name, vaddr, soff_reg, nbits, mask=7):
    e = k.e; T = G.vT
    full = (1 << (1 << nbits)) - 1
    e(f's_mov_b32 s{sCnt}, 0\ns_mov_b32 s{G.sT2}, 0\ns_add_u32 s{G.sT3 if False else 88}, s{soff_reg}, {G.FTWIN}', trace=False)
    k.p(f'L_poll_{name}:')
    e(f'''s_and_b32 s{G.sT1}, s{sCnt}, {mask}
s_cmp_eq_u32 s{G.sT1}, {mask}
s_cselect_b32 s89, s{soff_reg}, s88
s_add_u32 s{sCnt}, s{sCnt}, 1
buffer_load_dword v{T+1}, v{vaddr}, s[{G.sWS}:{G.sWS+3}], s89 offen sc1
s_waitcnt vmcnt(0)
v_cmp_eq_u32 vcc, 1, v{T+1}
s_nop 1
s_or_b32 s{G.sT2}, s{G.sT2}, vcc_lo
s_and_b32 s{G.sT1}, s{G.sT2}, {full}
s_cmp_eq_u32 s{G.sT1}, {full}
s_cbranch_scc1 L_pollx_{name}
{'s_sleep ' + str(cfg.poll_sleep) if (cfg.poll_sleep and mask == 0) else 's_nop 0'}
s_cmp_ge_u32 s{sCnt}, 0x8000
s_cbranch_scc0 L_poll_{name}''', trace=False)
    k.p(f'L_pollx_{name}:')
    k.tr.append('s_waitcnt vmcnt(0)')

def poll(k, name, vaddr, soff_reg):
    e = k.e
    e(f's_mov_b32 s{sCnt}, 0', trace=False)
    k.p(f'L_poll_{name}:')
    e(f'''buffer_load_dword v{G.vT+1}, v{vaddr}, s[{G.sWS}:{G.sWS+3}], s{soff_reg} offen sc1
s_add_u32 s{sCnt}, s{sCnt}, 1
s_waitcnt vmcnt(0)
v_cmp_ne_u32 vcc, 1, v{G.vT+1}
s_cmp_ge_u32 s{sCnt}, 0x4000
s_cbranch_scc1 L_pollx_{name}
s_cbranch_vccz L_pollx_{name}
s_sleep 1
s_branch L_poll_{name}''', trace=False)
    k.p(f'L_pollx_{name}:')
    k.tr.append('s_waitcnt vmcnt(0)')

def set_flag(k, off_vreg, dual=False):
    o = ['s_mov_b64 exec, 1']
    if dual: o.append(f'buffer_store_dword v{vOne}, v{off_vreg}, s[{G.sWS}:{G.sWS+3}], s91 offen')
    o += [f'buffer_store_dword v{vOne}, v{off_vreg}, s[{G.sWS}:{G.sWS+3}], s{sFl} offen sc1', 's_mov_b64 exec, -1']
    return o

vOne = 20; vF1 = 21; vF2a = 24; vF2b = 25
vPk = [32, 68]

def phase3(k):
    e = k.e; T = G.vT; L = G.vLane
    e('s_nop 4')
    rp = [T, T + 2, T + 4, 122]
    sBad = 88
    for qt in range(4): e(f'v_rcp_f32 v{rp[qt]}, v{G.LA(qt)}')
    e(f's_mov_b32 s{G.sT0}, 0x6f800000')
    for qt in range(4):
        e(f'v_cmp_nlt_f32 vcc, v{G.LA(qt)}, v{G.LA(qt)}') if False else None
    e(f'v_mov_b32 v{G.vT2+1}, s{G.sT0}')
    e(f's_mov_b64 s[{sBad}:{sBad+1}], 0')
    for qt in range(4):
        e(f'v_cmp_nlt_f32 vcc, v{G.LA(qt)}, v{G.vT2+1}\ns_nop 0\ns_or_b64 s[{sBad}:{sBad+1}], s[{sBad}:{sBad+1}], vcc')
    e(f'v_lshlrev_b32 v{vAd}, 4, v{L}')
    for qt in range(4): e(f'v_mov_b32 v{rp[qt]+1}, v{rp[qt]}')
    for i in range(1, 4): e(f'v_add_u32 v{vAd+i}, {4096*i}, v{vAd}')
    vPr = 108
    prev = None; nprobe = 0
    for ks in range(4):
        for qt in range(4):
            for x in range(2):
                b = G.O(2 * ks + x, qt); r = rp[qt]
                e(f'v_pk_mul_f32 v[{b}:{b+1}], v[{b}:{b+1}], v[{r}:{r+1}]\nv_pk_mul_f32 v[{b+2}:{b+3}], v[{b+2}:{b+3}], v[{r}:{r+1}]')
            if prev is not None:
                e(mfma(vr(vPr, 4), ar(G.aZero, 4), vr(prev, 4), '0' if nprobe == 0 else vr(vPr, 4))); nprobe += 1
            for x in range(2):
                b = G.O(2 * ks + x, qt); d = Own(qt, ks) + 2 * x
                e(f'v_cvt_pk_bf16_f32 v{d}, v{b}, v{b+1}\nv_cvt_pk_bf16_f32 v{d+1}, v{b+2}, v{b+3}')
            if ks == 0 or cfg.early_ost:
                e(f'buffer_store_dwordx4 v[{Own(qt,ks)}:{Own(qt,ks)+3}], v{vAd+qt}, s[{G.sWS}:{G.sWS+3}], s{sOst} offen offset:{ks*1024}{cfg.ost_flag}')
            prev = Own(qt, ks)
    e('s_nop 1')
    e(mfma(vr(vPr, 4), ar(G.aZero, 4), vr(prev, 4), vr(vPr, 4)))
    for p in range(9): e(f'v_mov_b32 v{96+p}, v{vWoD+p}')
    ost = [f'buffer_store_dwordx4 v[{Own(qt,ks)}:{Own(qt,ks)+3}], v{vAd+qt}, s[{G.sWS}:{G.sWS+3}], s{sOst} offen offset:{ks*1024} sc1' for ks in range(1, 4) for qt in range(4)]
    if cfg.early_ost: ost = []
    e(f'''s_lshl_b32 s{G.sT0}, s{G.sW}, 2
s_add_u32 s{G.sT0}, s{G.sT0}, 64512
v_mov_b32 v{T}, s{G.sT0}
v_mov_b32 v{vOne}, 1
s_nop 3
v_cmp_u_f32 vcc, v{vPr}, v{vPr}
s_nop 0
s_or_b64 s[{sBad}:{sBad+1}], s[{sBad}:{sBad+1}], vcc
s_cmp_lg_u64 s[{sBad}:{sBad+1}], 0
s_cselect_b32 s{G.sT0}, 1, 0
v_mov_b32 v{T+1}, s{G.sT0}
ds_write_b32 v{T}, v{T+1}
v_mov_b32 v{T+2}, 64512''')
    n = k.vm_need({'REG', 'WOt14'})
    e(f's_waitcnt vmcnt({n}) lgkmcnt(0)\ns_barrier')
    e(f'ds_read_b128 v[124:127], v{T+2}')
    e(f'v_readfirstlane_b32 s90, v{G.vT2}')
    k.stamp('p3pk')
    e(f'''v_lshrrev_b32 v30, 4, v{L}
v_bfe_u32 v31, v{L}, 2, 2
v_lshl_add_u32 v30, v30, 2, v31
v_mul_u32_u24 v30, 288, v30
v_and_b32 v31, 3, v{L}
v_lshl_add_u32 v{vR}, v31, 3, v30
v_add_u32 v{vR+1}, 61440, v{vR}
v_add_u32 v{vR+2}, 122880, v{vR}
v_mov_b32 v{vOne}, 1
s_lshl_b32 s{G.sT0}, s{G.sW}, 2
v_mov_b32 v{vF1}, s{G.sT0}
s_lshl_b32 s{G.sT0}, s{G.sW}, 3
s_add_u32 s{G.sT0}, s{G.sT0}, 16
v_mov_b32 v{vF2a}, s{G.sT0}
s_add_u32 s{G.sT0}, s{G.sT0}, 4
v_mov_b32 v{vF2b}, s{G.sT0}''')
    e(f'''s_waitcnt lgkmcnt(0)
v_or_b32 v124, v124, v125
v_or3_b32 v124, v124, v126, v127
s_nop 0
v_readfirstlane_b32 s{G.sT0}, v124
s_andn2_b32 s{G.sT0}, s{G.sT0}, s{G.sMode}
s_cmp_lg_u32 s{G.sT0}, 0
s_cbranch_scc1 L_fallback''')
    assert cfg.early_ost
    e(f's_cmp_eq_u32 s{G.sW}, 3\ns_cselect_b64 vcc, -1, 0')
    def a_read(c, nt, slot):
        base = rbase(REG[c]); idx = base // 61440
        return [f'ds_read_b64_tr_b16 a[{aA+4*slot+2*u}:{aA+4*slot+2*u+1}], v{vR+idx} offset:{base-61440*idx+u*4608+nt*32} ; ' + ('@rd WOt14' if c >= 6 else '') for u in range(2)]
    seq = [(c, nt, (0, 1, 2, 3)) for c in range(4) for nt in range(9)]
    seq += [(c, nt, (0, 1)) for c in range(4, 16) for nt in range(9)]
    seq += [(c, nt, (2, 3)) for c in range(4, 16) for nt in range(9)]
    AH_OWN, AH = 6, 8
    for i in range(AH_OWN): e(a_read(seq[i][0], seq[i][1], i % 16))
    k.stamp('p3go')
    def part_load(hp, qt, ks):
        return f'buffer_load_dwordx4 a[{Part(hp,qt,ks)}:{Part(hp,qt,ks)+3}], v{vAd+qt}, s[{G.sWS}:{G.sWS+3}], s{sPh+hp} offen offset:{ks*1024}'
    loads = [[part_load(hp, qt, ks) for ks in range(4) for qt in (2 * half, 2 * half + 1)] for half in range(2) for hp in range(3)]
    def pack_store(half):
        cv = []; st = []
        for x in range(2):
            qt = 2 * half + x
            for blk in range(5):
                d = D(2 * blk, qt)
                cv += [f'v_cvt_pk_bf16_f32 v{d}, v{d}, v{d+1}', f'v_cvt_pk_bf16_f32 v{d+1}, v{d+2}, v{d+3}']
                if blk < 4:
                    b_ = D(2 * blk + 1, qt)
                    cv += [f'v_cvt_pk_bf16_f32 v{d+2}, v{b_}, v{b_+1}', f'v_cvt_pk_bf16_f32 v{d+3}, v{b_+2}, v{b_+3}']
                g = []
                if blk == 0: g.append(f's_add_u32 s{sOst}, s{sPst}, {x*81920 + half*40960}')
                g.append(f'buffer_store_dwordx4 v[{d}:{d+3}], v{vAd + (blk >> 2)}, s[{G.sWS}:{G.sWS+3}], s{sOst} offen offset:{(blk & 3)*1024} sc1')
                st.append(g)
        return cv, st
    R = 32; SUM = 80
    fin_setup = f'''v_lshlrev_b32 v{vAd+4}, 4, v{L}
s_lshl_b32 s{G.sT1}, s{G.sW}, 10
v_add_u32 v{vAd+5}, 4096, v{vAd+4}
v_add_u32 v{vAd+4}, s{G.sT1}, v{vAd+4}
s_cmp_ge_u32 s{G.sW}, 1
s_cselect_b32 s{G.sT1}, 0x40000000, 0
v_add_u32 v{vAd+5}, s{G.sT1}, v{vAd+5}
v_and_b32 v{vAd+6}, 15, v{L}
v_mul_u32_u24 v{vAd+6}, 1152, v{vAd+6}
v_lshrrev_b32 v{vAd+7}, 4, v{L}
v_lshl_add_u32 v{vAd+6}, v{vAd+7}, 3, v{vAd+6}'''
    def fin_addr(part):
        return f'''v_and_b32 v{T}, 7, v{L}
v_lshlrev_b32 v{T}, 2, v{T}
v_add_u32 v{T}, s{G.sNb}, v{T}
v_lshlrev_b32 v{T}, 7, v{T}
s_lshr_b32 s{G.sT0}, s{G.sKg}, 1
s_lshl_b32 s{G.sT0}, s{G.sT0}, 3
s_add_u32 s{G.sT0}, s{G.sT0}, {16 + 4*part}
v_add_u32 v{T}, s{G.sT0}, v{T}
s_lshl_b32 s{G.sT0}, s{G.sB}, 12
s_add_u32 s{G.sT0}, s{G.sT0}, {G.FBASE}'''
    def fin_loads(part):
        R = 32 + (48 if (cfg.late_final and part) else 0)
        o = []
        for src in range(8):
            o.append([f's_add_u32 s{G.sT1}, s{sCB}, {part*40960 + src*5120}',
                      f'buffer_load_dwordx4 v[{R+4*src}:{R+4*src+3}], v{vAd+4}, s[{G.sWS}:{G.sWS+3}], s{G.sT1} offen',
                      f'buffer_load_dwordx2 v[{R+32+2*src}:{R+32+2*src+1}], v{vAd+5}, s[{G.sWS}:{G.sWS+3}], s{G.sT1} offen'])
        return o
    def fin_reduce(part):
        R = 32 + (48 if (cfg.late_final and part) else 0)
        SUM = 128 if cfg.late_final else 80
        e(f's_waitcnt vmcnt({k.vm_need({f"FIN{part}"})})')
        e(f's_mov_b32 s{G.sT1}, 0x00003f80\ns_mov_b32 s{G.sT2}, 0x3f800000')
        for src in range(8):
            for j in range(4):
                for hi_ in range(2):
                    acc = SUM + 2 * j + hi_
                    e(f'v_dot2_f32_bf16 v{acc}, v{R+4*src+j}, s{G.sT1+hi_}, {"0" if src == 0 else f"v{acc}"}')
            for j in range(2):
                for hi_ in range(2):
                    acc = SUM + 8 + 2 * j + hi_
                    e(f'v_dot2_f32_bf16 v{acc}, v{R+32+2*src+j}, s{G.sT1+hi_}, {"0" if src == 0 else f"v{acc}"}')
        e('s_nop 2')
        for j in range(6): e(f'v_cvt_pk_bf16_f32 v{SUM+12+j}, v{SUM+2*j}, v{SUM+2*j+1}')
        e(f'''s_add_u32 s{G.sT0}, s{sOB}, {part*32*1152}
s_cmp_ge_u32 s{G.sW}, 1
s_cselect_b32 s{G.sT1}, 0x7ffff000, s{G.sT0}
s_lshl_b32 s{G.sT2}, s{G.sW}, 6
s_add_u32 s{G.sT0}, s{G.sT0}, s{G.sT2}
buffer_store_dwordx2 v[{SUM+12}:{SUM+13}], v{vAd+6}, s[{G.sOut}:{G.sOut+3}], s{G.sT0} offen{cfg.out_flag}
buffer_store_dwordx2 v[{SUM+14}:{SUM+15}], v{vAd+6}, s[{G.sOut}:{G.sOut+3}], s{G.sT0} offen offset:32{cfg.out_flag}
buffer_store_dwordx2 v[{SUM+16}:{SUM+17}], v{vAd+6}, s[{G.sOut}:{G.sOut+3}], s{G.sT1} offen offset:256{cfg.out_flag}''')
    issued = AH_OWN
    SPL, POL = cfg.own_split
    seg_bounds = [(0, 9 * SPL), (9 * SPL, 9 * POL), (9 * POL, 36), (36, 144), (144, 252)]
    extra = {}
    def place(i0, items, every):
        for n_, it_ in enumerate(items):
            extra.setdefault(i0 + n_ * every, []).append(it_ if isinstance(it_, list) else [it_])
    if ost: place(1, ost, max(1, (9 * SPL - 2) // len(ost)))
    place(36 + 1, loads[2], 1)
    place(36 + 18, loads[3], cfg.l3_every)
    if cfg.tp_late: place(36 + 21, wo_dma('tP', 96), 3)
    place(36 + 70, loads[4], 2)
    place(36 + 88, loads[5], 2)
    for seg, (lo, hi) in enumerate(seg_bounds):
        if seg == 1:
            nn = k.vm_need({'OST'})
            e(f's_waitcnt vmcnt({nn})')
            e(set_flag(k, vF1, dual=cfg.dualflag))
            k.stamp('p3d1')
            if not cfg.tp_late: place(lo + 1, wo_dma('tP', 96), 2)
        if seg == 2:
            e(f's_mov_b32 s{G.sT2}, s90')
            k.p('L_regchk:')
            e(f's_cmp_ge_u32 s{G.sT2}, 32\ns_cbranch_scc1 L_regok')
            e(f'''s_add_u32 s{G.sPass}, s{G.sPass}, 1
s_cmp_ge_u32 s{G.sPass}, 0x4000
s_cbranch_scc1 L_regok
s_lshl_b32 s{G.sT0}, s{G.sB}, 5
v_mov_b32 v{G.vT2}, s{G.sT0}
s_sleep 1
global_load_dword v{G.vT2}, v{G.vT2}, s[16:17] sc1
s_waitcnt vmcnt(0)
v_readfirstlane_b32 s{G.sT2}, v{G.vT2}
s_branch L_regchk''', trace=False)
            k.p('L_regok:')
            e(f'''v_and_b32 v{T}, 3, v{L}
s_lshl_b32 s{G.sT0}, s{G.sKg}, 2
v_add_u32 v{T}, s{G.sT0}, v{T}
v_lshlrev_b32 v{T}, 7, v{T}
v_add_u32 v{T}, v{T}, v{vF1}
s_lshl_b32 s{G.sT0}, s{G.sB}, 12
s_add_u32 s{G.sT0}, s{G.sT0}, {G.FBASE}''')
            if cfg.dualflag:
                poll_dual(k, 'f1', T, G.sT0, 2)
            else: poll(k, 'f1', T, G.sT0)
            k.stamp('p3f1')
            for x in loads[0] + loads[1]: e(x)
            e(f's_cmp_eq_u32 s{G.sW}, 3\ns_cselect_b64 vcc, -1, 0')
        for i in range(lo, hi):
            c, nt, qts = seq[i]
            half = 0 if seg == 3 else 1
            slot = i % 16
            ah = AH_OWN if seg < 3 else AH
            rd = []
            while issued < min(len(seq), i + ah + 1):
                rd += a_read(seq[issued][0], seq[issued][1], issued % 16); issued += 1
            younger = 2 * (issued - len(rd) // 2 - 1 - i)
            pre = [f's_waitcnt lgkmcnt({min(15, younger)})']
            if seg >= 3 and nt == 0:
                pre.append(f's_waitcnt vmcnt({k.vm_need({f"PH{(c>>2)-1}_{half}_{c&3}"})})')
                if seg == 3 and c == 9: pre.append('s_barrier')
                if cfg.tp_late and seg == 3 and c == 12:
                    last = k.nt_marks[-1]
                    younger = sum(1 for x in k.tr[last:] if x.split()[0].startswith('buffer_') or x.split()[0].startswith('global_'))
                    pre += [f's_waitcnt vmcnt({younger})', 's_barrier']
            hook = None
            if seg == 4 and nt == 0 and c == cfg.f2a_c and not cfg.late_final: hook = 'f2a'
            if seg == 4 and nt == 0 and c == cfg.fin0_c and not cfg.late_final: hook = 'fin0'
            mf = []
            for qt in qts:
                Bop = vr(Own(qt, c), 4) if c < 4 else ar(Part((c >> 2) - 1, qt, c & 3), 4)
                Cop = '0' if c == 0 else vr(D(nt, qt), 4)
                mf.append(mfma(vr(D(nt, qt), 4), ar(aA + 4 * slot, 4), Bop, Cop))
            if hook == 'f2a':
                e(f's_waitcnt vmcnt({k.vm_need({"PS0"})})'); e(set_flag(k, vF2a, dual=cfg.dualflag and cfg.f2_mask > 0))
            if hook == 'fin0':
                e(fin_setup)
                e(fin_addr(0))
                poll_dual(k, 'f2a', T, G.sT0, 3, cfg.f2_mask)
                k.stamp('p3f2a')
                place(i, fin_loads(0), 1)
            e(pre)
            e(mf[0]); e(rd)
            e(mf[1])
            for x in extra.pop(i, []): k.emit2(x)
            for m in mf[2:]: e(m)
        k.stamp(f'p3seg{seg}')
        if seg == 3:
            e('s_nop 4')
            cv, st = pack_store(0); e(cv)
            place(144, st, cfg.ps0_every)
        if seg == 4:
            e('s_nop 4')
            cv, st = pack_store(1)
            e(cv[:18]);
            for g in st[:5]: e(g)
            e(cv[18:])
            for g in st[5:]: e(g)
    assert not extra, extra.keys()
    k.stamp('p3mm')
    if cfg.late_final:
        e(fin_setup); e(fin_addr(1))
        e(f's_waitcnt vmcnt({k.vm_need({"PS1"})})'); e(set_flag(k, vF2b, dual=cfg.dualflag and cfg.f2_mask > 0))
        k.stamp('p3st')
        poll_dual(k, 'f2b', T, G.sT0, 3, cfg.f2_mask)
        k.stamp('p3f2')
        for g in fin_loads(0) + fin_loads(1): e(g)
        k.stamp('p3fi')
        fin_reduce(0); fin_reduce(1)
        return
    e(f's_waitcnt vmcnt({k.vm_need({"PS1"})})'); e(set_flag(k, vF2b, dual=cfg.dualflag and cfg.f2_mask > 0))
    k.stamp('p3st')
    fin_reduce(0)
    k.stamp('p3r0')
    e(fin_addr(1))
    poll_dual(k, 'f2b', T, G.sT0, 3, cfg.f2_mask)
    k.stamp('p3f2')
    for g in fin_loads(1): e(g)
    k.stamp('p3fi')
    fin_reduce(1)
```

```python
from asmlib import *
import g2 as G
from g2 import cfg, mfma, kb, Slots

REG = [13, 14, 0, 1, 2, 7, 3, 4, 8, 9, 5, 6, 10, 11, 12, 15]
WSLOT = {'t12': (0, 3), 't13': (3, 3), 't14': (6, 4), 't15': (10, 3), 'tP': (13, 3)}
WNAME = list(WSLOT)
def rbase(j):
    if j < 7: return j * 9216
    if j < 15: return 81920 + (j - 7) * 9216
    return 65536
sWoB = 4
sWoS = 9
sPh = 96
sOst = 99; sPst = 100; sFl = 101; sCnt = 59
sCB = 14; sOB = 15
vWoD = G.vWoD
aWoD = 240
vR = 8
vAd = 12
vOwn = 32
vD = 112
aPart = 0
aA = 192
def D(nt, qt): return vD + (nt * 4 + qt) * 4
def Own(qt, ks): return vOwn + (qt * 4 + ks) * 4
def Part(hp, qt, ks): return aPart + hp * 64 + (qt * 4 + ks) * 4

def wo_setup():
    T = G.vT; L = G.vLane
    out = []
    for p in range(9):
        out += [f'v_add_u32 v{T}, {64*p}, v{L}', f'v_mul_u32_u24 v{T+1}, 3641, v{T}', f'v_lshrrev_b32 v{T+1}, 16, v{T+1}',
                f'v_mul_u32_u24 v{T+2}, 18, v{T+1}', f'v_sub_u32 v{T+2}, v{T}, v{T+2}', f'v_mul_u32_u24 v{T+1}, 1152, v{T+1}',
                f'v_lshl_add_u32 v{T+1}, v{T+2}, 4, v{T+1}']
        if p % 4: out.append(f'v_subrev_u32 v{T+1}, {(p%4)*1024}, v{T+1}')
        out.append(f'v_accvgpr_write_b32 a{aWoD+p}, v{T+1}')
    for i, name in enumerate(WNAME):
        c0, nw = WSLOT[name]
        t = [rbase(REG[c0 + min(w, nw - 1)]) for w in range(4)]
        out += [f's_mov_b32 s{sWoB+i}, {t[0]}']
        for w in range(1, 4): out += [[f's_cmp_eq_u32 s{G.sW}, {w}', f's_cselect_b32 s{sWoB+i}, {t[w]}, s{sWoB+i}']]
        out += [f's_add_u32 s{G.sT1}, s{G.sW}, {c0}', f's_lshr_b32 s{G.sT0}, s{G.sT1}, 2', f's_add_u32 s{G.sT0}, s{G.sT0}, s{G.sNb}', f's_and_b32 s{G.sT0}, s{G.sT0}, 3',
                f's_lshl_b32 s{G.sT0}, s{G.sT0}, 2', f's_and_b32 s{G.sT1}, s{G.sT1}, 3', f's_add_u32 s{G.sT0}, s{G.sT0}, s{G.sT1}', f's_mul_i32 s{sWoS+i}, s{G.sT0}, {32*1152}']
    return out

def p3_scalars():
    t0, t1 = G.sT0, G.sT1
    o = f'''s_lshl_b32 s{sFl}, s{G.sB}, 5
s_add_u32 s{sFl}, s{sFl}, s{G.sH}
s_lshl_b32 s{sOst}, s{sFl}, 2
s_add_u32 s{sOst}, s{sOst}, s{G.sW}
s_lshl_b32 s{sOst}, s{sOst}, 14
s_lshl_b32 s{sFl}, s{sFl}, 7
s_add_u32 s{sFl}, s{sFl}, {G.FBASE}
s_add_u32 s91, s{sFl}, {G.FTWIN}'''.split('\n')
    for hp in range(3):
        o += f'''s_add_u32 s{t0}, s{G.sNb}, {hp+1}
s_and_b32 s{t0}, s{t0}, 3
s_lshl_b32 s{t1}, s{G.sKg}, 2
s_add_u32 s{t0}, s{t0}, s{t1}
s_lshl_b32 s{t1}, s{G.sB}, 5
s_add_u32 s{t0}, s{t0}, s{t1}
s_lshl_b32 s{t0}, s{t0}, 2
s_add_u32 s{t0}, s{t0}, s{G.sW}
s_lshl_b32 s{sPh+hp}, s{t0}, 14'''.split('\n')
    o += f'''s_lshl_b32 s{t0}, s{G.sB}, 2
s_add_u32 s{t0}, s{t0}, s{G.sNb}
s_lshl_b32 s{t0}, s{t0}, 3
s_lshl_b32 s{t1}, s{G.sW}, 1
s_add_u32 s{t1}, s{t0}, s{t1}
s_lshl_b32 s{t1}, s{t1}, 4
s_add_u32 s{t1}, s{t1}, s{G.sKg}
s_mul_i32 s{sPst}, s{t1}, 5120
s_add_u32 s{sPst}, s{sPst}, {G.PBASE}
s_add_u32 s{t0}, s{t0}, s{G.sKg}
s_mul_i32 s{sCB}, s{t0}, {16*5120}
s_add_u32 s{sCB}, s{sCB}, {G.PBASE}
s_lshr_b32 s{t0}, s{G.sKg}, 1
s_lshl_b32 s{t0}, s{t0}, 2
s_and_b32 s{t1}, s{G.sKg}, 1
s_add_u32 s{t0}, s{t0}, s{t1}
s_lshl_b32 s{t1}, s{G.sB}, 4
s_add_u32 s{t0}, s{t0}, s{t1}
s_mul_i32 s{sOB}, s{t0}, {16*1152}
s_mul_i32 s{t1}, s{G.sNb}, 288
s_add_u32 s{sOB}, s{sOB}, s{t1}'''.split('\n')
    return o

_skip = [0]
def wo_dma(name, vbase=None):
    i = WNAME.index(name); c0, nw = WSLOT[name]
    L = []
    for p in range(9):
        g = []
        if p % 4 == 0: g += [f's_add_u32 m0, s{sWoB+i}, {p*1024}']
        ins = f'buffer_load_dwordx4 v{(vbase or vWoD)+p}, s[{G.sWo}:{G.sWo+3}], s{sWoS+i} offen offset:{(p%4)*1024}{cfg.wo_flag} lds'
        if nw == 4:
            a = lambda w, p=p: rbase(REG[c0 + w]) + p * 1024
            if p % 4 == 0: g.append('s_nop 0')
            g.append(f'{ins} ; @dma WO{name} {kb(a)}')
        else:
            _skip[0] += 1
            g += [f's_cbranch_vccnz L_wsk{_skip[0]}', f'{ins} ;@notrace', f'L_wsk{_skip[0]}:']
        L.append(g)
    return L

def spread(groups, gaps):
    X = {}
    for g, pos in zip(groups, gaps): X.setdefault(pos, []).extend(g)
    return X
def merge(a, b):
    for g, L in b.items(): a.setdefault(g, []).extend(L)
    return a

def peeled_tail(k):
    e = k.e
    cnt = [0]
    def emit(step_lines, tags):
        n = k.vm_need(tags); ni = k.vm_need(tags, incl=True)
        out = []
        for x in step_lines:
            if 'VMW' in x and ni != n:
                cnt[0] += 1
                out += [f's_cbranch_vccnz L_vwa{cnt[0]} ;@skip', x.replace('VMW', str(ni)) + ' ;@skip', f's_branch L_vwb{cnt[0]} ;@skip', f'L_vwa{cnt[0]}:', x.replace('VMW', str(n)), f'L_vwb{cnt[0]}:']
            else: out.append(x.replace('VMW', str(n)))
        emit2(out)
    def emit2(lines):
        for x in lines:
            if '@notrace' in x:
                e(x.replace(' ;@notrace', ''), trace=False); k.nt_marks.append(len(k.tr))
            elif '@skip' in x: e(x.replace(' ;@skip', ''), trace=False)
            elif x.endswith(':') or x.startswith('s_cbranch_vccnz L_wsk'): e(x, trace=False)
            else: e(x)
    k.emit2 = emit2
    reg = [f's_lshl_b32 s{G.sT0}, s{G.sB}, 5', f'v_mov_b32 v{G.vT2}, s{G.sT0}', f'global_load_dword v{G.vT2}, v{G.vT2}, s[16:17] sc1']
    D_ = cfg.D
    assert D_ == 2
    rd = [f'v_accvgpr_read_b32 v{vWoD+p}, a{aWoD+p}' for p in range(9)]
    e(f's_cmp_eq_u32 s{G.sW}, 3\ns_cselect_b64 vcc, -1, 0')
    if cfg.wo_coop:
        Dk = G.dma_K(15, 3, f's{G.sKsoff}')
        X = {2: [rd[0]], 4: [f's_mov_b32 m0, s{G.sDma}'], 6: [rd[1]], 12: [Dk[0], rd[2]], 16: [Dk[1], rd[3]], 24: [Dk[2]], 56: [Dk[3]], 58: [rd[4], rd[5]], 60: [rd[6]], 61: [rd[7], rd[8]],
             62: [f's_and_b32 s{G.sVsoff}, s{G.sVsoff}, 0x3ffff'],
             64: [f's_and_b32 s{G.sT0}, s{G.sJ}, 3', f's_lshl_b32 s{G.sT0}, s{G.sT0}, 2']}
        emit(k.step(24, 0, 'full', X), {'V12', 'K13'})
        Dv = G.dma_V(14, 3, f's{G.sVsoff}')
        co = [f'buffer_load_dwordx4 a[{128+4*p}:{131+4*p}], v{vWoD+p}, s[{G.sWo}:{G.sWo+3}], s{G.sT2} offen offset:{(p%4)*1024}' for p in range(9)]
        X = {0: [f's_add_u32 m0, s{G.sDma}, {G.LDS_V}', f's_add_u32 s{G.sT0}, s{G.sT0}, s{G.sW}'], 2: [Dv[0]], 4: [Dv[1], f's_mul_i32 s{G.sT2}, s{G.sT0}, {32*1152}'], 6: [Dv[2]], 8: [Dv[3]],
             10: [f's_add_u32 s{G.sVsoff}, s{G.sVsoff}, 16384'], 61: [f's_xor_b32 s{G.sXor}, s{G.sXor}, 0x8000'], 62: [f's_xor_b32 s{G.sDma}, s{G.sDma}, s{G.sXor}']}
        X = merge(X, spread([[x] for x in co], [12, 14, 16, 18, 20, 22, 24, 44, 46]))
        X = merge(X, {60: reg[:1]})
        emit(k.step(25, 1, 'full', X), set())
        e(reg[1:])
        k.stamp('it12')
        W = wo_dma('t12') + wo_dma('t13')
        Dv = G.dma_V(15, 0, f's{G.sVsoff}')
        X = {2: [f's_and_b32 s{G.sVsoff}, s{G.sVsoff}, 0x3ffff'], 4: [f's_add_u32 m0, s{G.sDma}, {G.LDS_V}'], 8: [Dv[0]], 12: [Dv[1]], 16: [Dv[2]], 20: [Dv[3]]}
        X = merge(X, spread(W[:4], [56, 58, 60, 64]))
        emit(k.step(26, 0, 'full', X), {'V13', 'K14'})
        X = spread(W[4:], [0, 4, 8, 12, 16, 20, 24, 44, 48, 52, 56, 58, 60, 64]); X.setdefault(61, []).append(f's_xor_b32 s{G.sXor}, s{G.sXor}, 0x8000')
        emit(k.step(27, 1, 'full', X), set())
        k.stamp('it13')
    else:
        W = wo_dma('t12')
        Dk = G.dma_K(15, 3, f's{G.sKsoff}')
        X = {2: [rd[0]], 4: [f's_mov_b32 m0, s{G.sDma}'], 6: [rd[1]], 12: [Dk[0], rd[2]], 16: [Dk[1], rd[3]], 24: [Dk[2]], 56: [Dk[3]], 58: [rd[4], rd[5]], 60: [rd[6]], 61: [rd[7], rd[8]],
             62: [f's_and_b32 s{G.sVsoff}, s{G.sVsoff}, 0x3ffff']}
        X = {g: L for g, L in X.items()}
        emit(k.step(24, 0, 'full', X), {'V12', 'K13'})
        Dv = G.dma_V(14, 3, f's{G.sVsoff}')
        X = {0: [f's_add_u32 m0, s{G.sDma}, {G.LDS_V}'], 2: [Dv[0]], 4: [Dv[1]], 6: [Dv[2]], 8: [Dv[3]], 10: [f's_add_u32 s{G.sVsoff}, s{G.sVsoff}, 16384'],
             61: [f's_xor_b32 s{G.sXor}, s{G.sXor}, 0x8000'], 62: [f's_xor_b32 s{G.sDma}, s{G.sDma}, s{G.sXor}']}
        X = merge(X, spread(W, [12, 16, 20, 24, 44, 48, 56, 58, 64]))
        X = merge(X, {60: reg[:1], 64: [], 66: []})
        emit(k.step(25, 1, 'full', X), set())
        e(reg[1:])
        k.stamp('it12')
        W = wo_dma('t13')
        Dv = G.dma_V(15, 0, f's{G.sVsoff}')
        X = {2: [f's_and_b32 s{G.sVsoff}, s{G.sVsoff}, 0x3ffff'], 4: [f's_add_u32 m0, s{G.sDma}, {G.LDS_V}'], 12: [Dv[0]], 16: [Dv[1]], 24: [Dv[2]], 56: [Dv[3]]}
        X = merge(X, spread(W[:2], [60, 64]))
        emit(k.step(26, 0, 'full', X), {'V13', 'K14'})
        X = spread(W[2:], [0, 8, 16, 24, 56, 60, 64]); X.setdefault(61, []).append(f's_xor_b32 s{G.sXor}, s{G.sXor}, 0x8000')
        emit(k.step(27, 1, 'full', X), set())
        k.stamp('it13')
    W = wo_dma('t14')
    emit(k.step(28, 0, 'full', spread(W[:4], [12, 24, 58, 64])), {'V14', 'K15'})
    X = spread(W[4:], [4, 12, 20, 58, 64]); X.setdefault(61, []).append(f's_xor_b32 s{G.sXor}, s{G.sXor}, 0x8000')
    emit(k.step(29, 1, 'full', X), set())
    k.stamp('it14')
    W = wo_dma('t15')
    L30 = k.step(30, 0, 'nok', spread(W[:7], [12, 20, 44, 50, 56, 60, 64]))
    assert k.vm_need({'V15'}) == 9
    emit2([x.replace('VMW', '9') for x in L30])
    k.stamp('s30')
    emit2(k.step(31, 1, 'last', spread(W[7:], [2, 6])))
    k.stamp('p2end')

def poll_dual(k, name, vaddr, soff_reg, nbits, mask=7):
    e = k.e; T = G.vT
    full = (1 << (1 << nbits)) - 1
    e(f's_mov_b32 s{sCnt}, 0\ns_mov_b32 s{G.sT2}, 0\ns_add_u32 s{G.sT3 if False else 88}, s{soff_reg}, {G.FTWIN}', trace=False)
    k.p(f'L_poll_{name}:')
    e(f'''s_and_b32 s{G.sT1}, s{sCnt}, {mask}
s_cmp_eq_u32 s{G.sT1}, {mask}
s_cselect_b32 s89, s{soff_reg}, s88
s_add_u32 s{sCnt}, s{sCnt}, 1
buffer_load_dword v{T+1}, v{vaddr}, s[{G.sWS}:{G.sWS+3}], s89 offen sc1
s_waitcnt vmcnt(0)
v_cmp_eq_u32 vcc, 1, v{T+1}
s_nop 1
s_or_b32 s{G.sT2}, s{G.sT2}, vcc_lo
s_and_b32 s{G.sT1}, s{G.sT2}, {full}
s_cmp_eq_u32 s{G.sT1}, {full}
s_cbranch_scc1 L_pollx_{name}
{'s_sleep ' + str(cfg.poll_sleep) if (cfg.poll_sleep and mask == 0) else 's_nop 0'}
s_cmp_ge_u32 s{sCnt}, 0x8000
s_cbranch_scc0 L_poll_{name}''', trace=False)
    k.p(f'L_pollx_{name}:')
    k.tr.append('s_waitcnt vmcnt(0)')

def poll(k, name, vaddr, soff_reg):
    e = k.e
    e(f's_mov_b32 s{sCnt}, 0', trace=False)
    k.p(f'L_poll_{name}:')
    e(f'''buffer_load_dword v{G.vT+1}, v{vaddr}, s[{G.sWS}:{G.sWS+3}], s{soff_reg} offen sc1
s_add_u32 s{sCnt}, s{sCnt}, 1
s_waitcnt vmcnt(0)
v_cmp_ne_u32 vcc, 1, v{G.vT+1}
s_cmp_ge_u32 s{sCnt}, 0x4000
s_cbranch_scc1 L_pollx_{name}
s_cbranch_vccz L_pollx_{name}
s_sleep 1
s_branch L_poll_{name}''', trace=False)
    k.p(f'L_pollx_{name}:')
    k.tr.append('s_waitcnt vmcnt(0)')

def set_flag(k, off_vreg, dual=False):
    o = ['s_mov_b64 exec, 1']
    if dual: o.append(f'buffer_store_dword v{vOne}, v{off_vreg}, s[{G.sWS}:{G.sWS+3}], s91 offen')
    o += [f'buffer_store_dword v{vOne}, v{off_vreg}, s[{G.sWS}:{G.sWS+3}], s{sFl} offen sc1', 's_mov_b64 exec, -1']
    return o

vOne = 20; vF1 = 21; vF2a = 24; vF2b = 25
vPk = [32, 68]

def phase3(k):
    e = k.e; T = G.vT; L = G.vLane
    e('s_nop 4')
    rp = [T, T + 2, T + 4, 122]
    sBad = 88
    for qt in range(4): e(f'v_rcp_f32 v{rp[qt]}, v{G.LA(qt)}')
    e(f's_mov_b32 s{G.sT0}, 0x6f800000')
    for qt in range(4):
        e(f'v_cmp_nlt_f32 vcc, v{G.LA(qt)}, v{G.LA(qt)}') if False else None
    e(f'v_mov_b32 v{G.vT2+1}, s{G.sT0}')
    e(f's_mov_b64 s[{sBad}:{sBad+1}], 0')
    for qt in range(4):
        e(f'v_cmp_nlt_f32 vcc, v{G.LA(qt)}, v{G.vT2+1}\ns_nop 0\ns_or_b64 s[{sBad}:{sBad+1}], s[{sBad}:{sBad+1}], vcc')
    e(f'v_lshlrev_b32 v{vAd}, 4, v{L}')
    for qt in range(4): e(f'v_mov_b32 v{rp[qt]+1}, v{rp[qt]}')
    for i in range(1, 4): e(f'v_add_u32 v{vAd+i}, {4096*i}, v{vAd}')
    vPr = 108
    prev = None; nprobe = 0
    for ks in range(4):
        for qt in range(4):
            for x in range(2):
                b = G.O(2 * ks + x, qt); r = rp[qt]
                e(f'v_pk_mul_f32 v[{b}:{b+1}], v[{b}:{b+1}], v[{r}:{r+1}]\nv_pk_mul_f32 v[{b+2}:{b+3}], v[{b+2}:{b+3}], v[{r}:{r+1}]')
            if prev is not None:
                e(mfma(vr(vPr, 4), ar(G.aZero, 4), vr(prev, 4), '0' if nprobe == 0 else vr(vPr, 4))); nprobe += 1
            for x in range(2):
                b = G.O(2 * ks + x, qt); d = Own(qt, ks) + 2 * x
                e(f'v_cvt_pk_bf16_f32 v{d}, v{b}, v{b+1}\nv_cvt_pk_bf16_f32 v{d+1}, v{b+2}, v{b+3}')
            if ks == 0 or cfg.early_ost:
                e(f'buffer_store_dwordx4 v[{Own(qt,ks)}:{Own(qt,ks)+3}], v{vAd+qt}, s[{G.sWS}:{G.sWS+3}], s{sOst} offen offset:{ks*1024}{cfg.ost_flag}')
            prev = Own(qt, ks)
    e('s_nop 1')
    e(mfma(vr(vPr, 4), ar(G.aZero, 4), vr(prev, 4), vr(vPr, 4)))
    for p in range(9): e(f'v_mov_b32 v{96+p}, v{vWoD+p}')
    ost = [f'buffer_store_dwordx4 v[{Own(qt,ks)}:{Own(qt,ks)+3}], v{vAd+qt}, s[{G.sWS}:{G.sWS+3}], s{sOst} offen offset:{ks*1024} sc1' for ks in range(1, 4) for qt in range(4)]
    if cfg.early_ost: ost = []
    e(f'''s_lshl_b32 s{G.sT0}, s{G.sW}, 2
s_add_u32 s{G.sT0}, s{G.sT0}, 64512
v_mov_b32 v{T}, s{G.sT0}
v_mov_b32 v{vOne}, 1
s_nop 3
v_cmp_u_f32 vcc, v{vPr}, v{vPr}
s_nop 0
s_or_b64 s[{sBad}:{sBad+1}], s[{sBad}:{sBad+1}], vcc
s_cmp_lg_u64 s[{sBad}:{sBad+1}], 0
s_cselect_b32 s{G.sT0}, 1, 0
v_mov_b32 v{T+1}, s{G.sT0}
ds_write_b32 v{T}, v{T+1}
v_mov_b32 v{T+2}, 64512''')
    n = k.vm_need({'REG', 'WOt14'})
    e(f's_waitcnt vmcnt({n}) lgkmcnt(0)\ns_barrier')
    e(f'ds_read_b128 v[124:127], v{T+2}')
    e(f'v_readfirstlane_b32 s90, v{G.vT2}')
    k.stamp('p3pk')
    e(f'''v_lshrrev_b32 v30, 4, v{L}
v_bfe_u32 v31, v{L}, 2, 2
v_lshl_add_u32 v30, v30, 2, v31
v_mul_u32_u24 v30, 288, v30
v_and_b32 v31, 3, v{L}
v_lshl_add_u32 v{vR}, v31, 3, v30
v_add_u32 v{vR+1}, 61440, v{vR}
v_add_u32 v{vR+2}, 122880, v{vR}
v_mov_b32 v{vOne}, 1
s_lshl_b32 s{G.sT0}, s{G.sW}, 2
v_mov_b32 v{vF1}, s{G.sT0}
s_lshl_b32 s{G.sT0}, s{G.sW}, 3
s_add_u32 s{G.sT0}, s{G.sT0}, 16
v_mov_b32 v{vF2a}, s{G.sT0}
s_add_u32 s{G.sT0}, s{G.sT0}, 4
v_mov_b32 v{vF2b}, s{G.sT0}''')
    e(f'''s_waitcnt lgkmcnt(0)
v_or_b32 v124, v124, v125
v_or3_b32 v124, v124, v126, v127
s_nop 0
v_readfirstlane_b32 s{G.sT0}, v124
s_andn2_b32 s{G.sT0}, s{G.sT0}, s{G.sMode}
s_cmp_lg_u32 s{G.sT0}, 0
s_cbranch_scc1 L_fallback''')
    assert cfg.early_ost
    e(f's_cmp_eq_u32 s{G.sW}, 3\ns_cselect_b64 vcc, -1, 0')
    def a_read(c, nt, slot):
        base = rbase(REG[c]); idx = base // 61440
        return [f'ds_read_b64_tr_b16 a[{aA+4*slot+2*u}:{aA+4*slot+2*u+1}], v{vR+idx} offset:{base-61440*idx+u*4608+nt*32} ; ' + ('@rd WOt14' if c >= 6 else '') for u in range(2)]
    seq = [(c, nt, (0, 1, 2, 3)) for c in range(4) for nt in range(9)]
    seq += [(c, nt, (0, 1)) for c in range(4, 16) for nt in range(9)]
    seq += [(c, nt, (2, 3)) for c in range(4, 16) for nt in range(9)]
    AH_OWN, AH = 6, 8
    for i in range(AH_OWN): e(a_read(seq[i][0], seq[i][1], i % 16))
    k.stamp('p3go')
    def part_load(hp, qt, ks):
        return f'buffer_load_dwordx4 a[{Part(hp,qt,ks)}:{Part(hp,qt,ks)+3}], v{vAd+qt}, s[{G.sWS}:{G.sWS+3}], s{sPh+hp} offen offset:{ks*1024}'
    loads = [[part_load(hp, qt, ks) for ks in range(4) for qt in (2 * half, 2 * half + 1)] for half in range(2) for hp in range(3)]
    def pack_store(half):
        cv = []; st = []
        for x in range(2):
            qt = 2 * half + x
            for blk in range(5):
                d = D(2 * blk, qt)
                cv += [f'v_cvt_pk_bf16_f32 v{d}, v{d}, v{d+1}', f'v_cvt_pk_bf16_f32 v{d+1}, v{d+2}, v{d+3}']
                if blk < 4:
                    b_ = D(2 * blk + 1, qt)
                    cv += [f'v_cvt_pk_bf16_f32 v{d+2}, v{b_}, v{b_+1}', f'v_cvt_pk_bf16_f32 v{d+3}, v{b_+2}, v{b_+3}']
                g = []
                if blk == 0: g.append(f's_add_u32 s{sOst}, s{sPst}, {x*81920 + half*40960}')
                g.append(f'buffer_store_dwordx4 v[{d}:{d+3}], v{vAd + (blk >> 2)}, s[{G.sWS}:{G.sWS+3}], s{sOst} offen offset:{(blk & 3)*1024} sc1')
                st.append(g)
        return cv, st
    R = 32; SUM = 80
    fin_setup = f'''v_lshlrev_b32 v{vAd+4}, 4, v{L}
s_lshl_b32 s{G.sT1}, s{G.sW}, 10
v_add_u32 v{vAd+5}, 4096, v{vAd+4}
v_add_u32 v{vAd+4}, s{G.sT1}, v{vAd+4}
s_cmp_ge_u32 s{G.sW}, 1
s_cselect_b32 s{G.sT1}, 0x40000000, 0
v_add_u32 v{vAd+5}, s{G.sT1}, v{vAd+5}
v_and_b32 v{vAd+6}, 15, v{L}
v_mul_u32_u24 v{vAd+6}, 1152, v{vAd+6}
v_lshrrev_b32 v{vAd+7}, 4, v{L}
v_lshl_add_u32 v{vAd+6}, v{vAd+7}, 3, v{vAd+6}'''
    def fin_addr(part):
        return f'''v_and_b32 v{T}, 7, v{L}
v_lshlrev_b32 v{T}, 2, v{T}
v_add_u32 v{T}, s{G.sNb}, v{T}
v_lshlrev_b32 v{T}, 7, v{T}
s_lshr_b32 s{G.sT0}, s{G.sKg}, 1
s_lshl_b32 s{G.sT0}, s{G.sT0}, 3
s_add_u32 s{G.sT0}, s{G.sT0}, {16 + 4*part}
v_add_u32 v{T}, s{G.sT0}, v{T}
s_lshl_b32 s{G.sT0}, s{G.sB}, 12
s_add_u32 s{G.sT0}, s{G.sT0}, {G.FBASE}'''
    def fin_loads(part):
        R = 32 + (48 if (cfg.late_final and part) else 0)
        o = []
        for src in range(8):
            o.append([f's_add_u32 s{G.sT1}, s{sCB}, {part*40960 + src*5120}',
                      f'buffer_load_dwordx4 v[{R+4*src}:{R+4*src+3}], v{vAd+4}, s[{G.sWS}:{G.sWS+3}], s{G.sT1} offen',
                      f'buffer_load_dwordx2 v[{R+32+2*src}:{R+32+2*src+1}], v{vAd+5}, s[{G.sWS}:{G.sWS+3}], s{G.sT1} offen'])
        return o
    def fin_reduce(part):
        R = 32 + (48 if (cfg.late_final and part) else 0)
        SUM = 128 if cfg.late_final else 80
        e(f's_waitcnt vmcnt({k.vm_need({f"FIN{part}"})})')
        e(f's_mov_b32 s{G.sT1}, 0x00003f80\ns_mov_b32 s{G.sT2}, 0x3f800000')
        for src in range(8):
            for j in range(4):
                for hi_ in range(2):
                    acc = SUM + 2 * j + hi_
                    e(f'v_dot2_f32_bf16 v{acc}, v{R+4*src+j}, s{G.sT1+hi_}, {"0" if src == 0 else f"v{acc}"}')
            for j in range(2):
                for hi_ in range(2):
                    acc = SUM + 8 + 2 * j + hi_
                    e(f'v_dot2_f32_bf16 v{acc}, v{R+32+2*src+j}, s{G.sT1+hi_}, {"0" if src == 0 else f"v{acc}"}')
        e('s_nop 2')
        for j in range(6): e(f'v_cvt_pk_bf16_f32 v{SUM+12+j}, v{SUM+2*j}, v{SUM+2*j+1}')
        e(f'''s_add_u32 s{G.sT0}, s{sOB}, {part*32*1152}
s_cmp_ge_u32 s{G.sW}, 1
s_cselect_b32 s{G.sT1}, 0x7ffff000, s{G.sT0}
s_lshl_b32 s{G.sT2}, s{G.sW}, 6
s_add_u32 s{G.sT0}, s{G.sT0}, s{G.sT2}
buffer_store_dwordx2 v[{SUM+12}:{SUM+13}], v{vAd+6}, s[{G.sOut}:{G.sOut+3}], s{G.sT0} offen{cfg.out_flag}
buffer_store_dwordx2 v[{SUM+14}:{SUM+15}], v{vAd+6}, s[{G.sOut}:{G.sOut+3}], s{G.sT0} offen offset:32{cfg.out_flag}
buffer_store_dwordx2 v[{SUM+16}:{SUM+17}], v{vAd+6}, s[{G.sOut}:{G.sOut+3}], s{G.sT1} offen offset:256{cfg.out_flag}''')
    issued = AH_OWN
    SPL, POL = cfg.own_split
    seg_bounds = [(0, 9 * SPL), (9 * SPL, 9 * POL), (9 * POL, 36), (36, 144), (144, 252)]
    extra = {}
    def place(i0, items, every):
        for n_, it_ in enumerate(items):
            extra.setdefault(i0 + n_ * every, []).append(it_ if isinstance(it_, list) else [it_])
    if ost: place(1, ost, max(1, (9 * SPL - 2) // len(ost)))
    place(36 + 1, loads[2], 1)
    place(36 + 18, loads[3], cfg.l3_every)
    if cfg.tp_late: place(36 + 21, wo_dma('tP', 96), 3)
    place(36 + 70, loads[4], 2)
    place(36 + 88, loads[5], 2)
    for seg, (lo, hi) in enumerate(seg_bounds):
        if seg == 1:
            nn = k.vm_need({'OST'})
            e(f's_waitcnt vmcnt({nn})')
            e(set_flag(k, vF1, dual=cfg.dualflag))
            k.stamp('p3d1')
            if not cfg.tp_late: place(lo + 1, wo_dma('tP', 96), 2)
        if seg == 2:
            e(f's_mov_b32 s{G.sT2}, s90')
            k.p('L_regchk:')
            e(f's_cmp_ge_u32 s{G.sT2}, 32\ns_cbranch_scc1 L_regok')
            e(f'''s_add_u32 s{G.sPass}, s{G.sPass}, 1
s_cmp_ge_u32 s{G.sPass}, 0x4000
s_cbranch_scc1 L_regok
s_lshl_b32 s{G.sT0}, s{G.sB}, 5
v_mov_b32 v{G.vT2}, s{G.sT0}
s_sleep 1
global_load_dword v{G.vT2}, v{G.vT2}, s[16:17] sc1
s_waitcnt vmcnt(0)
v_readfirstlane_b32 s{G.sT2}, v{G.vT2}
s_branch L_regchk''', trace=False)
            k.p('L_regok:')
            e(f'''v_and_b32 v{T}, 3, v{L}
s_lshl_b32 s{G.sT0}, s{G.sKg}, 2
v_add_u32 v{T}, s{G.sT0}, v{T}
v_lshlrev_b32 v{T}, 7, v{T}
v_add_u32 v{T}, v{T}, v{vF1}
s_lshl_b32 s{G.sT0}, s{G.sB}, 12
s_add_u32 s{G.sT0}, s{G.sT0}, {G.FBASE}''')
            if cfg.dualflag:
                poll_dual(k, 'f1', T, G.sT0, 2)
            else: poll(k, 'f1', T, G.sT0)
            k.stamp('p3f1')
            for x in loads[0] + loads[1]: e(x)
            e(f's_cmp_eq_u32 s{G.sW}, 3\ns_cselect_b64 vcc, -1, 0')
        for i in range(lo, hi):
            c, nt, qts = seq[i]
            half = 0 if seg == 3 else 1
            slot = i % 16
            ah = AH_OWN if seg < 3 else AH
            rd = []
            while issued < min(len(seq), i + ah + 1):
                rd += a_read(seq[issued][0], seq[issued][1], issued % 16); issued += 1
            younger = 2 * (issued - len(rd) // 2 - 1 - i)
            pre = [f's_waitcnt lgkmcnt({min(15, younger)})']
            if seg >= 3 and nt == 0:
                pre.append(f's_waitcnt vmcnt({k.vm_need({f"PH{(c>>2)-1}_{half}_{c&3}"})})')
                if seg == 3 and c == 9: pre.append('s_barrier')
                if cfg.tp_late and seg == 3 and c == 12:
                    last = k.nt_marks[-1]
                    younger = sum(1 for x in k.tr[last:] if x.split()[0].startswith('buffer_') or x.split()[0].startswith('global_'))
                    pre += [f's_waitcnt vmcnt({younger})', 's_barrier']
            hook = None
            if seg == 4 and nt == 0 and c == cfg.f2a_c and not cfg.late_final and not cfg.tail2: hook = 'f2a'
            if seg == 4 and nt == 0 and c == cfg.fin0_c and not cfg.late_final and not cfg.tail2: hook = 'fin0'
            mf = []
            for qt in qts:
                Bop = vr(Own(qt, c), 4) if c < 4 else ar(Part((c >> 2) - 1, qt, c & 3), 4)
                Cop = '0' if c == 0 else vr(D(nt, qt), 4)
                mf.append(mfma(vr(D(nt, qt), 4), ar(aA + 4 * slot, 4), Bop, Cop))
            if hook == 'f2a':
                e(f's_waitcnt vmcnt({k.vm_need({"PS0"})})'); e(set_flag(k, vF2a, dual=cfg.dualflag and cfg.f2_mask > 0))
            if hook == 'fin0':
                e(fin_setup)
                e(fin_addr(0))
                poll_dual(k, 'f2a', T, G.sT0, 3, cfg.f2_mask)
                k.stamp('p3f2a')
                place(i, fin_loads(0), 1)
            e(pre)
            e(mf[0]); e(rd)
            e(mf[1])
            for x in extra.pop(i, []): k.emit2(x)
            for m in mf[2:]: e(m)
        k.stamp(f'p3seg{seg}')
        if seg == 3:
            e('s_nop 4')
            cv, st = pack_store(0); e(cv)
            place(144, st, cfg.ps0_every)
        if seg == 4:
            e('s_nop 4')
            if cfg.tail2:
                e(f's_waitcnt vmcnt({k.vm_need({"PS0"})})'); e(set_flag(k, vF2a, dual=cfg.dualflag and cfg.f2_mask > 0))
            cv, st = pack_store(1)
            e(cv[:18]);
            for g in st[:5]: e(g)
            e(cv[18:])
            for g in st[5:]: e(g)
    assert not extra, extra.keys()
    k.stamp('p3mm')
    if cfg.late_final:
        e(fin_setup); e(fin_addr(1))
        e(f's_waitcnt vmcnt({k.vm_need({"PS1"})})'); e(set_flag(k, vF2b, dual=cfg.dualflag and cfg.f2_mask > 0))
        k.stamp('p3st')
        poll_dual(k, 'f2b', T, G.sT0, 3, cfg.f2_mask)
        k.stamp('p3f2')
        for g in fin_loads(0) + fin_loads(1): e(g)
        k.stamp('p3fi')
        fin_reduce(0); fin_reduce(1)
        return
    if cfg.tail2: e(fin_setup); e(fin_addr(0))
    e(f's_waitcnt vmcnt({k.vm_need({"PS1"})})'); e(set_flag(k, vF2b, dual=cfg.dualflag and cfg.f2_mask > 0))
    k.stamp('p3st')
    if cfg.tail2:
        poll_dual(k, 'f2a', T, G.sT0, 3, cfg.f2_mask)
        for g in fin_loads(0): e(g)
    fin_reduce(0)
    k.stamp('p3r0')
    e(fin_addr(1))
    poll_dual(k, 'f2b', T, G.sT0, 3, cfg.f2_mask)
    k.stamp('p3f2')
    for g in fin_loads(1): e(g)
    k.stamp('p3fi')
    fin_reduce(1)
```

```python
from asmlib import *
import g2 as G
from g2 import cfg, mfma, kb, Slots

REG = [13, 14, 0, 1, 2, 7, 3, 4, 8, 9, 5, 6, 10, 11, 12, 15]
WSLOT = {'t12': (0, 3), 't13': (3, 3), 't14': (6, 4), 't15': (10, 3), 'tP': (13, 3)}
WNAME = list(WSLOT)
def rbase(j):
    if j < 7: return j * 9216
    if j < 15: return 81920 + (j - 7) * 9216
    return 65536
sWoB = 4
sWoS = 9
sPh = 96
sOst = 99; sPst = 100; sFl = 101; sCnt = 59
sCB = 14; sOB = 15
vWoD = G.vWoD
aWoD = 240
vR = 8
vAd = 12
vOwn = 32
vD = 112
aPart = 0
aA = 192
def D(nt, qt): return vD + (nt * 4 + qt) * 4
def Own(qt, ks): return vOwn + (qt * 4 + ks) * 4
def Part(hp, qt, ks): return aPart + hp * 64 + (qt * 4 + ks) * 4

def wo_setup():
    T = G.vT; L = G.vLane
    out = []
    for p in range(9):
        out += [f'v_add_u32 v{T}, {64*p}, v{L}', f'v_mul_u32_u24 v{T+1}, 3641, v{T}', f'v_lshrrev_b32 v{T+1}, 16, v{T+1}',
                f'v_mul_u32_u24 v{T+2}, 18, v{T+1}', f'v_sub_u32 v{T+2}, v{T}, v{T+2}', f'v_mul_u32_u24 v{T+1}, 1152, v{T+1}',
                f'v_lshl_add_u32 v{T+1}, v{T+2}, 4, v{T+1}']
        if p % 4: out.append(f'v_subrev_u32 v{T+1}, {(p%4)*1024}, v{T+1}')
        out.append(f'v_accvgpr_write_b32 a{aWoD+p}, v{T+1}')
    for i, name in enumerate(WNAME):
        c0, nw = WSLOT[name]
        t = [rbase(REG[c0 + min(w, nw - 1)]) for w in range(4)]
        out += [f's_mov_b32 s{sWoB+i}, {t[0]}']
        for w in range(1, 4): out += [[f's_cmp_eq_u32 s{G.sW}, {w}', f's_cselect_b32 s{sWoB+i}, {t[w]}, s{sWoB+i}']]
        out += [f's_add_u32 s{G.sT1}, s{G.sW}, {c0}', f's_lshr_b32 s{G.sT0}, s{G.sT1}, 2', f's_add_u32 s{G.sT0}, s{G.sT0}, s{G.sNb}', f's_and_b32 s{G.sT0}, s{G.sT0}, 3',
                f's_lshl_b32 s{G.sT0}, s{G.sT0}, 2', f's_and_b32 s{G.sT1}, s{G.sT1}, 3', f's_add_u32 s{G.sT0}, s{G.sT0}, s{G.sT1}', f's_mul_i32 s{sWoS+i}, s{G.sT0}, {32*1152}']
    return out

def p3_scalars():
    t0, t1 = G.sT0, G.sT1
    o = f'''s_lshl_b32 s{sFl}, s{G.sB}, 5
s_add_u32 s{sFl}, s{sFl}, s{G.sH}
s_lshl_b32 s{sOst}, s{sFl}, 2
s_add_u32 s{sOst}, s{sOst}, s{G.sW}
s_lshl_b32 s{sOst}, s{sOst}, 14
s_lshl_b32 s{sFl}, s{sFl}, 7
s_add_u32 s{sFl}, s{sFl}, {G.FBASE}
s_add_u32 s91, s{sFl}, {G.FTWIN}'''.split('\n')
    for hp in range(3):
        o += f'''s_add_u32 s{t0}, s{G.sNb}, {hp+1}
s_and_b32 s{t0}, s{t0}, 3
s_lshl_b32 s{t1}, s{G.sKg}, 2
s_add_u32 s{t0}, s{t0}, s{t1}
s_lshl_b32 s{t1}, s{G.sB}, 5
s_add_u32 s{t0}, s{t0}, s{t1}
s_lshl_b32 s{t0}, s{t0}, 2
s_add_u32 s{t0}, s{t0}, s{G.sW}
s_lshl_b32 s{sPh+hp}, s{t0}, 14'''.split('\n')
    o += f'''s_lshl_b32 s{t0}, s{G.sB}, 2
s_add_u32 s{t0}, s{t0}, s{G.sNb}
s_lshl_b32 s{t0}, s{t0}, 3
s_lshl_b32 s{t1}, s{G.sW}, 1
s_add_u32 s{t1}, s{t0}, s{t1}
s_lshl_b32 s{t1}, s{t1}, 4
s_add_u32 s{t1}, s{t1}, s{G.sKg}
s_mul_i32 s{sPst}, s{t1}, 5120
s_add_u32 s{sPst}, s{sPst}, {G.PBASE}
s_add_u32 s{t0}, s{t0}, s{G.sKg}
s_mul_i32 s{sCB}, s{t0}, {16*5120}
s_add_u32 s{sCB}, s{sCB}, {G.PBASE}
s_lshr_b32 s{t0}, s{G.sKg}, 1
s_lshl_b32 s{t0}, s{t0}, 2
s_and_b32 s{t1}, s{G.sKg}, 1
s_add_u32 s{t0}, s{t0}, s{t1}
s_lshl_b32 s{t1}, s{G.sB}, 4
s_add_u32 s{t0}, s{t0}, s{t1}
s_mul_i32 s{sOB}, s{t0}, {16*1152}
s_mul_i32 s{t1}, s{G.sNb}, 288
s_add_u32 s{sOB}, s{sOB}, s{t1}'''.split('\n')
    return o

_skip = [0]
def wo_dma(name, vbase=None):
    i = WNAME.index(name); c0, nw = WSLOT[name]
    L = []
    for p in range(9):
        g = []
        if p % 4 == 0: g += [f's_add_u32 m0, s{sWoB+i}, {p*1024}']
        ins = f'buffer_load_dwordx4 v{(vbase or vWoD)+p}, s[{G.sWo}:{G.sWo+3}], s{sWoS+i} offen offset:{(p%4)*1024}{cfg.wo_flag} lds'
        if nw == 4:
            a = lambda w, p=p: rbase(REG[c0 + w]) + p * 1024
            if p % 4 == 0: g.append('s_nop 0')
            g.append(f'{ins} ; @dma WO{name} {kb(a)}')
        else:
            _skip[0] += 1
            g += [f's_cbranch_vccnz L_wsk{_skip[0]}', f'{ins} ;@notrace', f'L_wsk{_skip[0]}:']
        L.append(g)
    return L

def spread(groups, gaps):
    X = {}
    for g, pos in zip(groups, gaps): X.setdefault(pos, []).extend(g)
    return X
def merge(a, b):
    for g, L in b.items(): a.setdefault(g, []).extend(L)
    return a

def peeled_tail(k):
    e = k.e
    cnt = [0]
    def emit(step_lines, tags):
        n = k.vm_need(tags); ni = k.vm_need(tags, incl=True)
        out = []
        for x in step_lines:
            if 'VMW' in x and ni != n:
                cnt[0] += 1
                out += [f's_cbranch_vccnz L_vwa{cnt[0]} ;@skip', x.replace('VMW', str(ni)) + ' ;@skip', f's_branch L_vwb{cnt[0]} ;@skip', f'L_vwa{cnt[0]}:', x.replace('VMW', str(n)), f'L_vwb{cnt[0]}:']
            else: out.append(x.replace('VMW', str(n)))
        emit2(out)
    def emit2(lines):
        for x in lines:
            if '@notrace' in x:
                e(x.replace(' ;@notrace', ''), trace=False); k.nt_marks.append(len(k.tr))
            elif '@skip' in x: e(x.replace(' ;@skip', ''), trace=False)
            elif x.endswith(':') or x.startswith('s_cbranch_vccnz L_wsk'): e(x, trace=False)
            else: e(x)
    k.emit2 = emit2
    reg = [f's_lshl_b32 s{G.sT0}, s{G.sB}, 5', f'v_mov_b32 v{G.vT2}, s{G.sT0}', f'global_load_dword v{G.vT2}, v{G.vT2}, s[16:17] sc1']
    D_ = cfg.D
    assert D_ == 2
    rd = [f'v_accvgpr_read_b32 v{vWoD+p}, a{aWoD+p}' for p in range(9)]
    e(f's_cmp_eq_u32 s{G.sW}, 3\ns_cselect_b64 vcc, -1, 0')
    if cfg.wo_coop:
        Dk = G.dma_K(15, 3, f's{G.sKsoff}')
        X = {2: [rd[0]], 4: [f's_mov_b32 m0, s{G.sDma}'], 6: [rd[1]], 12: [Dk[0], rd[2]], 16: [Dk[1], rd[3]], 24: [Dk[2]], 56: [Dk[3]], 58: [rd[4], rd[5]], 60: [rd[6]], 61: [rd[7], rd[8]],
             62: [f's_and_b32 s{G.sVsoff}, s{G.sVsoff}, 0x3ffff'],
             64: [f's_and_b32 s{G.sT0}, s{G.sJ}, 3', f's_lshl_b32 s{G.sT0}, s{G.sT0}, 2']}
        emit(k.step(24, 0, 'full', X), {'V12', 'K13'})
        Dv = G.dma_V(14, 3, f's{G.sVsoff}')
        co = [f'buffer_load_dwordx4 a[{128+4*p}:{131+4*p}], v{vWoD+p}, s[{G.sWo}:{G.sWo+3}], s{G.sT2} offen offset:{(p%4)*1024}' for p in range(9)]
        X = {0: [f's_add_u32 m0, s{G.sDma}, {G.LDS_V}', f's_add_u32 s{G.sT0}, s{G.sT0}, s{G.sW}'], 2: [Dv[0]], 4: [Dv[1], f's_mul_i32 s{G.sT2}, s{G.sT0}, {32*1152}'], 6: [Dv[2]], 8: [Dv[3]],
             10: [f's_add_u32 s{G.sVsoff}, s{G.sVsoff}, 16384'], 61: [f's_xor_b32 s{G.sXor}, s{G.sXor}, 0x8000'], 62: [f's_xor_b32 s{G.sDma}, s{G.sDma}, s{G.sXor}']}
        X = merge(X, spread([[x] for x in co], [12, 14, 16, 18, 20, 22, 24, 44, 46]))
        X = merge(X, {60: reg[:1]})
        emit(k.step(25, 1, 'full', X), set())
        e(reg[1:])
        k.stamp('it12')
        W = wo_dma('t12') + wo_dma('t13')
        Dv = G.dma_V(15, 0, f's{G.sVsoff}')
        X = {2: [f's_and_b32 s{G.sVsoff}, s{G.sVsoff}, 0x3ffff'], 4: [f's_add_u32 m0, s{G.sDma}, {G.LDS_V}'], 8: [Dv[0]], 12: [Dv[1]], 16: [Dv[2]], 20: [Dv[3]]}
        X = merge(X, spread(W[:4], [56, 58, 60, 64]))
        emit(k.step(26, 0, 'full', X), {'V13', 'K14'})
        X = spread(W[4:], [0, 4, 8, 12, 16, 20, 24, 44, 48, 52, 56, 58, 60, 64]); X.setdefault(61, []).append(f's_xor_b32 s{G.sXor}, s{G.sXor}, 0x8000')
        emit(k.step(27, 1, 'full', X), set())
        k.stamp('it13')
    else:
        W = wo_dma('t12')
        Dk = G.dma_K(15, 3, f's{G.sKsoff}')
        X = {2: [rd[0]], 4: [f's_mov_b32 m0, s{G.sDma}'], 6: [rd[1]], 12: [Dk[0], rd[2]], 16: [Dk[1], rd[3]], 24: [Dk[2]], 56: [Dk[3]], 58: [rd[4], rd[5]], 60: [rd[6]], 61: [rd[7], rd[8]],
             62: [f's_and_b32 s{G.sVsoff}, s{G.sVsoff}, 0x3ffff']}
        X = {g: L for g, L in X.items()}
        emit(k.step(24, 0, 'full', X), {'V12', 'K13'})
        Dv = G.dma_V(14, 3, f's{G.sVsoff}')
        X = {0: [f's_add_u32 m0, s{G.sDma}, {G.LDS_V}'], 2: [Dv[0]], 4: [Dv[1]], 6: [Dv[2]], 8: [Dv[3]], 10: [f's_add_u32 s{G.sVsoff}, s{G.sVsoff}, 16384'],
             61: [f's_xor_b32 s{G.sXor}, s{G.sXor}, 0x8000'], 62: [f's_xor_b32 s{G.sDma}, s{G.sDma}, s{G.sXor}']}
        X = merge(X, spread(W, [12, 16, 20, 24, 44, 48, 56, 58, 64]))
        X = merge(X, {60: reg[:1], 64: [], 66: []})
        emit(k.step(25, 1, 'full', X), set())
        e(reg[1:])
        k.stamp('it12')
        W = wo_dma('t13')
        Dv = G.dma_V(15, 0, f's{G.sVsoff}')
        X = {2: [f's_and_b32 s{G.sVsoff}, s{G.sVsoff}, 0x3ffff'], 4: [f's_add_u32 m0, s{G.sDma}, {G.LDS_V}'], 12: [Dv[0]], 16: [Dv[1]], 24: [Dv[2]], 56: [Dv[3]]}
        X = merge(X, spread(W[:2], [60, 64]))
        emit(k.step(26, 0, 'full', X), {'V13', 'K14'})
        X = spread(W[2:], [0, 8, 16, 24, 56, 60, 64]); X.setdefault(61, []).append(f's_xor_b32 s{G.sXor}, s{G.sXor}, 0x8000')
        emit(k.step(27, 1, 'full', X), set())
        k.stamp('it13')
    W = wo_dma('t14')
    emit(k.step(28, 0, 'full', spread(W[:4], [12, 24, 58, 64])), {'V14', 'K15'})
    X = spread(W[4:], [4, 12, 20, 58, 64]); X.setdefault(61, []).append(f's_xor_b32 s{G.sXor}, s{G.sXor}, 0x8000')
    emit(k.step(29, 1, 'full', X), set())
    k.stamp('it14')
    W = wo_dma('t15')
    L30 = k.step(30, 0, 'nok', spread(W[:7], [12, 20, 44, 50, 56, 60, 64]))
    assert k.vm_need({'V15'}) == 9
    emit2([x.replace('VMW', '9') for x in L30])
    k.stamp('s30')
    emit2(k.step(31, 1, 'last', spread(W[7:], [2, 6])))
    k.stamp('p2end')

def poll_dual(k, name, vaddr, soff_reg, nbits, mask=7):
    e = k.e; T = G.vT
    full = (1 << (1 << nbits)) - 1
    e(f's_mov_b32 s{sCnt}, 0\ns_mov_b32 s{G.sT2}, 0\ns_add_u32 s{G.sT3 if False else 88}, s{soff_reg}, {G.FTWIN}', trace=False)
    if cfg.poll_exec: e(f's_mov_b64 exec, {full}', trace=False)
    k.p(f'L_poll_{name}:')
    e(f'''s_and_b32 s{G.sT1}, s{sCnt}, {mask}
s_cmp_eq_u32 s{G.sT1}, {mask}
s_cselect_b32 s89, s{soff_reg}, s88
s_add_u32 s{sCnt}, s{sCnt}, 1
buffer_load_dword v{T+1}, v{vaddr}, s[{G.sWS}:{G.sWS+3}], s89 offen sc1
s_waitcnt vmcnt(0)
v_cmp_eq_u32 vcc, 1, v{T+1}
s_nop 1
s_or_b32 s{G.sT2}, s{G.sT2}, vcc_lo
s_and_b32 s{G.sT1}, s{G.sT2}, {full}
s_cmp_eq_u32 s{G.sT1}, {full}
s_cbranch_scc1 L_pollx_{name}
{'s_sleep ' + str(cfg.poll_sleep) if (cfg.poll_sleep and (mask == 0 or cfg.sleep_all)) else 's_nop 0'}
s_cmp_ge_u32 s{sCnt}, 0x8000
s_cbranch_scc0 L_poll_{name}''', trace=False)
    k.p(f'L_pollx_{name}:')
    if cfg.poll_exec: e('s_mov_b64 exec, -1', trace=False)
    k.tr.append('s_waitcnt vmcnt(0)')

def poll(k, name, vaddr, soff_reg):
    e = k.e
    e(f's_mov_b32 s{sCnt}, 0', trace=False)
    k.p(f'L_poll_{name}:')
    e(f'''buffer_load_dword v{G.vT+1}, v{vaddr}, s[{G.sWS}:{G.sWS+3}], s{soff_reg} offen sc1
s_add_u32 s{sCnt}, s{sCnt}, 1
s_waitcnt vmcnt(0)
v_cmp_ne_u32 vcc, 1, v{G.vT+1}
s_cmp_ge_u32 s{sCnt}, 0x4000
s_cbranch_scc1 L_pollx_{name}
s_cbranch_vccz L_pollx_{name}
s_sleep 1
s_branch L_poll_{name}''', trace=False)
    k.p(f'L_pollx_{name}:')
    k.tr.append('s_waitcnt vmcnt(0)')

def set_flag(k, off_vreg, dual=False):
    o = ['s_mov_b64 exec, 1']
    if dual: o.append(f'buffer_store_dword v{vOne}, v{off_vreg}, s[{G.sWS}:{G.sWS+3}], s91 offen')
    o += [f'buffer_store_dword v{vOne}, v{off_vreg}, s[{G.sWS}:{G.sWS+3}], s{sFl} offen sc1', 's_mov_b64 exec, -1']
    return o

vOne = 20; vF1 = 21; vF2a = 24; vF2b = 25; vH = 11
vPk = [32, 68]

def phase3(k):
    e = k.e; T = G.vT; L = G.vLane
    e('s_nop 4')
    rp = [T, T + 2, T + 4, 122]
    sBad = 88
    for qt in range(4): e(f'v_rcp_f32 v{rp[qt]}, v{G.LA(qt)}')
    e(f's_mov_b32 s{G.sT0}, 0x6f800000')
    for qt in range(4):
        e(f'v_cmp_nlt_f32 vcc, v{G.LA(qt)}, v{G.LA(qt)}') if False else None
    e(f'v_mov_b32 v{G.vT2+1}, s{G.sT0}')
    e(f's_mov_b64 s[{sBad}:{sBad+1}], 0')
    for qt in range(4):
        e(f'v_cmp_nlt_f32 vcc, v{G.LA(qt)}, v{G.vT2+1}\ns_nop 0\ns_or_b64 s[{sBad}:{sBad+1}], s[{sBad}:{sBad+1}], vcc')
    e(f'v_lshlrev_b32 v{vAd}, 4, v{L}')
    for qt in range(4): e(f'v_mov_b32 v{rp[qt]+1}, v{rp[qt]}')
    for i in range(1, 4): e(f'v_add_u32 v{vAd+i}, {4096*i}, v{vAd}')
    vPr = 108
    prev = None; nprobe = 0
    for ks in range(4):
        for qt in range(4):
            for x in range(2):
                b = G.O(2 * ks + x, qt); r = rp[qt]
                e(f'v_pk_mul_f32 v[{b}:{b+1}], v[{b}:{b+1}], v[{r}:{r+1}]\nv_pk_mul_f32 v[{b+2}:{b+3}], v[{b+2}:{b+3}], v[{r}:{r+1}]')
            if prev is not None:
                e(mfma(vr(vPr, 4), ar(G.aZero, 4), vr(prev, 4), '0' if nprobe == 0 else vr(vPr, 4))); nprobe += 1
            for x in range(2):
                b = G.O(2 * ks + x, qt); d = Own(qt, ks) + 2 * x
                e(f'v_cvt_pk_bf16_f32 v{d}, v{b}, v{b+1}\nv_cvt_pk_bf16_f32 v{d+1}, v{b+2}, v{b+3}')
            if ks == 0 or cfg.early_ost:
                e(f'buffer_store_dwordx4 v[{Own(qt,ks)}:{Own(qt,ks)+3}], v{vAd+qt}, s[{G.sWS}:{G.sWS+3}], s{sOst} offen offset:{ks*1024}{cfg.ost_flag}')
            prev = Own(qt, ks)
    e('s_nop 1')
    e(mfma(vr(vPr, 4), ar(G.aZero, 4), vr(prev, 4), vr(vPr, 4)))
    for p in range(9): e(f'v_mov_b32 v{96+p}, v{vWoD+p}')
    ost = [f'buffer_store_dwordx4 v[{Own(qt,ks)}:{Own(qt,ks)+3}], v{vAd+qt}, s[{G.sWS}:{G.sWS+3}], s{sOst} offen offset:{ks*1024} sc1' for ks in range(1, 4) for qt in range(4)]
    if cfg.early_ost: ost = []
    e(f'''s_lshl_b32 s{G.sT0}, s{G.sW}, 2
s_add_u32 s{G.sT0}, s{G.sT0}, 64512
v_mov_b32 v{T}, s{G.sT0}
v_mov_b32 v{vOne}, 1
s_nop 3
v_cmp_u_f32 vcc, v{vPr}, v{vPr}
s_nop 0
s_or_b64 s[{sBad}:{sBad+1}], s[{sBad}:{sBad+1}], vcc
s_cmp_lg_u64 s[{sBad}:{sBad+1}], 0
s_cselect_b32 s{G.sT0}, 1, 0
v_mov_b32 v{T+1}, s{G.sT0}
ds_write_b32 v{T}, v{T+1}
v_mov_b32 v{T+2}, 64512''')
    n = k.vm_need({'REG', 'WOt14'})
    e(f's_waitcnt vmcnt({n}) lgkmcnt(0)\ns_barrier')
    e(f'ds_read_b128 v[124:127], v{T+2}')
    e(f'v_readfirstlane_b32 s90, v{G.vT2}')
    k.stamp('p3pk')
    e(f'''v_lshrrev_b32 v30, 4, v{L}
v_bfe_u32 v31, v{L}, 2, 2
v_lshl_add_u32 v30, v30, 2, v31
v_mul_u32_u24 v30, 288, v30
v_and_b32 v31, 3, v{L}
v_lshl_add_u32 v{vR}, v31, 3, v30
v_add_u32 v{vR+1}, 61440, v{vR}
v_add_u32 v{vR+2}, 122880, v{vR}
v_lshlrev_b32 v{vH}, 3, v{L}
v_add_u32 v{vH}, 4096, v{vH}
v_mov_b32 v{vOne}, 1
s_lshl_b32 s{G.sT0}, s{G.sW}, 2
v_mov_b32 v{vF1}, s{G.sT0}
s_lshl_b32 s{G.sT0}, s{G.sW}, 3
s_add_u32 s{G.sT0}, s{G.sT0}, 16
v_mov_b32 v{vF2a}, s{G.sT0}
s_add_u32 s{G.sT0}, s{G.sT0}, 4
v_mov_b32 v{vF2b}, s{G.sT0}''')
    e(f'''s_waitcnt lgkmcnt(0)
v_or_b32 v124, v124, v125
v_or3_b32 v124, v124, v126, v127
s_nop 0
v_readfirstlane_b32 s{G.sT0}, v124
s_andn2_b32 s{G.sT0}, s{G.sT0}, s{G.sMode}
s_cmp_lg_u32 s{G.sT0}, 0
s_cbranch_scc1 L_fallback''')
    assert cfg.early_ost
    e(f's_cmp_eq_u32 s{G.sW}, 3\ns_cselect_b64 vcc, -1, 0')
    def a_read(c, nt, slot):
        base = rbase(REG[c]); idx = base // 61440
        return [f'ds_read_b64_tr_b16 a[{aA+4*slot+2*u}:{aA+4*slot+2*u+1}], v{vR+idx} offset:{base-61440*idx+u*4608+nt*32} ; ' + ('@rd WOt14' if c >= 6 else '') for u in range(2)]
    seq = [(c, nt, (0, 1, 2, 3)) for c in range(4) for nt in range(9)]
    seq += [(c, nt, (0, 1)) for c in range(4, 16) for nt in range(9)]
    seq += [(c, nt, (2, 3)) for c in range(4, 16) for nt in range(9)]
    AH_OWN, AH = 6, 8
    for i in range(AH_OWN): e(a_read(seq[i][0], seq[i][1], i % 16))
    k.stamp('p3go')
    def part_load(hp, qt, ks):
        return f'buffer_load_dwordx4 a[{Part(hp,qt,ks)}:{Part(hp,qt,ks)+3}], v{vAd+qt}, s[{G.sWS}:{G.sWS+3}], s{sPh+hp} offen offset:{ks*1024}'
    loads = [[part_load(hp, qt, ks) for ks in range(4) for qt in (2 * half, 2 * half + 1)] for half in range(2) for hp in range(3)]
    def pack_store(half):
        cv = []; st = []
        for x in range(2):
            qt = 2 * half + x
            for blk in range(5):
                d = D(2 * blk, qt)
                cv += [f'v_cvt_pk_bf16_f32 v{d}, v{d}, v{d+1}', f'v_cvt_pk_bf16_f32 v{d+1}, v{d+2}, v{d+3}']
                if blk < 4:
                    b_ = D(2 * blk + 1, qt)
                    cv += [f'v_cvt_pk_bf16_f32 v{d+2}, v{b_}, v{b_+1}', f'v_cvt_pk_bf16_f32 v{d+3}, v{b_+2}, v{b_+3}']
                g = []
                if blk == 0: g.append(f's_add_u32 s{sOst}, s{sPst}, {x*81920 + half*40960}')
                if blk < 4: g.append(f'buffer_store_dwordx4 v[{d}:{d+3}], v{vAd}, s[{G.sWS}:{G.sWS+3}], s{sOst} offen offset:{blk*1024} sc1')
                else: g.append(f'buffer_store_dwordx2 v[{d}:{d+1}], v{vH}, s[{G.sWS}:{G.sWS+3}], s{sOst} offen sc1')
                st.append(g)
        return cv, st
    R = 32; SUM = 80
    fin_setup = f'''v_lshlrev_b32 v{vAd+4}, 4, v{L}
s_lshl_b32 s{G.sT1}, s{G.sW}, 10
v_mov_b32 v{vAd+5}, v{vH}
v_add_u32 v{vAd+4}, s{G.sT1}, v{vAd+4}
s_cmp_ge_u32 s{G.sW}, 1
s_cselect_b32 s{G.sT1}, 0x40000000, 0
v_add_u32 v{vAd+5}, s{G.sT1}, v{vAd+5}
v_and_b32 v{vAd+6}, 15, v{L}
v_mul_u32_u24 v{vAd+6}, 1152, v{vAd+6}
v_lshrrev_b32 v{vAd+7}, 4, v{L}
v_lshl_add_u32 v{vAd+6}, v{vAd+7}, 3, v{vAd+6}'''
    def fin_addr(part):
        return f'''v_and_b32 v{T}, 7, v{L}
v_lshlrev_b32 v{T}, 2, v{T}
v_add_u32 v{T}, s{G.sNb}, v{T}
v_lshlrev_b32 v{T}, 7, v{T}
s_lshr_b32 s{G.sT0}, s{G.sKg}, 1
s_lshl_b32 s{G.sT0}, s{G.sT0}, 3
s_add_u32 s{G.sT0}, s{G.sT0}, {16 + 4*part}
v_add_u32 v{T}, s{G.sT0}, v{T}
s_lshl_b32 s{G.sT0}, s{G.sB}, 12
s_add_u32 s{G.sT0}, s{G.sT0}, {G.FBASE}'''
    def fin_loads(part):
        R = 32 + (48 if (cfg.late_final and part) else 0)
        o = []
        for src in range(8):
            o.append([f's_add_u32 s{G.sT1}, s{sCB}, {part*40960 + src*5120}',
                      f'buffer_load_dwordx4 v[{R+4*src}:{R+4*src+3}], v{vAd+4}, s[{G.sWS}:{G.sWS+3}], s{G.sT1} offen',
                      f'buffer_load_dwordx2 v[{R+32+2*src}:{R+32+2*src+1}], v{vAd+5}, s[{G.sWS}:{G.sWS+3}], s{G.sT1} offen'])
        return o
    def fin_reduce(part):
        R = 32 + (48 if (cfg.late_final and part) else 0)
        SUM = 128 if cfg.late_final else 80
        e(f's_waitcnt vmcnt({k.vm_need({f"FIN{part}"})})')
        e(f's_mov_b32 s{G.sT1}, 0x00003f80\ns_mov_b32 s{G.sT2}, 0x3f800000')
        for src in range(8):
            for j in range(4):
                for hi_ in range(2):
                    acc = SUM + 2 * j + hi_
                    e(f'v_dot2_f32_bf16 v{acc}, v{R+4*src+j}, s{G.sT1+hi_}, {"0" if src == 0 else f"v{acc}"}')
            for j in range(2):
                for hi_ in range(2):
                    acc = SUM + 8 + 2 * j + hi_
                    e(f'v_dot2_f32_bf16 v{acc}, v{R+32+2*src+j}, s{G.sT1+hi_}, {"0" if src == 0 else f"v{acc}"}')
        e('s_nop 2')
        for j in range(6): e(f'v_cvt_pk_bf16_f32 v{SUM+12+j}, v{SUM+2*j}, v{SUM+2*j+1}')
        e(f'''s_add_u32 s{G.sT0}, s{sOB}, {part*32*1152}
s_cmp_ge_u32 s{G.sW}, 1
s_cselect_b32 s{G.sT1}, 0x7ffff000, s{G.sT0}
s_lshl_b32 s{G.sT2}, s{G.sW}, 6
s_add_u32 s{G.sT0}, s{G.sT0}, s{G.sT2}
buffer_store_dwordx2 v[{SUM+12}:{SUM+13}], v{vAd+6}, s[{G.sOut}:{G.sOut+3}], s{G.sT0} offen{cfg.out_flag}
buffer_store_dwordx2 v[{SUM+14}:{SUM+15}], v{vAd+6}, s[{G.sOut}:{G.sOut+3}], s{G.sT0} offen offset:32{cfg.out_flag}
buffer_store_dwordx2 v[{SUM+16}:{SUM+17}], v{vAd+6}, s[{G.sOut}:{G.sOut+3}], s{G.sT1} offen offset:256{cfg.out_flag}''')
    issued = AH_OWN
    SPL, POL = cfg.own_split
    seg_bounds = [(0, 9 * SPL), (9 * SPL, 9 * POL), (9 * POL, 36), (36, 144), (144, 252)]
    extra = {}
    def place(i0, items, every):
        for n_, it_ in enumerate(items):
            extra.setdefault(i0 + n_ * every, []).append(it_ if isinstance(it_, list) else [it_])
    if ost: place(1, ost, max(1, (9 * SPL - 2) // len(ost)))
    place(36 + 1, loads[2], 1)
    place(36 + 18, loads[3], cfg.l3_every)
    if cfg.tp_late: place(36 + 21, wo_dma('tP', 96), 3)
    place(36 + 70, loads[4], 2)
    place(36 + 88, loads[5], 2)
    for seg, (lo, hi) in enumerate(seg_bounds):
        if seg == 1:
            nn = k.vm_need({'OST'})
            e(f's_waitcnt vmcnt({nn})')
            e(set_flag(k, vF1, dual=cfg.dualflag))
            k.stamp('p3d1')
            if not cfg.tp_late: place(lo + 1, wo_dma('tP', 96), 2)
        if seg == 2:
            e(f's_mov_b32 s{G.sT2}, s90')
            k.p('L_regchk:')
            e(f's_cmp_ge_u32 s{G.sT2}, 32\ns_cbranch_scc1 L_regok')
            e(f'''s_add_u32 s{G.sPass}, s{G.sPass}, 1
s_cmp_ge_u32 s{G.sPass}, 0x4000
s_cbranch_scc1 L_regok
s_lshl_b32 s{G.sT0}, s{G.sB}, 5
v_mov_b32 v{G.vT2}, s{G.sT0}
s_sleep 1
global_load_dword v{G.vT2}, v{G.vT2}, s[16:17] sc1
s_waitcnt vmcnt(0)
v_readfirstlane_b32 s{G.sT2}, v{G.vT2}
s_branch L_regchk''', trace=False)
            k.p('L_regok:')
            e(f'''v_and_b32 v{T}, 3, v{L}
s_lshl_b32 s{G.sT0}, s{G.sKg}, 2
v_add_u32 v{T}, s{G.sT0}, v{T}
v_lshlrev_b32 v{T}, 7, v{T}
v_add_u32 v{T}, v{T}, v{vF1}
s_lshl_b32 s{G.sT0}, s{G.sB}, 12
s_add_u32 s{G.sT0}, s{G.sT0}, {G.FBASE}''')
            if cfg.dualflag:
                poll_dual(k, 'f1', T, G.sT0, 2)
            else: poll(k, 'f1', T, G.sT0)
            k.stamp('p3f1')
            for x in loads[0] + loads[1]: e(x)
            e(f's_cmp_eq_u32 s{G.sW}, 3\ns_cselect_b64 vcc, -1, 0')
        for i in range(lo, hi):
            c, nt, qts = seq[i]
            half = 0 if seg == 3 else 1
            slot = i % 16
            ah = AH_OWN if seg < 3 else AH
            rd = []
            while issued < min(len(seq), i + ah + 1):
                rd += a_read(seq[issued][0], seq[issued][1], issued % 16); issued += 1
            younger = 2 * (issued - len(rd) // 2 - 1 - i)
            pre = [f's_waitcnt lgkmcnt({min(15, younger)})']
            if seg >= 3 and nt == 0:
                pre.append(f's_waitcnt vmcnt({k.vm_need({f"PH{(c>>2)-1}_{half}_{c&3}"})})')
                if seg == 3 and c == 9: pre.append('s_barrier')
                if cfg.tp_late and seg == 3 and c == 12:
                    last = k.nt_marks[-1]
                    younger = sum(1 for x in k.tr[last:] if x.split()[0].startswith('buffer_') or x.split()[0].startswith('global_'))
                    pre += [f's_waitcnt vmcnt({younger})', 's_barrier']
            hook = None
            if seg == 4 and nt == 0 and c == cfg.f2a_c and not cfg.late_final and not cfg.tail2: hook = 'f2a'
            if seg == 4 and nt == 0 and c == cfg.fin0_c and not cfg.late_final and not cfg.tail2: hook = 'fin0'
            mf = []
            for qt in qts:
                Bop = vr(Own(qt, c), 4) if c < 4 else ar(Part((c >> 2) - 1, qt, c & 3), 4)
                Cop = '0' if c == 0 else vr(D(nt, qt), 4)
                mf.append(mfma(vr(D(nt, qt), 4), ar(aA + 4 * slot, 4), Bop, Cop))
            if hook == 'f2a':
                e(f's_waitcnt vmcnt({k.vm_need({"PS0"})})'); e(set_flag(k, vF2a, dual=cfg.dualflag and cfg.f2_mask > 0))
            if hook == 'fin0':
                e(fin_setup)
                e(fin_addr(0))
                poll_dual(k, 'f2a', T, G.sT0, 3, cfg.f2_mask)
                k.stamp('p3f2a')
                place(i, fin_loads(0), 1)
            e(pre)
            e(mf[0]); e(rd)
            e(mf[1])
            for x in extra.pop(i, []): k.emit2(x)
            for m in mf[2:]: e(m)
        k.stamp(f'p3seg{seg}')
        if seg == 3:
            e('s_nop 4')
            cv, st = pack_store(0); e(cv)
            place(144, st, cfg.ps0_every)
        if seg == 4:
            e('s_nop 4')
            if cfg.tail2:
                e(f's_waitcnt vmcnt({k.vm_need({"PS0"})})'); e(set_flag(k, vF2a, dual=cfg.dualflag and cfg.f2_mask > 0))
            cv, st = pack_store(1)
            e(cv[:18]);
            for g in st[:5]: e(g)
            e(cv[18:])
            for g in st[5:]: e(g)
    assert not extra, extra.keys()
    k.stamp('p3mm')
    if cfg.late_final:
        e(fin_setup); e(fin_addr(1))
        e(f's_waitcnt vmcnt({k.vm_need({"PS1"})})'); e(set_flag(k, vF2b, dual=cfg.dualflag and cfg.f2_mask > 0))
        k.stamp('p3st')
        poll_dual(k, 'f2b', T, G.sT0, 3, cfg.f2_mask)
        k.stamp('p3f2')
        for g in fin_loads(0) + fin_loads(1): e(g)
        k.stamp('p3fi')
        fin_reduce(0); fin_reduce(1)
        return
    if cfg.tail2: e(fin_setup); e(fin_addr(0))
    e(f's_waitcnt vmcnt({k.vm_need({"PS1"})})'); e(set_flag(k, vF2b, dual=cfg.dualflag and cfg.f2_mask > 0))
    k.stamp('p3st')
    if cfg.tail2:
        poll_dual(k, 'f2a', T, G.sT0, 3, cfg.f2_mask)
        for g in fin_loads(0): e(g)
    fin_reduce(0)
    k.stamp('p3r0')
    e(fin_addr(1))
    poll_dual(k, 'f2b', T, G.sT0, 3, cfg.f2_mask)
    k.stamp('p3f2')
    for g in fin_loads(1): e(g)
    k.stamp('p3fi')
    fin_reduce(1)
```

```python
import sys, math, struct
from asmlib import *

NAME = 'standalone__mha_block_cached__near_ridge'

class Cfg:
    stamps = False
    kv_flag = ' nt'
    x_flag = ''
    w_flag = ''
    wo_flag = ''
    force_safe = False
    ablate = ''
    l1inv = False
    codepf = 1
    burst1 = True
    poll_exec = False
    tail2 = False
    late_final = False
    poll_sleep = 4
    sleep_all = False
    f2_mask = 0
    womall = False
    wo_coop = False
    ost_flag = ' sc1'
    epi_early = True
    tp_late = False
    exp_enc = ''
    loop_align = 3
    loop_nop = 0
    late_mode = 0
    kv0_at = (6, 1)
    k1_at = (7, 1)
    D = 2
    perm = False
    w4 = False
    wmall = False
    rot = True
    pad = 0
    dbgstamps = 0
    mapx = False
    dualflag = True
    out_flag = ''
    bswap = 0
    coop_pre = (0, 1, 2, 3)
    coop_mid = ()
    coop_skip = ()
    coop_wait = 0
    early_ost = True
    own_split = (0, 2)
    ps0_every = 2
    f2a_c = 10
    fin0_c = 14
    l3_every = 6
    kv_same = False
cfg = Cfg()

sW = 3
sX, sWq, sK, sV, sWS, sWo, sOut = 20, 24, 28, 32, 36, 40, 44
sW4K = 48; sKsoff = 49; sVsoff = 50; sDma = 51; sXor = 52; sIter = 53
sT0, sT1, sT2, sT3 = 54, 55, 56, 57
sC = 58
sXsoff = 60; sWsoff = 61; sW8K = 62; sDelta = 63
sB = 64; sH = 65; sJ = 66; sMode = 67
sKg = 68; sNb = 69; sRot = 70; sPass = 71
sStamp = 72

vLane = 1
vT = 2
vKA = 8
vVA = 12
vDK = 20
vDV = 24
vMG = 26
vT2 = 30
vS = 32
vC = 64
vP = 80
vL = 96
vXA = 112; vWA = 114
vWB = 120
vCo = 118
vOX = 32; vOW = 40
vWoD = 112
vWoR = 121
vAcc = 128
aQ = 0; aKf = 64; aVf = 96; aOnes = 252; aZero = 188
aPA = 96; aPB = 64

def O(dt, qt): return vAcc + (dt * 4 + qt) * 4
def S(qt, kt): return vS + qt * 8 + kt * 4
def CI(qt): return vC + 4 * qt
def P(qt): return vP + 4 * qt
def LA(qt): return vL + 4 * qt
def Qf(qt, ds): return aQ + (qt * 4 + ds) * 4
def Kf(m): return aKf + 4 * m
def Vf(dt): return aVf + 4 * dt

LDS_V = 65536
XS = [32768, 81920]
WS = [114688, 131072, 147456, 16384]
def NWS(): return 4 if cfg.mapx and cfg.w4 else 3
OBASE = 0
PBASE = 16 << 20
FBASE = 60 << 20
FTWIN = 1 << 16
STAMPBASE = 64 << 20

def kb(fn): return ','.join(str(fn(w) // 1024) for w in range(4))
def stamp_reg(i): return [72, 76, 80, 84, 92][i]
def mfma(d, a, b, c): return f'v_mfma_f32_16x16x32_bf16 {d}, {a}, {b}, {c}'

class Slots:
    def __init__(self, n):
        self.pre = [[] for _ in range(n)]
        self.post = [[] for _ in range(n)]
        self.mf = [None] * n
    def out(self):
        o = []
        for i in range(len(self.mf)):
            o += self.pre[i]
            if self.mf[i]: o.append(self.mf[i])
            o += self.post[i]
        return o
    def load(self):
        def cost(x):
            mn = x.split()[0]
            if mn.startswith('v_exp') or mn.startswith('v_rcp'): return 8
            return 4
        n = len(self.mf); res = []
        for i in range(n):
            g = self.post[i] + (self.pre[i + 1] if i + 1 < n else [])
            res.append(sum(cost(x) for x in g))
        return res

def dma_K(tile, slot, soff):
    L = []
    for p in range(4):
        a = lambda w, p=p: slot * 16384 + w * 4096 + p * 1024
        L.append(f'buffer_load_dwordx4 v{vDK+p}, s[{sK}:{sK+3}], {soff} offen offset:{p*1024}{cfg.kv_flag} lds ; @dma K{tile} {kb(a)}')
    return L
def dma_V(tile, slot, soff):
    L = []
    for p in range(4):
        a = lambda w, p=p: LDS_V + slot * 16384 + w * 4096 + p * 1024
        L.append(f'buffer_load_dwordx4 v{vDV+(p&1)}, s[{sV}:{sV+3}], {soff} offen offset:{p*1024}{cfg.kv_flag} lds ; @dma V{tile} {kb(a)}')
    return L

def dma_W(c):
    G = []
    for p in range(4):
        a = lambda w, p=p: WS[c % NWS()] + w * 4096 + p * 1024
        ins = f'buffer_load_dwordx4 v{vOW+p}, s[{sWq}:{sWq+3}], s{sWsoff} offen offset:{p*1024}{cfg.w_flag} lds ; @dma W{c} {kb(a)}'
        g = [ins]
        if p == 0: g = [f's_add_u32 m0, s{sW4K}, {WS[c%NWS()]}', f's_mov_b32 s{sWsoff}, {c*524288}', ins]
        G.append(g)
    return G
def dma_X(c):
    G = []
    for p in range(8):
        a = lambda w, p=p: XS[c % 2] + w * 8192 + p * 1024
        ins = f'buffer_load_dwordx4 v{vOX+p}, s[{sX}:{sX+3}], s{sXsoff} offen offset:{(p&3)*1024}{cfg.x_flag} lds ; @dma X{c} {kb(a)} priv'
        g = [ins]
        if p == 0: g = [f's_add_u32 m0, s{sW8K}, {XS[c%2]}', f's_mov_b32 s{sXsoff}, {c*128}', ins]
        if p == 4: g = [f's_add_u32 m0, s{sW8K}, {XS[c%2]+4096}', 's_nop 0', ins]
        G.append(g)
    return G

def kv_dma_addr():
    T = vT; L = vLane
    o = f'''v_lshrrev_b32 v{T+1}, 4, v{L}
v_and_b32 v{T+3}, 15, v{L}
v_mov_b32 v{T+4}, v{T+1}'''.split('\n')
    for p in range(4):
        o += [f'v_add_u32 v{T+2}, {4*p}, v{T+1}', f'v_xor_b32 v{T+2}, v{T+2}, v{T+3}', f'v_lshlrev_b32 v{T+2}, 4, v{T+2}', f'v_lshl_add_u32 v{vDK+p}, v{T+4}, 8, v{T+2}']
    for par in range(2):
        o += [f'v_add_u32 v{T+2}, {4*par}, v{T+1}', f'v_lshlrev_b32 v{T+2}, 1, v{T+2}', f'v_xor_b32 v{T+2}, v{T+2}, v{T+3}', f'v_lshlrev_b32 v{T+2}, 4, v{T+2}', f'v_lshl_add_u32 v{vDV+par}, v{T+4}, 8, v{T+2}']
    return o
def kv_read_addr():
    T = vT; L = vLane
    o = [f'v_lshrrev_b32 v{T}, 4, v{L}', f'v_bfe_u32 v{T+1}, v{L}, 2, 2', f'v_and_b32 v{T+2}, 3, v{L}', f'v_and_b32 v{T+3}, 15, v{L}',
         f'v_lshlrev_b32 v{T+4}, 8, v{T+3}']
    for ds in range(4):
        o += [f'v_add_u32 v{T+5}, {4*ds}, v{T}', f'v_xor_b32 v{T+5}, v{T+5}, v{T+3}', f'v_lshl_add_u32 v{vKA+ds}, v{T+5}, 4, v{T+4}']
    o += f'''v_lshl_add_u32 v{T+4}, v{T}, 2, v{T+1}
v_and_b32 v{vT2}, 7, v{T+4}
v_lshlrev_b32 v{vT2}, 1, v{vT2}
v_lshlrev_b32 v{T+4}, 8, v{T+4}
v_and_b32 v{T+5}, 1, v{T+2}
v_lshl_add_u32 v{T+4}, v{T+5}, 3, v{T+4}
v_add_u32 v{T+4}, {LDS_V}, v{T+4}
v_lshrrev_b32 v{vT2+1}, 1, v{T+2}'''.split('\n')
    for dt in range(8):
        o += [f'v_add_u32 v{T+5}, {2*dt}, v{vT2+1}', f'v_xor_b32 v{T+5}, v{T+5}, v{vT2}', f'v_lshl_add_u32 v{vVA+dt}, v{T+5}, 4, v{T+4}']
    return o

def epi(qt):
    o = []
    for ds in range(4):
        for x in range(2):
            b_ = O(2 * ds + x, qt)
            o += [f'v_pk_mul_f32 v[{b_}:{b_+1}], v[{b_}:{b_+1}], s[{sC}:{sC+1}]', f'v_pk_mul_f32 v[{b_+2}:{b_+3}], v[{b_+2}:{b_+3}], s[{sC}:{sC+1}]']
        t = vC + (ds & 1) * 4
        for x in range(2):
            b_ = O(2 * ds + x, qt)
            o += [f'v_cvt_pk_bf16_f32 v{t+2*x}, v{b_}, v{b_+1}', f'v_cvt_pk_bf16_f32 v{t+2*x+1}, v{b_+2}, v{b_+3}']
        o += [f'v_accvgpr_write_b32 a{Qf(qt, ds)+i}, v{t+i}' for i in range(4)]
    return o
def kreads0(off): return [f'ds_read_b128 a[{Kf(m)}:{Kf(m)+3}], v{vKA+(m>>1)} offset:{off+(m&1)*4096} ; @rd K0' for m in range(8)]
def vreads0(): return [f'ds_read_b64_tr_b16 a[{Vf(n>>1)+2*(n&1)}:{Vf(n>>1)+2*(n&1)+1}], v{vVA+(n>>1)} offset:{8192+(n&1)*4096}' for n in range(16)]

def p1_reads(c, n, buf):
    A = aPA + buf * 32; B = aPB + buf * 16
    def W(dt, u):
        ds, x = dt >> 1, dt & 1
        st = c % NWS()
        reg, so = (vWA + ds, st * 16384) if st < 3 else (vWB + ds, 0)
        return f'ds_read_b64_tr_b16 a[{A+4*dt+2*u}:{A+4*dt+2*u+1}], v{reg} offset:{so+(32*n+4*u)*256+8*x} ; @rd W{c}'
    def X(qt): return f'ds_read_b128 a[{B+4*qt}:{B+4*qt+3}], v{vXA+n} offset:{(c%2)*49152+qt*2048} ; @rd X{c}'
    R = [X(0), W(0, 0), W(0, 1), X(1), X(2), X(3)]
    for dt in range(1, 8): R += [W(dt, 0), W(dt, 1)]
    return R

def p1_kstep(k, c, n, groups, last=False, fill=None):
    Sl = Slots(32)
    buf = n & 1
    final = last and n == 1 and cfg.epi_early
    for m in range(32):
        dt, qt = (m >> 2, m & 3) if not final else (m & 7, m >> 3)
        Sl.mf[m] = mfma(vr(O(dt, qt), 4), ar(aPA + buf * 32 + 4 * dt, 4), ar(aPB + buf * 16 + 4 * qt, 4), '0' if (c == 0 and n == 0) else vr(O(dt, qt), 4))
    if n == 0: R = p1_reads(c, 1, 1)
    else: R = [] if last else p1_reads(c + 1, 0, 0)
    if n == 1:
        vm = (k.vm_need({f'X{c+1}', f'W{c+1}'}) if not cfg.ablate else 20) if not last else (k.vm_need({'K0', 'Vm1'}) if final else 63)
        Sl.pre[0] += [f's_waitcnt vmcnt({vm}) lgkmcnt(0)', 's_barrier']
    else: Sl.pre[0] += ['s_waitcnt lgkmcnt(0)']
    if final:
        R = kreads0(0)[:4] + vreads0()
    ab = cfg.ablate
    if 'p1rd' in ab: R = []
    if 'p1x' in ab: groups = [[x for x in g if '@dma X' not in x] for g in groups]
    if 'p1w' in ab: groups = [[x for x in g if '@dma W' not in x] for g in groups]
    if 'p1kv' in ab: groups = [[x for x in g if '@dma K' not in x and '@dma V' not in x] for g in groups]
    for i, r in enumerate(R): Sl.post[2 * (i // 2)].append(r)
    if final:
        E0 = epi(0)
        g = 10
        while E0:
            n_ = (1 if len(Sl.post[g]) >= 2 else 3) if g < 31 else len(E0)
            Sl.post[g] += E0[:n_]; E0 = E0[n_:]; g = min(31, g + 1)
    if groups:
        nn = len(groups)
        for i, g in enumerate(groups):
            Sl.post[min(31, 1 + 2 * ((i * 16) // nn))] += g
    if fill:
        g = 1
        while fill and g < 32:
            if len(Sl.post[g]) == 0:
                for _ in range(2):
                    if fill:
                        x = fill.pop(0)
                        Sl.post[g] += x if isinstance(x, list) else [x]
                        if isinstance(x, list): break
            g += 1
    return Sl.out()

class Kernel:
    def __init__(self):
        self.p = Prog(); self.tr = []; self.nstamp = 0; self.q = []; self.nt_marks = []
    def e(self, s, text=True, trace=True):
        if isinstance(s, str): s = [x.strip() for x in s.split('\n') if x.strip()]
        if text: self.p(s)
        if trace: self.tr.extend(s)
    def stamp(self, name):
        if cfg.stamps and name in cfg.stamps:
            i = cfg.stamps.index(name); b = stamp_reg(i)
            self.e(f's_memrealtime s[{b}:{b+1}]\ns_memtime s[{b+2}:{b+3}]')
            self.nstamp = max(self.nstamp, i + 1)
    def vm_need(self, tags, incl=False):
        q = []
        marks = list(self.nt_marks)
        for pos, line in enumerate(self.tr + ['s_nop 0']):
            while incl and marks and marks[0] <= pos:
                q.append(None); marks.pop(0)
            code, _, com = line.partition(';')
            mn = code.split()[0] if code.split() else ''
            if mn.startswith('buffer_') and mn not in ('buffer_inv', 'buffer_wbl2') or mn.startswith('global_'):
                t = None
                a = com.split()
                if '@dma' in a: t = a[a.index('@dma') + 1]
                elif '@tag' in a: t = a[a.index('@tag') + 1]
                q.append(t)
        for t in tags: assert t in q, f'tag {t} was never issued'
        last = max((i for i, t in enumerate(q) if t in tags), default=-1)
        return min(63, len(q) - 1 - last)

    def header(self):
        self.p(f'; @launch grid=(256,1,1) block=(256,1,1) lds=163840')
        if cfg.stamps: self.p('; stamps: ' + ','.join(cfg.stamps))
        self.p('.amdgcn_target "amdgcn-amd-amdhsa--gfx950"\n.text')
        self.p(f'.globl {NAME}_kernel\n.p2align 8\n.type {NAME}_kernel,@function\n{NAME}_kernel:')
    def footer(self):
        self.p('L_end:\ns_endpgm')
        self.p('.p2align 6\nL_codeend:')
        self.p('.section .rodata,"a"\n.p2align 6')
        self.p(f'.amdhsa_kernel {NAME}_kernel')
        self.p('''.amdhsa_next_free_vgpr 512
.amdhsa_next_free_sgpr 102
.amdhsa_accum_offset 256
.amdhsa_group_segment_fixed_size 0
.amdhsa_kernarg_size 64
.amdhsa_user_sgpr_count 2
.amdhsa_user_sgpr_kernarg_segment_ptr 1
.amdhsa_system_sgpr_workgroup_id_x 1
.end_amdhsa_kernel''')

    def code_prefetch(self, where):
        e = self.e
        if cfg.codepf == where:
            e(f'''s_getpc_b64 s[{sT2}:{sT2+1}]
L_pc:
v_and_b32 v{vT+5}, 15, v{vLane}
s_lshr_b32 s{sT0}, s2, 3
s_and_b32 s{sT2}, s{sT2}, 0xffffff00
s_lshl_b32 s{sT0}, s{sT0}, 4
s_sub_u32 s{sT2}, s{sT2}, CODEOFF
v_add_u32 v{vT+5}, s{sT0}, v{vT+5}
s_subb_u32 s{sT3}, s{sT3}, 0
v_lshlrev_b32 v{vT+5}, 7, v{vT+5}
v_min_u32 v{vT+5}, CODELEN, v{vT+5}
global_load_dword v92, v{vT+5}, s[{sT2}:{sT2+1}]''')

    def setup(self):
        e = self.e
        e('s_cmp_ge_u32 s2, 256\ns_cbranch_scc1 L_end')
        if cfg.perm: e('s_lshr_b32 s3, s2, 3\ns_and_b32 s3, s3, 7\ns_xor_b32 s2, s2, s3')
        self.stamp('entry')
        e(f's_load_dwordx16 s[4:19], s[0:1], 0')
        e(f'''v_and_b32 v{vLane}, 63, v0
v_lshrrev_b32 v{vT}, 6, v0
s_and_b32 s{sT0}, s2, 7
s_lshr_b32 s{sJ}, s2, 3
v_readfirstlane_b32 s{sW}, v{vT}
s_and_b32 s{sB}, s{sT0}, 1
s_xor_b32 s{sB}, s{sB}, {cfg.bswap}
s_lshl_b32 s{sB}, s{sB}, 2
s_and_b32 s{sT1}, s{sJ}, 3
s_add_u32 s{sB}, s{sB}, s{sT1}
s_lshr_b32 s{sH}, s{sT0}, 1
s_lshl_b32 s{sH}, s{sH}, 3
s_lshr_b32 s{sT1}, s{sJ}, 2
s_add_u32 s{sH}, s{sH}, s{sT1}
MAPX
s_lshr_b32 s{sKg}, s{sH}, 2
s_and_b32 s{sNb}, s{sH}, 3
s_lshl_b32 s{sW4K}, s{sW}, 12
ROT
'''.replace('ROT', f's_add_u32 s{sRot}, s{sH}, s{sB}\ns_and_b32 s{sRot}, s{sRot}, 15\ns_lshl_b32 s{sRot}, s{sRot}, 14\ns_add_u32 s{sRot}, s{sRot}, s{sW4K}' if cfg.rot else f's_mov_b32 s{sRot}, s{sW4K}').replace('MAPX', f's_mov_b32 s{sB}, s{sT0}\ns_mov_b32 s{sH}, s{sJ}' if cfg.mapx else 's_nop 0'))
        L = vLane; T = vT
        e(f'''v_lshrrev_b32 v{T}, 3, v{L}
s_lshl_b32 s{sT0}, s{sW}, 6
v_add_u32 v{T}, s{sT0}, v{T}
v_mul_u32_u24 v{T}, 1152, v{T}
v_lshrrev_b32 v{T+1}, 4, v{L}
v_and_b32 v{T+2}, 7, v{L}
v_xor_b32 v{T+3}, v{T+2}, v{T+1}
v_xor_b32 v{T+4}, 4, v{T+3}
v_lshl_add_u32 v{T+3}, v{T+3}, 4, v{T}
v_lshl_add_u32 v{T+4}, v{T+4}, 4, v{T}''')
        for p in range(8):
            e(f'v_add_u32 v{vOX+p}, {p*9216 - (p&3)*1024}, v{T+3+(p&1)}')
        e(f'''v_lshlrev_b32 v{T+2}, 2, v{T+1}
v_and_b32 v{T+3}, 15, v{L}
v_xor_b32 v{T+2}, v{T+2}, v{T+3}
v_lshlrev_b32 v{T+2}, 4, v{T+2}
s_lshl_b32 s{sT0}, s{sW}, 4
v_add_u32 v{T+4}, s{sT0}, v{T+1}
v_lshl_add_u32 v{T+5}, v{T+4}, 13, v{T+2}''')
        for p in range(4):
            e(f'v_add_u32 v{vOW+p}, {p*(32768-1024)}, v{T+5}')
        e(f'''v_lshrrev_b32 v{T+5}, 3, v{L}
s_lshr_b32 s{sT0}, s{sJ}, 2
s_lshl_b32 s{sT0}, s{sT0}, 5
s_lshl_b32 s{sT1}, s{sW}, 3
s_add_u32 s{sT0}, s{sT0}, s{sT1}
v_add_u32 v{T+5}, s{sT0}, v{T+5}
v_mul_u32_u24 v{T+5}, 1152, v{T+5}
v_and_b32 v{T+2}, 7, v{L}
v_lshl_add_u32 v{vCo}, v{T+2}, 4, v{T+5}
s_and_b32 s{sT0}, s{sJ}, 3
s_lshl_b32 s{sT0}, s{sT0}, 4
s_lshl_b32 s{sT1}, s{sW}, 2
s_add_u32 s{sT0}, s{sT0}, s{sT1}
v_add_u32 v{T+5}, s{sT0}, v{T+1}
v_lshlrev_b32 v{T+5}, 13, v{T+5}
v_and_b32 v{T+2}, 15, v{L}
v_lshl_add_u32 v{vCo+1}, v{T+2}, 4, v{T+5}''')
        if cfg.mapx:
            e(f'''v_lshrrev_b32 v{T+5}, 3, v{L}
s_lshl_b32 s{sT0}, s{sJ}, 3
v_add_u32 v{T+5}, s{sT0}, v{T+5}
v_mul_u32_u24 v{T+5}, 1152, v{T+5}
v_and_b32 v{T+2}, 7, v{L}
v_lshl_add_u32 v{vCo}, v{T+2}, 4, v{T+5}''')
        e('s_waitcnt lgkmcnt(0)')
        self.stamp('karg')
        if cfg.l1inv:
            e(f's_cmp_eq_u32 s{sW}, 0\ns_cbranch_scc0 L_noinv\nbuffer_inv sc1', trace=False)
            self.p('L_noinv:')
        e(f'''s_mul_i32 s{sT0}, s{sB}, 294912
s_add_u32 s{sX}, s4, s{sT0}
s_addc_u32 s{sX+1}, s5, 0
s_mov_b32 s{sX+2}, 294912
s_mov_b32 s{sX+3}, 0x20000
s_lshl_b32 s{sT0}, s{sH}, 8
s_add_u32 s{sWq}, s10, s{sT0}
s_addc_u32 s{sWq+1}, s11, 0
s_sub_u32 s{sWq+2}, 4718592, s{sT0}
s_mov_b32 s{sWq+3}, 0x20000
s_mov_b32 s{sWS}, s18
s_mov_b32 s{sWS+1}, s19
s_mov_b32 s{sWS+2}, 0x8000000
s_mov_b32 s{sWS+3}, 0x20000''')
        e(f's_lshl_b32 s{sW8K}, s{sW}, 13')
        def coop(c):
            if cfg.mapx:
                if c >= 3: return []
                d = 44 + 4 * c
                return [f's_lshl_b32 s{sT1}, s{sW}, 7', f'buffer_load_dwordx4 v[{d}:{d+3}], v{vCo}, s[{sX}:{sX+3}], s{sT1} offen offset:{c*512} ; @tag CO{c}']
            d = 44 + 8 * c if c < 6 else 96 + 8 * (c - 6) if c < 8 else 120
            return [f's_mov_b32 s{sT1}, {c*524288}', f'buffer_load_dwordx4 v[{d}:{d+3}], v{vCo+1}, s[{sWq}:{sWq+3}], s{sT1} offen ; @tag CO{c}',
                    f'buffer_load_dwordx4 v[{d+4}:{d+7}], v{vCo}, s[{sX}:{sX+3}], 0 offen offset:{c*128} ; @tag CO{c}']
        for c in cfg.coop_pre: e(coop(c))
        self.code_prefetch(1)
        self.coop = coop
        self.stamp('dma0')
        e(f'''s_lshl_b32 s{sT0}, s{sB}, 5
s_add_u32 s{sT0}, s{sT0}, s{sH}
s_lshl_b32 s{sT0}, s{sT0}, 18''')
        if cfg.kv_same: e(f's_mov_b32 s{sT0}, 0')
        e(f'''s_add_u32 s{sK}, s6, s{sT0}
s_addc_u32 s{sK+1}, s7, 0
s_mov_b32 s{sK+2}, 262144
s_mov_b32 s{sK+3}, 0x20000
s_add_u32 s{sV}, s8, s{sT0}
s_addc_u32 s{sV+1}, s9, 0
s_mov_b32 s{sV+2}, 262144
s_mov_b32 s{sV+3}, 0x20000''')
        e(f'''s_mul_i32 s{sT0}, s{sKg}, {512*1152}
s_mul_i32 s{sT1}, s{sNb}, 288
s_add_u32 s{sT0}, s{sT0}, s{sT1}
s_add_u32 s{sWo}, s12, s{sT0}
s_addc_u32 s{sWo+1}, s13, 0
s_sub_u32 s{sWo+2}, 4718592, s{sT0}
s_mov_b32 s{sWo+3}, 0x20000
s_mov_b32 s{sOut}, s14
s_mov_b32 s{sOut+1}, s15
s_mov_b32 s{sOut+2}, 2359296
s_mov_b32 s{sOut+3}, 0x20000''')
        e(kv_dma_addr())
        self.stamp('cw0')
        if cfg.coop_wait is not None: e(f's_waitcnt vmcnt({self.vm_need({f"CO{cfg.coop_wait}"})})')
        self.stamp('cw1')
        for g in dma_W(0) + dma_X(0): e(g)
        for c in cfg.coop_mid: e(self.coop(c))
        self.code_prefetch(2)
        self.stamp('d0')
        e(f'''v_lshrrev_b32 v{T}, 4, v{L}
v_bfe_u32 v{T+1}, v{L}, 2, 2
v_and_b32 v{T+2}, 3, v{L}
v_and_b32 v{T+3}, 15, v{L}''')
        e(f'''v_lshl_add_u32 v{T+4}, v{T}, 3, v{T+1}
v_lshlrev_b32 v{T+4}, 8, v{T+4}
v_lshl_add_u32 v{T+4}, v{T+2}, 4, v{T+4}
v_add_u32 v{T+4}, {WS[0]}, v{T+4}''')
        for ds in range(4):
            e(f'v_xor_b32 v{T+5}, {ds}, v{T+1}\nv_lshl_add_u32 v{vWA+ds}, v{T+5}, 6, v{T+4}')
        if NWS() == 4:
            for ds in range(4): e(f'v_subrev_u32 v{vWB+ds}, {WS[0]-WS[3]}, v{vWA+ds}')
        e(f'''s_lshl_b32 s{sT0}, s{sW}, 13
s_add_u32 s{sT0}, s{sT0}, {XS[0]}
v_lshlrev_b32 v{T+4}, 7, v{T+3}
v_add_u32 v{T+4}, s{sT0}, v{T+4}
v_lshrrev_b32 v{vT2}, 1, v{T+3}''')
        for n in range(2):
            e(f'''v_add_u32 v{T+5}, {4*n}, v{T}
v_xor_b32 v{T+5}, v{T+5}, v{vT2}
v_lshl_add_u32 v{vXA+n}, v{T+5}, 4, v{T+4}''')
        e(kv_read_addr())
        cbits = '0x%08x' % int.from_bytes(struct.pack('<f', math.log2(math.e) / math.sqrt(128.0)), 'little')
        e(f's_mov_b32 s{sC}, {cbits}\ns_mov_b32 s{sC+1}, {cbits}')
        e(f'v_mov_b32 v{T+5}, 0x3f803f80')
        for i in range(4): e(f'v_accvgpr_write_b32 a{aOnes+i}, v{T+5}')
        for i in range(4): e(f'v_accvgpr_write_b32 a{aZero+i}, 0')
        for i in range(4): e(f'v_mov_b32 v{vMG+i}, 0xff800000')
        e(f's_mov_b32 s{sPass}, 0\ns_mov_b32 s{sMode}, 0')
        for g in dma_W(1) + dma_X(1): e(g)
        self.code_prefetch(3)
        if cfg.wmall:
            e(f'''s_mul_i32 s{sT0}, s2, 18432
s_mul_i32 s{sT1}, s{sW}, 4608
s_add_u32 s{sT0}, s{sT0}, s{sT1}
s_lshl_b32 s{sT1}, s{sH}, 8
s_sub_u32 s{sT0}, s{sT0}, s{sT1}
v_lshlrev_b32 v{T+5}, 4, v{L}''')
            for i in range(5):
                e(f'buffer_load_dwordx4 v[{56+4*i}:{59+4*i}], v{T+5}, s[{sWq}:{sWq+3}], s{sT0} offen offset:{min(i*1024, 3584)} ; @tag WM')
        self.stamp('d1')
        e(f'''s_lshl_b32 s{sT0}, s{sB}, 5
s_add_u32 s{sT0}, s{sT0}, s{sH}
s_lshl_b32 s{sT0}, s{sT0}, 7
s_add_u32 s{sT0}, s{sT0}, {FBASE}
v_mov_b32 v{T+2}, 0
v_and_b32 v{T+3}, 15, v{L}
v_lshlrev_b32 v{T+5}, 2, v{T+3}
v_bfe_u32 v{T+1}, v{L}, 4, 1
v_mul_u32_u24 v{T+1}, {FTWIN}, v{T+1}
v_add_u32 v{T+5}, v{T+5}, v{T+1}
v_cmp_gt_u32 vcc, 32, v{L}
v_mov_b32 v{T+4}, 0x7fffffff
s_cmp_eq_u32 s{sW}, 0
s_cselect_b64 vcc, vcc, 0
s_nop 1
v_cndmask_b32 v{T+5}, v{T+4}, v{T+5}, vcc
buffer_store_dword v{T+2}, v{T+5}, s[{sWS}:{sWS+3}], s{sT0} offen sc1 ; @tag CLR''')

    def phase1(self):
        e = self.e
        self.stamp('p1wait')
        n0 = self.vm_need({'X0', 'W0'})
        e(f's_waitcnt vmcnt({n0})\ns_barrier')
        self.stamp('p1go')
        e(p1_reads(0, 0, 0))
        def one(G, m0, extra=()):
            G = [[x] for x in G]
            G[0] = [m0] + list(extra) + (['s_nop 0'] if not extra else []) + G[0]
            return G
        K0 = one(dma_K(0, 0, f's{sKsoff}'), f's_mov_b32 m0, s{sW4K}', [f's_mov_b32 s{sKsoff}, s{sRot}'])
        K1 = one(dma_K(1, 1, f's{sKsoff}'), f's_add_u32 m0, s{sW4K}, 16384', [f's_add_u32 s{sKsoff}, s{sRot}, 16384', f's_and_b32 s{sKsoff}, s{sKsoff}, 0x3ffff'])
        K2 = one(dma_K(2, 2, f's{sKsoff}'), f's_add_u32 m0, s{sW4K}, {2*16384}', [f's_add_u32 s{sKsoff}, s{sRot}, {2*16384}', f's_and_b32 s{sKsoff}, s{sKsoff}, 0x3ffff'])
        V0 = one(dma_V(0, 1, f's{sVsoff}'), f's_add_u32 m0, s{sW4K}, {LDS_V+16384}', [f's_add_u32 s{sVsoff}, s{sRot}, 8192', f's_and_b32 s{sVsoff}, s{sVsoff}, 0x3ffff'])
        V1 = one(dma_V(1, 2, f's{sVsoff}'), f's_add_u32 m0, s{sW4K}, {LDS_V+2*16384}', [f's_add_u32 s{sVsoff}, s{sRot}, {8192+16384}', f's_and_b32 s{sVsoff}, s{sVsoff}, 0x3ffff'])
        Vm = [[f's_lshl_b32 s{sT2}, s{sW}, 11', f's_add_u32 m0, s{sT2}, {LDS_V + 8192}', f's_sub_u32 s{sT2}, s{sRot}, s{sT2}']]
        for p in range(2):
            a = lambda w, p=p: LDS_V + 8192 + w * 2048 + p * 1024
            ins = f'buffer_load_dwordx4 v{vDV+p}, s[{sV}:{sV+3}], s{sT2} offen offset:{p*1024}{cfg.kv_flag} lds ; @dma Vm1 {kb(a)}'
            if p == 0: Vm[0].append(ins)
            else: Vm.append([ins])
        plan = {}
        rest = [c for c in range(9) if c not in cfg.coop_pre and c not in cfg.coop_mid and c not in cfg.coop_skip]
        plan[(0, 0)] = [self.coop(c) for c in rest] + dma_W(2)
        for c in range(9):
            g1 = []
            if c + 2 <= 8: g1 += dma_X(c + 2)
            plan[(c, 1)] = g1
            if NWS() == 3 and c + 3 <= 8: plan[(c + 1, 0)] = dma_W(c + 3)
        if NWS() == 4:
            plan[(0, 0)] = plan[(0, 0)] + dma_W(3)
            plan[(2, 0)] = dma_W(4) + dma_W(5)
            plan[(4, 0)] = dma_W(6) + dma_W(7)
            plan[(5, 0)] = dma_W(8)
        K3 = one(dma_K(3, 3, f's{sKsoff}'), f's_add_u32 m0, s{sW4K}, {3*16384}', [f's_add_u32 s{sKsoff}, s{sRot}, {3*16384}', f's_and_b32 s{sKsoff}, s{sKsoff}, 0x3ffff'])
        V2 = one(dma_V(2, 3, f's{sVsoff}'), f's_add_u32 m0, s{sW4K}, {LDS_V+3*16384}', [f's_add_u32 s{sVsoff}, s{sRot}, {8192+2*16384}', f's_and_b32 s{sVsoff}, s{sVsoff}, 0x3ffff'])
        self.prefill = K0 + Vm + K1 + V0 + V1 + K2 + (V2 + K3 if cfg.D == 3 else [])
        plan[cfg.kv0_at] = plan.get(cfg.kv0_at, []) + K0 + Vm
        plan[cfg.k1_at] = plan.get(cfg.k1_at, []) + K1
        if cfg.womall:
            g0 = [f's_mul_i32 s63, s{sKg}, {512*1152}', f's_mul_i32 s60, s{sNb}, 288', 's_add_u32 s63, s63, s60', f's_sub_u32 s60, s{sWo}, s63', f's_subb_u32 s61, s{sWo+1}, 0',
                  's_mul_i32 s63, s2, 18432', f's_mul_i32 s62, s{sW}, 4608', 's_add_u32 s63, s63, s62', f'v_lshlrev_b32 v{vT+3}, 4, v{vLane}', f'v_add_u32 v{vT+3}, s63, v{vT+3}']
            WM = [[f'global_load_dwordx4 a[{164+4*i}:{167+4*i}], v{vT+3}, s[60:61] offset:{min(i*1024, 3584)} ; @tag WM'] for i in range(5)]
            WM[0] = g0 + WM[0]
            plan[cfg.womall] = plan.get(cfg.womall, []) + WM
        plan[(8, 0)] = V0
        if cfg.late_mode == 0:
            plan[(8, 1)] = V1
            self.late_kv = K2 + (V2 + K3 if cfg.D == 3 else []); self.last_kv = []
        elif cfg.late_mode == 1:
            self.late_kv = []; self.last_kv = V1 + K2
        else:
            plan[(8, 1)] = V1
            self.late_kv = []; self.last_kv = K2
        from g2p3 import wo_setup, p3_scalars
        fill = wo_setup() + p3_scalars()
        for c in range(9):
            for n in range(2):
                e(p1_kstep(self, c, n, plan.get((c, n), []), last=(c == 8), fill=(fill if c >= 1 else None)))
            if c == 7: assert not fill
            if c == 3:
                e(f'''s_lshl_b32 s{sT3}, s{sB}, 5
v_mov_b32 v{vT+4}, s{sT3}
v_mov_b32 v{vT+5}, 1
s_cmp_eq_u32 s{sW}, 0
s_cbranch_scc0 L_noreg
s_mov_b64 exec, 1
global_atomic_add v{vT+4}, v{vT+5}, s[16:17] sc1
s_mov_b64 exec, -1''', trace=False)
                self.p('L_noreg:')
            if c == 5: self.stamp('p1c6')
            self.stamp(f'c{c}')
        self.stamp('p1end')
        self.late_kv_pending = self.late_kv; self.late_kv = []
        assert not self.late_kv
    QK = [0, 17, 34, 42]
    PV = [50, 59, 8, 25]
    LS = [58, 67, 16, 33]
    EX = [11, 29, 45, 63]
    VG = [26, 27, 27, 28, 28, 30, 30, 32, 34, 34, 36, 38, 38, 40, 42, 42]
    KG = [44, 46, 46, 50, 50, 52, 54, 54]
    def step(self, k, par, kind='full', extra=None):
        NS = 68
        Sl = Slots(NS)
        it = k // 2; ktile = it + 1; vtile = it
        last = kind == 'last'
        for qt in range(4):
            if not last:
                for m in range(8):
                    ds, kt = m >> 1, m & 1
                    Sl.mf[self.QK[qt] + m] = mfma(vr(S(qt, kt), 4), ar(Kf(m), 4), ar(Qf(qt, ds), 4), vr(CI(qt) if ds == 0 else S(qt, kt), 4))
            if not last or qt >= 2:
                for dt in range(8):
                    Sl.mf[self.PV[qt] + dt] = mfma(vr(O(dt, qt), 4), ar(Vf(dt), 4), vr(P(qt), 4), vr(O(dt, qt), 4))
                Sl.mf[self.LS[qt]] = mfma(vr(LA(qt), 4), ar(aOnes, 4), vr(P(qt), 4), vr(LA(qt), 4))
        mem = [[] for _ in range(NS)]; alu = [[] for _ in range(NS)]
        def put(g, ins):
            g %= NS
            mn = ins.split()[0]
            (mem if mn.startswith('ds_') or mn.startswith('buffer_') or mn.startswith('global_') else alu)[g].append(ins)
        for qt in range(4):
            for i in range(8):
                g = self.EX[qt] + 2 * i
                if last and g < NS: continue
                r = S(qt, i >> 2) + (i & 3)
                put(g, f'v_exp_f32{cfg.exp_enc} v{r}, v{r}')
            for n in range(4):
                g = self.EX[qt] + 4 * n + 3
                if last and g < NS: continue
                r = S(qt, n >> 1) + 2 * (n & 1)
                if last and Sl.mf[g % NS] is None: put(g, 's_nop 0')
                put(g, f'v_cvt_pk_bf16_f32 v{P(qt)+n}, v{r}, v{r+1}')
        if last: Sl.pre[8].append('s_nop 1')
        if not last:
            for n in range(16):
                dt, u = n >> 1, n & 1
                put(self.VG[n], f'ds_read_b64_tr_b16 a[{Vf(dt)+2*u}:{Vf(dt)+2*u+1}], v{vVA+dt} offset:{par*8192+u*4096}')
            if kind == 'full':
                for m in range(8):
                    ds, kt = m >> 1, m & 1
                    put(self.KG[m], f'ds_read_b128 a[{Kf(m)}:{Kf(m)+3}], v{vKA+ds} offset:{par*8192+kt*4096}')
            nk = sum(1 for g in self.KG if g <= 48) if kind == 'full' else 0
            Sl.pre[49].append(f's_waitcnt lgkmcnt({nk})')
            if kind == 'full': Sl.pre[67].append('s_waitcnt lgkmcnt(0)')
            if par == 0:
                Sl.pre[1] += ['s_waitcnt vmcnt(VMW)', 's_barrier']
                for dt in range(8): put([2, 4, 4, 6, 8, 8, 10, 14][dt], f'v_xor_b32{cfg.exp_enc} v{vVA+dt}, s{sXor}, v{vVA+dt}')
                for ds in range(4): put([18, 20, 20, 22][ds], f'v_xor_b32{cfg.exp_enc} v{vKA+ds}, s{sXor}, v{vKA+ds}')
        if extra:
            for g, L in extra.items():
                mem[g % NS] += L
        ab = cfg.ablate
        if ab and kind == 'full':
            if 'exp' in ab: alu = [[x for x in a if not x.startswith('v_exp')] for a in alu]
            if 'cvt' in ab: alu = [[x for x in a if not x.startswith('v_cvt')] for a in alu]
            if 'vrd' in ab: mem = [[x for x in a if not x.startswith('ds_read_b64')] for a in mem]
            if 'krd' in ab: mem = [[x for x in a if not x.startswith('ds_read_b128')] for a in mem]
            if 'dma' in ab: mem = [[x for x in a if not x.startswith('buffer_load')] for a in mem]
            if 'lsum' in ab:
                for qt in range(4): Sl.mf[self.LS[qt]] = None
        for g in range(NS): Sl.post[g] = mem[g] + alu[g]
        if cfg.pad and not last:
            for g in range(3, NS, max(1, NS // cfg.pad)): Sl.post[g].append('s_nop 3')
        self.last_load = Sl.load()
        return Sl.out()

    def kv_extra(self, it, par, doK=True, doV=True):
        slot = (it + 1 + cfg.D) & 3
        X = {}
        if par == 0:
            X.setdefault(61, []).append(f's_and_b32 s{sVsoff}, s{sVsoff}, 0x3ffff')
            if doK:
                D = dma_K(it + 1 + cfg.D, slot, f's{sKsoff}')
                X[12] = [f's_mov_b32 m0, s{sDma}']
                for g, d in zip((16, 24, 58, 64), D): X.setdefault(g, []).append(d)
                X.setdefault(64, []).append(f's_add_u32 s{sKsoff}, s{sKsoff}, 16384')
        else:
            X.setdefault(12, []).append(f's_and_b32 s{sKsoff}, s{sKsoff}, 0x3ffff')
            if doV:
                D = dma_V(it + cfg.D, slot, f's{sVsoff}')
                X[0] = [f's_add_u32 s{sT0}, s{sDma}, {LDS_V}']
                X[4] = [f's_mov_b32 m0, s{sT0}']
                for g, d in zip((8, 20, 58, 64), D): X.setdefault(g, []).append(d)
                X.setdefault(64, []).append(f's_add_u32 s{sVsoff}, s{sVsoff}, 16384')
            if cfg.D == 2:
                X.setdefault(61, []).append(f's_xor_b32 s{sXor}, s{sXor}, 0x8000')
                X.setdefault(62, []).append(f's_xor_b32 s{sDma}, s{sDma}, s{sXor}')
            else:
                X.setdefault(61, []).append(f's_xor_b32 s{sDma}, s{sDma}, s{sXor}')
                X.setdefault(62, []).append(f's_xor_b32 s{sXor}, s{sXor}, 0x8000')
            X.setdefault(62, []).append(f's_add_u32 s{sIter}, s{sIter}, 1')
        return X

    def phase2(self):
        e = self.e
        def qk0(qt):
            return [mfma(vr(S(qt, m & 1), 4), ar(Kf(m), 4), ar(Qf(qt, m >> 1), 4), '0' if m < 2 else vr(S(qt, m & 1), 4)) for m in range(8)]
        def weave(valu, mf, lead=2):
            o = []; n = len(valu); step_ = max(1, (n - lead) // max(1, len(mf))); j = 0
            for i, x in enumerate(valu):
                o.append(x)
                if i >= lead and (i - lead) % step_ == 0 and j < len(mf): o += mf[j] if isinstance(mf[j], list) else [mf[j]]; j += 1
            for x in mf[j:]: o += x if isinstance(x, list) else [x]
            return o
        kreads = kreads0
        vreads = vreads0()
        zero = lambda qt: [mfma(vr(O(dt, qt), 4), ar(aZero, 4), ar(aZero, 4), '0') for dt in range(8)] + [mfma(vr(LA(qt), 4), ar(aZero, 4), ar(aZero, 4), '0')]
        wait0 = f's_waitcnt vmcnt({self.vm_need({"K0", "Vm1"})})'
        late = self.late_kv_pending
        if cfg.epi_early:
            e(kreads0(0)[4:])
            e('s_nop 1')
            E1 = epi(1)
            e(E1[:8]); e('s_waitcnt lgkmcnt(0)')
            e(weave(E1[8:], qk0(0)))
        else:
            e('s_nop 3')
            e(wait0); e('s_barrier')
            self.stamp('q0')
            e(kreads(0)); e(vreads)
            e(epi(0))
            self.stamp('q1')
            e('s_waitcnt lgkmcnt(15)\ns_waitcnt lgkmcnt(0)')
            e(weave(epi(1), qk0(0)))
        h_ = len(late) // 2
        e(weave(epi(2), qk0(1) + [g for g in late[:h_]]))
        e(weave(epi(3), qk0(2) + [g for g in late[h_:]]))
        self.stamp('q2')
        e('s_branch L_p2q3', trace=False)
        self.p('L_p2start:')
        R = [wait0, 's_barrier'] + kreads(0) + vreads + ['s_waitcnt lgkmcnt(0)'] + qk0(0) + qk0(1) + qk0(2)
        self.e([x.split(';')[0].strip() for x in R], trace=False)
        self.p('L_p2q3:')
        q3 = qk0(3); k1 = kreads(8192)
        z = zero(2) + zero(3)
        e('s_nop 1')
        for m in range(8):
            e(q3[m]); e(k1[m]); e(z[2*m:2*m+2])
        e(z[16:])
        self.stamp('q3')
        for qt in range(4):
            a, b = S(qt, 0), S(qt, 1); m = vT + qt
            e(f'v_max3_f32 v{m}, v{a}, v{a+1}, v{vMG+qt}\nv_max3_f32 v{m}, v{m}, v{a+2}, v{a+3}\nv_max3_f32 v{m}, v{m}, v{b}, v{b+1}\nv_max3_f32 v{m}, v{m}, v{b+2}, v{b+3}')
        for sw in ('v_permlane32_swap_b32', 'v_permlane16_swap_b32'):
            for qt in range(4): e(f'v_mov_b32 v{vC+qt}, v{vT+qt}')
            e('s_nop 0')
            for qt in range(4): e(f'{sw} v{vT+qt}, v{vC+qt}')
            for qt in range(4): e(f'v_max_f32 v{vT+qt}, v{vT+qt}, v{vC+qt}')
        def adds(qt): return [f'v_add_f32 v{S(qt,0)+i}, v{S(qt,0)+i}, v{CI(qt)}' for i in range(8)]
        def exps(qt, n=8): return [f'v_exp_f32 v{S(qt,0)+i}, v{S(qt,0)+i}' for i in range(n)]
        def cvts(qt, n=4): return [f'v_cvt_pk_bf16_f32 v{P(qt)+j}, v{S(qt, j >> 1) + 2 * (j & 1)}, v{S(qt, j >> 1) + 2 * (j & 1) + 1}' for j in range(n)]
        def pv0(qt): return [mfma(vr(O(dt, qt), 4), ar(Vf(dt), 4), vr(P(qt), 4), '0') for dt in range(8)] + [mfma(vr(LA(qt), 4), ar(aOnes, 4), vr(P(qt), 4), '0')]
        for qt in range(4): e(f'v_sub_f32 v{CI(qt)}, 0, v{vT+qt}')
        cin = [f'v_mov_b32 v{CI(qt)+r}, v{CI(qt)}' for qt in range(4) for r in range(1, 4)]
        e(adds(0)); e(exps(0)); e(adds(1)); e(cvts(0))
        self.stamp('q4')
        e('s_waitcnt lgkmcnt(0)')
        e(weave(exps(1) + adds(2) + cvts(1) + adds(3), pv0(0), lead=0))
        e(weave(exps(2) + exps(3, 3) + cin[:2] + cvts(2) + cvts(3, 1) + cin[2:], pv0(1), lead=1))
        for g in self.last_kv: e(g)
        e(f'''s_mov_b32 s{sXor}, 0x4000
s_add_u32 s{sDma}, s{sW4K}, {((1+cfg.D)&3)*16384}
s_add_u32 s{sKsoff}, s{sRot}, {(1+cfg.D)*16384}
s_and_b32 s{sKsoff}, s{sKsoff}, 0x3ffff
s_add_u32 s{sVsoff}, s{sRot}, {8192+cfg.D*16384}
s_and_b32 s{sVsoff}, s{sVsoff}, 0x3ffff
s_mov_b32 s{sIter}, 0''')
        self.stamp('p2loop')
        self.p(f'.p2align {cfg.loop_align}')
        for _ in range(cfg.loop_nop): self.p('s_nop 0')
        self.p('L_p2:')
        texts = []
        NL = 12
        for it in range(NL):
            L = self.step(2 * it, 0, 'full', self.kv_extra(it, 0)); l0 = self.last_load
            L += self.step(2 * it + 1, 1, 'full', self.kv_extra(it, 1)); l1 = self.last_load
            L = [x.replace('VMW', str(8 * (cfg.D - 1))) for x in L]
            L += [f's_cmp_lt_u32 s{sIter}, {NL}', 's_cbranch_scc1 L_p2']
            texts.append([x.split(';')[0].strip() for x in L])
            if it == 0:
                self.p(L); self.loop_body = L
                print('gap load step0:', l0); print('gap load step1:', l1)
            self.tr.extend(L)
        assert all(t == texts[0] for t in texts)
        self.stamp('p2peel')
        from g2p3 import peeled_tail
        peeled_tail(self)

    def fallback(self):
        e = lambda x: self.e(x, trace=False)
        self.p('L_fallback:')
        e('s_waitcnt vmcnt(0) lgkmcnt(0)\ns_barrier')
        e(kv_dma_addr()); e(kv_read_addr())
        for i in range(4): e(f'v_mov_b32 v{vMG+i}, 0xff800000')
        e(f's_mov_b32 s{sKsoff}, s{sW4K}')
        self.p('L_fb_loop:')
        e(f's_mov_b32 m0, s{sW4K}\ns_nop 0')
        e([x.split(';')[0] for x in dma_K(0, 0, f's{sKsoff}')])
        e('s_waitcnt vmcnt(0)\ns_barrier')
        for half in range(2):
            for m in range(8):
                ds, kt = m >> 1, m & 1
                e(f'ds_read_b128 a[{Kf(m)}:{Kf(m)+3}], v{vKA+ds} offset:{half*8192+kt*4096}')
            e('s_waitcnt lgkmcnt(0)')
            for qt in range(4):
                for m in range(8):
                    ds, kt = m >> 1, m & 1
                    e(mfma(vr(S(qt, kt), 4), ar(Kf(m), 4), ar(Qf(qt, ds), 4), '0' if ds == 0 else vr(S(qt, kt), 4)))
            e('s_nop 7')
            for qt in range(4):
                a, b = S(qt, 0), S(qt, 1); m = vMG + qt
                e(f'v_max3_f32 v{m}, v{m}, v{a}, v{a+1}\nv_max3_f32 v{m}, v{m}, v{a+2}, v{a+3}\nv_max3_f32 v{m}, v{m}, v{b}, v{b+1}\nv_max3_f32 v{m}, v{m}, v{b+2}, v{b+3}')
        e(f's_barrier\ns_add_u32 s{sKsoff}, s{sKsoff}, 16384\ns_cmp_lt_u32 s{sKsoff}, 262144\ns_cbranch_scc1 L_fb_loop')
        for g in self.prefill: e([x.split(';')[0] for x in g])
        e(f's_mov_b32 s{sMode}, 1\ns_branch L_p2start')

    def finish_stamps(self):
        if not cfg.stamps: return
        e = self.e
        if cfg.dbgstamps:
            e('s_waitcnt lgkmcnt(0)', trace=False)
            for n_, (wg, base) in enumerate(zip(cfg.dbgstamps, (1, 5, 9, 12))):
                e(f's_cmp_eq_u32 s2, {wg}\ns_cbranch_scc0 L_nodbg{n_}\ns_cmp_eq_u32 s{sW}, 0\ns_cbranch_scc0 L_nodbg{n_}', trace=False)
                vals = [(stamp_reg(1), stamp_reg(0)), (stamp_reg(2), stamp_reg(0)), (stamp_reg(2) + 2, stamp_reg(1) + 2)]
                for i, (x, y) in enumerate(vals):
                    e(f's_sub_u32 s{sT0}, s{x}, s{y}\nv_mov_b32 v{vT+2}, s{sT0}\nv_mov_b32 v{vT}, {4*(base+i)}\nglobal_store_dword v{vT}, v{vT+2}, s[16:17]', trace=False)
                self.p(f'L_nodbg{n_}:')
            return
        e(f'''s_waitcnt lgkmcnt(0)
s_lshl_b32 s{sT0}, s2, 2
s_add_u32 s{sT0}, s{sT0}, s{sW}
s_lshl_b32 s{sT0}, s{sT0}, 8
s_add_u32 s{sT0}, s{sT0}, {STAMPBASE}
s_add_u32 s18, s18, s{sT0}
s_addc_u32 s19, s19, 0
v_mov_b32 v{vT}, 0''')
        for i in range(self.nstamp):
            for j in range(4): e(f'v_mov_b32 v{vT+2+j}, s{stamp_reg(i)+j}')
            e(f'global_store_dwordx4 v{vT}, v[{vT+2}:{vT+5}], s[18:19] offset:{16*i}\ns_nop 1')

def build():
    k = Kernel()
    k.header(); k.setup(); k.phase1(); k.phase2()
    from g2p3 import phase3
    phase3(k)
    k.stamp('end')
    k.finish_stamps()
    k.e('s_endpgm', trace=False)
    k.fallback()
    k.footer()
    return k

def main():
    import argparse
    ap = argparse.ArgumentParser()
    ap.add_argument('-o', default=f'cdna_kernels/{NAME}.s')
    ap.add_argument('--stamps', default='')
    ap.add_argument('--set', action='append', default=[])
    a = ap.parse_args()
    cfg.stamps = a.stamps.split(',') if a.stamps else False
    for kv in a.set:
        kk, vv = kv.split('=', 1)
        try: vv = eval(vv)
        except Exception: pass
        setattr(cfg, kk, vv)
    k = build()
    errs = simulate(k.tr, 'trace')
    errs += check_hazards(k.tr, 'haz')
    txt = k.p.text()
    txt = txt.replace('CODEOFF', f'((L_pc - {NAME}_kernel) & 0xffffff00)').replace('CODELEN', f'(L_codeend - {NAME}_kernel - 128)')
    open(a.o, 'w').write(txt)
    print('written', a.o, 'errors:', len(errs), 'trace len', len(k.tr))
```

```python
from asmlib import *
import g2 as G
from g2 import cfg, mfma, kb, Slots

REG = [13, 14, 0, 1, 2, 7, 3, 4, 8, 9, 5, 6, 10, 11, 12, 15]
WSLOT = {'t12': (0, 3), 't13': (3, 3), 't14': (6, 4), 't15': (10, 3), 'tP': (13, 3)}
WNAME = list(WSLOT)
def rbase(j):
    if j < 7: return j * 9216
    if j < 15: return 81920 + (j - 7) * 9216
    return 65536
sWoB = 4
sWoS = 9
sPh = 96
sOst = 99; sPst = 100; sFl = 101; sCnt = 59
sCB = 14; sOB = 15
vWoD = G.vWoD
aWoD = 240
vR = 8
vAd = 12
vOwn = 32
vD = 112
aPart = 0
aA = 192
def D(nt, qt): return vD + (nt * 4 + qt) * 4
def Own(qt, ks): return vOwn + (qt * 4 + ks) * 4
def Part(hp, qt, ks): return aPart + hp * 64 + (qt * 4 + ks) * 4

def wo_setup():
    T = G.vT; L = G.vLane
    out = []
    for p in range(9):
        out += [f'v_add_u32 v{T}, {64*p}, v{L}', f'v_mul_u32_u24 v{T+1}, 3641, v{T}', f'v_lshrrev_b32 v{T+1}, 16, v{T+1}',
                f'v_mul_u32_u24 v{T+2}, 18, v{T+1}', f'v_sub_u32 v{T+2}, v{T}, v{T+2}', f'v_mul_u32_u24 v{T+1}, 1152, v{T+1}',
                f'v_lshl_add_u32 v{T+1}, v{T+2}, 4, v{T+1}']
        if p % 4: out.append(f'v_subrev_u32 v{T+1}, {(p%4)*1024}, v{T+1}')
        out.append(f'v_accvgpr_write_b32 a{aWoD+p}, v{T+1}')
    for i, name in enumerate(WNAME):
        c0, nw = WSLOT[name]
        t = [rbase(REG[c0 + min(w, nw - 1)]) for w in range(4)]
        out += [f's_mov_b32 s{sWoB+i}, {t[0]}']
        for w in range(1, 4): out += [[f's_cmp_eq_u32 s{G.sW}, {w}', f's_cselect_b32 s{sWoB+i}, {t[w]}, s{sWoB+i}']]
        out += [f's_add_u32 s{G.sT1}, s{G.sW}, {c0}', f's_lshr_b32 s{G.sT0}, s{G.sT1}, 2', f's_add_u32 s{G.sT0}, s{G.sT0}, s{G.sNb}', f's_and_b32 s{G.sT0}, s{G.sT0}, 3',
                f's_lshl_b32 s{G.sT0}, s{G.sT0}, 2', f's_and_b32 s{G.sT1}, s{G.sT1}, 3', f's_add_u32 s{G.sT0}, s{G.sT0}, s{G.sT1}', f's_mul_i32 s{sWoS+i}, s{G.sT0}, {32*1152}']
    return out

def p3_scalars():
    t0, t1 = G.sT0, G.sT1
    o = f'''s_lshl_b32 s{sFl}, s{G.sB}, 5
s_add_u32 s{sFl}, s{sFl}, s{G.sH}
s_lshl_b32 s{sOst}, s{sFl}, 2
s_add_u32 s{sOst}, s{sOst}, s{G.sW}
s_lshl_b32 s{sOst}, s{sOst}, 14
s_lshl_b32 s{sFl}, s{sFl}, 7
s_add_u32 s{sFl}, s{sFl}, {G.FBASE}
s_add_u32 s91, s{sFl}, {G.FTWIN}'''.split('\n')
    for hp in range(3):
        o += f'''s_add_u32 s{t0}, s{G.sNb}, {hp+1}
s_and_b32 s{t0}, s{t0}, 3
s_lshl_b32 s{t1}, s{G.sKg}, 2
s_add_u32 s{t0}, s{t0}, s{t1}
s_lshl_b32 s{t1}, s{G.sB}, 5
s_add_u32 s{t0}, s{t0}, s{t1}
s_lshl_b32 s{t0}, s{t0}, 2
s_add_u32 s{t0}, s{t0}, s{G.sW}
s_lshl_b32 s{sPh+hp}, s{t0}, 14'''.split('\n')
    o += f'''s_lshl_b32 s{t0}, s{G.sB}, 2
s_add_u32 s{t0}, s{t0}, s{G.sNb}
s_lshl_b32 s{t0}, s{t0}, 3
s_lshl_b32 s{t1}, s{G.sW}, 1
s_add_u32 s{t1}, s{t0}, s{t1}
s_lshl_b32 s{t1}, s{t1}, 4
s_add_u32 s{t1}, s{t1}, s{G.sKg}
s_mul_i32 s{sPst}, s{t1}, 5120
s_add_u32 s{sPst}, s{sPst}, {G.PBASE}
s_add_u32 s{t0}, s{t0}, s{G.sKg}
s_mul_i32 s{sCB}, s{t0}, {16*5120}
s_add_u32 s{sCB}, s{sCB}, {G.PBASE}
s_lshr_b32 s{t0}, s{G.sKg}, 1
s_lshl_b32 s{t0}, s{t0}, 2
s_and_b32 s{t1}, s{G.sKg}, 1
s_add_u32 s{t0}, s{t0}, s{t1}
s_lshl_b32 s{t1}, s{G.sB}, 4
s_add_u32 s{t0}, s{t0}, s{t1}
s_mul_i32 s{sOB}, s{t0}, {16*1152}
s_mul_i32 s{t1}, s{G.sNb}, 288
s_add_u32 s{sOB}, s{sOB}, s{t1}'''.split('\n')
    return o

_skip = [0]
def wo_dma(name, vbase=None):
    i = WNAME.index(name); c0, nw = WSLOT[name]
    L = []
    for p in range(9):
        g = []
        if p % 4 == 0: g += [f's_add_u32 m0, s{sWoB+i}, {p*1024}']
        ins = f'buffer_load_dwordx4 v{(vbase or vWoD)+p}, s[{G.sWo}:{G.sWo+3}], s{sWoS+i} offen offset:{(p%4)*1024}{cfg.wo_flag} lds'
        if nw == 4:
            a = lambda w, p=p: rbase(REG[c0 + w]) + p * 1024
            if p % 4 == 0: g.append('s_nop 0')
            g.append(f'{ins} ; @dma WO{name} {kb(a)}')
        else:
            _skip[0] += 1
            g += [f's_cbranch_vccnz L_wsk{_skip[0]}', f'{ins} ;@notrace', f'L_wsk{_skip[0]}:']
        L.append(g)
    return L

def spread(groups, gaps):
    X = {}
    for g, pos in zip(groups, gaps): X.setdefault(pos, []).extend(g)
    return X
def merge(a, b):
    for g, L in b.items(): a.setdefault(g, []).extend(L)
    return a

def peeled_tail(k):
    e = k.e
    cnt = [0]
    def emit(step_lines, tags):
        n = k.vm_need(tags); ni = k.vm_need(tags, incl=True)
        out = []
        for x in step_lines:
            if 'VMW' in x and ni != n:
                cnt[0] += 1
                out += [f's_cbranch_vccnz L_vwa{cnt[0]} ;@skip', x.replace('VMW', str(ni)) + ' ;@skip', f's_branch L_vwb{cnt[0]} ;@skip', f'L_vwa{cnt[0]}:', x.replace('VMW', str(n)), f'L_vwb{cnt[0]}:']
            else: out.append(x.replace('VMW', str(n)))
        emit2(out)
    def emit2(lines):
        for x in lines:
            if '@notrace' in x:
                e(x.replace(' ;@notrace', ''), trace=False); k.nt_marks.append(len(k.tr))
            elif '@skip' in x: e(x.replace(' ;@skip', ''), trace=False)
            elif x.endswith(':') or x.startswith('s_cbranch_vccnz L_wsk'): e(x, trace=False)
            else: e(x)
    k.emit2 = emit2
    reg = [f's_lshl_b32 s{G.sT0}, s{G.sB}, 5', f'v_mov_b32 v{G.vT2}, s{G.sT0}', f'global_load_dword v{G.vT2}, v{G.vT2}, s[16:17] sc1']
    D_ = cfg.D
    assert D_ == 2
    rd = [f'v_accvgpr_read_b32 v{vWoD+p}, a{aWoD+p}' for p in range(9)]
    e(f's_cmp_eq_u32 s{G.sW}, 3\ns_cselect_b64 vcc, -1, 0')
    if cfg.wo_coop:
        Dk = G.dma_K(15, 3, f's{G.sKsoff}')
        X = {2: [rd[0]], 4: [f's_mov_b32 m0, s{G.sDma}'], 6: [rd[1]], 12: [Dk[0], rd[2]], 16: [Dk[1], rd[3]], 24: [Dk[2]], 56: [Dk[3]], 58: [rd[4], rd[5]], 60: [rd[6]], 61: [rd[7], rd[8]],
             62: [f's_and_b32 s{G.sVsoff}, s{G.sVsoff}, 0x3ffff'],
             64: [f's_and_b32 s{G.sT0}, s{G.sJ}, 3', f's_lshl_b32 s{G.sT0}, s{G.sT0}, 2']}
        emit(k.step(24, 0, 'full', X), {'V12', 'K13'})
        Dv = G.dma_V(14, 3, f's{G.sVsoff}')
        co = [f'buffer_load_dwordx4 a[{128+4*p}:{131+4*p}], v{vWoD+p}, s[{G.sWo}:{G.sWo+3}], s{G.sT2} offen offset:{(p%4)*1024}' for p in range(9)]
        X = {0: [f's_add_u32 m0, s{G.sDma}, {G.LDS_V}', f's_add_u32 s{G.sT0}, s{G.sT0}, s{G.sW}'], 2: [Dv[0]], 4: [Dv[1], f's_mul_i32 s{G.sT2}, s{G.sT0}, {32*1152}'], 6: [Dv[2]], 8: [Dv[3]],
             10: [f's_add_u32 s{G.sVsoff}, s{G.sVsoff}, 16384'], 61: [f's_xor_b32 s{G.sXor}, s{G.sXor}, 0x8000'], 62: [f's_xor_b32 s{G.sDma}, s{G.sDma}, s{G.sXor}']}
        X = merge(X, spread([[x] for x in co], [12, 14, 16, 18, 20, 22, 24, 44, 46]))
        X = merge(X, {60: reg[:1]})
        emit(k.step(25, 1, 'full', X), set())
        e(reg[1:])
        k.stamp('it12')
        W = wo_dma('t12') + wo_dma('t13')
        Dv = G.dma_V(15, 0, f's{G.sVsoff}')
        X = {2: [f's_and_b32 s{G.sVsoff}, s{G.sVsoff}, 0x3ffff'], 4: [f's_add_u32 m0, s{G.sDma}, {G.LDS_V}'], 8: [Dv[0]], 12: [Dv[1]], 16: [Dv[2]], 20: [Dv[3]]}
        X = merge(X, spread(W[:4], [56, 58, 60, 64]))
        emit(k.step(26, 0, 'full', X), {'V13', 'K14'})
        X = spread(W[4:], [0, 4, 8, 12, 16, 20, 24, 44, 48, 52, 56, 58, 60, 64]); X.setdefault(61, []).append(f's_xor_b32 s{G.sXor}, s{G.sXor}, 0x8000')
        emit(k.step(27, 1, 'full', X), set())
        k.stamp('it13')
    else:
        W = wo_dma('t12')
        Dk = G.dma_K(15, 3, f's{G.sKsoff}')
        X = {2: [rd[0]], 4: [f's_mov_b32 m0, s{G.sDma}'], 6: [rd[1]], 12: [Dk[0], rd[2]], 16: [Dk[1], rd[3]], 24: [Dk[2]], 56: [Dk[3]], 58: [rd[4], rd[5]], 60: [rd[6]], 61: [rd[7], rd[8]],
             62: [f's_and_b32 s{G.sVsoff}, s{G.sVsoff}, 0x3ffff']}
        X = {g: L for g, L in X.items()}
        emit(k.step(24, 0, 'full', X), {'V12', 'K13'})
        Dv = G.dma_V(14, 3, f's{G.sVsoff}')
        X = {0: [f's_add_u32 m0, s{G.sDma}, {G.LDS_V}'], 2: [Dv[0]], 4: [Dv[1]], 6: [Dv[2]], 8: [Dv[3]], 10: [f's_add_u32 s{G.sVsoff}, s{G.sVsoff}, 16384'],
             61: [f's_xor_b32 s{G.sXor}, s{G.sXor}, 0x8000'], 62: [f's_xor_b32 s{G.sDma}, s{G.sDma}, s{G.sXor}']}
        X = merge(X, spread(W, [12, 16, 20, 24, 44, 48, 56, 58, 64]))
        X = merge(X, {60: reg[:1], 64: [], 66: []})
        emit(k.step(25, 1, 'full', X), set())
        e(reg[1:])
        k.stamp('it12')
        W = wo_dma('t13')
        Dv = G.dma_V(15, 0, f's{G.sVsoff}')
        X = {2: [f's_and_b32 s{G.sVsoff}, s{G.sVsoff}, 0x3ffff'], 4: [f's_add_u32 m0, s{G.sDma}, {G.LDS_V}'], 12: [Dv[0]], 16: [Dv[1]], 24: [Dv[2]], 56: [Dv[3]]}
        X = merge(X, spread(W[:2], [60, 64]))
        emit(k.step(26, 0, 'full', X), {'V13', 'K14'})
        X = spread(W[2:], [0, 8, 16, 24, 56, 60, 64]); X.setdefault(61, []).append(f's_xor_b32 s{G.sXor}, s{G.sXor}, 0x8000')
        emit(k.step(27, 1, 'full', X), set())
        k.stamp('it13')
    W = wo_dma('t14')
    emit(k.step(28, 0, 'full', spread(W[:4], [12, 24, 58, 64])), {'V14', 'K15'})
    X = spread(W[4:], [4, 12, 20, 58, 64]); X.setdefault(61, []).append(f's_xor_b32 s{G.sXor}, s{G.sXor}, 0x8000')
    emit(k.step(29, 1, 'full', X), set())
    k.stamp('it14')
    W = wo_dma('t15')
    L30 = k.step(30, 0, 'nok', spread(W[:7], [12, 20, 44, 50, 56, 60, 64]))
    assert k.vm_need({'V15'}) == 9
    emit2([x.replace('VMW', '9') for x in L30])
    k.stamp('s30')
    emit2(k.step(31, 1, 'last', spread(W[7:], [2, 6])))
    k.stamp('p2end')

def poll_dual(k, name, vaddr, soff_reg, nbits, mask=7):
    e = k.e; T = G.vT
    full = (1 << (1 << nbits)) - 1
    e(f's_mov_b32 s{sCnt}, 0\ns_mov_b32 s{G.sT2}, 0\ns_add_u32 s{G.sT3 if False else 88}, s{soff_reg}, {G.FTWIN}', trace=False)
    if cfg.poll_exec: e(f's_mov_b64 exec, {full}', trace=False)
    k.p(f'L_poll_{name}:')
    e(f'''s_and_b32 s{G.sT1}, s{sCnt}, {mask}
s_cmp_eq_u32 s{G.sT1}, {mask}
s_cselect_b32 s89, s{soff_reg}, s88
s_add_u32 s{sCnt}, s{sCnt}, 1
buffer_load_dword v{T+1}, v{vaddr}, s[{G.sWS}:{G.sWS+3}], s89 offen sc1
s_waitcnt vmcnt(0)
v_cmp_eq_u32 vcc, 1, v{T+1}
s_nop 1
s_or_b32 s{G.sT2}, s{G.sT2}, vcc_lo
s_and_b32 s{G.sT1}, s{G.sT2}, {full}
s_cmp_eq_u32 s{G.sT1}, {full}
s_cbranch_scc1 L_pollx_{name}
{'s_sleep ' + str(cfg.poll_sleep) if (cfg.poll_sleep and (mask == 0 or cfg.sleep_all)) else 's_nop 0'}
s_cmp_ge_u32 s{sCnt}, 0x8000
s_cbranch_scc0 L_poll_{name}''', trace=False)
    k.p(f'L_pollx_{name}:')
    if cfg.poll_exec: e('s_mov_b64 exec, -1', trace=False)
    k.tr.append('s_waitcnt vmcnt(0)')

def poll(k, name, vaddr, soff_reg):
    e = k.e
    e(f's_mov_b32 s{sCnt}, 0', trace=False)
    k.p(f'L_poll_{name}:')
    e(f'''buffer_load_dword v{G.vT+1}, v{vaddr}, s[{G.sWS}:{G.sWS+3}], s{soff_reg} offen sc1
s_add_u32 s{sCnt}, s{sCnt}, 1
s_waitcnt vmcnt(0)
v_cmp_ne_u32 vcc, 1, v{G.vT+1}
s_cmp_ge_u32 s{sCnt}, 0x4000
s_cbranch_scc1 L_pollx_{name}
s_cbranch_vccz L_pollx_{name}
s_sleep 1
s_branch L_poll_{name}''', trace=False)
    k.p(f'L_pollx_{name}:')
    k.tr.append('s_waitcnt vmcnt(0)')

def set_flag(k, off_vreg, dual=False):
    o = ['s_mov_b64 exec, 1']
    if dual: o.append(f'buffer_store_dword v{vOne}, v{off_vreg}, s[{G.sWS}:{G.sWS+3}], s91 offen')
    o += [f'buffer_store_dword v{vOne}, v{off_vreg}, s[{G.sWS}:{G.sWS+3}], s{sFl} offen sc1', 's_mov_b64 exec, -1']
    return o

vOne = 20; vF1 = 21; vF2a = 24; vF2b = 25; vH = 11
vPk = [32, 68]

def phase3(k):
    e = k.e; T = G.vT; L = G.vLane
    e('s_nop 4')
    rp = [T, T + 2, T + 4, 122]
    sBad = 88
    for qt in range(4): e(f'v_rcp_f32 v{rp[qt]}, v{G.LA(qt)}')
    e(f's_mov_b32 s{G.sT0}, 0x6f800000')
    for qt in range(4):
        e(f'v_cmp_nlt_f32 vcc, v{G.LA(qt)}, v{G.LA(qt)}') if False else None
    e(f'v_mov_b32 v{G.vT2+1}, s{G.sT0}')
    e(f's_mov_b64 s[{sBad}:{sBad+1}], 0')
    for qt in range(4):
        e(f'v_cmp_nlt_f32 vcc, v{G.LA(qt)}, v{G.vT2+1}\ns_nop 0\ns_or_b64 s[{sBad}:{sBad+1}], s[{sBad}:{sBad+1}], vcc')
    e(f'v_lshlrev_b32 v{vAd}, 4, v{L}')
    for qt in range(4): e(f'v_mov_b32 v{rp[qt]+1}, v{rp[qt]}')
    for i in range(1, 4): e(f'v_add_u32 v{vAd+i}, {4096*i}, v{vAd}')
    vPr = 108
    prev = None; nprobe = 0
    for ks in range(4):
        for qt in range(4):
            for x in range(2):
                b = G.O(2 * ks + x, qt); r = rp[qt]
                e(f'v_pk_mul_f32 v[{b}:{b+1}], v[{b}:{b+1}], v[{r}:{r+1}]\nv_pk_mul_f32 v[{b+2}:{b+3}], v[{b+2}:{b+3}], v[{r}:{r+1}]')
            if prev is not None:
                e(mfma(vr(vPr, 4), ar(G.aZero, 4), vr(prev, 4), '0' if nprobe == 0 else vr(vPr, 4))); nprobe += 1
            for x in range(2):
                b = G.O(2 * ks + x, qt); d = Own(qt, ks) + 2 * x
                e(f'v_cvt_pk_bf16_f32 v{d}, v{b}, v{b+1}\nv_cvt_pk_bf16_f32 v{d+1}, v{b+2}, v{b+3}')
            if ks == 0 or cfg.early_ost:
                e(f'buffer_store_dwordx4 v[{Own(qt,ks)}:{Own(qt,ks)+3}], v{vAd+qt}, s[{G.sWS}:{G.sWS+3}], s{sOst} offen offset:{ks*1024}{cfg.ost_flag}')
            prev = Own(qt, ks)
    e('s_nop 1')
    e(mfma(vr(vPr, 4), ar(G.aZero, 4), vr(prev, 4), vr(vPr, 4)))
    for p in range(9): e(f'v_mov_b32 v{96+p}, v{vWoD+p}')
    ost = [f'buffer_store_dwordx4 v[{Own(qt,ks)}:{Own(qt,ks)+3}], v{vAd+qt}, s[{G.sWS}:{G.sWS+3}], s{sOst} offen offset:{ks*1024} sc1' for ks in range(1, 4) for qt in range(4)]
    if cfg.early_ost: ost = []
    e(f'''s_lshl_b32 s{G.sT0}, s{G.sW}, 2
s_add_u32 s{G.sT0}, s{G.sT0}, 64512
v_mov_b32 v{T}, s{G.sT0}
v_mov_b32 v{vOne}, 1
s_nop 3
v_cmp_u_f32 vcc, v{vPr}, v{vPr}
s_nop 0
s_or_b64 s[{sBad}:{sBad+1}], s[{sBad}:{sBad+1}], vcc
s_cmp_lg_u64 s[{sBad}:{sBad+1}], 0
s_cselect_b32 s{G.sT0}, 1, 0
v_mov_b32 v{T+1}, s{G.sT0}
ds_write_b32 v{T}, v{T+1}
v_mov_b32 v{T+2}, 64512''')
    n = k.vm_need({'REG', 'WOt14'})
    e(f's_waitcnt vmcnt({n}) lgkmcnt(0)\ns_barrier')
    e(f'ds_read_b128 v[124:127], v{T+2}')
    e(f'v_readfirstlane_b32 s90, v{G.vT2}')
    k.stamp('p3pk')
    e(f'''v_lshrrev_b32 v30, 4, v{L}
v_bfe_u32 v31, v{L}, 2, 2
v_lshl_add_u32 v30, v30, 2, v31
v_mul_u32_u24 v30, 288, v30
v_and_b32 v31, 3, v{L}
v_lshl_add_u32 v{vR}, v31, 3, v30
v_add_u32 v{vR+1}, 61440, v{vR}
v_add_u32 v{vR+2}, 122880, v{vR}
v_lshlrev_b32 v{vH}, 3, v{L}
v_add_u32 v{vH}, 4096, v{vH}
v_mov_b32 v{vOne}, 1
s_lshl_b32 s{G.sT0}, s{G.sW}, 2
v_mov_b32 v{vF1}, s{G.sT0}
s_lshl_b32 s{G.sT0}, s{G.sW}, 3
s_add_u32 s{G.sT0}, s{G.sT0}, 16
v_mov_b32 v{vF2a}, s{G.sT0}
s_add_u32 s{G.sT0}, s{G.sT0}, 4
v_mov_b32 v{vF2b}, s{G.sT0}''')
    e(f'''s_waitcnt lgkmcnt(0)
v_or_b32 v124, v124, v125
v_or3_b32 v124, v124, v126, v127
s_nop 0
v_readfirstlane_b32 s{G.sT0}, v124
s_andn2_b32 s{G.sT0}, s{G.sT0}, s{G.sMode}
s_cmp_lg_u32 s{G.sT0}, 0
s_cbranch_scc1 L_fallback''')
    assert cfg.early_ost
    e(f's_cmp_eq_u32 s{G.sW}, 3\ns_cselect_b64 vcc, -1, 0')
    def a_read(c, nt, slot):
        base = rbase(REG[c]); idx = base // 61440
        return [f'ds_read_b64_tr_b16 a[{aA+4*slot+2*u}:{aA+4*slot+2*u+1}], v{vR+idx} offset:{base-61440*idx+u*4608+nt*32} ; ' + ('@rd WOt14' if c >= 6 else '') for u in range(2)]
    seq = [(c, nt, (0, 1, 2, 3)) for c in range(4) for nt in range(9)]
    seq += [(c, nt, (0, 1)) for c in range(4, 16) for nt in range(9)]
    seq += [(c, nt, (2, 3)) for c in range(4, 16) for nt in range(9)]
    AH_OWN, AH = 6, 8
    for i in range(AH_OWN): e(a_read(seq[i][0], seq[i][1], i % 16))
    k.stamp('p3go')
    def part_load(hp, qt, ks):
        return f'buffer_load_dwordx4 a[{Part(hp,qt,ks)}:{Part(hp,qt,ks)+3}], v{vAd+qt}, s[{G.sWS}:{G.sWS+3}], s{sPh+hp} offen offset:{ks*1024}'
    loads = [[part_load(hp, qt, ks) for ks in range(4) for qt in (2 * half, 2 * half + 1)] for half in range(2) for hp in range(3)]
    def pack_store(half):
        cv = []; st = []
        for x in range(2):
            qt = 2 * half + x
            for blk in range(5):
                d = D(2 * blk, qt)
                cv += [f'v_cvt_pk_bf16_f32 v{d}, v{d}, v{d+1}', f'v_cvt_pk_bf16_f32 v{d+1}, v{d+2}, v{d+3}']
                if blk < 4:
                    b_ = D(2 * blk + 1, qt)
                    cv += [f'v_cvt_pk_bf16_f32 v{d+2}, v{b_}, v{b_+1}', f'v_cvt_pk_bf16_f32 v{d+3}, v{b_+2}, v{b_+3}']
                g = []
                if blk == 0: g.append(f's_add_u32 s{sOst}, s{sPst}, {x*81920 + half*40960}')
                if blk < 4: g.append(f'buffer_store_dwordx4 v[{d}:{d+3}], v{vAd}, s[{G.sWS}:{G.sWS+3}], s{sOst} offen offset:{blk*1024} sc1')
                else: g.append(f'buffer_store_dwordx2 v[{d}:{d+1}], v{vH}, s[{G.sWS}:{G.sWS+3}], s{sOst} offen sc1')
                st.append(g)
        return cv, st
    R = 32; SUM = 80
    fin_setup = f'''v_lshlrev_b32 v{vAd+4}, 4, v{L}
s_lshl_b32 s{G.sT1}, s{G.sW}, 10
v_mov_b32 v{vAd+5}, v{vH}
v_add_u32 v{vAd+4}, s{G.sT1}, v{vAd+4}
s_cmp_ge_u32 s{G.sW}, 1
s_cselect_b32 s{G.sT1}, 0x40000000, 0
v_add_u32 v{vAd+5}, s{G.sT1}, v{vAd+5}
v_and_b32 v{vAd+6}, 15, v{L}
v_mul_u32_u24 v{vAd+6}, 1152, v{vAd+6}
v_lshrrev_b32 v{vAd+7}, 4, v{L}
v_lshl_add_u32 v{vAd+6}, v{vAd+7}, 3, v{vAd+6}'''
    def fin_addr(part):
        return f'''v_and_b32 v{T}, 7, v{L}
v_lshlrev_b32 v{T}, 2, v{T}
v_add_u32 v{T}, s{G.sNb}, v{T}
v_lshlrev_b32 v{T}, 7, v{T}
s_lshr_b32 s{G.sT0}, s{G.sKg}, 1
s_lshl_b32 s{G.sT0}, s{G.sT0}, 3
s_add_u32 s{G.sT0}, s{G.sT0}, {16 + 4*part}
v_add_u32 v{T}, s{G.sT0}, v{T}
s_lshl_b32 s{G.sT0}, s{G.sB}, 12
s_add_u32 s{G.sT0}, s{G.sT0}, {G.FBASE}'''
    def fin_loads(part):
        R = 32 + (48 if (cfg.late_final and part) else 0)
        o = []
        for src in range(8):
            o.append([f's_add_u32 s{G.sT1}, s{sCB}, {part*40960 + src*5120}',
                      f'buffer_load_dwordx4 v[{R+4*src}:{R+4*src+3}], v{vAd+4}, s[{G.sWS}:{G.sWS+3}], s{G.sT1} offen',
                      f'buffer_load_dwordx2 v[{R+32+2*src}:{R+32+2*src+1}], v{vAd+5}, s[{G.sWS}:{G.sWS+3}], s{G.sT1} offen'])
        return o
    def fin_reduce(part):
        R = 32 + (48 if (cfg.late_final and part) else 0)
        SUM = 128 if cfg.late_final else 80
        e(f's_waitcnt vmcnt({k.vm_need({f"FIN{part}"})})')
        e(f's_mov_b32 s{G.sT1}, 0x00003f80\ns_mov_b32 s{G.sT2}, 0x3f800000')
        for src in range(8):
            for j in range(4):
                for hi_ in range(2):
                    acc = SUM + 2 * j + hi_
                    e(f'v_dot2_f32_bf16 v{acc}, v{R+4*src+j}, s{G.sT1+hi_}, {"0" if src == 0 else f"v{acc}"}')
            for j in range(2):
                for hi_ in range(2):
                    acc = SUM + 8 + 2 * j + hi_
                    e(f'v_dot2_f32_bf16 v{acc}, v{R+32+2*src+j}, s{G.sT1+hi_}, {"0" if src == 0 else f"v{acc}"}')
        e('s_nop 2')
        for j in range(6): e(f'v_cvt_pk_bf16_f32 v{SUM+12+j}, v{SUM+2*j}, v{SUM+2*j+1}')
        e(f'''s_add_u32 s{G.sT0}, s{sOB}, {part*32*1152}
s_cmp_ge_u32 s{G.sW}, 1
s_cselect_b32 s{G.sT1}, 0x7ffff000, s{G.sT0}
s_lshl_b32 s{G.sT2}, s{G.sW}, 6
s_add_u32 s{G.sT0}, s{G.sT0}, s{G.sT2}
buffer_store_dwordx2 v[{SUM+12}:{SUM+13}], v{vAd+6}, s[{G.sOut}:{G.sOut+3}], s{G.sT0} offen{cfg.out_flag}
buffer_store_dwordx2 v[{SUM+14}:{SUM+15}], v{vAd+6}, s[{G.sOut}:{G.sOut+3}], s{G.sT0} offen offset:32{cfg.out_flag}
buffer_store_dwordx2 v[{SUM+16}:{SUM+17}], v{vAd+6}, s[{G.sOut}:{G.sOut+3}], s{G.sT1} offen offset:256{cfg.out_flag}''')
    issued = AH_OWN
    SPL, POL = cfg.own_split
    seg_bounds = [(0, 9 * SPL), (9 * SPL, 9 * POL), (9 * POL, 36), (36, 144), (144, 252)]
    extra = {}
    def place(i0, items, every):
        for n_, it_ in enumerate(items):
            extra.setdefault(i0 + n_ * every, []).append(it_ if isinstance(it_, list) else [it_])
    if ost: place(1, ost, max(1, (9 * SPL - 2) // len(ost)))
    place(36 + (4 if cfg.burst1 else 1), loads[2], 2 if cfg.burst1 else 1)
    place(36 + (22 if cfg.burst1 else 18), loads[3], cfg.l3_every)
    if cfg.tp_late: place(36 + 21, wo_dma('tP', 96), 3)
    place(36 + 70, loads[4], 2)
    place(36 + 88, loads[5], 2)
    for seg, (lo, hi) in enumerate(seg_bounds):
        if seg == 1:
            nn = k.vm_need({'OST'})
            e(f's_waitcnt vmcnt({nn})')
            e(set_flag(k, vF1, dual=cfg.dualflag))
            k.stamp('p3d1')
            if not cfg.tp_late: place(lo + 1, wo_dma('tP', 96), 2)
        if seg == 2:
            e(f's_mov_b32 s{G.sT2}, s90')
            k.p('L_regchk:')
            e(f's_cmp_ge_u32 s{G.sT2}, 32\ns_cbranch_scc1 L_regok')
            e(f'''s_add_u32 s{G.sPass}, s{G.sPass}, 1
s_cmp_ge_u32 s{G.sPass}, 0x4000
s_cbranch_scc1 L_regok
s_lshl_b32 s{G.sT0}, s{G.sB}, 5
v_mov_b32 v{G.vT2}, s{G.sT0}
s_sleep 1
global_load_dword v{G.vT2}, v{G.vT2}, s[16:17] sc1
s_waitcnt vmcnt(0)
v_readfirstlane_b32 s{G.sT2}, v{G.vT2}
s_branch L_regchk''', trace=False)
            k.p('L_regok:')
            e(f'''v_and_b32 v{T}, 3, v{L}
s_lshl_b32 s{G.sT0}, s{G.sKg}, 2
v_add_u32 v{T}, s{G.sT0}, v{T}
v_lshlrev_b32 v{T}, 7, v{T}
v_add_u32 v{T}, v{T}, v{vF1}
s_lshl_b32 s{G.sT0}, s{G.sB}, 12
s_add_u32 s{G.sT0}, s{G.sT0}, {G.FBASE}''')
            if cfg.dualflag:
                poll_dual(k, 'f1', T, G.sT0, 2)
            else: poll(k, 'f1', T, G.sT0)
            k.stamp('p3f1')
            if cfg.burst1:
                for x in loads[0]: e(x)
                place(lo + 2, loads[1], 2)
            else:
                for x in loads[0] + loads[1]: e(x)
            e(f's_cmp_eq_u32 s{G.sW}, 3\ns_cselect_b64 vcc, -1, 0')
        for i in range(lo, hi):
            c, nt, qts = seq[i]
            half = 0 if seg == 3 else 1
            slot = i % 16
            ah = AH_OWN if seg < 3 else AH
            rd = []
            while issued < min(len(seq), i + ah + 1):
                rd += a_read(seq[issued][0], seq[issued][1], issued % 16); issued += 1
            younger = 2 * (issued - len(rd) // 2 - 1 - i)
            pre = [f's_waitcnt lgkmcnt({min(15, younger)})']
            if seg >= 3 and nt == 0:
                pre.append(f's_waitcnt vmcnt({k.vm_need({f"PH{(c>>2)-1}_{half}_{c&3}"})})')
                if seg == 3 and c == 9: pre.append('s_barrier')
                if cfg.tp_late and seg == 3 and c == 12:
                    last = k.nt_marks[-1]
                    younger = sum(1 for x in k.tr[last:] if x.split()[0].startswith('buffer_') or x.split()[0].startswith('global_'))
                    pre += [f's_waitcnt vmcnt({younger})', 's_barrier']
            hook = None
            if seg == 4 and nt == 0 and c == cfg.f2a_c and not cfg.late_final and not cfg.tail2: hook = 'f2a'
            if seg == 4 and nt == 0 and c == cfg.fin0_c and not cfg.late_final and not cfg.tail2: hook = 'fin0'
            mf = []
            for qt in qts:
                Bop = vr(Own(qt, c), 4) if c < 4 else ar(Part((c >> 2) - 1, qt, c & 3), 4)
                Cop = '0' if c == 0 else vr(D(nt, qt), 4)
                mf.append(mfma(vr(D(nt, qt), 4), ar(aA + 4 * slot, 4), Bop, Cop))
            if hook == 'f2a':
                k.stamp('h0')
                e(f's_waitcnt vmcnt({k.vm_need({"PS0"})})'); k.stamp('h1'); e(set_flag(k, vF2a, dual=cfg.dualflag and cfg.f2_mask > 0))
            if hook == 'fin0':
                k.stamp('h2')
                e(fin_setup)
                e(fin_addr(0))
                poll_dual(k, 'f2a', T, G.sT0, 3, cfg.f2_mask)
                k.stamp('p3f2a')
                place(i, fin_loads(0), 1)
            e(pre)
            e(mf[0]); e(rd)
            e(mf[1])
            for x in extra.pop(i, []): k.emit2(x)
            for m in mf[2:]: e(m)
        k.stamp(f'p3seg{seg}')
        if seg == 3:
            e('s_nop 4')
            cv, st = pack_store(0); e(cv)
            place(144, st, cfg.ps0_every)
        if seg == 4:
            e('s_nop 4')
            if cfg.tail2:
                e(f's_waitcnt vmcnt({k.vm_need({"PS0"})})'); e(set_flag(k, vF2a, dual=cfg.dualflag and cfg.f2_mask > 0))
            cv, st = pack_store(1)
            e(cv[:18]);
            for g in st[:5]: e(g)
            e(cv[18:])
            for g in st[5:]: e(g)
    assert not extra, extra.keys()
    k.stamp('p3mm')
    if cfg.late_final:
        e(fin_setup); e(fin_addr(1))
        e(f's_waitcnt vmcnt({k.vm_need({"PS1"})})'); e(set_flag(k, vF2b, dual=cfg.dualflag and cfg.f2_mask > 0))
        k.stamp('p3st')
        poll_dual(k, 'f2b', T, G.sT0, 3, cfg.f2_mask)
        k.stamp('p3f2')
        for g in fin_loads(0) + fin_loads(1): e(g)
        k.stamp('p3fi')
        fin_reduce(0); fin_reduce(1)
        return
    if cfg.tail2: e(fin_setup); e(fin_addr(0))
    e(f's_waitcnt vmcnt({k.vm_need({"PS1"})})'); e(set_flag(k, vF2b, dual=cfg.dualflag and cfg.f2_mask > 0))
    k.stamp('p3st')
    if cfg.tail2:
        poll_dual(k, 'f2a', T, G.sT0, 3, cfg.f2_mask)
        for g in fin_loads(0): e(g)
    fin_reduce(0)
    k.stamp('p3r0')
    e(fin_addr(1))
    poll_dual(k, 'f2b', T, G.sT0, 3, cfg.f2_mask)
    k.stamp('p3f2')
    for g in fin_loads(1): e(g)
    k.stamp('p3fi')
    fin_reduce(1)
```

```python
import sys, math, struct
from asmlib import *

NAME = 'standalone__mha_block_cached__near_ridge'

class Cfg:
    stamps = False
    kv_flag = ' nt'
    x_flag = ''
    w_flag = ''
    wo_flag = ''
    force_safe = False
    ablate = ''
    l1inv = False
    codepf = 1
    burst1 = True
    poll_exec = False
    tail2 = False
    late_final = False
    poll_sleep = 4
    sleep_all = False
    f2_mask = 0
    womall = False
    wo_coop = False
    ost_flag = ' sc1'
    epi_early = True
    tp_late = False
    exp_enc = ''
    loop_align = 3
    loop_nop = 0
    late_mode = 0
    kv0_at = (6, 1)
    k1_at = (7, 1)
    D = 2
    perm = False
    w4 = False
    wmall = False
    rot = True
    pad = 0
    dbgstamps = 0
    mapx = False
    dualflag = True
    out_flag = ''
    bswap = 0
    coop_pre = (0, 1, 2, 3)
    coop_mid = ()
    coop_skip = ()
    coop_wait = 0
    early_ost = True
    own_split = (0, 3)
    ps0_every = 2
    f2a_c = 10
    fin0_c = 14
    l3_every = 6
    kv_same = False
cfg = Cfg()

sW = 3
sX, sWq, sK, sV, sWS, sWo, sOut = 20, 24, 28, 32, 36, 40, 44
sW4K = 48; sKsoff = 49; sVsoff = 50; sDma = 51; sXor = 52; sIter = 53
sT0, sT1, sT2, sT3 = 54, 55, 56, 57
sC = 58
sXsoff = 60; sWsoff = 61; sW8K = 62; sDelta = 63
sB = 64; sH = 65; sJ = 66; sMode = 67
sKg = 68; sNb = 69; sRot = 70; sPass = 71
sStamp = 72

vLane = 1
vT = 2
vKA = 8
vVA = 12
vDK = 20
vDV = 24
vMG = 26
vT2 = 30
vS = 32
vC = 64
vP = 80
vL = 96
vXA = 112; vWA = 114
vWB = 120
vCo = 118
vOX = 32; vOW = 40
vWoD = 112
vWoR = 121
vAcc = 128
aQ = 0; aKf = 64; aVf = 96; aOnes = 252; aZero = 188
aPA = 96; aPB = 64

def O(dt, qt): return vAcc + (dt * 4 + qt) * 4
def S(qt, kt): return vS + qt * 8 + kt * 4
def CI(qt): return vC + 4 * qt
def P(qt): return vP + 4 * qt
def LA(qt): return vL + 4 * qt
def Qf(qt, ds): return aQ + (qt * 4 + ds) * 4
def Kf(m): return aKf + 4 * m
def Vf(dt): return aVf + 4 * dt

LDS_V = 65536
XS = [32768, 81920]
WS = [114688, 131072, 147456, 16384]
def NWS(): return 4 if cfg.mapx and cfg.w4 else 3
OBASE = 0
PBASE = 16 << 20
FBASE = 60 << 20
FTWIN = 1 << 16
STAMPBASE = 64 << 20

def kb(fn): return ','.join(str(fn(w) // 1024) for w in range(4))
def stamp_reg(i): return [72, 76, 80, 84, 92][i]
def mfma(d, a, b, c): return f'v_mfma_f32_16x16x32_bf16 {d}, {a}, {b}, {c}'

class Slots:
    def __init__(self, n):
        self.pre = [[] for _ in range(n)]
        self.post = [[] for _ in range(n)]
        self.mf = [None] * n
    def out(self):
        o = []
        for i in range(len(self.mf)):
            o += self.pre[i]
            if self.mf[i]: o.append(self.mf[i])
            o += self.post[i]
        return o
    def load(self):
        def cost(x):
            mn = x.split()[0]
            if mn.startswith('v_exp') or mn.startswith('v_rcp'): return 8
            return 4
        n = len(self.mf); res = []
        for i in range(n):
            g = self.post[i] + (self.pre[i + 1] if i + 1 < n else [])
            res.append(sum(cost(x) for x in g))
        return res

def dma_K(tile, slot, soff):
    L = []
    for p in range(4):
        a = lambda w, p=p: slot * 16384 + w * 4096 + p * 1024
        L.append(f'buffer_load_dwordx4 v{vDK+p}, s[{sK}:{sK+3}], {soff} offen offset:{p*1024}{cfg.kv_flag} lds ; @dma K{tile} {kb(a)}')
    return L
def dma_V(tile, slot, soff):
    L = []
    for p in range(4):
        a = lambda w, p=p: LDS_V + slot * 16384 + w * 4096 + p * 1024
        L.append(f'buffer_load_dwordx4 v{vDV+(p&1)}, s[{sV}:{sV+3}], {soff} offen offset:{p*1024}{cfg.kv_flag} lds ; @dma V{tile} {kb(a)}')
    return L

def dma_W(c):
    G = []
    for p in range(4):
        a = lambda w, p=p: WS[c % NWS()] + w * 4096 + p * 1024
        ins = f'buffer_load_dwordx4 v{vOW+p}, s[{sWq}:{sWq+3}], s{sWsoff} offen offset:{p*1024}{cfg.w_flag} lds ; @dma W{c} {kb(a)}'
        g = [ins]
        if p == 0: g = [f's_add_u32 m0, s{sW4K}, {WS[c%NWS()]}', f's_mov_b32 s{sWsoff}, {c*524288}', ins]
        G.append(g)
    return G
def dma_X(c):
    G = []
    for p in range(8):
        a = lambda w, p=p: XS[c % 2] + w * 8192 + p * 1024
        ins = f'buffer_load_dwordx4 v{vOX+p}, s[{sX}:{sX+3}], s{sXsoff} offen offset:{(p&3)*1024}{cfg.x_flag} lds ; @dma X{c} {kb(a)} priv'
        g = [ins]
        if p == 0: g = [f's_add_u32 m0, s{sW8K}, {XS[c%2]}', f's_mov_b32 s{sXsoff}, {c*128}', ins]
        if p == 4: g = [f's_add_u32 m0, s{sW8K}, {XS[c%2]+4096}', 's_nop 0', ins]
        G.append(g)
    return G

def kv_dma_addr():
    T = vT; L = vLane
    o = f'''v_lshrrev_b32 v{T+1}, 4, v{L}
v_and_b32 v{T+3}, 15, v{L}
v_mov_b32 v{T+4}, v{T+1}'''.split('\n')
    for p in range(4):
        o += [f'v_add_u32 v{T+2}, {4*p}, v{T+1}', f'v_xor_b32 v{T+2}, v{T+2}, v{T+3}', f'v_lshlrev_b32 v{T+2}, 4, v{T+2}', f'v_lshl_add_u32 v{vDK+p}, v{T+4}, 8, v{T+2}']
    for par in range(2):
        o += [f'v_add_u32 v{T+2}, {4*par}, v{T+1}', f'v_lshlrev_b32 v{T+2}, 1, v{T+2}', f'v_xor_b32 v{T+2}, v{T+2}, v{T+3}', f'v_lshlrev_b32 v{T+2}, 4, v{T+2}', f'v_lshl_add_u32 v{vDV+par}, v{T+4}, 8, v{T+2}']
    return o
def kv_read_addr():
    T = vT; L = vLane
    o = [f'v_lshrrev_b32 v{T}, 4, v{L}', f'v_bfe_u32 v{T+1}, v{L}, 2, 2', f'v_and_b32 v{T+2}, 3, v{L}', f'v_and_b32 v{T+3}, 15, v{L}',
         f'v_lshlrev_b32 v{T+4}, 8, v{T+3}']
    for ds in range(4):
        o += [f'v_add_u32 v{T+5}, {4*ds}, v{T}', f'v_xor_b32 v{T+5}, v{T+5}, v{T+3}', f'v_lshl_add_u32 v{vKA+ds}, v{T+5}, 4, v{T+4}']
    o += f'''v_lshl_add_u32 v{T+4}, v{T}, 2, v{T+1}
v_and_b32 v{vT2}, 7, v{T+4}
v_lshlrev_b32 v{vT2}, 1, v{vT2}
v_lshlrev_b32 v{T+4}, 8, v{T+4}
v_and_b32 v{T+5}, 1, v{T+2}
v_lshl_add_u32 v{T+4}, v{T+5}, 3, v{T+4}
v_add_u32 v{T+4}, {LDS_V}, v{T+4}
v_lshrrev_b32 v{vT2+1}, 1, v{T+2}'''.split('\n')
    for dt in range(8):
        o += [f'v_add_u32 v{T+5}, {2*dt}, v{vT2+1}', f'v_xor_b32 v{T+5}, v{T+5}, v{vT2}', f'v_lshl_add_u32 v{vVA+dt}, v{T+5}, 4, v{T+4}']
    return o

def epi(qt):
    o = []
    for ds in range(4):
        for x in range(2):
            b_ = O(2 * ds + x, qt)
            o += [f'v_pk_mul_f32 v[{b_}:{b_+1}], v[{b_}:{b_+1}], s[{sC}:{sC+1}]', f'v_pk_mul_f32 v[{b_+2}:{b_+3}], v[{b_+2}:{b_+3}], s[{sC}:{sC+1}]']
        t = vC + (ds & 1) * 4
        for x in range(2):
            b_ = O(2 * ds + x, qt)
            o += [f'v_cvt_pk_bf16_f32 v{t+2*x}, v{b_}, v{b_+1}', f'v_cvt_pk_bf16_f32 v{t+2*x+1}, v{b_+2}, v{b_+3}']
        o += [f'v_accvgpr_write_b32 a{Qf(qt, ds)+i}, v{t+i}' for i in range(4)]
    return o
def kreads0(off): return [f'ds_read_b128 a[{Kf(m)}:{Kf(m)+3}], v{vKA+(m>>1)} offset:{off+(m&1)*4096} ; @rd K0' for m in range(8)]
def vreads0(): return [f'ds_read_b64_tr_b16 a[{Vf(n>>1)+2*(n&1)}:{Vf(n>>1)+2*(n&1)+1}], v{vVA+(n>>1)} offset:{8192+(n&1)*4096}' for n in range(16)]

def p1_reads(c, n, buf):
    A = aPA + buf * 32; B = aPB + buf * 16
    def W(dt, u):
        ds, x = dt >> 1, dt & 1
        st = c % NWS()
        reg, so = (vWA + ds, st * 16384) if st < 3 else (vWB + ds, 0)
        return f'ds_read_b64_tr_b16 a[{A+4*dt+2*u}:{A+4*dt+2*u+1}], v{reg} offset:{so+(32*n+4*u)*256+8*x} ; @rd W{c}'
    def X(qt): return f'ds_read_b128 a[{B+4*qt}:{B+4*qt+3}], v{vXA+n} offset:{(c%2)*49152+qt*2048} ; @rd X{c}'
    R = [X(0), W(0, 0), W(0, 1), X(1), X(2), X(3)]
    for dt in range(1, 8): R += [W(dt, 0), W(dt, 1)]
    return R

def p1_kstep(k, c, n, groups, last=False, fill=None):
    Sl = Slots(32)
    buf = n & 1
    final = last and n == 1 and cfg.epi_early
    for m in range(32):
        dt, qt = (m >> 2, m & 3) if not final else (m & 7, m >> 3)
        Sl.mf[m] = mfma(vr(O(dt, qt), 4), ar(aPA + buf * 32 + 4 * dt, 4), ar(aPB + buf * 16 + 4 * qt, 4), '0' if (c == 0 and n == 0) else vr(O(dt, qt), 4))
    if n == 0: R = p1_reads(c, 1, 1)
    else: R = [] if last else p1_reads(c + 1, 0, 0)
    if n == 1:
        vm = (k.vm_need({f'X{c+1}', f'W{c+1}'}) if not cfg.ablate else 20) if not last else (k.vm_need({'K0', 'Vm1'}) if final else 63)
        Sl.pre[0] += [f's_waitcnt vmcnt({vm}) lgkmcnt(0)', 's_barrier']
    else: Sl.pre[0] += ['s_waitcnt lgkmcnt(0)']
    if final:
        R = kreads0(0)[:4] + vreads0()
    ab = cfg.ablate
    if 'p1rd' in ab: R = []
    if 'p1x' in ab: groups = [[x for x in g if '@dma X' not in x] for g in groups]
    if 'p1w' in ab: groups = [[x for x in g if '@dma W' not in x] for g in groups]
    if 'p1kv' in ab: groups = [[x for x in g if '@dma K' not in x and '@dma V' not in x] for g in groups]
    for i, r in enumerate(R): Sl.post[2 * (i // 2)].append(r)
    if final:
        E0 = epi(0)
        g = 10
        while E0:
            n_ = (1 if len(Sl.post[g]) >= 2 else 3) if g < 31 else len(E0)
            Sl.post[g] += E0[:n_]; E0 = E0[n_:]; g = min(31, g + 1)
    if groups:
        nn = len(groups)
        for i, g in enumerate(groups):
            Sl.post[min(31, 1 + 2 * ((i * 16) // nn))] += g
    if fill:
        g = 1
        while fill and g < 32:
            if len(Sl.post[g]) == 0:
                for _ in range(2):
                    if fill:
                        x = fill.pop(0)
                        Sl.post[g] += x if isinstance(x, list) else [x]
                        if isinstance(x, list): break
            g += 1
    return Sl.out()

class Kernel:
    def __init__(self):
        self.p = Prog(); self.tr = []; self.nstamp = 0; self.q = []; self.nt_marks = []
    def e(self, s, text=True, trace=True):
        if isinstance(s, str): s = [x.strip() for x in s.split('\n') if x.strip()]
        if text: self.p(s)
        if trace: self.tr.extend(s)
    def stamp(self, name):
        if cfg.stamps and name in cfg.stamps:
            i = cfg.stamps.index(name); b = stamp_reg(i)
            self.e(f's_memrealtime s[{b}:{b+1}]\ns_memtime s[{b+2}:{b+3}]')
            self.nstamp = max(self.nstamp, i + 1)
    def vm_need(self, tags, incl=False):
        q = []
        marks = list(self.nt_marks)
        for pos, line in enumerate(self.tr + ['s_nop 0']):
            while incl and marks and marks[0] <= pos:
                q.append(None); marks.pop(0)
            code, _, com = line.partition(';')
            mn = code.split()[0] if code.split() else ''
            if mn.startswith('buffer_') and mn not in ('buffer_inv', 'buffer_wbl2') or mn.startswith('global_'):
                t = None
                a = com.split()
                if '@dma' in a: t = a[a.index('@dma') + 1]
                elif '@tag' in a: t = a[a.index('@tag') + 1]
                q.append(t)
        for t in tags: assert t in q, f'tag {t} was never issued'
        last = max((i for i, t in enumerate(q) if t in tags), default=-1)
        return min(63, len(q) - 1 - last)

    def header(self):
        self.p(f'; @launch grid=(256,1,1) block=(256,1,1) lds=163840')
        if cfg.stamps: self.p('; stamps: ' + ','.join(cfg.stamps))
        self.p('''; Fused MHA block (Q projection, attention over the cached K/V, output projection), one workgroup per (batch, head), one per CU.
;  phase 1  Q^T = Wq_h^T X^T.  X / Wq tiles go through LDS (LDS-DMA, swizzled on the source side); every XCD first warms its L2 cooperatively.
;  phase 2  S^T = K Q^T, P = exp2(S - m), O^T += V^T P^T, row sums by a ones-MFMA.  K/V stream through an LDS ring (key order rotated per workgroup).
;           Wo slice (prefetched into LDS during the last attention steps); partial sums are reduce-scattered through ws.
;           A twin flag written with a plain store only shortens the wait when reader and writer share an L2; either flag implies the data is visible.''')
        self.p('.amdgcn_target "amdgcn-amd-amdhsa--gfx950"\n.text')
        self.p(f'.globl {NAME}_kernel\n.p2align 8\n.type {NAME}_kernel,@function\n{NAME}_kernel:')
    def footer(self):
        self.p('L_end:\ns_endpgm')
        self.p('.p2align 6\nL_codeend:')
        self.p('.section .rodata,"a"\n.p2align 6')
        self.p(f'.amdhsa_kernel {NAME}_kernel')
        self.p('''.amdhsa_next_free_vgpr 512
.amdhsa_next_free_sgpr 102
.amdhsa_accum_offset 256
.amdhsa_group_segment_fixed_size 0
.amdhsa_kernarg_size 64
.amdhsa_user_sgpr_count 2
.amdhsa_user_sgpr_kernarg_segment_ptr 1
.amdhsa_system_sgpr_workgroup_id_x 1
.end_amdhsa_kernel''')

    def code_prefetch(self, where):
        e = self.e
        if cfg.codepf == where:
            e(f'''s_getpc_b64 s[{sT2}:{sT2+1}]
L_pc:
v_and_b32 v{vT+5}, 15, v{vLane}
s_lshr_b32 s{sT0}, s2, 3
s_and_b32 s{sT2}, s{sT2}, 0xffffff00
s_lshl_b32 s{sT0}, s{sT0}, 4
s_sub_u32 s{sT2}, s{sT2}, CODEOFF
v_add_u32 v{vT+5}, s{sT0}, v{vT+5}
s_subb_u32 s{sT3}, s{sT3}, 0
v_lshlrev_b32 v{vT+5}, 7, v{vT+5}
v_min_u32 v{vT+5}, CODELEN, v{vT+5}
global_load_dword v92, v{vT+5}, s[{sT2}:{sT2+1}]''')

    def setup(self):
        e = self.e
        e('s_cmp_ge_u32 s2, 256\ns_cbranch_scc1 L_end')
        if cfg.perm: e('s_lshr_b32 s3, s2, 3\ns_and_b32 s3, s3, 7\ns_xor_b32 s2, s2, s3')
        self.stamp('entry')
        e(f's_load_dwordx16 s[4:19], s[0:1], 0')
        e(f'''v_and_b32 v{vLane}, 63, v0
v_lshrrev_b32 v{vT}, 6, v0
s_and_b32 s{sT0}, s2, 7
s_lshr_b32 s{sJ}, s2, 3
v_readfirstlane_b32 s{sW}, v{vT}
s_and_b32 s{sB}, s{sT0}, 1
s_xor_b32 s{sB}, s{sB}, {cfg.bswap}
s_lshl_b32 s{sB}, s{sB}, 2
s_and_b32 s{sT1}, s{sJ}, 3
s_add_u32 s{sB}, s{sB}, s{sT1}
s_lshr_b32 s{sH}, s{sT0}, 1
s_lshl_b32 s{sH}, s{sH}, 3
s_lshr_b32 s{sT1}, s{sJ}, 2
s_add_u32 s{sH}, s{sH}, s{sT1}
MAPX
s_lshr_b32 s{sKg}, s{sH}, 2
s_and_b32 s{sNb}, s{sH}, 3
s_lshl_b32 s{sW4K}, s{sW}, 12
ROT
'''.replace('ROT', f's_add_u32 s{sRot}, s{sH}, s{sB}\ns_and_b32 s{sRot}, s{sRot}, 15\ns_lshl_b32 s{sRot}, s{sRot}, 14\ns_add_u32 s{sRot}, s{sRot}, s{sW4K}' if cfg.rot else f's_mov_b32 s{sRot}, s{sW4K}').replace('MAPX', f's_mov_b32 s{sB}, s{sT0}\ns_mov_b32 s{sH}, s{sJ}' if cfg.mapx else 's_nop 0'))
        L = vLane; T = vT
        e(f'''v_lshrrev_b32 v{T}, 3, v{L}
s_lshl_b32 s{sT0}, s{sW}, 6
v_add_u32 v{T}, s{sT0}, v{T}
v_mul_u32_u24 v{T}, 1152, v{T}
v_lshrrev_b32 v{T+1}, 4, v{L}
v_and_b32 v{T+2}, 7, v{L}
v_xor_b32 v{T+3}, v{T+2}, v{T+1}
v_xor_b32 v{T+4}, 4, v{T+3}
v_lshl_add_u32 v{T+3}, v{T+3}, 4, v{T}
v_lshl_add_u32 v{T+4}, v{T+4}, 4, v{T}''')
        for p in range(8):
            e(f'v_add_u32 v{vOX+p}, {p*9216 - (p&3)*1024}, v{T+3+(p&1)}')
        e(f'''v_lshlrev_b32 v{T+2}, 2, v{T+1}
v_and_b32 v{T+3}, 15, v{L}
v_xor_b32 v{T+2}, v{T+2}, v{T+3}
v_lshlrev_b32 v{T+2}, 4, v{T+2}
s_lshl_b32 s{sT0}, s{sW}, 4
v_add_u32 v{T+4}, s{sT0}, v{T+1}
v_lshl_add_u32 v{T+5}, v{T+4}, 13, v{T+2}''')
        for p in range(4):
            e(f'v_add_u32 v{vOW+p}, {p*(32768-1024)}, v{T+5}')
        e(f'''v_lshrrev_b32 v{T+5}, 3, v{L}
s_lshr_b32 s{sT0}, s{sJ}, 2
s_lshl_b32 s{sT0}, s{sT0}, 5
s_lshl_b32 s{sT1}, s{sW}, 3
s_add_u32 s{sT0}, s{sT0}, s{sT1}
v_add_u32 v{T+5}, s{sT0}, v{T+5}
v_mul_u32_u24 v{T+5}, 1152, v{T+5}
v_and_b32 v{T+2}, 7, v{L}
v_lshl_add_u32 v{vCo}, v{T+2}, 4, v{T+5}
s_and_b32 s{sT0}, s{sJ}, 3
s_lshl_b32 s{sT0}, s{sT0}, 4
s_lshl_b32 s{sT1}, s{sW}, 2
s_add_u32 s{sT0}, s{sT0}, s{sT1}
v_add_u32 v{T+5}, s{sT0}, v{T+1}
v_lshlrev_b32 v{T+5}, 13, v{T+5}
v_and_b32 v{T+2}, 15, v{L}
v_lshl_add_u32 v{vCo+1}, v{T+2}, 4, v{T+5}''')
        if cfg.mapx:
            e(f'''v_lshrrev_b32 v{T+5}, 3, v{L}
s_lshl_b32 s{sT0}, s{sJ}, 3
v_add_u32 v{T+5}, s{sT0}, v{T+5}
v_mul_u32_u24 v{T+5}, 1152, v{T+5}
v_and_b32 v{T+2}, 7, v{L}
v_lshl_add_u32 v{vCo}, v{T+2}, 4, v{T+5}''')
        e('s_waitcnt lgkmcnt(0)')
        self.stamp('karg')
        if cfg.l1inv:
            e(f's_cmp_eq_u32 s{sW}, 0\ns_cbranch_scc0 L_noinv\nbuffer_inv sc1', trace=False)
            self.p('L_noinv:')
        e(f'''s_mul_i32 s{sT0}, s{sB}, 294912
s_add_u32 s{sX}, s4, s{sT0}
s_addc_u32 s{sX+1}, s5, 0
s_mov_b32 s{sX+2}, 294912
s_mov_b32 s{sX+3}, 0x20000
s_lshl_b32 s{sT0}, s{sH}, 8
s_add_u32 s{sWq}, s10, s{sT0}
s_addc_u32 s{sWq+1}, s11, 0
s_sub_u32 s{sWq+2}, 4718592, s{sT0}
s_mov_b32 s{sWq+3}, 0x20000
s_mov_b32 s{sWS}, s18
s_mov_b32 s{sWS+1}, s19
s_mov_b32 s{sWS+2}, 0x8000000
s_mov_b32 s{sWS+3}, 0x20000''')
        e(f's_lshl_b32 s{sW8K}, s{sW}, 13')
        def coop(c):
            if cfg.mapx:
                if c >= 3: return []
                d = 44 + 4 * c
                return [f's_lshl_b32 s{sT1}, s{sW}, 7', f'buffer_load_dwordx4 v[{d}:{d+3}], v{vCo}, s[{sX}:{sX+3}], s{sT1} offen offset:{c*512} ; @tag CO{c}']
            d = 44 + 8 * c if c < 6 else 96 + 8 * (c - 6) if c < 8 else 120
            return [f's_mov_b32 s{sT1}, {c*524288}', f'buffer_load_dwordx4 v[{d}:{d+3}], v{vCo+1}, s[{sWq}:{sWq+3}], s{sT1} offen ; @tag CO{c}',
                    f'buffer_load_dwordx4 v[{d+4}:{d+7}], v{vCo}, s[{sX}:{sX+3}], 0 offen offset:{c*128} ; @tag CO{c}']
        for c in cfg.coop_pre: e(coop(c))
        self.code_prefetch(1)
        self.coop = coop
        self.stamp('dma0')
        e(f'''s_lshl_b32 s{sT0}, s{sB}, 5
s_add_u32 s{sT0}, s{sT0}, s{sH}
s_lshl_b32 s{sT0}, s{sT0}, 18''')
        if cfg.kv_same: e(f's_mov_b32 s{sT0}, 0')
        e(f'''s_add_u32 s{sK}, s6, s{sT0}
s_addc_u32 s{sK+1}, s7, 0
s_mov_b32 s{sK+2}, 262144
s_mov_b32 s{sK+3}, 0x20000
s_add_u32 s{sV}, s8, s{sT0}
s_addc_u32 s{sV+1}, s9, 0
s_mov_b32 s{sV+2}, 262144
s_mov_b32 s{sV+3}, 0x20000''')
        e(f'''s_mul_i32 s{sT0}, s{sKg}, {512*1152}
s_mul_i32 s{sT1}, s{sNb}, 288
s_add_u32 s{sT0}, s{sT0}, s{sT1}
s_add_u32 s{sWo}, s12, s{sT0}
s_addc_u32 s{sWo+1}, s13, 0
s_sub_u32 s{sWo+2}, 4718592, s{sT0}
s_mov_b32 s{sWo+3}, 0x20000
s_mov_b32 s{sOut}, s14
s_mov_b32 s{sOut+1}, s15
s_mov_b32 s{sOut+2}, 2359296
s_mov_b32 s{sOut+3}, 0x20000''')
        e(kv_dma_addr())
        self.stamp('cw0')
        if cfg.coop_wait is not None: e(f's_waitcnt vmcnt({self.vm_need({f"CO{cfg.coop_wait}"})})')
        self.stamp('cw1')
        for g in dma_W(0) + dma_X(0): e(g)
        for c in cfg.coop_mid: e(self.coop(c))
        self.code_prefetch(2)
        self.stamp('d0')
        e(f'''v_lshrrev_b32 v{T}, 4, v{L}
v_bfe_u32 v{T+1}, v{L}, 2, 2
v_and_b32 v{T+2}, 3, v{L}
v_and_b32 v{T+3}, 15, v{L}''')
        e(f'''v_lshl_add_u32 v{T+4}, v{T}, 3, v{T+1}
v_lshlrev_b32 v{T+4}, 8, v{T+4}
v_lshl_add_u32 v{T+4}, v{T+2}, 4, v{T+4}
v_add_u32 v{T+4}, {WS[0]}, v{T+4}''')
        for ds in range(4):
            e(f'v_xor_b32 v{T+5}, {ds}, v{T+1}\nv_lshl_add_u32 v{vWA+ds}, v{T+5}, 6, v{T+4}')
        if NWS() == 4:
            for ds in range(4): e(f'v_subrev_u32 v{vWB+ds}, {WS[0]-WS[3]}, v{vWA+ds}')
        e(f'''s_lshl_b32 s{sT0}, s{sW}, 13
s_add_u32 s{sT0}, s{sT0}, {XS[0]}
v_lshlrev_b32 v{T+4}, 7, v{T+3}
v_add_u32 v{T+4}, s{sT0}, v{T+4}
v_lshrrev_b32 v{vT2}, 1, v{T+3}''')
        for n in range(2):
            e(f'''v_add_u32 v{T+5}, {4*n}, v{T}
v_xor_b32 v{T+5}, v{T+5}, v{vT2}
v_lshl_add_u32 v{vXA+n}, v{T+5}, 4, v{T+4}''')
        e(kv_read_addr())
        cbits = '0x%08x' % int.from_bytes(struct.pack('<f', math.log2(math.e) / math.sqrt(128.0)), 'little')
        e(f's_mov_b32 s{sC}, {cbits}\ns_mov_b32 s{sC+1}, {cbits}')
        e(f'v_mov_b32 v{T+5}, 0x3f803f80')
        for i in range(4): e(f'v_accvgpr_write_b32 a{aOnes+i}, v{T+5}')
        for i in range(4): e(f'v_accvgpr_write_b32 a{aZero+i}, 0')
        for i in range(4): e(f'v_mov_b32 v{vMG+i}, 0xff800000')
        e(f's_mov_b32 s{sPass}, 0\ns_mov_b32 s{sMode}, 0')
        for g in dma_W(1) + dma_X(1): e(g)
        self.code_prefetch(3)
        if cfg.wmall:
            e(f'''s_mul_i32 s{sT0}, s2, 18432
s_mul_i32 s{sT1}, s{sW}, 4608
s_add_u32 s{sT0}, s{sT0}, s{sT1}
s_lshl_b32 s{sT1}, s{sH}, 8
s_sub_u32 s{sT0}, s{sT0}, s{sT1}
v_lshlrev_b32 v{T+5}, 4, v{L}''')
            for i in range(5):
                e(f'buffer_load_dwordx4 v[{56+4*i}:{59+4*i}], v{T+5}, s[{sWq}:{sWq+3}], s{sT0} offen offset:{min(i*1024, 3584)} ; @tag WM')
        self.stamp('d1')
        e(f'''s_lshl_b32 s{sT0}, s{sB}, 5
s_add_u32 s{sT0}, s{sT0}, s{sH}
s_lshl_b32 s{sT0}, s{sT0}, 7
s_add_u32 s{sT0}, s{sT0}, {FBASE}
v_mov_b32 v{T+2}, 0
v_and_b32 v{T+3}, 15, v{L}
v_lshlrev_b32 v{T+5}, 2, v{T+3}
v_bfe_u32 v{T+1}, v{L}, 4, 1
v_mul_u32_u24 v{T+1}, {FTWIN}, v{T+1}
v_add_u32 v{T+5}, v{T+5}, v{T+1}
v_cmp_gt_u32 vcc, 32, v{L}
v_mov_b32 v{T+4}, 0x7fffffff
s_cmp_eq_u32 s{sW}, 0
s_cselect_b64 vcc, vcc, 0
s_nop 1
v_cndmask_b32 v{T+5}, v{T+4}, v{T+5}, vcc
buffer_store_dword v{T+2}, v{T+5}, s[{sWS}:{sWS+3}], s{sT0} offen sc1 ; @tag CLR''')

    def phase1(self):
        e = self.e
        self.stamp('p1wait')
        n0 = self.vm_need({'X0', 'W0'})
        e(f's_waitcnt vmcnt({n0})\ns_barrier')
        self.stamp('p1go')
        e(p1_reads(0, 0, 0))
        def one(G, m0, extra=()):
            G = [[x] for x in G]
            G[0] = [m0] + list(extra) + (['s_nop 0'] if not extra else []) + G[0]
            return G
        K0 = one(dma_K(0, 0, f's{sKsoff}'), f's_mov_b32 m0, s{sW4K}', [f's_mov_b32 s{sKsoff}, s{sRot}'])
        K1 = one(dma_K(1, 1, f's{sKsoff}'), f's_add_u32 m0, s{sW4K}, 16384', [f's_add_u32 s{sKsoff}, s{sRot}, 16384', f's_and_b32 s{sKsoff}, s{sKsoff}, 0x3ffff'])
        K2 = one(dma_K(2, 2, f's{sKsoff}'), f's_add_u32 m0, s{sW4K}, {2*16384}', [f's_add_u32 s{sKsoff}, s{sRot}, {2*16384}', f's_and_b32 s{sKsoff}, s{sKsoff}, 0x3ffff'])
        V0 = one(dma_V(0, 1, f's{sVsoff}'), f's_add_u32 m0, s{sW4K}, {LDS_V+16384}', [f's_add_u32 s{sVsoff}, s{sRot}, 8192', f's_and_b32 s{sVsoff}, s{sVsoff}, 0x3ffff'])
        V1 = one(dma_V(1, 2, f's{sVsoff}'), f's_add_u32 m0, s{sW4K}, {LDS_V+2*16384}', [f's_add_u32 s{sVsoff}, s{sRot}, {8192+16384}', f's_and_b32 s{sVsoff}, s{sVsoff}, 0x3ffff'])
        Vm = [[f's_lshl_b32 s{sT2}, s{sW}, 11', f's_add_u32 m0, s{sT2}, {LDS_V + 8192}', f's_sub_u32 s{sT2}, s{sRot}, s{sT2}']]
        for p in range(2):
            a = lambda w, p=p: LDS_V + 8192 + w * 2048 + p * 1024
            ins = f'buffer_load_dwordx4 v{vDV+p}, s[{sV}:{sV+3}], s{sT2} offen offset:{p*1024}{cfg.kv_flag} lds ; @dma Vm1 {kb(a)}'
            if p == 0: Vm[0].append(ins)
            else: Vm.append([ins])
        plan = {}
        rest = [c for c in range(9) if c not in cfg.coop_pre and c not in cfg.coop_mid and c not in cfg.coop_skip]
        plan[(0, 0)] = [self.coop(c) for c in rest] + dma_W(2)
        for c in range(9):
            g1 = []
            if c + 2 <= 8: g1 += dma_X(c + 2)
            plan[(c, 1)] = g1
            if NWS() == 3 and c + 3 <= 8: plan[(c + 1, 0)] = dma_W(c + 3)
        if NWS() == 4:
            plan[(0, 0)] = plan[(0, 0)] + dma_W(3)
            plan[(2, 0)] = dma_W(4) + dma_W(5)
            plan[(4, 0)] = dma_W(6) + dma_W(7)
            plan[(5, 0)] = dma_W(8)
        K3 = one(dma_K(3, 3, f's{sKsoff}'), f's_add_u32 m0, s{sW4K}, {3*16384}', [f's_add_u32 s{sKsoff}, s{sRot}, {3*16384}', f's_and_b32 s{sKsoff}, s{sKsoff}, 0x3ffff'])
        V2 = one(dma_V(2, 3, f's{sVsoff}'), f's_add_u32 m0, s{sW4K}, {LDS_V+3*16384}', [f's_add_u32 s{sVsoff}, s{sRot}, {8192+2*16384}', f's_and_b32 s{sVsoff}, s{sVsoff}, 0x3ffff'])
        self.prefill = K0 + Vm + K1 + V0 + V1 + K2 + (V2 + K3 if cfg.D == 3 else [])
        plan[cfg.kv0_at] = plan.get(cfg.kv0_at, []) + K0 + Vm
        plan[cfg.k1_at] = plan.get(cfg.k1_at, []) + K1
        if cfg.womall:
            g0 = [f's_mul_i32 s63, s{sKg}, {512*1152}', f's_mul_i32 s60, s{sNb}, 288', 's_add_u32 s63, s63, s60', f's_sub_u32 s60, s{sWo}, s63', f's_subb_u32 s61, s{sWo+1}, 0',
                  's_mul_i32 s63, s2, 18432', f's_mul_i32 s62, s{sW}, 4608', 's_add_u32 s63, s63, s62', f'v_lshlrev_b32 v{vT+3}, 4, v{vLane}', f'v_add_u32 v{vT+3}, s63, v{vT+3}']
            WM = [[f'global_load_dwordx4 a[{164+4*i}:{167+4*i}], v{vT+3}, s[60:61] offset:{min(i*1024, 3584)} ; @tag WM'] for i in range(5)]
            WM[0] = g0 + WM[0]
            plan[cfg.womall] = plan.get(cfg.womall, []) + WM
        plan[(8, 0)] = V0
        if cfg.late_mode == 0:
            plan[(8, 1)] = V1
            self.late_kv = K2 + (V2 + K3 if cfg.D == 3 else []); self.last_kv = []
        elif cfg.late_mode == 1:
            self.late_kv = []; self.last_kv = V1 + K2
        else:
            plan[(8, 1)] = V1
            self.late_kv = []; self.last_kv = K2
        from g2p3 import wo_setup, p3_scalars
        fill = wo_setup() + p3_scalars()
        for c in range(9):
            for n in range(2):
                e(p1_kstep(self, c, n, plan.get((c, n), []), last=(c == 8), fill=(fill if c >= 1 else None)))
            if c == 7: assert not fill
            if c == 3:
                e(f'''s_lshl_b32 s{sT3}, s{sB}, 5
v_mov_b32 v{vT+4}, s{sT3}
v_mov_b32 v{vT+5}, 1
s_cmp_eq_u32 s{sW}, 0
s_cbranch_scc0 L_noreg
s_mov_b64 exec, 1
global_atomic_add v{vT+4}, v{vT+5}, s[16:17] sc1
s_mov_b64 exec, -1''', trace=False)
                self.p('L_noreg:')
            if c == 5: self.stamp('p1c6')
            self.stamp(f'c{c}')
        self.stamp('p1end')
        self.late_kv_pending = self.late_kv; self.late_kv = []
        assert not self.late_kv
    QK = [0, 17, 34, 42]
    PV = [50, 59, 8, 25]
    LS = [58, 67, 16, 33]
    EX = [11, 29, 45, 63]
    VG = [26, 27, 27, 28, 28, 30, 30, 32, 34, 34, 36, 38, 38, 40, 42, 42]
    KG = [44, 46, 46, 50, 50, 52, 54, 54]
    def step(self, k, par, kind='full', extra=None):
        NS = 68
        Sl = Slots(NS)
        it = k // 2; ktile = it + 1; vtile = it
        last = kind == 'last'
        for qt in range(4):
            if not last:
                for m in range(8):
                    ds, kt = m >> 1, m & 1
                    Sl.mf[self.QK[qt] + m] = mfma(vr(S(qt, kt), 4), ar(Kf(m), 4), ar(Qf(qt, ds), 4), vr(CI(qt) if ds == 0 else S(qt, kt), 4))
            if not last or qt >= 2:
                for dt in range(8):
                    Sl.mf[self.PV[qt] + dt] = mfma(vr(O(dt, qt), 4), ar(Vf(dt), 4), vr(P(qt), 4), vr(O(dt, qt), 4))
                Sl.mf[self.LS[qt]] = mfma(vr(LA(qt), 4), ar(aOnes, 4), vr(P(qt), 4), vr(LA(qt), 4))
        mem = [[] for _ in range(NS)]; alu = [[] for _ in range(NS)]
        def put(g, ins):
            g %= NS
            mn = ins.split()[0]
            (mem if mn.startswith('ds_') or mn.startswith('buffer_') or mn.startswith('global_') else alu)[g].append(ins)
        for qt in range(4):
            for i in range(8):
                g = self.EX[qt] + 2 * i
                if last and g < NS: continue
                r = S(qt, i >> 2) + (i & 3)
                put(g, f'v_exp_f32{cfg.exp_enc} v{r}, v{r}')
            for n in range(4):
                g = self.EX[qt] + 4 * n + 3
                if last and g < NS: continue
                r = S(qt, n >> 1) + 2 * (n & 1)
                if last and Sl.mf[g % NS] is None: put(g, 's_nop 0')
                put(g, f'v_cvt_pk_bf16_f32 v{P(qt)+n}, v{r}, v{r+1}')
        if last: Sl.pre[8].append('s_nop 1')
        if not last:
            for n in range(16):
                dt, u = n >> 1, n & 1
                put(self.VG[n], f'ds_read_b64_tr_b16 a[{Vf(dt)+2*u}:{Vf(dt)+2*u+1}], v{vVA+dt} offset:{par*8192+u*4096}')
            if kind == 'full':
                for m in range(8):
                    ds, kt = m >> 1, m & 1
                    put(self.KG[m], f'ds_read_b128 a[{Kf(m)}:{Kf(m)+3}], v{vKA+ds} offset:{par*8192+kt*4096}')
            nk = sum(1 for g in self.KG if g <= 48) if kind == 'full' else 0
            Sl.pre[49].append(f's_waitcnt lgkmcnt({nk})')
            if kind == 'full': Sl.pre[67].append('s_waitcnt lgkmcnt(0)')
            if par == 0:
                Sl.pre[1] += ['s_waitcnt vmcnt(VMW)', 's_barrier']
                for dt in range(8): put([2, 4, 4, 6, 8, 8, 10, 14][dt], f'v_xor_b32{cfg.exp_enc} v{vVA+dt}, s{sXor}, v{vVA+dt}')
                for ds in range(4): put([18, 20, 20, 22][ds], f'v_xor_b32{cfg.exp_enc} v{vKA+ds}, s{sXor}, v{vKA+ds}')
        if extra:
            for g, L in extra.items():
                mem[g % NS] += L
        ab = cfg.ablate
        if ab and kind == 'full':
            if 'exp' in ab: alu = [[x for x in a if not x.startswith('v_exp')] for a in alu]
            if 'cvt' in ab: alu = [[x for x in a if not x.startswith('v_cvt')] for a in alu]
            if 'vrd' in ab: mem = [[x for x in a if not x.startswith('ds_read_b64')] for a in mem]
            if 'krd' in ab: mem = [[x for x in a if not x.startswith('ds_read_b128')] for a in mem]
            if 'dma' in ab: mem = [[x for x in a if not x.startswith('buffer_load')] for a in mem]
            if 'lsum' in ab:
                for qt in range(4): Sl.mf[self.LS[qt]] = None
        for g in range(NS): Sl.post[g] = mem[g] + alu[g]
        if cfg.pad and not last:
            for g in range(3, NS, max(1, NS // cfg.pad)): Sl.post[g].append('s_nop 3')
        self.last_load = Sl.load()
        return Sl.out()

    def kv_extra(self, it, par, doK=True, doV=True):
        slot = (it + 1 + cfg.D) & 3
        X = {}
        if par == 0:
            X.setdefault(61, []).append(f's_and_b32 s{sVsoff}, s{sVsoff}, 0x3ffff')
            if doK:
                D = dma_K(it + 1 + cfg.D, slot, f's{sKsoff}')
                X[12] = [f's_mov_b32 m0, s{sDma}']
                for g, d in zip((16, 24, 58, 64), D): X.setdefault(g, []).append(d)
                X.setdefault(64, []).append(f's_add_u32 s{sKsoff}, s{sKsoff}, 16384')
        else:
            X.setdefault(12, []).append(f's_and_b32 s{sKsoff}, s{sKsoff}, 0x3ffff')
            if doV:
                D = dma_V(it + cfg.D, slot, f's{sVsoff}')
                X[0] = [f's_add_u32 s{sT0}, s{sDma}, {LDS_V}']
                X[4] = [f's_mov_b32 m0, s{sT0}']
                for g, d in zip((8, 20, 58, 64), D): X.setdefault(g, []).append(d)
                X.setdefault(64, []).append(f's_add_u32 s{sVsoff}, s{sVsoff}, 16384')
            if cfg.D == 2:
                X.setdefault(61, []).append(f's_xor_b32 s{sXor}, s{sXor}, 0x8000')
                X.setdefault(62, []).append(f's_xor_b32 s{sDma}, s{sDma}, s{sXor}')
            else:
                X.setdefault(61, []).append(f's_xor_b32 s{sDma}, s{sDma}, s{sXor}')
                X.setdefault(62, []).append(f's_xor_b32 s{sXor}, s{sXor}, 0x8000')
            X.setdefault(62, []).append(f's_add_u32 s{sIter}, s{sIter}, 1')
        return X

    def phase2(self):
        e = self.e
        def qk0(qt):
            return [mfma(vr(S(qt, m & 1), 4), ar(Kf(m), 4), ar(Qf(qt, m >> 1), 4), '0' if m < 2 else vr(S(qt, m & 1), 4)) for m in range(8)]
        def weave(valu, mf, lead=2):
            o = []; n = len(valu); step_ = max(1, (n - lead) // max(1, len(mf))); j = 0
            for i, x in enumerate(valu):
                o.append(x)
                if i >= lead and (i - lead) % step_ == 0 and j < len(mf): o += mf[j] if isinstance(mf[j], list) else [mf[j]]; j += 1
            for x in mf[j:]: o += x if isinstance(x, list) else [x]
            return o
        kreads = kreads0
        vreads = vreads0()
        zero = lambda qt: [mfma(vr(O(dt, qt), 4), ar(aZero, 4), ar(aZero, 4), '0') for dt in range(8)] + [mfma(vr(LA(qt), 4), ar(aZero, 4), ar(aZero, 4), '0')]
        wait0 = f's_waitcnt vmcnt({self.vm_need({"K0", "Vm1"})})'
        late = self.late_kv_pending
        if cfg.epi_early:
            e(kreads0(0)[4:])
            e('s_nop 1')
            E1 = epi(1)
            e(E1[:8]); e('s_waitcnt lgkmcnt(0)')
            e(weave(E1[8:], qk0(0)))
        else:
            e('s_nop 3')
            e(wait0); e('s_barrier')
            self.stamp('q0')
            e(kreads(0)); e(vreads)
            e(epi(0))
            self.stamp('q1')
            e('s_waitcnt lgkmcnt(15)\ns_waitcnt lgkmcnt(0)')
            e(weave(epi(1), qk0(0)))
        h_ = len(late) // 2
        e(weave(epi(2), qk0(1) + [g for g in late[:h_]]))
        e(weave(epi(3), qk0(2) + [g for g in late[h_:]]))
        self.stamp('q2')
        e('s_branch L_p2q3', trace=False)
        self.p('L_p2start:')
        R = [wait0, 's_barrier'] + kreads(0) + vreads + ['s_waitcnt lgkmcnt(0)'] + qk0(0) + qk0(1) + qk0(2)
        self.e([x.split(';')[0].strip() for x in R], trace=False)
        self.p('L_p2q3:')
        q3 = qk0(3); k1 = kreads(8192)
        z = zero(2) + zero(3)
        e('s_nop 1')
        for m in range(8):
            e(q3[m]); e(k1[m]); e(z[2*m:2*m+2])
        e(z[16:])
        self.stamp('q3')
        for qt in range(4):
            a, b = S(qt, 0), S(qt, 1); m = vT + qt
            e(f'v_max3_f32 v{m}, v{a}, v{a+1}, v{vMG+qt}\nv_max3_f32 v{m}, v{m}, v{a+2}, v{a+3}\nv_max3_f32 v{m}, v{m}, v{b}, v{b+1}\nv_max3_f32 v{m}, v{m}, v{b+2}, v{b+3}')
        for sw in ('v_permlane32_swap_b32', 'v_permlane16_swap_b32'):
            for qt in range(4): e(f'v_mov_b32 v{vC+qt}, v{vT+qt}')
            e('s_nop 0')
            for qt in range(4): e(f'{sw} v{vT+qt}, v{vC+qt}')
            for qt in range(4): e(f'v_max_f32 v{vT+qt}, v{vT+qt}, v{vC+qt}')
        def adds(qt): return [f'v_add_f32 v{S(qt,0)+i}, v{S(qt,0)+i}, v{CI(qt)}' for i in range(8)]
        def exps(qt, n=8): return [f'v_exp_f32 v{S(qt,0)+i}, v{S(qt,0)+i}' for i in range(n)]
        def cvts(qt, n=4): return [f'v_cvt_pk_bf16_f32 v{P(qt)+j}, v{S(qt, j >> 1) + 2 * (j & 1)}, v{S(qt, j >> 1) + 2 * (j & 1) + 1}' for j in range(n)]
        def pv0(qt): return [mfma(vr(O(dt, qt), 4), ar(Vf(dt), 4), vr(P(qt), 4), '0') for dt in range(8)] + [mfma(vr(LA(qt), 4), ar(aOnes, 4), vr(P(qt), 4), '0')]
        for qt in range(4): e(f'v_sub_f32 v{CI(qt)}, 0, v{vT+qt}')
        cin = [f'v_mov_b32 v{CI(qt)+r}, v{CI(qt)}' for qt in range(4) for r in range(1, 4)]
        e(adds(0)); e(exps(0)); e(adds(1)); e(cvts(0))
        self.stamp('q4')
        e('s_waitcnt lgkmcnt(0)')
        e(weave(exps(1) + adds(2) + cvts(1) + adds(3), pv0(0), lead=0))
        e(weave(exps(2) + exps(3, 3) + cin[:2] + cvts(2) + cvts(3, 1) + cin[2:], pv0(1), lead=1))
        for g in self.last_kv: e(g)
        e(f'''s_mov_b32 s{sXor}, 0x4000
s_add_u32 s{sDma}, s{sW4K}, {((1+cfg.D)&3)*16384}
s_add_u32 s{sKsoff}, s{sRot}, {(1+cfg.D)*16384}
s_and_b32 s{sKsoff}, s{sKsoff}, 0x3ffff
s_add_u32 s{sVsoff}, s{sRot}, {8192+cfg.D*16384}
s_and_b32 s{sVsoff}, s{sVsoff}, 0x3ffff
s_mov_b32 s{sIter}, 0''')
        self.stamp('p2loop')
        self.p(f'.p2align {cfg.loop_align}')
        for _ in range(cfg.loop_nop): self.p('s_nop 0')
        self.p('L_p2:')
        texts = []
        NL = 12
        for it in range(NL):
            L = self.step(2 * it, 0, 'full', self.kv_extra(it, 0)); l0 = self.last_load
            L += self.step(2 * it + 1, 1, 'full', self.kv_extra(it, 1)); l1 = self.last_load
            L = [x.replace('VMW', str(8 * (cfg.D - 1))) for x in L]
            L += [f's_cmp_lt_u32 s{sIter}, {NL}', 's_cbranch_scc1 L_p2']
            texts.append([x.split(';')[0].strip() for x in L])
            if it == 0:
                self.p(L); self.loop_body = L
                print('gap load step0:', l0); print('gap load step1:', l1)
            self.tr.extend(L)
        assert all(t == texts[0] for t in texts)
        self.stamp('p2peel')
        from g2p3 import peeled_tail
        peeled_tail(self)

    def fallback(self):
        e = lambda x: self.e(x, trace=False)
        self.p('L_fallback:')
        e('s_waitcnt vmcnt(0) lgkmcnt(0)\ns_barrier')
        e(kv_dma_addr()); e(kv_read_addr())
        for i in range(4): e(f'v_mov_b32 v{vMG+i}, 0xff800000')
        e(f's_mov_b32 s{sKsoff}, s{sW4K}')
        self.p('L_fb_loop:')
        e(f's_mov_b32 m0, s{sW4K}\ns_nop 0')
        e([x.split(';')[0] for x in dma_K(0, 0, f's{sKsoff}')])
        e('s_waitcnt vmcnt(0)\ns_barrier')
        for half in range(2):
            for m in range(8):
                ds, kt = m >> 1, m & 1
                e(f'ds_read_b128 a[{Kf(m)}:{Kf(m)+3}], v{vKA+ds} offset:{half*8192+kt*4096}')
            e('s_waitcnt lgkmcnt(0)')
            for qt in range(4):
                for m in range(8):
                    ds, kt = m >> 1, m & 1
                    e(mfma(vr(S(qt, kt), 4), ar(Kf(m), 4), ar(Qf(qt, ds), 4), '0' if ds == 0 else vr(S(qt, kt), 4)))
            e('s_nop 7')
            for qt in range(4):
                a, b = S(qt, 0), S(qt, 1); m = vMG + qt
                e(f'v_max3_f32 v{m}, v{m}, v{a}, v{a+1}\nv_max3_f32 v{m}, v{m}, v{a+2}, v{a+3}\nv_max3_f32 v{m}, v{m}, v{b}, v{b+1}\nv_max3_f32 v{m}, v{m}, v{b+2}, v{b+3}')
        e(f's_barrier\ns_add_u32 s{sKsoff}, s{sKsoff}, 16384\ns_cmp_lt_u32 s{sKsoff}, 262144\ns_cbranch_scc1 L_fb_loop')
        for g in self.prefill: e([x.split(';')[0] for x in g])
        e(f's_mov_b32 s{sMode}, 1\ns_branch L_p2start')

    def finish_stamps(self):
        if not cfg.stamps: return
        e = self.e
        if cfg.dbgstamps:
            e('s_waitcnt lgkmcnt(0)', trace=False)
            for n_, (wg, base) in enumerate(zip(cfg.dbgstamps, (1, 5, 9, 12))):
                e(f's_cmp_eq_u32 s2, {wg}\ns_cbranch_scc0 L_nodbg{n_}\ns_cmp_eq_u32 s{sW}, 0\ns_cbranch_scc0 L_nodbg{n_}', trace=False)
                vals = [(stamp_reg(1), stamp_reg(0)), (stamp_reg(2), stamp_reg(0)), (stamp_reg(2) + 2, stamp_reg(1) + 2)]
                for i, (x, y) in enumerate(vals):
                    e(f's_sub_u32 s{sT0}, s{x}, s{y}\nv_mov_b32 v{vT+2}, s{sT0}\nv_mov_b32 v{vT}, {4*(base+i)}\nglobal_store_dword v{vT}, v{vT+2}, s[16:17]', trace=False)
                self.p(f'L_nodbg{n_}:')
            return
        e(f'''s_waitcnt lgkmcnt(0)
s_lshl_b32 s{sT0}, s2, 2
s_add_u32 s{sT0}, s{sT0}, s{sW}
s_lshl_b32 s{sT0}, s{sT0}, 8
s_add_u32 s{sT0}, s{sT0}, {STAMPBASE}
s_add_u32 s18, s18, s{sT0}
s_addc_u32 s19, s19, 0
v_mov_b32 v{vT}, 0''')
        for i in range(self.nstamp):
            for j in range(4): e(f'v_mov_b32 v{vT+2+j}, s{stamp_reg(i)+j}')
            e(f'global_store_dwordx4 v{vT}, v[{vT+2}:{vT+5}], s[18:19] offset:{16*i}\ns_nop 1')

def build():
    k = Kernel()
    k.header(); k.setup(); k.phase1(); k.phase2()
    from g2p3 import phase3
    phase3(k)
    k.stamp('end')
    k.finish_stamps()
    k.e('s_endpgm', trace=False)
    k.fallback()
    k.footer()
    return k

def main():
    import argparse
    ap = argparse.ArgumentParser()
    ap.add_argument('-o', default=f'cdna_kernels/{NAME}.s')
    ap.add_argument('--stamps', default='')
    ap.add_argument('--set', action='append', default=[])
    a = ap.parse_args()
    cfg.stamps = a.stamps.split(',') if a.stamps else False
    for kv in a.set:
        kk, vv = kv.split('=', 1)
        try: vv = eval(vv)
        except Exception: pass
        setattr(cfg, kk, vv)
    k = build()
    errs = simulate(k.tr, 'trace')
    errs += check_hazards(k.tr, 'haz')
    txt = k.p.text()
    txt = txt.replace('CODEOFF', f'((L_pc - {NAME}_kernel) & 0xffffff00)').replace('CODELEN', f'(L_codeend - {NAME}_kernel - 128)')
    open(a.o, 'w').write(txt)
    print('written', a.o, 'errors:', len(errs), 'trace len', len(k.tr))
```

```python
import sys, math, struct
from asmlib import *

NAME = 'standalone__mha_block_cached__near_ridge'

class Cfg:
    stamps = False
    kv_flag = ' nt'
    x_flag = ''
    w_flag = ''
    wo_flag = ''
    force_safe = False
    ablate = ''
    l1inv = False
    codepf = 1
    crot = 0
    burst1 = True
    poll_exec = False
    tail2 = False
    late_final = False
    poll_sleep = 4
    sleep_all = False
    f2_mask = 0
    womall = False
    wo_coop = False
    ost_flag = ' sc1'
    epi_early = True
    tp_late = False
    exp_enc = ''
    loop_align = 3
    loop_nop = 0
    late_mode = 0
    kv0_at = (6, 1)
    k1_at = (7, 1)
    D = 2
    perm = False
    w4 = False
    wmall = False
    rot = True
    pad = 0
    dbgstamps = 0
    mapx = False
    dualflag = True
    out_flag = ''
    bswap = 0
    coop_pre = (0, 1, 2, 3)
    coop_mid = ()
    coop_skip = ()
    coop_wait = 0
    early_ost = True
    own_split = (0, 3)
    ps0_every = 2
    f2a_c = 10
    fin0_c = 14
    l3_every = 6
    kv_same = False
cfg = Cfg()

sW = 3
sX, sWq, sK, sV, sWS, sWo, sOut = 20, 24, 28, 32, 36, 40, 44
sW4K = 48; sKsoff = 49; sVsoff = 50; sDma = 51; sXor = 52; sIter = 53
sT0, sT1, sT2, sT3 = 54, 55, 56, 57
sC = 58
sXsoff = 60; sWsoff = 61; sW8K = 62; sDelta = 63
sB = 64; sH = 65; sJ = 66; sMode = 67
sKg = 68; sNb = 69; sRot = 70; sPass = 71
sRc = 94; sCo = 95
sStamp = 72

vLane = 1
vT = 2
vKA = 8
vVA = 12
vDK = 20
vDV = 24
vMG = 26
vT2 = 30
vS = 32
vC = 64
vP = 80
vL = 96
vXA = 112; vWA = 114
vWB = 120
vCo = 118
vOX = 32; vOW = 40
vWoD = 112
vWoR = 121
vAcc = 128
aQ = 0; aKf = 64; aVf = 96; aOnes = 252; aZero = 188
aPA = 96; aPB = 64

def O(dt, qt): return vAcc + (dt * 4 + qt) * 4
def S(qt, kt): return vS + qt * 8 + kt * 4
def CI(qt): return vC + 4 * qt
def P(qt): return vP + 4 * qt
def LA(qt): return vL + 4 * qt
def Qf(qt, ds): return aQ + (qt * 4 + ds) * 4
def Kf(m): return aKf + 4 * m
def Vf(dt): return aVf + 4 * dt

LDS_V = 65536
XS = [32768, 81920]
WS = [114688, 131072, 147456, 16384]
def NWS(): return 4 if cfg.mapx and cfg.w4 else 3
OBASE = 0
PBASE = 16 << 20
FBASE = 60 << 20
FTWIN = 1 << 16
STAMPBASE = 64 << 20

def kb(fn): return ','.join(str(fn(w) // 1024) for w in range(4))
def stamp_reg(i): return [72, 76, 80, 84, 92][i]
def mfma(d, a, b, c): return f'v_mfma_f32_16x16x32_bf16 {d}, {a}, {b}, {c}'

class Slots:
    def __init__(self, n):
        self.pre = [[] for _ in range(n)]
        self.post = [[] for _ in range(n)]
        self.mf = [None] * n
    def out(self):
        o = []
        for i in range(len(self.mf)):
            o += self.pre[i]
            if self.mf[i]: o.append(self.mf[i])
            o += self.post[i]
        return o
    def load(self):
        def cost(x):
            mn = x.split()[0]
            if mn.startswith('v_exp') or mn.startswith('v_rcp'): return 8
            return 4
        n = len(self.mf); res = []
        for i in range(n):
            g = self.post[i] + (self.pre[i + 1] if i + 1 < n else [])
            res.append(sum(cost(x) for x in g))
        return res

def dma_K(tile, slot, soff):
    L = []
    for p in range(4):
        a = lambda w, p=p: slot * 16384 + w * 4096 + p * 1024
        L.append(f'buffer_load_dwordx4 v{vDK+p}, s[{sK}:{sK+3}], {soff} offen offset:{p*1024}{cfg.kv_flag} lds ; @dma K{tile} {kb(a)}')
    return L
def dma_V(tile, slot, soff):
    L = []
    for p in range(4):
        a = lambda w, p=p: LDS_V + slot * 16384 + w * 4096 + p * 1024
        L.append(f'buffer_load_dwordx4 v{vDV+(p&1)}, s[{sV}:{sV+3}], {soff} offen offset:{p*1024}{cfg.kv_flag} lds ; @dma V{tile} {kb(a)}')
    return L

def chunk_off(c, dst, shift):
    if not cfg.crot: return [f's_mov_b32 s{dst}, {c << shift}']
    return [f's_add_u32 s{sDelta}, s{sRc}, {c}', f's_cmp_ge_u32 s{sDelta}, 9', f's_cselect_b32 s{dst}, 9, 0', f's_sub_u32 s{sDelta}, s{sDelta}, s{dst}', f's_lshl_b32 s{dst}, s{sDelta}, {shift}']
def dma_W(c):
    G = []
    for p in range(4):
        a = lambda w, p=p: WS[c % NWS()] + w * 4096 + p * 1024
        ins = f'buffer_load_dwordx4 v{vOW+p}, s[{sWq}:{sWq+3}], s{sWsoff} offen offset:{p*1024}{cfg.w_flag} lds ; @dma W{c} {kb(a)}'
        g = [ins]
        if p == 0: g = [f's_add_u32 m0, s{sW4K}, {WS[c%NWS()]}'] + chunk_off(c, sWsoff, 19) + [ins]
        G.append(g)
    return G
def dma_X(c):
    G = []
    for p in range(8):
        a = lambda w, p=p: XS[c % 2] + w * 8192 + p * 1024
        ins = f'buffer_load_dwordx4 v{vOX+p}, s[{sX}:{sX+3}], s{sXsoff} offen offset:{(p&3)*1024}{cfg.x_flag} lds ; @dma X{c} {kb(a)} priv'
        g = [ins]
        if p == 0: g = [f's_add_u32 m0, s{sW8K}, {XS[c%2]}'] + chunk_off(c, sXsoff, 7) + [ins]
        if p == 4: g = [f's_add_u32 m0, s{sW8K}, {XS[c%2]+4096}', 's_nop 0', ins]
        G.append(g)
    return G

def kv_dma_addr():
    T = vT; L = vLane
    o = f'''v_lshrrev_b32 v{T+1}, 4, v{L}
v_and_b32 v{T+3}, 15, v{L}
v_mov_b32 v{T+4}, v{T+1}'''.split('\n')
    for p in range(4):
        o += [f'v_add_u32 v{T+2}, {4*p}, v{T+1}', f'v_xor_b32 v{T+2}, v{T+2}, v{T+3}', f'v_lshlrev_b32 v{T+2}, 4, v{T+2}', f'v_lshl_add_u32 v{vDK+p}, v{T+4}, 8, v{T+2}']
    for par in range(2):
        o += [f'v_add_u32 v{T+2}, {4*par}, v{T+1}', f'v_lshlrev_b32 v{T+2}, 1, v{T+2}', f'v_xor_b32 v{T+2}, v{T+2}, v{T+3}', f'v_lshlrev_b32 v{T+2}, 4, v{T+2}', f'v_lshl_add_u32 v{vDV+par}, v{T+4}, 8, v{T+2}']
    return o
def kv_read_addr():
    T = vT; L = vLane
    o = [f'v_lshrrev_b32 v{T}, 4, v{L}', f'v_bfe_u32 v{T+1}, v{L}, 2, 2', f'v_and_b32 v{T+2}, 3, v{L}', f'v_and_b32 v{T+3}, 15, v{L}',
         f'v_lshlrev_b32 v{T+4}, 8, v{T+3}']
    for ds in range(4):
        o += [f'v_add_u32 v{T+5}, {4*ds}, v{T}', f'v_xor_b32 v{T+5}, v{T+5}, v{T+3}', f'v_lshl_add_u32 v{vKA+ds}, v{T+5}, 4, v{T+4}']
    o += f'''v_lshl_add_u32 v{T+4}, v{T}, 2, v{T+1}
v_and_b32 v{vT2}, 7, v{T+4}
v_lshlrev_b32 v{vT2}, 1, v{vT2}
v_lshlrev_b32 v{T+4}, 8, v{T+4}
v_and_b32 v{T+5}, 1, v{T+2}
v_lshl_add_u32 v{T+4}, v{T+5}, 3, v{T+4}
v_add_u32 v{T+4}, {LDS_V}, v{T+4}
v_lshrrev_b32 v{vT2+1}, 1, v{T+2}'''.split('\n')
    for dt in range(8):
        o += [f'v_add_u32 v{T+5}, {2*dt}, v{vT2+1}', f'v_xor_b32 v{T+5}, v{T+5}, v{vT2}', f'v_lshl_add_u32 v{vVA+dt}, v{T+5}, 4, v{T+4}']
    return o

def epi(qt):
    o = []
    for ds in range(4):
        for x in range(2):
            b_ = O(2 * ds + x, qt)
            o += [f'v_pk_mul_f32 v[{b_}:{b_+1}], v[{b_}:{b_+1}], s[{sC}:{sC+1}]', f'v_pk_mul_f32 v[{b_+2}:{b_+3}], v[{b_+2}:{b_+3}], s[{sC}:{sC+1}]']
        t = vC + (ds & 1) * 4
        for x in range(2):
            b_ = O(2 * ds + x, qt)
            o += [f'v_cvt_pk_bf16_f32 v{t+2*x}, v{b_}, v{b_+1}', f'v_cvt_pk_bf16_f32 v{t+2*x+1}, v{b_+2}, v{b_+3}']
        o += [f'v_accvgpr_write_b32 a{Qf(qt, ds)+i}, v{t+i}' for i in range(4)]
    return o
def kreads0(off): return [f'ds_read_b128 a[{Kf(m)}:{Kf(m)+3}], v{vKA+(m>>1)} offset:{off+(m&1)*4096} ; @rd K0' for m in range(8)]
def vreads0(): return [f'ds_read_b64_tr_b16 a[{Vf(n>>1)+2*(n&1)}:{Vf(n>>1)+2*(n&1)+1}], v{vVA+(n>>1)} offset:{8192+(n&1)*4096}' for n in range(16)]

def p1_reads(c, n, buf):
    A = aPA + buf * 32; B = aPB + buf * 16
    def W(dt, u):
        ds, x = dt >> 1, dt & 1
        st = c % NWS()
        reg, so = (vWA + ds, st * 16384) if st < 3 else (vWB + ds, 0)
        return f'ds_read_b64_tr_b16 a[{A+4*dt+2*u}:{A+4*dt+2*u+1}], v{reg} offset:{so+(32*n+4*u)*256+8*x} ; @rd W{c}'
    def X(qt): return f'ds_read_b128 a[{B+4*qt}:{B+4*qt+3}], v{vXA+n} offset:{(c%2)*49152+qt*2048} ; @rd X{c}'
    R = [X(0), W(0, 0), W(0, 1), X(1), X(2), X(3)]
    for dt in range(1, 8): R += [W(dt, 0), W(dt, 1)]
    return R

def p1_kstep(k, c, n, groups, last=False, fill=None):
    Sl = Slots(32)
    buf = n & 1
    final = last and n == 1 and cfg.epi_early
    for m in range(32):
        dt, qt = (m >> 2, m & 3) if not final else (m & 7, m >> 3)
        Sl.mf[m] = mfma(vr(O(dt, qt), 4), ar(aPA + buf * 32 + 4 * dt, 4), ar(aPB + buf * 16 + 4 * qt, 4), '0' if (c == 0 and n == 0) else vr(O(dt, qt), 4))
    if n == 0: R = p1_reads(c, 1, 1)
    else: R = [] if last else p1_reads(c + 1, 0, 0)
    if n == 1:
        vm = (k.vm_need({f'X{c+1}', f'W{c+1}'}) if not cfg.ablate else 20) if not last else (k.vm_need({'K0', 'Vm1'}) if final else 63)
        Sl.pre[0] += [f's_waitcnt vmcnt({vm}) lgkmcnt(0)', 's_barrier']
    else: Sl.pre[0] += ['s_waitcnt lgkmcnt(0)']
    if final:
        R = kreads0(0)[:4] + vreads0()
    ab = cfg.ablate
    if 'p1rd' in ab: R = []
    if 'p1x' in ab: groups = [[x for x in g if '@dma X' not in x] for g in groups]
    if 'p1w' in ab: groups = [[x for x in g if '@dma W' not in x] for g in groups]
    if 'p1kv' in ab: groups = [[x for x in g if '@dma K' not in x and '@dma V' not in x] for g in groups]
    for i, r in enumerate(R): Sl.post[2 * (i // 2)].append(r)
    if final:
        E0 = epi(0)
        g = 10
        while E0:
            n_ = (1 if len(Sl.post[g]) >= 2 else 3) if g < 31 else len(E0)
            Sl.post[g] += E0[:n_]; E0 = E0[n_:]; g = min(31, g + 1)
    if groups:
        nn = len(groups)
        for i, g in enumerate(groups):
            Sl.post[min(31, 1 + 2 * ((i * 16) // nn))] += g
    if fill:
        g = 1
        while fill and g < 32:
            if len(Sl.post[g]) == 0:
                for _ in range(2):
                    if fill:
                        x = fill.pop(0)
                        Sl.post[g] += x if isinstance(x, list) else [x]
                        if isinstance(x, list): break
            g += 1
    return Sl.out()

class Kernel:
    def __init__(self):
        self.p = Prog(); self.tr = []; self.nstamp = 0; self.q = []; self.nt_marks = []
    def e(self, s, text=True, trace=True):
        if isinstance(s, str): s = [x.strip() for x in s.split('\n') if x.strip()]
        if text: self.p(s)
        if trace: self.tr.extend(s)
    def stamp(self, name):
        if cfg.stamps and name in cfg.stamps:
            i = cfg.stamps.index(name); b = stamp_reg(i)
            self.e(f's_memrealtime s[{b}:{b+1}]\ns_memtime s[{b+2}:{b+3}]')
            self.nstamp = max(self.nstamp, i + 1)
    def vm_need(self, tags, incl=False):
        q = []
        marks = list(self.nt_marks)
        for pos, line in enumerate(self.tr + ['s_nop 0']):
            while incl and marks and marks[0] <= pos:
                q.append(None); marks.pop(0)
            code, _, com = line.partition(';')
            mn = code.split()[0] if code.split() else ''
            if mn.startswith('buffer_') and mn not in ('buffer_inv', 'buffer_wbl2') or mn.startswith('global_'):
                t = None
                a = com.split()
                if '@dma' in a: t = a[a.index('@dma') + 1]
                elif '@tag' in a: t = a[a.index('@tag') + 1]
                q.append(t)
        for t in tags: assert t in q, f'tag {t} was never issued'
        last = max((i for i, t in enumerate(q) if t in tags), default=-1)
        return min(63, len(q) - 1 - last)

    def header(self):
        self.p(f'; @launch grid=(256,1,1) block=(256,1,1) lds=163840')
        if cfg.stamps: self.p('; stamps: ' + ','.join(cfg.stamps))
        self.p('''; Fused MHA block (Q projection, attention over the cached K/V, output projection), one workgroup per (batch, head), one per CU.
;  phase 1  Q^T = Wq_h^T X^T.  X / Wq tiles go through LDS (LDS-DMA, swizzled on the source side); every XCD first warms its L2 cooperatively.
;  phase 2  S^T = K Q^T, P = exp2(S - m), O^T += V^T P^T, row sums by a ones-MFMA.  K/V stream through an LDS ring (key order rotated per workgroup).
;           Wo slice (prefetched into LDS during the last attention steps); partial sums are reduce-scattered through ws.
;           A twin flag written with a plain store only shortens the wait when reader and writer share an L2; either flag implies the data is visible.''')
        self.p('.amdgcn_target "amdgcn-amd-amdhsa--gfx950"\n.text')
        self.p(f'.globl {NAME}_kernel\n.p2align 8\n.type {NAME}_kernel,@function\n{NAME}_kernel:')
    def footer(self):
        self.p('L_end:\ns_endpgm')
        self.p('.p2align 6\nL_codeend:')
        self.p('.section .rodata,"a"\n.p2align 6')
        self.p(f'.amdhsa_kernel {NAME}_kernel')
        self.p('''.amdhsa_next_free_vgpr 512
.amdhsa_next_free_sgpr 102
.amdhsa_accum_offset 256
.amdhsa_group_segment_fixed_size 0
.amdhsa_kernarg_size 64
.amdhsa_user_sgpr_count 2
.amdhsa_user_sgpr_kernarg_segment_ptr 1
.amdhsa_system_sgpr_workgroup_id_x 1
.end_amdhsa_kernel''')

    def code_prefetch(self, where):
        e = self.e
        if cfg.codepf == where:
            e(f'''s_getpc_b64 s[{sT2}:{sT2+1}]
L_pc:
v_and_b32 v{vT+5}, 15, v{vLane}
s_lshr_b32 s{sT0}, s2, 3
s_and_b32 s{sT2}, s{sT2}, 0xffffff00
s_lshl_b32 s{sT0}, s{sT0}, 4
s_sub_u32 s{sT2}, s{sT2}, CODEOFF
v_add_u32 v{vT+5}, s{sT0}, v{vT+5}
s_subb_u32 s{sT3}, s{sT3}, 0
v_lshlrev_b32 v{vT+5}, 7, v{vT+5}
v_min_u32 v{vT+5}, CODELEN, v{vT+5}
global_load_dword v92, v{vT+5}, s[{sT2}:{sT2+1}]''')

    def setup(self):
        e = self.e
        e('s_cmp_ge_u32 s2, 256\ns_cbranch_scc1 L_end')
        if cfg.perm: e('s_lshr_b32 s3, s2, 3\ns_and_b32 s3, s3, 7\ns_xor_b32 s2, s2, s3')
        self.stamp('entry')
        e(f's_load_dwordx16 s[4:19], s[0:1], 0')
        e(f'''v_and_b32 v{vLane}, 63, v0
v_lshrrev_b32 v{vT}, 6, v0
s_and_b32 s{sT0}, s2, 7
s_lshr_b32 s{sJ}, s2, 3
v_readfirstlane_b32 s{sW}, v{vT}
s_and_b32 s{sB}, s{sT0}, 1
s_xor_b32 s{sB}, s{sB}, {cfg.bswap}
s_lshl_b32 s{sB}, s{sB}, 2
s_and_b32 s{sT1}, s{sJ}, 3
s_add_u32 s{sB}, s{sB}, s{sT1}
s_lshr_b32 s{sH}, s{sT0}, 1
s_lshl_b32 s{sH}, s{sH}, 3
s_lshr_b32 s{sT1}, s{sJ}, 2
s_add_u32 s{sH}, s{sH}, s{sT1}
MAPX
s_lshr_b32 s{sKg}, s{sH}, 2
s_and_b32 s{sNb}, s{sH}, 3
s_lshl_b32 s{sW4K}, s{sW}, 12
ROT
'''.replace('ROT', f's_add_u32 s{sRot}, s{sH}, s{sB}\ns_and_b32 s{sRot}, s{sRot}, 15\ns_lshl_b32 s{sRot}, s{sRot}, 14\ns_add_u32 s{sRot}, s{sRot}, s{sW4K}' if cfg.rot else f's_mov_b32 s{sRot}, s{sW4K}').replace('MAPX', f's_mov_b32 s{sB}, s{sT0}\ns_mov_b32 s{sH}, s{sJ}' if cfg.mapx else 's_nop 0'))
        if cfg.crot: e(f's_and_b32 s{sRc}, s2, 7\ns_mul_i32 s{sRc}, s{sRc}, {cfg.crot}\ns_cmp_ge_u32 s{sRc}, 9\ns_cselect_b32 s{sDelta}, 9, 0\ns_sub_u32 s{sRc}, s{sRc}, s{sDelta}\ns_cmp_ge_u32 s{sRc}, 9\ns_cselect_b32 s{sDelta}, 9, 0\ns_sub_u32 s{sRc}, s{sRc}, s{sDelta}')
        L = vLane; T = vT
        e(f'''v_lshrrev_b32 v{T}, 3, v{L}
s_lshl_b32 s{sT0}, s{sW}, 6
v_add_u32 v{T}, s{sT0}, v{T}
v_mul_u32_u24 v{T}, 1152, v{T}
v_lshrrev_b32 v{T+1}, 4, v{L}
v_and_b32 v{T+2}, 7, v{L}
v_xor_b32 v{T+3}, v{T+2}, v{T+1}
v_xor_b32 v{T+4}, 4, v{T+3}
v_lshl_add_u32 v{T+3}, v{T+3}, 4, v{T}
v_lshl_add_u32 v{T+4}, v{T+4}, 4, v{T}''')
        for p in range(8):
            e(f'v_add_u32 v{vOX+p}, {p*9216 - (p&3)*1024}, v{T+3+(p&1)}')
        e(f'''v_lshlrev_b32 v{T+2}, 2, v{T+1}
v_and_b32 v{T+3}, 15, v{L}
v_xor_b32 v{T+2}, v{T+2}, v{T+3}
v_lshlrev_b32 v{T+2}, 4, v{T+2}
s_lshl_b32 s{sT0}, s{sW}, 4
v_add_u32 v{T+4}, s{sT0}, v{T+1}
v_lshl_add_u32 v{T+5}, v{T+4}, 13, v{T+2}''')
        for p in range(4):
            e(f'v_add_u32 v{vOW+p}, {p*(32768-1024)}, v{T+5}')
        e(f'''v_lshrrev_b32 v{T+5}, 3, v{L}
s_lshr_b32 s{sT0}, s{sJ}, 2
s_lshl_b32 s{sT0}, s{sT0}, 5
s_lshl_b32 s{sT1}, s{sW}, 3
s_add_u32 s{sT0}, s{sT0}, s{sT1}
v_add_u32 v{T+5}, s{sT0}, v{T+5}
v_mul_u32_u24 v{T+5}, 1152, v{T+5}
v_and_b32 v{T+2}, 7, v{L}
v_lshl_add_u32 v{vCo}, v{T+2}, 4, v{T+5}
s_and_b32 s{sT0}, s{sJ}, 3
s_lshl_b32 s{sT0}, s{sT0}, 4
s_lshl_b32 s{sT1}, s{sW}, 2
s_add_u32 s{sT0}, s{sT0}, s{sT1}
v_add_u32 v{T+5}, s{sT0}, v{T+1}
v_lshlrev_b32 v{T+5}, 13, v{T+5}
v_and_b32 v{T+2}, 15, v{L}
v_lshl_add_u32 v{vCo+1}, v{T+2}, 4, v{T+5}''')
        if cfg.mapx:
            e(f'''v_lshrrev_b32 v{T+5}, 3, v{L}
s_lshl_b32 s{sT0}, s{sJ}, 3
v_add_u32 v{T+5}, s{sT0}, v{T+5}
v_mul_u32_u24 v{T+5}, 1152, v{T+5}
v_and_b32 v{T+2}, 7, v{L}
v_lshl_add_u32 v{vCo}, v{T+2}, 4, v{T+5}''')
        e('s_waitcnt lgkmcnt(0)')
        self.stamp('karg')
        if cfg.l1inv:
            e(f's_cmp_eq_u32 s{sW}, 0\ns_cbranch_scc0 L_noinv\nbuffer_inv sc1', trace=False)
            self.p('L_noinv:')
        e(f'''s_mul_i32 s{sT0}, s{sB}, 294912
s_add_u32 s{sX}, s4, s{sT0}
s_addc_u32 s{sX+1}, s5, 0
s_mov_b32 s{sX+2}, 294912
s_mov_b32 s{sX+3}, 0x20000
s_lshl_b32 s{sT0}, s{sH}, 8
s_add_u32 s{sWq}, s10, s{sT0}
s_addc_u32 s{sWq+1}, s11, 0
s_sub_u32 s{sWq+2}, 4718592, s{sT0}
s_mov_b32 s{sWq+3}, 0x20000
s_mov_b32 s{sWS}, s18
s_mov_b32 s{sWS+1}, s19
s_mov_b32 s{sWS+2}, 0x8000000
s_mov_b32 s{sWS+3}, 0x20000''')
        e(f's_lshl_b32 s{sW8K}, s{sW}, 13')
        def coop(c):
            if cfg.mapx:
                if c >= 3: return []
                d = 44 + 4 * c
                return [f's_lshl_b32 s{sT1}, s{sW}, 7', f'buffer_load_dwordx4 v[{d}:{d+3}], v{vCo}, s[{sX}:{sX+3}], s{sT1} offen offset:{c*512} ; @tag CO{c}']
            d = 44 + 8 * c if c < 6 else 96 + 8 * (c - 6) if c < 8 else 120
            return chunk_off(c, sCo, 19) + [f'buffer_load_dwordx4 v[{d}:{d+3}], v{vCo+1}, s[{sWq}:{sWq+3}], s{sCo} offen ; @tag CO{c}',
                    f's_lshr_b32 s{sCo}, s{sCo}, 12', f'buffer_load_dwordx4 v[{d+4}:{d+7}], v{vCo}, s[{sX}:{sX+3}], s{sCo} offen ; @tag CO{c}']
        for c in cfg.coop_pre: e(coop(c))
        self.code_prefetch(1)
        self.coop = coop
        self.stamp('dma0')
        e(f'''s_lshl_b32 s{sT0}, s{sB}, 5
s_add_u32 s{sT0}, s{sT0}, s{sH}
s_lshl_b32 s{sT0}, s{sT0}, 18''')
        if cfg.kv_same: e(f's_mov_b32 s{sT0}, 0')
        e(f'''s_add_u32 s{sK}, s6, s{sT0}
s_addc_u32 s{sK+1}, s7, 0
s_mov_b32 s{sK+2}, 262144
s_mov_b32 s{sK+3}, 0x20000
s_add_u32 s{sV}, s8, s{sT0}
s_addc_u32 s{sV+1}, s9, 0
s_mov_b32 s{sV+2}, 262144
s_mov_b32 s{sV+3}, 0x20000''')
        e(f'''s_mul_i32 s{sT0}, s{sKg}, {512*1152}
s_mul_i32 s{sT1}, s{sNb}, 288
s_add_u32 s{sT0}, s{sT0}, s{sT1}
s_add_u32 s{sWo}, s12, s{sT0}
s_addc_u32 s{sWo+1}, s13, 0
s_sub_u32 s{sWo+2}, 4718592, s{sT0}
s_mov_b32 s{sWo+3}, 0x20000
s_mov_b32 s{sOut}, s14
s_mov_b32 s{sOut+1}, s15
s_mov_b32 s{sOut+2}, 2359296
s_mov_b32 s{sOut+3}, 0x20000''')
        e(kv_dma_addr())
        self.stamp('cw0')
        if cfg.coop_wait is not None: e(f's_waitcnt vmcnt({self.vm_need({f"CO{cfg.coop_wait}"})})')
        self.stamp('cw1')
        for g in dma_W(0) + dma_X(0): e(g)
        for c in cfg.coop_mid: e(self.coop(c))
        self.code_prefetch(2)
        self.stamp('d0')
        e(f'''v_lshrrev_b32 v{T}, 4, v{L}
v_bfe_u32 v{T+1}, v{L}, 2, 2
v_and_b32 v{T+2}, 3, v{L}
v_and_b32 v{T+3}, 15, v{L}''')
        e(f'''v_lshl_add_u32 v{T+4}, v{T}, 3, v{T+1}
v_lshlrev_b32 v{T+4}, 8, v{T+4}
v_lshl_add_u32 v{T+4}, v{T+2}, 4, v{T+4}
v_add_u32 v{T+4}, {WS[0]}, v{T+4}''')
        for ds in range(4):
            e(f'v_xor_b32 v{T+5}, {ds}, v{T+1}\nv_lshl_add_u32 v{vWA+ds}, v{T+5}, 6, v{T+4}')
        if NWS() == 4:
            for ds in range(4): e(f'v_subrev_u32 v{vWB+ds}, {WS[0]-WS[3]}, v{vWA+ds}')
        e(f'''s_lshl_b32 s{sT0}, s{sW}, 13
s_add_u32 s{sT0}, s{sT0}, {XS[0]}
v_lshlrev_b32 v{T+4}, 7, v{T+3}
v_add_u32 v{T+4}, s{sT0}, v{T+4}
v_lshrrev_b32 v{vT2}, 1, v{T+3}''')
        for n in range(2):
            e(f'''v_add_u32 v{T+5}, {4*n}, v{T}
v_xor_b32 v{T+5}, v{T+5}, v{vT2}
v_lshl_add_u32 v{vXA+n}, v{T+5}, 4, v{T+4}''')
        e(kv_read_addr())
        cbits = '0x%08x' % int.from_bytes(struct.pack('<f', math.log2(math.e) / math.sqrt(128.0)), 'little')
        e(f's_mov_b32 s{sC}, {cbits}\ns_mov_b32 s{sC+1}, {cbits}')
        e(f'v_mov_b32 v{T+5}, 0x3f803f80')
        for i in range(4): e(f'v_accvgpr_write_b32 a{aOnes+i}, v{T+5}')
        for i in range(4): e(f'v_accvgpr_write_b32 a{aZero+i}, 0')
        for i in range(4): e(f'v_mov_b32 v{vMG+i}, 0xff800000')
        e(f's_mov_b32 s{sPass}, 0\ns_mov_b32 s{sMode}, 0')
        for g in dma_W(1) + dma_X(1): e(g)
        self.code_prefetch(3)
        if cfg.wmall:
            e(f'''s_mul_i32 s{sT0}, s2, 18432
s_mul_i32 s{sT1}, s{sW}, 4608
s_add_u32 s{sT0}, s{sT0}, s{sT1}
s_lshl_b32 s{sT1}, s{sH}, 8
s_sub_u32 s{sT0}, s{sT0}, s{sT1}
v_lshlrev_b32 v{T+5}, 4, v{L}''')
            for i in range(5):
                e(f'buffer_load_dwordx4 v[{56+4*i}:{59+4*i}], v{T+5}, s[{sWq}:{sWq+3}], s{sT0} offen offset:{min(i*1024, 3584)} ; @tag WM')
        self.stamp('d1')
        e(f'''s_lshl_b32 s{sT0}, s{sB}, 5
s_add_u32 s{sT0}, s{sT0}, s{sH}
s_lshl_b32 s{sT0}, s{sT0}, 7
s_add_u32 s{sT0}, s{sT0}, {FBASE}
v_mov_b32 v{T+2}, 0
v_and_b32 v{T+3}, 15, v{L}
v_lshlrev_b32 v{T+5}, 2, v{T+3}
v_bfe_u32 v{T+1}, v{L}, 4, 1
v_mul_u32_u24 v{T+1}, {FTWIN}, v{T+1}
v_add_u32 v{T+5}, v{T+5}, v{T+1}
v_cmp_gt_u32 vcc, 32, v{L}
v_mov_b32 v{T+4}, 0x7fffffff
s_cmp_eq_u32 s{sW}, 0
s_cselect_b64 vcc, vcc, 0
s_nop 1
v_cndmask_b32 v{T+5}, v{T+4}, v{T+5}, vcc
buffer_store_dword v{T+2}, v{T+5}, s[{sWS}:{sWS+3}], s{sT0} offen sc1 ; @tag CLR''')

    def phase1(self):
        e = self.e
        self.stamp('p1wait')
        n0 = self.vm_need({'X0', 'W0'})
        e(f's_waitcnt vmcnt({n0})\ns_barrier')
        self.stamp('p1go')
        e(p1_reads(0, 0, 0))
        def one(G, m0, extra=()):
            G = [[x] for x in G]
            G[0] = [m0] + list(extra) + (['s_nop 0'] if not extra else []) + G[0]
            return G
        K0 = one(dma_K(0, 0, f's{sKsoff}'), f's_mov_b32 m0, s{sW4K}', [f's_mov_b32 s{sKsoff}, s{sRot}'])
        K1 = one(dma_K(1, 1, f's{sKsoff}'), f's_add_u32 m0, s{sW4K}, 16384', [f's_add_u32 s{sKsoff}, s{sRot}, 16384', f's_and_b32 s{sKsoff}, s{sKsoff}, 0x3ffff'])
        K2 = one(dma_K(2, 2, f's{sKsoff}'), f's_add_u32 m0, s{sW4K}, {2*16384}', [f's_add_u32 s{sKsoff}, s{sRot}, {2*16384}', f's_and_b32 s{sKsoff}, s{sKsoff}, 0x3ffff'])
        V0 = one(dma_V(0, 1, f's{sVsoff}'), f's_add_u32 m0, s{sW4K}, {LDS_V+16384}', [f's_add_u32 s{sVsoff}, s{sRot}, 8192', f's_and_b32 s{sVsoff}, s{sVsoff}, 0x3ffff'])
        V1 = one(dma_V(1, 2, f's{sVsoff}'), f's_add_u32 m0, s{sW4K}, {LDS_V+2*16384}', [f's_add_u32 s{sVsoff}, s{sRot}, {8192+16384}', f's_and_b32 s{sVsoff}, s{sVsoff}, 0x3ffff'])
        Vm = [[f's_lshl_b32 s{sT2}, s{sW}, 11', f's_add_u32 m0, s{sT2}, {LDS_V + 8192}', f's_sub_u32 s{sT2}, s{sRot}, s{sT2}']]
        for p in range(2):
            a = lambda w, p=p: LDS_V + 8192 + w * 2048 + p * 1024
            ins = f'buffer_load_dwordx4 v{vDV+p}, s[{sV}:{sV+3}], s{sT2} offen offset:{p*1024}{cfg.kv_flag} lds ; @dma Vm1 {kb(a)}'
            if p == 0: Vm[0].append(ins)
            else: Vm.append([ins])
        plan = {}
        rest = [c for c in range(9) if c not in cfg.coop_pre and c not in cfg.coop_mid and c not in cfg.coop_skip]
        plan[(0, 0)] = [self.coop(c) for c in rest] + dma_W(2)
        for c in range(9):
            g1 = []
            if c + 2 <= 8: g1 += dma_X(c + 2)
            plan[(c, 1)] = g1
            if NWS() == 3 and c + 3 <= 8: plan[(c + 1, 0)] = dma_W(c + 3)
        if NWS() == 4:
            plan[(0, 0)] = plan[(0, 0)] + dma_W(3)
            plan[(2, 0)] = dma_W(4) + dma_W(5)
            plan[(4, 0)] = dma_W(6) + dma_W(7)
            plan[(5, 0)] = dma_W(8)
        K3 = one(dma_K(3, 3, f's{sKsoff}'), f's_add_u32 m0, s{sW4K}, {3*16384}', [f's_add_u32 s{sKsoff}, s{sRot}, {3*16384}', f's_and_b32 s{sKsoff}, s{sKsoff}, 0x3ffff'])
        V2 = one(dma_V(2, 3, f's{sVsoff}'), f's_add_u32 m0, s{sW4K}, {LDS_V+3*16384}', [f's_add_u32 s{sVsoff}, s{sRot}, {8192+2*16384}', f's_and_b32 s{sVsoff}, s{sVsoff}, 0x3ffff'])
        self.prefill = K0 + Vm + K1 + V0 + V1 + K2 + (V2 + K3 if cfg.D == 3 else [])
        plan[cfg.kv0_at] = plan.get(cfg.kv0_at, []) + K0 + Vm
        plan[cfg.k1_at] = plan.get(cfg.k1_at, []) + K1
        if cfg.womall:
            g0 = [f's_mul_i32 s63, s{sKg}, {512*1152}', f's_mul_i32 s60, s{sNb}, 288', 's_add_u32 s63, s63, s60', f's_sub_u32 s60, s{sWo}, s63', f's_subb_u32 s61, s{sWo+1}, 0',
                  's_mul_i32 s63, s2, 18432', f's_mul_i32 s62, s{sW}, 4608', 's_add_u32 s63, s63, s62', f'v_lshlrev_b32 v{vT+3}, 4, v{vLane}', f'v_add_u32 v{vT+3}, s63, v{vT+3}']
            WM = [[f'global_load_dwordx4 a[{164+4*i}:{167+4*i}], v{vT+3}, s[60:61] offset:{min(i*1024, 3584)} ; @tag WM'] for i in range(5)]
            WM[0] = g0 + WM[0]
            plan[cfg.womall] = plan.get(cfg.womall, []) + WM
        plan[(8, 0)] = V0
        if cfg.late_mode == 0:
            plan[(8, 1)] = V1
            self.late_kv = K2 + (V2 + K3 if cfg.D == 3 else []); self.last_kv = []
        elif cfg.late_mode == 1:
            self.late_kv = []; self.last_kv = V1 + K2
        else:
            plan[(8, 1)] = V1
            self.late_kv = []; self.last_kv = K2
        from g2p3 import wo_setup, p3_scalars
        fill = wo_setup() + p3_scalars()
        for c in range(9):
            for n in range(2):
                e(p1_kstep(self, c, n, plan.get((c, n), []), last=(c == 8), fill=(fill if c >= 1 else None)))
            if c == 7: assert not fill
            if c == 3:
                e(f'''s_lshl_b32 s{sT3}, s{sB}, 5
v_mov_b32 v{vT+4}, s{sT3}
v_mov_b32 v{vT+5}, 1
s_cmp_eq_u32 s{sW}, 0
s_cbranch_scc0 L_noreg
s_mov_b64 exec, 1
global_atomic_add v{vT+4}, v{vT+5}, s[16:17] sc1
s_mov_b64 exec, -1''', trace=False)
                self.p('L_noreg:')
            if c == 5: self.stamp('p1c6')
            self.stamp(f'c{c}')
        self.stamp('p1end')
        self.late_kv_pending = self.late_kv; self.late_kv = []
        assert not self.late_kv
    QK = [0, 17, 34, 42]
    PV = [50, 59, 8, 25]
    LS = [58, 67, 16, 33]
    EX = [11, 29, 45, 63]
    VG = [26, 27, 27, 28, 28, 30, 30, 32, 34, 34, 36, 38, 38, 40, 42, 42]
    KG = [44, 46, 46, 50, 50, 52, 54, 54]
    def step(self, k, par, kind='full', extra=None):
        NS = 68
        Sl = Slots(NS)
        it = k // 2; ktile = it + 1; vtile = it
        last = kind == 'last'
        for qt in range(4):
            if not last:
                for m in range(8):
                    ds, kt = m >> 1, m & 1
                    Sl.mf[self.QK[qt] + m] = mfma(vr(S(qt, kt), 4), ar(Kf(m), 4), ar(Qf(qt, ds), 4), vr(CI(qt) if ds == 0 else S(qt, kt), 4))
            if not last or qt >= 2:
                for dt in range(8):
                    Sl.mf[self.PV[qt] + dt] = mfma(vr(O(dt, qt), 4), ar(Vf(dt), 4), vr(P(qt), 4), vr(O(dt, qt), 4))
                Sl.mf[self.LS[qt]] = mfma(vr(LA(qt), 4), ar(aOnes, 4), vr(P(qt), 4), vr(LA(qt), 4))
        mem = [[] for _ in range(NS)]; alu = [[] for _ in range(NS)]
        def put(g, ins):
            g %= NS
            mn = ins.split()[0]
            (mem if mn.startswith('ds_') or mn.startswith('buffer_') or mn.startswith('global_') else alu)[g].append(ins)
        for qt in range(4):
            for i in range(8):
                g = self.EX[qt] + 2 * i
                if last and g < NS: continue
                r = S(qt, i >> 2) + (i & 3)
                put(g, f'v_exp_f32{cfg.exp_enc} v{r}, v{r}')
            for n in range(4):
                g = self.EX[qt] + 4 * n + 3
                if last and g < NS: continue
                r = S(qt, n >> 1) + 2 * (n & 1)
                if last and Sl.mf[g % NS] is None: put(g, 's_nop 0')
                put(g, f'v_cvt_pk_bf16_f32 v{P(qt)+n}, v{r}, v{r+1}')
        if last: Sl.pre[8].append('s_nop 1')
        if not last:
            for n in range(16):
                dt, u = n >> 1, n & 1
                put(self.VG[n], f'ds_read_b64_tr_b16 a[{Vf(dt)+2*u}:{Vf(dt)+2*u+1}], v{vVA+dt} offset:{par*8192+u*4096}')
            if kind == 'full':
                for m in range(8):
                    ds, kt = m >> 1, m & 1
                    put(self.KG[m], f'ds_read_b128 a[{Kf(m)}:{Kf(m)+3}], v{vKA+ds} offset:{par*8192+kt*4096}')
            nk = sum(1 for g in self.KG if g <= 48) if kind == 'full' else 0
            Sl.pre[49].append(f's_waitcnt lgkmcnt({nk})')
            if kind == 'full': Sl.pre[67].append('s_waitcnt lgkmcnt(0)')
            if par == 0:
                Sl.pre[1] += ['s_waitcnt vmcnt(VMW)', 's_barrier']
                for dt in range(8): put([2, 4, 4, 6, 8, 8, 10, 14][dt], f'v_xor_b32{cfg.exp_enc} v{vVA+dt}, s{sXor}, v{vVA+dt}')
                for ds in range(4): put([18, 20, 20, 22][ds], f'v_xor_b32{cfg.exp_enc} v{vKA+ds}, s{sXor}, v{vKA+ds}')
        if extra:
            for g, L in extra.items():
                mem[g % NS] += L
        ab = cfg.ablate
        if ab and kind == 'full':
            if 'exp' in ab: alu = [[x for x in a if not x.startswith('v_exp')] for a in alu]
            if 'cvt' in ab: alu = [[x for x in a if not x.startswith('v_cvt')] for a in alu]
            if 'vrd' in ab: mem = [[x for x in a if not x.startswith('ds_read_b64')] for a in mem]
            if 'krd' in ab: mem = [[x for x in a if not x.startswith('ds_read_b128')] for a in mem]
            if 'dma' in ab: mem = [[x for x in a if not x.startswith('buffer_load')] for a in mem]
            if 'lsum' in ab:
                for qt in range(4): Sl.mf[self.LS[qt]] = None
        for g in range(NS): Sl.post[g] = mem[g] + alu[g]
        if cfg.pad and not last:
            for g in range(3, NS, max(1, NS // cfg.pad)): Sl.post[g].append('s_nop 3')
        self.last_load = Sl.load()
        return Sl.out()

    def kv_extra(self, it, par, doK=True, doV=True):
        slot = (it + 1 + cfg.D) & 3
        X = {}
        if par == 0:
            X.setdefault(61, []).append(f's_and_b32 s{sVsoff}, s{sVsoff}, 0x3ffff')
            if doK:
                D = dma_K(it + 1 + cfg.D, slot, f's{sKsoff}')
                X[12] = [f's_mov_b32 m0, s{sDma}']
                for g, d in zip((16, 24, 58, 64), D): X.setdefault(g, []).append(d)
                X.setdefault(64, []).append(f's_add_u32 s{sKsoff}, s{sKsoff}, 16384')
        else:
            X.setdefault(12, []).append(f's_and_b32 s{sKsoff}, s{sKsoff}, 0x3ffff')
            if doV:
                D = dma_V(it + cfg.D, slot, f's{sVsoff}')
                X[0] = [f's_add_u32 s{sT0}, s{sDma}, {LDS_V}']
                X[4] = [f's_mov_b32 m0, s{sT0}']
                for g, d in zip((8, 20, 58, 64), D): X.setdefault(g, []).append(d)
                X.setdefault(64, []).append(f's_add_u32 s{sVsoff}, s{sVsoff}, 16384')
            if cfg.D == 2:
                X.setdefault(61, []).append(f's_xor_b32 s{sXor}, s{sXor}, 0x8000')
                X.setdefault(62, []).append(f's_xor_b32 s{sDma}, s{sDma}, s{sXor}')
            else:
                X.setdefault(61, []).append(f's_xor_b32 s{sDma}, s{sDma}, s{sXor}')
                X.setdefault(62, []).append(f's_xor_b32 s{sXor}, s{sXor}, 0x8000')
            X.setdefault(62, []).append(f's_add_u32 s{sIter}, s{sIter}, 1')
        return X

    def phase2(self):
        e = self.e
        def qk0(qt):
            return [mfma(vr(S(qt, m & 1), 4), ar(Kf(m), 4), ar(Qf(qt, m >> 1), 4), '0' if m < 2 else vr(S(qt, m & 1), 4)) for m in range(8)]
        def weave(valu, mf, lead=2):
            o = []; n = len(valu); step_ = max(1, (n - lead) // max(1, len(mf))); j = 0
            for i, x in enumerate(valu):
                o.append(x)
                if i >= lead and (i - lead) % step_ == 0 and j < len(mf): o += mf[j] if isinstance(mf[j], list) else [mf[j]]; j += 1
            for x in mf[j:]: o += x if isinstance(x, list) else [x]
            return o
        kreads = kreads0
        vreads = vreads0()
        zero = lambda qt: [mfma(vr(O(dt, qt), 4), ar(aZero, 4), ar(aZero, 4), '0') for dt in range(8)] + [mfma(vr(LA(qt), 4), ar(aZero, 4), ar(aZero, 4), '0')]
        wait0 = f's_waitcnt vmcnt({self.vm_need({"K0", "Vm1"})})'
        late = self.late_kv_pending
        if cfg.epi_early:
            e(kreads0(0)[4:])
            e('s_nop 1')
            E1 = epi(1)
            e(E1[:8]); e('s_waitcnt lgkmcnt(0)')
            e(weave(E1[8:], qk0(0)))
        else:
            e('s_nop 3')
            e(wait0); e('s_barrier')
            self.stamp('q0')
            e(kreads(0)); e(vreads)
            e(epi(0))
            self.stamp('q1')
            e('s_waitcnt lgkmcnt(15)\ns_waitcnt lgkmcnt(0)')
            e(weave(epi(1), qk0(0)))
        h_ = len(late) // 2
        e(weave(epi(2), qk0(1) + [g for g in late[:h_]]))
        e(weave(epi(3), qk0(2) + [g for g in late[h_:]]))
        self.stamp('q2')
        e('s_branch L_p2q3', trace=False)
        self.p('L_p2start:')
        R = [wait0, 's_barrier'] + kreads(0) + vreads + ['s_waitcnt lgkmcnt(0)'] + qk0(0) + qk0(1) + qk0(2)
        self.e([x.split(';')[0].strip() for x in R], trace=False)
        self.p('L_p2q3:')
        q3 = qk0(3); k1 = kreads(8192)
        z = zero(2) + zero(3)
        e('s_nop 1')
        for m in range(8):
            e(q3[m]); e(k1[m]); e(z[2*m:2*m+2])
        e(z[16:])
        self.stamp('q3')
        for qt in range(4):
            a, b = S(qt, 0), S(qt, 1); m = vT + qt
            e(f'v_max3_f32 v{m}, v{a}, v{a+1}, v{vMG+qt}\nv_max3_f32 v{m}, v{m}, v{a+2}, v{a+3}\nv_max3_f32 v{m}, v{m}, v{b}, v{b+1}\nv_max3_f32 v{m}, v{m}, v{b+2}, v{b+3}')
        for sw in ('v_permlane32_swap_b32', 'v_permlane16_swap_b32'):
            for qt in range(4): e(f'v_mov_b32 v{vC+qt}, v{vT+qt}')
            e('s_nop 0')
            for qt in range(4): e(f'{sw} v{vT+qt}, v{vC+qt}')
            for qt in range(4): e(f'v_max_f32 v{vT+qt}, v{vT+qt}, v{vC+qt}')
        def adds(qt): return [f'v_add_f32 v{S(qt,0)+i}, v{S(qt,0)+i}, v{CI(qt)}' for i in range(8)]
        def exps(qt, n=8): return [f'v_exp_f32 v{S(qt,0)+i}, v{S(qt,0)+i}' for i in range(n)]
        def cvts(qt, n=4): return [f'v_cvt_pk_bf16_f32 v{P(qt)+j}, v{S(qt, j >> 1) + 2 * (j & 1)}, v{S(qt, j >> 1) + 2 * (j & 1) + 1}' for j in range(n)]
        def pv0(qt): return [mfma(vr(O(dt, qt), 4), ar(Vf(dt), 4), vr(P(qt), 4), '0') for dt in range(8)] + [mfma(vr(LA(qt), 4), ar(aOnes, 4), vr(P(qt), 4), '0')]
        for qt in range(4): e(f'v_sub_f32 v{CI(qt)}, 0, v{vT+qt}')
        cin = [f'v_mov_b32 v{CI(qt)+r}, v{CI(qt)}' for qt in range(4) for r in range(1, 4)]
        e(adds(0)); e(exps(0)); e(adds(1)); e(cvts(0))
        self.stamp('q4')
        e('s_waitcnt lgkmcnt(0)')
        e(weave(exps(1) + adds(2) + cvts(1) + adds(3), pv0(0), lead=0))
        e(weave(exps(2) + exps(3, 3) + cin[:2] + cvts(2) + cvts(3, 1) + cin[2:], pv0(1), lead=1))
        for g in self.last_kv: e(g)
        e(f'''s_mov_b32 s{sXor}, 0x4000
s_add_u32 s{sDma}, s{sW4K}, {((1+cfg.D)&3)*16384}
s_add_u32 s{sKsoff}, s{sRot}, {(1+cfg.D)*16384}
s_and_b32 s{sKsoff}, s{sKsoff}, 0x3ffff
s_add_u32 s{sVsoff}, s{sRot}, {8192+cfg.D*16384}
s_and_b32 s{sVsoff}, s{sVsoff}, 0x3ffff
s_mov_b32 s{sIter}, 0''')
        self.stamp('p2loop')
        self.p(f'.p2align {cfg.loop_align}')
        for _ in range(cfg.loop_nop): self.p('s_nop 0')
        self.p('L_p2:')
        texts = []
        NL = 12
        for it in range(NL):
            L = self.step(2 * it, 0, 'full', self.kv_extra(it, 0)); l0 = self.last_load
            L += self.step(2 * it + 1, 1, 'full', self.kv_extra(it, 1)); l1 = self.last_load
            L = [x.replace('VMW', str(8 * (cfg.D - 1))) for x in L]
            L += [f's_cmp_lt_u32 s{sIter}, {NL}', 's_cbranch_scc1 L_p2']
            texts.append([x.split(';')[0].strip() for x in L])
            if it == 0:
                self.p(L); self.loop_body = L
                print('gap load step0:', l0); print('gap load step1:', l1)
            self.tr.extend(L)
        assert all(t == texts[0] for t in texts)
        self.stamp('p2peel')
        from g2p3 import peeled_tail
        peeled_tail(self)

    def fallback(self):
        e = lambda x: self.e(x, trace=False)
        self.p('L_fallback:')
        e('s_waitcnt vmcnt(0) lgkmcnt(0)\ns_barrier')
        e(kv_dma_addr()); e(kv_read_addr())
        for i in range(4): e(f'v_mov_b32 v{vMG+i}, 0xff800000')
        e(f's_mov_b32 s{sKsoff}, s{sW4K}')
        self.p('L_fb_loop:')
        e(f's_mov_b32 m0, s{sW4K}\ns_nop 0')
        e([x.split(';')[0] for x in dma_K(0, 0, f's{sKsoff}')])
        e('s_waitcnt vmcnt(0)\ns_barrier')
        for half in range(2):
            for m in range(8):
                ds, kt = m >> 1, m & 1
                e(f'ds_read_b128 a[{Kf(m)}:{Kf(m)+3}], v{vKA+ds} offset:{half*8192+kt*4096}')
            e('s_waitcnt lgkmcnt(0)')
            for qt in range(4):
                for m in range(8):
                    ds, kt = m >> 1, m & 1
                    e(mfma(vr(S(qt, kt), 4), ar(Kf(m), 4), ar(Qf(qt, ds), 4), '0' if ds == 0 else vr(S(qt, kt), 4)))
            e('s_nop 7')
            for qt in range(4):
                a, b = S(qt, 0), S(qt, 1); m = vMG + qt
                e(f'v_max3_f32 v{m}, v{m}, v{a}, v{a+1}\nv_max3_f32 v{m}, v{m}, v{a+2}, v{a+3}\nv_max3_f32 v{m}, v{m}, v{b}, v{b+1}\nv_max3_f32 v{m}, v{m}, v{b+2}, v{b+3}')
        e(f's_barrier\ns_add_u32 s{sKsoff}, s{sKsoff}, 16384\ns_cmp_lt_u32 s{sKsoff}, 262144\ns_cbranch_scc1 L_fb_loop')
        for g in self.prefill: e([x.split(';')[0] for x in g])
        e(f's_mov_b32 s{sMode}, 1\ns_branch L_p2start')

    def finish_stamps(self):
        if not cfg.stamps: return
        e = self.e
        if cfg.dbgstamps:
            e('s_waitcnt lgkmcnt(0)', trace=False)
            for n_, (wg, base) in enumerate(zip(cfg.dbgstamps, (1, 5, 9, 12))):
                e(f's_cmp_eq_u32 s2, {wg}\ns_cbranch_scc0 L_nodbg{n_}\ns_cmp_eq_u32 s{sW}, 0\ns_cbranch_scc0 L_nodbg{n_}', trace=False)
                vals = [(stamp_reg(1), stamp_reg(0)), (stamp_reg(2), stamp_reg(0)), (stamp_reg(2) + 2, stamp_reg(1) + 2)]
                for i, (x, y) in enumerate(vals):
                    e(f's_sub_u32 s{sT0}, s{x}, s{y}\nv_mov_b32 v{vT+2}, s{sT0}\nv_mov_b32 v{vT}, {4*(base+i)}\nglobal_store_dword v{vT}, v{vT+2}, s[16:17]', trace=False)
                self.p(f'L_nodbg{n_}:')
            return
        e(f'''s_waitcnt lgkmcnt(0)
s_lshl_b32 s{sT0}, s2, 2
s_add_u32 s{sT0}, s{sT0}, s{sW}
s_lshl_b32 s{sT0}, s{sT0}, 8
s_add_u32 s{sT0}, s{sT0}, {STAMPBASE}
s_add_u32 s18, s18, s{sT0}
s_addc_u32 s19, s19, 0
v_mov_b32 v{vT}, 0''')
        for i in range(self.nstamp):
            for j in range(4): e(f'v_mov_b32 v{vT+2+j}, s{stamp_reg(i)+j}')
            e(f'global_store_dwordx4 v{vT}, v[{vT+2}:{vT+5}], s[18:19] offset:{16*i}\ns_nop 1')

def build():
    k = Kernel()
    k.header(); k.setup(); k.phase1(); k.phase2()
    from g2p3 import phase3
    phase3(k)
    k.stamp('end')
    k.finish_stamps()
    k.e('s_endpgm', trace=False)
    k.fallback()
    k.footer()
    return k

def main():
    import argparse
    ap = argparse.ArgumentParser()
    ap.add_argument('-o', default=f'cdna_kernels/{NAME}.s')
    ap.add_argument('--stamps', default='')
    ap.add_argument('--set', action='append', default=[])
    a = ap.parse_args()
    cfg.stamps = a.stamps.split(',') if a.stamps else False
    for kv in a.set:
        kk, vv = kv.split('=', 1)
        try: vv = eval(vv)
        except Exception: pass
        setattr(cfg, kk, vv)
    k = build()
    errs = simulate(k.tr, 'trace')
    errs += check_hazards(k.tr, 'haz')
    txt = k.p.text()
    txt = txt.replace('CODEOFF', f'((L_pc - {NAME}_kernel) & 0xffffff00)').replace('CODELEN', f'(L_codeend - {NAME}_kernel - 128)')
    open(a.o, 'w').write(txt)
    print('written', a.o, 'errors:', len(errs), 'trace len', len(k.tr))
```
